```python
import torch

def _softmax(x, axis=-1):
    return torch.softmax(x, dim=axis)
def _gelu(x):
    return torch.nn.functional.gelu(x, approximate="tanh")
def _silu(x):
    return torch.nn.functional.silu(x)
def _sigmoid(x):
    return torch.sigmoid(x)
def _layernorm(x, axis=-1, eps=1e-5):
    m = x.mean(dim=axis, keepdim=True)
    v = x.var(dim=axis, keepdim=True, unbiased=False)
    return (x - m) / torch.sqrt(v + eps)
def _scatter_add(tgt, idx, src, axis=0):
    return tgt.clone().index_add_(axis, idx, src)
def _segment_sum(src, seg, n):
    out = torch.zeros((n,) + src.shape[1:], dtype=src.dtype)
    return out.index_add_(0, seg, src)
def _pad(x, pw):
    flat = tuple(v for pair in reversed(pw) for v in pair)
    return torch.nn.functional.pad(x, flat)

kernel_name = 'interleave_layers__sliding_local_dilated__glu_gated_glu__prompt'

def setup_inputs():

    _w = (lambda a: (lambda t: t.to(torch.bfloat16) if t.is_floating_point() else t)(torch.as_tensor(a)))
    def _A_setup():
        B, S, D = 1, 2048, 512
        return {
            "x": _w((lambda *s: torch.randn(*s, dtype=torch.bfloat16) * 0.05)(B, S, D)),
            "wqkv": _w((lambda *s: torch.randn(*s, dtype=torch.bfloat16) * 0.05)(D, 3 * D)),
            "wo": _w((lambda *s: torch.randn(*s, dtype=torch.bfloat16) * 0.05)(D, D)),
        }
    _A_in = _A_setup()

    def _B_setup():
        B, S, D, F = 1, 2048, 512, 1376
        return {
            "x": _w((lambda *s: torch.randn(*s, dtype=torch.bfloat16) * 0.05)(B, S, D)),
            "w_gate": _w((lambda *s: torch.randn(*s, dtype=torch.bfloat16) * 0.05)(D, F)),
            "w_up": _w((lambda *s: torch.randn(*s, dtype=torch.bfloat16) * 0.05)(D, F)),
            "w_down": _w((lambda *s: torch.randn(*s, dtype=torch.bfloat16) * 0.05)(F, D)),
        }
    _B_in = _B_setup()

    return {
        "A_x": _A_in["x"],
        "A_wqkv": _A_in["wqkv"],
        "A_wo": _A_in["wo"],
        "B_x": _B_in["x"],
        "B_w_gate": _B_in["w_gate"],
        "B_w_up": _B_in["w_up"],
        "B_w_down": _B_in["w_down"],
    }

def reference(A_x, A_wqkv, A_wo, B_x, B_w_gate, B_w_up, B_w_down):
    def _A_ref(x, wqkv, wo):
        B, S, D = x.shape
        H = 32; Dh = D // H
        W, dil = 8, 2
        qkv = (lambda x, *d: x.permute(*d))((x @ wqkv).reshape(B, S, 3, H, Dh), 2, 0, 3, 1, 4)
        q, k, v = qkv[0], qkv[1], qkv[2]
        scale = Dh ** -0.5
        pos = torch.arange(S)
        off = torch.arange(W) * dil
        idx = pos[:, None] - off[None, :]
        mask = idx >= 0
        idx_c = torch.where(mask, idx, 0).reshape(-1)
        kg = k[:, :, idx_c, :].reshape(B, H, S, W, Dh)
        vg = v[:, :, idx_c, :].reshape(B, H, S, W, Dh)
        logits = torch.einsum("bhsd,bhswd->bhsw", q, kg) * scale
        logits = torch.where(mask[None, None, :, :], logits, -1e9)
        attn = _softmax(logits, axis=-1)
        o = torch.einsum("bhsw,bhswd->bhsd", attn, vg)
        return (lambda x, *d: x.permute(*d))(o, 0, 2, 1, 3).reshape(B, S, D) @ wo

    def _B_ref(x, w_gate, w_up, w_down):
        g = torch.einsum("bsd,df->bsf", x, w_gate)
        u = torch.einsum("bsd,df->bsf", x, w_up)
        h = _sigmoid(g) * u
        return torch.einsum("bsf,fd->bsd", h, w_down)

    x = A_x
    x = x + _A_ref(_layernorm(x, axis=-1), A_wqkv, A_wo)
    x = x + _B_ref(_layernorm(x, axis=-1), B_w_gate, B_w_up, B_w_down)
    x = x + _A_ref(_layernorm(x, axis=-1), A_wqkv, A_wo)
    x = x + _B_ref(_layernorm(x, axis=-1), B_w_gate, B_w_up, B_w_down)
    return x
```

```python
import re

TRANS = ("v_exp_f32", "v_log_f32", "v_rcp_f32", "v_rsq_f32", "v_sqrt_f32", "v_sin_f32", "v_cos_f32")
REG_RE = re.compile(r"^(-|abs\()?\s*([vas])(\d+)\)?$")
RNG_RE = re.compile(r"^-?([vas])\[(\d+):(\d+)\]$")


def regs_of(op):
    op = op.strip()
    if op in ("vcc", "exec", "m0", "scc"):
        return [op]
    if op in ("vcc_lo", "vcc_hi"):
        return ["vcc"]
    if op in ("exec_lo", "exec_hi"):
        return ["exec"]
    m = REG_RE.match(op)
    if m:
        return [(m.group(2), int(m.group(3)))]
    m = RNG_RE.match(op)
    if m:
        return [(m.group(1), i) for i in range(int(m.group(2)), int(m.group(3)) + 1)]
    return []


class Ins:
    __slots__ = ("text", "mn", "cls", "w", "r", "tok", "meta", "ops")

    def __init__(self, text, tok=None, **meta):
        self.text = text.strip()
        self.tok = tok
        self.meta = meta
        self.parse()

    def parse(self):
        t = self.text
        self.w, self.r, self.ops = [], [], []
        if t.endswith(":"):
            self.mn, self.cls = t, "label"
            return
        if t.startswith("@"):
            self.mn, self.cls = t, "pseudo"
            return
        parts = t.split(None, 1)
        mn = parts[0]
        self.mn = mn
        rest = parts[1] if len(parts) > 1 else ""
        ops, depth, cur = [], 0, ""
        for ch in rest:
            if ch in "[(":
                depth += 1
            if ch in "])":
                depth -= 1
            if ch == "," and depth == 0:
                ops.append(cur.strip())
                cur = ""
            else:
                cur += ch
        if cur.strip():
            ops.append(cur.strip())
        mods = ""
        if ops:
            last = ops[-1].split(None, 1)
            ops[-1] = last[0]
            mods = last[1] if len(last) > 1 else ""
        self.ops = ops
        R = lambda i: regs_of(ops[i]) if i < len(ops) else []
        allr = lambda lo: [x for i in range(lo, len(ops)) for x in regs_of(ops[i])]
        base = mn.replace("_e32", "").replace("_e64", "").replace("_dpp", "")
        if mn.startswith("v_mfma"):
            self.cls = "mfma"
            self.w = R(0)
            self.r = allr(1)
            self.meta["C"] = R(3)
            self.meta["AB"] = R(1) + R(2)
        elif mn.startswith("buffer_load") or mn.startswith("global_load"):
            if re.search(r"\blds\b", mods) or "load_lds" in mn:
                self.cls = "vm_dma"
                self.r = allr(0) + ["m0"]
            else:
                self.cls = "vm_ld"
                self.w = R(0)
                self.r = allr(1)
        elif mn.startswith("buffer_store") or mn.startswith("global_store") or mn.startswith("buffer_atomic") or mn.startswith("global_atomic"):
            self.cls = "vm_st"
            self.r = allr(0)
            if mn.startswith("buffer_store"):
                self.meta["data"] = R(0)
            elif mn.startswith("global_store"):
                self.meta["data"] = R(1)
            self.meta["wide"] = ("x3" in mn or "x4" in mn)
        elif mn.startswith("ds_read") or mn.startswith("ds_bpermute") or mn.startswith("ds_permute") or mn.startswith("ds_swizzle"):
            self.cls = "ds_rd"
            self.w = R(0)
            self.r = allr(1)
        elif mn.startswith("ds_write") or mn.startswith("ds_add"):
            self.cls = "ds_wr"
            self.r = allr(0)
        elif mn.startswith("s_load") or mn.startswith("s_memtime") or mn.startswith("s_memrealtime"):
            self.cls = "smem"
            self.w = R(0)
            self.r = allr(1)
        elif mn in ("s_waitcnt",):
            self.cls = "wait"
        elif mn == "s_nop":
            self.cls = "nop"
        elif mn in ("s_barrier", "s_sleep", "s_setprio", "s_endpgm"):
            self.cls = "sctl"
        elif mn.startswith("s_cbranch") or mn == "s_branch":
            self.cls = "branch"
            if "vcc" in mn:
                self.r = ["vcc"]
            elif "scc" in mn:
                self.r = ["scc"]
            elif "exec" in mn:
                self.r = ["exec"]
        elif mn.startswith("s_cmp") or mn.startswith("s_bitcmp"):
            self.cls = "salu"
            self.w = ["scc"]
            self.r = allr(0)
        elif mn.startswith("s_"):
            self.cls = "salu"
            self.w = R(0)
            self.r = allr(1)
            if "saveexec" in mn:
                self.w += ["exec"]
                self.r += ["exec"]
            if mn.startswith("s_cselect") or mn in ("s_addc_u32", "s_subb_u32"):
                self.r += ["scc"]
            if mn == "s_getpc_b64":
                self.r = []
            if not (mn.startswith("s_mov") or mn.startswith("s_getreg") or mn.startswith("s_getpc") or mn.startswith("s_mul") or mn.startswith("s_cselect") or mn.startswith("s_movk")):
                self.w = self.w + ["scc"]
        elif mn.startswith("v_"):
            self.cls = "valu"
            if base in TRANS:
                self.meta["trans"] = True
            if base.startswith("v_permlane") and "swap" in base:
                self.w = R(0) + R(1)
                self.r = R(0) + R(1)
                self.meta["perm"] = True
            elif base.startswith("v_readfirstlane") or base.startswith("v_readlane"):
                self.w = R(0)
                self.r = allr(1)
                self.meta["rdlane"] = True
            elif base.startswith("v_add_co") or base.startswith("v_sub_co") or base.startswith("v_addc_co") or base.startswith("v_subb_co"):
                self.w = R(0) + R(1)
                self.r = allr(2)
            elif base.startswith("v_accvgpr"):
                self.w = R(0)
                self.r = allr(1)
            else:
                self.w = R(0)
                self.r = allr(1)
                if base in ("v_fmac_f32", "v_dot2c_f32_bf16", "v_pk_fmac_f16", "v_mac_f32"):
                    self.r = self.r + R(0)
            if base.startswith("v_dot2"):
                self.meta["dot"] = base
            if "_dpp" in mn or "row_" in mods or "quad_perm" in mods:
                self.meta["dpp"] = True
            if base.startswith("v_cndmask") and len(ops) == 3:
                self.r = self.r + ["vcc"]
        else:
            raise ValueError("unknown instruction: " + t)


class Tok:
    __slots__ = ("name",)

    def __init__(self, name=""):
        self.name = name


class Stream(list):
    def __call__(self, text, tok=None, **meta):
        out = None
        for line in text.strip().split("\n"):
            line = line.split(";")[0].strip()
            if not line:
                continue
            out = Ins(line, tok=tok, **meta)
            self.append(out)
        return out

    def vm(self, text):
        t = Tok(text)
        self(text, tok=t)
        return t

    def wait_vm(self, tok):
        i = Ins("@waitvm")
        i.meta["tok"] = tok
        self.append(i)

    def wait_ds(self, tok=None):
        i = Ins("@waitds")
        i.meta["tok"] = tok
        self.append(i)

    def drain(self):
        self.append(Ins("@drain"))

    def comment(self, c):
        i = Ins("@comment")
        i.meta["c"] = c
        self.append(i)


def is_vgpr(x):
    return isinstance(x, tuple) and x[0] in "va"


def is_sgpr(x):
    return (isinstance(x, tuple) and x[0] == "s") or x == "vcc"


def finalize(stream, check_noprogress=False, verbose=False):
    out = []
    lines = []
    vmq = []
    dsq = []
    smem_pending = set()
    stats = {"nops": 0, "waits": 0}

    def emit(ins):
        out.append(ins)
        lines.append(("  " if ins.cls != "label" else "") + ins.text)

    def emit_wait(vm=None, lg=None):
        parts = []
        if vm is not None:
            parts.append("vmcnt(%d)" % vm)
        if lg is not None:
            parts.append("lgkmcnt(%d)" % lg)
        if not parts:
            return
        emit(Ins("s_waitcnt " + " ".join(parts)))
        stats["waits"] += 1
        if vm is not None:
            del vmq[: max(0, len(vmq) - vm)]
        if lg is not None:
            del dsq[: max(0, len(dsq) - lg)]
            if lg == 0:
                smem_pending.clear()

    def need_in(queue, regs):
        idx = -1
        for k, op in enumerate(queue):
            if op.w and any(x in regs for x in op.w):
                idx = k
        return idx

    def states(ins):
        if ins.cls == "nop":
            return int(ins.ops[0], 0) + 1
        if ins.cls in ("label", "pseudo"):
            return 0
        return 1

    def hazard_need(ins):
        need = 0
        dist = 0
        rset, wset = set(ins.r), set(ins.w)
        for p in reversed(out):
            if dist >= 20:
                break
            req = 0
            pw = set(p.w)
            if p.cls == "valu":
                hit_r = pw & rset
                vr = [x for x in hit_r if is_vgpr(x)]
                sr = [x for x in hit_r if is_sgpr(x)]
                if vr:
                    if ins.cls == "mfma":
                        req = max(req, 2)
                    if ins.meta.get("perm") or ins.meta.get("dpp"):
                        req = max(req, 2)
                    if ins.meta.get("rdlane"):
                        req = max(req, 1)
                    if p.meta.get("trans"):
                        req = max(req, 1)
                if p.meta.get("dot"):
                    hit = [x for x in (pw & (rset | wset)) if is_vgpr(x)]
                    if hit:
                        same_c = ins.meta.get("dot") == p.meta["dot"] and len(ins.ops) >= 4 and set(regs_of(ins.ops[3])) >= set(hit) and not (set(regs_of(ins.ops[1]) + regs_of(ins.ops[2])) & set(hit))
                        if ins.meta.get("dot") == "v_dot2c_f32_bf16" and p.meta["dot"] == "v_dot2c_f32_bf16" and not (set(regs_of(ins.ops[1]) + regs_of(ins.ops[2])) & set(hit)):
                            same_c = True
                        if not same_c:
                            req = max(req, 3)
                if sr:
                    if ins.cls == "valu":
                        req = max(req, 4 if ins.meta.get("rdlane") and False else 2)
                    elif ins.cls in ("vm_ld", "vm_st", "vm_dma"):
                        req = max(req, 5)
                    elif ins.cls in ("salu", "branch", "smem"):
                        req = max(req, 1)
                if "exec" in pw:
                    req = max(req, 5)
            elif p.cls == "mfma":
                passes = 8 if "32x32" in p.mn else 4
                big = {4: 8, 8: 12}[passes]
                ov = {4: 6, 8: 10}[passes]
                war = {4: 3, 8: 7}[passes]
                if ins.cls == "mfma":
                    c = set(ins.meta["C"])
                    ab = set(ins.meta["AB"])
                    if pw & ab:
                        req = max(req, big)
                    if pw & c:
                        if not (pw == c and p.mn == ins.mn):
                            req = max(req, ov)
                    if (pw & wset) and not (pw & c):
                        req = max(req, big)
                else:
                    if (pw & rset) or (pw & wset):
                        req = max(req, big)
                    if ins.cls == "valu" and (set(p.meta["C"]) & wset):
                        req = max(req, war)
            elif p.cls == "vm_st":
                if p.meta.get("wide") and (set(p.meta.get("data", [])) & wset):
                    req = max(req, 2)
            elif p.cls == "salu":
                if "m0" in pw and ins.cls == "vm_dma":
                    req = max(req, 1)
                if "exec" in pw and ins.meta.get("dpp"):
                    req = max(req, 1)
            if req > dist:
                need = max(need, req - dist)
            dist += states(p)
        return need

    for ins in stream:
        if ins.cls == "pseudo":
            if ins.text == "@comment":
                lines.append("  ; " + ins.meta["c"])
                continue
            if ins.text == "@waitvm":
                tok = ins.meta["tok"]
                idx = [k for k, op in enumerate(vmq) if op.tok is tok]
                if idx:
                    n = len(vmq) - 1 - idx[-1]
                    emit_wait(vm=min(n, 63))
                continue
            if ins.text == "@waitds":
                tok = ins.meta["tok"]
                if tok is None:
                    if dsq or smem_pending:
                        emit_wait(lg=0)
                else:
                    idx = [k for k, op in enumerate(dsq) if op.tok is tok]
                    if idx:
                        emit_wait(lg=min(len(dsq) - 1 - idx[-1], 15))
                continue
            if ins.text == "@drain":
                emit_wait(vm=0, lg=0)
                continue
            raise ValueError(ins.text)
        if ins.cls == "label":
            emit(ins)
            continue
        touched = set(ins.r) | set(ins.w)
        vm = lg = None
        k = need_in(vmq, touched)
        if k >= 0:
            vm = len(vmq) - 1 - k
        k = need_in(dsq, touched)
        if k >= 0:
            lg = len(dsq) - 1 - k
        if smem_pending & touched:
            lg = 0
        if ins.cls == "wait":
            m = re.search(r"vmcnt\((\d+)\)", ins.text)
            if m:
                del vmq[: max(0, len(vmq) - int(m.group(1)))]
            m = re.search(r"lgkmcnt\((\d+)\)", ins.text)
            if m:
                del dsq[: max(0, len(dsq) - int(m.group(1)))]
                if int(m.group(1)) == 0:
                    smem_pending.clear()
            emit(ins)
            continue
        if ins.cls in ("vm_ld", "vm_st", "vm_dma") and len(vmq) >= 63:
            vm = min(62, vm) if vm is not None else 62
        if ins.cls in ("ds_rd", "ds_wr") and len(dsq) >= 15:
            lg = min(14, lg) if lg is not None else 14
        emit_wait(vm, lg)
        n = hazard_need(ins)
        while n > 0:
            k = min(n, 16)
            emit(Ins("s_nop %d" % (k - 1)))
            stats["nops"] += k
            n -= k
        emit(ins)
        if ins.cls in ("vm_ld", "vm_st", "vm_dma"):
            vmq.append(ins)
        elif ins.cls in ("ds_rd", "ds_wr"):
            assert not smem_pending, "DS op while SMEM outstanding: " + ins.text
            dsq.append(ins)
        elif ins.cls == "smem":
            smem_pending |= set(ins.w)
    if verbose:
        print("; finalize:", stats)
    return lines
```

```python
S, D, F = 2048, 512, 1376
KB = 1024
MB = 1024 * 1024
PQ = 0x0000000
PW = 0x0200000
PG = 0x0300000
PD = 0x0600000
CSQ = 0x0780000
CSG = 0x07A0000
FL = 0x07E0000
FL_BYTES = 2 * 4 * 2 * 32 * 256
XB = [0x0800000, 0x0A00000, 0x0C00000, 0x0E00000]
ST = [0x1000000, 0x1040000, 0x1080000, 0x10C0000]
OB = [0x1200000, 0x1400000]
HB = [0x1600000, 0x1C00000]
PFL = 0x07D8000
PFL2 = 0x07D9000
PXC = 0x07DA000
EPOCH = 0x07DC000
WS_USED = 0x2200000
KNAME = "interleave_layers__sliding_local_dilated__glu_gated_glu__prompt_kernel"
```

```python
from asmlib import *
from layout import *

REG = [0, 65536]
MISC = 131072
STP = MISC
STF = MISC + 16384
CSL = STF + 2048
BIAS = CSL + 2048
LDS_BYTES = 163840
SCR = [65536, 98304]

vLane, vL16, vLO, vOst, vH1, vH2, vRed, vPollA, vPollB, vOut = 1, 2, 3, 4, 5, 6, 7, 8, 9, 10
vStatR, vStatW, vStI, vStV, vCs, vCsV, vB1, vOne, vP = 11, 12, 13, 14, 15, 16, 17, 18, 19
ACC = 20
FR = 68
RING = 88
TMP = 136
RES = 140
DV = 144

sW, sRB, sCG, sRB3, sCG3 = 16, 17, 18, 19, 20
sA1h, sA1m, sA3, sKw = 21, 22, 23, 24
sSt1, sSt3 = 25, 26
sM2, sM4 = 28, 30
sT, sT2, sT3 = 32, 33, 34
sOdd = 36
sOnes = 38
sCnt = 40
sBQ, sBW, sBG, sBD = 41, 42, 43, 44
sOst, sA2, sRes, sHst = 45, 46, 47, 48
sA4 = 64
sF1, sF3 = 50, 51
sP2, sP3, sP4, sP1a = 52, 53, 54, 55
sOutO = 56
sStO = 57
sK = 96
sTS = 68

LOG2E = 1.4426950408889634
import struct
def fbits(x): return struct.unpack("<I", struct.pack("<f", x))[0]

POLL_LIMIT = 200000


def Bx(f):
    return "a[%d:%d]" % (4 * f, 4 * f + 3)
def By(f):
    if f < 16:
        return "a[%d:%d]" % (192 + 4 * f, 195 + 4 * f)
    return "v[%d:%d]" % (DV + 4 * (f - 16), DV + 4 * (f - 16) + 3)
def V(n, c=1):
    return "v%d" % n if c == 1 else "v[%d:%d]" % (n, n + c - 1)

def flag_off(p, phase, h):
    return FL + ((p * 4 + phase) * 2 + h) * 32 * 256


class Main:
    def __init__(self, opts):
        self.opts = opts
        self.prof = int(opts.get("prof", 0))
        self.slow = []
        self.npoll = 0
        self.nts = 0
        self.tsnames = []

    def ts(self, s, name):
        if not self.prof:
            return
        k = self.nts
        self.nts += 1
        self.tsnames.append(name)
        assert sTS + k < 96
        s("s_waitcnt lgkmcnt(0)")
        s("s_memtime s[4:5]")
        s("s_waitcnt lgkmcnt(0)")
        s("s_mov_b32 s%d, s4" % (sTS + k))

    def poll(self, s, soff, const, vaddr, mask):
        n = self.npoll
        self.npoll += 1
        s("s_add_u32 s%d, s%d, %d" % (sT3, soff, const))
        s("buffer_load_dword v%d, v%d, s[8:11], s%d offen sc1" % (vP, vaddr, sT3))
        s("v_cmp_ne_u32 vcc, 1, v%d" % vP)
        if mask is not None:
            s("s_and_b64 vcc, vcc, s[%d:%d]" % (mask, mask + 1))
        s("s_cbranch_vccnz SLOW_%d" % n)
        s("BACK_%d:" % n)
        t = []
        t.append("SLOW_%d:" % n)
        t.append("  s_mov_b32 s%d, 0" % sCnt)
        t.append("SPIN_%d:" % n)
        t.append("  buffer_load_dword v%d, v%d, s[8:11], s%d offen sc1" % (vP, vaddr, sT3))
        t.append("  s_waitcnt vmcnt(0)")
        t.append("  v_cmp_ne_u32 vcc, 1, v%d" % vP)
        t.append("  s_nop 1")
        if mask is not None:
            t.append("  s_and_b64 vcc, vcc, s[%d:%d]" % (mask, mask + 1))
        t.append("  s_cbranch_vccz BACK_%d" % n)
        t.append("  s_add_u32 s%d, s%d, 1" % (sCnt, sCnt))
        t.append("  s_cmp_lt_u32 s%d, %d" % (sCnt, POLL_LIMIT))
        t.append("  s_cbranch_scc1 SPIN_%d" % n)
        t.append("  s_branch BACK_%d" % n)
        self.slow += t

    def sig(self, s, tok, soff, const):
        s.wait_vm(tok)
        s("s_add_u32 s%d, s%d, %d" % (sT3, soff, const))
        s("s_mov_b64 exec, 1")
        s("buffer_store_dword v%d, off, s[8:11], s%d sc1" % (vOne, sT3))
        s("s_mov_b64 exec, -1")

    def loadB_x(self, s, sbase, lo=0, hi=48):
        for f in range(lo, hi):
            if f == lo or f % 4 == 0:
                s("s_add_u32 s%d, s%d, %d" % (sT, sbase, (f // 4) * 4096))
            s("buffer_load_dwordx4 %s, v%d, s[8:11], s%d offen offset:%d" % (Bx(f), vL16, sT, (f % 4) * 1024))

    def loadB_y(self, s, sbase, lo, hi):
        for f in range(lo, hi):
            if f == lo or f % 4 == 0:
                s("s_add_u32 s%d, s%d, %d" % (sT, sbase, (f // 4) * 4096))
            s("buffer_load_dwordx4 %s, v%d, s[8:11], s%d offen offset:%d" % (By(f), vL16, sT, (f % 4) * 1024))

    def loadA_lds(self, s, phase, p, h):
        tok = None
        if phase == 1:
            srcs = [(sA1h, 0), (sA1m, 0), (sA1m, 16384)]
            xb, st, sst = XB[2 * p], ST[2 * p], sSt1
        else:
            srcs = [(sA3, i * 16384) for i in range(4)]
            xb, st, sst = XB[2 * p + 1], ST[2 * p + 1], sSt3
        s("s_lshl_b32 s%d, s%d, 11" % (sT2, sW))
        s("s_add_u32 m0, s%d, %d" % (sT2, STP + h * 8192))
        s("s_add_u32 s%d, s%d, %d" % (sT, sst, st + h * 131072))
        stok = None
        for i in range(2):
            stok = s.vm("buffer_load_dwordx4 v%d, s[8:11], s%d offen offset:%d sc1 lds" % (vL16, sT, i * 1024))
        for sub, (sr, c) in enumerate(srcs):
            s("s_add_u32 m0, s%d, %d" % (sKw, REG[h] + sub * 16384))
            s("s_add_u32 s%d, s%d, s%d" % (sT, sr, sKw))
            s("s_add_u32 s%d, s%d, %d" % (sT, sT, xb + h * MB + c))
            for i in range(4):
                tok = s.vm("buffer_load_dwordx4 v%d, s[8:11], s%d offen offset:%d sc1 lds" % (vL16, sT, i * 1024))
        return stok, tok

    def ringreg(self, ks, ss):
        return RING + 8 * (ks % 6) + 4 * ss

    def loadA2(self, s, p, h):
        for ss in range(2):
            if ss == 0:
                s("s_add_u32 s%d, s%d, %d" % (sT, sA2, OB[p] + h * MB))
            else:
                s("s_xor_b32 s%d, s%d, 16384" % (sT, sA2))
                s("s_add_u32 s%d, s%d, %d" % (sT, sT, OB[p] + h * MB))
            for ks in range(4):
                s("buffer_load_dwordx4 %s, v%d, s[8:11], s%d offen offset:%d sc1" % (V(self.ringreg(ks, ss), 4), vL16, sT, ks * 1024))
        s("s_add_u32 s%d, s%d, %d" % (sT, sRes, XB[2 * p] + h * MB))
        s("buffer_load_dwordx4 %s, v%d, s[8:11], s%d offen sc1" % (V(RES, 4), vL16, sT))

    def loadA4_one(self, s, p, h, ks, ss):
        s("s_add_u32 s%d, s%d, %d" % (sT, sA4 + ss, HB[p] + h * 3 * MB + (ks // 4) * 4096))
        s("buffer_load_dwordx4 %s, v%d, s[8:11], s%d offen offset:%d sc1" % (V(self.ringreg(ks, ss), 4), vL16, sT, (ks % 4) * 1024))

    def loadA4(self, s, p, h):
        for ks in range(6):
            for ss in range(2):
                self.loadA4_one(s, p, h, ks, ss)
        s("s_add_u32 s%d, s%d, %d" % (sT, sRes, XB[2 * p + 1] + h * MB))
        s("buffer_load_dwordx4 %s, v%d, s[8:11], s%d offen sc1" % (V(RES, 4), vL16, sT))

    def stats_reduce(self, s, h, stok):
        t = TMP
        a = 60
        s.wait_vm(stok)
        for i in range(4):
            s("ds_read2_b32 %s, v%d offset0:%d offset1:%d" % (V(a + 2 * i, 2), vStatR, 64 * i, 64 * i + 32)) if h == 0 else \
                s("ds_read2_b32 %s, v%d offset0:%d offset1:%d" % (V(a + 2 * i, 2), TMP + 3, 64 * i, 64 * i + 32))
        s("v_pk_add_f32 %s, %s, %s" % (V(a, 2), V(a, 2), V(a + 2, 2)))
        s("v_pk_add_f32 %s, %s, %s" % (V(a + 4, 2), V(a + 4, 2), V(a + 6, 2)))
        s("v_pk_add_f32 %s, %s, %s" % (V(a, 2), V(a, 2), V(a + 4, 2)))
        s("v_add_f32 v%d, v%d, v%d" % (a, a, a + 1))
        s("v_mov_b32 v%d, v%d" % (a + 1, a))
        s("v_permlane32_swap_b32 v%d, v%d" % (a, a + 1))
        s("v_add_f32 v%d, v%d, v%d" % (a, a, a + 1))
        s("v_mov_b32 v%d, v%d" % (a + 1, a))
        s("v_permlane16_swap_b32 v%d, v%d" % (a, a + 1))
        s("v_mul_f32 v%d, %s, v%d" % (a, "0x%08x" % fbits(-1.0 / 512), a))
        s("v_mul_f32 v%d, v%d, v%d" % (a + 2, a, a))
        s("v_fma_f32 v%d, v%d, s%d, -v%d" % (a + 1, a + 1, sK, a + 2))
        s("v_max_f32 v%d, 0, v%d" % (a + 1, a + 1))
        s("v_add_f32 v%d, s%d, v%d" % (a + 1, sK + 1, a + 1))
        s("v_rsq_f32 v%d, v%d" % (a + 1, a + 1))
        s("v_cndmask_b32 v%d, v%d, v%d, s[%d:%d]" % (a, a, a + 1, sOdd, sOdd + 1))
        s("ds_write_b32 v%d, v%d offset:%d" % (vStatW, a, h * 1024))

    def mf1(self, h):
        base = vL16 if h == 0 else vLO
        steps = []
        nfr = 48
        def rd(n):
            ks, sub = divmod(n, 3)
            return "ds_read_b128 %s, v%d offset:%d" % (V(FR + 4 * (n % 5), 4), base, sub * 16384 + ks * 1024)
        pre = [rd(n) for n in range(5)]
        Q = [None, ACC, ACC + 4]
        K = [ACC + 8, ACC + 12, ACC + 16]
        Vv = [ACC + 20, ACC + 24, ACC + 28]
        for ks in range(16):
            for sub in range(3):
                n = 3 * ks + sub
                x = V(FR + 4 * (n % 5), 4)
                c = (lambda r: "0" if ks == 0 else V(r, 4))
                grp = []
                if sub > 0:
                    grp.append("v_mfma_f32_16x16x32_bf16 %s, %s, %s, %s" % (V(Q[sub], 4), Bx(3 * ks), x, c(Q[sub])))
                grp.append("v_mfma_f32_16x16x32_bf16 %s, %s, %s, %s" % (V(K[sub], 4), Bx(3 * ks + 1), x, c(K[sub])))
                grp.append("v_mfma_f32_16x16x32_bf16 %s, %s, %s, %s" % (V(Vv[sub], 4), x, Bx(3 * ks + 2), c(Vv[sub])))
                for i, m in enumerate(grp):
                    st = [m]
                    if i == len(grp) - 1 and n + 5 < nfr:
                        st.append(rd(n + 5))
                    steps.append(st)
        return pre, steps

    def mf3(self, h):
        base = vL16 if h == 0 else vLO
        steps = []
        nfr = 64
        def rd(n):
            ks, sub = divmod(n, 4)
            return "ds_read_b128 %s, v%d offset:%d" % (V(FR + 4 * (n % 5), 4), base, sub * 16384 + ks * 1024)
        pre = [rd(n) for n in range(5)]
        for ks in range(16):
            for sub in range(4):
                n = 4 * ks + sub
                x = V(FR + 4 * (n % 5), 4)
                for j in range(3):
                    r = ACC + 12 * sub + 4 * j
                    st = ["v_mfma_f32_16x16x32_bf16 %s, %s, %s, %s" % (V(r, 4), Bx(3 * ks + j), x, "0" if ks == 0 else V(r, 4))]
                    if j == 2 and n + 5 < nfr:
                        st.append(rd(n + 5))
                    steps.append(st)
        return [], pre, steps

    def mf24(self, phase, p, h):
        nks = 4 if phase == 2 else 11
        steps = []
        for ks in range(nks):
            for ss in range(2):
                x = V(self.ringreg(ks, ss), 4)
                for jj in range(4):
                    r = ACC + 16 * ss + 4 * jj
                    st = ["v_mfma_f32_16x16x32_bf16 %s, %s, %s, %s" % (V(r, 4), By(4 * ks + jj), x, "0" if ks == 0 else V(r, 4))]
                    if phase == 4 and jj == 3 and ks + 6 < nks:
                        t = Stream()
                        self.loadA4_one(t, p, h, ks + 6, ss)
                        st += list(t)
                    steps.append(st)
        return steps

    def epi1(self, s, p, h):
        Q = [None, ACC, ACC + 4]
        K = [ACC + 8, ACC + 12, ACC + 16]
        Vv = [ACC + 20, ACC + 24, ACC + 28]
        SP = [None, 52, 60]
        SC = [None, 56, 64]
        st = [68, 70, 72]
        csq, csk, csv, cq = 76, 80, 84, 86
        hoff = h * 1024
        for sub in range(3):
            s("ds_read_b64 %s, v%d offset:%d" % (V(st[sub], 2), vStI, hoff + sub * 128))
        s("ds_read_b128 %s, v%d offset:0" % (V(csq, 4), vCs))
        s("ds_read_b128 %s, v%d offset:64" % (V(csk, 4), vCs))
        s("ds_read_b32 v%d, v%d" % (csv, vCsV))
        NM = [52, 60, 52]
        RS = [56, 64, 56]
        def rdv(sub):
            s("ds_read_b128 %s, v%d offset:%d" % (V(NM[sub], 4), vStV, hoff + sub * 64))
            s("ds_read_b128 %s, v%d offset:%d" % (V(RS[sub], 4), vStV, hoff + 256 + sub * 64))
        rdv(0)
        rdv(1)
        bc0 = "op_sel_hi:[0,1,1]"
        for sub in (1, 2):
            for hh in (0, 2):
                s("v_pk_fma_f32 %s, %s, %s, %s %s" % (V(Q[sub] + hh, 2), V(st[sub], 2), V(csq + hh, 2), V(Q[sub] + hh, 2), bc0))
            s("v_mul_f32 v%d, s%d, v%d" % (cq, sK + 2, st[sub] + 1))
            for hh in (0, 2):
                s("v_pk_mul_f32 %s, %s, %s op_sel_hi:[1,0]" % (V(Q[sub] + hh, 2), V(Q[sub] + hh, 2), V(cq, 2)))
            s("v_cvt_pk_bf16_f32 v%d, v%d, v%d" % (Q[sub], Q[sub], Q[sub] + 1))
            s("v_cvt_pk_bf16_f32 v%d, v%d, v%d" % (Q[sub] + 1, Q[sub] + 2, Q[sub] + 3))
        for sub in range(3):
            for hh in (0, 2):
                s("v_pk_fma_f32 %s, %s, %s, %s %s" % (V(K[sub] + hh, 2), V(st[sub], 2), V(csk + hh, 2), V(K[sub] + hh, 2), bc0))
            for hh in (0, 2):
                s("v_pk_mul_f32 %s, %s, %s op_sel:[0,1] op_sel_hi:[1,1]" % (V(K[sub] + hh, 2), V(K[sub] + hh, 2), V(st[sub], 2)))
            s("v_cvt_pk_bf16_f32 v%d, v%d, v%d" % (K[sub], K[sub], K[sub] + 1))
            s("v_cvt_pk_bf16_f32 v%d, v%d, v%d" % (K[sub] + 1, K[sub] + 2, K[sub] + 3))
        for sub in range(3):
            for hh in (0, 2):
                s("v_pk_fma_f32 %s, %s, %s, %s op_sel_hi:[1,0,1]" % (V(Vv[sub] + hh, 2), V(NM[sub] + hh, 2), V(csv, 2), V(Vv[sub] + hh, 2)))
            for hh in (0, 2):
                s("v_pk_mul_f32 %s, %s, %s" % (V(Vv[sub] + hh, 2), V(Vv[sub] + hh, 2), V(RS[sub] + hh, 2)))
            if sub == 0:
                rdv(2)
            s("v_cvt_pk_bf16_f32 v%d, v%d, v%d" % (Vv[sub], Vv[sub], Vv[sub] + 1))
            s("v_cvt_pk_bf16_f32 v%d, v%d, v%d" % (Vv[sub] + 1, Vv[sub] + 2, Vv[sub] + 3))
        bp1, bp, bc = 68, 72, 76
        s("ds_read_b128 %s, v%d" % (V(bp1, 4), vB1))
        s("ds_read_b128 %s, v%d offset:1024" % (V(bp, 4), TMP + 2))
        s("ds_read_b128 %s, v%d offset:0" % (V(bc, 4), TMP + 2))
        mm = "v_mfma_f32_16x16x16_bf16"
        s("%s %s, %s, %s, %s" % (mm, V(SP[1], 4), V(K[0], 2), V(Q[1], 2), V(bp1, 4)))
        s("%s %s, %s, %s, %s" % (mm, V(SC[1], 4), V(K[1], 2), V(Q[1], 2), V(bc, 4)))
        s("%s %s, %s, %s, %s" % (mm, V(SP[2], 4), V(K[1], 2), V(Q[2], 2), V(bp, 4)))
        s("%s %s, %s, %s, %s" % (mm, V(SC[2], 4), V(K[2], 2), V(Q[2], 2), V(bc, 4)))
        m = {1: 80, 2: 84}
        l = {1: 82, 2: 86}
        for sub in (1, 2):
            a, b = SP[sub], SC[sub]
            s("v_max3_f32 v%d, v%d, v%d, v%d" % (m[sub], a, a + 1, a + 2))
            s("v_max3_f32 v%d, v%d, v%d, v%d" % (m[sub] + 1, a + 3, b, b + 1))
            s("v_max3_f32 v%d, v%d, v%d, v%d" % (m[sub], m[sub], b + 2, b + 3))
            s("v_max_f32 v%d, v%d, v%d" % (m[sub], m[sub], m[sub] + 1))
        for sw in ("v_permlane16_swap_b32", "v_permlane32_swap_b32"):
            for sub in (1, 2):
                s("v_mov_b32 v%d, v%d" % (m[sub] + 1, m[sub]))
            for sub in (1, 2):
                s("%s v%d, v%d" % (sw, m[sub], m[sub] + 1))
            for sub in (1, 2):
                s("v_max_f32 v%d, v%d, v%d" % (m[sub], m[sub], m[sub] + 1))
        for sub in (1, 2):
            for r in (SP[sub], SP[sub] + 2, SC[sub], SC[sub] + 2):
                s("v_pk_add_f32 %s, %s, %s op_sel_hi:[1,0] neg_lo:[0,1] neg_hi:[0,1]" % (V(r, 2), V(r, 2), V(m[sub], 2)))
        for sub in (1, 2):
            for r in range(4):
                s("v_exp_f32 v%d, v%d" % (SP[sub] + r, SP[sub] + r))
                s("v_exp_f32 v%d, v%d" % (SC[sub] + r, SC[sub] + r))
        for sub in (1, 2):
            a, b = SP[sub], SC[sub]
            s("v_pk_add_f32 %s, %s, %s" % (V(l[sub], 2), V(a, 2), V(a + 2, 2)))
            s("v_pk_add_f32 %s, %s, %s" % (V(m[sub], 2), V(b, 2), V(b + 2, 2)))
            s("v_pk_add_f32 %s, %s, %s" % (V(l[sub], 2), V(l[sub], 2), V(m[sub], 2)))
            s("v_add_f32 v%d, v%d, v%d" % (l[sub], l[sub], l[sub] + 1))
        for sub in (1, 2):
            for r in (SP[sub], SC[sub]):
                s("v_cvt_pk_bf16_f32 v%d, v%d, v%d" % (r, r, r + 1))
                s("v_cvt_pk_bf16_f32 v%d, v%d, v%d" % (r + 1, r + 2, r + 3))
        for sub in (1, 2):
            s("%s %s, %s, %s, 0" % (mm, V(Q[sub], 4), V(Vv[sub - 1], 2), V(SP[sub], 2)))
        for sub in (1, 2):
            s("%s %s, %s, %s, %s" % (mm, V(Q[sub], 4), V(Vv[sub], 2), V(SC[sub], 2), V(Q[sub], 4)))
        for sw in ("v_permlane16_swap_b32", "v_permlane32_swap_b32"):
            for sub in (1, 2):
                s("v_mov_b32 v%d, v%d" % (l[sub] + 1, l[sub]))
            for sub in (1, 2):
                s("%s v%d, v%d" % (sw, l[sub], l[sub] + 1))
            for sub in (1, 2):
                s("v_add_f32 v%d, v%d, v%d" % (l[sub], l[sub], l[sub] + 1))
        for sub in (1, 2):
            s("v_rcp_f32 v%d, v%d" % (l[sub], l[sub]))
        for sub in (1, 2):
            for hh in (0, 2):
                s("v_pk_mul_f32 %s, %s, %s op_sel_hi:[1,0]" % (V(Q[sub] + hh, 2), V(Q[sub] + hh, 2), V(l[sub], 2)))
        o = ACC
        s("v_cvt_pk_bf16_f32 v%d, v%d, v%d" % (o, o, o + 1))
        s("v_cvt_pk_bf16_f32 v%d, v%d, v%d" % (o + 1, o + 2, o + 3))
        s("v_cvt_pk_bf16_f32 v%d, v%d, v%d" % (o + 2, o + 4, o + 5))
        s("v_cvt_pk_bf16_f32 v%d, v%d, v%d" % (o + 3, o + 6, o + 7))
        s("v_permlane16_swap_b32 v%d, v%d" % (o, o + 2))
        s("v_permlane16_swap_b32 v%d, v%d" % (o + 1, o + 3))
        s("s_add_u32 s%d, s%d, %d" % (sT, sOst, OB[p] + h * MB))
        return s.vm("buffer_store_dwordx4 %s, v%d, s[8:11], s%d offen sc1" % (V(o, 4), vOst, sT))

    def epi3(self, s, p, h):
        csG, csU, csM = 68, 72, 76
        stp = [80, 82]
        c1 = 84
        hoff = h * 1024
        s("ds_read_b128 %s, v%d offset:768" % (V(csG, 4), vCs))
        s("ds_read_b128 %s, v%d offset:832" % (V(csU, 4), vCs))
        s("ds_read_b128 %s, v%d offset:896" % (V(csM, 4), vCs))
        s("ds_read_b64 %s, v%d offset:%d" % (V(stp[0], 2), vStI, hoff))
        bq = TMP
        for sub in range(4):
            G, U, M = ACC + 12 * sub, ACC + 12 * sub + 4, ACC + 12 * sub + 8
            st = stp[sub & 1]
            if sub < 3:
                s("ds_read_b64 %s, v%d offset:%d" % (V(stp[(sub + 1) & 1], 2), vStI, hoff + (sub + 1) * 128))
            for (r, cs) in ((M, csM), (G, csG), (U, csU)):
                for hh in (0, 2):
                    s("v_pk_fma_f32 %s, %s, %s, %s op_sel_hi:[0,1,1]" % (V(r + hh, 2), V(st, 2), V(cs + hh, 2), V(r + hh, 2)))
            s("v_mul_f32 v%d, s%d, v%d" % (c1, sK + 3, st + 1))
            s("v_permlane16_swap_b32 v%d, v%d" % (M, M + 2))
            s("v_permlane16_swap_b32 v%d, v%d" % (M + 1, M + 3))
            gates = (G, G + 2, M)
            ups = (U, U + 2, M + 2)
            for r in gates:
                s("v_pk_mul_f32 %s, %s, %s op_sel_hi:[1,0]" % (V(r, 2), V(r, 2), V(c1, 2)))
            for r in gates:
                s("v_exp_f32 v%d, v%d" % (r, r))
                s("v_exp_f32 v%d, v%d" % (r + 1, r + 1))
            for r in ups:
                s("v_pk_mul_f32 %s, %s, %s op_sel:[0,1] op_sel_hi:[1,1]" % (V(r, 2), V(r, 2), V(st, 2)))
            for r in gates:
                s("v_pk_add_f32 %s, %s, s[%d:%d]" % (V(r, 2), V(r, 2), sOnes, sOnes + 1))
            for r in gates:
                s("v_rcp_f32 v%d, v%d" % (r, r))
                s("v_rcp_f32 v%d, v%d" % (r + 1, r + 1))
            for g, u in zip(gates, ups):
                s("v_pk_mul_f32 %s, %s, %s" % (V(u, 2), V(u, 2), V(g, 2)))
            dst = ACC + 12 * (sub & ~1) + 2 * (sub & 1)
            s("v_cvt_pk_bf16_f32 v%d, v%d, v%d" % (dst, U, U + 1))
            s("v_cvt_pk_bf16_f32 v%d, v%d, v%d" % (dst + 1, U + 2, U + 3))
            s("v_cvt_pk_bf16_f32 v%d, v%d, v%d" % (bq + sub, M + 2, M + 3))
        s("s_add_u32 s%d, s%d, %d" % (sT, sHst, HB[p] + h * 3 * MB))
        for pr in range(2):
            d = ACC + 24 * pr
            s("v_permlane16_swap_b32 v%d, v%d" % (d, d + 2))
            s("v_permlane16_swap_b32 v%d, v%d" % (d + 1, d + 3))
            if pr == 1:
                s("s_add_u32 s%d, s%d, %d" % (sT2, sT, 2 * 48 * KB))
            s.vm("buffer_store_dwordx4 %s, v%d, s[8:11], s%d offen sc1" % (V(d, 4), vH1, sT if pr == 0 else sT2))
        s("v_permlane16_swap_b32 v%d, v%d" % (bq, bq + 1))
        s("v_permlane16_swap_b32 v%d, v%d" % (bq + 2, bq + 3))
        s("v_permlane32_swap_b32 v%d, v%d" % (bq, bq + 2))
        s("v_permlane32_swap_b32 v%d, v%d" % (bq + 1, bq + 3))
        return s.vm("buffer_store_dwordx4 %s, v%d, s[8:11], s%d offen sc1" % (V(bq, 4), vH2, sT))

    def epi24(self, s, phase, p, h):
        so = SCR[h] - 65536
        a = ACC
        for x in (1, 2, 3):
            s("v_xor_b32 v%d, %d, v%d" % (TMP + x - 1, x << 13, vRed))
        for x in (1, 2, 3):
            for jl in range(2):
                s("ds_write_b128 v%d, %s offset:%d" % (TMP + x - 1, V(a + 8 * x + 4 * jl, 4), so + x * 2048 + jl * 1024))
        s.wait_ds()
        s("s_barrier")
        for x in (1, 2, 3):
            for jl in range(2):
                s("ds_read_b128 %s, v%d offset:%d" % (V(a + 8 * x + 4 * jl, 4), vRed, so + x * 2048 + jl * 1024))
        r = 52
        for i in range(4):
            s("v_lshlrev_b32 v%d, 16, v%d" % (r + 2 * i, RES + i))
            s("v_and_b32 v%d, 0xffff0000, v%d" % (r + 2 * i + 1, RES + i))
        for i in range(4):
            s("v_pk_add_f32 %s, %s, %s" % (V(a + 2 * i, 2), V(a + 2 * i, 2), V(r + 2 * i, 2)))
        for x in (1, 2, 3):
            for i in range(4):
                s("v_pk_add_f32 %s, %s, %s" % (V(a + 2 * i, 2), V(a + 2 * i, 2), V(a + 8 * x + 2 * i, 2)))
        o = 60
        for i in range(4):
            s("v_cvt_pk_bf16_f32 v%d, v%d, v%d" % (o + i, a + 2 * i, a + 2 * i + 1))
        final = (phase == 4 and p == 1)
        if final:
            s("s_add_u32 s%d, s%d, %d" % (sT, sOutO, h * 1024))
            return s.vm("buffer_store_dwordx4 %s, v%d, s[12:15], s%d offen" % (V(o, 4), vOut, sT))
        xi = 2 * p + (1 if phase == 2 else 2)
        s("s_add_u32 s%d, s%d, %d" % (sT, sRes, XB[xi] + h * MB))
        s.vm("buffer_store_dwordx4 %s, v%d, s[8:11], s%d offen sc1" % (V(o, 4), vL16, sT))
        u = 52
        s("v_pk_add_f32 %s, %s, %s" % (V(u, 2), V(a, 2), V(a + 2, 2)))
        s("v_pk_add_f32 %s, %s, %s" % (V(u + 2, 2), V(a + 4, 2), V(a + 6, 2)))
        s("v_pk_mul_f32 %s, %s, %s" % (V(u + 4, 2), V(a, 2), V(a, 2)))
        s("v_pk_add_f32 %s, %s, %s" % (V(u, 2), V(u, 2), V(u + 2, 2)))
        for i in (1, 2, 3):
            s("v_pk_fma_f32 %s, %s, %s, %s" % (V(u + 4, 2), V(a + 2 * i, 2), V(a + 2 * i, 2), V(u + 4, 2)))
        s("v_add_f32 v%d, v%d, v%d" % (u, u, u + 1))
        s("v_add_f32 v%d, v%d, v%d" % (u + 1, u + 4, u + 5))
        s("v_permlane16_swap_b32 v%d, v%d" % (u, u + 1))
        s("v_add_f32 v%d, v%d, v%d" % (u, u, u + 1))
        s("v_mov_b32 v%d, v%d" % (u + 1, u))
        s("v_permlane32_swap_b32 v%d, v%d" % (u, u + 1))
        s("v_add_f32 v%d, v%d, v%d" % (u, u, u + 1))
        s("s_add_u32 s%d, s%d, %d" % (sT, sStO, ST[xi] + h * 131072))
        s("v_lshrrev_b32 v%d, 2, v%d" % (u + 2, vL16))
        s("s_mov_b32 exec_hi, 0")
        tok = s.vm("buffer_store_dword v%d, v%d, s[8:11], s%d offen sc1" % (u, u + 2, sT))
        s("s_mov_b32 exec_hi, -1")
        return tok

    def prologue(self, s):
        s("""
        s_load_dwordx2 s[4:5], s[0:1], 72
        s_load_dwordx2 s[6:7], s[0:1], 56
        s_cmp_ge_u32 s2, 256
        s_cbranch_scc1 M_end
        v_lshrrev_b32 v20, 6, v0
        v_and_b32 v%d, 63, v0
        v_readfirstlane_b32 s%d, v20
        v_lshlrev_b32 v%d, 4, v%d
        s_and_b32 s32, s2, 7
        s_lshr_b32 s33, s2, 3
        s_lshr_b32 s34, s32, 1
        s_and_b32 s35, s32, 1
        """ % (vLane, sW, vL16, vLane))
        s("""
        s_lshl_b32 s{rb}, s34, 3
        s_lshr_b32 s36, s33, 2
        s_add_u32 s{rb}, s{rb}, s36
        s_lshl_b32 s{cg}, s35, 2
        s_and_b32 s36, s33, 3
        s_add_u32 s{cg}, s{cg}, s36
        s_lshl_b32 s{rb3}, s34, 2
        s_lshr_b32 s36, s33, 3
        s_add_u32 s{rb3}, s{rb3}, s36
        s_lshl_b32 s{cg3}, s35, 3
        s_and_b32 s36, s33, 7
        s_add_u32 s{cg3}, s{cg3}, s36
        s_waitcnt lgkmcnt(0)
        s_mov_b32 s8, s4
        s_and_b32 s9, s5, 0xffff
        s_mov_b32 s10, 0x10000000
        s_mov_b32 s11, 0x20000
        s_mov_b32 s12, s6
        s_and_b32 s13, s7, 0xffff
        s_mov_b32 s14, 0x200000
        s_mov_b32 s15, 0x20000
        """.format(rb=sRB, cg=sCG, rb3=sRB3, cg3=sCG3))
        s("""
        s_lshl_b32 s36, s{cg}, 2
        s_add_u32 s36, s36, s{w}
        s_mul_i32 s{bq}, s36, {k48}
        s_add_u32 s{bq}, s{bq}, {PQ}
        s_lshl_b32 s{bw}, s36, 14
        s_add_u32 s{bw}, s{bw}, {PW}
        s_mul_i32 s{bd}, s36, {k44}
        s_add_u32 s{bd}, s{bd}, {PD}
        s_lshl_b32 s37, s{cg3}, 2
        s_add_u32 s37, s37, s{w}
        s_mul_i32 s{bg}, s37, {k48}
        s_add_u32 s{bg}, s{bg}, {PG}
        s_lshl_b32 s{kw}, s{w}, 12
        s_lshl_b32 s{a1m}, s{rb}, 15
        s_lshl_b32 s{a3}, s{rb3}, 16
        s_sub_u32 s{a1h}, s{a1m}, 16384
        s_max_i32 s{a1h}, s{a1h}, 0
        """.format(cg=sCG, w=sW, bq=sBQ, bw=sBW, bd=sBD, bg=sBG, cg3=sCG3, kw=sKw, a1m=sA1m, a3=sA3, a1h=sA1h, rb=sRB, rb3=sRB3,
                   k48=48 * KB, k44=44 * KB, PQ=PQ, PW=PW, PD=PD, PG=PG))
        s("""
        s_lshl_b32 s38, s{rb}, 1
        s_add_u32 s38, s38, s{w}
        s_sub_u32 s38, s38, 1
        s_max_i32 s38, s38, 0
        s_lshl_b32 s{st1}, s38, 11
        s_lshl_b32 s38, s{rb3}, 2
        s_add_u32 s38, s38, s{w}
        s_lshl_b32 s{st3}, s38, 11
        """.format(rb=sRB, w=sW, st1=sSt1, rb3=sRB3, st3=sSt3))
        s("""
        s_lshr_b32 s38, s{w}, 1
        s_and_b32 s39, s{w}, 1
        s_lshl_b32 s40, s{cg}, 1
        s_add_u32 s59, s40, s38
        s_lshl_b32 s59, s59, 10
        s_lshl_b32 s60, s39, 9
        s_add_u32 s59, s59, s60
        s_add_u32 s{ost}, s59, s{a1m}
        """.format(w=sW, cg=sCG, ost=sOst, a1m=sA1m))
        s("""
        s_lshl_b32 s59, s38, 14
        s_add_u32 s59, s59, s{a1m}
        s_add_u32 s{a2}, s59, s{kw}
        s_add_u32 s60, s40, s39
        s_lshl_b32 s61, s60, 10
        s_add_u32 s{res}, s59, s61
        s_lshr_b32 s{sto}, s59, 3
        s_lshl_b32 s61, s60, 7
        s_add_u32 s{sto}, s{sto}, s61
        """.format(a1m=sA1m, a2=sA2, kw=sKw, res=sRes, sto=sStO))
        s("""
        s_lshl_b32 s59, s{rb}, 1
        s_add_u32 s59, s59, s38
        s_lshl_b32 s{out}, s59, 15
        s_lshl_b32 s61, s60, 6
        s_add_u32 s{out}, s{out}, s61
        """.format(rb=sRB, out=sOutO))
        s("""
        s_mul_i32 s{hst}, s{rb3}, {k192}
        s_mul_i32 s61, s{cg3}, 12
        s_mul_i32 s62, s{w}, 3
        s_add_u32 s61, s61, s62
        s_lshl_b32 s61, s61, 8
        s_add_u32 s{hst}, s{hst}, s61
        s_mul_i32 s62, s{w}, {k11}
        s_mul_i32 s{a4}, s59, {k48}
        s_add_u32 s{a4}, s{a4}, s62
        s_xor_b32 s59, s59, 1
        s_mul_i32 s{a4b}, s59, {k48}
        s_add_u32 s{a4b}, s{a4b}, s62
        """.format(hst=sHst, rb3=sRB3, cg3=sCG3, w=sW, a4=sA4, a4b=sA4 + 1, k192=192 * KB, k11=11 * KB, k48=48 * KB))
        return

    def prologue2(self, s):
        s("""
        s_lshl_b32 s59, s{cg}, 2
        s_add_u32 s59, s59, s{w}
        s_lshl_b32 s59, s59, 2
        s_lshl_b32 s60, s{rb}, 8
        s_add_u32 s{f1}, s60, s59
        s_lshl_b32 s59, s{cg3}, 2
        s_add_u32 s59, s59, s{w}
        s_lshl_b32 s59, s59, 2
        s_lshl_b32 s61, s{rb3}, 8
        s_add_u32 s{f3}, s61, s59
        s_mov_b32 s{p2}, s60
        s_lshl_b32 s{p3}, s{rb3}, 9
        s_lshr_b32 s61, s{rb}, 1
        s_lshl_b32 s{p4}, s61, 8
        s_sub_u32 s{p1}, s60, 256
        """.format(cg=sCG, w=sW, rb=sRB, f1=sF1, cg3=sCG3, rb3=sRB3, f3=sF3, p2=sP2, p3=sP3, p4=sP4, p1=sP1a))
        s("""
        s_lshl_b32 s59, s{w}, 3
        s_bfm_b64 s[{m2}:{m2h}], 8, s59
        s_mul_i32 s59, s{w}, 11
        s_mul_hi_u32 s60, s59, {m3}
        s_add_u32 s59, s59, 10
        s_mul_hi_u32 s61, s59, {m3}
        s_sub_u32 s61, s61, s60
        s_add_u32 s61, s61, 1
        s_lshl_b32 s61, s61, 2
        s_lshl_b32 s60, s60, 2
        s_bfm_b64 s[{m4}:{m4h}], s61, s60
        s_mov_b32 s{odd}, 0xffff0000
        s_mov_b32 s{oddh}, 0xffff0000
        s_mov_b32 s{one}, 1.0
        s_mov_b32 s{oneh}, 1.0
        s_mov_b32 s{k0}, {c0}
        s_mov_b32 s{k1}, {c1}
        s_mov_b32 s{k2}, {c2}
        s_mov_b32 s{k3}, {c3}
        """.format(w=sW, m2=sM2, m2h=sM2 + 1, m4=sM4, m4h=sM4 + 1, m3=(2 ** 32 + 2) // 3, odd=sOdd, oddh=sOdd + 1, one=sOnes, oneh=sOnes + 1,
                   k0=sK, k1=sK + 1, k2=sK + 2, k3=sK + 3,
                   c0="0x%08x" % fbits(1.0 / 512), c1="0x%08x" % fbits(1e-5), c2="0x%08x" % fbits(0.25 * LOG2E), c3="0x%08x" % fbits(-LOG2E)))
        s("""
        v_and_b32 v20, 15, v{lane}
        v_lshrrev_b32 v21, 4, v{lane}
        v_add_u32 v{lo}, 65536, v{l16}
        v_lshlrev_b32 v22, 4, v20
        v_and_b32 v23, 1, v21
        v_lshrrev_b32 v24, 1, v21
        v_lshl_add_u32 v25, v24, 8, v22
        v_lshl_add_u32 v{ost}, v23, 14, v25
        v_mul_u32_u24 v26, {k48}, v23
        v_add_u32 v{h1}, v26, v25
        v_mul_u32_u24 v26, {k48}, v21
        v_add_u32 v26, v26, v22
        v_add_u32 v{h2}, 512, v26
        s_lshl_b32 s59, s{w}, 13
        s_add_u32 s59, s59, 65536
        v_add_u32 v{red}, s59, v{l16}
        v_lshrrev_b32 v26, 5, v{lane}
        v_and_b32 v27, 31, v{lane}
        v_lshlrev_b32 v27, 2, v27
        v_lshl_add_u32 v{pa}, v26, 8, v27
        v_lshlrev_b32 v{pb}, 2, v{lane}
        v_lshlrev_b32 v26, 11, v20
        v_lshl_add_u32 v{out}, v21, 4, v26
        v_mov_b32 v{one}, 1
        """.format(lane=vLane, lo=vLO, l16=vL16, ost=vOst, h1=vH1, h2=vH2, red=vRed, pa=vPollA, pb=vPollB, out=vOut, one=vOne, w=sW, k48=48 * KB))
        s("""
        s_lshl_b32 s59, s{w}, 11
        s_add_u32 s59, s59, {stp}
        v_lshlrev_b32 v26, 10, v24
        v_lshl_add_u32 v26, v23, 6, v26
        v_lshl_add_u32 v26, v20, 2, v26
        v_add_u32 v{sr}, s59, v26
        """.format(w=sW, stp=STP, sr=vStatR))
        s("""
        s_lshl_b32 s59, s{w}, 7
        s_lshl_b32 s60, s{w}, 6
        v_lshlrev_b32 v26, 3, v20
        v_lshl_add_u32 v26, v23, 2, v26
        v_add_u32 v26, s59, v26
        v_lshlrev_b32 v27, 2, v20
        v_lshl_add_u32 v27, v23, 8, v27
        v_add_u32 v27, s60, v27
        v_add_u32 v27, 512, v27
        v_cmp_gt_u32 vcc, 2, v21
        v_cndmask_b32 v26, v27, v26, vcc
        v_add_u32 v{sw}, {stf}, v26
        v_lshlrev_b32 v26, 3, v20
        v_add_u32 v{si}, {stf}, v26
        v_lshlrev_b32 v26, 4, v21
        v_add_u32 v{sv}, {stfn}, v26
        s_mul_i32 s59, s{w}, 192
        s_add_u32 s59, s59, {csl}
        v_add_u32 v{cs}, s59, v26
        v_lshlrev_b32 v27, 2, v20
        v_add_u32 v27, s59, v27
        v_add_u32 v{csv}, 128, v27
        """.format(w=sW, sw=vStatW, stf=STF, si=vStI, sv=vStV, stfn=STF + 512, csl=CSL, cs=vCs, csv=vCsV))
        s("""
        v_lshlrev_b32 v26, 2, v21
        v_sub_u32 v26, v20, v26
        v_mov_b32 v27, 0xf149f2ca
        v_mov_b32 v28, 0
        """)
        for r in range(4):
            s("v_subrev_u32 v29, %d, v26" % r)
            s("v_cmp_gt_u32 vcc, 8, v29")
            s("v_cndmask_b32 v%d, v27, v28, vcc" % (32 + r))
            s("v_cmp_gt_i32 vcc, -8, v29")
            s("v_cndmask_b32 v%d, v27, v28, vcc" % (36 + r))
            s("v_mov_b32 v%d, v27" % (40 + r))
        s("v_add_u32 v30, %d, v%d" % (BIAS, vL16))
        s("ds_write_b128 v30, v[32:35]")
        s("ds_write_b128 v30, v[36:39] offset:1024")
        s("ds_write_b128 v30, v[40:43] offset:2048")
        s("""
        s_cmp_eq_u32 s{rb}, 0
        s_cselect_b32 s59, 2, 1
        s_lshl_b32 s59, s59, 10
        v_add_u32 v{b1}, s59, v30
        """.format(rb=sRB, b1=vB1))

    def colsums(self, s):
        for k in range(6):
            r = 44 + 4 * k
            s("v_pk_add_f32 %s, %s, %s" % (V(r, 2), V(r, 2), V(r + 2, 2)))
            s("v_add_f32 v%d, v%d, v%d" % (r, r, r + 1))
            s("v_add_f32_dpp v%d, v%d, v%d quad_perm:[1,0,3,2] row_mask:0xf bank_mask:0xf" % (r, r, r))
            s("v_add_f32_dpp v%d, v%d, v%d quad_perm:[2,3,0,1] row_mask:0xf bank_mask:0xf" % (r, r, r))
        s("""
        v_lshrrev_b32 v26, 2, v{lane}
        v_lshlrev_b32 v26, 2, v26
        s_mul_i32 s59, s{w}, 192
        s_add_u32 s59, s59, {csl}
        v_add_u32 v26, s59, v26
        """.format(lane=vLane, w=sW, csl=CSL))
        for k in range(6):
            s("ds_write_b32 v26, v%d offset:%d" % (44 + 4 * k, (k // 3) * 768 + (k % 3) * 64))

    def emit_steps(self, s, steps, inject=None):
        inject = inject or {}
        for i, st in enumerate(steps):
            for e in inject.get(i, []):
                s.extend(e)
            for x in st:
                if isinstance(x, Ins):
                    s.append(x)
                else:
                    s(x)
        for e in inject.get(len(steps), []):
            s.extend(e)

    def seg13(self, s, phase, p, h, toks, inject=None):
        stok, atok = toks
        if h == 1:
            s("v_add_u32 v%d, 8192, v%d" % (TMP + 3, vStatR))
        self.stats_reduce(s, h, stok)
        s.wait_vm(atok)
        s("s_barrier")
        if phase == 1:
            pre, steps = self.mf1(h)
        else:
            _, pre, steps = self.mf3(h)
        for x in pre:
            s(x)
        self.emit_steps(s, steps, inject)
        s.wait_ds()
        s("s_barrier")

    def gen(self):
        s = Stream()
        self.prologue(s)
        self.ts(s, "start")
        s("s_lshl_b32 s36, s%d, 2" % sCG)
        s("s_add_u32 s36, s36, s%d" % sW)
        s("s_mul_i32 s59, s36, 3072")
        s("s_add_u32 s59, s59, %d" % CSQ)
        for k in range(3):
            s("buffer_load_dwordx4 %s, v%d, s[8:11], s59 offen offset:%d" % (V(44 + 4 * k, 4), vL16, k * 1024))
        s("s_lshl_b32 s36, s%d, 2" % sCG3)
        s("s_add_u32 s36, s36, s%d" % sW)
        s("s_mul_i32 s59, s36, 3072")
        s("s_add_u32 s59, s59, %d" % CSG)
        for k in range(3):
            s("buffer_load_dwordx4 %s, v%d, s[8:11], s59 offen offset:%d" % (V(56 + 4 * k, 4), vL16, k * 1024))
        tA = {}
        tA[(1, 0, 0)] = self.loadA_lds(s, 1, 0, 0)
        self.loadB_x(s, sBQ)
        self.prologue2(s)
        self.colsums(s)
        tA[(1, 0, 1)] = self.loadA_lds(s, 1, 0, 1)
        simple = True
        for p in range(2):
            for h in range(2):
                if p == 1:
                    self.poll_p1(s, h)
                    tA[(1, p, h)] = self.loadA_lds(s, 1, p, h)
                s("v_add_u32 v%d, %d, v%d" % (TMP + 2, BIAS, vL16))
                self.seg13(s, 1, p, h, tA[(1, p, h)])
                self.ts(s, "mf1.%d.%d" % (p, h))
                if h == 1:
                    self.loadB_y(s, sBW, 0, 16)
                tok = self.epi1(s, p, h)
                self.sig(s, tok, sF1, flag_off(p, 0, h))
                self.ts(s, "s1.%d.%d" % (p, h))
            self.loadB_x(s, sBG)
            for h in range(2):
                self.poll(s, sP2, flag_off(p, 0, h), vPollB, sM2)
                self.loadA2(s, p, h)
                if h == 0:
                    s("s_barrier")
                self.emit_steps(s, self.mf24(2, p, h))
                tok = self.epi24(s, 2, p, h)
                self.sig(s, tok, sF1, flag_off(p, 1, h))
                self.ts(s, "s2.%d.%d" % (p, h))
            self.loadB_y(s, sBD, 0, 44)
            for h in range(2):
                self.poll(s, sP3, flag_off(p, 1, h), vPollA, None)
                s("s_barrier")
                t = self.loadA_lds(s, 3, p, h)
                self.seg13(s, 3, p, h, t)
                tok = self.epi3(s, p, h)
                self.sig(s, tok, sF3, flag_off(p, 2, h))
                self.ts(s, "s3.%d.%d" % (p, h))
            if p == 0:
                self.loadB_x(s, sBQ)
            for h in range(2):
                self.poll(s, sP4, flag_off(p, 2, h), vPollB, sM4)
                self.loadA4(s, p, h)
                if h == 0:
                    s("s_barrier")
                self.emit_steps(s, self.mf24(4, p, h))
                tok = self.epi24(s, 4, p, h)
                if p == 0:
                    self.sig(s, tok, sF1, flag_off(p, 3, h))
                self.ts(s, "s4.%d.%d" % (p, h))
        if self.prof:
            s("s_lshl_b32 s59, s2, 2")
            s("s_add_u32 s59, s59, s%d" % sW)
            s("s_lshl_b32 s59, s59, 8")
            s("s_add_u32 s59, s59, %d" % 0x3000000)
            s("s_mov_b64 exec, 1")
            for k in range(self.nts):
                s("v_mov_b32 v20, s%d" % (sTS + k))
                s("buffer_store_dword v20, off, s[8:11], s59 offset:%d" % (4 * k))
            s("s_mov_b64 exec, -1")
        s("s_waitcnt vmcnt(0)")
        lines = finalize(s, verbose=False)
        lines.append("M_end:")
        lines.append("  s_endpgm")
        lines += self.slow
        return lines

    def poll_p1(self, s, h):
        s("s_cmp_eq_u32 s%d, 0" % sRB)
        s("s_cselect_b32 s%d, 0, 256" % sT2)
        s("s_lshl_b32 s%d, s%d, 8" % (sT, sRB))
        s("s_sub_u32 s%d, s%d, s%d" % (sT, sT, sT2))
        s("v_lshrrev_b32 v%d, 5, v%d" % (TMP, vLane))
        s("v_mul_lo_u32 v%d, v%d, s%d" % (TMP, TMP, sT2))
        s("v_and_b32 v%d, 31, v%d" % (TMP + 1, vLane))
        s("v_lshl_add_u32 v%d, v%d, 2, v%d" % (TMP, TMP + 1, TMP))
        self.poll(s, sT, flag_off(0, 3, h), TMP, None)


def gen_main(opts):
    m = Main(opts)
    lines = m.gen()
    if m.prof:
        lines.insert(0, "; timestamps: " + " ".join(m.tsnames))
    return lines, LDS_BYTES
```

```python
from asmlib import *
from layout import *

N_Q, N_W, N_D, N_G, N_X, N_Z = 384, 128, 352, 1024, 512, FL_BYTES // 4096
T_W = N_Q
T_D = T_W + N_W
T_G = T_D + N_D
T_X = T_G + N_G
T_Z = T_X + N_X
T_END = T_Z + N_Z
PREP_WGS = (T_END + 3) // 4
PREP_LDS = 4 * 4096


def magic(d):
    return (2 ** 32 + d - 1) // d


def gen_prep(name):
    L = []

    def fin(s):
        L.extend(finalize(s))

    s = Stream()
    s("""
    s_load_dwordx4 s[16:19], s[0:1], 0
    s_load_dwordx2 s[20:21], s[0:1], 16
    s_load_dwordx4 s[24:27], s[0:1], 32
    s_load_dwordx2 s[28:29], s[0:1], 48
    s_load_dwordx2 s[30:31], s[0:1], 72
    v_lshrrev_b32 v2, 6, v0
    v_and_b32 v1, 63, v0
    v_readfirstlane_b32 s3, v2
    s_lshl_b32 s4, s2, 2
    s_add_u32 s4, s4, s3
    s_cmp_ge_u32 s4, %d
    s_cbranch_scc1 P_end
    s_lshl_b32 s5, s3, 12
    s_waitcnt lgkmcnt(0)
    s_mov_b32 s8, s30
    s_and_b32 s9, s31, 0xffff
    s_mov_b32 s10, 0x10000000
    s_mov_b32 s11, 0x20000
    s_mov_b32 s15, 0x20000
    s_mov_b32 s35, 0x20000
    v_lshlrev_b32 v3, 4, v1
    v_mov_b32 v40, 0x3f803f80
    v_mov_b32 v41, 0x3f803f80
    v_mov_b32 v42, 0x3f803f80
    v_mov_b32 v43, 0x3f803f80
    v_and_b32 v4, 3, v1
    v_lshrrev_b32 v5, 2, v1
    v_and_b32 v5, 3, v5
    v_lshrrev_b32 v6, 4, v1
    v_lshl_add_u32 v7, v6, 3, v5
    s_cmp_ge_u32 s4, %d
    s_cbranch_scc1 P_Z
    s_cmp_ge_u32 s4, %d
    s_cbranch_scc1 P_X
    s_cmp_ge_u32 s4, %d
    s_cbranch_scc1 P_G
    s_cmp_ge_u32 s4, %d
    s_cbranch_scc1 P_D
    s_cmp_ge_u32 s4, %d
    s_cbranch_scc1 P_W
    """ % (T_END, T_Z, T_X, T_G, T_D, T_W))
    fin(s)

    def raw128_load(s, rowstride, s_row0, s_colbyte):
        s("""
        v_lshrrev_b32 v8, 3, v1
        v_add_u32 v8, %s, v8
        v_mul_u32_u24 v8, %d, v8
        v_and_b32 v9, 7, v1
        v_lshl_add_u32 v8, v9, 4, v8
        v_add_u32 v8, %s, v8
        s_mov_b32 m0, s5
        """ % (s_row0, rowstride, s_colbyte))
        toks = []
        for i in range(4):
            toks.append(s.vm("buffer_load_dwordx4 v8, s[12:15], 0 offen lds"))
            if i < 3:
                s("v_add_u32 v8, %d, v8" % (8 * rowstride))
                s("s_add_u32 m0, m0, 1024")
        s.wait_vm(toks[-1])

    s = Stream()
    s("""
    s_mul_hi_u32 s36, s4, %d
    s_mul_i32 s37, s36, 48
    s_sub_u32 s37, s4, s37
    s_mul_hi_u32 s38, s37, %d
    s_mul_i32 s39, s38, 3
    s_sub_u32 s39, s37, s39
    s_mov_b32 s12, s18
    s_and_b32 s13, s19, 0xffff
    s_mov_b32 s14, %d
    s_lshl_b32 s40, s38, 5
    s_lshl_b32 s41, s39, 10
    s_lshl_b32 s42, s36, 7
    s_add_u32 s41, s41, s42
    """ % (magic(48), magic(3), 512 * 1536 * 2))
    raw128_load(s, 3072, "s40", "s41")
    s("""
    v_lshlrev_b32 v10, 7, v7
    v_lshl_add_u32 v10, v4, 3, v10
    v_add_u32 v10, s5, v10
    """)
    for w in range(4):
        for t in range(2):
            s("ds_read_b64_tr_b16 v[%d:%d], v10 offset:%d" % (16 + 4 * w + 2 * t, 17 + 4 * w + 2 * t, t * 512 + w * 32))
    s("""
    s_mul_i32 s42, s36, %d
    s_lshl_b32 s43, s37, 10
    s_add_u32 s42, s42, s43
    s_add_u32 s42, s42, %d
    """ % (4 * 48 * KB, PQ))
    for w in range(4):
        s("buffer_store_dwordx4 v[%d:%d], v3, s[8:11], s42 offen" % (16 + 4 * w, 19 + 4 * w))
        if w < 3:
            s("s_add_u32 s42, s42, %d" % (48 * KB))
    for w in range(4):
        s("v_mfma_f32_16x16x32_bf16 v[%d:%d], v[40:43], v[%d:%d], 0" % (44 + 4 * w, 47 + 4 * w, 16 + 4 * w, 19 + 4 * w))
    s("""
    s_mul_i32 s42, s36, %d
    s_lshl_b32 s43, s39, 10
    s_add_u32 s42, s42, s43
    s_lshl_b32 s43, s38, 2
    s_add_u32 s42, s42, s43
    s_add_u32 s42, s42, %d
    v_lshlrev_b32 v11, 6, v1
    v_cmp_gt_u32 vcc, 16, v1
    s_and_saveexec_b64 s[44:45], vcc
    """ % (4 * 3 * KB, CSQ))
    for w in range(4):
        s("buffer_store_dword v%d, v11, s[8:11], s42 offen" % (44 + 4 * w))
        if w < 3:
            s("s_add_u32 s42, s42, %d" % (3 * KB))
    s("s_endpgm")
    fin(s)

    def wd_tail(s, s_wq, s_outbase):
        s("""
        v_lshlrev_b32 v10, 7, v7
        v_lshl_add_u32 v10, v4, 4, v10
        v_add_u32 v10, s5, v10
        """)
        for b in range(2):
            for jl in range(2):
                f = b * 2 + jl
                for t in range(2):
                    s("ds_read_b64_tr_b16 v[%d:%d], v10 offset:%d" % (16 + 4 * f + 2 * t, 17 + 4 * f + 2 * t, t * 512 + 64 * b + 8 * jl))
        s("s_and_b32 s46, %s, 1" % s_wq)
        for b in range(2):
            s("s_xor_b32 s47, s46, %d" % b)
            s("s_lshl_b32 s47, s47, 11")
            s("s_add_u32 s47, s47, %s" % s_outbase)
            for jl in range(2):
                f = b * 2 + jl
                s("buffer_store_dwordx4 v[%d:%d], v3, s[8:11], s47 offen offset:%d" % (16 + 4 * f, 19 + 4 * f, jl * 1024))
        s("s_endpgm")

    L.append("P_W:")
    s = Stream()
    s("""
    s_sub_u32 s4, s4, %d
    s_lshr_b32 s36, s4, 4
    s_and_b32 s38, s4, 15
    s_mov_b32 s12, s20
    s_and_b32 s13, s21, 0xffff
    s_mov_b32 s14, %d
    s_lshl_b32 s40, s38, 5
    s_lshl_b32 s41, s36, 7
    """ % (T_W, 512 * 512 * 2))
    raw128_load(s, 1024, "s40", "s41")
    s("""
    s_lshr_b32 s39, s38, 2
    s_lshl_b32 s42, s36, 16
    s_lshl_b32 s43, s38, 12
    s_add_u32 s42, s42, s43
    s_add_u32 s42, s42, %d
    """ % PW)
    wd_tail(s, "s39", "s42")
    fin(s)

    L.append("P_D:")
    s = Stream()
    s("""
    s_sub_u32 s4, s4, %d
    s_mul_hi_u32 s36, s4, %d
    s_mul_i32 s37, s36, 44
    s_sub_u32 s38, s4, s37
    s_mov_b32 s12, s28
    s_and_b32 s13, s29, 0xffff
    s_mov_b32 s14, %d
    s_lshl_b32 s40, s38, 5
    s_lshl_b32 s41, s36, 7
    """ % (T_D, magic(44), 1376 * 512 * 2))
    raw128_load(s, 1024, "s40", "s41")
    s("""
    s_mul_hi_u32 s39, s38, %d
    s_mul_i32 s42, s36, %d
    s_lshl_b32 s43, s38, 12
    s_add_u32 s42, s42, s43
    s_add_u32 s42, s42, %d
    """ % (magic(11), 176 * KB, PD))
    wd_tail(s, "s39", "s42")
    fin(s)

    L.append("P_G:")
    s = Stream()
    s("""
    s_sub_u32 s4, s4, %d
    s_lshr_b32 s36, s4, 6
    s_lshr_b32 s39, s4, 4
    s_and_b32 s39, s39, 3
    s_and_b32 s38, s4, 15
    s_mul_i32 s40, s36, 96
    s_mul_i32 s41, s39, 24
    s_add_u32 s40, s40, s41
    s_mov_b32 s12, s24
    s_and_b32 s13, s25, 0xffff
    s_mov_b32 s14, %d
    s_mov_b32 s32, s26
    s_and_b32 s33, s27, 0xffff
    s_mov_b32 s34, %d
    """ % (T_G, 512 * 1376 * 2, 512 * 1376 * 2))
    toks = []
    for i in range(2):
        s("""
        v_add_u32 v8, %d, v1
        v_mul_u32_u24 v9, 21846, v8
        v_lshrrev_b32 v9, 16, v9
        v_mul_u32_u24 v12, 3, v9
        v_sub_u32 v12, v8, v12
        s_lshl_b32 s41, s38, 5
        v_add_u32 v13, s41, v9
        v_mul_u32_u24 v13, 2752, v13
        v_lshlrev_b32 v14, 3, v12
        v_add_u32 v14, s40, v14
        v_lshl_add_u32 v13, v14, 1, v13
        v_cmp_gt_u32 vcc, 1376, v14
        v_cmp_gt_u32 s[44:45], 32, v9
        s_and_b64 vcc, vcc, s[44:45]
        v_mov_b32 v15, 0x7ffffff0
        v_cndmask_b32 v%d, v15, v13, vcc
        """ % (64 * i, 48 + i))
    s("s_mov_b32 m0, s5")
    toks.append(s.vm("buffer_load_dwordx4 v48, s[12:15], 0 offen lds"))
    s("s_add_u32 m0, m0, 1024")
    toks.append(s.vm("buffer_load_dwordx4 v49, s[12:15], 0 offen lds"))
    s("s_add_u32 m0, m0, 1024")
    toks.append(s.vm("buffer_load_dwordx4 v48, s[32:35], 0 offen lds"))
    s("s_add_u32 m0, m0, 1024")
    toks.append(s.vm("buffer_load_dwordx4 v49, s[32:35], 0 offen lds"))
    s("""
    v_mul_u32_u24 v10, 48, v7
    v_add_u32 v10, s5, v10
    v_lshl_add_u32 v11, v4, 3, v10
    v_and_b32 v12, 1, v4
    v_lshlrev_b32 v12, 11, v12
    v_lshrrev_b32 v13, 1, v4
    v_lshl_add_u32 v12, v13, 3, v12
    v_add_u32 v12, v12, v10
    """)
    s.wait_vm(toks[-1])
    for t in range(2):
        s("ds_read_b64_tr_b16 v[%d:%d], v11 offset:%d" % (16 + 2 * t, 17 + 2 * t, t * 192))
        s("ds_read_b64_tr_b16 v[%d:%d], v11 offset:%d" % (20 + 2 * t, 21 + 2 * t, t * 192 + 2048))
        s("ds_read_b64_tr_b16 v[%d:%d], v12 offset:%d" % (24 + 2 * t, 25 + 2 * t, t * 192 + 32))
    s("""
    s_lshl_b32 s41, s36, 2
    s_add_u32 s41, s41, s39
    s_mul_i32 s42, s41, %d
    s_mul_i32 s43, s38, %d
    s_add_u32 s42, s42, s43
    s_add_u32 s42, s42, %d
    """ % (48 * KB, 3 * KB, PG))
    for sub in range(3):
        s("buffer_store_dwordx4 v[%d:%d], v3, s[8:11], s42 offen offset:%d" % (16 + 4 * sub, 19 + 4 * sub, sub * 1024))
    for sub in range(3):
        s("v_mfma_f32_16x16x32_bf16 v[%d:%d], v[40:43], v[%d:%d], 0" % (52 + 4 * sub, 55 + 4 * sub, 16 + 4 * sub, 19 + 4 * sub))
    s("""
    s_mul_i32 s42, s41, %d
    s_lshl_b32 s43, s38, 2
    s_add_u32 s42, s42, s43
    s_add_u32 s42, s42, %d
    v_lshlrev_b32 v11, 6, v1
    v_cmp_gt_u32 vcc, 16, v1
    s_and_saveexec_b64 s[44:45], vcc
    """ % (3 * KB, CSG))
    for sub in range(3):
        s("buffer_store_dword v%d, v11, s[8:11], s42 offen offset:%d" % (52 + 4 * sub, sub * 1024))
    s("s_endpgm")
    fin(s)

    L.append("P_X:")
    s = Stream()
    s("""
    s_sub_u32 s4, s4, %d
    s_lshr_b32 s36, s4, 8
    s_lshr_b32 s37, s4, 2
    s_and_b32 s37, s37, 63
    s_and_b32 s38, s4, 3
    s_mov_b32 s12, s16
    s_and_b32 s13, s17, 0xffff
    s_mov_b32 s14, %d
    v_and_b32 v8, 15, v1
    s_lshl_b32 s39, s37, 4
    v_add_u32 v8, s39, v8
    v_lshlrev_b32 v8, 1, v8
    v_add_u32 v8, s36, v8
    v_lshlrev_b32 v8, 10, v8
    v_lshl_add_u32 v8, v6, 4, v8
    s_lshl_b32 s39, s38, 8
    v_add_u32 v8, s39, v8
    """ % (T_X, 2048 * 512 * 2))
    for b in range(4):
        s("buffer_load_dwordx4 v[%d:%d], v8, s[12:15], 0 offen offset:%d" % (16 + 4 * b, 19 + 4 * b, b * 64))
    s("""
    s_lshl_b32 s40, s36, 20
    s_lshl_b32 s41, s37, 14
    s_add_u32 s40, s40, s41
    s_lshl_b32 s41, s38, 12
    s_add_u32 s40, s40, s41
    s_add_u32 s40, s40, %d
    s_lshl_b32 s42, s36, 17
    s_lshl_b32 s41, s37, 11
    s_add_u32 s42, s42, s41
    s_lshl_b32 s41, s38, 9
    s_add_u32 s42, s42, s41
    s_add_u32 s42, s42, %d
    v_lshlrev_b32 v12, 2, v1
    """ % (XB[0], ST[0]))
    for b in range(4):
        s("buffer_store_dwordx4 v[%d:%d], v3, s[8:11], s40 offen offset:%d" % (16 + 4 * b, 19 + 4 * b, b * 1024))
    for b in range(4):
        a, q = 44 + 2 * b, 45 + 2 * b
        s("v_mov_b32 v%d, 0" % a)
        s("v_mov_b32 v%d, 0" % q)
        for k in range(4):
            s("v_dot2c_f32_bf16 v%d, v%d, v40" % (a, 16 + 4 * b + k))
            s("v_dot2c_f32_bf16 v%d, v%d, v%d" % (q, 16 + 4 * b + k, 16 + 4 * b + k))
    for b in range(4):
        a, q = 44 + 2 * b, 45 + 2 * b
        s("v_permlane16_swap_b32 v%d, v%d" % (a, q))
        s("v_add_f32 v%d, v%d, v%d" % (a, a, q))
        s("v_mov_b32 v%d, v%d" % (q, a))
        s("v_permlane32_swap_b32 v%d, v%d" % (a, q))
        s("v_add_f32 v%d, v%d, v%d" % (a, a, q))
    s("""
    v_cmp_gt_u32 vcc, 32, v1
    s_and_saveexec_b64 s[44:45], vcc
    """)
    for b in range(4):
        s("buffer_store_dword v%d, v12, s[8:11], s42 offen offset:%d" % (44 + 2 * b, b * 128))
    s("s_endpgm")
    fin(s)

    L.append("P_Z:")
    s = Stream()
    s("""
    s_sub_u32 s4, s4, %d
    s_lshl_b32 s40, s4, 12
    s_add_u32 s40, s40, %d
    v_mov_b32 v16, 0
    v_mov_b32 v17, 0
    v_mov_b32 v18, 0
    v_mov_b32 v19, 0
    """ % (T_Z, FL))
    for b in range(4):
        s("buffer_store_dwordx4 v[16:19], v3, s[8:11], s40 offen offset:%d" % (b * 1024))
    fin(s)
    L.append("P_end:")
    L.append("  s_endpgm")
    return L
```

```python
import sys, os
sys.path.insert(0, os.path.dirname(os.path.abspath(__file__)))
from layout import *
import prep

HEADER = """; Kernarg layout (80 bytes, ptrs only, base s[0:1]):
; hand-off flags cleared;  (2) main: persistent, one workgroup per CU, both layer pairs with flag hand-offs.
"""

def kd(name, vgpr, sgpr, accum):
    return """
.amdhsa_kernel %s
  .amdhsa_next_free_vgpr %d
  .amdhsa_next_free_sgpr %d
  .amdhsa_accum_offset %d
  .amdhsa_group_segment_fixed_size 0
  .amdhsa_kernarg_size 80
  .amdhsa_user_sgpr_count 2
  .amdhsa_user_sgpr_kernarg_segment_ptr 1
  .amdhsa_system_sgpr_workgroup_id_x 1
.end_amdhsa_kernel""" % (name, vgpr, sgpr, accum)


def build(main_lines, main_lds, opts=None):
    out = [HEADER.rstrip()]
    out.append("; @launch kernel=prep_kernel grid=(%d,1,1) block=(256,1,1) lds=%d" % (prep.PREP_WGS, prep.PREP_LDS))
    out.append("; @launch kernel=%s grid=(256,1,1) block=(256,1,1) lds=%d" % (KNAME, main_lds))
    out.append('.amdgcn_target "amdgcn-amd-amdhsa--gfx950"')
    out.append(".text")
    out.append(".globl prep_kernel\n.p2align 8\n.type prep_kernel,@function\nprep_kernel:")
    out += prep.gen_prep("prep_kernel", int((opts or {}).get("prof", 0)))
    out.append(".globl %s\n.p2align 8\n.type %s,@function\n%s:" % (KNAME, KNAME, KNAME))
    out += main_lines
    out.append('.section .rodata,"a"\n.p2align 6')
    out.append(kd("prep_kernel", 64, 64, 64))
    out.append(".p2align 6")
    out.append(kd(KNAME, 512, 102, 256))
    return "\n".join(out) + "\n"


if __name__ == "__main__":
    dst = sys.argv[1]
    opts = dict(a.split("=") for a in sys.argv[2:])
    if opts.get("main", "1") == "0":
        text = build(["  s_endpgm"], 0)
    else:
        import mainker
        lines, lds = mainker.gen_main(opts)
        text = build(lines, lds, opts)
    open(dst, "w").write(text)
    print("wrote", dst, len(text), "bytes")
```

```python
from asmlib import *
from layout import *
from collections import deque

REG = [0, 65536]
MISC = 131072
STP = MISC
STF = MISC + 16384
CSL = STF + 2048
BIAS = CSL + 2048
LDS_BYTES = 163840
SCR = [65536, 98304]

vLane, vL16, vLO, vOst, vH1, vH2, vRed, vPollA, vPollB, vOut = 1, 2, 3, 4, 5, 6, 7, 8, 9, 10
vStatR, vStatW, vStI, vStV, vCs, vCsV, vB1, vOne, vP = 11, 12, 13, 14, 15, 16, 17, 18, 19
ACC = 20
FR = 68
RING = 88
TMP = 136
RES = 140
DV = 144

sW, sRB, sCG, sRB3, sCG3 = 16, 17, 18, 19, 20
sA1h, sA1m, sA3, sKw = 21, 22, 23, 24
sSt1, sSt3 = 25, 26
sM2, sM4 = 28, 30
sT, sT2, sT3 = 32, 33, 34
sOdd = 36
sOnes = 38
sCnt = 40
sBQ, sBW, sBG, sBD = 41, 42, 43, 44
sOst, sA2, sRes, sHst = 45, 46, 47, 48
sA4 = 64
sF1, sF3 = 50, 51
sP2, sP3, sP4, sP1a = 52, 53, 54, 55
sOutO = 56
sStO = 57
sK = 96
sTB = 49
sPoll = 35
sA1hw, sA1mw, sA3w, sKw1 = 63, 66, 67, 27
vPollH = 0
sTS = 68

LOG2E = 1.4426950408889634
import struct
def fbits(x): return struct.unpack("<I", struct.pack("<f", x))[0]

POLL_LIMIT = 200000


def Bx(f):
    return "a[%d:%d]" % (4 * f, 4 * f + 3)
def By(f):
    if f < 16:
        return "a[%d:%d]" % (192 + 4 * f, 195 + 4 * f)
    return "v[%d:%d]" % (DV + 4 * (f - 16), DV + 4 * (f - 16) + 3)
def V(n, c=1):
    return "v%d" % n if c == 1 else "v[%d:%d]" % (n, n + c - 1)

def flag_off(p, phase, h):
    return FL + ((p * 4 + phase) * 2 + h) * 32 * 256


class Main:
    def __init__(self, opts):
        self.opts = opts
        self.prof = int(opts.get("prof", 0))
        self.slow = []
        self.npoll = 0
        self.nts = 0
        self.tsnames = []

    def ts(self, s, name):
        if not self.prof:
            return
        k = self.nts
        self.nts += 1
        self.tsnames.append(name)
        assert sTS + k < 94, k
        s("s_waitcnt lgkmcnt(0)")
        s("s_memtime s[4:5]")
        s("s_waitcnt lgkmcnt(0)")
        s("s_mov_b32 s%d, s4" % (sTS + k))

    def poll_issue(self, s, soff, const, vaddr):
        s("s_add_u32 s%d, s%d, %d" % (sPoll, soff, const))
        s("buffer_load_dword v%d, v%d, s[8:11], s%d offen sc1" % (vP, vaddr, sPoll))

    def poll_check(self, s, vaddr, mask):
        n = self.npoll
        self.npoll += 1
        s("v_cmp_ne_u32 vcc, 1, v%d" % vP)
        if mask is not None:
            s("s_and_b64 vcc, vcc, s[%d:%d]" % (mask, mask + 1))
        s("s_cbranch_vccnz SLOW_%d" % n)
        s("BACK_%d:" % n)
        t = []
        t.append("SLOW_%d:" % n)
        t.append("  s_mov_b32 s%d, 0" % sCnt)
        t.append("SPIN_%d:" % n)
        t.append("  buffer_load_dword v%d, v%d, s[8:11], s%d offen sc1" % (vP, vaddr, sPoll))
        t.append("  s_waitcnt vmcnt(0)")
        t.append("  v_cmp_ne_u32 vcc, 1, v%d" % vP)
        t.append("  s_nop 1")
        if mask is not None:
            t.append("  s_and_b64 vcc, vcc, s[%d:%d]" % (mask, mask + 1))
        t.append("  s_cbranch_vccz BACK_%d" % n)
        t.append("  s_add_u32 s%d, s%d, 1" % (sCnt, sCnt))
        t.append("  s_cmp_lt_u32 s%d, %d" % (sCnt, POLL_LIMIT))
        t.append("  s_cbranch_scc1 SPIN_%d" % n)
        t.append("  s_branch BACK_%d" % n)
        self.slow += t

    def dep(self, phase, p, h):
        if phase == 1:
            return (sP1a, flag_off(p - 1, 3, h), vPollH, None)
        if phase == 2:
            return (sP2, flag_off(p, 0, h), vPollB, sM2)
        if phase == 3:
            return (sP3, flag_off(p, 1, h), vPollA, None)
        return (sP4, flag_off(p, 2, h), vPollB, sM4)

    def ev_poll_issue(self, phase, p, h):
        t = Stream()
        so, c, va, m = self.dep(phase, p, h)
        self.poll_issue(t, so, c, va)
        return t

    def ev_poll_check(self, phase, p, h):
        t = Stream()
        so, c, va, m = self.dep(phase, p, h)
        self.poll_check(t, va, m)
        return t

    def ev_sig(self, phase, p, h, tok):
        t = Stream()
        self.sig(t, tok, sF3 if phase == 3 else sF1, flag_off(p, phase - 1, h))
        return t

    def sig(self, s, tok, soff, const):
        s.wait_vm(tok)
        s("s_add_u32 s%d, s%d, %d" % (sT3, soff, const))
        s("s_mov_b64 exec, 1")
        s("buffer_store_dword v%d, off, s[8:11], s%d sc1" % (vOne, sT3))
        s("s_mov_b64 exec, -1")

    def groupsB(self, reg, sbase, lo, hi):
        out = []
        for f in range(lo, hi):
            g = Stream()
            if f == lo or f % 4 == 0:
                g("s_add_u32 s%d, s%d, %d" % (sTB, sbase, (f // 4) * 4096))
            g("buffer_load_dwordx4 %s, v%d, s[8:11], s%d offen offset:%d" % (reg(f), vL16, sTB, (f % 4) * 1024))
            out.append(g)
        return out

    def groupsA_lds(self, phase, p, h):
        if phase == 1:
            srcs = [(sA1hw, 0), (sA1mw, 0), (sA1mw, 16384)]
            xb, st, sst = XB[2 * p], ST[2 * p], sSt1
        else:
            srcs = [(sA3w, i * 16384) for i in range(4)]
            xb, st, sst = XB[2 * p + 1], ST[2 * p + 1], sSt3
        groups, ctok = [], []
        def stats_groups():
            tk = None
            for i in range(2):
                g = Stream()
                g("s_lshl_b32 s%d, s%d, 11" % (sT2, sW))
                g("s_add_u32 m0, s%d, %d" % (sT2, STP + h * 8192))
                g("s_add_u32 s%d, s%d, %d" % (sT, sst, st + h * 131072))
                tk = g.vm("buffer_load_dwordx4 v%d, s[8:11], s%d offen offset:%d sc1 lds" % (vL16, sT, i * 1024))
                groups.append(g)
            return tk
        stok = None
        for c in range(4):
            tk = None
            for sub, (sr, cc) in enumerate(srcs):
                g = Stream()
                g("s_add_u32 m0, s%d, %d" % (sKw1, REG[h] + sub * 16384 + c * 4096))
                g("s_add_u32 s%d, s%d, %d" % (sT, sr, xb + h * MB + cc + c * 4096))
                tk = g.vm("buffer_load_dwordx4 v%d, s[8:11], s%d offen sc1 lds" % (vL16, sT))
                groups.append(g)
            ctok.append(tk)
            if c == 0:
                stok = stats_groups()
        return groups, stok, ctok

    def ringreg(self, ks, ss):
        return RING + 8 * (ks % 6) + 4 * ss

    def groupsA2(self, p, h):
        out = []
        for ks in range(4):
            for ss in range(2):
                g = Stream()
                if ss == 0:
                    g("s_add_u32 s%d, s%d, %d" % (sT, sA2, OB[p] + h * MB))
                else:
                    g("s_xor_b32 s%d, s%d, 16384" % (sT, sA2))
                    g("s_add_u32 s%d, s%d, %d" % (sT, sT, OB[p] + h * MB))
                g("buffer_load_dwordx4 %s, v%d, s[8:11], s%d offen offset:%d sc1" % (V(self.ringreg(ks, ss), 4), vL16, sT, ks * 1024))
                out.append(g)
        g = Stream()
        g("s_add_u32 s%d, s%d, %d" % (sT, sRes, XB[2 * p] + h * MB))
        g("buffer_load_dwordx4 %s, v%d, s[8:11], s%d offen sc1" % (V(RES, 4), vL16, sT))
        out.append(g)
        return out

    def loadA4_one(self, s, p, h, ks, ss):
        s("s_add_u32 s%d, s%d, %d" % (sT, sA4 + ss, HB[p] + h * 3 * MB + (ks // 4) * 4096))
        s("buffer_load_dwordx4 %s, v%d, s[8:11], s%d offen offset:%d sc1" % (V(self.ringreg(ks, ss), 4), vL16, sT, (ks % 4) * 1024))

    def groupsA4(self, p, h):
        out = []
        for ks in range(6):
            for ss in range(2):
                g = Stream()
                self.loadA4_one(g, p, h, ks, ss)
                out.append(g)
        g = Stream()
        g("s_add_u32 s%d, s%d, %d" % (sT, sRes, XB[2 * p + 1] + h * MB))
        g("buffer_load_dwordx4 %s, v%d, s[8:11], s%d offen sc1" % (V(RES, 4), vL16, sT))
        out.append(g)
        return out

    def stats_reduce(self, s, h, stok):
        a = RING
        adr = vStatR
        if h == 1:
            adr = RING + 8
            s("v_add_u32 v%d, 8192, v%d" % (adr, vStatR))
        s.wait_vm(stok)
        for i in range(4):
            s("ds_read2_b32 %s, v%d offset0:%d offset1:%d" % (V(a + 2 * i, 2), adr, 64 * i, 64 * i + 32))
        s("v_pk_add_f32 %s, %s, %s" % (V(a, 2), V(a, 2), V(a + 2, 2)))
        s("v_pk_add_f32 %s, %s, %s" % (V(a + 4, 2), V(a + 4, 2), V(a + 6, 2)))
        s("v_pk_add_f32 %s, %s, %s" % (V(a, 2), V(a, 2), V(a + 4, 2)))
        s("v_add_f32 v%d, v%d, v%d" % (a, a, a + 1))
        s("v_mov_b32 v%d, v%d" % (a + 1, a))
        s("v_permlane32_swap_b32 v%d, v%d" % (a, a + 1))
        s("v_add_f32 v%d, v%d, v%d" % (a, a, a + 1))
        s("v_mov_b32 v%d, v%d" % (a + 1, a))
        s("v_permlane16_swap_b32 v%d, v%d" % (a, a + 1))
        s("v_mul_f32 v%d, %s, v%d" % (a, "0x%08x" % fbits(-1.0 / 512), a))
        s("v_mul_f32 v%d, v%d, v%d" % (a + 2, a, a))
        s("v_fma_f32 v%d, v%d, s%d, -v%d" % (a + 1, a + 1, sK, a + 2))
        s("v_max_f32 v%d, 0, v%d" % (a + 1, a + 1))
        s("v_add_f32 v%d, s%d, v%d" % (a + 1, sK + 1, a + 1))
        s("v_rsq_f32 v%d, v%d" % (a + 1, a + 1))
        s("v_cndmask_b32 v%d, v%d, v%d, s[%d:%d]" % (a, a, a + 1, sOdd, sOdd + 1))
        s("ds_write_b32 v%d, v%d offset:%d" % (vStatW, a, h * 1024))

    def mf13(self, phase, h):
        base = vL16 if h == 0 else vLO
        nsub = 3 if phase == 1 else 4
        nfr = 16 * nsub
        def rd(n):
            ks, sub = divmod(n, nsub)
            out = []
            if sub == 0 and ks % 4 == 0:
                out.append(("chunk", ks // 4))
            out.append("ds_read_b128 %s, v%d offset:%d" % (V(FR + 4 * (n % 5), 4), base, sub * 16384 + ks * 1024))
            return out
        pre = [x for n in range(5) for x in rd(n)]
        steps = []
        mm = "v_mfma_f32_16x16x32_bf16"
        Q = [None, ACC, ACC + 4]
        K = [ACC + 8, ACC + 12, ACC + 16]
        Vv = [ACC + 20, ACC + 24, ACC + 28]
        for ks in range(16):
            c = (lambda r: "0" if ks == 0 else V(r, 4))
            for sub in range(nsub):
                n = nsub * ks + sub
                x = V(FR + 4 * (n % 5), 4)
                grp = []
                if phase == 1:
                    if sub > 0:
                        grp.append("%s %s, %s, %s, %s" % (mm, V(Q[sub], 4), Bx(3 * ks), x, c(Q[sub])))
                    grp.append("%s %s, %s, %s, %s" % (mm, V(K[sub], 4), Bx(3 * ks + 1), x, c(K[sub])))
                    grp.append("%s %s, %s, %s, %s" % (mm, V(Vv[sub], 4), x, Bx(3 * ks + 2), c(Vv[sub])))
                else:
                    for j in range(3):
                        r = ACC + 12 * sub + 4 * j
                        grp.append("%s %s, %s, %s, %s" % (mm, V(r, 4), Bx(3 * ks + j), x, c(r)))
                for i, m in enumerate(grp):
                    st = [m]
                    if i == len(grp) - 1 and n + 5 < nfr:
                        st += rd(n + 5)
                    steps.append(st)
        return pre, steps

    def mf24(self, phase, p, h):
        nks = 4 if phase == 2 else 11
        steps = []
        for ks in range(nks):
            for ss in range(2):
                x = V(self.ringreg(ks, ss), 4)
                for jj in range(4):
                    r = ACC + 16 * ss + 4 * jj
                    st = ["v_mfma_f32_16x16x32_bf16 %s, %s, %s, %s" % (V(r, 4), By(4 * ks + jj), x, "0" if ks == 0 else V(r, 4))]
                    if phase == 4 and jj == 3 and ks + 6 < nks:
                        t = Stream()
                        self.loadA4_one(t, p, h, ks + 6, ss)
                        st += list(t)
                    steps.append(st)
        return steps

    def epi1(self, s, p, h):
        Q = [None, ACC, ACC + 4]
        K = [ACC + 8, ACC + 12, ACC + 16]
        Vv = [ACC + 20, ACC + 24, ACC + 28]
        SP = [None, 52, 60]
        SC = [None, 56, 64]
        st = [68, 70, 72]
        csq, csk, csv, cq = 76, 80, 84, 86
        hoff = h * 1024
        for sub in range(3):
            s("ds_read_b64 %s, v%d offset:%d" % (V(st[sub], 2), vStI, hoff + sub * 128))
        s("ds_read_b128 %s, v%d offset:0" % (V(csq, 4), vCs))
        s("ds_read_b128 %s, v%d offset:64" % (V(csk, 4), vCs))
        s("ds_read_b32 v%d, v%d" % (csv, vCsV))
        NM = [52, 60, 52]
        RS = [56, 64, 56]
        def rdv(sub):
            s("ds_read_b128 %s, v%d offset:%d" % (V(NM[sub], 4), vStV, hoff + sub * 64))
            s("ds_read_b128 %s, v%d offset:%d" % (V(RS[sub], 4), vStV, hoff + 256 + sub * 64))
        rdv(0)
        rdv(1)
        bc0 = "op_sel_hi:[0,1,1]"
        for sub in (1, 2):
            for hh in (0, 2):
                s("v_pk_fma_f32 %s, %s, %s, %s %s" % (V(Q[sub] + hh, 2), V(st[sub], 2), V(csq + hh, 2), V(Q[sub] + hh, 2), bc0))
            s("v_mul_f32 v%d, s%d, v%d" % (cq, sK + 2, st[sub] + 1))
            for hh in (0, 2):
                s("v_pk_mul_f32 %s, %s, %s op_sel_hi:[1,0]" % (V(Q[sub] + hh, 2), V(Q[sub] + hh, 2), V(cq, 2)))
            s("v_cvt_pk_bf16_f32 v%d, v%d, v%d" % (Q[sub], Q[sub], Q[sub] + 1))
            s("v_cvt_pk_bf16_f32 v%d, v%d, v%d" % (Q[sub] + 1, Q[sub] + 2, Q[sub] + 3))
        for sub in range(3):
            for hh in (0, 2):
                s("v_pk_fma_f32 %s, %s, %s, %s %s" % (V(K[sub] + hh, 2), V(st[sub], 2), V(csk + hh, 2), V(K[sub] + hh, 2), bc0))
            for hh in (0, 2):
                s("v_pk_mul_f32 %s, %s, %s op_sel:[0,1] op_sel_hi:[1,1]" % (V(K[sub] + hh, 2), V(K[sub] + hh, 2), V(st[sub], 2)))
            s("v_cvt_pk_bf16_f32 v%d, v%d, v%d" % (K[sub], K[sub], K[sub] + 1))
            s("v_cvt_pk_bf16_f32 v%d, v%d, v%d" % (K[sub] + 1, K[sub] + 2, K[sub] + 3))
        for sub in range(3):
            for hh in (0, 2):
                s("v_pk_fma_f32 %s, %s, %s, %s op_sel_hi:[1,0,1]" % (V(Vv[sub] + hh, 2), V(NM[sub] + hh, 2), V(csv, 2), V(Vv[sub] + hh, 2)))
            for hh in (0, 2):
                s("v_pk_mul_f32 %s, %s, %s" % (V(Vv[sub] + hh, 2), V(Vv[sub] + hh, 2), V(RS[sub] + hh, 2)))
            if sub == 0:
                rdv(2)
            s("v_cvt_pk_bf16_f32 v%d, v%d, v%d" % (Vv[sub], Vv[sub], Vv[sub] + 1))
            s("v_cvt_pk_bf16_f32 v%d, v%d, v%d" % (Vv[sub] + 1, Vv[sub] + 2, Vv[sub] + 3))
        bp1, bp, bc = 68, 72, 76
        s("v_add_u32 v%d, %d, v%d" % (TMP + 2, BIAS, vL16))
        s("ds_read_b128 %s, v%d" % (V(bp1, 4), vB1))
        s("ds_read_b128 %s, v%d offset:1024" % (V(bp, 4), TMP + 2))
        s("ds_read_b128 %s, v%d offset:0" % (V(bc, 4), TMP + 2))
        mm = "v_mfma_f32_16x16x16_bf16"
        s("%s %s, %s, %s, %s" % (mm, V(SP[1], 4), V(K[0], 2), V(Q[1], 2), V(bp1, 4)))
        s("%s %s, %s, %s, %s" % (mm, V(SC[1], 4), V(K[1], 2), V(Q[1], 2), V(bc, 4)))
        s("%s %s, %s, %s, %s" % (mm, V(SP[2], 4), V(K[1], 2), V(Q[2], 2), V(bp, 4)))
        s("%s %s, %s, %s, %s" % (mm, V(SC[2], 4), V(K[2], 2), V(Q[2], 2), V(bc, 4)))
        m = {1: 80, 2: 84}
        l = {1: 82, 2: 86}
        for sub in (1, 2):
            a, b = SP[sub], SC[sub]
            s("v_max3_f32 v%d, v%d, v%d, v%d" % (m[sub], a, a + 1, a + 2))
            s("v_max3_f32 v%d, v%d, v%d, v%d" % (m[sub] + 1, a + 3, b, b + 1))
            s("v_max3_f32 v%d, v%d, v%d, v%d" % (m[sub], m[sub], b + 2, b + 3))
            s("v_max_f32 v%d, v%d, v%d" % (m[sub], m[sub], m[sub] + 1))
        for sw in ("v_permlane16_swap_b32", "v_permlane32_swap_b32"):
            for sub in (1, 2):
                s("v_mov_b32 v%d, v%d" % (m[sub] + 1, m[sub]))
            for sub in (1, 2):
                s("%s v%d, v%d" % (sw, m[sub], m[sub] + 1))
            for sub in (1, 2):
                s("v_max_f32 v%d, v%d, v%d" % (m[sub], m[sub], m[sub] + 1))
        for sub in (1, 2):
            for r in (SP[sub], SP[sub] + 2, SC[sub], SC[sub] + 2):
                s("v_pk_add_f32 %s, %s, %s op_sel_hi:[1,0] neg_lo:[0,1] neg_hi:[0,1]" % (V(r, 2), V(r, 2), V(m[sub], 2)))
        for sub in (1, 2):
            for r in range(4):
                s("v_exp_f32 v%d, v%d" % (SP[sub] + r, SP[sub] + r))
                s("v_exp_f32 v%d, v%d" % (SC[sub] + r, SC[sub] + r))
        for sub in (1, 2):
            a, b = SP[sub], SC[sub]
            s("v_pk_add_f32 %s, %s, %s" % (V(l[sub], 2), V(a, 2), V(a + 2, 2)))
            s("v_pk_add_f32 %s, %s, %s" % (V(m[sub], 2), V(b, 2), V(b + 2, 2)))
            s("v_pk_add_f32 %s, %s, %s" % (V(l[sub], 2), V(l[sub], 2), V(m[sub], 2)))
            s("v_add_f32 v%d, v%d, v%d" % (l[sub], l[sub], l[sub] + 1))
        for sub in (1, 2):
            for r in (SP[sub], SC[sub]):
                s("v_cvt_pk_bf16_f32 v%d, v%d, v%d" % (r, r, r + 1))
                s("v_cvt_pk_bf16_f32 v%d, v%d, v%d" % (r + 1, r + 2, r + 3))
        for sub in (1, 2):
            s("%s %s, %s, %s, 0" % (mm, V(Q[sub], 4), V(Vv[sub - 1], 2), V(SP[sub], 2)))
        for sub in (1, 2):
            s("%s %s, %s, %s, %s" % (mm, V(Q[sub], 4), V(Vv[sub], 2), V(SC[sub], 2), V(Q[sub], 4)))
        for sw in ("v_permlane16_swap_b32", "v_permlane32_swap_b32"):
            for sub in (1, 2):
                s("v_mov_b32 v%d, v%d" % (l[sub] + 1, l[sub]))
            for sub in (1, 2):
                s("%s v%d, v%d" % (sw, l[sub], l[sub] + 1))
            for sub in (1, 2):
                s("v_add_f32 v%d, v%d, v%d" % (l[sub], l[sub], l[sub] + 1))
        for sub in (1, 2):
            s("v_rcp_f32 v%d, v%d" % (l[sub], l[sub]))
        for sub in (1, 2):
            for hh in (0, 2):
                s("v_pk_mul_f32 %s, %s, %s op_sel_hi:[1,0]" % (V(Q[sub] + hh, 2), V(Q[sub] + hh, 2), V(l[sub], 2)))
        o = ACC
        s("v_cvt_pk_bf16_f32 v%d, v%d, v%d" % (o, o, o + 1))
        s("v_cvt_pk_bf16_f32 v%d, v%d, v%d" % (o + 1, o + 2, o + 3))
        s("v_cvt_pk_bf16_f32 v%d, v%d, v%d" % (o + 2, o + 4, o + 5))
        s("v_cvt_pk_bf16_f32 v%d, v%d, v%d" % (o + 3, o + 6, o + 7))
        s("v_permlane16_swap_b32 v%d, v%d" % (o, o + 2))
        s("v_permlane16_swap_b32 v%d, v%d" % (o + 1, o + 3))
        s("s_add_u32 s%d, s%d, %d" % (sT, sOst, OB[p] + h * MB))
        return s.vm("buffer_store_dwordx4 %s, v%d, s[8:11], s%d offen sc1" % (V(o, 4), vOst, sT))

    def epi3(self, s, p, h):
        csG, csU, csM = 68, 72, 76
        stp = [80, 82]
        c1 = 84
        hoff = h * 1024
        s("ds_read_b128 %s, v%d offset:768" % (V(csG, 4), vCs))
        s("ds_read_b128 %s, v%d offset:832" % (V(csU, 4), vCs))
        s("ds_read_b128 %s, v%d offset:896" % (V(csM, 4), vCs))
        s("ds_read_b64 %s, v%d offset:%d" % (V(stp[0], 2), vStI, hoff))
        bq = TMP
        for sub in range(4):
            G, U, M = ACC + 12 * sub, ACC + 12 * sub + 4, ACC + 12 * sub + 8
            st = stp[sub & 1]
            if sub < 3:
                s("ds_read_b64 %s, v%d offset:%d" % (V(stp[(sub + 1) & 1], 2), vStI, hoff + (sub + 1) * 128))
            for (r, cs) in ((M, csM), (G, csG), (U, csU)):
                for hh in (0, 2):
                    s("v_pk_fma_f32 %s, %s, %s, %s op_sel_hi:[0,1,1]" % (V(r + hh, 2), V(st, 2), V(cs + hh, 2), V(r + hh, 2)))
            s("v_mul_f32 v%d, s%d, v%d" % (c1, sK + 3, st + 1))
            s("v_permlane16_swap_b32 v%d, v%d" % (M, M + 2))
            s("v_permlane16_swap_b32 v%d, v%d" % (M + 1, M + 3))
            gates = (G, G + 2, M)
            ups = (U, U + 2, M + 2)
            for r in gates:
                s("v_pk_mul_f32 %s, %s, %s op_sel_hi:[1,0]" % (V(r, 2), V(r, 2), V(c1, 2)))
            for r in gates:
                s("v_exp_f32 v%d, v%d" % (r, r))
                s("v_exp_f32 v%d, v%d" % (r + 1, r + 1))
            for r in ups:
                s("v_pk_mul_f32 %s, %s, %s op_sel:[0,1] op_sel_hi:[1,1]" % (V(r, 2), V(r, 2), V(st, 2)))
            for r in gates:
                s("v_pk_add_f32 %s, %s, s[%d:%d]" % (V(r, 2), V(r, 2), sOnes, sOnes + 1))
            for r in gates:
                s("v_rcp_f32 v%d, v%d" % (r, r))
                s("v_rcp_f32 v%d, v%d" % (r + 1, r + 1))
            for g, u in zip(gates, ups):
                s("v_pk_mul_f32 %s, %s, %s" % (V(u, 2), V(u, 2), V(g, 2)))
            dst = ACC + 12 * (sub & ~1) + 2 * (sub & 1)
            s("v_cvt_pk_bf16_f32 v%d, v%d, v%d" % (dst, U, U + 1))
            s("v_cvt_pk_bf16_f32 v%d, v%d, v%d" % (dst + 1, U + 2, U + 3))
            s("v_cvt_pk_bf16_f32 v%d, v%d, v%d" % (bq + sub, M + 2, M + 3))
        s("s_add_u32 s%d, s%d, %d" % (sT, sHst, HB[p] + h * 3 * MB))
        for pr in range(2):
            d = ACC + 24 * pr
            s("v_permlane16_swap_b32 v%d, v%d" % (d, d + 2))
            s("v_permlane16_swap_b32 v%d, v%d" % (d + 1, d + 3))
            if pr == 1:
                s("s_add_u32 s%d, s%d, %d" % (sT2, sT, 2 * 48 * KB))
            s.vm("buffer_store_dwordx4 %s, v%d, s[8:11], s%d offen sc1" % (V(d, 4), vH1, sT if pr == 0 else sT2))
        s("v_permlane16_swap_b32 v%d, v%d" % (bq, bq + 1))
        s("v_permlane16_swap_b32 v%d, v%d" % (bq + 2, bq + 3))
        s("v_permlane32_swap_b32 v%d, v%d" % (bq, bq + 2))
        s("v_permlane32_swap_b32 v%d, v%d" % (bq + 1, bq + 3))
        return s.vm("buffer_store_dwordx4 %s, v%d, s[8:11], s%d offen sc1" % (V(bq, 4), vH2, sT))

    def epi24(self, s, phase, p, h):
        so = SCR[h] - 65536
        a = ACC
        for x in (1, 2, 3):
            s("v_xor_b32 v%d, %d, v%d" % (TMP + x - 1, x << 13, vRed))
        for x in (1, 2, 3):
            for jl in range(2):
                s("ds_write_b128 v%d, %s offset:%d" % (TMP + x - 1, V(a + 8 * x + 4 * jl, 4), so + x * 2048 + jl * 1024))
        s.wait_ds()
        s("s_barrier")
        for x in (1, 2, 3):
            for jl in range(2):
                s("ds_read_b128 %s, v%d offset:%d" % (V(a + 8 * x + 4 * jl, 4), vRed, so + x * 2048 + jl * 1024))
        r = 52
        for i in range(4):
            s("v_lshlrev_b32 v%d, 16, v%d" % (r + 2 * i, RES + i))
            s("v_and_b32 v%d, 0xffff0000, v%d" % (r + 2 * i + 1, RES + i))
        for i in range(4):
            s("v_pk_add_f32 %s, %s, %s" % (V(a + 2 * i, 2), V(a + 2 * i, 2), V(r + 2 * i, 2)))
        for x in (1, 2, 3):
            for i in range(4):
                s("v_pk_add_f32 %s, %s, %s" % (V(a + 2 * i, 2), V(a + 2 * i, 2), V(a + 8 * x + 2 * i, 2)))
        o = 60
        for i in range(4):
            s("v_cvt_pk_bf16_f32 v%d, v%d, v%d" % (o + i, a + 2 * i, a + 2 * i + 1))
        final = (phase == 4 and p == 1)
        if final:
            s("s_add_u32 s%d, s%d, %d" % (sT, sOutO, h * 1024))
            return s.vm("buffer_store_dwordx4 %s, v%d, s[12:15], s%d offen" % (V(o, 4), vOut, sT))
        xi = 2 * p + (1 if phase == 2 else 2)
        s("s_add_u32 s%d, s%d, %d" % (sT, sRes, XB[xi] + h * MB))
        s.vm("buffer_store_dwordx4 %s, v%d, s[8:11], s%d offen sc1" % (V(o, 4), vL16, sT))
        u = 52
        s("v_pk_add_f32 %s, %s, %s" % (V(u, 2), V(a, 2), V(a + 2, 2)))
        s("v_pk_add_f32 %s, %s, %s" % (V(u + 2, 2), V(a + 4, 2), V(a + 6, 2)))
        s("v_pk_mul_f32 %s, %s, %s" % (V(u + 4, 2), V(a, 2), V(a, 2)))
        s("v_pk_add_f32 %s, %s, %s" % (V(u, 2), V(u, 2), V(u + 2, 2)))
        for i in (1, 2, 3):
            s("v_pk_fma_f32 %s, %s, %s, %s" % (V(u + 4, 2), V(a + 2 * i, 2), V(a + 2 * i, 2), V(u + 4, 2)))
        s("v_add_f32 v%d, v%d, v%d" % (u, u, u + 1))
        s("v_add_f32 v%d, v%d, v%d" % (u + 1, u + 4, u + 5))
        s("v_permlane16_swap_b32 v%d, v%d" % (u, u + 1))
        s("v_add_f32 v%d, v%d, v%d" % (u, u, u + 1))
        s("v_mov_b32 v%d, v%d" % (u + 1, u))
        s("v_permlane32_swap_b32 v%d, v%d" % (u, u + 1))
        s("v_add_f32 v%d, v%d, v%d" % (u, u, u + 1))
        s("s_add_u32 s%d, s%d, %d" % (sT, sStO, ST[xi] + h * 131072))
        s("v_lshrrev_b32 v%d, 2, v%d" % (u + 2, vL16))
        s("s_mov_b32 exec_hi, 0")
        tok = s.vm("buffer_store_dword v%d, v%d, s[8:11], s%d offen sc1" % (u, u + 2, sT))
        s("s_mov_b32 exec_hi, -1")
        return tok

    def prologue(self, s):
        s("""
        s_load_dwordx2 s[4:5], s[0:1], 72
        s_load_dwordx2 s[6:7], s[0:1], 56
        s_cmp_ge_u32 s2, 256
        s_cbranch_scc1 M_end
        v_lshrrev_b32 v20, 6, v0
        v_and_b32 v%d, 63, v0
        v_readfirstlane_b32 s%d, v20
        v_lshlrev_b32 v%d, 4, v%d
        s_and_b32 s32, s2, 7
        s_lshr_b32 s33, s2, 3
        s_lshr_b32 s34, s32, 1
        s_and_b32 s35, s32, 1
        """ % (vLane, sW, vL16, vLane))
        s("""
        s_lshl_b32 s{rb}, s34, 3
        s_lshr_b32 s36, s33, 2
        s_add_u32 s{rb}, s{rb}, s36
        s_lshl_b32 s{cg}, s35, 2
        s_and_b32 s36, s33, 3
        s_add_u32 s{cg}, s{cg}, s36
        s_lshl_b32 s{rb3}, s34, 2
        s_lshr_b32 s36, s33, 3
        s_add_u32 s{rb3}, s{rb3}, s36
        s_lshl_b32 s{cg3}, s35, 3
        s_and_b32 s36, s33, 7
        s_add_u32 s{cg3}, s{cg3}, s36
        s_waitcnt lgkmcnt(0)
        s_mov_b32 s8, s4
        s_and_b32 s9, s5, 0xffff
        s_mov_b32 s10, 0x10000000
        s_mov_b32 s11, 0x20000
        s_mov_b32 s12, s6
        s_and_b32 s13, s7, 0xffff
        s_mov_b32 s14, 0x200000
        s_mov_b32 s15, 0x20000
        """.format(rb=sRB, cg=sCG, rb3=sRB3, cg3=sCG3))
        s("""
        s_lshl_b32 s36, s{cg}, 2
        s_add_u32 s36, s36, s{w}
        s_mul_i32 s{bq}, s36, {k48}
        s_add_u32 s{bq}, s{bq}, {PQ}
        s_lshl_b32 s{bw}, s36, 14
        s_add_u32 s{bw}, s{bw}, {PW}
        s_mul_i32 s{bd}, s36, {k44}
        s_add_u32 s{bd}, s{bd}, {PD}
        s_lshl_b32 s37, s{cg3}, 2
        s_add_u32 s37, s37, s{w}
        s_mul_i32 s{bg}, s37, {k48}
        s_add_u32 s{bg}, s{bg}, {PG}
        s_lshl_b32 s{kw}, s{w}, 12
        s_lshl_b32 s{a1m}, s{rb}, 15
        s_lshl_b32 s{a3}, s{rb3}, 16
        s_sub_u32 s{a1h}, s{a1m}, 16384
        s_max_i32 s{a1h}, s{a1h}, 0
        """.format(cg=sCG, w=sW, bq=sBQ, bw=sBW, bd=sBD, bg=sBG, cg3=sCG3, kw=sKw, a1m=sA1m, a3=sA3, a1h=sA1h, rb=sRB, rb3=sRB3,
                   k48=48 * KB, k44=44 * KB, PQ=PQ, PW=PW, PD=PD, PG=PG))
        s("""
        s_lshl_b32 s38, s{rb}, 1
        s_add_u32 s38, s38, s{w}
        s_sub_u32 s38, s38, 1
        s_max_i32 s38, s38, 0
        s_lshl_b32 s{st1}, s38, 11
        s_lshl_b32 s38, s{rb3}, 2
        s_add_u32 s38, s38, s{w}
        s_lshl_b32 s{st3}, s38, 11
        """.format(rb=sRB, w=sW, st1=sSt1, rb3=sRB3, st3=sSt3))
        s("""
        s_lshr_b32 s38, s{w}, 1
        s_and_b32 s39, s{w}, 1
        s_lshl_b32 s40, s{cg}, 1
        s_add_u32 s59, s40, s38
        s_lshl_b32 s59, s59, 10
        s_lshl_b32 s60, s39, 9
        s_add_u32 s59, s59, s60
        s_add_u32 s{ost}, s59, s{a1m}
        """.format(w=sW, cg=sCG, ost=sOst, a1m=sA1m))
        s("""
        s_lshl_b32 s59, s38, 14
        s_add_u32 s59, s59, s{a1m}
        s_add_u32 s{a2}, s59, s{kw}
        s_add_u32 s60, s40, s39
        s_lshl_b32 s61, s60, 10
        s_add_u32 s{res}, s59, s61
        s_lshr_b32 s{sto}, s59, 3
        s_lshl_b32 s61, s60, 7
        s_add_u32 s{sto}, s{sto}, s61
        """.format(a1m=sA1m, a2=sA2, kw=sKw, res=sRes, sto=sStO))
        s("""
        s_lshl_b32 s59, s{rb}, 1
        s_add_u32 s59, s59, s38
        s_lshl_b32 s{out}, s59, 15
        s_lshl_b32 s61, s60, 6
        s_add_u32 s{out}, s{out}, s61
        """.format(rb=sRB, out=sOutO))
        s("""
        s_mul_i32 s{hst}, s{rb3}, {k192}
        s_mul_i32 s61, s{cg3}, 12
        s_mul_i32 s62, s{w}, 3
        s_add_u32 s61, s61, s62
        s_lshl_b32 s61, s61, 8
        s_add_u32 s{hst}, s{hst}, s61
        s_mul_i32 s62, s{w}, {k11}
        s_mul_i32 s{a4}, s59, {k48}
        s_add_u32 s{a4}, s{a4}, s62
        s_xor_b32 s59, s59, 1
        s_mul_i32 s{a4b}, s59, {k48}
        s_add_u32 s{a4b}, s{a4b}, s62
        """.format(hst=sHst, rb3=sRB3, cg3=sCG3, w=sW, a4=sA4, a4b=sA4 + 1, k192=192 * KB, k11=11 * KB, k48=48 * KB))
        return

    def prologue2(self, s):
        s("""
        s_lshl_b32 s59, s{cg}, 2
        s_add_u32 s59, s59, s{w}
        s_lshl_b32 s59, s59, 2
        s_lshl_b32 s60, s{rb}, 8
        s_add_u32 s{f1}, s60, s59
        s_lshl_b32 s59, s{cg3}, 2
        s_add_u32 s59, s59, s{w}
        s_lshl_b32 s59, s59, 2
        s_lshl_b32 s61, s{rb3}, 8
        s_add_u32 s{f3}, s61, s59
        s_mov_b32 s{p2}, s60
        s_lshl_b32 s{p3}, s{rb3}, 9
        s_lshr_b32 s61, s{rb}, 1
        s_lshl_b32 s{p4}, s61, 8
        s_cmp_eq_u32 s{rb}, 0
        s_cselect_b32 s61, 0, 256
        s_sub_u32 s{p1}, s60, s61
        v_lshrrev_b32 v20, 5, v{lane}
        v_mul_lo_u32 v20, v20, s61
        v_and_b32 v21, 31, v{lane}
        v_lshl_add_u32 v{ph}, v21, 2, v20
        """.format(lane=vLane, ph=vPollH, cg=sCG, w=sW, rb=sRB, f1=sF1, cg3=sCG3, rb3=sRB3, f3=sF3, p2=sP2, p3=sP3, p4=sP4, p1=sP1a))
        s("""
        s_lshl_b32 s59, s{w}, 3
        s_bfm_b64 s[{m2}:{m2h}], 8, s59
        s_mul_i32 s59, s{w}, 11
        s_mul_hi_u32 s60, s59, {m3}
        s_add_u32 s59, s59, 10
        s_mul_hi_u32 s61, s59, {m3}
        s_sub_u32 s61, s61, s60
        s_add_u32 s61, s61, 1
        s_lshl_b32 s61, s61, 2
        s_lshl_b32 s60, s60, 2
        s_bfm_b64 s[{m4}:{m4h}], s61, s60
        s_mov_b32 s{odd}, 0xffff0000
        s_mov_b32 s{oddh}, 0xffff0000
        s_mov_b32 s{one}, 1.0
        s_mov_b32 s{oneh}, 1.0
        s_mov_b32 s{k0}, {c0}
        s_mov_b32 s{k1}, {c1}
        s_mov_b32 s{k2}, {c2}
        s_mov_b32 s{k3}, {c3}
        """.format(w=sW, m2=sM2, m2h=sM2 + 1, m4=sM4, m4h=sM4 + 1, m3=(2 ** 32 + 2) // 3, odd=sOdd, oddh=sOdd + 1, one=sOnes, oneh=sOnes + 1,
                   k0=sK, k1=sK + 1, k2=sK + 2, k3=sK + 3,
                   c0="0x%08x" % fbits(1.0 / 512), c1="0x%08x" % fbits(1e-5), c2="0x%08x" % fbits(0.25 * LOG2E), c3="0x%08x" % fbits(-LOG2E)))
        s("""
        v_and_b32 v20, 15, v{lane}
        v_lshrrev_b32 v21, 4, v{lane}
        v_add_u32 v{lo}, 65536, v{l16}
        v_lshlrev_b32 v22, 4, v20
        v_and_b32 v23, 1, v21
        v_lshrrev_b32 v24, 1, v21
        v_lshl_add_u32 v25, v24, 8, v22
        v_lshl_add_u32 v{ost}, v23, 14, v25
        v_mul_u32_u24 v26, {k48}, v23
        v_add_u32 v{h1}, v26, v25
        v_mul_u32_u24 v26, {k48}, v21
        v_add_u32 v26, v26, v22
        v_add_u32 v{h2}, 512, v26
        s_lshl_b32 s59, s{w}, 13
        s_add_u32 s59, s59, 65536
        v_add_u32 v{red}, s59, v{l16}
        v_lshrrev_b32 v26, 5, v{lane}
        v_and_b32 v27, 31, v{lane}
        v_lshlrev_b32 v27, 2, v27
        v_lshl_add_u32 v{pa}, v26, 8, v27
        v_lshlrev_b32 v{pb}, 2, v{lane}
        v_lshlrev_b32 v26, 11, v20
        v_lshl_add_u32 v{out}, v21, 4, v26
        v_mov_b32 v{one}, 1
        """.format(lane=vLane, lo=vLO, l16=vL16, ost=vOst, h1=vH1, h2=vH2, red=vRed, pa=vPollA, pb=vPollB, out=vOut, one=vOne, w=sW, k48=48 * KB))
        s("""
        s_lshl_b32 s59, s{w}, 11
        s_add_u32 s59, s59, {stp}
        v_lshlrev_b32 v26, 10, v24
        v_lshl_add_u32 v26, v23, 6, v26
        v_lshl_add_u32 v26, v20, 2, v26
        v_add_u32 v{sr}, s59, v26
        """.format(w=sW, stp=STP, sr=vStatR))
        s("""
        s_lshl_b32 s59, s{w}, 7
        s_lshl_b32 s60, s{w}, 6
        v_lshlrev_b32 v26, 3, v20
        v_lshl_add_u32 v26, v23, 2, v26
        v_add_u32 v26, s59, v26
        v_lshlrev_b32 v27, 2, v20
        v_lshl_add_u32 v27, v23, 8, v27
        v_add_u32 v27, s60, v27
        v_add_u32 v27, 512, v27
        v_cmp_gt_u32 vcc, 2, v21
        v_cndmask_b32 v26, v27, v26, vcc
        v_add_u32 v{sw}, {stf}, v26
        v_lshlrev_b32 v26, 3, v20
        v_add_u32 v{si}, {stf}, v26
        v_lshlrev_b32 v26, 4, v21
        v_add_u32 v{sv}, {stfn}, v26
        s_mul_i32 s59, s{w}, 192
        s_add_u32 s59, s59, {csl}
        v_add_u32 v{cs}, s59, v26
        v_lshlrev_b32 v27, 2, v20
        v_add_u32 v27, s59, v27
        v_add_u32 v{csv}, 128, v27
        """.format(w=sW, sw=vStatW, stf=STF, si=vStI, sv=vStV, stfn=STF + 512, csl=CSL, cs=vCs, csv=vCsV))
        s("""
        v_lshlrev_b32 v26, 2, v21
        v_sub_u32 v26, v20, v26
        v_mov_b32 v27, 0xf149f2ca
        v_mov_b32 v28, 0
        """)
        for r in range(4):
            s("v_subrev_u32 v29, %d, v26" % r)
            s("v_cmp_gt_u32 vcc, 8, v29")
            s("v_cndmask_b32 v%d, v27, v28, vcc" % (32 + r))
            s("v_cmp_gt_i32 vcc, -8, v29")
            s("v_cndmask_b32 v%d, v27, v28, vcc" % (36 + r))
            s("v_mov_b32 v%d, v27" % (40 + r))
        s("v_add_u32 v30, %d, v%d" % (BIAS, vL16))
        s("ds_write_b128 v30, v[32:35]")
        s("ds_write_b128 v30, v[36:39] offset:1024")
        s("ds_write_b128 v30, v[40:43] offset:2048")
        s("""
        s_cmp_eq_u32 s{rb}, 0
        s_cselect_b32 s59, 2, 1
        s_lshl_b32 s59, s59, 10
        v_add_u32 v{b1}, s59, v30
        """.format(rb=sRB, b1=vB1))

    def colsums(self, s):
        for k in range(6):
            r = 44 + 4 * k
            s("v_pk_add_f32 %s, %s, %s" % (V(r, 2), V(r, 2), V(r + 2, 2)))
            s("v_add_f32 v%d, v%d, v%d" % (r, r, r + 1))
            s("v_add_f32_dpp v%d, v%d, v%d quad_perm:[1,0,3,2] row_mask:0xf bank_mask:0xf" % (r, r, r))
            s("v_add_f32_dpp v%d, v%d, v%d quad_perm:[2,3,0,1] row_mask:0xf bank_mask:0xf" % (r, r, r))
        s("""
        v_lshrrev_b32 v26, 2, v{lane}
        v_lshlrev_b32 v26, 2, v26
        s_mul_i32 s59, s{w}, 192
        s_add_u32 s59, s59, {csl}
        v_add_u32 v26, s59, v26
        """.format(lane=vLane, w=sW, csl=CSL))
        for k in range(6):
            s("ds_write_b32 v26, v%d offset:%d" % (44 + 4 * k, (k // 3) * 768 + (k % 3) * 64))

    def tick(self, s, bulk=True):
        if self.urgent:
            s.extend(self.urgent.popleft())
            return True
        if bulk and self.bulk:
            s.extend(self.bulk.popleft())
            return True
        return False

    def flush_urgent(self, s):
        while self.urgent:
            s.extend(self.urgent.popleft())

    def burst(self, s, n):
        for _ in range(n):
            self.tick(s)

    def run_mf(self, s, steps, at=None, fill=None, rate=4, ctok=None, own=None, fill_from=2, per=1):
        at = at or {}
        fill = deque(fill or [])
        last = -rate
        def put(x):
            if isinstance(x, tuple):
                s.wait_vm(ctok[x[1]])
                s("s_barrier")
            elif isinstance(x, Ins):
                s.append(x)
            else:
                s(x)
        for i, st in enumerate(steps):
            for e in at.get(i, []):
                if isinstance(e, Stream):
                    s.extend(e)
                else:
                    e()
            for x in st:
                put(x)
            if own and i in own:
                last = i
            elif i - last >= rate:
                if self.tick(s):
                    last = i
            if i >= fill_from:
                for _ in range(per):
                    if fill:
                        s.append(fill.popleft())
        for e in at.get(len(steps), []):
            if isinstance(e, Stream):
                s.extend(e)
            else:
                e()
        while fill:
            s.append(fill.popleft())

    def weave(self, s, epi, every=13):
        k = 0
        for ins in epi:
            s.append(ins)
            if ins.cls in ("valu", "mfma"):
                k += 1
                if k >= every:
                    if self.tick(s):
                        k = 0

    def seg13(self, s, phase, p, h, A, at):
        groups, stok, ctok = A
        assert not any(g is x for g in groups for x in self.urgent), "tile loads not issued"
        pre, steps = self.mf13(phase, h)
        st = Stream()
        self.stats_reduce(st, h, stok)
        for x in pre:
            if isinstance(x, tuple):
                s.wait_vm(ctok[x[1]])
                s("s_barrier")
            else:
                s(x)
        self.run_mf(s, steps, at=at, fill=list(st), ctok=ctok)
        s.wait_ds()
        s("s_barrier")

    def gen(self):
        s = Stream()
        self.urgent, self.bulk = deque(), deque()
        o = self.opts
        self.prologue(s)
        if self.prof:
            s("s_memrealtime s[100:101]")
            s("s_waitcnt lgkmcnt(0)")
            s("s_mov_b32 s94, s100")
        self.ts(s, "start")
        s("""
        s_lshl_b32 s{kw1}, s{w}, 10
        s_add_u32 s{a1hw}, s{a1h}, s{kw1}
        s_add_u32 s{a1mw}, s{a1m}, s{kw1}
        s_add_u32 s{a3w}, s{a3}, s{kw1}
        """.format(kw1=sKw1, w=sW, a1hw=sA1hw, a1h=sA1h, a1mw=sA1mw, a1m=sA1m, a3w=sA3w, a3=sA3))
        A = {}
        A[(1, 0, 0)] = self.groupsA_lds(1, 0, 0)
        for g in A[(1, 0, 0)][0]:
            s.extend(g)
        s("s_lshl_b32 s36, s%d, 2" % sCG)
        s("s_add_u32 s36, s36, s%d" % sW)
        s("s_mul_i32 s37, s36, 3072")
        s("s_add_u32 s37, s37, %d" % CSQ)
        for k in range(3):
            s("buffer_load_dwordx4 %s, v%d, s[8:11], s37 offen offset:%d" % (V(44 + 4 * k, 4), vL16, k * 1024))
        s("s_lshl_b32 s36, s%d, 2" % sCG3)
        s("s_add_u32 s36, s36, s%d" % sW)
        s("s_mul_i32 s37, s36, 3072")
        s("s_add_u32 s37, s37, %d" % CSG)
        for k in range(3):
            s("buffer_load_dwordx4 %s, v%d, s[8:11], s37 offen offset:%d" % (V(56 + 4 * k, 4), vL16, k * 1024))
        for g in self.groupsB(Bx, sBQ, 0, 24):
            s.extend(g)
        self.prologue2(s)
        A[(1, 0, 1)] = self.groupsA_lds(1, 0, 1)
        for g in self.groupsB(Bx, sBQ, 24, 30):
            s.extend(g)
        self.colsums(s)
        self.bulk.extend(self.groupsB(Bx, sBQ, 30, 48))
        self.burst(s, 18)
        self.urgent.extend(A[(1, 0, 1)][0])
        self.ts(s, "prolog")
        tok = {}
        for p in range(2):
            last = (p == 1)
            at = {}
            if p == 0:
                self.bulk.extend(self.groupsB(By, sBW, 0, 16))
                self.bulk.extend(self.groupsB(By, sBD, 16, 44))
            else:
                self.bulk.extend(self.groupsB(By, sBW, 0, 16))
                at[56] = [self.ev_sig(4, p - 1, 1, tok[(4, p - 1, 1)])]
                at[92] = [self.ev_poll_issue(1, p, 1)]
                A[(1, p, 1)] = self.groupsA_lds(1, p, 1)
                at[126] = [self.ev_poll_check(1, p, 1), (lambda a=A[(1, p, 1)]: self.urgent.extend(a[0]))]
            self.seg13(s, 1, p, 0, A[(1, p, 0)], at)
            self.ts(s, "mf1E.%d" % p)
            e = Stream(); tok[(1, p, 0)] = self.epi1(e, p, 0)
            self.weave(s, e, every=10)
            self.flush_urgent(s)
            self.ts(s, "s1E.%d" % p)
            gA2 = self.groupsA2(p, 0)
            at = {56: [self.ev_sig(1, p, 0, tok[(1, p, 0)])], 92: [self.ev_poll_issue(2, p, 0)],
                  126: [self.ev_poll_check(2, p, 0), (lambda a=gA2: self.urgent.extend(a))]}
            self.seg13(s, 1, p, 1, A[(1, p, 1)], at)
            self.ts(s, "mf1O.%d" % p)
            while self.bulk:
                self.tick(s) if not self.urgent else self.bulk and s.extend(self.bulk.popleft())
            self.bulk.extend(self.groupsB(Bx, sBG, 0, 48))
            e = Stream(); tok[(1, p, 1)] = self.epi1(e, p, 1)
            self.weave(s, e, every=10)
            self.flush_urgent(s)
            self.ts(s, "s1O.%d" % p)
            self.run_mf(s, self.mf24(2, p, 0))
            e = Stream(); tok[(2, p, 0)] = self.epi24(e, 2, p, 0)
            self.weave(s, e, every=10)
            s.extend(self.ev_sig(1, p, 1, tok[(1, p, 1)]))
            self.burst(s, 9)
            s.extend(self.ev_poll_issue(2, p, 1))
            s.extend(self.ev_poll_check(2, p, 1))
            self.ts(s, "s2E.%d" % p)
            self.urgent.extend(self.groupsA2(p, 1))
            self.flush_urgent(s)
            s.extend(self.ev_sig(2, p, 0, tok[(2, p, 0)]))
            self.burst(s, 8)
            s.extend(self.ev_poll_issue(3, p, 0))
            A[(3, p, 0)] = self.groupsA_lds(3, p, 0)
            self.run_mf(s, self.mf24(2, p, 1), at={32: [self.ev_poll_check(3, p, 0), (lambda a=A[(3, p, 0)]: self.urgent.extend(a[0]))]})
            self.bulk.extend(self.groupsB(By, sBD, 0, 16))
            e = Stream(); tok[(2, p, 1)] = self.epi24(e, 2, p, 1)
            self.weave(s, e, every=5)
            self.flush_urgent(s)
            self.ts(s, "s2O.%d" % p)
            A[(3, p, 1)] = self.groupsA_lds(3, p, 1)
            at = {50: [self.ev_sig(2, p, 1, tok[(2, p, 1)])], 86: [self.ev_poll_issue(3, p, 1)],
                  122: [self.ev_poll_check(3, p, 1), (lambda a=A[(3, p, 1)]: self.urgent.extend(a[0]))]}
            self.seg13(s, 3, p, 0, A[(3, p, 0)], at)
            self.ts(s, "mf3E.%d" % p)
            e = Stream(); tok[(3, p, 0)] = self.epi3(e, p, 0)
            self.weave(s, e, every=12)
            self.flush_urgent(s)
            self.ts(s, "s3E.%d" % p)
            gA4 = self.groupsA4(p, 0)
            at = {56: [self.ev_sig(3, p, 0, tok[(3, p, 0)])], 92: [self.ev_poll_issue(4, p, 0)],
                  128: [self.ev_poll_check(4, p, 0), (lambda a=gA4: self.urgent.extend(a))]}
            self.seg13(s, 3, p, 1, A[(3, p, 1)], at)
            self.ts(s, "mf3O.%d" % p)
            while self.bulk:
                s.extend(self.bulk.popleft())
            if not last:
                self.bulk.extend(self.groupsB(Bx, sBQ, 0, 48))
            e = Stream(); tok[(3, p, 1)] = self.epi3(e, p, 1)
            self.weave(s, e, every=12)
            self.flush_urgent(s)
            self.ts(s, "s3O.%d" % p)
            own = set(8 * ks + 4 * ss + 3 for ks in range(5) for ss in range(2))
            at = {56: [self.ev_sig(3, p, 1, tok[(3, p, 1)])], 88: [self.ev_poll_issue(4, p, 1)]}
            self.run_mf(s, self.mf24(4, p, 0), at=at, own=own)
            e = Stream(); tok[(4, p, 0)] = self.epi24(e, 4, p, 0)
            self.weave(s, e, every=10)
            s.extend(self.ev_poll_check(4, p, 1))
            self.ts(s, "s4E.%d" % p)
            self.urgent.extend(self.groupsA4(p, 1))
            self.flush_urgent(s)
            at = {}
            if not last:
                A[(1, p + 1, 0)] = self.groupsA_lds(1, p + 1, 0)
                at = {16: [self.ev_sig(4, p, 0, tok[(4, p, 0)])], 52: [self.ev_poll_issue(1, p + 1, 0)],
                      88: [self.ev_poll_check(1, p + 1, 0), (lambda a=A[(1, p + 1, 0)]: self.urgent.extend(a[0]))]}
            self.run_mf(s, self.mf24(4, p, 1), at=at, own=own)
            e = Stream(); tok[(4, p, 1)] = self.epi24(e, 4, p, 1)
            self.weave(s, e, every=5)
            self.flush_urgent(s)
            while self.bulk:
                s.extend(self.bulk.popleft())
            self.ts(s, "s4O.%d" % p)
        if self.prof:
            s("s_lshl_b32 s36, s2, 2")
            s("s_add_u32 s36, s36, s%d" % sW)
            s("s_lshl_b32 s36, s36, 8")
            s("s_add_u32 s36, s36, %d" % 0x3000000)
            s("s_memrealtime s[100:101]")
            s("s_waitcnt lgkmcnt(0)")
            s("s_mov_b32 s95, s100")
            s("s_mov_b64 exec, 1")
            for k in (94, 95):
                s("v_mov_b32 v20, s%d" % k)
                s("buffer_store_dword v20, off, s[8:11], s36 offset:%d" % (4 * (62 + k - 94)))
            for k in range(self.nts):
                s("v_mov_b32 v20, s%d" % (sTS + k))
                s("buffer_store_dword v20, off, s[8:11], s36 offset:%d" % (4 * k))
            s("s_mov_b64 exec, -1")
        s("s_waitcnt vmcnt(0)")
        lines = finalize(s, verbose=False)
        lines.append("M_end:")
        lines.append("  s_endpgm")
        lines += self.slow
        return lines


def gen_main(opts):
    m = Main(opts)
    lines = m.gen()
    if m.prof:
        lines.insert(0, "; timestamps: " + " ".join(m.tsnames))
    return lines, LDS_BYTES
```

```python
import re

TRANS = ("v_exp_f32", "v_log_f32", "v_rcp_f32", "v_rsq_f32", "v_sqrt_f32", "v_sin_f32", "v_cos_f32")
REG_RE = re.compile(r"^(-|abs\()?\s*([vas])(\d+)\)?$")
RNG_RE = re.compile(r"^-?([vas])\[(\d+):(\d+)\]$")


def regs_of(op):
    op = op.strip()
    if op in ("vcc", "exec", "m0", "scc"):
        return [op]
    if op in ("vcc_lo", "vcc_hi"):
        return ["vcc"]
    if op in ("exec_lo", "exec_hi"):
        return ["exec"]
    m = REG_RE.match(op)
    if m:
        return [(m.group(2), int(m.group(3)))]
    m = RNG_RE.match(op)
    if m:
        return [(m.group(1), i) for i in range(int(m.group(2)), int(m.group(3)) + 1)]
    return []


class Ins:
    __slots__ = ("text", "mn", "cls", "w", "r", "tok", "meta", "ops")

    def __init__(self, text, tok=None, **meta):
        self.text = text.strip()
        self.tok = tok
        self.meta = meta
        self.parse()

    def parse(self):
        t = self.text
        self.w, self.r, self.ops = [], [], []
        if t.endswith(":"):
            self.mn, self.cls = t, "label"
            return
        if t.startswith("@"):
            self.mn, self.cls = t, "pseudo"
            return
        parts = t.split(None, 1)
        mn = parts[0]
        self.mn = mn
        rest = parts[1] if len(parts) > 1 else ""
        ops, depth, cur = [], 0, ""
        for ch in rest:
            if ch in "[(":
                depth += 1
            if ch in "])":
                depth -= 1
            if ch == "," and depth == 0:
                ops.append(cur.strip())
                cur = ""
            else:
                cur += ch
        if cur.strip():
            ops.append(cur.strip())
        mods = ""
        if ops:
            last = ops[-1].split(None, 1)
            ops[-1] = last[0]
            mods = last[1] if len(last) > 1 else ""
        self.ops = ops
        R = lambda i: regs_of(ops[i]) if i < len(ops) else []
        allr = lambda lo: [x for i in range(lo, len(ops)) for x in regs_of(ops[i])]
        base = mn.replace("_e32", "").replace("_e64", "").replace("_dpp", "")
        if mn.startswith("v_mfma"):
            self.cls = "mfma"
            self.w = R(0)
            self.r = allr(1)
            self.meta["C"] = R(3)
            self.meta["AB"] = R(1) + R(2)
        elif mn.startswith("buffer_load") or mn.startswith("global_load"):
            if re.search(r"\blds\b", mods) or "load_lds" in mn:
                self.cls = "vm_dma"
                self.r = allr(0) + ["m0"]
            else:
                self.cls = "vm_ld"
                self.w = R(0)
                self.r = allr(1)
        elif mn.startswith("buffer_store") or mn.startswith("global_store") or mn.startswith("buffer_atomic") or mn.startswith("global_atomic"):
            self.cls = "vm_st"
            self.r = allr(0)
            if mn.startswith("buffer_store"):
                self.meta["data"] = R(0)
            elif mn.startswith("global_store"):
                self.meta["data"] = R(1)
            self.meta["wide"] = ("x3" in mn or "x4" in mn)
        elif mn.startswith("ds_read") or mn.startswith("ds_bpermute") or mn.startswith("ds_permute") or mn.startswith("ds_swizzle"):
            self.cls = "ds_rd"
            self.w = R(0)
            self.r = allr(1)
        elif mn.startswith("ds_write") or mn.startswith("ds_add"):
            self.cls = "ds_wr"
            self.r = allr(0)
        elif mn == "s_memtime" and self.meta.get("async_"):
            self.cls = "sctl"
        elif mn.startswith("s_load") or mn.startswith("s_memtime") or mn.startswith("s_memrealtime"):
            self.cls = "smem"
            self.w = R(0)
            self.r = allr(1)
        elif mn in ("s_waitcnt",):
            self.cls = "wait"
        elif mn == "s_nop":
            self.cls = "nop"
        elif mn in ("s_barrier", "s_sleep", "s_setprio", "s_endpgm"):
            self.cls = "sctl"
        elif mn.startswith("s_cbranch") or mn == "s_branch":
            self.cls = "branch"
            if "vcc" in mn:
                self.r = ["vcc"]
            elif "scc" in mn:
                self.r = ["scc"]
            elif "exec" in mn:
                self.r = ["exec"]
        elif mn.startswith("s_cmp") or mn.startswith("s_bitcmp"):
            self.cls = "salu"
            self.w = ["scc"]
            self.r = allr(0)
        elif mn.startswith("s_"):
            self.cls = "salu"
            self.w = R(0)
            self.r = allr(1)
            if "saveexec" in mn:
                self.w += ["exec"]
                self.r += ["exec"]
            if mn.startswith("s_cselect") or mn in ("s_addc_u32", "s_subb_u32"):
                self.r += ["scc"]
            if mn == "s_getpc_b64":
                self.r = []
            if not (mn.startswith("s_mov") or mn.startswith("s_getreg") or mn.startswith("s_getpc") or mn.startswith("s_mul") or mn.startswith("s_cselect") or mn.startswith("s_movk")):
                self.w = self.w + ["scc"]
        elif mn.startswith("v_"):
            self.cls = "valu"
            if base in TRANS:
                self.meta["trans"] = True
            if base.startswith("v_permlane") and "swap" in base:
                self.w = R(0) + R(1)
                self.r = R(0) + R(1)
                self.meta["perm"] = True
            elif base.startswith("v_readfirstlane") or base.startswith("v_readlane"):
                self.w = R(0)
                self.r = allr(1)
                self.meta["rdlane"] = True
            elif base.startswith("v_add_co") or base.startswith("v_sub_co") or base.startswith("v_addc_co") or base.startswith("v_subb_co"):
                self.w = R(0) + R(1)
                self.r = allr(2)
            elif base.startswith("v_accvgpr"):
                self.w = R(0)
                self.r = allr(1)
            else:
                self.w = R(0)
                self.r = allr(1)
                if base in ("v_fmac_f32", "v_dot2c_f32_bf16", "v_pk_fmac_f16", "v_mac_f32"):
                    self.r = self.r + R(0)
            if base.startswith("v_dot2"):
                self.meta["dot"] = base
            if "_dpp" in mn or "row_" in mods or "quad_perm" in mods:
                self.meta["dpp"] = True
            if base.startswith("v_cndmask") and len(ops) == 3:
                self.r = self.r + ["vcc"]
        else:
            raise ValueError("unknown instruction: " + t)


class Tok:
    __slots__ = ("name",)

    def __init__(self, name=""):
        self.name = name


class Stream(list):
    def __call__(self, text, tok=None, **meta):
        out = None
        for line in text.strip().split("\n"):
            line = line.split(";")[0].strip()
            if not line:
                continue
            out = Ins(line, tok=tok, **meta)
            self.append(out)
        return out

    def vm(self, text):
        t = Tok(text)
        self(text, tok=t)
        return t

    def wait_vm(self, tok):
        i = Ins("@waitvm")
        i.meta["tok"] = tok
        self.append(i)

    def wait_ds(self, tok=None):
        i = Ins("@waitds")
        i.meta["tok"] = tok
        self.append(i)

    def drain(self):
        self.append(Ins("@drain"))

    def comment(self, c):
        i = Ins("@comment")
        i.meta["c"] = c
        self.append(i)


def is_vgpr(x):
    return isinstance(x, tuple) and x[0] in "va"


def is_sgpr(x):
    return (isinstance(x, tuple) and x[0] == "s") or x == "vcc"


def finalize(stream, check_noprogress=False, verbose=False):
    out = []
    lines = []
    vmq = []
    dsq = []
    smem_pending = set()
    issued = set()
    stats = {"nops": 0, "waits": 0}

    def emit(ins):
        out.append(ins)
        lines.append(("  " if ins.cls != "label" else "") + ins.text)

    def emit_wait(vm=None, lg=None):
        parts = []
        if vm is not None:
            parts.append("vmcnt(%d)" % vm)
        if lg is not None:
            parts.append("lgkmcnt(%d)" % lg)
        if not parts:
            return
        emit(Ins("s_waitcnt " + " ".join(parts)))
        stats["waits"] += 1
        if vm is not None:
            del vmq[: max(0, len(vmq) - vm)]
        if lg is not None:
            del dsq[: max(0, len(dsq) - lg)]
            if lg == 0:
                smem_pending.clear()

    def need_in(queue, regs):
        idx = -1
        for k, op in enumerate(queue):
            if op.w and any(x in regs for x in op.w):
                idx = k
        return idx

    def states(ins):
        if ins.cls == "nop":
            return int(ins.ops[0], 0) + 1
        if ins.cls in ("label", "pseudo"):
            return 0
        return 1

    def hazard_need(ins):
        need = 0
        dist = 0
        rset, wset = set(ins.r), set(ins.w)
        for p in reversed(out):
            if dist >= 20:
                break
            req = 0
            pw = set(p.w)
            if p.cls == "valu":
                hit_r = pw & rset
                vr = [x for x in hit_r if is_vgpr(x)]
                sr = [x for x in hit_r if is_sgpr(x)]
                if vr:
                    if ins.cls == "mfma":
                        req = max(req, 2)
                    if ins.meta.get("perm") or ins.meta.get("dpp"):
                        req = max(req, 2)
                    if ins.meta.get("rdlane"):
                        req = max(req, 1)
                    if p.meta.get("trans"):
                        req = max(req, 1)
                if p.meta.get("dot"):
                    hit = [x for x in (pw & (rset | wset)) if is_vgpr(x)]
                    if hit:
                        same_c = ins.meta.get("dot") == p.meta["dot"] and len(ins.ops) >= 4 and set(regs_of(ins.ops[3])) >= set(hit) and not (set(regs_of(ins.ops[1]) + regs_of(ins.ops[2])) & set(hit))
                        if ins.meta.get("dot") == "v_dot2c_f32_bf16" and p.meta["dot"] == "v_dot2c_f32_bf16" and not (set(regs_of(ins.ops[1]) + regs_of(ins.ops[2])) & set(hit)):
                            same_c = True
                        if not same_c:
                            req = max(req, 3)
                if sr:
                    if ins.cls == "valu":
                        req = max(req, 4 if ins.meta.get("rdlane") and False else 2)
                    elif ins.cls in ("vm_ld", "vm_st", "vm_dma"):
                        req = max(req, 5)
                    elif ins.cls in ("salu", "branch", "smem"):
                        req = max(req, 1)
                if "exec" in pw:
                    req = max(req, 5)
            elif p.cls == "mfma":
                passes = 8 if "32x32" in p.mn else 4
                big = {4: 8, 8: 12}[passes]
                ov = {4: 6, 8: 10}[passes]
                war = {4: 3, 8: 7}[passes]
                if ins.cls == "mfma":
                    c = set(ins.meta["C"])
                    ab = set(ins.meta["AB"])
                    if pw & ab:
                        req = max(req, big)
                    if pw & c:
                        if not (pw == c and p.mn == ins.mn):
                            req = max(req, ov)
                    if (pw & wset) and not (pw & c):
                        req = max(req, big)
                else:
                    if (pw & rset) or (pw & wset):
                        req = max(req, big)
                    if ins.cls == "valu" and (set(p.meta["C"]) & wset):
                        req = max(req, war)
            elif p.cls == "vm_st":
                if p.meta.get("wide") and (set(p.meta.get("data", [])) & wset):
                    req = max(req, 2)
            elif p.cls == "salu":
                if "m0" in pw and ins.cls == "vm_dma":
                    req = max(req, 1)
                if "exec" in pw and ins.meta.get("dpp"):
                    req = max(req, 1)
            if req > dist:
                need = max(need, req - dist)
            dist += states(p)
        return need

    for ins in stream:
        if ins.cls == "pseudo":
            if ins.text == "@comment":
                lines.append("  ; " + ins.meta["c"])
                continue
            if ins.text == "@waitvm":
                tok = ins.meta["tok"]
                assert id(tok) in issued, "wait on a VMEM token that was not issued yet: " + tok.name
                idx = [k for k, op in enumerate(vmq) if op.tok is tok]
                if idx:
                    n = len(vmq) - 1 - idx[-1]
                    emit_wait(vm=min(n, 63))
                continue
            if ins.text == "@waitds":
                tok = ins.meta["tok"]
                if tok is None:
                    if dsq or smem_pending:
                        emit_wait(lg=0)
                else:
                    assert id(tok) in issued, "wait on a DS token that was not issued yet"
                    idx = [k for k, op in enumerate(dsq) if op.tok is tok]
                    if idx:
                        emit_wait(lg=min(len(dsq) - 1 - idx[-1], 15))
                continue
            if ins.text == "@drain":
                emit_wait(vm=0, lg=0)
                continue
            raise ValueError(ins.text)
        if ins.cls == "label":
            emit(ins)
            continue
        touched = set(ins.r) | set(ins.w)
        vm = lg = None
        k = need_in(vmq, touched)
        if k >= 0:
            vm = len(vmq) - 1 - k
        k = need_in(dsq, touched)
        if k >= 0:
            lg = len(dsq) - 1 - k
        if smem_pending & touched:
            lg = 0
        if ins.cls == "wait":
            m = re.search(r"vmcnt\((\d+)\)", ins.text)
            if m:
                del vmq[: max(0, len(vmq) - int(m.group(1)))]
            m = re.search(r"lgkmcnt\((\d+)\)", ins.text)
            if m:
                del dsq[: max(0, len(dsq) - int(m.group(1)))]
                if int(m.group(1)) == 0:
                    smem_pending.clear()
            emit(ins)
            continue
        if ins.cls in ("vm_ld", "vm_st", "vm_dma") and len(vmq) >= 63:
            vm = min(62, vm) if vm is not None else 62
        if ins.cls in ("ds_rd", "ds_wr") and len(dsq) >= 15:
            lg = min(14, lg) if lg is not None else 14
        emit_wait(vm, lg)
        n = hazard_need(ins)
        while n > 0:
            k = min(n, 16)
            emit(Ins("s_nop %d" % (k - 1)))
            stats["nops"] += k
            n -= k
        emit(ins)
        if ins.cls in ("vm_ld", "vm_st", "vm_dma"):
            vmq.append(ins)
            if ins.tok is not None:
                issued.add(id(ins.tok))
        elif ins.cls in ("ds_rd", "ds_wr"):
            assert not smem_pending, "DS op while SMEM outstanding: " + ins.text
            dsq.append(ins)
            if ins.tok is not None:
                issued.add(id(ins.tok))
        elif ins.cls == "smem":
            smem_pending |= set(ins.w)
    if verbose:
        print("; finalize:", stats)
    return lines
```

```python
from asmlib import *
from layout import *
from collections import deque

REG = [0, 65536]
MISC = 131072
STP = MISC
STF = MISC + 16384
CSL = STF + 2048
BIAS = CSL + 2048
JUNK = BIAS + 3072
LDS_BYTES = 163840
SCR = [65536, 98304]

vLane, vL16, vLO, vOst, vH1, vH2, vRed, vPollA, vPollB, vOut = 1, 2, 3, 4, 5, 6, 7, 8, 9, 10
vStatR, vStatW, vStI, vStV, vCs, vCsV, vB1, vOne, vP = 11, 12, 13, 14, 15, 16, 17, 18, 19
ACC = 20
FR = 68
RING = 88
TMP = 136
RES = 140
DV = 144

sW, sRB, sCG, sRB3, sCG3 = 16, 17, 18, 19, 20
sA1h, sA1m, sA3, sKw = 21, 22, 23, 24
sSt1, sSt3 = 25, 26
sM2, sM4 = 28, 30
sT, sT2, sT3 = 32, 33, 34
sOdd = 36
sOnes = 38
sCnt = 40
sBQ, sBW, sBG, sBD = 41, 42, 43, 44
sOst, sA2, sRes, sHst = 45, 46, 47, 48
sA4 = 64
sF1, sF3 = 50, 51
sP2, sP3, sP4, sP1a = 52, 53, 54, 55
sOutO = 56
sStO = 57
sK = 96
sTB = 49
sPoll = 35
sA1hw, sA1mw, sA3w, sKw1 = 63, 66, 67, 27
vPollH = 0
vFlag = 1
vL128 = 10
sPfQ, sPfW, sPfG, sPfD = 4, 5, 6, 3
sM16 = 100
sA2b = 60
sE, sE2 = 58, 59
sT4 = 7
sTS = 68

LOG2E = 1.4426950408889634
import struct
def fbits(x): return struct.unpack("<I", struct.pack("<f", x))[0]

POLL_LIMIT = 200000


def Bx(f):
    return "a[%d:%d]" % (4 * f, 4 * f + 3)
def By(f):
    if f < 16:
        return "a[%d:%d]" % (192 + 4 * f, 195 + 4 * f)
    return "v[%d:%d]" % (DV + 4 * (f - 16), DV + 4 * (f - 16) + 3)
def V(n, c=1):
    return "v%d" % n if c == 1 else "v[%d:%d]" % (n, n + c - 1)

def flag_off(p, phase, h):
    return FL + ((p * 4 + phase) * 2 + h) * 32 * 256


class Main:
    def __init__(self, opts):
        self.opts = opts
        self.prof = int(opts.get("prof", 0))
        self.slow = []
        self.npoll = 0
        self.nts = 0
        self.tsnames5 = []
        self.fine_on = False
        self.tsnames = []

    def ts(self, s, name):
        if self.prof == 6:
            if name in ("start", "prolog") or name.startswith(("s1O", "s2O", "s3E", "s3O", "s4O")):
                k = self.nts
                self.nts += 2
                self.tsnames += [name, name + ".rt"]
                s("s_waitcnt lgkmcnt(0)")
                s("s_memtime s[0:1]")
                s("s_waitcnt lgkmcnt(0)")
                s("s_mov_b32 s%d, s0" % (sTS + k))
                s("s_memrealtime s[0:1]")
                s("s_waitcnt lgkmcnt(0)")
                s("s_mov_b32 s%d, s0" % (sTS + k + 1))
            return
        if self.prof == 4:
            self.mark(s, "seg:" + name)
            return
        if self.prof == 3:
            f = self.opts.get("fine", "").split(",")
            if name == f[0]:
                self.fine_on = True
                self.fs(s, "begin:" + name)
            elif name == f[-1] and self.fine_on:
                self.fs(s, "end:" + name)
                self.fine_on = False
            return
        if not self.prof or (self.prof in (2, 5) and name not in ("start", "s4O.1", "s4.1.1")):
            return
        k = self.nts
        self.nts += 1
        self.tsnames.append(name)
        assert sTS + k < 94, k
        s("s_waitcnt lgkmcnt(0)")
        s("s_memtime s[0:1]")
        s("s_waitcnt lgkmcnt(0)")
        s("s_mov_b32 s%d, s0" % (sTS + k))

    def fs(self, s, name):
        if self.prof == 4 and self.fine_on and not name.startswith("mf"):
            k = self.nts
            if sTS + k >= 94:
                return
            self.nts += 1
            self.tsnames.append(name)
            s("s_waitcnt lgkmcnt(0)")
            s("s_memtime s[0:1]")
            s("s_waitcnt lgkmcnt(0)")
            s("s_mov_b32 s%d, s0" % (sTS + k)).meta["glue"] = False
            return
        if self.prof != 3 or not self.fine_on:
            return
        k = self.nts
        if sTS + 2 * k + 1 >= (94 if name.startswith("end:") else 92):
            return
        self.nts += 1
        self.tsnames.append(name)
        s.append(Ins("s_memtime s[%d:%d]" % (sTS + 2 * k, sTS + 2 * k + 1), async_=True))

    def pause(self, s, n):
        i = Ins("@comment")
        i.meta["c"] = "pause"
        i.meta["pause"] = n
        s.append(i)

    def mark(self, s, name):
        if self.prof == 4:
            i = Ins("@mark")
            i.meta["name"] = name
            s.append(i)

    def resolve_marks(self, s):
        out = Stream()
        f = self.opts.get("fine", "").split(",")
        on = False
        for ins in s:
            if ins.text == "@mark":
                nm = ins.meta["name"]
                if nm == "seg:" + f[0]:
                    on = True
                if on and sTS + self.nts < 94:
                    k = self.nts
                    self.nts += 1
                    self.tsnames.append(nm)
                    out("s_waitcnt lgkmcnt(0)")
                    out("s_memtime s[0:1]")
                    out("s_waitcnt lgkmcnt(0)")
                    out("s_mov_b32 s%d, s0" % (sTS + k))
                if nm == "seg:" + f[-1]:
                    on = False
                continue
            out.append(ins)
        return out

    def poll_issue(self, s, soff, const, vaddr):
        s("s_add_u32 s%d, s%d, %d" % (sPoll, soff, const))
        s("buffer_load_dword v%d, v%d, s[8:11], s%d offen sc1" % (vP, vaddr, sPoll))
        self.mark(s, "pollI")

    def poll_check(self, s, vaddr, mask):
        n = self.npoll
        self.npoll += 1
        self.mark(s, "chkA")
        s("v_cmp_ne_u32 vcc, 1, v%d" % vP)
        if mask is not None:
            s("s_and_b64 vcc, vcc, s[%d:%d]" % (mask, mask + 1))
        s("s_cbranch_vccnz SLOW_%d" % n).meta["glue"] = True
        s("BACK_%d:" % n).meta["glue"] = True
        s("s_barrier")
        self.mark(s, "chkB")
        t = []
        t.append("SLOW_%d:" % n)
        if self.prof == 5:
            t.append("  s_memtime s[0:1]")
            t.append("  s_waitcnt lgkmcnt(0)")
            t.append("  s_mov_b32 s%d, s0" % (sTS + 2 + n))
            self.tsnames5.append("poll%d" % n)
        t.append("  s_mov_b32 s%d, 0" % sCnt)
        t.append("SPIN_%d:" % n)
        t.append("  buffer_load_dword v%d, v%d, s[8:11], s%d offen sc1" % (vP, vaddr, sPoll))
        t.append("  s_waitcnt vmcnt(0)")
        t.append("  v_cmp_ne_u32 vcc, 1, v%d" % vP)
        t.append("  s_nop 1")
        if mask is not None:
            t.append("  s_and_b64 vcc, vcc, s[%d:%d]" % (mask, mask + 1))
        t.append("  s_cbranch_vccz %s_%d" % ("DONE" if self.prof == 5 else "BACK", n))
        t.append("  s_add_u32 s%d, s%d, 1" % (sCnt, sCnt))
        t.append("  s_cmp_lt_u32 s%d, %d" % (sCnt, POLL_LIMIT))
        t.append("  s_cbranch_scc1 SPIN_%d" % n)
        t.append("  s_branch BACK_%d" % n)
        if self.prof == 5:
            t.append("DONE_%d:" % n)
            t.append("  s_memtime s[0:1]")
            t.append("  s_waitcnt lgkmcnt(0)")
            t.append("  s_sub_u32 s%d, s0, s%d" % (sTS + 2 + n, sTS + 2 + n))
            t.append("  s_branch BACK_%d" % n)
        self.slow += t

    def dep(self, phase, p, h):
        if phase == 1:
            return (sP1a, flag_off(p - 1, 3, h), vPollH, sM16)
        if phase == 2:
            return (sP2, flag_off(p, 0, h), vPollB, sM2)
        if phase == 3:
            return (sP3, flag_off(p, 1, h), vPollA, sM16)
        return (sP4, flag_off(p, 2, h), vPollB, sM4)

    def ev_poll_issue(self, phase, p, h):
        t = Stream()
        so, c, va, m = self.dep(phase, p, h)
        self.poll_issue(t, so, c, va)
        return t

    def ev_poll_check(self, phase, p, h):
        t = Stream()
        so, c, va, m = self.dep(phase, p, h)
        self.poll_check(t, va, m)
        [x for x in t if x.text == "s_barrier"][-1].meta["checked"] = (phase, p, h)
        return t

    def ev_sig(self, phase, p, h, tok):
        t = Stream()
        self.sig(t, tok, sF3 if phase == 3 else sF1, flag_off(p, phase - 1, h))
        return t

    def sig(self, s, tok, soff, const):
        self.mark(s, "sigA")
        s.wait_vm(tok)
        self.mark(s, "sigW")
        s("s_barrier")
        self.mark(s, "sigB")
        s("s_add_u32 s%d, s%d, %d" % (sT3, soff, const))
        s("buffer_store_dword v%d, v%d, s[8:11], s%d offen sc1" % (vOne, vFlag, sT3))

    def groupsB(self, reg, sbase, lo, hi):
        out = []
        if self.opts.get("nob") == "1" and sbase != sBQ:
            return out
        if self.opts.get("nob") == "2" and sbase == sBG:
            return out
        for f in range(lo, hi):
            g = Stream()
            if f == lo or f % 4 == 0:
                g("s_add_u32 s%d, s%d, %d" % (sTB, sbase, (f // 4) * 4096))
            g("buffer_load_dwordx4 %s, v%d, s[8:11], s%d offen offset:%d" % (reg(f), vL16, sTB, (f % 4) * 1024)).meta["bname"] = \
                {sBQ: "Q", sBW: "W", sBG: "G", sBD: "D"}[sbase]
            out.append(g)
        return out

    def pf(self, sbase, const=0):
        g = Stream()
        if self.opts.get("pf") != "1":
            return g
        g("s_mov_b32 m0, %d" % JUNK)
        g("s_add_u32 s%d, s%d, %d" % (sT, sbase, const))
        g("buffer_load_dword v%d, s[8:11], s%d offen lds" % (vL128, sT))
        return g

    def groupsA_lds(self, phase, p, h):
        if phase == 1:
            srcs = [(sA1hw, 0), (sA1mw, 0), (sA1mw, 16384)]
            xb, st, sst = XB[2 * p], ST[2 * p], sSt1
        else:
            srcs = [(sA3w, i * 16384) for i in range(4)]
            xb, st, sst = XB[2 * p + 1], ST[2 * p + 1], sSt3
        groups, ctok = [], []
        def stats_groups():
            tk = None
            for i in range(2):
                g = Stream()
                g("s_lshl_b32 s%d, s%d, 11" % (sT2, sW))
                g("s_add_u32 m0, s%d, %d" % (sT2, STP + h * 8192))
                g("s_add_u32 s%d, s%d, %d" % (sT, sst, st + h * 131072))
                tk = g.vm("buffer_load_dwordx4 v%d, s[8:11], s%d offen offset:%d sc1 lds" % (vL16, sT, i * 1024))
                if not (phase == 1 and p == 0):
                    g[-1].meta["dep"] = (phase, p, h)
                groups.append(g)
            return tk
        stok = None
        for c in range(4):
            tk = None
            for sub, (sr, cc) in enumerate(srcs):
                g = Stream()
                g("s_add_u32 m0, s%d, %d" % (sKw1, REG[h] + sub * 16384 + c * 4096))
                g("s_add_u32 s%d, s%d, %d" % (sT, sr, xb + h * MB + cc + c * 4096))
                tk = g.vm("buffer_load_dwordx4 v%d, s[8:11], s%d offen sc1 lds" % (vL16, sT))
                if not (phase == 1 and p == 0):
                    g[-1].meta["dep"] = (phase, p, h)
                groups.append(g)
            ctok.append(tk)
            if c == 0:
                stok = stats_groups()
        return groups, stok, ctok

    def frag_seq(self, phase):
        nks = 4 if phase == 2 else 11
        return [(ss, ks) for ss in (1, 0) for ks in range(nks)]

    def ringreg(self, n):
        return RING + 4 * (n % 12)

    def loadA24_one(self, g, phase, p, h, n, st=sT):
        ss, ks = self.frag_seq(phase)[n]
        if phase == 2:
            if ss == 0:
                g("s_add_u32 s%d, s%d, %d" % (st, sA2, OB[p] + h * MB))
            else:
                g("s_add_u32 s%d, s%d, %d" % (st, sA2b, OB[p] + h * MB))
            g("buffer_load_dwordx4 %s, v%d, s[8:11], s%d offen offset:%d sc1" % (V(self.ringreg(n), 4), vL16, st, ks * 1024)).meta["dep"] = (phase, p, h)
        else:
            g("s_add_u32 s%d, s%d, %d" % (st, sA4 + ss, HB[p] + h * 3 * MB + (ks // 4) * 4096))
            g("buffer_load_dwordx4 %s, v%d, s[8:11], s%d offen offset:%d sc1" % (V(self.ringreg(n), 4), vL16, st, (ks % 4) * 1024)).meta["dep"] = (phase, p, h)

    def groupsA24(self, phase, p, h):
        out = []
        for n in range(min(12, len(self.frag_seq(phase)))):
            g = Stream()
            self.loadA24_one(g, phase, p, h, n)
            out.append(g)
        g = Stream()
        g("s_add_u32 s%d, s%d, %d" % (sT, sRes, XB[2 * p + (0 if phase == 2 else 1)] + h * MB))
        g("buffer_load_dwordx4 %s, v%d, s[8:11], s%d offen sc1" % (V(RES, 4), vL16, sT))
        out.insert(min(4, len(out)), g)
        return out

    def stats_reduce(self, s, h, stok):
        a = RING
        adr = vStatR
        if h == 1:
            adr = RING + 8
            s("v_add_u32 v%d, 8192, v%d" % (adr, vStatR))
        s.wait_vm(stok)
        for i in range(4):
            s("ds_read2_b32 %s, v%d offset0:%d offset1:%d" % (V(a + 2 * i, 2), adr, 64 * i, 64 * i + 32))
        self.pause(s, 10)
        for (x, y) in ((0, 1), (2, 3), (4, 5), (6, 7), (0, 2), (4, 6), (0, 4)):
            s("v_add_f32 v%d, v%d, v%d" % (a + x, a + x, a + y))
        s("v_mov_b32 v%d, v%d" % (a + 1, a))
        s("v_permlane32_swap_b32 v%d, v%d" % (a, a + 1))
        s("v_add_f32 v%d, v%d, v%d" % (a, a, a + 1))
        s("v_mov_b32 v%d, v%d" % (a + 1, a))
        s("v_permlane16_swap_b32 v%d, v%d" % (a, a + 1))
        s("v_mul_f32 v%d, %s, v%d" % (a, "0x%08x" % fbits(-1.0 / 512), a))
        s("v_mul_f32 v%d, v%d, v%d" % (a + 2, a, a))
        s("v_fma_f32 v%d, v%d, s%d, -v%d" % (a + 1, a + 1, sK, a + 2))
        s("v_max_f32 v%d, 0, v%d" % (a + 1, a + 1))
        s("v_add_f32 v%d, s%d, v%d" % (a + 1, sK + 1, a + 1))
        s("v_rsq_f32 v%d, v%d" % (a + 1, a + 1))
        s("v_cndmask_b32 v%d, v%d, v%d, s[%d:%d]" % (a, a, a + 1, sOdd, sOdd + 1))
        self.stat_tok = Tok("statw")
        s("ds_write_b32 v%d, v%d offset:%d" % (vStatW, a, h * 1024), tok=self.stat_tok)

    def epi_pref(self, phase, h):
        hoff = h * 1024
        pub = Stream()
        pub.wait_ds(self.stat_tok)
        pub("s_barrier")
        if phase == 3:
            return {58: list(pub), 60: ["ds_read_b128 %s, v%d offset:768" % (V(68, 4), vCs)],
                    61: ["ds_read_b128 %s, v%d offset:832" % (V(72, 4), vCs)],
                    62: ["ds_read_b128 %s, v%d offset:896" % (V(76, 4), vCs)],
                    63: ["ds_read_b64 %s, v%d offset:%d" % (V(80, 2), vStI, hoff)]}
        return {37: list(pub), 38: ["ds_read_b128 %s, v%d offset:%d" % (V(52, 4), vStV, hoff)],
                39: ["ds_read_b128 %s, v%d offset:%d" % (V(56, 4), vStV, hoff + 256)],
                40: ["ds_read_b128 %s, v%d offset:%d" % (V(60, 4), vStV, hoff + 64)],
                41: ["ds_read_b128 %s, v%d offset:%d" % (V(64, 4), vStV, hoff + 256 + 64)],
                43: ["ds_read_b128 %s, v%d offset:64" % (V(80, 4), vCs)],
                44: ["ds_read_b32 v84, v%d" % vCsV],
                45: ["ds_read_b64 %s, v%d offset:%d" % (V(68, 2), vStI, hoff), "ds_read_b64 %s, v%d offset:%d" % (V(70, 2), vStI, hoff + 128)],
                46: ["ds_read_b64 %s, v%d offset:%d" % (V(72, 2), vStI, hoff + 256)],
                47: ["ds_read_b128 %s, v%d offset:0" % (V(76, 4), vCs)]}

    def mf13(self, phase, h):
        base = vL16 if h == 0 else vLO
        nsub = 3 if phase == 1 else 4
        nfr = 16 * nsub
        def rd(n):
            ks, sub = divmod(n, nsub)
            out = []
            if sub == 0 and ks % 4 == 0:
                out.append(("chunk", ks // 4))
            out.append("ds_read_b128 %s, v%d offset:%d" % (V(FR + 4 * (n % 5), 4), base, sub * 16384 + ks * 1024))
            return out
        pre = [x for n in range(5) for x in rd(n)]
        pref = self.epi_pref(phase, h)
        steps = []
        mm = "v_mfma_f32_16x16x32_bf16"
        Q = [None, ACC, ACC + 4]
        K = [ACC + 8, ACC + 12, ACC + 16]
        Vv = [ACC + 20, ACC + 24, ACC + 28]
        for ks in range(16):
            c = (lambda r: "0" if ks == 0 else V(r, 4))
            for sub in range(nsub):
                n = nsub * ks + sub
                x = V(FR + 4 * (n % 5), 4)
                grp = []
                if phase == 1:
                    if sub > 0:
                        grp.append("%s %s, %s, %s, %s" % (mm, V(Q[sub], 4), Bx(3 * ks), x, c(Q[sub])))
                    grp.append("%s %s, %s, %s, %s" % (mm, V(K[sub], 4), Bx(3 * ks + 1), x, c(K[sub])))
                    grp.append("%s %s, %s, %s, %s" % (mm, V(Vv[sub], 4), x, Bx(3 * ks + 2), c(Vv[sub])))
                else:
                    for j in range(3):
                        r = ACC + 12 * sub + 4 * j
                        grp.append("%s %s, %s, %s, %s" % (mm, V(r, 4), Bx(3 * ks + j), x, c(r)))
                for i, m in enumerate(grp):
                    bop = [o.strip() for o in m.split(",") if o.strip().startswith("a[")][0]
                    st = [Ins(m, need=(bop, "Q" if phase == 1 else "G"))]
                    if i == len(grp) - 1 and n + 5 < nfr:
                        st += rd(n + 5)
                    if i == len(grp) - 1:
                        st += pref.get(n, [])
                    steps.append(st)
        return pre, steps

    def mf24(self, phase, p, h):
        seq = self.frag_seq(phase)
        steps = []
        for n, (ss, ks) in enumerate(seq):
            x = V(self.ringreg(n), 4)
            for jj in range(4):
                r = ACC + 16 * ss + 4 * jj
                st = [Ins("v_mfma_f32_16x16x32_bf16 %s, %s, %s, %s" % (V(r, 4), By(4 * ks + jj), x, "0" if ks == 0 else V(r, 4)),
                          need=(By(4 * ks + jj), "W" if phase == 2 else "D"))]
                if n + 12 < len(seq):
                    t = Stream()
                    self.loadA24_one(t, phase, p, h, n + 12, sT4)
                    if jj == 2:
                        st.append(t[0])
                    if jj == 3:
                        st.append(t[1])
                steps.append(st)
        return steps, 2 * len(seq)

    def red_writes(self, xs, h):
        t = Stream()
        so = SCR[h] - 65536
        for x in xs:
            t("v_xor_b32 v%d, %d, v%d" % (TMP + x - 1, x << 13, vRed))
        for x in xs:
            for jl in range(2):
                t("ds_write_b128 v%d, %s offset:%d" % (TMP + x - 1, V(ACC + 8 * x + 4 * jl, 4), so + x * 2048 + jl * 1024))
        return t

    def seg24_mf(self, s, phase, p, h, at=None):
        steps, half = self.mf24(phase, p, h)
        at = dict(at or {})
        w = self.red_writes((2, 3), h)
        at.setdefault(half + 9, []).insert(0, w)
        self.run_mf(s, steps, at=at)

    def epi1(self, s, p, h):
        Q = [None, ACC, ACC + 4]
        K = [ACC + 8, ACC + 12, ACC + 16]
        Vv = [ACC + 20, ACC + 24, ACC + 28]
        SP = [None, 52, 60]
        SC = [None, 56, 64]
        st = [68, 70, 72]
        csq, csk, csv, cq = 76, 80, 84, 86
        hoff = h * 1024
        NM = [52, 60, 52]
        RS = [56, 64, 56]
        def rdv(sub):
            s("ds_read_b128 %s, v%d offset:%d" % (V(NM[sub], 4), vStV, hoff + sub * 64))
            s("ds_read_b128 %s, v%d offset:%d" % (V(RS[sub], 4), vStV, hoff + 256 + sub * 64))
        bc0 = "op_sel_hi:[0,1,1]"
        for sub in (1, 2):
            for hh in (0, 2):
                s("v_pk_fma_f32 %s, %s, %s, %s %s" % (V(Q[sub] + hh, 2), V(st[sub], 2), V(csq + hh, 2), V(Q[sub] + hh, 2), bc0))
            s("v_mul_f32 v%d, s%d, v%d" % (cq, sK + 2, st[sub] + 1))
            for hh in (0, 2):
                s("v_pk_mul_f32 %s, %s, %s op_sel_hi:[1,0]" % (V(Q[sub] + hh, 2), V(Q[sub] + hh, 2), V(cq, 2)))
            s("v_cvt_pk_bf16_f32 v%d, v%d, v%d" % (Q[sub], Q[sub], Q[sub] + 1))
            s("v_cvt_pk_bf16_f32 v%d, v%d, v%d" % (Q[sub] + 1, Q[sub] + 2, Q[sub] + 3))
        for sub in range(3):
            for hh in (0, 2):
                s("v_pk_fma_f32 %s, %s, %s, %s %s" % (V(K[sub] + hh, 2), V(st[sub], 2), V(csk + hh, 2), V(K[sub] + hh, 2), bc0))
            for hh in (0, 2):
                s("v_pk_mul_f32 %s, %s, %s op_sel:[0,1] op_sel_hi:[1,1]" % (V(K[sub] + hh, 2), V(K[sub] + hh, 2), V(st[sub], 2)))
            s("v_cvt_pk_bf16_f32 v%d, v%d, v%d" % (K[sub], K[sub], K[sub] + 1))
            s("v_cvt_pk_bf16_f32 v%d, v%d, v%d" % (K[sub] + 1, K[sub] + 2, K[sub] + 3))
        for sub in range(3):
            for hh in (0, 2):
                s("v_pk_fma_f32 %s, %s, %s, %s op_sel_hi:[1,0,1]" % (V(Vv[sub] + hh, 2), V(NM[sub] + hh, 2), V(csv, 2), V(Vv[sub] + hh, 2)))
            for hh in (0, 2):
                s("v_pk_mul_f32 %s, %s, %s" % (V(Vv[sub] + hh, 2), V(Vv[sub] + hh, 2), V(RS[sub] + hh, 2)))
            if sub == 0:
                rdv(2)
            s("v_cvt_pk_bf16_f32 v%d, v%d, v%d" % (Vv[sub], Vv[sub], Vv[sub] + 1))
            s("v_cvt_pk_bf16_f32 v%d, v%d, v%d" % (Vv[sub] + 1, Vv[sub] + 2, Vv[sub] + 3))
        bp1, bp, bc = 68, 72, 76
        s("v_add_u32 v%d, %d, v%d" % (TMP + 2, BIAS, vL16))
        s("ds_read_b128 %s, v%d" % (V(bp1, 4), vB1))
        s("ds_read_b128 %s, v%d offset:1024" % (V(bp, 4), TMP + 2))
        s("ds_read_b128 %s, v%d offset:0" % (V(bc, 4), TMP + 2))
        mm = "v_mfma_f32_16x16x16_bf16"
        s("%s %s, %s, %s, %s" % (mm, V(SP[1], 4), V(K[0], 2), V(Q[1], 2), V(bp1, 4)))
        s("%s %s, %s, %s, %s" % (mm, V(SC[1], 4), V(K[1], 2), V(Q[1], 2), V(bc, 4)))
        s("%s %s, %s, %s, %s" % (mm, V(SP[2], 4), V(K[1], 2), V(Q[2], 2), V(bp, 4)))
        s("%s %s, %s, %s, %s" % (mm, V(SC[2], 4), V(K[2], 2), V(Q[2], 2), V(bc, 4)))
        m = {1: 80, 2: 84}
        l = {1: 82, 2: 86}
        for sub in (1, 2):
            a, b = SP[sub], SC[sub]
            s("v_max3_f32 v%d, v%d, v%d, v%d" % (m[sub], a, a + 1, a + 2))
            s("v_max3_f32 v%d, v%d, v%d, v%d" % (m[sub] + 1, a + 3, b, b + 1))
            s("v_max3_f32 v%d, v%d, v%d, v%d" % (m[sub], m[sub], b + 2, b + 3))
            s("v_max_f32 v%d, v%d, v%d" % (m[sub], m[sub], m[sub] + 1))
        for sw in ("v_permlane16_swap_b32", "v_permlane32_swap_b32"):
            for sub in (1, 2):
                s("v_mov_b32 v%d, v%d" % (m[sub] + 1, m[sub]))
            for sub in (1, 2):
                s("%s v%d, v%d" % (sw, m[sub], m[sub] + 1))
            for sub in (1, 2):
                s("v_max_f32 v%d, v%d, v%d" % (m[sub], m[sub], m[sub] + 1))
        for sub in (1, 2):
            for r in (SP[sub], SP[sub] + 2, SC[sub], SC[sub] + 2):
                s("v_pk_add_f32 %s, %s, %s op_sel_hi:[1,0] neg_lo:[0,1] neg_hi:[0,1]" % (V(r, 2), V(r, 2), V(m[sub], 2)))
        for sub in (1, 2):
            for r in range(4):
                s("v_exp_f32 v%d, v%d" % (SP[sub] + r, SP[sub] + r))
                s("v_exp_f32 v%d, v%d" % (SC[sub] + r, SC[sub] + r))
        for sub in (1, 2):
            a, b = SP[sub], SC[sub]
            s("v_pk_add_f32 %s, %s, %s" % (V(l[sub], 2), V(a, 2), V(a + 2, 2)))
            s("v_pk_add_f32 %s, %s, %s" % (V(m[sub], 2), V(b, 2), V(b + 2, 2)))
            s("v_pk_add_f32 %s, %s, %s" % (V(l[sub], 2), V(l[sub], 2), V(m[sub], 2)))
            s("v_add_f32 v%d, v%d, v%d" % (l[sub], l[sub], l[sub] + 1))
        for sub in (1, 2):
            for r in (SP[sub], SC[sub]):
                s("v_cvt_pk_bf16_f32 v%d, v%d, v%d" % (r, r, r + 1))
                s("v_cvt_pk_bf16_f32 v%d, v%d, v%d" % (r + 1, r + 2, r + 3))
        for sub in (1, 2):
            s("%s %s, %s, %s, 0" % (mm, V(Q[sub], 4), V(Vv[sub - 1], 2), V(SP[sub], 2)))
        for sub in (1, 2):
            s("%s %s, %s, %s, %s" % (mm, V(Q[sub], 4), V(Vv[sub], 2), V(SC[sub], 2), V(Q[sub], 4)))
        for sw in ("v_permlane16_swap_b32", "v_permlane32_swap_b32"):
            for sub in (1, 2):
                s("v_mov_b32 v%d, v%d" % (l[sub] + 1, l[sub]))
            for sub in (1, 2):
                s("%s v%d, v%d" % (sw, l[sub], l[sub] + 1))
            for sub in (1, 2):
                s("v_add_f32 v%d, v%d, v%d" % (l[sub], l[sub], l[sub] + 1))
        for sub in (1, 2):
            s("v_rcp_f32 v%d, v%d" % (l[sub], l[sub]))
        for sub in (1, 2):
            for hh in (0, 2):
                s("v_pk_mul_f32 %s, %s, %s op_sel_hi:[1,0]" % (V(Q[sub] + hh, 2), V(Q[sub] + hh, 2), V(l[sub], 2)))
        o = ACC
        s("v_cvt_pk_bf16_f32 v%d, v%d, v%d" % (o, o, o + 1))
        s("v_cvt_pk_bf16_f32 v%d, v%d, v%d" % (o + 1, o + 2, o + 3))
        s("v_cvt_pk_bf16_f32 v%d, v%d, v%d" % (o + 2, o + 4, o + 5))
        s("v_cvt_pk_bf16_f32 v%d, v%d, v%d" % (o + 3, o + 6, o + 7))
        s("v_permlane16_swap_b32 v%d, v%d" % (o, o + 2))
        s("v_permlane16_swap_b32 v%d, v%d" % (o + 1, o + 3))
        s("s_add_u32 s%d, s%d, %d" % (sE, sOst, OB[p] + h * MB))
        return s.vm("buffer_store_dwordx4 %s, v%d, s[8:11], s%d offen sc1" % (V(o, 4), vOst, sE))

    def epi3(self, s, p, h):
        csG, csU, csM = 68, 72, 76
        stp = [80, 82]
        c1 = 84
        hoff = h * 1024
        bq = TMP
        for sub in range(4):
            G, U, M = ACC + 12 * sub, ACC + 12 * sub + 4, ACC + 12 * sub + 8
            st = stp[sub & 1]
            if sub < 3:
                s("ds_read_b64 %s, v%d offset:%d" % (V(stp[(sub + 1) & 1], 2), vStI, hoff + (sub + 1) * 128))
            for (r, cs) in ((M, csM), (G, csG), (U, csU)):
                for hh in (0, 2):
                    s("v_pk_fma_f32 %s, %s, %s, %s op_sel_hi:[0,1,1]" % (V(r + hh, 2), V(st, 2), V(cs + hh, 2), V(r + hh, 2)))
            s("v_mul_f32 v%d, s%d, v%d" % (c1, sK + 3, st + 1))
            s("v_permlane16_swap_b32 v%d, v%d" % (M, M + 2))
            s("v_permlane16_swap_b32 v%d, v%d" % (M + 1, M + 3))
            gates = (G, G + 2, M)
            ups = (U, U + 2, M + 2)
            for r in gates:
                s("v_pk_mul_f32 %s, %s, %s op_sel_hi:[1,0]" % (V(r, 2), V(r, 2), V(c1, 2)))
            for r in gates:
                s("v_exp_f32 v%d, v%d" % (r, r))
                s("v_exp_f32 v%d, v%d" % (r + 1, r + 1))
            for r in ups:
                s("v_pk_mul_f32 %s, %s, %s op_sel:[0,1] op_sel_hi:[1,1]" % (V(r, 2), V(r, 2), V(st, 2)))
            for r in gates:
                s("v_pk_add_f32 %s, %s, s[%d:%d]" % (V(r, 2), V(r, 2), sOnes, sOnes + 1))
            for r in gates:
                s("v_rcp_f32 v%d, v%d" % (r, r))
                s("v_rcp_f32 v%d, v%d" % (r + 1, r + 1))
            for g, u in zip(gates, ups):
                s("v_pk_mul_f32 %s, %s, %s" % (V(u, 2), V(u, 2), V(g, 2)))
            dst = ACC + 12 * (sub & ~1) + 2 * (sub & 1)
            s("v_cvt_pk_bf16_f32 v%d, v%d, v%d" % (dst, U, U + 1))
            s("v_cvt_pk_bf16_f32 v%d, v%d, v%d" % (dst + 1, U + 2, U + 3))
            s("v_cvt_pk_bf16_f32 v%d, v%d, v%d" % (bq + sub, M + 2, M + 3))
        s("s_add_u32 s%d, s%d, %d" % (sE, sHst, HB[p] + h * 3 * MB))
        for pr in range(2):
            d = ACC + 24 * pr
            s("v_permlane16_swap_b32 v%d, v%d" % (d, d + 2))
            s("v_permlane16_swap_b32 v%d, v%d" % (d + 1, d + 3))
            if pr == 1:
                s("s_add_u32 s%d, s%d, %d" % (sE2, sE, 2 * 48 * KB))
            s.vm("buffer_store_dwordx4 %s, v%d, s[8:11], s%d offen sc1" % (V(d, 4), vH1, sE if pr == 0 else sE2))
        s("v_permlane16_swap_b32 v%d, v%d" % (bq, bq + 1))
        s("v_permlane16_swap_b32 v%d, v%d" % (bq + 2, bq + 3))
        s("v_permlane32_swap_b32 v%d, v%d" % (bq, bq + 2))
        s("v_permlane32_swap_b32 v%d, v%d" % (bq + 1, bq + 3))
        return s.vm("buffer_store_dwordx4 %s, v%d, s[8:11], s%d offen sc1" % (V(bq, 4), vH2, sE))

    def epi24(self, s, phase, p, h, sig=None):
        so = SCR[h] - 65536
        a = ACC
        s.extend(self.red_writes((1,), h))
        if sig is not None:
            s.wait_vm(sig[3])
        s.wait_ds()
        s("s_barrier")
        if sig is not None:
            s("s_add_u32 s%d, s%d, %d" % (sT3, sF3 if sig[0] == 3 else sF1, flag_off(sig[1], sig[0] - 1, sig[2])))
            s("buffer_store_dword v%d, v%d, s[8:11], s%d offen sc1" % (vOne, vFlag, sT3))
        for x in (1, 2, 3):
            for jl in range(2):
                s("ds_read_b128 %s, v%d offset:%d" % (V(a + 8 * x + 4 * jl, 4), vRed, so + x * 2048 + jl * 1024))
        r = 52
        for i in range(4):
            s("v_lshlrev_b32 v%d, 16, v%d" % (r + 2 * i, RES + i))
            s("v_and_b32 v%d, 0xffff0000, v%d" % (r + 2 * i + 1, RES + i))
        for i in range(4):
            s("v_pk_add_f32 %s, %s, %s" % (V(a + 2 * i, 2), V(a + 2 * i, 2), V(r + 2 * i, 2)))
        for x in (1, 2, 3):
            for i in range(4):
                s("v_pk_add_f32 %s, %s, %s" % (V(a + 2 * i, 2), V(a + 2 * i, 2), V(a + 8 * x + 2 * i, 2)))
        o = 60
        for i in range(4):
            s("v_cvt_pk_bf16_f32 v%d, v%d, v%d" % (o + i, a + 2 * i, a + 2 * i + 1))
        final = (phase == 4 and p == 1)
        if final:
            s("s_add_u32 s%d, s%d, %d" % (sE, sOutO, h * 1024))
            s("v_and_b32 v52, 0xf0, v%d" % vL16)
            s("v_lshlrev_b32 v52, 7, v52")
            s("v_lshrrev_b32 v53, 8, v%d" % vL16)
            s("v_lshl_add_u32 v52, v53, 4, v52")
            return s.vm("buffer_store_dwordx4 %s, v52, s[12:15], s%d offen" % (V(o, 4), sE))
        xi = 2 * p + (1 if phase == 2 else 2)
        s("s_add_u32 s%d, s%d, %d" % (sE, sRes, XB[xi] + h * MB))
        s.vm("buffer_store_dwordx4 %s, v%d, s[8:11], s%d offen sc1" % (V(o, 4), vL16, sE))
        u = 52
        s("v_pk_add_f32 %s, %s, %s" % (V(u, 2), V(a, 2), V(a + 2, 2)))
        s("v_pk_add_f32 %s, %s, %s" % (V(u + 2, 2), V(a + 4, 2), V(a + 6, 2)))
        s("v_pk_mul_f32 %s, %s, %s" % (V(u + 4, 2), V(a, 2), V(a, 2)))
        s("v_pk_add_f32 %s, %s, %s" % (V(u, 2), V(u, 2), V(u + 2, 2)))
        for i in (1, 2, 3):
            s("v_pk_fma_f32 %s, %s, %s, %s" % (V(u + 4, 2), V(a + 2 * i, 2), V(a + 2 * i, 2), V(u + 4, 2)))
        s("v_add_f32 v%d, v%d, v%d" % (u, u, u + 1))
        s("v_add_f32 v%d, v%d, v%d" % (u + 1, u + 4, u + 5))
        s("v_permlane16_swap_b32 v%d, v%d" % (u, u + 1))
        s("v_add_f32 v%d, v%d, v%d" % (u, u, u + 1))
        s("v_mov_b32 v%d, v%d" % (u + 1, u))
        s("v_permlane32_swap_b32 v%d, v%d" % (u, u + 1))
        s("v_add_f32 v%d, v%d, v%d" % (u, u, u + 1))
        s("s_add_u32 s%d, s%d, %d" % (sE, sStO, ST[xi] + h * 131072))
        s("v_lshrrev_b32 v%d, 2, v%d" % (u + 2, vL16))
        s("s_mov_b32 exec_hi, 0")
        tok = s.vm("buffer_store_dword v%d, v%d, s[8:11], s%d offen sc1" % (u, u + 2, sE))
        s("s_mov_b32 exec_hi, -1")
        return tok

    def codepf(self):
        if self.opts.get("nocpf") == "1":
            return ""
        n = int(self.opts.get("cpf", 2))
        t = ["s_getpc_b64 s[36:37]", "M_pc:", "s_lshl_b32 s38, s16, 13", "v_lshlrev_b32 v21, 7, v1", "v_add_u32 v21, s38, v21"]
        for i in range(n):
            t.append("v_min_u32 v24, M_last-M_pc, v21")
            t.append("global_load_dword v%d, v24, s[36:37]" % (22 + i))
            if i < n - 1:
                t.append("v_add_u32 v21, 0x8000, v21")
        return "\n".join(t)

    def prologue(self, s):
        s("""
        s_load_dwordx2 s[4:5], s[0:1], 72
        s_load_dwordx2 s[6:7], s[0:1], 56
        s_cmp_ge_u32 s2, 256
        s_cbranch_scc1 M_end
        v_lshrrev_b32 v20, 6, v0
        v_and_b32 v%d, 63, v0
        v_readfirstlane_b32 s%d, v20
        v_lshlrev_b32 v%d, 4, v%d
        @CODEPF
        s_and_b32 s32, s2, 7
        s_lshr_b32 s33, s2, 3
        s_lshr_b32 s34, s32, 1
        s_and_b32 s35, s32, 1
        """.replace("@CODEPF", self.codepf()) % (vLane, sW, vL16, vLane))
        s("""
        s_lshl_b32 s{rb}, s34, 3
        s_lshr_b32 s36, s33, 2
        s_add_u32 s{rb}, s{rb}, s36
        s_lshl_b32 s{cg}, s35, 2
        s_and_b32 s36, s33, 3
        s_add_u32 s{cg}, s{cg}, s36
        s_lshl_b32 s{rb3}, s34, 2
        s_lshr_b32 s36, s33, 3
        s_add_u32 s{rb3}, s{rb3}, s36
        s_lshl_b32 s{cg3}, s35, 3
        s_and_b32 s36, s33, 7
        s_add_u32 s{cg3}, s{cg3}, s36
        s_waitcnt lgkmcnt(0)
        s_mov_b32 s8, s4
        s_and_b32 s9, s5, 0xffff
        s_mov_b32 s10, 0x10000000
        s_mov_b32 s11, 0x20000
        s_mov_b32 s12, s6
        s_and_b32 s13, s7, 0xffff
        s_mov_b32 s14, 0x200000
        s_mov_b32 s15, 0x20000
        """.format(rb=sRB, cg=sCG, rb3=sRB3, cg3=sCG3))
        s("""
        s_lshl_b32 s36, s{cg}, 2
        s_add_u32 s36, s36, s{w}
        s_mul_i32 s{bq}, s36, {k48}
        s_add_u32 s{bq}, s{bq}, {PQ}
        s_lshl_b32 s{bw}, s36, 14
        s_add_u32 s{bw}, s{bw}, {PW}
        s_mul_i32 s{bd}, s36, {k44}
        s_add_u32 s{bd}, s{bd}, {PD}
        s_lshl_b32 s37, s{cg3}, 2
        s_add_u32 s37, s37, s{w}
        s_mul_i32 s{bg}, s37, {k48}
        s_add_u32 s{bg}, s{bg}, {PG}
        s_lshl_b32 s{kw}, s{w}, 12
        s_lshl_b32 s{a1m}, s{rb}, 15
        s_lshl_b32 s{a3}, s{rb3}, 16
        s_sub_u32 s{a1h}, s{a1m}, 16384
        s_max_i32 s{a1h}, s{a1h}, 0
        """.format(cg=sCG, w=sW, bq=sBQ, bw=sBW, bd=sBD, bg=sBG, cg3=sCG3, kw=sKw, a1m=sA1m, a3=sA3, a1h=sA1h, rb=sRB, rb3=sRB3,
                   k48=48 * KB, k44=44 * KB, PQ=PQ, PW=PW, PD=PD, PG=PG))
        s("""
        s_lshl_b32 s38, s{rb}, 1
        s_add_u32 s38, s38, s{w}
        s_sub_u32 s38, s38, 1
        s_max_i32 s38, s38, 0
        s_lshl_b32 s{st1}, s38, 11
        s_lshl_b32 s38, s{rb3}, 2
        s_add_u32 s38, s38, s{w}
        s_lshl_b32 s{st3}, s38, 11
        """.format(rb=sRB, w=sW, st1=sSt1, rb3=sRB3, st3=sSt3))
        s("""
        s_lshr_b32 s38, s{w}, 1
        s_and_b32 s39, s{w}, 1
        s_lshl_b32 s40, s{cg}, 1
        s_add_u32 s59, s40, s38
        s_lshl_b32 s59, s59, 10
        s_lshl_b32 s60, s39, 9
        s_add_u32 s59, s59, s60
        s_add_u32 s{ost}, s59, s{a1m}
        """.format(w=sW, cg=sCG, ost=sOst, a1m=sA1m))
        s("""
        s_lshl_b32 s59, s38, 14
        s_add_u32 s59, s59, s{a1m}
        s_add_u32 s{a2}, s59, s{kw}
        s_add_u32 s60, s40, s39
        s_lshl_b32 s61, s60, 10
        s_add_u32 s{res}, s59, s61
        s_lshr_b32 s{sto}, s59, 3
        s_lshl_b32 s61, s60, 7
        s_add_u32 s{sto}, s{sto}, s61
        """.format(a1m=sA1m, a2=sA2, kw=sKw, res=sRes, sto=sStO))
        s("""
        s_lshl_b32 s59, s{rb}, 1
        s_add_u32 s59, s59, s38
        s_lshl_b32 s{out}, s59, 15
        s_lshl_b32 s61, s60, 6
        s_add_u32 s{out}, s{out}, s61
        """.format(rb=sRB, out=sOutO))
        s("""
        s_mul_i32 s{hst}, s{rb3}, {k192}
        s_mul_i32 s61, s{cg3}, 12
        s_mul_i32 s62, s{w}, 3
        s_add_u32 s61, s61, s62
        s_lshl_b32 s61, s61, 8
        s_add_u32 s{hst}, s{hst}, s61
        s_mul_i32 s62, s{w}, {k11}
        s_mul_i32 s{a4}, s59, {k48}
        s_add_u32 s{a4}, s{a4}, s62
        s_xor_b32 s59, s59, 1
        s_mul_i32 s{a4b}, s59, {k48}
        s_add_u32 s{a4b}, s{a4b}, s62
        """.format(hst=sHst, rb3=sRB3, cg3=sCG3, w=sW, a4=sA4, a4b=sA4 + 1, k192=192 * KB, k11=11 * KB, k48=48 * KB))
        return

    def prologue2(self, s):
        s("""
        s_lshl_b32 s59, s{cg}, 2
        s_lshl_b32 s60, s{rb}, 8
        s_add_u32 s{f1}, s60, s59
        s_lshl_b32 s59, s{cg3}, 2
        s_lshl_b32 s61, s{rb3}, 8
        s_add_u32 s{f3}, s61, s59
        s_mov_b32 s{p2}, s60
        s_lshl_b32 s{p3}, s{rb3}, 9
        s_lshr_b32 s61, s{rb}, 1
        s_lshl_b32 s{p4}, s61, 8
        s_cmp_eq_u32 s{rb}, 0
        s_cselect_b32 s61, 0, 256
        s_sub_u32 s{p1}, s60, s61
        v_lshrrev_b32 v20, 3, v{lane}
        v_mul_lo_u32 v20, v20, s61
        v_and_b32 v21, 7, v{lane}
        v_lshl_add_u32 v{ph}, v21, 2, v20
        """.format(lane=vLane, ph=vPollH, cg=sCG, w=sW, rb=sRB, f1=sF1, cg3=sCG3, rb3=sRB3, f3=sF3, p2=sP2, p3=sP3, p4=sP4, p1=sP1a))
        s("""
        s_cmp_eq_u32 s{w}, 1
        s_cselect_b32 s{m2}, 0xff, 0
        s_mov_b32 s{m2h}, 0
        s_cselect_b32 s{m4}, 0x7fff, 0
        s_mov_b32 s{m4h}, 0
        s_cselect_b32 s{m16}, 0xffff, 0
        s_mov_b32 s{m16h}, 0
        s_mov_b32 s{odd}, 0xffff0000
        s_mov_b32 s{oddh}, 0xffff0000
        s_mov_b32 s{one}, 1.0
        s_mov_b32 s{oneh}, 1.0
        s_mov_b32 s{k0}, {c0}
        s_mov_b32 s{k1}, {c1}
        s_mov_b32 s{k2}, {c2}
        s_mov_b32 s{k3}, {c3}
        """.format(w=sW, m2=sM2, m2h=sM2 + 1, m4=sM4, m4h=sM4 + 1, m16=sM16, m16h=sM16 + 1, odd=sOdd, oddh=sOdd + 1, one=sOnes, oneh=sOnes + 1,
                   k0=sK, k1=sK + 1, k2=sK + 2, k3=sK + 3,
                   c0="0x%08x" % fbits(1.0 / 512), c1="0x%08x" % fbits(1e-5), c2="0x%08x" % fbits(0.25 * LOG2E), c3="0x%08x" % fbits(-LOG2E)))
        s("""
        v_and_b32 v20, 15, v{lane}
        v_lshrrev_b32 v21, 4, v{lane}
        v_add_u32 v{lo}, 65536, v{l16}
        v_lshlrev_b32 v22, 4, v20
        v_and_b32 v23, 1, v21
        v_lshrrev_b32 v24, 1, v21
        v_lshl_add_u32 v25, v24, 8, v22
        v_lshl_add_u32 v{ost}, v23, 14, v25
        v_mul_u32_u24 v26, {k48}, v23
        v_add_u32 v{h1}, v26, v25
        v_mul_u32_u24 v26, {k48}, v21
        v_add_u32 v26, v26, v22
        v_add_u32 v{h2}, 512, v26
        s_lshl_b32 s59, s{w}, 13
        s_add_u32 s59, s59, 65536
        v_add_u32 v{red}, s59, v{l16}
        v_lshrrev_b32 v26, 3, v{lane}
        v_and_b32 v27, 7, v{lane}
        v_lshlrev_b32 v27, 2, v27
        v_lshl_add_u32 v{pa}, v26, 8, v27
        v_lshlrev_b32 v{pb}, 2, v{lane}
        s_cmp_eq_u32 s{w}, 1
        s_cselect_b32 s59, 16, 0
        v_cmp_gt_u32 vcc, s59, v{lane}
        v_mov_b32 v27, 0x7ffffff0
        v_cndmask_b32 v{pa}, v27, v{pa}, vcc
        v_cndmask_b32 v{pb}, v27, v{pb}, vcc
        v_cndmask_b32 v{ph}, v27, v{ph}, vcc
        v_lshlrev_b32 v{out}, 7, v{lane}
        v_cmp_gt_u32 vcc, 16, v{lane}
        v_cndmask_b32 v{out}, v27, v{out}, vcc
        v_mov_b32 v{one}, 1
        """.format(lane=vLane, lo=vLO, l16=vL16, ost=vOst, h1=vH1, h2=vH2, red=vRed, pa=vPollA, pb=vPollB, ph=vPollH, out=vOut, one=vOne, w=sW, k48=48 * KB))
        s("""
        s_lshl_b32 s59, s{w}, 11
        s_add_u32 s59, s59, {stp}
        v_lshlrev_b32 v26, 10, v24
        v_lshl_add_u32 v26, v23, 6, v26
        v_lshl_add_u32 v26, v20, 2, v26
        v_add_u32 v{sr}, s59, v26
        """.format(w=sW, stp=STP, sr=vStatR))
        s("""
        s_lshl_b32 s59, s{w}, 7
        s_lshl_b32 s60, s{w}, 6
        v_lshlrev_b32 v26, 3, v20
        v_lshl_add_u32 v26, v23, 2, v26
        v_add_u32 v26, s59, v26
        v_lshlrev_b32 v27, 2, v20
        v_lshl_add_u32 v27, v23, 8, v27
        v_add_u32 v27, s60, v27
        v_add_u32 v27, 512, v27
        v_cmp_gt_u32 vcc, 2, v21
        v_cndmask_b32 v26, v27, v26, vcc
        v_add_u32 v{sw}, {stf}, v26
        v_lshlrev_b32 v26, 3, v20
        v_add_u32 v{si}, {stf}, v26
        v_lshlrev_b32 v26, 4, v21
        v_add_u32 v{sv}, {stfn}, v26
        s_mul_i32 s59, s{w}, 192
        s_add_u32 s59, s59, {csl}
        v_add_u32 v{cs}, s59, v26
        v_lshlrev_b32 v27, 2, v20
        v_add_u32 v27, s59, v27
        v_add_u32 v{csv}, 128, v27
        """.format(w=sW, sw=vStatW, stf=STF, si=vStI, sv=vStV, stfn=STF + 512, csl=CSL, cs=vCs, csv=vCsV))
        s("""
        s_lshr_b32 s59, s2, 3
        s_lshr_b32 s60, s59, 2
        s_lshl_b32 s60, s60, 2
        s_add_u32 s60, s60, s{w}
        s_mul_i32 s61, s{cg}, {k192}
        s_mul_i32 s62, s60, {q6}
        s_add_u32 s{pq}, s61, s62
        s_add_u32 s{pq}, s{pq}, {PQ}
        s_lshl_b32 s61, s{cg}, 16
        s_lshl_b32 s62, s60, 11
        s_add_u32 s{pw}, s61, s62
        s_add_u32 s{pw}, s{pw}, {PW}
        s_mul_i32 s61, s{cg}, {k176}
        s_mul_i32 s62, s60, {d55}
        s_add_u32 s{pd}, s61, s62
        s_add_u32 s{pd}, s{pd}, {PD}
        s_lshr_b32 s60, s59, 3
        s_lshl_b32 s60, s60, 2
        s_add_u32 s60, s60, s{w}
        s_mul_i32 s61, s{cg3}, {k192}
        s_mul_i32 s62, s60, {g12}
        s_add_u32 s{pg}, s61, s62
        s_add_u32 s{pg}, s{pg}, {PG}
        """.format(w=sW, cg=sCG, cg3=sCG3, pq=sPfQ, pw=sPfW, pd=sPfD, pg=sPfG, k192=192 * KB, k176=176 * KB, q6=6 * KB, d55=5632, g12=12 * KB,
                   PQ=PQ, PW=PW, PD=PD, PG=PG))
        s("""
        v_lshlrev_b32 v26, 2, v21
        v_sub_u32 v26, v20, v26
        v_mov_b32 v27, 0xf149f2ca
        v_mov_b32 v28, 0
        """)
        for r in range(4):
            s("v_subrev_u32 v29, %d, v26" % r)
            s("v_cmp_gt_u32 vcc, 8, v29")
            s("v_cndmask_b32 v%d, v27, v28, vcc" % (32 + r))
            s("v_cmp_gt_i32 vcc, -8, v29")
            s("v_cndmask_b32 v%d, v27, v28, vcc" % (36 + r))
            s("v_mov_b32 v%d, v27" % (40 + r))
        s("v_add_u32 v30, %d, v%d" % (BIAS, vL16))
        s("ds_write_b128 v30, v[32:35]")
        s("ds_write_b128 v30, v[36:39] offset:1024")
        s("ds_write_b128 v30, v[40:43] offset:2048")
        s("""
        s_cmp_eq_u32 s{rb}, 0
        s_cselect_b32 s59, 2, 1
        s_lshl_b32 s59, s59, 10
        v_add_u32 v{b1}, s59, v30
        """.format(rb=sRB, b1=vB1))

    def colsums(self, s):
        for k in range(6):
            r = 44 + 4 * k
            s("v_pk_add_f32 %s, %s, %s" % (V(r, 2), V(r, 2), V(r + 2, 2)))
            s("v_add_f32 v%d, v%d, v%d" % (r, r, r + 1))
            s("v_add_f32_dpp v%d, v%d, v%d quad_perm:[1,0,3,2] row_mask:0xf bank_mask:0xf" % (r, r, r))
            s("v_add_f32_dpp v%d, v%d, v%d quad_perm:[2,3,0,1] row_mask:0xf bank_mask:0xf" % (r, r, r))
        s("""
        v_lshrrev_b32 v26, 2, v{lane}
        v_lshlrev_b32 v26, 2, v26
        s_mul_i32 s59, s{w}, 192
        s_add_u32 s59, s59, {csl}
        v_add_u32 v26, s59, v26
        """.format(lane=vLane, w=sW, csl=CSL))
        for k in range(6):
            s("ds_write_b32 v26, v%d offset:%d" % (44 + 4 * k, (k // 3) * 768 + (k % 3) * 64))
        s("s_cmp_eq_u32 s%d, 0" % sW)
        s("s_cselect_b32 s59, 1, 0")
        s("v_cmp_gt_u32 vcc, s59, v%d" % vLane)
        s("v_mov_b32 v27, 0x7ffffff0")
        s("v_cndmask_b32 v%d, v27, 0, vcc" % vFlag)

    def tick(self, s, bulk=True):
        if self.urgent:
            s.extend(self.urgent.popleft())
            return True
        if bulk and self.bulk:
            s.extend(self.bulk.popleft())
            return True
        return False

    def flush_urgent(self, s):
        while self.urgent:
            s.extend(self.urgent.popleft())

    def burst(self, s, n):
        for _ in range(n):
            self.tick(s)

    @staticmethod
    def cost(ins):
        c = ins.cls
        if c == "valu":
            return 8 if (ins.meta.get("trans") or ins.meta.get("perm")) else 4
        if c in ("vm_ld", "vm_dma", "vm_st"):
            return 8
        if c in ("ds_rd", "ds_wr"):
            return 4
        if c == "salu":
            return 2.5
        if c in ("pseudo", "label"):
            return 0 if ins.text in ("@comment", "@mark") or c == "label" else 2
        return 3

    def evs(self, key, default):
        v = self.opts.get(key)
        return tuple(int(x) for x in v.split(",")) if v else default

    def run_mf(self, s, steps, at=None, fill=None, rate=4, ctok=None, fill_from=2, urate=None):
        at = at or {}
        urate = urate or rate
        fill = deque(fill or [])
        ev, cur = deque(), deque()
        last_vm = -rate
        last_tr = -12
        isvm = lambda x: x.cls in ("vm_ld", "vm_dma", "vm_st")
        def mk(x):
            if isinstance(x, Ins):
                return [x]
            if isinstance(x, tuple):
                t = Stream()
                self.mark(t, "chA%d" % x[1])
                t.wait_vm(ctok[x[1]])
                t("s_barrier")
                self.mark(t, "chB%d" % x[1])
                return list(t)
            t = Stream()
            t(x)
            return list(t)
        def push_ev(e):
            if isinstance(e, Stream):
                ev.extend(e)
            else:
                c = Ins("@comment")
                c.meta["c"] = "release"
                c.meta["call"] = e
                ev.append(c)
        def emit_from(q, budget):
            while q:
                c = self.cost(q[0])
                if c > budget and not (budget >= 8 - 1e-9):
                    break
                x = q.popleft()
                s.append(x)
                if x.meta.get("call"):
                    x.meta["call"]()
                budget -= c
                while x.meta.get("glue") and q:
                    x = q.popleft()
                    s.append(x)
                    if x.meta.get("call"):
                        x.meta["call"]()
                if budget <= 0:
                    break
            return budget
        n = len(steps)
        for i, st in enumerate(steps):
            for e in at.get(i, []):
                push_ev(e)
            if i % int(self.opts.get("fstep", 16)) == 0:
                self.fs(s, "mf%d" % i)
            budget = 8.0
            main = [y for x in st for y in mk(x)]
            for x in main:
                s.append(x)
            for x in main[1:]:
                budget -= self.cost(x)
                if isvm(x):
                    last_vm = i
            if any(x.cls == "ds_rd" for x in main[1:]):
                budget -= 2
            if budget <= 0:
                continue
            if ev:
                had_vm = any(isvm(x) for x in list(ev)[:1])
                budget = emit_from(ev, budget)
                if had_vm:
                    last_vm = i
                if budget <= 0:
                    continue
            if not cur and self.trickle and not self.urgent and i - last_tr >= int(self.opts.get("trate", 24)) and i - last_vm >= 1:
                cur.extend(self.trickle.popleft())
                last_tr = i
            if not cur:
                if self.urgent and i - last_vm >= urate - 1:
                    cur.extend(self.urgent.popleft())
                elif self.bulk and not self.urgent and i - last_vm >= rate - 1:
                    cur.extend(self.bulk.popleft())
            while cur and budget > 0:
                x = cur[0]
                c = self.cost(x)
                if isvm(x):
                    if budget < 8 or i - last_vm < min(rate, urate):
                        break
                    last_vm = i
                elif c > budget:
                    break
                s.append(cur.popleft())
                budget -= c
            if fill and fill[0].meta.get("pause"):
                fill_from = i + fill.popleft().meta["pause"]
            if i >= fill_from and fill and budget > 0:
                part = deque()
                while fill and not fill[0].meta.get("pause") and len(part) < 4:
                    part.append(fill.popleft())
                budget = emit_from(part, budget)
                while part:
                    fill.appendleft(part.pop())
        for e in at.get(n, []):
            push_ev(e)
        for q in (cur, ev, fill):
            while q:
                x = q.popleft()
                s.append(x)
                if x.meta.get("call"):
                    x.meta["call"]()

    def weave(self, s, epi, every=13):
        k = 0
        for ins in epi:
            s.append(ins)
            if ins.cls in ("valu", "mfma"):
                k += 1
                if k >= every:
                    if self.tick(s):
                        k = 0

    def split_tile(self, A):
        groups = A[0]
        nsub = (len(groups) - 2) // 4
        nh = 2 * nsub + 2
        return groups[:nh], groups[nh:]

    def seg13(self, s, phase, p, h, A, at):
        groups, stok, ctok = A
        st = Stream()
        self.stats_reduce(st, h, stok)
        pre, steps = self.mf13(phase, h)
        for x in pre:
            if isinstance(x, tuple):
                s.wait_vm(ctok[x[1]])
                s("s_barrier")
            else:
                s(x)
        self.run_mf(s, steps, at=at, fill=list(st), ctok=ctok, fill_from=int(self.opts.get("fillfrom", 6)))
        s("s_barrier")

    def check_order(self, s):
        done = set()
        for ins in s:
            if ins.meta.get("checked"):
                done.add(ins.meta["checked"])
            k = ins.meta.get("dep")
            if k is not None:
                assert k in done, "load issued before its dependency was checked: %s %s" % (k, ins.text)

    def check_weights(self, s):
        if self.opts.get("nob"):
            return
        cur = {}
        for ins in s:
            if ins.meta.get("bname"):
                cur[ins.ops[0]] = ins.meta["bname"]
            if ins.cls == "mfma" and ins.meta.get("need"):
                reg, name = ins.meta["need"]
                assert cur.get(reg) == name, "weights %s expected in %s, found %s" % (name, reg, cur.get(reg))

    def gen(self):
        s = Stream()
        self.urgent, self.bulk, self.trickle = deque(), deque(), deque()
        o = self.opts
        self.prologue(s)
        if self.prof:
            s("s_memrealtime s[100:101]")
            s("s_waitcnt lgkmcnt(0)")
            s("s_mov_b32 s94, s100")
        self.ts(s, "start")
        if self.prof == 5:
            for k in range(2, 24):
                s("s_mov_b32 s%d, 0" % (sTS + k))
        s("""
        s_lshl_b32 s{kw1}, s{w}, 10
        s_add_u32 s{a1hw}, s{a1h}, s{kw1}
        s_add_u32 s{a1mw}, s{a1m}, s{kw1}
        s_add_u32 s{a3w}, s{a3}, s{kw1}
        """.format(kw1=sKw1, w=sW, a1hw=sA1hw, a1h=sA1h, a1mw=sA1mw, a1m=sA1m, a3w=sA3w, a3=sA3))
        A = {}
        A[(1, 0, 0)] = self.groupsA_lds(1, 0, 0)
        for g in A[(1, 0, 0)][0]:
            s.extend(g)
        s("s_lshl_b32 s36, s%d, 2" % sCG)
        s("s_add_u32 s36, s36, s%d" % sW)
        s("s_mul_i32 s37, s36, 3072")
        s("s_add_u32 s37, s37, %d" % CSQ)
        for k in range(3):
            s("buffer_load_dwordx4 %s, v%d, s[8:11], s37 offen offset:%d" % (V(44 + 4 * k, 4), vL16, k * 1024))
        s("s_lshl_b32 s36, s%d, 2" % sCG3)
        s("s_add_u32 s36, s36, s%d" % sW)
        s("s_mul_i32 s37, s36, 3072")
        s("s_add_u32 s37, s37, %d" % CSG)
        for k in range(3):
            s("buffer_load_dwordx4 %s, v%d, s[8:11], s37 offen offset:%d" % (V(56 + 4 * k, 4), vL16, k * 1024))
        for g in self.groupsB(Bx, sBQ, 0, 24):
            s.extend(g)
        self.prologue2(s)
        A[(1, 0, 1)] = self.groupsA_lds(1, 0, 1)
        for g in self.groupsB(Bx, sBQ, 24, 30):
            s.extend(g)
        self.colsums(s)
        s("s_xor_b32 s%d, s%d, 16384" % (sA2b, sA2))
        self.bulk.extend(self.groupsB(Bx, sBQ, 30, 48))
        self.burst(s, 18)
        self.urgent.extend(A[(1, 0, 1)][0])
        self.ts(s, "prolog")
        tok = {}
        U = lambda gs: (lambda: self.urgent.extend(gs))
        def until_issued(gs):
            while any(g is x for g in gs for x in self.urgent):
                s.extend(self.urgent.popleft())
        tails = {(1, 0, 0): [], (1, 0, 1): []}
        for p in range(2):
            last = (p == 1)
            at = {}
            self.urgent.extend(tails[(1, p, 0)])
            if p == 0:
                self.bulk.extend(self.groupsB(By, sBW, 0, 16))
                self.bulk.extend(self.groupsB(By, sBD, 16, 44))
                head1 = []
            else:
                self.bulk.extend(self.groupsB(By, sBW, 0, 16))
                a, b, c = self.evs("e1E", (56, 92, 127))
                at[a] = [self.ev_sig(4, p - 1, 1, tok[(4, p - 1, 1)])]
                at[b] = [self.ev_poll_issue(1, p, 1)]
                A[(1, p, 1)] = self.groupsA_lds(1, p, 1)
                head1, tails[(1, p, 1)] = self.split_tile(A[(1, p, 1)])
                at[c] = [self.ev_poll_check(1, p, 1), U(head1)]
            self.trickle.extend(self.pf(sPfG, 2048 * i) for i in range(6))
            self.trickle.extend(self.pf(sPfD, 2048 * i) for i in range(3))
            self.seg13(s, 1, p, 0, A[(1, p, 0)], at)
            self.ts(s, "mf1E.%d" % p)
            e = Stream(); tok[(1, p, 0)] = self.epi1(e, p, 0)
            self.weave(s, e, every=10)
            until_issued(head1)
            self.ts(s, "s1E.%d" % p)
            self.urgent.extend(tails[(1, p, 1)])
            gA = self.groupsA24(2, p, 0)
            a, b, c = self.evs("e1O", (56, 92, 127))
            at = {a: [self.ev_sig(1, p, 0, tok[(1, p, 0)])], b: [self.ev_poll_issue(2, p, 0)],
                  c: [self.ev_poll_check(2, p, 0), U(gA)]}
            self.seg13(s, 1, p, 1, A[(1, p, 1)], at)
            self.ts(s, "mf1O.%d" % p)
            while self.bulk:
                s.extend(self.bulk.popleft())
            self.bulk.extend(self.groupsB(Bx, sBG, 0, 48))
            e = Stream(); tok[(1, p, 1)] = self.epi1(e, p, 1)
            self.weave(s, e, every=10)
            self.flush_urgent(s)
            self.ts(s, "s1O.%d" % p)
            self.seg24_mf(s, 2, p, 0)
            e = Stream(); tok[(2, p, 0)] = self.epi24(e, 2, p, 0)
            self.weave(s, e, every=10)
            s.extend(self.ev_sig(1, p, 1, tok[(1, p, 1)]))
            self.burst(s, int(self.opts.get("b2E", 8)))
            s.extend(self.ev_poll_issue(2, p, 1))
            self.burst(s, int(self.opts.get("b2F", 5)))
            s.extend(self.ev_sig(2, p, 0, tok[(2, p, 0)]))
            s.extend(self.ev_poll_check(2, p, 1))
            self.ts(s, "s2E.%d" % p)
            self.urgent.extend(self.groupsA24(2, p, 1))
            self.flush_urgent(s)
            s.extend(self.ev_poll_issue(3, p, 0))
            A[(3, p, 0)] = self.groupsA_lds(3, p, 0)
            head3, tail3 = self.split_tile(A[(3, p, 0)])
            self.seg24_mf(s, 2, p, 1, at={int(self.opts.get("c3E", 24)): [self.ev_poll_check(3, p, 0), U(head3)]})
            self.bulk.extend(self.groupsB(By, sBD, 0, 16))
            e = Stream(); tok[(2, p, 1)] = self.epi24(e, 2, p, 1)
            self.weave(s, e, every=5)
            until_issued(head3)
            self.ts(s, "s2O.%d" % p)
            self.urgent.extend(tail3)
            A[(3, p, 1)] = self.groupsA_lds(3, p, 1)
            head3, tail3 = self.split_tile(A[(3, p, 1)])
            a, b, c = self.evs("e3E", (56, 92, 128))
            at = {a: [self.ev_sig(2, p, 1, tok[(2, p, 1)])], b: [self.ev_poll_issue(3, p, 1)],
                  c: [self.ev_poll_check(3, p, 1), U(head3)]}
            if not last:
                self.trickle.extend(self.pf(sPfQ, 2048 * i) for i in range(3))
            self.seg13(s, 3, p, 0, A[(3, p, 0)], at)
            self.ts(s, "mf3E.%d" % p)
            e = Stream(); tok[(3, p, 0)] = self.epi3(e, p, 0)
            self.weave(s, e, every=12)
            until_issued(head3)
            self.ts(s, "s3E.%d" % p)
            self.urgent.extend(tail3)
            gA = self.groupsA24(4, p, 0)
            a, b, c = self.evs("e3O", (56, 92, 128))
            at = {a: [self.ev_sig(3, p, 0, tok[(3, p, 0)])], b: [self.ev_poll_issue(4, p, 0)],
                  c: [self.ev_poll_check(4, p, 0), U(gA)]}
            if not last:
                self.trickle.extend([self.pf(sPfW, 0)])
            self.seg13(s, 3, p, 1, A[(3, p, 1)], at)
            self.ts(s, "mf3O.%d" % p)
            self.flush_urgent(s)
            while self.bulk:
                s.extend(self.bulk.popleft())
            if not last:
                self.bulk.extend(self.groupsB(Bx, sBQ, 0, 48))
            e = Stream(); tok[(3, p, 1)] = self.epi3(e, p, 1)
            self.weave(s, e, every=12)
            self.ts(s, "s3O.%d" % p)
            a, b = self.evs("e4E", (60, 88))
            at = {a: [self.ev_sig(3, p, 1, tok[(3, p, 1)])], b: [self.ev_poll_issue(4, p, 1)]}
            self.seg24_mf(s, 4, p, 0, at=at)
            e = Stream(); tok[(4, p, 0)] = self.epi24(e, 4, p, 0)
            self.weave(s, e, every=10)
            s.extend(self.ev_poll_check(4, p, 1))
            self.ts(s, "s4E.%d" % p)
            self.urgent.extend(self.groupsA24(4, p, 1))
            self.flush_urgent(s)
            at = {}
            head1 = []
            if not last:
                A[(1, p + 1, 0)] = self.groupsA_lds(1, p + 1, 0)
                head1, tails[(1, p + 1, 0)] = self.split_tile(A[(1, p + 1, 0)])
                a, b, c = self.evs("e4O", (8, 44, 82))
                at = {a: [self.ev_sig(4, p, 0, tok[(4, p, 0)])], b: [self.ev_poll_issue(1, p + 1, 0)],
                      c: [self.ev_poll_check(1, p + 1, 0), U(head1)]}
            self.seg24_mf(s, 4, p, 1, at=at)
            e = Stream(); tok[(4, p, 1)] = self.epi24(e, 4, p, 1)
            self.weave(s, e, every=5)
            until_issued(head1)
            self.ts(s, "s4O.%d" % p)
        if self.prof == 4:
            s = self.resolve_marks(s)
        if self.prof:
            s("s_lshl_b32 s36, s2, 2")
            s("s_add_u32 s36, s36, s%d" % sW)
            s("s_lshl_b32 s36, s36, 8")
            s("s_add_u32 s36, s36, %d" % 0x3000000)
            s("s_memrealtime s[100:101]")
            s("s_waitcnt lgkmcnt(0)")
            s("s_mov_b32 s95, s100")
            s("s_mov_b64 exec, 1")
            for k in (94, 95):
                s("v_mov_b32 v20, s%d" % k)
                s("buffer_store_dword v20, off, s[8:11], s36 offset:%d" % (4 * (62 + k - 94)))
            if self.prof == 5:
                for k in range(16):
                    s("v_mov_b32 v20, s%d" % (sTS + 2 + k))
                    s("buffer_store_dword v20, off, s[8:11], s36 offset:%d" % (4 * (8 + k)))
            for k in range(self.nts):
                s("v_mov_b32 v20, s%d" % (sTS + (2 * k if self.prof == 3 else k)))
                s("buffer_store_dword v20, off, s[8:11], s36 offset:%d" % (4 * k))
            s("s_mov_b64 exec, -1")
        s("s_waitcnt vmcnt(0)")
        self.check_weights(s)
        self.check_order(s)
        lines = finalize(s, verbose=False)
        lines.append("M_end:")
        lines.append("  s_endpgm")
        lines += self.slow
        lines.append("M_last:")
        lines.append("  s_endpgm")
        return lines


def gen_main(opts):
    m = Main(opts)
    lines = m.gen()
    if m.prof:
        lines.insert(0, "; timestamps: " + " ".join(m.tsnames))
    return lines, LDS_BYTES
```

```python
from asmlib import *
from layout import *

N_Q, N_W, N_D, N_G, N_X, N_Z = 384, 128, 352, 1024, 512, FL_BYTES // 4096
T_W = N_Q
T_D = T_W + N_W
T_G = T_D + N_D
T_X = T_G + N_G
T_Z = T_X + N_X
T_END = T_Z + N_Z
PREP_WGS = (T_END + 3) // 4
PREP_LDS = 4 * 4096


def magic(d):
    return (2 ** 32 + d - 1) // d


def gen_prep(name, prof=0):
    L = []

    def fin(s):
        if prof and len(s) and (s[-1].text == "s_endpgm" or getattr(s, "tail", False)):
            if s[-1].text == "s_endpgm":
                s.pop()
            s("s_waitcnt vmcnt(0)")
            s("s_memrealtime s[50:51]")
            s("s_waitcnt lgkmcnt(0)")
            s("v_mov_b32 v2, s53")
            s("v_mov_b32 v3, s50")
            s("s_mov_b64 exec, 1")
            s("buffer_store_dwordx2 v[2:3], off, s[8:11], s52")
            s("s_endpgm")
        L.extend(finalize(s))

    s = Stream()
    PS = """s_memrealtime s[50:51]
    s_waitcnt lgkmcnt(0)
    s_lshl_b32 s52, s4, 3
    s_add_u32 s52, s52, 0x3100000
    s_mov_b32 s53, s50""" if prof else ""
    s(("""
    s_load_dwordx4 s[16:19], s[0:1], 0
    s_load_dwordx2 s[20:21], s[0:1], 16
    s_load_dwordx4 s[24:27], s[0:1], 32
    s_load_dwordx2 s[28:29], s[0:1], 48
    s_load_dwordx2 s[30:31], s[0:1], 72
    v_lshrrev_b32 v2, 6, v0
    v_and_b32 v1, 63, v0
    v_readfirstlane_b32 s3, v2
    s_lshl_b32 s4, s2, 2
    s_add_u32 s4, s4, s3
    s_cmp_ge_u32 s4, %d
    s_cbranch_scc1 P_end
    s_lshl_b32 s5, s3, 12
    s_waitcnt lgkmcnt(0)
    s_mov_b32 s8, s30
    s_and_b32 s9, s31, 0xffff
    s_mov_b32 s10, 0x10000000
    s_mov_b32 s11, 0x20000
    s_mov_b32 s15, 0x20000
    s_mov_b32 s35, 0x20000
    @PROFSTART
    v_lshlrev_b32 v3, 4, v1
    v_mov_b32 v40, 0x3f803f80
    v_mov_b32 v41, 0x3f803f80
    v_mov_b32 v42, 0x3f803f80
    v_mov_b32 v43, 0x3f803f80
    v_and_b32 v4, 3, v1
    v_lshrrev_b32 v5, 2, v1
    v_and_b32 v5, 3, v5
    v_lshrrev_b32 v6, 4, v1
    v_lshl_add_u32 v7, v6, 3, v5
    s_cmp_ge_u32 s4, %d
    s_cbranch_scc1 P_Z
    s_cmp_ge_u32 s4, %d
    s_cbranch_scc1 P_X
    s_cmp_ge_u32 s4, %d
    s_cbranch_scc1 P_G
    s_cmp_ge_u32 s4, %d
    s_cbranch_scc1 P_D
    s_cmp_ge_u32 s4, %d
    s_cbranch_scc1 P_W
    """ % (T_END, T_Z, T_X, T_G, T_D, T_W)).replace("@PROFSTART", PS))
    fin(s)

    def raw128_load(s, rowstride, s_row0, s_colbyte):
        s("""
        v_lshrrev_b32 v8, 3, v1
        v_add_u32 v8, %s, v8
        v_mul_u32_u24 v8, %d, v8
        v_and_b32 v9, 7, v1
        v_lshl_add_u32 v8, v9, 4, v8
        v_add_u32 v8, %s, v8
        s_mov_b32 m0, s5
        """ % (s_row0, rowstride, s_colbyte))
        toks = []
        for i in range(4):
            toks.append(s.vm("buffer_load_dwordx4 v8, s[12:15], 0 offen lds"))
            if i < 3:
                s("v_add_u32 v8, %d, v8" % (8 * rowstride))
                s("s_add_u32 m0, m0, 1024")
        s.wait_vm(toks[-1])

    s = Stream()
    s("""
    s_mul_hi_u32 s36, s4, %d
    s_mul_i32 s37, s36, 48
    s_sub_u32 s37, s4, s37
    s_mul_hi_u32 s38, s37, %d
    s_mul_i32 s39, s38, 3
    s_sub_u32 s39, s37, s39
    s_mov_b32 s12, s18
    s_and_b32 s13, s19, 0xffff
    s_mov_b32 s14, %d
    s_lshl_b32 s40, s38, 5
    s_lshl_b32 s41, s39, 10
    s_lshl_b32 s42, s36, 7
    s_add_u32 s41, s41, s42
    """ % (magic(48), magic(3), 512 * 1536 * 2))
    raw128_load(s, 3072, "s40", "s41")
    s("""
    v_lshlrev_b32 v10, 7, v7
    v_lshl_add_u32 v10, v4, 3, v10
    v_add_u32 v10, s5, v10
    """)
    for w in range(4):
        for t in range(2):
            s("ds_read_b64_tr_b16 v[%d:%d], v10 offset:%d" % (16 + 4 * w + 2 * t, 17 + 4 * w + 2 * t, t * 512 + w * 32))
    s("""
    s_mul_i32 s42, s36, %d
    s_lshl_b32 s43, s37, 10
    s_add_u32 s42, s42, s43
    s_add_u32 s42, s42, %d
    """ % (4 * 48 * KB, PQ))
    for w in range(4):
        s("buffer_store_dwordx4 v[%d:%d], v3, s[8:11], s42 offen" % (16 + 4 * w, 19 + 4 * w))
        if w < 3:
            s("s_add_u32 s42, s42, %d" % (48 * KB))
    for w in range(4):
        s("v_mfma_f32_16x16x32_bf16 v[%d:%d], v[40:43], v[%d:%d], 0" % (44 + 4 * w, 47 + 4 * w, 16 + 4 * w, 19 + 4 * w))
    s("""
    s_mul_i32 s42, s36, %d
    s_lshl_b32 s43, s39, 10
    s_add_u32 s42, s42, s43
    s_lshl_b32 s43, s38, 2
    s_add_u32 s42, s42, s43
    s_add_u32 s42, s42, %d
    v_lshlrev_b32 v11, 6, v1
    v_cmp_gt_u32 vcc, 16, v1
    s_and_saveexec_b64 s[44:45], vcc
    """ % (4 * 3 * KB, CSQ))
    for w in range(4):
        s("buffer_store_dword v%d, v11, s[8:11], s42 offen" % (44 + 4 * w))
        if w < 3:
            s("s_add_u32 s42, s42, %d" % (3 * KB))
    s("s_endpgm")
    fin(s)

    def wd_tail(s, s_wq, s_outbase):
        s("""
        v_lshlrev_b32 v10, 7, v7
        v_lshl_add_u32 v10, v4, 4, v10
        v_add_u32 v10, s5, v10
        """)
        for b in range(2):
            for jl in range(2):
                f = b * 2 + jl
                for t in range(2):
                    s("ds_read_b64_tr_b16 v[%d:%d], v10 offset:%d" % (16 + 4 * f + 2 * t, 17 + 4 * f + 2 * t, t * 512 + 64 * b + 8 * jl))
        s("s_and_b32 s46, %s, 1" % s_wq)
        for b in range(2):
            s("s_xor_b32 s47, s46, %d" % b)
            s("s_lshl_b32 s47, s47, 11")
            s("s_add_u32 s47, s47, %s" % s_outbase)
            for jl in range(2):
                f = b * 2 + jl
                s("buffer_store_dwordx4 v[%d:%d], v3, s[8:11], s47 offen offset:%d" % (16 + 4 * f, 19 + 4 * f, jl * 1024))
        s("s_endpgm")

    L.append("P_W:")
    s = Stream()
    s("""
    s_sub_u32 s4, s4, %d
    s_lshr_b32 s36, s4, 4
    s_and_b32 s38, s4, 15
    s_mov_b32 s12, s20
    s_and_b32 s13, s21, 0xffff
    s_mov_b32 s14, %d
    s_lshl_b32 s40, s38, 5
    s_lshl_b32 s41, s36, 7
    """ % (T_W, 512 * 512 * 2))
    raw128_load(s, 1024, "s40", "s41")
    s("""
    s_lshr_b32 s39, s38, 2
    s_lshl_b32 s42, s36, 16
    s_lshl_b32 s43, s38, 12
    s_add_u32 s42, s42, s43
    s_add_u32 s42, s42, %d
    """ % PW)
    wd_tail(s, "s39", "s42")
    fin(s)

    L.append("P_D:")
    s = Stream()
    s("""
    s_sub_u32 s4, s4, %d
    s_mul_hi_u32 s36, s4, %d
    s_mul_i32 s37, s36, 44
    s_sub_u32 s38, s4, s37
    s_mov_b32 s12, s28
    s_and_b32 s13, s29, 0xffff
    s_mov_b32 s14, %d
    s_lshl_b32 s40, s38, 5
    s_lshl_b32 s41, s36, 7
    """ % (T_D, magic(44), 1376 * 512 * 2))
    raw128_load(s, 1024, "s40", "s41")
    s("""
    s_mul_hi_u32 s39, s38, %d
    s_mul_i32 s42, s36, %d
    s_lshl_b32 s43, s38, 12
    s_add_u32 s42, s42, s43
    s_add_u32 s42, s42, %d
    """ % (magic(11), 176 * KB, PD))
    wd_tail(s, "s39", "s42")
    fin(s)

    L.append("P_G:")
    s = Stream()
    s("""
    s_sub_u32 s4, s4, %d
    s_lshr_b32 s36, s4, 6
    s_lshr_b32 s39, s4, 4
    s_and_b32 s39, s39, 3
    s_and_b32 s38, s4, 15
    s_mul_i32 s40, s36, 96
    s_mul_i32 s41, s39, 24
    s_add_u32 s40, s40, s41
    s_mov_b32 s12, s24
    s_and_b32 s13, s25, 0xffff
    s_mov_b32 s14, %d
    s_mov_b32 s32, s26
    s_and_b32 s33, s27, 0xffff
    s_mov_b32 s34, %d
    """ % (T_G, 512 * 1376 * 2, 512 * 1376 * 2))
    toks = []
    for i in range(2):
        s("""
        v_add_u32 v8, %d, v1
        v_mul_u32_u24 v9, 21846, v8
        v_lshrrev_b32 v9, 16, v9
        v_mul_u32_u24 v12, 3, v9
        v_sub_u32 v12, v8, v12
        s_lshl_b32 s41, s38, 5
        v_add_u32 v13, s41, v9
        v_mul_u32_u24 v13, 2752, v13
        v_lshlrev_b32 v14, 3, v12
        v_add_u32 v14, s40, v14
        v_lshl_add_u32 v13, v14, 1, v13
        v_cmp_gt_u32 vcc, 1376, v14
        v_cmp_gt_u32 s[44:45], 32, v9
        s_and_b64 vcc, vcc, s[44:45]
        v_mov_b32 v15, 0x7ffffff0
        v_cndmask_b32 v%d, v15, v13, vcc
        """ % (64 * i, 48 + i))
    s("s_mov_b32 m0, s5")
    toks.append(s.vm("buffer_load_dwordx4 v48, s[12:15], 0 offen lds"))
    s("s_add_u32 m0, m0, 1024")
    toks.append(s.vm("buffer_load_dwordx4 v49, s[12:15], 0 offen lds"))
    s("s_add_u32 m0, m0, 1024")
    toks.append(s.vm("buffer_load_dwordx4 v48, s[32:35], 0 offen lds"))
    s("s_add_u32 m0, m0, 1024")
    toks.append(s.vm("buffer_load_dwordx4 v49, s[32:35], 0 offen lds"))
    s("""
    v_mul_u32_u24 v10, 48, v7
    v_add_u32 v10, s5, v10
    v_lshl_add_u32 v11, v4, 3, v10
    v_and_b32 v12, 1, v4
    v_lshlrev_b32 v12, 11, v12
    v_lshrrev_b32 v13, 1, v4
    v_lshl_add_u32 v12, v13, 3, v12
    v_add_u32 v12, v12, v10
    """)
    s.wait_vm(toks[-1])
    for t in range(2):
        s("ds_read_b64_tr_b16 v[%d:%d], v11 offset:%d" % (16 + 2 * t, 17 + 2 * t, t * 192))
        s("ds_read_b64_tr_b16 v[%d:%d], v11 offset:%d" % (20 + 2 * t, 21 + 2 * t, t * 192 + 2048))
        s("ds_read_b64_tr_b16 v[%d:%d], v12 offset:%d" % (24 + 2 * t, 25 + 2 * t, t * 192 + 32))
    s("""
    s_lshl_b32 s41, s36, 2
    s_add_u32 s41, s41, s39
    s_mul_i32 s42, s41, %d
    s_mul_i32 s43, s38, %d
    s_add_u32 s42, s42, s43
    s_add_u32 s42, s42, %d
    """ % (48 * KB, 3 * KB, PG))
    for sub in range(3):
        s("buffer_store_dwordx4 v[%d:%d], v3, s[8:11], s42 offen offset:%d" % (16 + 4 * sub, 19 + 4 * sub, sub * 1024))
    for sub in range(3):
        s("v_mfma_f32_16x16x32_bf16 v[%d:%d], v[40:43], v[%d:%d], 0" % (52 + 4 * sub, 55 + 4 * sub, 16 + 4 * sub, 19 + 4 * sub))
    s("""
    s_mul_i32 s42, s41, %d
    s_lshl_b32 s43, s38, 2
    s_add_u32 s42, s42, s43
    s_add_u32 s42, s42, %d
    v_lshlrev_b32 v11, 6, v1
    v_cmp_gt_u32 vcc, 16, v1
    s_and_saveexec_b64 s[44:45], vcc
    """ % (3 * KB, CSG))
    for sub in range(3):
        s("buffer_store_dword v%d, v11, s[8:11], s42 offen offset:%d" % (52 + 4 * sub, sub * 1024))
    s("s_endpgm")
    fin(s)

    L.append("P_X:")
    s = Stream()
    s("""
    s_sub_u32 s4, s4, %d
    s_lshr_b32 s36, s4, 8
    s_lshr_b32 s37, s4, 2
    s_and_b32 s37, s37, 63
    s_and_b32 s38, s4, 3
    s_mov_b32 s12, s16
    s_and_b32 s13, s17, 0xffff
    s_mov_b32 s14, %d
    v_and_b32 v8, 15, v1
    s_lshl_b32 s39, s37, 4
    v_add_u32 v8, s39, v8
    v_lshlrev_b32 v8, 1, v8
    v_add_u32 v8, s36, v8
    v_lshlrev_b32 v8, 10, v8
    v_lshl_add_u32 v8, v6, 4, v8
    s_lshl_b32 s39, s38, 8
    v_add_u32 v8, s39, v8
    """ % (T_X, 2048 * 512 * 2))
    for b in range(4):
        s("buffer_load_dwordx4 v[%d:%d], v8, s[12:15], 0 offen offset:%d" % (16 + 4 * b, 19 + 4 * b, b * 64))
    s("""
    s_lshl_b32 s40, s36, 20
    s_lshl_b32 s41, s37, 14
    s_add_u32 s40, s40, s41
    s_lshl_b32 s41, s38, 12
    s_add_u32 s40, s40, s41
    s_add_u32 s40, s40, %d
    s_lshl_b32 s42, s36, 17
    s_lshl_b32 s41, s37, 11
    s_add_u32 s42, s42, s41
    s_lshl_b32 s41, s38, 9
    s_add_u32 s42, s42, s41
    s_add_u32 s42, s42, %d
    v_lshlrev_b32 v12, 2, v1
    """ % (XB[0], ST[0]))
    for b in range(4):
        s("buffer_store_dwordx4 v[%d:%d], v3, s[8:11], s40 offen offset:%d" % (16 + 4 * b, 19 + 4 * b, b * 1024))
    for b in range(4):
        a, q = 44 + 2 * b, 45 + 2 * b
        s("v_mov_b32 v%d, 0" % a)
        s("v_mov_b32 v%d, 0" % q)
        for k in range(4):
            s("v_dot2c_f32_bf16 v%d, v%d, v40" % (a, 16 + 4 * b + k))
            s("v_dot2c_f32_bf16 v%d, v%d, v%d" % (q, 16 + 4 * b + k, 16 + 4 * b + k))
    for b in range(4):
        a, q = 44 + 2 * b, 45 + 2 * b
        s("v_permlane16_swap_b32 v%d, v%d" % (a, q))
        s("v_add_f32 v%d, v%d, v%d" % (a, a, q))
        s("v_mov_b32 v%d, v%d" % (q, a))
        s("v_permlane32_swap_b32 v%d, v%d" % (a, q))
        s("v_add_f32 v%d, v%d, v%d" % (a, a, q))
    s("""
    v_cmp_gt_u32 vcc, 32, v1
    s_and_saveexec_b64 s[44:45], vcc
    """)
    for b in range(4):
        s("buffer_store_dword v%d, v12, s[8:11], s42 offen offset:%d" % (44 + 2 * b, b * 128))
    s("s_endpgm")
    fin(s)

    L.append("P_Z:")
    s = Stream()
    s("""
    s_sub_u32 s4, s4, %d
    s_lshl_b32 s40, s4, 12
    s_add_u32 s40, s40, %d
    v_mov_b32 v16, 0
    v_mov_b32 v17, 0
    v_mov_b32 v18, 0
    v_mov_b32 v19, 0
    """ % (T_Z, FL))
    for b in range(4):
        s("buffer_store_dwordx4 v[16:19], v3, s[8:11], s40 offen offset:%d" % (b * 1024))
    fin(s)
    L.append("P_end:")
    L.append("  s_endpgm")
    return L
```

```python
from asmlib import *
from layout import *
from collections import deque
import pack

REG = [0, 65536]
MISC = 131072
STP = MISC
STF = MISC + 16384
CSL = STF + 2048
BIAS = CSL + 2048
JUNK = BIAS + 3072
LDS_BYTES = 163840
SCR = [65536, 98304]

vLane, vL16, vLO, vOst, vH1, vH2, vRed, vPollA, vPollB, vOut = 1, 2, 3, 4, 5, 6, 7, 8, 9, 10
vStatR, vStatW, vStI, vStV, vCs, vCsV, vB1, vOne, vP = 11, 12, 13, 14, 15, 16, 17, 18, 19
ACC = 20
FR = 68
RING = 88
TMP = 136
RES = 140
DV = 144

sW, sRB, sCG, sRB3, sCG3 = 16, 17, 18, 19, 20
sA1h, sA1m, sA3, sKw = 21, 22, 23, 24
sSt1, sSt3 = 25, 26
sM2, sM4 = 28, 30
sT, sT2, sT3 = 32, 33, 34
sOdd = 36
sOnes = 38
sCnt = 40
sBQ, sBW, sBG, sBD = 41, 42, 43, 44
sOst, sA2, sRes, sHst = 45, 46, 47, 48
sA4 = 64
sF1, sF3 = 50, 51
sP2, sP3, sP4, sP1a = 52, 53, 54, 55
sOutO = 56
sStO = 57
sK = 96
sTB = 49
sPoll = 35
sA1hw, sA1mw, sA3w, sKw1 = 63, 66, 67, 27
vPollH = 0
vFlag = 1
vL128 = 10
sPfQ, sPfW, sPfG, sPfD = 4, 5, 6, 3
sM16 = 100
sPoll2 = 62
sTag = 61
sA2b = 60
sE, sE2 = 58, 59
sT4 = 7
sTS = 68

LOG2E = 1.4426950408889634
import struct
def fbits(x): return struct.unpack("<I", struct.pack("<f", x))[0]

POLL_LIMIT = 200000


def Bx(f):
    return "a[%d:%d]" % (4 * f, 4 * f + 3)
def By(f):
    if f < 16:
        return "a[%d:%d]" % (192 + 4 * f, 195 + 4 * f)
    return "v[%d:%d]" % (DV + 4 * (f - 16), DV + 4 * (f - 16) + 3)
def V(n, c=1):
    return "v%d" % n if c == 1 else "v[%d:%d]" % (n, n + c - 1)

def flag_off(p, phase, h):
    return FL + ((p * 4 + phase) * 2 + h) * 32 * 256


class Main:
    def __init__(self, opts):
        self.opts = opts
        self.prof = int(opts.get("prof", 0))
        self.slow = []
        self.npoll = 0
        self.nts = 0
        self.tsnames5 = []
        self.fine_on = False
        self.tsnames = []

    def ts(self, s, name):
        if self.prof == 6:
            if name in ("start", "prolog") or name.startswith(("s1O", "s2O", "s3E", "s3O", "s4O")):
                k = self.nts
                self.nts += 2
                self.tsnames += [name, name + ".rt"]
                s("s_waitcnt lgkmcnt(0)")
                s("s_memtime s[0:1]")
                s("s_waitcnt lgkmcnt(0)")
                s("s_mov_b32 s%d, s0" % (sTS + k))
                s("s_memrealtime s[0:1]")
                s("s_waitcnt lgkmcnt(0)")
                s("s_mov_b32 s%d, s0" % (sTS + k + 1))
            return
        if self.prof == 4:
            self.mark(s, "seg:" + name)
            return
        if self.prof == 3:
            f = self.opts.get("fine", "").split(",")
            if name == f[0]:
                self.fine_on = True
                self.fs(s, "begin:" + name)
            elif name == f[-1] and self.fine_on:
                self.fs(s, "end:" + name)
                self.fine_on = False
            return
        if not self.prof or (self.prof in (2, 5, 7) and name not in ("start", "s4O.1", "s4.1.1")):
            return
        if name in ("mf3O.0", "mf1O.0", "mf3E.0", "mf1O.1"):
            return
        if name == "start" and self.opts.get("single", "1") == "1":
            self.tsnames += ["entry"]
            self.nts += 1
        k = self.nts
        self.nts += 1
        self.tsnames.append(name)
        assert sTS + k < 94, k
        s("s_waitcnt lgkmcnt(0)")
        s("s_memtime s[0:1]")
        s("s_waitcnt lgkmcnt(0)")
        s("s_mov_b32 s%d, s0" % (sTS + k))

    def fs(self, s, name):
        if self.prof == 4 and self.fine_on and not name.startswith("mf"):
            k = self.nts
            if sTS + k >= 94:
                return
            self.nts += 1
            self.tsnames.append(name)
            s("s_waitcnt lgkmcnt(0)")
            s("s_memtime s[0:1]")
            s("s_waitcnt lgkmcnt(0)")
            s("s_mov_b32 s%d, s0" % (sTS + k)).meta["glue"] = False
            return
        if self.prof != 3 or not self.fine_on:
            return
        k = self.nts
        if sTS + 2 * k + 1 >= (94 if name.startswith("end:") else 92):
            return
        self.nts += 1
        self.tsnames.append(name)
        s.append(Ins("s_memtime s[%d:%d]" % (sTS + 2 * k, sTS + 2 * k + 1), async_=True))

    def pause(self, s, n):
        i = Ins("@comment")
        i.meta["c"] = "pause"
        i.meta["pause"] = n
        s.append(i)

    def mark(self, s, name):
        if self.prof == 4:
            i = Ins("@mark")
            i.meta["name"] = name
            s.append(i)

    def resolve_marks(self, s):
        out = Stream()
        f = self.opts.get("fine", "").split(",")
        on = False
        for ins in s:
            if ins.text == "@mark":
                nm = ins.meta["name"]
                if nm == "seg:" + f[0]:
                    on = True
                if on and sTS + self.nts < 94:
                    k = self.nts
                    self.nts += 1
                    self.tsnames.append(nm)
                    out("s_waitcnt lgkmcnt(0)")
                    out("s_memtime s[0:1]")
                    out("s_waitcnt lgkmcnt(0)")
                    out("s_mov_b32 s%d, s0" % (sTS + k))
                if nm == "seg:" + f[-1]:
                    on = False
                continue
            out.append(ins)
        return out

    def poll_issue(self, s, soff, const, vaddr):
        s("s_add_u32 s%d, s%d, %d" % (sPoll, soff, const))
        s("buffer_load_dword v%d, v%d, s[8:11], s%d offen sc1" % (vP, vaddr, sPoll))
        self.mark(s, "pollI")

    def poll_check(self, s, vaddr, mask):
        n = self.npoll
        self.npoll += 1
        self.mark(s, "chkA")
        s("v_cmp_ne_u32 vcc, s%d, v%d" % (sTag, vP))
        if mask is not None:
            s("s_and_b64 vcc, vcc, s[%d:%d]" % (mask, mask + 1))
        s("s_cbranch_vccnz SLOW_%d" % n).meta["glue"] = True
        s("BACK_%d:" % n).meta["glue"] = True
        s("s_barrier")
        self.mark(s, "chkB")
        t = []
        t.append("SLOW_%d:" % n)
        if self.prof == 5:
            t.append("  s_memtime s[0:1]")
            t.append("  s_waitcnt lgkmcnt(0)")
            t.append("  s_mov_b32 s%d, s0" % (sTS + 2 + n))
            self.tsnames5.append("poll%d" % n)
        t.append("  s_mov_b32 s%d, 0" % sCnt)
        t.append("SPIN_%d:" % n)
        t.append("  buffer_load_dword v%d, v%d, s[8:11], s%d offen sc1" % (vP, vaddr, sPoll))
        t.append("  s_waitcnt vmcnt(0)")
        t.append("  v_cmp_ne_u32 vcc, s%d, v%d" % (sTag, vP))
        t.append("  s_nop 1")
        if mask is not None:
            t.append("  s_and_b64 vcc, vcc, s[%d:%d]" % (mask, mask + 1))
        t.append("  s_cbranch_vccz %s_%d" % ("DONE" if self.prof == 5 else "BACK", n))
        t.append("  s_add_u32 s%d, s%d, 1" % (sCnt, sCnt))
        t.append("  s_cmp_lt_u32 s%d, %d" % (sCnt, POLL_LIMIT))
        t.append("  s_cbranch_scc1 SPIN_%d" % n)
        t.append("  s_branch BACK_%d" % n)
        if self.prof == 5:
            t.append("DONE_%d:" % n)
            t.append("  s_memtime s[0:1]")
            t.append("  s_waitcnt lgkmcnt(0)")
            t.append("  s_sub_u32 s%d, s0, s%d" % (sTS + 2 + n, sTS + 2 + n))
            t.append("  s_branch BACK_%d" % n)
        self.slow += t

    def dep(self, phase, p, h):
        if phase == 1:
            return (sP1a, flag_off(p - 1, 3, h), vPollH, sM16)
        if phase == 2:
            return (sP2, flag_off(p, 0, h), vPollB, sM2)
        if phase == 3:
            return (sP3, flag_off(p, 1, h), vPollA, sM16)
        return (sP4, flag_off(p, 2, h), vPollB, sM4)

    def ev_poll_issue(self, phase, p, h):
        t = Stream()
        so, c, va, m = self.dep(phase, p, h)
        self.poll_issue(t, so, c, va)
        return t

    def ev_poll_check(self, phase, p, h):
        t = Stream()
        so, c, va, m = self.dep(phase, p, h)
        self.poll_check(t, va, m)
        [x for x in t if x.text == "s_barrier"][-1].meta["checked"] = (phase, p, h)
        return t

    def ev_sig(self, phase, p, h, tok):
        t = Stream()
        self.sig(t, tok, sF3 if phase == 3 else sF1, flag_off(p, phase - 1, h))
        return t

    def sig(self, s, tok, soff, const):
        self.mark(s, "sigA")
        s.wait_vm(tok)
        self.mark(s, "sigW")
        s("s_barrier")
        self.mark(s, "sigB")
        s("s_add_u32 s%d, s%d, %d" % (sT3, soff, const))
        s("buffer_store_dword v%d, v%d, s[8:11], s%d offen sc1" % (vOne, vFlag, sT3))

    def groupsB(self, reg, sbase, lo, hi):
        out = []
        if self.opts.get("nob") == "1" and sbase != sBQ:
            return out
        if self.opts.get("nob") == "2" and sbase == sBG:
            return out
        for f in range(lo, hi):
            g = Stream()
            if f == lo or f % 4 == 0:
                g("s_add_u32 s%d, s%d, %d" % (sTB, sbase, (f // 4) * 4096))
            g("buffer_load_dwordx4 %s, v%d, s[8:11], s%d offen offset:%d" % (reg(f), vL16, sTB, (f % 4) * 1024)).meta["bname"] = \
                {sBQ: "Q", sBW: "W", sBG: "G", sBD: "D"}[sbase]
            out.append(g)
        return out

    def pf(self, sbase, const=0):
        g = Stream()
        if self.opts.get("pf") != "1":
            return g
        g("s_mov_b32 m0, %d" % JUNK)
        g("s_add_u32 s%d, s%d, %d" % (sT, sbase, const))
        g("buffer_load_dword v%d, s[8:11], s%d offen lds" % (vL128, sT))
        return g

    def groupsA_lds(self, phase, p, h):
        if phase == 1:
            srcs = [(sA1hw, 0), (sA1mw, 0), (sA1mw, 16384)]
            xb, st, sst = XB[2 * p], ST[2 * p], sSt1
        else:
            srcs = [(sA3w, i * 16384) for i in range(4)]
            xb, st, sst = XB[2 * p + 1], ST[2 * p + 1], sSt3
        groups, ctok = [], []
        def stats_groups():
            tk = None
            for i in range(2):
                g = Stream()
                g("s_lshl_b32 s%d, s%d, 11" % (sT2, sW))
                g("s_add_u32 m0, s%d, %d" % (sT2, STP + h * 8192))
                g("s_add_u32 s%d, s%d, %d" % (sT, sst, st + h * 131072))
                tk = g.vm("buffer_load_dwordx4 v%d, s[8:11], s%d offen offset:%d sc1 lds" % (vL16, sT, i * 1024))
                if not (phase == 1 and p == 0):
                    g[-1].meta["dep"] = (phase, p, h)
                groups.append(g)
            return tk
        stok = None
        for c in range(4):
            tk = None
            for sub, (sr, cc) in enumerate(srcs):
                g = Stream()
                g("s_add_u32 m0, s%d, %d" % (sKw1, REG[h] + sub * 16384 + c * 4096))
                g("s_add_u32 s%d, s%d, %d" % (sT, sr, xb + h * MB + cc + c * 4096))
                tk = g.vm("buffer_load_dwordx4 v%d, s[8:11], s%d offen sc1 lds" % (vL16, sT))
                if not (phase == 1 and p == 0):
                    g[-1].meta["dep"] = (phase, p, h)
                groups.append(g)
            ctok.append(tk)
            if c == 0:
                stok = stats_groups()
        return groups, stok, ctok

    def frag_seq(self, phase):
        nks = 4 if phase == 2 else 11
        return [(ss, ks) for ss in (1, 0) for ks in range(nks)]

    def ringreg(self, n):
        return RING + 4 * (n % 12)

    def loadA24_one(self, g, phase, p, h, n, st=sT):
        ss, ks = self.frag_seq(phase)[n]
        if phase == 2:
            if ss == 0:
                g("s_add_u32 s%d, s%d, %d" % (st, sA2, OB[p] + h * MB))
            else:
                g("s_add_u32 s%d, s%d, %d" % (st, sA2b, OB[p] + h * MB))
            g("buffer_load_dwordx4 %s, v%d, s[8:11], s%d offen offset:%d sc1" % (V(self.ringreg(n), 4), vL16, st, ks * 1024)).meta["dep"] = (phase, p, h)
        else:
            g("s_add_u32 s%d, s%d, %d" % (st, sA4 + ss, HB[p] + h * 3 * MB + (ks // 4) * 4096))
            g("buffer_load_dwordx4 %s, v%d, s[8:11], s%d offen offset:%d sc1" % (V(self.ringreg(n), 4), vL16, st, (ks % 4) * 1024)).meta["dep"] = (phase, p, h)

    def groupsA24(self, phase, p, h):
        out = []
        for n in range(min(12, len(self.frag_seq(phase)))):
            g = Stream()
            self.loadA24_one(g, phase, p, h, n)
            out.append(g)
        g = Stream()
        g("s_add_u32 s%d, s%d, %d" % (sT, sRes, XB[2 * p + (0 if phase == 2 else 1)] + h * MB))
        g("buffer_load_dwordx4 %s, v%d, s[8:11], s%d offen sc1" % (V(RES, 4), vL16, sT))
        out.insert(min(4, len(out)), g)
        return out

    def stats_reduce(self, s, h, stok):
        a = RING
        adr = vStatR
        if h == 1:
            adr = RING + 8
            s("v_add_u32 v%d, 8192, v%d" % (adr, vStatR))
        s.wait_vm(stok)
        for i in range(4):
            s("ds_read2_b32 %s, v%d offset0:%d offset1:%d" % (V(a + 2 * i, 2), adr, 64 * i, 64 * i + 32))
        self.pause(s, 10)
        for (x, y) in ((0, 1), (2, 3), (4, 5), (6, 7), (0, 2), (4, 6), (0, 4)):
            s("v_add_f32 v%d, v%d, v%d" % (a + x, a + x, a + y))
        s("v_mov_b32 v%d, v%d" % (a + 1, a))
        s("v_permlane32_swap_b32 v%d, v%d" % (a, a + 1))
        s("v_add_f32 v%d, v%d, v%d" % (a, a, a + 1))
        s("v_mov_b32 v%d, v%d" % (a + 1, a))
        s("v_permlane16_swap_b32 v%d, v%d" % (a, a + 1))
        s("v_mul_f32 v%d, %s, v%d" % (a, "0x%08x" % fbits(-1.0 / 512), a))
        s("v_mul_f32 v%d, v%d, v%d" % (a + 2, a, a))
        s("v_fma_f32 v%d, v%d, s%d, -v%d" % (a + 1, a + 1, sK, a + 2))
        s("v_max_f32 v%d, 0, v%d" % (a + 1, a + 1))
        s("v_add_f32 v%d, s%d, v%d" % (a + 1, sK + 1, a + 1))
        s("v_rsq_f32 v%d, v%d" % (a + 1, a + 1))
        s("v_cndmask_b32 v%d, v%d, v%d, s[%d:%d]" % (a, a, a + 1, sOdd, sOdd + 1))
        self.stat_tok = Tok("statw")
        s("ds_write_b32 v%d, v%d offset:%d" % (vStatW, a, h * 1024), tok=self.stat_tok)

    def epi_pref(self, phase, h):
        hoff = h * 1024
        pub = Stream()
        pub.wait_ds(self.stat_tok)
        pub("s_barrier")
        if phase == 3:
            return {58: list(pub), 60: ["ds_read_b128 %s, v%d offset:768" % (V(68, 4), vCs)],
                    61: ["ds_read_b128 %s, v%d offset:832" % (V(72, 4), vCs)],
                    62: ["ds_read_b128 %s, v%d offset:896" % (V(76, 4), vCs)],
                    63: ["ds_read_b64 %s, v%d offset:%d" % (V(80, 2), vStI, hoff)]}
        return {37: list(pub), 38: ["ds_read_b128 %s, v%d offset:%d" % (V(52, 4), vStV, hoff)],
                39: ["ds_read_b128 %s, v%d offset:%d" % (V(56, 4), vStV, hoff + 256)],
                40: ["ds_read_b128 %s, v%d offset:%d" % (V(60, 4), vStV, hoff + 64)],
                41: ["ds_read_b128 %s, v%d offset:%d" % (V(64, 4), vStV, hoff + 256 + 64)],
                43: ["ds_read_b128 %s, v%d offset:64" % (V(80, 4), vCs)],
                44: ["ds_read_b32 v84, v%d" % vCsV],
                45: ["ds_read_b64 %s, v%d offset:%d" % (V(68, 2), vStI, hoff), "ds_read_b64 %s, v%d offset:%d" % (V(70, 2), vStI, hoff + 128)],
                46: ["ds_read_b64 %s, v%d offset:%d" % (V(72, 2), vStI, hoff + 256)],
                47: ["ds_read_b128 %s, v%d offset:0" % (V(76, 4), vCs)]}

    def mf13(self, phase, h):
        base = vL16 if h == 0 else vLO
        nsub = 3 if phase == 1 else 4
        nfr = 16 * nsub
        def rd(n):
            ks, sub = divmod(n, nsub)
            out = []
            if sub == 0 and ks % 4 == 0:
                out.append(("chunk", ks // 4))
            out.append("ds_read_b128 %s, v%d offset:%d" % (V(FR + 4 * (n % 5), 4), base, sub * 16384 + ks * 1024))
            return out
        pre = [x for n in range(5) for x in rd(n)]
        pref = self.epi_pref(phase, h)
        steps = []
        mm = "v_mfma_f32_16x16x32_bf16"
        Q = [None, ACC, ACC + 4]
        K = [ACC + 8, ACC + 12, ACC + 16]
        Vv = [ACC + 20, ACC + 24, ACC + 28]
        for ks in range(16):
            c = (lambda r: "0" if ks == 0 else V(r, 4))
            for sub in range(nsub):
                n = nsub * ks + sub
                x = V(FR + 4 * (n % 5), 4)
                grp = []
                if phase == 1:
                    if sub > 0:
                        grp.append("%s %s, %s, %s, %s" % (mm, V(Q[sub], 4), Bx(3 * ks), x, c(Q[sub])))
                    grp.append("%s %s, %s, %s, %s" % (mm, V(K[sub], 4), Bx(3 * ks + 1), x, c(K[sub])))
                    grp.append("%s %s, %s, %s, %s" % (mm, V(Vv[sub], 4), x, Bx(3 * ks + 2), c(Vv[sub])))
                else:
                    for j in range(3):
                        r = ACC + 12 * sub + 4 * j
                        grp.append("%s %s, %s, %s, %s" % (mm, V(r, 4), Bx(3 * ks + j), x, c(r)))
                for i, m in enumerate(grp):
                    bop = [o.strip() for o in m.split(",") if o.strip().startswith("a[")][0]
                    st = [Ins(m, need=(bop, "Q" if phase == 1 else "G"))]
                    if i == len(grp) - 1 and n + 5 < nfr:
                        st += rd(n + 5)
                    if i == len(grp) - 1:
                        st += pref.get(n, [])
                    steps.append(st)
        return pre, steps

    def mf24(self, phase, p, h):
        seq = self.frag_seq(phase)
        steps = []
        for n, (ss, ks) in enumerate(seq):
            x = V(self.ringreg(n), 4)
            for jj in range(4):
                r = ACC + 16 * ss + 4 * jj
                st = [Ins("v_mfma_f32_16x16x32_bf16 %s, %s, %s, %s" % (V(r, 4), By(4 * ks + jj), x, "0" if ks == 0 else V(r, 4)),
                          need=(By(4 * ks + jj), "W" if phase == 2 else "D"))]
                if n + 12 < len(seq):
                    t = Stream()
                    self.loadA24_one(t, phase, p, h, n + 12, sT4)
                    if jj == 2:
                        st.append(t[0])
                    if jj == 3:
                        st.append(t[1])
                steps.append(st)
        return steps, 2 * len(seq)

    def red_writes(self, xs, h):
        t = Stream()
        so = SCR[h] - 65536
        for x in xs:
            t("v_xor_b32 v%d, %d, v%d" % (TMP + x - 1, x << 13, vRed))
        for x in xs:
            for jl in range(2):
                t("ds_write_b128 v%d, %s offset:%d" % (TMP + x - 1, V(ACC + 8 * x + 4 * jl, 4), so + x * 2048 + jl * 1024))
        return t

    def seg24_mf(self, s, phase, p, h, at=None):
        steps, half = self.mf24(phase, p, h)
        at = dict(at or {})
        w = self.red_writes((2, 3), h)
        at.setdefault(half + 9, []).insert(0, w)
        self.run_mf(s, steps, at=at)

    def epi1(self, s, p, h):
        Q = [None, ACC, ACC + 4]
        K = [ACC + 8, ACC + 12, ACC + 16]
        Vv = [ACC + 20, ACC + 24, ACC + 28]
        SP = [None, 52, 60]
        SC = [None, 56, 64]
        st = [68, 70, 72]
        csq, csk, csv, cq = 76, 80, 84, 86
        hoff = h * 1024
        NM = [52, 60, 52]
        RS = [56, 64, 56]
        def rdv(sub):
            s("ds_read_b128 %s, v%d offset:%d" % (V(NM[sub], 4), vStV, hoff + sub * 64))
            s("ds_read_b128 %s, v%d offset:%d" % (V(RS[sub], 4), vStV, hoff + 256 + sub * 64))
        bc0 = "op_sel_hi:[0,1,1]"
        for sub in (1, 2):
            for hh in (0, 2):
                s("v_pk_fma_f32 %s, %s, %s, %s %s" % (V(Q[sub] + hh, 2), V(st[sub], 2), V(csq + hh, 2), V(Q[sub] + hh, 2), bc0))
            s("v_mul_f32 v%d, s%d, v%d" % (cq, sK + 2, st[sub] + 1))
            for hh in (0, 2):
                s("v_pk_mul_f32 %s, %s, %s op_sel_hi:[1,0]" % (V(Q[sub] + hh, 2), V(Q[sub] + hh, 2), V(cq, 2)))
            s("v_cvt_pk_bf16_f32 v%d, v%d, v%d" % (Q[sub], Q[sub], Q[sub] + 1))
            s("v_cvt_pk_bf16_f32 v%d, v%d, v%d" % (Q[sub] + 1, Q[sub] + 2, Q[sub] + 3))
        for sub in range(3):
            for hh in (0, 2):
                s("v_pk_fma_f32 %s, %s, %s, %s %s" % (V(K[sub] + hh, 2), V(st[sub], 2), V(csk + hh, 2), V(K[sub] + hh, 2), bc0))
            for hh in (0, 2):
                s("v_pk_mul_f32 %s, %s, %s op_sel:[0,1] op_sel_hi:[1,1]" % (V(K[sub] + hh, 2), V(K[sub] + hh, 2), V(st[sub], 2)))
            s("v_cvt_pk_bf16_f32 v%d, v%d, v%d" % (K[sub], K[sub], K[sub] + 1))
            s("v_cvt_pk_bf16_f32 v%d, v%d, v%d" % (K[sub] + 1, K[sub] + 2, K[sub] + 3))
        for sub in range(3):
            for hh in (0, 2):
                s("v_pk_fma_f32 %s, %s, %s, %s op_sel_hi:[1,0,1]" % (V(Vv[sub] + hh, 2), V(NM[sub] + hh, 2), V(csv, 2), V(Vv[sub] + hh, 2)))
            for hh in (0, 2):
                s("v_pk_mul_f32 %s, %s, %s" % (V(Vv[sub] + hh, 2), V(Vv[sub] + hh, 2), V(RS[sub] + hh, 2)))
            if sub == 0:
                rdv(2)
            s("v_cvt_pk_bf16_f32 v%d, v%d, v%d" % (Vv[sub], Vv[sub], Vv[sub] + 1))
            s("v_cvt_pk_bf16_f32 v%d, v%d, v%d" % (Vv[sub] + 1, Vv[sub] + 2, Vv[sub] + 3))
        bp1, bp, bc = 68, 72, 76
        s("v_add_u32 v%d, %d, v%d" % (TMP + 2, BIAS, vL16))
        s("ds_read_b128 %s, v%d" % (V(bp1, 4), vB1))
        s("ds_read_b128 %s, v%d offset:1024" % (V(bp, 4), TMP + 2))
        s("ds_read_b128 %s, v%d offset:0" % (V(bc, 4), TMP + 2))
        mm = "v_mfma_f32_16x16x16_bf16"
        s("%s %s, %s, %s, %s" % (mm, V(SP[1], 4), V(K[0], 2), V(Q[1], 2), V(bp1, 4)))
        s("%s %s, %s, %s, %s" % (mm, V(SC[1], 4), V(K[1], 2), V(Q[1], 2), V(bc, 4)))
        s("%s %s, %s, %s, %s" % (mm, V(SP[2], 4), V(K[1], 2), V(Q[2], 2), V(bp, 4)))
        s("%s %s, %s, %s, %s" % (mm, V(SC[2], 4), V(K[2], 2), V(Q[2], 2), V(bc, 4)))
        m = {1: 80, 2: 84}
        l = {1: 82, 2: 86}
        for sub in (1, 2):
            a, b = SP[sub], SC[sub]
            s("v_max3_f32 v%d, v%d, v%d, v%d" % (m[sub], a, a + 1, a + 2))
            s("v_max3_f32 v%d, v%d, v%d, v%d" % (m[sub] + 1, a + 3, b, b + 1))
            s("v_max3_f32 v%d, v%d, v%d, v%d" % (m[sub], m[sub], b + 2, b + 3))
            s("v_max_f32 v%d, v%d, v%d" % (m[sub], m[sub], m[sub] + 1))
        for sw in ("v_permlane16_swap_b32", "v_permlane32_swap_b32"):
            for sub in (1, 2):
                s("v_mov_b32 v%d, v%d" % (m[sub] + 1, m[sub]))
            for sub in (1, 2):
                s("%s v%d, v%d" % (sw, m[sub], m[sub] + 1))
            for sub in (1, 2):
                s("v_max_f32 v%d, v%d, v%d" % (m[sub], m[sub], m[sub] + 1))
        for sub in (1, 2):
            for r in (SP[sub], SP[sub] + 2, SC[sub], SC[sub] + 2):
                s("v_pk_add_f32 %s, %s, %s op_sel_hi:[1,0] neg_lo:[0,1] neg_hi:[0,1]" % (V(r, 2), V(r, 2), V(m[sub], 2)))
        for sub in (1, 2):
            for r in range(4):
                s("v_exp_f32 v%d, v%d" % (SP[sub] + r, SP[sub] + r))
                s("v_exp_f32 v%d, v%d" % (SC[sub] + r, SC[sub] + r))
        for sub in (1, 2):
            a, b = SP[sub], SC[sub]
            s("v_pk_add_f32 %s, %s, %s" % (V(l[sub], 2), V(a, 2), V(a + 2, 2)))
            s("v_pk_add_f32 %s, %s, %s" % (V(m[sub], 2), V(b, 2), V(b + 2, 2)))
            s("v_pk_add_f32 %s, %s, %s" % (V(l[sub], 2), V(l[sub], 2), V(m[sub], 2)))
            s("v_add_f32 v%d, v%d, v%d" % (l[sub], l[sub], l[sub] + 1))
        for sub in (1, 2):
            for r in (SP[sub], SC[sub]):
                s("v_cvt_pk_bf16_f32 v%d, v%d, v%d" % (r, r, r + 1))
                s("v_cvt_pk_bf16_f32 v%d, v%d, v%d" % (r + 1, r + 2, r + 3))
        for sub in (1, 2):
            s("%s %s, %s, %s, 0" % (mm, V(Q[sub], 4), V(Vv[sub - 1], 2), V(SP[sub], 2)))
        for sub in (1, 2):
            s("%s %s, %s, %s, %s" % (mm, V(Q[sub], 4), V(Vv[sub], 2), V(SC[sub], 2), V(Q[sub], 4)))
        for sw in ("v_permlane16_swap_b32", "v_permlane32_swap_b32"):
            for sub in (1, 2):
                s("v_mov_b32 v%d, v%d" % (l[sub] + 1, l[sub]))
            for sub in (1, 2):
                s("%s v%d, v%d" % (sw, l[sub], l[sub] + 1))
            for sub in (1, 2):
                s("v_add_f32 v%d, v%d, v%d" % (l[sub], l[sub], l[sub] + 1))
        for sub in (1, 2):
            s("v_rcp_f32 v%d, v%d" % (l[sub], l[sub]))
        for sub in (1, 2):
            for hh in (0, 2):
                s("v_pk_mul_f32 %s, %s, %s op_sel_hi:[1,0]" % (V(Q[sub] + hh, 2), V(Q[sub] + hh, 2), V(l[sub], 2)))
        o = ACC
        s("v_cvt_pk_bf16_f32 v%d, v%d, v%d" % (o, o, o + 1))
        s("v_cvt_pk_bf16_f32 v%d, v%d, v%d" % (o + 1, o + 2, o + 3))
        s("v_cvt_pk_bf16_f32 v%d, v%d, v%d" % (o + 2, o + 4, o + 5))
        s("v_cvt_pk_bf16_f32 v%d, v%d, v%d" % (o + 3, o + 6, o + 7))
        s("v_permlane16_swap_b32 v%d, v%d" % (o, o + 2))
        s("v_permlane16_swap_b32 v%d, v%d" % (o + 1, o + 3))
        s("s_add_u32 s%d, s%d, %d" % (sE, sOst, OB[p] + h * MB))
        return s.vm("buffer_store_dwordx4 %s, v%d, s[8:11], s%d offen sc1" % (V(o, 4), vOst, sE))

    def epi3(self, s, p, h):
        csG, csU, csM = 68, 72, 76
        stp = [80, 82]
        c1 = 84
        hoff = h * 1024
        bq = TMP
        for sub in range(4):
            G, U, M = ACC + 12 * sub, ACC + 12 * sub + 4, ACC + 12 * sub + 8
            st = stp[sub & 1]
            if sub < 3:
                s("ds_read_b64 %s, v%d offset:%d" % (V(stp[(sub + 1) & 1], 2), vStI, hoff + (sub + 1) * 128))
            for (r, cs) in ((M, csM), (G, csG), (U, csU)):
                for hh in (0, 2):
                    s("v_pk_fma_f32 %s, %s, %s, %s op_sel_hi:[0,1,1]" % (V(r + hh, 2), V(st, 2), V(cs + hh, 2), V(r + hh, 2)))
            s("v_mul_f32 v%d, s%d, v%d" % (c1, sK + 3, st + 1))
            s("v_permlane16_swap_b32 v%d, v%d" % (M, M + 2))
            s("v_permlane16_swap_b32 v%d, v%d" % (M + 1, M + 3))
            gates = (G, G + 2, M)
            ups = (U, U + 2, M + 2)
            for r in gates:
                s("v_pk_mul_f32 %s, %s, %s op_sel_hi:[1,0]" % (V(r, 2), V(r, 2), V(c1, 2)))
            for r in gates:
                s("v_exp_f32 v%d, v%d" % (r, r))
                s("v_exp_f32 v%d, v%d" % (r + 1, r + 1))
            for r in ups:
                s("v_pk_mul_f32 %s, %s, %s op_sel:[0,1] op_sel_hi:[1,1]" % (V(r, 2), V(r, 2), V(st, 2)))
            for r in gates:
                s("v_pk_add_f32 %s, %s, s[%d:%d]" % (V(r, 2), V(r, 2), sOnes, sOnes + 1))
            for r in gates:
                s("v_rcp_f32 v%d, v%d" % (r, r))
                s("v_rcp_f32 v%d, v%d" % (r + 1, r + 1))
            for g, u in zip(gates, ups):
                s("v_pk_mul_f32 %s, %s, %s" % (V(u, 2), V(u, 2), V(g, 2)))
            dst = ACC + 12 * (sub & ~1) + 2 * (sub & 1)
            s("v_cvt_pk_bf16_f32 v%d, v%d, v%d" % (dst, U, U + 1))
            s("v_cvt_pk_bf16_f32 v%d, v%d, v%d" % (dst + 1, U + 2, U + 3))
            s("v_cvt_pk_bf16_f32 v%d, v%d, v%d" % (bq + sub, M + 2, M + 3))
        s("s_add_u32 s%d, s%d, %d" % (sE, sHst, HB[p] + h * 3 * MB))
        for pr in range(2):
            d = ACC + 24 * pr
            s("v_permlane16_swap_b32 v%d, v%d" % (d, d + 2))
            s("v_permlane16_swap_b32 v%d, v%d" % (d + 1, d + 3))
            if pr == 1:
                s("s_add_u32 s%d, s%d, %d" % (sE2, sE, 2 * 48 * KB))
            s.vm("buffer_store_dwordx4 %s, v%d, s[8:11], s%d offen sc1" % (V(d, 4), vH1, sE if pr == 0 else sE2))
        s("v_permlane16_swap_b32 v%d, v%d" % (bq, bq + 1))
        s("v_permlane16_swap_b32 v%d, v%d" % (bq + 2, bq + 3))
        s("v_permlane32_swap_b32 v%d, v%d" % (bq, bq + 2))
        s("v_permlane32_swap_b32 v%d, v%d" % (bq + 1, bq + 3))
        return s.vm("buffer_store_dwordx4 %s, v%d, s[8:11], s%d offen sc1" % (V(bq, 4), vH2, sE))

    def epi24(self, s, phase, p, h, sig=None):
        so = SCR[h] - 65536
        a = ACC
        s.extend(self.red_writes((1,), h))
        if sig is not None:
            s.wait_vm(sig[3])
        s.wait_ds()
        s("s_barrier")
        if sig is not None:
            s("s_add_u32 s%d, s%d, %d" % (sT3, sF3 if sig[0] == 3 else sF1, flag_off(sig[1], sig[0] - 1, sig[2])))
            s("buffer_store_dword v%d, v%d, s[8:11], s%d offen sc1" % (vOne, vFlag, sT3))
        for x in (1, 2, 3):
            for jl in range(2):
                s("ds_read_b128 %s, v%d offset:%d" % (V(a + 8 * x + 4 * jl, 4), vRed, so + x * 2048 + jl * 1024))
        r = 52
        for i in range(4):
            s("v_lshlrev_b32 v%d, 16, v%d" % (r + 2 * i, RES + i))
            s("v_and_b32 v%d, 0xffff0000, v%d" % (r + 2 * i + 1, RES + i))
        for i in range(4):
            s("v_pk_add_f32 %s, %s, %s" % (V(a + 2 * i, 2), V(a + 2 * i, 2), V(r + 2 * i, 2)))
        for x in (1, 2, 3):
            for i in range(4):
                s("v_pk_add_f32 %s, %s, %s" % (V(a + 2 * i, 2), V(a + 2 * i, 2), V(a + 8 * x + 2 * i, 2)))
        o = 60
        for i in range(4):
            s("v_cvt_pk_bf16_f32 v%d, v%d, v%d" % (o + i, a + 2 * i, a + 2 * i + 1))
        final = (phase == 4 and p == 1)
        if final:
            s("s_add_u32 s%d, s%d, %d" % (sE, sOutO, h * 1024))
            s("v_and_b32 v52, 0xf0, v%d" % vL16)
            s("v_lshlrev_b32 v52, 7, v52")
            s("v_lshrrev_b32 v53, 8, v%d" % vL16)
            s("v_lshl_add_u32 v52, v53, 4, v52")
            return s.vm("buffer_store_dwordx4 %s, v52, s[12:15], s%d offen" % (V(o, 4), sE))
        xi = 2 * p + (1 if phase == 2 else 2)
        s("s_add_u32 s%d, s%d, %d" % (sE, sRes, XB[xi] + h * MB))
        s.vm("buffer_store_dwordx4 %s, v%d, s[8:11], s%d offen sc1" % (V(o, 4), vL16, sE))
        u = 52
        s("v_pk_add_f32 %s, %s, %s" % (V(u, 2), V(a, 2), V(a + 2, 2)))
        s("v_pk_add_f32 %s, %s, %s" % (V(u + 2, 2), V(a + 4, 2), V(a + 6, 2)))
        s("v_pk_mul_f32 %s, %s, %s" % (V(u + 4, 2), V(a, 2), V(a, 2)))
        s("v_pk_add_f32 %s, %s, %s" % (V(u, 2), V(u, 2), V(u + 2, 2)))
        for i in (1, 2, 3):
            s("v_pk_fma_f32 %s, %s, %s, %s" % (V(u + 4, 2), V(a + 2 * i, 2), V(a + 2 * i, 2), V(u + 4, 2)))
        s("v_add_f32 v%d, v%d, v%d" % (u, u, u + 1))
        s("v_add_f32 v%d, v%d, v%d" % (u + 1, u + 4, u + 5))
        s("v_permlane16_swap_b32 v%d, v%d" % (u, u + 1))
        s("v_add_f32 v%d, v%d, v%d" % (u, u, u + 1))
        s("v_mov_b32 v%d, v%d" % (u + 1, u))
        s("v_permlane32_swap_b32 v%d, v%d" % (u, u + 1))
        s("v_add_f32 v%d, v%d, v%d" % (u, u, u + 1))
        s("s_add_u32 s%d, s%d, %d" % (sE, sStO, ST[xi] + h * 131072))
        s("v_lshrrev_b32 v%d, 2, v%d" % (u + 2, vL16))
        s("s_mov_b32 exec_hi, 0")
        tok = s.vm("buffer_store_dword v%d, v%d, s[8:11], s%d offen sc1" % (u, u + 2, sE))
        s("s_mov_b32 exec_hi, -1")
        return tok

    def codepf(self, sw=16):
        if self.opts.get("nocpf") == "1":
            return ""
        n = int(self.opts.get("cpf", 2))
        t = ["s_getpc_b64 s[56:57]", "M_pc:", "s_lshl_b32 s58, s%d, 13" % sw, "v_lshlrev_b32 v132, 7, v1", "v_add_u32 v132, s58, v132"]
        for i in range(n):
            t.append("v_min_u32 v133, M_last-M_pc, v132")
            t.append("global_load_dword v%d, v133, s[56:57]" % (134 + i))
            if i < n - 1:
                t.append("v_add_u32 v132, 0x8000, v132")
        return "\n".join(t)

    def prologue(self, s):
        single = self.opts.get("single", "1") == "1"
        s("""
        s_load_dwordx2 s[4:5], s[0:1], 72
        s_load_dwordx2 s[6:7], s[0:1], 56
        """)
        if not single:
            s("s_cmp_ge_u32 s2, 256")
            s("s_cbranch_scc1 M_end")
        s("""
        v_lshrrev_b32 v20, 6, v0
        v_and_b32 v%d, 63, v0
        v_readfirstlane_b32 s%d, v20
        v_lshlrev_b32 v%d, 4, v%d
        @CODEPF
        s_and_b32 s32, s2, 7
        s_lshr_b32 s33, s2, 3
        s_lshr_b32 s34, s32, 1
        s_and_b32 s35, s32, 1
        """.replace("@CODEPF", "" if single else self.codepf()) % (vLane, sW, vL16, vLane))
        s("""
        s_lshl_b32 s{rb}, s34, 3
        s_lshr_b32 s36, s33, 2
        s_add_u32 s{rb}, s{rb}, s36
        s_lshl_b32 s{cg}, s35, 2
        s_and_b32 s36, s33, 3
        s_add_u32 s{cg}, s{cg}, s36
        s_lshl_b32 s{rb3}, s34, 2
        s_lshr_b32 s36, s33, 3
        s_add_u32 s{rb3}, s{rb3}, s36
        s_lshl_b32 s{cg3}, s35, 3
        s_and_b32 s36, s33, 7
        s_add_u32 s{cg3}, s{cg3}, s36
        s_waitcnt lgkmcnt(0)
        s_mov_b32 s8, s4
        s_and_b32 s9, s5, 0xffff
        s_mov_b32 s10, 0x10000000
        s_mov_b32 s11, 0x20000
        s_mov_b32 s12, s6
        s_and_b32 s13, s7, 0xffff
        s_mov_b32 s14, 0x200000
        s_mov_b32 s15, 0x20000
        """.format(rb=sRB, cg=sCG, rb3=sRB3, cg3=sCG3))

        s("""
        s_lshl_b32 s36, s{cg}, 2
        s_add_u32 s36, s36, s{w}
        s_mul_i32 s{bq}, s36, {k48}
        s_add_u32 s{bq}, s{bq}, {PQ}
        s_lshl_b32 s{bw}, s36, 14
        s_add_u32 s{bw}, s{bw}, {PW}
        s_mul_i32 s{bd}, s36, {k44}
        s_add_u32 s{bd}, s{bd}, {PD}
        s_lshl_b32 s37, s{cg3}, 2
        s_add_u32 s37, s37, s{w}
        s_mul_i32 s{bg}, s37, {k48}
        s_add_u32 s{bg}, s{bg}, {PG}
        s_lshl_b32 s{kw}, s{w}, 12
        s_lshl_b32 s{a1m}, s{rb}, 15
        s_lshl_b32 s{a3}, s{rb3}, 16
        s_sub_u32 s{a1h}, s{a1m}, 16384
        s_max_i32 s{a1h}, s{a1h}, 0
        """.format(cg=sCG, w=sW, bq=sBQ, bw=sBW, bd=sBD, bg=sBG, cg3=sCG3, kw=sKw, a1m=sA1m, a3=sA3, a1h=sA1h, rb=sRB, rb3=sRB3,
                   k48=48 * KB, k44=44 * KB, PQ=PQ, PW=PW, PD=PD, PG=PG))
        s("""
        s_lshl_b32 s38, s{rb}, 1
        s_add_u32 s38, s38, s{w}
        s_sub_u32 s38, s38, 1
        s_max_i32 s38, s38, 0
        s_lshl_b32 s{st1}, s38, 11
        s_lshl_b32 s38, s{rb3}, 2
        s_add_u32 s38, s38, s{w}
        s_lshl_b32 s{st3}, s38, 11
        """.format(rb=sRB, w=sW, st1=sSt1, rb3=sRB3, st3=sSt3))
        s("""
        s_lshr_b32 s38, s{w}, 1
        s_and_b32 s39, s{w}, 1
        s_lshl_b32 s40, s{cg}, 1
        s_add_u32 s59, s40, s38
        s_lshl_b32 s59, s59, 10
        s_lshl_b32 s60, s39, 9
        s_add_u32 s59, s59, s60
        s_add_u32 s{ost}, s59, s{a1m}
        """.format(w=sW, cg=sCG, ost=sOst, a1m=sA1m))
        s("""
        s_lshl_b32 s59, s38, 14
        s_add_u32 s59, s59, s{a1m}
        s_add_u32 s{a2}, s59, s{kw}
        s_add_u32 s60, s40, s39
        s_lshl_b32 s61, s60, 10
        s_add_u32 s{res}, s59, s61
        s_lshr_b32 s{sto}, s59, 3
        s_lshl_b32 s61, s60, 7
        s_add_u32 s{sto}, s{sto}, s61
        """.format(a1m=sA1m, a2=sA2, kw=sKw, res=sRes, sto=sStO))
        s("""
        s_lshl_b32 s59, s{rb}, 1
        s_add_u32 s59, s59, s38
        s_lshl_b32 s{out}, s59, 15
        s_lshl_b32 s61, s60, 6
        s_add_u32 s{out}, s{out}, s61
        """.format(rb=sRB, out=sOutO))
        s("""
        s_mul_i32 s{hst}, s{rb3}, {k192}
        s_mul_i32 s61, s{cg3}, 12
        s_mul_i32 s62, s{w}, 3
        s_add_u32 s61, s61, s62
        s_lshl_b32 s61, s61, 8
        s_add_u32 s{hst}, s{hst}, s61
        s_mul_i32 s62, s{w}, {k11}
        s_mul_i32 s{a4}, s59, {k48}
        s_add_u32 s{a4}, s{a4}, s62
        s_xor_b32 s59, s59, 1
        s_mul_i32 s{a4b}, s59, {k48}
        s_add_u32 s{a4b}, s{a4b}, s62
        """.format(hst=sHst, rb3=sRB3, cg3=sCG3, w=sW, a4=sA4, a4b=sA4 + 1, k192=192 * KB, k11=11 * KB, k48=48 * KB))
        return

    def prologue2(self, s):
        s("""
        s_lshl_b32 s59, s{cg}, 2
        s_lshl_b32 s60, s{rb}, 8
        s_add_u32 s{f1}, s60, s59
        s_lshl_b32 s59, s{cg3}, 2
        s_lshl_b32 s61, s{rb3}, 8
        s_add_u32 s{f3}, s61, s59
        s_mov_b32 s{p2}, s60
        s_lshl_b32 s{p3}, s{rb3}, 9
        s_lshr_b32 s61, s{rb}, 1
        s_lshl_b32 s{p4}, s61, 8
        s_cmp_eq_u32 s{rb}, 0
        s_cselect_b32 s61, 0, 256
        s_sub_u32 s{p1}, s60, s61
        v_lshrrev_b32 v20, 3, v{lane}
        v_mul_lo_u32 v20, v20, s61
        v_and_b32 v21, 7, v{lane}
        v_lshl_add_u32 v{ph}, v21, 2, v20
        """.format(lane=vLane, ph=vPollH, cg=sCG, w=sW, rb=sRB, f1=sF1, cg3=sCG3, rb3=sRB3, f3=sF3, p2=sP2, p3=sP3, p4=sP4, p1=sP1a))
        s("""
        s_cmp_eq_u32 s{w}, 1
        s_cselect_b32 s{m2}, 0xff, 0
        s_mov_b32 s{m2h}, 0
        s_cselect_b32 s{m4}, 0x7fff, 0
        s_mov_b32 s{m4h}, 0
        s_cselect_b32 s{m16}, 0xffff, 0
        s_mov_b32 s{m16h}, 0
        s_mov_b32 s{odd}, 0xffff0000
        s_mov_b32 s{oddh}, 0xffff0000
        s_mov_b32 s{one}, 1.0
        s_mov_b32 s{oneh}, 1.0
        s_mov_b32 s{k0}, {c0}
        s_mov_b32 s{k1}, {c1}
        s_mov_b32 s{k2}, {c2}
        s_mov_b32 s{k3}, {c3}
        """.format(w=sW, m2=sM2, m2h=sM2 + 1, m4=sM4, m4h=sM4 + 1, m16=sM16, m16h=sM16 + 1, odd=sOdd, oddh=sOdd + 1, one=sOnes, oneh=sOnes + 1,
                   k0=sK, k1=sK + 1, k2=sK + 2, k3=sK + 3,
                   c0="0x%08x" % fbits(1.0 / 512), c1="0x%08x" % fbits(1e-5), c2="0x%08x" % fbits(0.25 * LOG2E), c3="0x%08x" % fbits(-LOG2E)))
        s("""
        v_and_b32 v20, 15, v{lane}
        v_lshrrev_b32 v21, 4, v{lane}
        v_add_u32 v{lo}, 65536, v{l16}
        v_lshlrev_b32 v22, 4, v20
        v_and_b32 v23, 1, v21
        v_lshrrev_b32 v24, 1, v21
        v_lshl_add_u32 v25, v24, 8, v22
        v_lshl_add_u32 v{ost}, v23, 14, v25
        v_mul_u32_u24 v26, {k48}, v23
        v_add_u32 v{h1}, v26, v25
        v_mul_u32_u24 v26, {k48}, v21
        v_add_u32 v26, v26, v22
        v_add_u32 v{h2}, 512, v26
        s_lshl_b32 s59, s{w}, 13
        s_add_u32 s59, s59, 65536
        v_add_u32 v{red}, s59, v{l16}
        v_lshrrev_b32 v26, 3, v{lane}
        v_and_b32 v27, 7, v{lane}
        v_lshlrev_b32 v27, 2, v27
        v_lshl_add_u32 v{pa}, v26, 8, v27
        v_lshlrev_b32 v{pb}, 2, v{lane}
        s_cmp_eq_u32 s{w}, 1
        s_cselect_b32 s59, 16, 0
        v_cmp_gt_u32 vcc, s59, v{lane}
        v_mov_b32 v27, 0x7ffffff0
        v_cndmask_b32 v{pa}, v27, v{pa}, vcc
        v_cndmask_b32 v{pb}, v27, v{pb}, vcc
        v_cndmask_b32 v{ph}, v27, v{ph}, vcc
        v_lshlrev_b32 v{out}, 7, v{lane}
        v_cmp_gt_u32 vcc, 16, v{lane}
        v_cndmask_b32 v{out}, v27, v{out}, vcc
        v_mov_b32 v{one}, 1
        """.format(lane=vLane, lo=vLO, l16=vL16, ost=vOst, h1=vH1, h2=vH2, red=vRed, pa=vPollA, pb=vPollB, ph=vPollH, out=vOut, one=vOne, w=sW, k48=48 * KB))
        s("""
        s_lshl_b32 s59, s{w}, 11
        s_add_u32 s59, s59, {stp}
        v_lshlrev_b32 v26, 10, v24
        v_lshl_add_u32 v26, v23, 6, v26
        v_lshl_add_u32 v26, v20, 2, v26
        v_add_u32 v{sr}, s59, v26
        """.format(w=sW, stp=STP, sr=vStatR))
        s("""
        s_lshl_b32 s59, s{w}, 7
        s_lshl_b32 s60, s{w}, 6
        v_lshlrev_b32 v26, 3, v20
        v_lshl_add_u32 v26, v23, 2, v26
        v_add_u32 v26, s59, v26
        v_lshlrev_b32 v27, 2, v20
        v_lshl_add_u32 v27, v23, 8, v27
        v_add_u32 v27, s60, v27
        v_add_u32 v27, 512, v27
        v_cmp_gt_u32 vcc, 2, v21
        v_cndmask_b32 v26, v27, v26, vcc
        v_add_u32 v{sw}, {stf}, v26
        v_lshlrev_b32 v26, 3, v20
        v_add_u32 v{si}, {stf}, v26
        v_lshlrev_b32 v26, 4, v21
        v_add_u32 v{sv}, {stfn}, v26
        s_mul_i32 s59, s{w}, 192
        s_add_u32 s59, s59, {csl}
        v_add_u32 v{cs}, s59, v26
        v_lshlrev_b32 v27, 2, v20
        v_add_u32 v27, s59, v27
        v_add_u32 v{csv}, 128, v27
        """.format(w=sW, sw=vStatW, stf=STF, si=vStI, sv=vStV, stfn=STF + 512, csl=CSL, cs=vCs, csv=vCsV))
        s("""
        s_lshr_b32 s59, s2, 3
        s_lshr_b32 s60, s59, 2
        s_lshl_b32 s60, s60, 2
        s_add_u32 s60, s60, s{w}
        s_mul_i32 s61, s{cg}, {k192}
        s_mul_i32 s62, s60, {q6}
        s_add_u32 s{pq}, s61, s62
        s_add_u32 s{pq}, s{pq}, {PQ}
        s_lshl_b32 s61, s{cg}, 16
        s_lshl_b32 s62, s60, 11
        s_add_u32 s{pw}, s61, s62
        s_add_u32 s{pw}, s{pw}, {PW}
        s_mul_i32 s61, s{cg}, {k176}
        s_mul_i32 s62, s60, {d55}
        s_add_u32 s{pd}, s61, s62
        s_add_u32 s{pd}, s{pd}, {PD}
        s_lshr_b32 s60, s59, 3
        s_lshl_b32 s60, s60, 2
        s_add_u32 s60, s60, s{w}
        s_mul_i32 s61, s{cg3}, {k192}
        s_mul_i32 s62, s60, {g12}
        s_add_u32 s{pg}, s61, s62
        s_add_u32 s{pg}, s{pg}, {PG}
        """.format(w=sW, cg=sCG, cg3=sCG3, pq=sPfQ, pw=sPfW, pd=sPfD, pg=sPfG, k192=192 * KB, k176=176 * KB, q6=6 * KB, d55=5632, g12=12 * KB,
                   PQ=PQ, PW=PW, PD=PD, PG=PG))
        s("""
        v_lshlrev_b32 v26, 2, v21
        v_sub_u32 v26, v20, v26
        v_mov_b32 v27, 0xf149f2ca
        v_mov_b32 v28, 0
        """)
        for r in range(4):
            s("v_subrev_u32 v29, %d, v26" % r)
            s("v_cmp_gt_u32 vcc, 8, v29")
            s("v_cndmask_b32 v%d, v27, v28, vcc" % (32 + r))
            s("v_cmp_gt_i32 vcc, -8, v29")
            s("v_cndmask_b32 v%d, v27, v28, vcc" % (36 + r))
            s("v_mov_b32 v%d, v27" % (40 + r))
        s("v_add_u32 v30, %d, v%d" % (BIAS, vL16))
        s.wait_ds()
        s("ds_write_b128 v30, v[32:35]")
        s("ds_write_b128 v30, v[36:39] offset:1024")
        s("ds_write_b128 v30, v[40:43] offset:2048")
        s("""
        s_cmp_eq_u32 s{rb}, 0
        s_cselect_b32 s59, 2, 1
        s_lshl_b32 s59, s59, 10
        v_add_u32 v{b1}, s59, v30
        """.format(rb=sRB, b1=vB1))

    def colsums(self, s, ks, r0=44, first=True):
        single = self.opts.get("single", "1") == "1"
        ks = list(ks)
        R = lambda k: r0 + 4 * (k - ks[0])
        for k in ks:
            r = R(k)
            s("v_add_f32 v%d, v%d, v%d" % (r, r, r + 1))
            s("v_add_f32 v%d, v%d, v%d" % (r + 2, r + 2, r + 3))
            s("v_add_f32 v%d, v%d, v%d" % (r, r, r + 2))
            if not single:
                s("v_add_f32_dpp v%d, v%d, v%d quad_perm:[1,0,3,2] row_mask:0xf bank_mask:0xf" % (r, r, r))
                s("v_add_f32_dpp v%d, v%d, v%d quad_perm:[2,3,0,1] row_mask:0xf bank_mask:0xf" % (r, r, r))
        if single:
            for sw in ("v_permlane16_swap_b32", "v_permlane32_swap_b32"):
                for k in ks:
                    s("v_mov_b32 v%d, v%d" % (R(k) + 1, R(k)))
                for k in ks:
                    s("%s v%d, v%d" % (sw, R(k), R(k) + 1))
                for k in ks:
                    s("v_add_f32 v%d, v%d, v%d" % (R(k), R(k), R(k) + 1))
        a = R(ks[-1]) + 2
        if single:
            s("v_and_b32 v%d, 0xf0, v%d" % (a, vL16))
            s("v_lshrrev_b32 v%d, 2, v%d" % (a, a))
        else:
            s("v_lshrrev_b32 v%d, 6, v%d" % (a, vL16))
            s("v_lshlrev_b32 v%d, 2, v%d" % (a, a))
        s("s_mul_i32 s59, s%d, 192" % sW)
        s("s_add_u32 s59, s59, %d" % CSL)
        s("v_add_u32 v%d, s59, v%d" % (a, a))
        for k in ks:
            s("ds_write_b32 v%d, v%d offset:%d" % (a, R(k), (k // 3) * 768 + (k % 3) * 64))
        if first:
            if not single:
                self.flag_vec(s)
            s("v_mov_b32 v%d, v%d" % (vFlag, self.vflag_tmp))

    vflag_tmp = 87

    def flag_vec(self, s):
        s("s_cmp_eq_u32 s%d, 0" % sW)
        s("s_cselect_b32 s59, 1, 0")
        s("v_cmp_gt_u32 vcc, s59, v%d" % vLane)
        s("v_mov_b32 v27, 0x7ffffff0")
        s("v_cndmask_b32 v%d, v27, 0, vcc" % self.vflag_tmp)
        s("v_mov_b32 v60, v%d" % self.vflag_tmp)

    def global_issue(self, s):
        s("""
        s_mul_i32 s58, s{cg}, 12
        v_add_u32 v89, s58, v{lane}
        v_subrev_u32 v90, 12, v{lane}
        v_mul_u32_u24 v91, 21846, v90
        v_lshrrev_b32 v91, 16, v91
        v_mul_u32_u24 v92, 3, v91
        v_sub_u32 v92, v90, v92
        s_lshl_b32 s58, s{rb}, 1
        v_add_u32 v92, s58, v92
        v_subrev_u32 v92, 1, v92
        v_max_i32 v92, 0, v92
        v_lshl_add_u32 v92, v91, 6, v92
        v_add_u32 v92, 96, v92
        v_cmp_gt_u32 vcc, 12, v{lane}
        v_cndmask_b32 v89, v92, v89, vcc
        v_lshrrev_b32 v90, 3, v89
        v_and_b32 v89, 7, v89
        v_lshlrev_b32 v89, 2, v89
        v_lshl_add_u32 v89, v90, 7, v89
        s_cmp_eq_u32 s{w}, 1
        s_cselect_b32 s58, 18, 0
        v_cmp_gt_u32 vcc, s58, v{lane}
        v_mov_b32 v90, 0x7ffffff0
        v_cndmask_b32 v89, v90, v89, vcc
        s_cselect_b32 s{m}, 0x3ffff, 0
        s_mov_b32 s{mh}, 0
        s_mov_b32 s{p}, {pfl}
        buffer_load_dword v92, v89, s[8:11], s{p} offen sc1
        """.format(lane=vLane, w=sW, p=sPoll, pfl=PFL, cg=sCG, rb=sRB, m=4, mh=5))

    def global_check(self, s):
        n = self.npoll
        self.npoll += 1
        s("v_cmp_ne_u32 vcc, s%d, v92" % sTag)
        s("s_and_b64 vcc, vcc, s[4:5]")
        s("s_cbranch_vccnz SLOW_%d" % n)
        s("BACK_%d:" % n)
        s("s_barrier")
        self.slow += ["SLOW_%d:" % n, "  s_mov_b32 s%d, 0" % sCnt, "SPIN_%d:" % n,
                      "  buffer_load_dword v92, v89, s[8:11], s%d offen sc1" % sPoll, "  s_waitcnt vmcnt(0)",
                      "  v_cmp_ne_u32 vcc, s%d, v92" % sTag, "  s_nop 1", "  s_and_b64 vcc, vcc, s[4:5]",
                      "  s_cbranch_vccz BACK_%d" % n, "  s_add_u32 s%d, s%d, 1" % (sCnt, sCnt), "  s_cmp_lt_u32 s%d, %d" % (sCnt, POLL_LIMIT),
                      "  s_cbranch_scc1 SPIN_%d" % n, "  s_branch BACK_%d" % n]

    def tick(self, s, bulk=True):
        if self.urgent:
            s.extend(self.urgent.popleft())
            return True
        if bulk and self.bulk:
            s.extend(self.bulk.popleft())
            return True
        return False

    def flush_urgent(self, s):
        while self.urgent:
            s.extend(self.urgent.popleft())

    def burst(self, s, n):
        for _ in range(n):
            self.tick(s)

    @staticmethod
    def cost(ins):
        c = ins.cls
        if c == "valu":
            return 8 if (ins.meta.get("trans") or ins.meta.get("perm")) else 4
        if c in ("vm_ld", "vm_dma", "vm_st"):
            return 8
        if c in ("ds_rd", "ds_wr"):
            return 4
        if c == "salu":
            return 2.5
        if c in ("pseudo", "label"):
            return 0 if ins.text in ("@comment", "@mark") or c == "label" else 2
        return 3

    def evs(self, key, default):
        v = self.opts.get(key)
        return tuple(int(x) for x in v.split(",")) if v else default

    def run_mf(self, s, steps, at=None, fill=None, rate=4, ctok=None, fill_from=2, urate=None):
        at = at or {}
        urate = urate or rate
        fill = deque(fill or [])
        ev, cur = deque(), deque()
        last_vm = -rate
        last_tr = -12
        isvm = lambda x: x.cls in ("vm_ld", "vm_dma", "vm_st")
        def mk(x):
            if isinstance(x, Ins):
                return [x]
            if isinstance(x, tuple):
                t = Stream()
                self.mark(t, "chA%d" % x[1])
                t.wait_vm(ctok[x[1]])
                t("s_barrier")
                self.mark(t, "chB%d" % x[1])
                return list(t)
            t = Stream()
            t(x)
            return list(t)
        def push_ev(e):
            if isinstance(e, Stream):
                ev.extend(e)
            else:
                c = Ins("@comment")
                c.meta["c"] = "release"
                c.meta["call"] = e
                ev.append(c)
        def emit_from(q, budget):
            while q:
                c = self.cost(q[0])
                if c > budget and not (budget >= 8 - 1e-9):
                    break
                x = q.popleft()
                s.append(x)
                if x.meta.get("call"):
                    x.meta["call"]()
                budget -= c
                while x.meta.get("glue") and q:
                    x = q.popleft()
                    s.append(x)
                    if x.meta.get("call"):
                        x.meta["call"]()
                if budget <= 0:
                    break
            return budget
        n = len(steps)
        for i, st in enumerate(steps):
            for e in at.get(i, []):
                push_ev(e)
            if i % int(self.opts.get("fstep", 16)) == 0:
                self.fs(s, "mf%d" % i)
            budget = 8.0
            main = [y for x in st for y in mk(x)]
            for x in main:
                s.append(x)
            for x in main[1:]:
                budget -= self.cost(x)
                if isvm(x):
                    last_vm = i
            if any(x.cls == "ds_rd" for x in main[1:]):
                budget -= 2
            if budget <= 0:
                continue
            if ev:
                had_vm = any(isvm(x) for x in list(ev)[:1])
                budget = emit_from(ev, budget)
                if had_vm:
                    last_vm = i
                if budget <= 0:
                    continue
            if not cur and self.trickle and not self.urgent and i - last_tr >= int(self.opts.get("trate", 24)) and i - last_vm >= 1:
                cur.extend(self.trickle.popleft())
                last_tr = i
            if not cur:
                if self.urgent and i - last_vm >= urate - 1:
                    cur.extend(self.urgent.popleft())
                elif self.bulk and not self.urgent and i - last_vm >= rate - 1:
                    cur.extend(self.bulk.popleft())
            while cur and budget > 0:
                x = cur[0]
                c = self.cost(x)
                if isvm(x):
                    if budget < 8 or i - last_vm < min(rate, urate):
                        break
                    last_vm = i
                elif c > budget:
                    break
                s.append(cur.popleft())
                budget -= c
            if fill and fill[0].meta.get("pause"):
                fill_from = i + fill.popleft().meta["pause"]
            if i >= fill_from and fill and budget > 0:
                part = deque()
                while fill and not fill[0].meta.get("pause") and len(part) < 4:
                    part.append(fill.popleft())
                budget = emit_from(part, budget)
                while part:
                    fill.appendleft(part.pop())
        for e in at.get(n, []):
            push_ev(e)
        for q in (cur, ev, fill):
            while q:
                x = q.popleft()
                s.append(x)
                if x.meta.get("call"):
                    x.meta["call"]()

    def weave(self, s, epi, every=13):
        k = 0
        for ins in epi:
            s.append(ins)
            if ins.cls in ("valu", "mfma"):
                k += 1
                if k >= every:
                    if self.tick(s):
                        k = 0

    def split_tile(self, A):
        groups = A[0]
        nsub = (len(groups) - 2) // 4
        nh = 2 * nsub + 2
        return groups[:nh], groups[nh:]

    def cs_loads_to(self, s, cg, base, r0, vaddr):
        s("s_lshl_b32 s58, s%d, 2" % cg)
        s("s_add_u32 s58, s58, s%d" % sW)
        s("s_mul_i32 s59, s58, 3072")
        s("s_add_u32 s59, s59, %d" % base)
        for k in range(3):
            for j in range(4):
                s("buffer_load_dword v%d, v%d, s[8:11], s59 offen offset:%d" % (r0 + 4 * k + j, vaddr, k * 1024 + j * 64))

    def global_check2(self):
        n = self.npoll
        self.npoll += 1
        t = Stream()
        r = RING + 12
        t("v_cmp_ne_u32 vcc, s%d, v%d" % (sTag, r))
        t("s_and_b64 vcc, vcc, s[4:5]")
        t("s_cbranch_vccnz SLOW_%d" % n).meta["glue"] = True
        t("BACK_%d:" % n).meta["glue"] = True
        t("s_barrier")
        self.slow += ["SLOW_%d:" % n, "  s_mov_b32 s%d, 0" % sCnt, "SPIN_%d:" % n,
                      "  buffer_load_dword v%d, v%d, s[8:11], s%d offen sc1" % (r, RING + 16, sPoll2), "  s_waitcnt vmcnt(0)",
                      "  v_cmp_ne_u32 vcc, s%d, v%d" % (sTag, r), "  s_nop 1", "  s_and_b64 vcc, vcc, s[4:5]",
                      "  s_cbranch_vccz BACK_%d" % n, "  s_add_u32 s%d, s%d, 1" % (sCnt, sCnt), "  s_cmp_lt_u32 s%d, %d" % (sCnt, POLL_LIMIT),
                      "  s_cbranch_scc1 SPIN_%d" % n, "  s_branch BACK_%d" % n]
        return t

    def seg13(self, s, phase, p, h, A, at, urate=None):
        groups, stok, ctok = A
        st = Stream()
        self.stats_reduce(st, h, stok)
        if getattr(self, "extra_fill", None) is not None:
            st.extend(self.extra_fill)
            self.extra_fill = None
        pre, steps = self.mf13(phase, h)
        if urate:
            s.extend(st)
            st = Stream()
        for x in pre:
            if isinstance(x, tuple):
                s.wait_vm(ctok[x[1]])
                s("s_barrier")
            else:
                s(x)
        self.run_mf(s, steps, at=at, fill=list(st), ctok=ctok, fill_from=int(self.opts.get("fillfrom", 6)), urate=urate, rate=(urate or 4))
        s("s_barrier")

    def check_order(self, s):
        done = set()
        for ins in s:
            if ins.meta.get("checked"):
                done.add(ins.meta["checked"])
            k = ins.meta.get("dep")
            if k is not None:
                assert k in done, "load issued before its dependency was checked: %s %s" % (k, ins.text)

    def check_weights(self, s):
        if self.opts.get("nob"):
            return
        cur = {}
        for ins in s:
            if ins.meta.get("bname"):
                cur[ins.ops[0]] = ins.meta["bname"]
            if ins.cls == "mfma" and ins.meta.get("need"):
                reg, name = ins.meta["need"]
                assert cur.get(reg) == name, "weights %s expected in %s, found %s" % (name, reg, cur.get(reg))

    def gen(self):
        s = Stream()
        self.urgent, self.bulk, self.trickle = deque(), deque(), deque()
        o = self.opts
        self.prologue(s)
        if self.prof and self.opts.get("single", "1") != "1":
            s("s_memrealtime s[100:101]")
            s("s_waitcnt lgkmcnt(0)")
            s("s_mov_b32 s94, s100")
        self.ts(s, "start")
        if self.prof == 5:
            for k in range(2, 24):
                s("s_mov_b32 s%d, 0" % (sTS + k))
        s("""
        s_lshl_b32 s{kw1}, s{w}, 10
        s_add_u32 s{a1hw}, s{a1h}, s{kw1}
        s_add_u32 s{a1mw}, s{a1m}, s{kw1}
        s_add_u32 s{a3w}, s{a3}, s{kw1}
        """.format(kw1=sKw1, w=sW, a1hw=sA1hw, a1h=sA1h, a1mw=sA1mw, a1m=sA1m, a3w=sA3w, a3=sA3))
        A = {}
        single = self.opts.get("single", "1") == "1"
        if single:
            ncpf = 0 if self.opts.get("nocpf") == "1" else int(self.opts.get("cpf", 2))
            def pack_flag(t, base):
                t("s_lshr_b32 s58, s2, 3")
                t("s_lshl_b32 s58, s58, 7")
                t("s_and_b32 s59, s2, 7")
                t("s_lshl_b32 s59, s59, 2")
                t("s_add_u32 s58, s58, s59")
                t("s_add_u32 s%d, s58, %d" % (sT3, base))
            self.prologue2(s)
            s("s_add_u32 s%d, s95, 1" % sTag)
            s("v_mov_b32 v%d, s%d" % (vOne, sTag))
            self.flag_vec(s)
            self.global_issue(s)
            self.global_check(s)
            self.ts(s, "gsync")
        else:
            s("s_mov_b32 s%d, 1" % sTag)
        if single:
            s("v_and_b32 v68, 15, v%d" % vLane)
            s("v_lshlrev_b32 v68, 2, v68")
            s("v_lshrrev_b32 v69, 4, v%d" % vLane)
            s("v_lshl_add_u32 v68, v69, 8, v68")
        def cs_loads(cg, base, r0):
            s("s_lshl_b32 s58, s%d, 2" % cg)
            s("s_add_u32 s58, s58, s%d" % sW)
            s("s_mul_i32 s59, s58, 3072")
            s("s_add_u32 s59, s59, %d" % base)
            for k in range(3):
                if single:
                    for j in range(4):
                        s("buffer_load_dword v%d, v68, s[8:11], s59 offen offset:%d" % (r0 + 4 * k + j, k * 1024 + j * 64))
                else:
                    s("buffer_load_dwordx4 %s, v%d, s[8:11], s59 offen offset:%d" % (V(r0 + 4 * k, 4), vL16, k * 1024))
        A[(1, 0, 0)] = self.groupsA_lds(1, 0, 0)
        A[(1, 0, 1)] = self.groupsA_lds(1, 0, 1)
        if single:
            head, tail = self.split_tile(A[(1, 0, 0)])
            for g in head:
                s.extend(g)
            cs_loads(sCG, CSQ, RING + 32)
            nq = int(self.opts.get("nq0", 24))
            for g in self.groupsB(Bx, sBQ, 0, nq):
                s.extend(g)
            self.pack_flag = pack_flag
            self.first_tail = tail
            self.q_rest = self.groupsB(Bx, sBQ, nq, 48)
            self.colsums(s, range(3), r0=RING + 32)
        else:
            for g in A[(1, 0, 0)][0]:
                s.extend(g)
            cs_loads(sCG, CSQ, 44)
            cs_loads(sCG3, CSG, 56)
            for g in self.groupsB(Bx, sBQ, 0, 24):
                s.extend(g)
            self.prologue2(s)
            for g in self.groupsB(Bx, sBQ, 24, 30):
                s.extend(g)
            self.colsums(s, range(6))
            self.bulk.extend(self.groupsB(Bx, sBQ, 30, 48))
            self.burst(s, 18)
            self.urgent.extend(A[(1, 0, 1)][0])
        s("s_xor_b32 s%d, s%d, 16384" % (sA2b, sA2))
        self.cs_loads = cs_loads
        self.ts(s, "prolog")
        tok = {}
        U = lambda gs: (lambda: self.urgent.extend(gs))
        def until_issued(gs):
            while any(g is x for g in gs for x in self.urgent):
                s.extend(self.urgent.popleft())
        tails = {(1, 0, 0): [], (1, 0, 1): []}
        for p in range(2):
            last = (p == 1)
            at = {}
            self.urgent.extend(tails[(1, p, 0)])
            if p == 0 and single:
                q = list(self.q_rest)
                self.urgent.extend(q[:6] + list(self.first_tail[:3]) + q[6:15] + list(self.first_tail[3:]) + q[15:])
                self.urgent.extend(A[(1, 0, 1)][0])
                head1 = list(A[(1, 0, 1)][0])
            elif p == 0:
                self.bulk.extend(self.groupsB(By, sBW, 0, 16))
                self.bulk.extend(self.groupsB(By, sBD, 16, 44))
                head1 = []
            else:
                self.bulk.extend(self.groupsB(By, sBW, 0, 16))
                a, b, c = self.evs("e1E", (56, 92, 127))
                at[a] = [self.ev_sig(4, p - 1, 1, tok[(4, p - 1, 1)])]
                at[b] = [self.ev_poll_issue(1, p, 1)]
                A[(1, p, 1)] = self.groupsA_lds(1, p, 1)
                head1, tails[(1, p, 1)] = self.split_tile(A[(1, p, 1)])
                at[c] = [self.ev_poll_check(1, p, 1), U(head1)]
            self.trickle.extend(self.pf(sPfG, 2048 * i) for i in range(6))
            self.trickle.extend(self.pf(sPfD, 2048 * i) for i in range(3))
            self.seg13(s, 1, p, 0, A[(1, p, 0)], at, urate=(2 if (p == 0 and single) else None))
            self.ts(s, "mf1E.%d" % p)
            if p == 0 and single:
                late_tok = pack.emit_late(s, sW, vL16, (3, 4, 5, 6), DV)
                self.ts(s, "packed")
            e = Stream(); tok[(1, p, 0)] = self.epi1(e, p, 0)
            self.weave(s, e, every=10)
            until_issued(head1)
            self.ts(s, "s1E.%d" % p)
            self.urgent.extend(tails[(1, p, 1)])
            gA = self.groupsA24(2, p, 0)
            a, b, c = self.evs("e1O", (56, 92, 127))
            at = {a: [self.ev_sig(1, p, 0, tok[(1, p, 0)])], b: [self.ev_poll_issue(2, p, 0)],
                  c: [self.ev_poll_check(2, p, 0), U(gA)]}
            if p == 0 and single:
                f2 = Stream()
                f2.wait_vm(late_tok)
                f2("s_barrier")
                self.pack_flag(f2, PFL2)
                f2("buffer_store_dword v%d, v%d, s[8:11], s%d offen sc1" % (vOne, vFlag, sT3))
                g2 = Stream()
                a0, a1, a2 = RING + 16, RING + 17, RING + 18
                g2("v_lshrrev_b32 v%d, 4, v%d" % (a1, vL16))
                g2("s_lshl_b32 s58, s%d, 2" % sCG)
                g2("s_add_u32 s58, s58, 136")
                g2("v_add_u32 v%d, s58, v%d" % (a0, a1))
                g2("s_lshl_b32 s58, s%d, 4" % sCG3)
                g2("s_sub_u32 s58, s58, 4")
                g2("v_add_u32 v%d, s58, v%d" % (a2, a1))
                g2("v_cmp_lt_u32 vcc, 3, v%d" % a1)
                g2("v_cndmask_b32 v%d, v%d, v%d, vcc" % (a0, a0, a2))
                g2("s_mul_i32 s58, s%d, 11" % sCG)
                g2("s_add_u32 s58, s58, 148")
                g2("v_add_u32 v%d, s58, v%d" % (a2, a1))
                g2("v_cmp_lt_u32 vcc, 19, v%d" % a1)
                g2("v_cndmask_b32 v%d, v%d, v%d, vcc" % (a0, a0, a2))
                g2("v_lshrrev_b32 v%d, 3, v%d" % (a2, a0))
                g2("v_and_b32 v%d, 7, v%d" % (a0, a0))
                g2("v_lshlrev_b32 v%d, 2, v%d" % (a0, a0))
                g2("v_lshl_add_u32 v%d, v%d, 7, v%d" % (a0, a2, a0))
                g2("s_cmp_eq_u32 s%d, 1" % sW)
                g2("s_cselect_b32 s58, 31, 0")
                g2("s_cselect_b32 s4, 0x7fffffff, 0")
                g2("s_mov_b32 s5, 0")
                g2("v_cmp_gt_u32 vcc, s58, v%d" % a1)
                g2("v_mov_b32 v%d, 0x7ffffff0" % a2)
                g2("v_cndmask_b32 v%d, v%d, v%d, vcc" % (a0, a2, a0))
                g2("s_mov_b32 s%d, %d" % (sPoll2, PFL2))
                g2("buffer_load_dword v%d, v%d, s[8:11], s%d offen sc1" % (RING + 12, a0, sPoll2))
                c2 = self.global_check2()
                csl = Stream()
                csl("v_and_b32 v%d, 0xf0, v%d" % (DV + 12, vL16))
                csl("v_lshrrev_b32 v%d, 2, v%d" % (DV + 12, DV + 12))
                csl("v_lshrrev_b32 v%d, 8, v%d" % (DV + 13, vL16))
                csl("v_lshl_add_u32 v%d, v%d, 8, v%d" % (DV + 12, DV + 13, DV + 12))
                self.cs_loads_to(csl, sCG3, CSG, DV, DV + 12)
                fa, fb, fc = self.evs("f2", (40, 88, 125))
                at.setdefault(fa, []).append(f2)
                at.setdefault(fb, []).append(g2)
                at.setdefault(fc, []).extend([c2, (lambda: self.bulk.extend(self.groupsB(By, sBW, 0, 16))), csl])
                self.cs_reduce = Stream()
                self.colsums(self.cs_reduce, range(3, 6), r0=DV, first=False)
            self.seg13(s, 1, p, 1, A[(1, p, 1)], at)
            self.ts(s, "mf1O.%d" % p)
            while self.bulk:
                s.extend(self.bulk.popleft())
            self.bulk.extend(self.groupsB(Bx, sBG, 0, 48))
            e = Stream(); tok[(1, p, 1)] = self.epi1(e, p, 1)
            self.weave(s, e, every=10)
            self.flush_urgent(s)
            self.ts(s, "s1O.%d" % p)
            if p == 0 and single:
                s.extend(self.cs_reduce)
            self.seg24_mf(s, 2, p, 0)
            e = Stream(); tok[(2, p, 0)] = self.epi24(e, 2, p, 0)
            self.weave(s, e, every=10)
            s.extend(self.ev_sig(1, p, 1, tok[(1, p, 1)]))
            self.burst(s, int(self.opts.get("b2E", 8)))
            s.extend(self.ev_poll_issue(2, p, 1))
            self.burst(s, int(self.opts.get("b2F", 5)))
            s.extend(self.ev_sig(2, p, 0, tok[(2, p, 0)]))
            s.extend(self.ev_poll_check(2, p, 1))
            self.ts(s, "s2E.%d" % p)
            self.urgent.extend(self.groupsA24(2, p, 1))
            self.flush_urgent(s)
            s.extend(self.ev_poll_issue(3, p, 0))
            A[(3, p, 0)] = self.groupsA_lds(3, p, 0)
            head3, tail3 = self.split_tile(A[(3, p, 0)])
            self.seg24_mf(s, 2, p, 1, at={int(self.opts.get("c3E", 24)): [self.ev_poll_check(3, p, 0), U(head3)]})
            self.bulk.extend(self.groupsB(By, sBD, 0, 44 if (p == 0 and single) else 16))
            e = Stream(); tok[(2, p, 1)] = self.epi24(e, 2, p, 1)
            self.weave(s, e, every=5)
            until_issued(head3)
            self.ts(s, "s2O.%d" % p)
            self.urgent.extend(tail3)
            A[(3, p, 1)] = self.groupsA_lds(3, p, 1)
            head3, tail3 = self.split_tile(A[(3, p, 1)])
            a, b, c = self.evs("e3E", (56, 92, 128))
            at = {a: [self.ev_sig(2, p, 1, tok[(2, p, 1)])], b: [self.ev_poll_issue(3, p, 1)],
                  c: [self.ev_poll_check(3, p, 1), U(head3)]}
            if not last:
                self.trickle.extend(self.pf(sPfQ, 2048 * i) for i in range(3))
            self.seg13(s, 3, p, 0, A[(3, p, 0)], at)
            self.ts(s, "mf3E.%d" % p)
            e = Stream(); tok[(3, p, 0)] = self.epi3(e, p, 0)
            self.weave(s, e, every=12)
            until_issued(head3)
            self.ts(s, "s3E.%d" % p)
            self.urgent.extend(tail3)
            gA = self.groupsA24(4, p, 0)
            a, b, c = self.evs("e3O", (56, 92, 128))
            at = {a: [self.ev_sig(3, p, 0, tok[(3, p, 0)])], b: [self.ev_poll_issue(4, p, 0)],
                  c: [self.ev_poll_check(4, p, 0), U(gA)]}
            if not last:
                self.trickle.extend([self.pf(sPfW, 0)])
            self.seg13(s, 3, p, 1, A[(3, p, 1)], at)
            self.ts(s, "mf3O.%d" % p)
            self.flush_urgent(s)
            while self.bulk:
                s.extend(self.bulk.popleft())
            if not last:
                self.bulk.extend(self.groupsB(Bx, sBQ, 0, 48))
            e = Stream(); tok[(3, p, 1)] = self.epi3(e, p, 1)
            self.weave(s, e, every=12)
            self.ts(s, "s3O.%d" % p)
            a, b = self.evs("e4E", (60, 88))
            at = {a: [self.ev_sig(3, p, 1, tok[(3, p, 1)])], b: [self.ev_poll_issue(4, p, 1)]}
            self.seg24_mf(s, 4, p, 0, at=at)
            e = Stream(); tok[(4, p, 0)] = self.epi24(e, 4, p, 0)
            self.weave(s, e, every=10)
            s.extend(self.ev_poll_check(4, p, 1))
            self.ts(s, "s4E.%d" % p)
            self.urgent.extend(self.groupsA24(4, p, 1))
            self.flush_urgent(s)
            at = {}
            head1 = []
            if not last:
                A[(1, p + 1, 0)] = self.groupsA_lds(1, p + 1, 0)
                head1, tails[(1, p + 1, 0)] = self.split_tile(A[(1, p + 1, 0)])
                a, b, c = self.evs("e4O", (8, 44, 82))
                at = {a: [self.ev_sig(4, p, 0, tok[(4, p, 0)])], b: [self.ev_poll_issue(1, p + 1, 0)],
                      c: [self.ev_poll_check(1, p + 1, 0), U(head1)]}
            self.seg24_mf(s, 4, p, 1, at=at)
            e = Stream(); tok[(4, p, 1)] = self.epi24(e, 4, p, 1)
            self.weave(s, e, every=5)
            until_issued(head1)
            self.ts(s, "s4O.%d" % p)
        if single:
            s("s_cmp_eq_u32 s2, 0")
            s("s_cbranch_scc0 M_noep")
            s("s_mov_b32 s36, %d" % EPOCH)
            s("buffer_store_dword v%d, v%d, s[8:11], s36 offen" % (vOne, vFlag))
            s("M_noep:")
        if self.prof == 4:
            s = self.resolve_marks(s)
        if self.prof:
            s("s_lshl_b32 s36, s2, 2")
            s("s_add_u32 s36, s36, s%d" % sW)
            s("s_lshl_b32 s36, s36, 8")
            s("s_add_u32 s36, s36, %d" % 0x3000000)
            s("s_memrealtime s[100:101]")
            s("s_waitcnt lgkmcnt(0)")
            s("s_mov_b32 s95, s100")
            s("s_mov_b64 exec, 1")
            for k in (94, 95):
                s("v_mov_b32 v20, s%d" % k)
                s("buffer_store_dword v20, off, s[8:11], s36 offset:%d" % (4 * (62 + k - 94)))
            if self.prof == 7:
                for k in range(6):
                    s("v_mov_b32 v20, s%d" % (80 + k))
                    s("buffer_store_dword v20, off, s[8:11], s36 offset:%d" % (4 * (8 + k)))
            if self.prof == 5:
                for k in range(16):
                    s("v_mov_b32 v20, s%d" % (sTS + 2 + k))
                    s("buffer_store_dword v20, off, s[8:11], s36 offset:%d" % (4 * (8 + k)))
            for k in range(self.nts):
                s("v_mov_b32 v20, s%d" % (sTS + (2 * k if self.prof == 3 else k)))
                s("buffer_store_dword v20, off, s[8:11], s36 offset:%d" % (4 * k))
            s("s_mov_b64 exec, -1")
        s("s_waitcnt vmcnt(0)")
        self.check_weights(s)
        self.check_order(s)
        lines = finalize(s, verbose=False)
        lines.append("M_end:")
        lines.append("  s_endpgm")
        lines += self.slow
        lines.append("M_last:")
        lines.append("  s_endpgm")
        return lines


def gen_main(opts):
    m = Main(opts)
    lines = m.gen()
    if m.prof:
        lines.insert(0, "; timestamps: " + " ".join(m.tsnames))
    return lines, LDS_BYTES
```

```python
from asmlib import *
from layout import *

CODEPF = ""
PROF = 0
TLBWARM = 1
NCPF = 2
N_LATE_LOADS = 7
F_LDS = 0
G_LDS = 49152
S_LDS = 114688


def stamp(s, k):
    if PROF == 7:
        s("s_memtime s[98:99]")
        s("s_waitcnt lgkmcnt(0)")
        s("s_mov_b32 s%d, s98" % (80 + k))


def magic(d):
    return (2 ** 32 + d - 1) // d


def gen_pack():
    L = []

    def fin(s):
        L.extend(finalize(s))

    def raw_issue(s, srow0, scol, sstride, slds):
        s("""
        s_lshl_b32 s40, s{r}, 5
        v_lshrrev_b32 v8, 3, v1
        v_add_u32 v8, s40, v8
        v_mul_lo_u32 v8, v8, s{st}
        v_and_b32 v9, 7, v1
        v_lshl_add_u32 v8, v9, 4, v8
        v_add_u32 v8, s{c}, v8
        s_lshl_b32 s40, s{st}, 3
        s_mov_b32 m0, s{l}
        """.format(r=srow0, st=sstride, c=scol, l=slds))
        for i in range(4):
            s("buffer_load_dwordx4 v8, s[12:15], 0 offen lds")
            if i < 3:
                s("v_add_u32 v8, s40, v8")
                s("s_add_u32 m0, m0, 1024")

    s = Stream()
    if PROF:
        s("s_memrealtime s[100:101]")
        s("s_memtime s[98:99]")
        s("s_waitcnt lgkmcnt(0)")
        s("s_mov_b32 s94, s100")
        s("s_mov_b32 s68, s98")
    s("""
    s_load_dwordx4 s[16:19], s[0:1], 0
    s_load_dwordx2 s[20:21], s[0:1], 16
    s_load_dwordx4 s[24:27], s[0:1], 32
    s_load_dwordx2 s[28:29], s[0:1], 48
    s_load_dwordx4 s[52:55], s[0:1], 56
    s_load_dwordx2 s[30:31], s[0:1], 72
    s_cmp_ge_u32 s2, 256
    s_cbranch_scc1 M_end
    v_lshrrev_b32 v2, 6, v0
    v_and_b32 v1, 63, v0
    v_readfirstlane_b32 s3, v2
    v_lshlrev_b32 v3, 4, v1
    s_lshl_b32 s4, s2, 2
    s_add_u32 s4, s4, s3
    s_lshl_b32 s5, s3, 12
    s_add_u32 s6, s5, {S}
    s_add_u32 s5, s5, {F}
    v_and_b32 v4, 3, v1
    v_lshrrev_b32 v5, 2, v1
    v_and_b32 v5, 3, v5
    v_lshrrev_b32 v6, 4, v1
    v_lshl_add_u32 v7, v6, 3, v5
    v_mov_b32 v40, 0x3f803f80
    v_mov_b32 v41, 0x3f803f80
    v_mov_b32 v42, 0x3f803f80
    v_mov_b32 v43, 0x3f803f80
    v_lshlrev_b32 v62, 2, v1
    v_cmp_gt_u32 vcc, 16, v1
    v_mov_b32 v15, 0x7ffffff0
    v_cndmask_b32 v62, v15, v62, vcc
    s_waitcnt lgkmcnt(0)
    s_mov_b32 s8, s30
    s_and_b32 s9, s31, 0xffff
    s_mov_b32 s10, 0x10000000
    s_mov_b32 s11, 0x20000
    s_mov_b32 s15, 0x20000
    s_mov_b32 s35, 0x20000
    s_add_u32 s46, s30, {EP}
    s_addc_u32 s47, s31, 0
    s_load_dword s95, s[46:47], 0
    """.format(S=S_LDS, F=F_LDS, EP=EPOCH))
    stamp(s, 0)
    if TLBWARM:
        s("""
        s_lshr_b32 s44, s2, 3
        s_lshl_b32 s44, s44, 2
        s_add_u32 s44, s44, s3
        s_mul_hi_u32 s45, s44, %d
        s_mul_i32 s45, s45, 24
        s_sub_u32 s44, s44, s45
        s_lshl_b32 s45, s44, 21
        s_mov_b32 s12, s30
        s_mov_b32 s13, s31
        s_cmp_eq_u32 s44, 18
        s_cselect_b32 s12, s20, s12
        s_cselect_b32 s13, s21, s13
        s_cmp_eq_u32 s44, 19
        s_cselect_b32 s12, s28, s12
        s_cselect_b32 s13, s29, s13
        s_cmp_eq_u32 s44, 20
        s_cselect_b32 s12, s24, s12
        s_cselect_b32 s13, s25, s13
        s_cmp_eq_u32 s44, 21
        s_cselect_b32 s12, s26, s12
        s_cselect_b32 s13, s27, s13
        s_cmp_eq_u32 s44, 22
        s_cselect_b32 s12, s52, s12
        s_cselect_b32 s13, s53, s13
        s_cmp_eq_u32 s44, 23
        s_cselect_b32 s12, s16, s12
        s_cselect_b32 s13, s17, s13
        s_cmp_ge_u32 s44, 18
        s_cselect_b32 s45, 0, s45
        s_and_b32 s13, s13, 0xffff
        s_mov_b32 s14, 0x10000000
        v_mov_b32 v63, 0
        buffer_load_dword v61, v63, s[12:15], s45 offen
        """ % magic(24))
    s("""
    s_cmp_ge_u32 s4, 384
    s_cbranch_scc1 K_iX
    s_mul_hi_u32 s36, s4, %d
    s_mul_i32 s37, s36, 48
    s_sub_u32 s37, s4, s37
    s_mul_hi_u32 s38, s37, %d
    s_mul_i32 s39, s38, 3
    s_sub_u32 s39, s37, s39
    s_mov_b32 s12, s18
    s_and_b32 s13, s19, 0xffff
    s_mov_b32 s14, %d
    s_lshl_b32 s41, s39, 10
    s_lshl_b32 s42, s36, 7
    s_add_u32 s41, s41, s42
    s_movk_i32 s43, 3072
    """ % (magic(48), magic(3), 512 * 1536 * 2))
    raw_issue(s, 38, 41, 43, 5)
    s("""
    v_lshlrev_b32 v16, 7, v7
    v_lshl_add_u32 v16, v4, 3, v16
    v_add_u32 v63, s5, v16
    s_mul_i32 s42, s36, %d
    s_lshl_b32 s43, s37, 10
    s_add_u32 s42, s42, s43
    s_add_u32 s42, s42, %d
    """ % (4 * 48 * KB, PQ))
    stamp(s, 1)
    s("s_waitcnt vmcnt(0) lgkmcnt(0)")
    stamp(s, 2)
    for w in range(4):
        for t in range(2):
            s("ds_read_b64_tr_b16 v[%d:%d], v63 offset:%d" % (16 + 4 * w + 2 * t, 17 + 4 * w + 2 * t, t * 512 + w * 32))
    for w in range(4):
        s("buffer_store_dwordx4 v[%d:%d], v3, s[8:11], s42 offen sc1" % (16 + 4 * w, 19 + 4 * w))
        if w < 3:
            s("s_add_u32 s42, s42, %d" % (48 * KB))
    for w in range(4):
        s("v_mfma_f32_16x16x32_bf16 v[%d:%d], v[40:43], v[%d:%d], 0" % (44 + 4 * w, 47 + 4 * w, 16 + 4 * w, 19 + 4 * w))
    s("""
    s_mul_i32 s42, s36, %d
    s_lshl_b32 s43, s39, 10
    s_add_u32 s42, s42, s43
    s_lshl_b32 s43, s38, 6
    s_add_u32 s42, s42, s43
    s_add_u32 s42, s42, %d
    """ % (4 * 3 * KB, CSQ))
    for w in range(4):
        s("buffer_store_dword v%d, v62, s[8:11], s42 offen sc1" % (44 + 4 * w))
        if w < 3:
            s("s_add_u32 s42, s42, %d" % (3 * KB))
    s("s_branch K_iG")
    fin(s)

    L.append("K_iX:")
    s = Stream()
    s("""
    s_sub_u32 s46, s4, 384
    s_mov_b32 s12, s16
    s_and_b32 s13, s17, 0xffff
    s_mov_b32 s14, {xs}
    s_lshr_b32 s36, s46, 8
    s_lshr_b32 s37, s46, 2
    s_and_b32 s37, s37, 63
    s_and_b32 s38, s46, 3
    v_and_b32 v8, 15, v1
    s_lshl_b32 s41, s37, 4
    v_add_u32 v8, s41, v8
    v_lshlrev_b32 v8, 1, v8
    v_add_u32 v8, s36, v8
    v_lshlrev_b32 v8, 10, v8
    v_lshl_add_u32 v8, v6, 4, v8
    s_lshl_b32 s41, s38, 8
    v_add_u32 v8, s41, v8
    v_lshlrev_b32 v16, 2, v1
    v_mov_b32 v17, v3
    s_cmp_lt_u32 s46, 512
    s_cbranch_scc1 K_x1
    v_mov_b32 v8, 0x7ffff000
    v_mov_b32 v16, 0x7ffff000
    v_mov_b32 v17, 0x7ffff000
    """.format(xs=2048 * 512 * 2))
    fin(s)
    L.append("K_x1:")
    s = Stream()
    for b in range(4):
        s("buffer_load_dwordx4 v[%d:%d], v8, s[12:15], 0 offen offset:%d" % (64 + 4 * b, 67 + 4 * b, b * 64))
    s("""
    s_lshl_b32 s40, s36, 20
    s_lshl_b32 s41, s37, 14
    s_add_u32 s40, s40, s41
    s_lshl_b32 s41, s38, 12
    s_add_u32 s40, s40, s41
    s_add_u32 s40, s40, {xb}
    s_lshl_b32 s42, s36, 17
    s_lshl_b32 s41, s37, 11
    s_add_u32 s42, s42, s41
    s_lshl_b32 s41, s38, 9
    s_add_u32 s42, s42, s41
    s_add_u32 s42, s42, {st}
    """.format(xb=XB[0], st=ST[0]))
    stamp(s, 1)
    s("s_waitcnt vmcnt(0) lgkmcnt(0)")
    stamp(s, 2)
    base = 64
    for b in range(4):
        s("buffer_store_dwordx4 v[%d:%d], v17, s[8:11], s40 offen offset:%d sc1" % (base + 4 * b, base + 4 * b + 3, b * 1024))
    for b in range(4):
        a, q = 44 + 2 * b, 45 + 2 * b
        s("v_mov_b32 v%d, 0" % a)
        s("v_mov_b32 v%d, 0" % q)
        for k in range(4):
            s("v_dot2c_f32_bf16 v%d, v%d, v40" % (a, base + 4 * b + k))
            s("v_dot2c_f32_bf16 v%d, v%d, v%d" % (q, base + 4 * b + k, base + 4 * b + k))
    for b in range(4):
        a, q = 44 + 2 * b, 45 + 2 * b
        s("v_permlane16_swap_b32 v%d, v%d" % (a, q))
        s("v_add_f32 v%d, v%d, v%d" % (a, a, q))
        s("v_mov_b32 v%d, v%d" % (q, a))
        s("v_permlane32_swap_b32 v%d, v%d" % (a, q))
        s("v_add_f32 v%d, v%d, v%d" % (a, a, q))
    s("s_mov_b32 exec_hi, 0")
    for b in range(4):
        s("buffer_store_dword v%d, v16, s[8:11], s42 offen offset:%d sc1" % (44 + 2 * b, b * 128))
    s("s_mov_b32 exec_hi, -1")
    fin(s)

    L.append("K_iG:")
    s = Stream()
    stamp(s, 3)
    s("""
    s_lshr_b32 s48, s2, 4
    s_and_b32 s50, s2, 15
    s_mul_i32 s40, s48, 96
    s_and_b32 s41, s3, 1
    s_mul_i32 s41, s41, 192
    s_cmp_ge_u32 s3, 2
    s_cselect_b32 s32, s26, s24
    s_cselect_b32 s33, s27, s25
    s_and_b32 s33, s33, 0xffff
    s_mov_b32 s34, %d
    s_mul_i32 s43, s3, 3072
    s_add_u32 s43, s43, %d
    """ % (512 * 1376 * 2, G_LDS))
    for i in range(3):
        s("""
        v_add_u32 v8, s41, v1
        v_add_u32 v8, {o}, v8
        v_mul_u32_u24 v9, 5462, v8
        v_lshrrev_b32 v9, 16, v9
        v_mul_u32_u24 v12, 12, v9
        v_sub_u32 v12, v8, v12
        s_lshl_b32 s42, s50, 5
        v_add_u32 v13, s42, v9
        v_mul_u32_u24 v13, 2752, v13
        v_lshlrev_b32 v14, 3, v12
        v_add_u32 v14, s40, v14
        v_lshl_add_u32 v13, v14, 1, v13
        v_cmp_gt_u32 vcc, 1376, v14
        v_mov_b32 v15, 0x7ffffff0
        v_cndmask_b32 v13, v15, v13, vcc
        s_add_u32 m0, s43, {m}
        buffer_load_dwordx4 v13, s[32:35], 0 offen lds
        """.format(o=64 * i, m=1024 * i))
    s("""
    s_mov_b32 s12, s20
    s_mov_b32 s13, s21
    s_mov_b32 s14, 0
    s_mov_b32 s52, 0
    s_mov_b32 s53, 0
    s_cmp_lt_u32 s4, 544
    s_cbranch_scc1 K_iR
    s_sub_u32 s46, s4, 544
    s_cmp_ge_u32 s46, 128
    s_cbranch_scc1 K_iD
    s_lshr_b32 s52, s46, 4
    s_and_b32 s53, s46, 15
    s_mov_b32 s14, %d
    s_branch K_iR
    """ % (512 * 512 * 2))
    fin(s)
    L.append("K_iD:")
    s = Stream()
    s("""
    s_sub_u32 s46, s46, 128
    s_mul_hi_u32 s52, s46, %d
    s_mul_i32 s47, s52, 44
    s_sub_u32 s53, s46, s47
    s_mov_b32 s12, s28
    s_mov_b32 s13, s29
    s_mov_b32 s14, %d
    """ % (magic(44), 1376 * 512 * 2))
    fin(s)
    L.append("K_iR:")
    s = Stream()
    s("s_and_b32 s13, s13, 0xffff")
    s("s_lshl_b32 s41, s52, 7")
    s("s_movk_i32 s43, 1024")
    raw_issue(s, 53, 41, 43, 6)
    s(CODEPF)
    s("""
    s_add_u32 s61, s95, 1
    v_mov_b32 v61, s61
    v_cmp_eq_u32 vcc, 0, v0
    v_mov_b32 v60, 0x7ffffff0
    v_cndmask_b32 v60, v60, 0, vcc
    s_lshr_b32 s46, s2, 3
    s_lshl_b32 s46, s46, 7
    s_and_b32 s47, s2, 7
    s_lshl_b32 s47, s47, 2
    s_add_u32 s46, s46, s47
    s_add_u32 s46, s46, %d
    s_waitcnt vmcnt(%d)
    s_barrier
    buffer_store_dword v61, v60, s[8:11], s46 offen sc1
    """ % (PFL, N_LATE_LOADS + NCPF))
    stamp(s, 5)
    fin(s)
    L.append("K_done:")
    L.append("  s_nop 7")
    return L


def emit_late(s, sW, vL16, tmp, B):
    a, b, c, d = tmp
    lane, cc, rr, gg, r8 = B, B + 1, B + 2, B + 3, B + 4
    csa, oob, gb, g1, g2, sa, so = B + 5, B + 6, B + 7, B + 8, B + 9, B + 10, B + 11
    ones, SF, GF, GC = B + 12, B + 16, B + 32, B + 44
    s("""
    v_lshrrev_b32 v{lane}, 4, v{l16}
    v_and_b32 v{cc}, 3, v{lane}
    v_lshrrev_b32 v{rr}, 2, v{lane}
    v_and_b32 v{rr}, 3, v{rr}
    v_lshrrev_b32 v{gg}, 4, v{lane}
    v_lshl_add_u32 v{r8}, v{gg}, 3, v{rr}
    v_mul_u32_u24 v{gb}, 192, v{r8}
    s_mul_i32 s{a}, s{w}, 48
    s_add_u32 s{a}, s{a}, {gl}
    v_add_u32 v{gb}, s{a}, v{gb}
    v_lshl_add_u32 v{g1}, v{cc}, 3, v{gb}
    v_and_b32 v{g2}, 1, v{cc}
    v_mul_u32_u24 v{g2}, 6144, v{g2}
    v_lshrrev_b32 v{sa}, 1, v{cc}
    v_lshl_add_u32 v{g2}, v{sa}, 3, v{g2}
    v_add_u32 v{g2}, v{g2}, v{gb}
    """.format(lane=lane, cc=cc, rr=rr, gg=gg, r8=r8, l16=vL16, w=sW, a=a, gl=G_LDS, gb=gb, g1=g1, g2=g2, sa=sa))
    for t in range(2):
        s("ds_read_b64_tr_b16 v[%d:%d], v%d offset:%d" % (GF + 2 * t, GF + 1 + 2 * t, g1, t * 768))
        s("ds_read_b64_tr_b16 v[%d:%d], v%d offset:%d" % (GF + 4 + 2 * t, GF + 5 + 2 * t, g1, t * 768 + 6144))
        s("ds_read_b64_tr_b16 v[%d:%d], v%d offset:%d" % (GF + 8 + 2 * t, GF + 9 + 2 * t, g2, t * 768 + 32))
    s("""
    v_lshlrev_b32 v{sa}, 7, v{r8}
    v_lshl_add_u32 v{sa}, v{cc}, 4, v{sa}
    s_lshl_b32 s{a}, s{w}, 12
    s_add_u32 s{a}, s{a}, {sl}
    v_add_u32 v{sa}, s{a}, v{sa}
    """.format(r8=r8, cc=cc, a=a, w=sW, sl=S_LDS, sa=sa))
    for bb in range(2):
        for jl in range(2):
            f = bb * 2 + jl
            for t in range(2):
                s("ds_read_b64_tr_b16 v[%d:%d], v%d offset:%d" % (SF + 4 * f + 2 * t, SF + 1 + 4 * f + 2 * t, sa, t * 512 + 64 * bb + 8 * jl))
    for k in range(4):
        s("v_mov_b32 v%d, 0x3f803f80" % (ones + k))
    s("""
    v_lshlrev_b32 v{csa}, 2, v{lane}
    v_cmp_gt_u32 vcc, 16, v{lane}
    v_mov_b32 v{oob}, 0x7ffffff0
    v_cndmask_b32 v{csa}, v{oob}, v{csa}, vcc
    """.format(csa=csa, lane=lane, oob=oob))
    s("""
    s_lshr_b32 s{a}, s2, 4
    s_lshl_b32 s{a}, s{a}, 2
    s_add_u32 s{a}, s{a}, s{w}
    s_and_b32 s{b}, s2, 15
    s_mul_i32 s{c}, s{a}, {k48}
    s_mul_i32 s{d}, s{b}, {k3}
    s_add_u32 s{c}, s{c}, s{d}
    s_add_u32 s{c}, s{c}, {PG}
    """.format(a=a, b=b, c=c, d=d, w=sW, k48=48 * KB, k3=3 * KB, PG=PG))
    for sub in range(3):
        s("buffer_store_dwordx4 v[%d:%d], v%d, s[8:11], s%d offen offset:%d sc1" % (GF + 4 * sub, GF + 3 + 4 * sub, vL16, c, sub * 1024))
    for sub in range(3):
        s("v_mfma_f32_16x16x32_bf16 v[%d:%d], v[%d:%d], v[%d:%d], 0" % (GC + 4 * sub, GC + 3 + 4 * sub, ones, ones + 3, GF + 4 * sub, GF + 3 + 4 * sub))
    s("""
    s_mul_i32 s{c}, s{a}, {k3}
    s_lshl_b32 s{d}, s{b}, 6
    s_add_u32 s{c}, s{c}, s{d}
    s_add_u32 s{c}, s{c}, {CSG}
    """.format(a=a, b=b, c=c, d=d, k3=3 * KB, CSG=CSG))
    for sub in range(3):
        s("buffer_store_dword v%d, v%d, s[8:11], s%d offen offset:%d sc1" % (GC + 4 * sub, csa, c, sub * 1024))
    s("""
    s_lshl_b32 s{a}, s2, 2
    s_add_u32 s{a}, s{a}, s{w}
    s_sub_u32 s{a}, s{a}, 544
    s_cmp_ge_i32 s{a}, 0
    s_cselect_b32 s{d}, 0, 1
    s_lshl_b32 s{d}, s{d}, 30
    v_or_b32 v{so}, s{d}, v{l16}
    s_max_i32 s{a}, s{a}, 0
    s_and_b32 s{b}, s{a}, 15
    s_lshr_b32 s{b}, s{b}, 2
    s_lshl_b32 s{c}, s{a}, 12
    s_add_u32 s{c}, s{c}, {PW}
    s_cmp_lt_u32 s{a}, 128
    s_cbranch_scc1 K_l1
    s_sub_u32 s{a}, s{a}, 128
    s_lshl_b32 s{c}, s{a}, 12
    s_add_u32 s{c}, s{c}, {PD}
    s_mul_hi_u32 s{d}, s{a}, {m44}
    s_mul_i32 s{d}, s{d}, 44
    s_sub_u32 s{a}, s{a}, s{d}
    s_mul_hi_u32 s{b}, s{a}, {m11}
    """.format(a=a, b=b, c=c, d=d, w=sW, l16=vL16, PW=PW, PD=PD, m44=magic(44), m11=magic(11), so=so))
    s("K_l1:")
    s("s_and_b32 s%d, s%d, 1" % (b, b))
    tok = None
    for bb in range(2):
        s("s_xor_b32 s%d, s%d, %d" % (d, b, bb))
        s("s_lshl_b32 s%d, s%d, 11" % (d, d))
        s("s_add_u32 s%d, s%d, s%d" % (d, d, c))
        for jl in range(2):
            f = bb * 2 + jl
            tok = s.vm("buffer_store_dwordx4 v[%d:%d], v%d, s[8:11], s%d offen offset:%d sc1" % (SF + 4 * f, SF + 3 + 4 * f, so, d, jl * 1024))
    return tok
```

```python
import sys, os
sys.path.insert(0, os.path.dirname(os.path.abspath(__file__)))
from layout import *
import prep, pack

HEADER = """; Kernarg layout (80 bytes, ptrs only, base s[0:1]):
; hand-off flags cleared;  (2) main: persistent, one workgroup per CU, both layer pairs with flag hand-offs.
"""

def kd(name, vgpr, sgpr, accum):
    return """
.amdhsa_kernel %s
  .amdhsa_next_free_vgpr %d
  .amdhsa_next_free_sgpr %d
  .amdhsa_accum_offset %d
  .amdhsa_group_segment_fixed_size 0
  .amdhsa_kernarg_size 80
  .amdhsa_user_sgpr_count 2
  .amdhsa_user_sgpr_kernarg_segment_ptr 1
  .amdhsa_system_sgpr_workgroup_id_x 1
.end_amdhsa_kernel""" % (name, vgpr, sgpr, accum)


def build_single(main_lines, main_lds, codepf, opts=None):
    out = ["""; Kernarg layout (80 bytes, ptrs only, base s[0:1]):
; then both layer pairs run with flag hand-offs between workgroups."""]
    out.append("; @launch grid=(256,1,1) block=(256,1,1) lds=%d" % main_lds)
    out.append('.amdgcn_target "amdgcn-amd-amdhsa--gfx950"')
    out.append(".text")
    out.append(".globl %s\n.p2align 8\n.type %s,@function\n%s:" % (KNAME, KNAME, KNAME))
    pk = [] if (opts or {}).get("direct", "0") == "1" else pack.gen_pack()
    for l in pk:
        if "@CODEPF" in l:
            raise RuntimeError
    out += pk
    out += main_lines
    out.append('.section .rodata,"a"\n.p2align 6')
    out.append(kd(KNAME, 512, 102, 256))
    return "\n".join(out) + "\n"


def build(main_lines, main_lds, opts=None):
    out = [HEADER.rstrip()]
    out.append("; @launch kernel=prep_kernel grid=(%d,1,1) block=(256,1,1) lds=%d" % (prep.PREP_WGS, prep.PREP_LDS))
    out.append("; @launch kernel=%s grid=(256,1,1) block=(256,1,1) lds=%d" % (KNAME, main_lds))
    out.append('.amdgcn_target "amdgcn-amd-amdhsa--gfx950"')
    out.append(".text")
    out.append(".globl prep_kernel\n.p2align 8\n.type prep_kernel,@function\nprep_kernel:")
    out += prep.gen_prep("prep_kernel", int((opts or {}).get("prof", 0)))
    out.append(".globl %s\n.p2align 8\n.type %s,@function\n%s:" % (KNAME, KNAME, KNAME))
    out += main_lines
    out.append('.section .rodata,"a"\n.p2align 6')
    out.append(kd("prep_kernel", 64, 64, 64))
    out.append(".p2align 6")
    out.append(kd(KNAME, 512, 102, 256))
    return "\n".join(out) + "\n"


if __name__ == "__main__":
    dst = sys.argv[1]
    opts = dict(a.split("=") for a in sys.argv[2:])
    if opts.get("main", "1") == "0":
        text = build(["  s_endpgm"], 0)
    else:
        import mainker
        single = opts.get("single", "1") == "1"
        if single:
            pack.CODEPF = mainker.Main(opts).codepf(3)
            pack.PROF = int(opts.get("prof", 0))
            pack.FLAG1_FIRST = int(opts.get("f1first", 1))
            pack.TLBWARM = int(opts.get("tlb", 0))
            pack.NCPF = 0 if opts.get("nocpf") == "1" else int(opts.get("cpf", 2))
        lines, lds = mainker.gen_main(opts)
        text = build_single(lines, lds, None, opts) if single else build(lines, lds, opts)
    open(dst, "w").write(text)
    print("wrote", dst, len(text), "bytes")
```

```python
from asmlib import *
from layout import *
import mainker as M
from mainker import V, Bx, fbits

QR, NS, SLOT = 49152, 5, 12288
G_LDS, S_LDS = 49152, 114688
sX = 88
sOUTP = 92
sQb = 87
sXh, sXm = 85, 86
vQ, vX, vT0, vT1, vStL = 132, 133, 130, 131, 122
RAWG, RAWS = 144, 156
AF = (96, 108)
CSA, ONES = 52, 64


def magic(d):
    return (2 ** 32 + d - 1) // d


def entry(m, s, codepf):
    w, cg, rb = M.sW, M.sCG, M.sRB
    s("""
    s_load_dwordx4 s[36:39], s[0:1], 0
    s_load_dwordx2 s[40:41], s[0:1], 16
    s_load_dwordx4 s[44:47], s[0:1], 32
    s_load_dwordx2 s[48:49], s[0:1], 48
    s_load_dwordx2 s[92:93], s[0:1], 56
    s_load_dwordx2 s[4:5], s[0:1], 72
    s_cmp_ge_u32 s2, 256
    s_cbranch_scc1 M_end
    """)
    m.pro_ids(s, 50)
    L, L16 = M.vLane, M.vL16
    s("""
    v_lshrrev_b32 v21, 3, v{l}
    v_mul_u32_u24 v{q}, 3072, v21
    v_lshrrev_b32 v22, 4, v{l}
    v_and_b32 v23, 3, v22
    v_lshlrev_b32 v23, 1, v23
    v_and_b32 v24, 7, v{l}
    v_xor_b32 v24, v23, v24
    v_lshl_add_u32 v{q}, v24, 4, v{q}
    v_and_b32 v23, 15, v{l}
    v_lshlrev_b32 v23, 11, v23
    v_lshl_add_u32 v{x}, v22, 4, v23
    s_mul_i32 s{qb}, s{w}, {k24}
    s_lshl_b32 s50, s{cg}, 7
    s_add_u32 s{qb}, s{qb}, s50
    s_lshl_b32 s{kw1}, s{w}, 10
    s_lshl_b32 s50, s{w}, 6
    s_lshl_b32 s{xm}, s{rb}, 16
    s_sub_u32 s{xh}, s{xm}, 32768
    s_max_i32 s{xh}, s{xh}, 0
    s_add_u32 s{xh}, s{xh}, s50
    s_add_u32 s{xm}, s{xm}, s50
    """.format(l=L, q=vQ, x=vX, qb=sQb, w=w, cg=cg, rb=rb, k24=8 * 3072, kw1=M.sKw1, xm=sXm, xh=sXh))
    s("""
    v_and_b32 v25, 3, v{l}
    v_lshrrev_b32 v26, 2, v{l}
    v_and_b32 v26, 3, v26
    v_lshl_add_u32 v27, v22, 3, v26
    v_lshrrev_b32 v28, 1, v25
    s_lshl_b32 s50, s{w}, 1
    v_add_u32 v28, s50, v28
    v_lshrrev_b32 v29, 1, v26
    v_lshlrev_b32 v29, 1, v29
    v_and_b32 v30, 1, v25
    v_lshlrev_b32 v30, 3, v30
    v_lshl_add_u32 v30, v27, 7, v30
    v_xor_b32 v31, v28, v29
    v_lshl_add_u32 v{t0}, v31, 4, v30
    v_add_u32 v{t0}, {qr}, v{t0}
    v_xor_b32 v29, 4, v29
    v_xor_b32 v31, v28, v29
    v_lshl_add_u32 v{t1}, v31, 4, v30
    v_add_u32 v{t1}, {qr512}, v{t1}
    s_lshl_b32 s50, s{w}, 14
    v_add_u32 v{stl}, s50, v{l16}
    """.format(l=L, w=w, t0=vT0, t1=vT1, qr=QR, qr512=QR + 512, stl=vStL, l16=L16))
    s("""
    s_lshr_b32 s50, s2, 4
    s_mul_i32 s50, s50, 96
    s_and_b32 s51, s{w}, 1
    s_mul_i32 s51, s51, 192
    s_and_b32 s52, s2, 15
    s_lshl_b32 s52, s52, 5
    """.format(w=w))
    for i in range(3):
        s("""
        v_add_u32 v32, s51, v{l}
        v_add_u32 v32, {o}, v32
        v_mul_u32_u24 v33, 5462, v32
        v_lshrrev_b32 v33, 16, v33
        v_mul_u32_u24 v34, 12, v33
        v_sub_u32 v34, v32, v34
        v_add_u32 v33, s52, v33
        v_mul_u32_u24 v33, 2752, v33
        v_lshlrev_b32 v34, 3, v34
        v_add_u32 v34, s50, v34
        v_lshl_add_u32 v33, v34, 1, v33
        v_cmp_gt_u32 vcc, 1376, v34
        v_mov_b32 v35, 0x7ffffff0
        v_cndmask_b32 v{d}, v35, v33, vcc
        """.format(l=L, o=64 * i, d=40 + i))
    s("""
    s_waitcnt lgkmcnt(0)
    s_mov_b32 s8, s4
    s_and_b32 s9, s5, 0xffff
    s_mov_b32 s10, 0x10000000
    s_mov_b32 s11, 0x20000
    s_mov_b32 s12, s38
    s_and_b32 s13, s39, 0xffff
    s_mov_b32 s14, {wq}
    s_mov_b32 s15, 0x20000
    s_mov_b32 s88, s36
    s_and_b32 s89, s37, 0xffff
    s_mov_b32 s90, {xs}
    s_mov_b32 s91, 0x20000
    s_add_u32 s4, s4, {ep}
    s_addc_u32 s5, s5, 0
    s_load_dword s95, s[4:5], 0
    """.format(wq=512 * 1536 * 2, xs=2048 * 512 * 2, ep=EPOCH))
    if m.opts.get("tlb", "1") == "1":
        s("""
        s_lshr_b32 s50, s2, 3
        s_lshl_b32 s50, s50, 2
        s_add_u32 s50, s50, s{w}
        s_mul_hi_u32 s51, s50, {m24}
        s_mul_i32 s51, s51, 24
        s_sub_u32 s50, s50, s51
        s_lshl_b32 s51, s50, 21
        s_mov_b32 s52, s8
        s_mov_b32 s53, s9
        s_cmp_eq_u32 s50, 18
        s_cselect_b32 s52, s40, s52
        s_cselect_b32 s53, s41, s53
        s_cmp_eq_u32 s50, 19
        s_cselect_b32 s52, s48, s52
        s_cselect_b32 s53, s49, s53
        s_cmp_eq_u32 s50, 20
        s_cselect_b32 s52, s44, s52
        s_cselect_b32 s53, s45, s53
        s_cmp_eq_u32 s50, 21
        s_cselect_b32 s52, s46, s52
        s_cselect_b32 s53, s47, s53
        s_cmp_eq_u32 s50, 22
        s_cselect_b32 s52, s92, s52
        s_cselect_b32 s53, s93, s53
        s_cmp_eq_u32 s50, 23
        s_cselect_b32 s52, s36, s52
        s_cselect_b32 s53, s37, s53
        s_cmp_ge_u32 s50, 18
        s_cselect_b32 s51, 0, s51
        s_and_b32 s53, s53, 0xffff
        s_mov_b32 s54, 0x10000000
        s_mov_b32 s55, 0x20000
        v_mov_b32 v32, 0
        buffer_load_dword v135, v32, s[52:55], s51 offen
        """.format(w=w, m24=magic(24)))
        s[-1].w = []
    qtok = {}
    atok = {}
    def q_issue(t, ks):
        for p in range(3):
            t("s_add_u32 m0, s%d, %d" % (M.sKw1, QR + (ks % NS) * SLOT + p * 4096))
            t("s_add_u32 s%d, s%d, %d" % (M.sT, sQb, ks * 32 * 3072 + p * 1024))
            qtok[ks] = t.vm("buffer_load_dwordx4 v%d, s[12:15], s%d offen lds" % (vQ, M.sT))
    m.q_issue, m.qtok = q_issue, qtok
    A = groupsA_raw(m, 0)
    m.A_first = A
    if m.local:
        s("""
        s_lshr_b32 s50, s2, 3
        s_lshl_b32 s50, s50, 2
        s_add_u32 s50, s50, s{w}
        s_mul_i32 s51, s50, {k12}
        v_lshlrev_b32 v32, 7, v{l}
        v_add_u32 v33, s51, v32
        buffer_load_dword v134, v33, s[12:15], 0 offen
        v_add_u32 v33, 8192, v33
        v_cmp_gt_u32 vcc, 32, v{l}
        v_mov_b32 v35, 0x7ffffff0
        v_cndmask_b32 v33, v35, v33, vcc
        buffer_load_dword v134, v33, s[12:15], 0 offen
        s_and_b32 s51, s2, 7
        s_lshl_b32 s51, s51, 18
        s_lshl_b32 s50, s50, 11
        s_add_u32 s51, s51, s50
        v_add_u32 v33, s51, v32
        v_cmp_gt_u32 vcc, 16, v{l}
        v_cndmask_b32 v33, v35, v33, vcc
        buffer_load_dword v134, v33, s[88:91], 0 offen
        """.format(w=w, l=L, k12=96 * 128))
        for x in s:
            if x.text.startswith("buffer_load_dword v134"):
                x.w = []
    q_issue(s, 0)
    for g in A[0][:3]:
        s.extend(g)
    q_issue(s, 1)
    m.second_batch = Stream()
    for ks in range(2, NS):
        q_issue(m.second_batch, ks)
    for g in A[0][3:6]:
        m.second_batch.extend(g)
    m.a_later = A[0][6:]
    s("""
    s_lshl_b32 s50, s2, 2
    s_add_u32 s50, s50, s{w}
    s_mov_b32 s52, s38
    s_mov_b32 s53, s39
    s_mov_b32 s54, {wq}
    s_mul_hi_u32 s56, s50, {m48}
    s_mul_i32 s57, s56, 48
    s_sub_u32 s57, s50, s57
    s_mul_hi_u32 s58, s57, {m3}
    s_mul_i32 s59, s58, 3
    s_sub_u32 s59, s57, s59
    s_lshl_b32 s59, s59, 10
    s_lshl_b32 s56, s56, 7
    s_add_u32 s59, s59, s56
    s_movk_i32 s60, 3072
    s_cmp_lt_u32 s50, 384
    s_cbranch_scc1 D_raw
    s_mov_b32 s52, s40
    s_mov_b32 s53, s41
    s_mov_b32 s54, {wo}
    s_sub_u32 s56, s50, 384
    s_and_b32 s58, s56, 15
    s_lshr_b32 s59, s56, 4
    s_lshl_b32 s59, s59, 7
    s_movk_i32 s60, 1024
    s_cmp_lt_u32 s50, 512
    s_cbranch_scc1 D_raw
    s_mov_b32 s52, s48
    s_mov_b32 s53, s49
    s_mov_b32 s54, {wd}
    s_sub_u32 s56, s50, 512
    s_mul_hi_u32 s59, s56, {m44}
    s_mul_i32 s57, s59, 44
    s_sub_u32 s58, s56, s57
    s_lshl_b32 s59, s59, 7
    s_cmp_lt_u32 s50, 864
    s_cbranch_scc1 D_raw
    s_mov_b32 s54, 0
    s_mov_b32 s58, 0
    s_mov_b32 s59, 0
    """.format(w=w, wq=512 * 1536 * 2, wo=512 * 512 * 2, wd=1376 * 512 * 2, m48=magic(48), m3=magic(3), m44=magic(44)))
    s("D_raw:")
    s("""
    s_and_b32 s53, s53, 0xffff
    s_mov_b32 s55, 0x20000
    s_lshl_b32 s58, s58, 5
    v_lshrrev_b32 v32, 3, v{l}
    v_add_u32 v32, s58, v32
    v_mul_lo_u32 v32, v32, s60
    v_and_b32 v33, 7, v{l}
    v_lshl_add_u32 v32, v33, 4, v32
    v_add_u32 v32, s59, v32
    s_lshl_b32 s60, s60, 3
    """.format(l=L))
    for i in range(4):
        s("buffer_load_dwordx4 %s, v32, s[52:55], 0 offen" % V(RAWS + 4 * i, 4))
        if i < 3:
            s("v_add_u32 v32, s60, v32")
    s("""
    s_cmp_ge_u32 s{w}, 2
    s_cselect_b32 s52, s46, s44
    s_cselect_b32 s53, s47, s45
    s_and_b32 s53, s53, 0xffff
    s_mov_b32 s54, {gs}
    """.format(w=w, gs=512 * 1376 * 2))
    for i in range(3):
        s("buffer_load_dwordx4 %s, v%d, s[52:55], 0 offen" % (V(RAWG + 4 * i, 4), 40 + i))
    s(codepf)


def groupsA_raw(m, h):
    groups, ctok = [], []
    srcs = [(sXh, 0), (sXm, 0), (sXm, 32768)]
    for c in range(4):
        tk = None
        for sub, (sr, cc) in enumerate(srcs):
            g = Stream()
            g("s_add_u32 m0, s%d, %d" % (M.sKw1, M.REG[h] + sub * 16384 + c * 4096))
            g("s_add_u32 s%d, s%d, %d" % (M.sT, sr, cc + h * 1024 + c * 256))
            tk = g.vm("buffer_load_dwordx4 v%d, s[%d:%d], s%d offen lds" % (vX, sX, sX + 3, M.sT))
            groups.append(g)
        ctok.append(tk)
    return groups, None, ctok


def stats_partial(h, acc, tmp, adr, ks_list, first):
    t = Stream()
    if first:
        t("v_mov_b32 v%d, 0" % acc)
        t("v_mov_b32 v%d, 0" % (acc + 1))
    for j, ks in enumerate(ks_list):
        r = tmp + 4 * (j & 1)
        t("ds_read_b128 %s, v%d offset:%d" % (V(r, 4), adr, ks * 1024))
    return t


def stats_dots(acc, r, ones):
    t = Stream()
    for k in range(4):
        t("v_dot2c_f32_bf16 v%d, v%d, v%d" % (acc, r + k, ones))
        t("v_dot2c_f32_bf16 v%d, v%d, v%d" % (acc + 1, r + k, r + k))
    return t


def stats_final(m, s, h, a):
    s("v_permlane16_swap_b32 v%d, v%d" % (a, a + 1))
    s("v_add_f32 v%d, v%d, v%d" % (a, a, a + 1))
    s("v_mov_b32 v%d, v%d" % (a + 1, a))
    s("v_permlane32_swap_b32 v%d, v%d" % (a, a + 1))
    s("v_add_f32 v%d, v%d, v%d" % (a, a, a + 1))
    s("v_mov_b32 v%d, v%d" % (a + 1, a))
    s("v_permlane16_swap_b32 v%d, v%d" % (a, a + 1))
    s("v_mul_f32 v%d, %s, v%d" % (a, "0x%08x" % fbits(-1.0 / 512), a))
    s("v_mul_f32 v%d, v%d, v%d" % (a + 2, a, a))
    s("v_fma_f32 v%d, v%d, s%d, -v%d" % (a + 1, a + 1, M.sK, a + 2))
    s("v_max_f32 v%d, 0, v%d" % (a + 1, a + 1))
    s("v_add_f32 v%d, s%d, v%d" % (a + 1, M.sK + 1, a + 1))
    s("v_rsq_f32 v%d, v%d" % (a + 1, a + 1))
    s("v_cndmask_b32 v%d, v%d, v%d, s[%d:%d]" % (a, a, a + 1, M.sOdd, M.sOdd + 1))
    tok = Tok("statw")
    s("ds_write_b32 v%d, v%d offset:%d" % (M.vStatW, a, h * 1024), tok=tok)
    return tok


def first_segment(m, s):
    mm = "v_mfma_f32_16x16x32_bf16"
    ACC = M.ACC
    Q = [None, ACC, ACC + 4]
    K = [ACC + 8, ACC + 12, ACC + 16]
    Vv = [ACC + 20, ACC + 24, ACC + 28]
    ctok = m.A_first[2]
    SA, ST_ = 120, 124
    for k in range(4):
        s("v_mov_b32 v%d, 0x3f803f80" % (ONES + k))
    s("v_mov_b32 v%d, 0" % SA)
    s("v_mov_b32 v%d, 0" % (SA + 1))

    def mfma_list(ks):
        c = (lambda r: "0" if ks == 0 else V(r, 4))
        fr = AF[ks & 1]
        out = []
        for sub in range(3):
            x = V(fr + 4 * sub, 4)
            if sub > 0:
                out.append("%s %s, %s, %s, %s" % (mm, V(Q[sub], 4), Bx(3 * ks), x, c(Q[sub])))
            out.append("%s %s, %s, %s, %s" % (mm, V(K[sub], 4), Bx(3 * ks + 1), x, c(K[sub])))
            out.append("%s %s, %s, %s, %s" % (mm, V(Vv[sub], 4), x, Bx(3 * ks + 2), c(Vv[sub])))
        for p in range(3):
            out.append("%s %s, %s, %s, %s" % (mm, V(CSA + 4 * p, 4), V(ONES, 4), Bx(3 * ks + p), c(CSA + 4 * p)))
        return out

    STB = (ST_, 136)
    trtok = {}
    for ks in range(17):
        if ks % 2 == 0:
            m.fs(s, "ks%d" % ks)
        side = Stream()
        if ks < 16:
            s.wait_vm(m.qtok[ks])
            if ks % 4 == 0:
                s.wait_vm(ctok[ks // 4])
            if ks >= 1:
                s.wait_ds(trtok[ks - 1])
            s("s_barrier")
            slot = (ks % NS) * SLOT
            for p in range(3):
                f = 3 * ks + p
                side("ds_read_b64_tr_b16 a[%d:%d], v%d offset:%d" % (4 * f, 4 * f + 1, vT0, slot + p * 4096)).meta["bname2"] = ("Q", Bx(f))
                trtok[ks] = Tok("tr")
                side("ds_read_b64_tr_b16 a[%d:%d], v%d offset:%d" % (4 * f + 2, 4 * f + 3, vT1, slot + p * 4096), tok=trtok[ks])
            for sub in range(3):
                side("ds_read_b128 %s, v%d offset:%d" % (V(AF[ks & 1] + 4 * sub, 4), M.vL16, sub * 16384 + ks * 1024))
            side("ds_read_b128 %s, v%d offset:%d" % (V(STB[ks & 1], 4), vStL, ks * 1024))
            if ks >= 1 and ks - 1 + NS < 16:
                m.q_issue(side, ks - 1 + NS)
            if ks in (1, 4):
                for g in m.a_later[(0 if ks == 1 else 3):(3 if ks == 1 else 6)]:
                    side.extend(g)
        if ks >= 1:
            side.extend(stats_dots(SA, STB[(ks - 1) & 1], ONES))
            ml = mfma_list(ks - 1)
            q = list(side)
            per = -(-len(q) // len(ml))
            for i, x in enumerate(ml):
                s(x)
                for y in q[i * per:(i + 1) * per]:
                    s.append(y)
        else:
            s.extend(side)
    a = ST_
    s("v_and_b32 v%d, 0xf0, v%d" % (a, M.vL16))
    s("v_lshrrev_b32 v%d, 2, v%d" % (a, a))
    s("s_mul_i32 s59, s%d, 192" % M.sW)
    s("s_add_u32 s59, s59, %d" % M.CSL)
    s("v_add_u32 v%d, s59, v%d" % (a, a))
    tok = stats_final(m, s, 0, SA)
    for p in range(3):
        s("ds_write_b32 v%d, v%d offset:%d" % (a, CSA + 4 * p, p * 64))
    s.wait_ds()
    s("s_barrier")
    s("s_mov_b32 s12, s%d" % sOUTP)
    s("s_and_b32 s13, s%d, 0xffff" % (sOUTP + 1))
    s("s_mov_b32 s14, 0x200000")


def late(m, s, tmp):
    a, b, c, d = tmp
    w, L16 = M.sW, M.vL16
    B = 172
    lane, cc, rr, gg, r8 = B, B + 1, B + 2, B + 3, B + 4
    csa, oob, gb, g1, g2, so = B + 5, B + 6, B + 7, B + 8, B + 9, B + 10
    ad = B + 12
    ones, SF, GF, GC = B + 16, B + 20, B + 36, B + 48
    s("s_mul_i32 s%d, s%d, 3072" % (a, w))
    s("s_add_u32 s%d, s%d, %d" % (a, a, G_LDS))
    s("v_add_u32 v%d, s%d, v%d" % (gb, a, L16))
    for i in range(3):
        s("ds_write_b128 v%d, %s offset:%d" % (gb, V(RAWG + 4 * i, 4), i * 1024))
    s("s_lshl_b32 s%d, s%d, 12" % (a, w))
    s("s_add_u32 s%d, s%d, %d" % (a, a, S_LDS))
    s("v_add_u32 v%d, s%d, v%d" % (g1, a, L16))
    for i in range(4):
        s("ds_write_b128 v%d, %s offset:%d" % (g1, V(RAWS + 4 * i, 4), i * 1024))
    s("""
    v_lshrrev_b32 v{lane}, 4, v{l16}
    v_and_b32 v{cc}, 3, v{lane}
    v_lshrrev_b32 v{rr}, 2, v{lane}
    v_and_b32 v{rr}, 3, v{rr}
    v_lshrrev_b32 v{gg}, 4, v{lane}
    v_lshl_add_u32 v{r8}, v{gg}, 3, v{rr}
    s_lshl_b32 s{b}, s2, 2
    s_add_u32 s{b}, s{b}, s{w}
    s_cmp_lt_u32 s{b}, 384
    s_cselect_b32 s{c}, 3, 4
    v_lshlrev_b32 v{so}, s{c}, v{cc}
    v_lshl_add_u32 v{so}, v{r8}, 7, v{so}
    v_add_u32 v{so}, s{a}, v{so}
    s_cselect_b32 s{c}, 32, 8
    v_add_u32 v{ad1}, s{c}, v{so}
    v_add_u32 v{ad2}, 64, v{so}
    v_add_u32 v{ad3}, 64, v{ad1}
    v_mov_b32 v{ad0}, v{so}
    """.format(lane=lane, cc=cc, rr=rr, gg=gg, r8=r8, l16=L16, w=w, a=a, b=b, c=c, so=so, ad0=ad, ad1=ad + 1, ad2=ad + 2, ad3=ad + 3))
    s("""
    v_mul_u32_u24 v{gb}, 192, v{r8}
    s_mul_i32 s{a}, s{w}, 48
    s_add_u32 s{a}, s{a}, {gl}
    v_add_u32 v{gb}, s{a}, v{gb}
    v_lshl_add_u32 v{g1}, v{cc}, 3, v{gb}
    v_and_b32 v{g2}, 1, v{cc}
    v_mul_u32_u24 v{g2}, 6144, v{g2}
    v_lshrrev_b32 v{oob}, 1, v{cc}
    v_lshl_add_u32 v{g2}, v{oob}, 3, v{g2}
    v_add_u32 v{g2}, v{g2}, v{gb}
    """.format(gb=gb, r8=r8, a=a, w=w, gl=G_LDS, g1=g1, g2=g2, cc=cc, oob=oob))
    s.wait_ds()
    s("s_barrier")
    for t in range(2):
        s("ds_read_b64_tr_b16 v[%d:%d], v%d offset:%d" % (GF + 2 * t, GF + 1 + 2 * t, g1, t * 768))
        s("ds_read_b64_tr_b16 v[%d:%d], v%d offset:%d" % (GF + 4 + 2 * t, GF + 5 + 2 * t, g1, t * 768 + 6144))
        s("ds_read_b64_tr_b16 v[%d:%d], v%d offset:%d" % (GF + 8 + 2 * t, GF + 9 + 2 * t, g2, t * 768 + 32))
    for f in range(4):
        for t in range(2):
            s("ds_read_b64_tr_b16 v[%d:%d], v%d offset:%d" % (SF + 4 * f + 2 * t, SF + 1 + 4 * f + 2 * t, ad + f, t * 512))
    for k in range(4):
        s("v_mov_b32 v%d, 0x3f803f80" % (ones + k))
    s("""
    v_lshlrev_b32 v{csa}, 2, v{lane}
    v_cmp_gt_u32 vcc, 16, v{lane}
    v_mov_b32 v{oob}, 0x7ffffff0
    v_cndmask_b32 v{csa}, v{oob}, v{csa}, vcc
    s_lshr_b32 s{a}, s2, 4
    s_lshl_b32 s{a}, s{a}, 2
    s_add_u32 s{a}, s{a}, s{w}
    s_and_b32 s{b}, s2, 15
    s_mul_i32 s{c}, s{a}, {k48}
    s_mul_i32 s{d}, s{b}, {k3}
    s_add_u32 s{c}, s{c}, s{d}
    s_add_u32 s{c}, s{c}, {PG}
    """.format(csa=csa, lane=lane, oob=oob, a=a, b=b, c=c, d=d, w=w, k48=48 * KB, k3=3 * KB, PG=PG))
    for sub in range(3):
        s("buffer_store_dwordx4 v[%d:%d], v%d, s[8:11], s%d offen offset:%d sc1" % (GF + 4 * sub, GF + 3 + 4 * sub, L16, c, sub * 1024))
    for sub in range(3):
        s("v_mfma_f32_16x16x32_bf16 v[%d:%d], v[%d:%d], v[%d:%d], 0" % (GC + 4 * sub, GC + 3 + 4 * sub, ones, ones + 3, GF + 4 * sub, GF + 3 + 4 * sub))
    s("""
    s_mul_i32 s{c}, s{a}, {k3}
    s_lshl_b32 s{d}, s{b}, 6
    s_add_u32 s{c}, s{c}, s{d}
    s_add_u32 s{c}, s{c}, {CSG}
    """.format(a=a, b=b, c=c, d=d, k3=3 * KB, CSG=CSG))
    for sub in range(3):
        s("buffer_store_dword v%d, v%d, s[8:11], s%d offen offset:%d sc1" % (GC + 4 * sub, csa, c, sub * 1024))
    e = so
    s("""
    s_lshl_b32 s{a}, s2, 2
    s_add_u32 s{a}, s{a}, s{w}
    s_cmp_lt_u32 s{a}, 864
    s_cselect_b32 s{d}, 0, 1
    s_lshl_b32 s{d}, s{d}, 30
    v_or_b32 v{e}, s{d}, v{l16}
    s_mul_hi_u32 s{b}, s{a}, {m48}
    s_mul_i32 s{c}, s{b}, 48
    s_sub_u32 s{c}, s{a}, s{c}
    s_mul_i32 s{b}, s{b}, 192
    s_add_u32 s{c}, s{c}, s{b}
    s_lshl_b32 s{c}, s{c}, 10
    s_add_u32 s{c}, s{c}, {PQ}
    s_mov_b32 s{b}, 0
    s_mov_b32 s0, {k48}
    s_mov_b32 s1, {k96}
    s_cmp_lt_u32 s{a}, 384
    s_cbranch_scc1 D_l1
    s_movk_i32 s0, 1024
    s_movk_i32 s1, 2048
    s_sub_u32 s{d}, s{a}, 384
    s_lshl_b32 s{c}, s{d}, 12
    s_add_u32 s{c}, s{c}, {PW}
    s_and_b32 s{b}, s{d}, 15
    s_lshr_b32 s{b}, s{b}, 2
    s_cmp_lt_u32 s{a}, 512
    s_cbranch_scc1 D_l1
    s_sub_u32 s{a}, s{a}, 512
    s_lshl_b32 s{c}, s{a}, 12
    s_add_u32 s{c}, s{c}, {PD}
    s_mul_hi_u32 s{d}, s{a}, {m44}
    s_mul_i32 s{d}, s{d}, 44
    s_sub_u32 s{a}, s{a}, s{d}
    s_mul_hi_u32 s{b}, s{a}, {m11}
    """.format(a=a, b=b, c=c, d=d, w=w, e=e, l16=L16, PQ=PQ, PW=PW, PD=PD, m48=magic(48), m44=magic(44), m11=magic(11), k48=48 * KB, k96=96 * KB))
    s("D_l1:")
    s("s_and_b32 s%d, s%d, 1" % (b, b))
    tok = None
    for hb in range(2):
        s("s_xor_b32 s%d, s%d, %d" % (d, b, hb))
        s("s_mul_i32 s%d, s%d, s1" % (d, d))
        s("s_add_u32 s%d, s%d, s%d" % (d, d, c))
        tok = s.vm("buffer_store_dwordx4 v[%d:%d], v%d, s[8:11], s%d offen sc1" % (SF + 8 * hb, SF + 3 + 8 * hb, e, d))
        s("s_add_u32 s%d, s%d, s0" % (d, d))
        tok = s.vm("buffer_store_dwordx4 v[%d:%d], v%d, s[8:11], s%d offen sc1" % (SF + 8 * hb + 4, SF + 7 + 8 * hb, e, d))
    return tok
```

```python
from asmlib import *
from layout import *
from collections import deque
import pack

REG = [0, 65536]
MISC = 131072
STP = MISC
STF = MISC + 16384
CSL = STF + 2048
BIAS = CSL + 2048
JUNK = BIAS + 3072
LDS_BYTES = 163840
SCR = [65536, 98304]

vLane, vL16, vLO, vOst, vH1, vH2, vRed, vPollA, vPollB, vOut = 1, 2, 3, 4, 5, 6, 7, 8, 9, 10
vStatR, vStatW, vStI, vStV, vCs, vCsV, vB1, vOne, vP = 11, 12, 13, 14, 15, 16, 17, 18, 19
ACC = 20
FR = 68
RING = 88
TMP = 136
RES = 140
DV = 144

sW, sRB, sCG, sRB3, sCG3 = 16, 17, 18, 19, 20
sA1h, sA1m, sA3, sKw = 21, 22, 23, 24
sSt1, sSt3 = 25, 26
sM2, sM4 = 28, 30
sT, sT2, sT3 = 32, 33, 34
sOdd = 36
sOnes = 38
sCnt = 40
sBQ, sBW, sBG, sBD = 41, 42, 43, 44
sOst, sA2, sRes, sHst = 45, 46, 47, 48
sA4 = 64
sF1, sF3 = 50, 51
sP2, sP3, sP4, sP1a = 52, 53, 54, 55
sOutO = 56
sStO = 57
sK = 96
sTB = 49
sPoll = 35
sA1hw, sA1mw, sA3w, sKw1 = 63, 66, 67, 27
vPollH = 0
vFlag = 1
vL128 = 10
sPfQ, sPfW, sPfG, sPfD = 90, 91, 92, 93
sM16 = 100
sPoll2 = 62
vP2 = 139
sPur = 5
sImp = 7
sXcc = 6
sTag = 61
sA2b = 60
sE, sE2 = 58, 59
sT4 = 3
sTS = 68

LOG2E = 1.4426950408889634
import struct
def fbits(x): return struct.unpack("<I", struct.pack("<f", x))[0]

POLL_LIMIT = 200000


def Bx(f):
    return "a[%d:%d]" % (4 * f, 4 * f + 3)
def By(f):
    if f < 16:
        return "a[%d:%d]" % (192 + 4 * f, 195 + 4 * f)
    return "v[%d:%d]" % (DV + 4 * (f - 16), DV + 4 * (f - 16) + 3)
def V(n, c=1):
    return "v%d" % n if c == 1 else "v[%d:%d]" % (n, n + c - 1)

def flag_off(p, phase, h):
    return FL + ((p * 4 + phase) * 2 + h) * 32 * 256


class Main:
    def __init__(self, opts):
        self.opts = opts
        self.prof = int(opts.get("prof", 0))
        self.local = opts.get("local", "1") == "1" and opts.get("single", "1") == "1"
        self.direct = opts.get("direct", "0") == "1" and opts.get("single", "1") == "1"
        self.slow = []
        self.npoll = 0
        self.nts = 0
        self.nimp = 0
        self.tsnames5 = []
        self.fine_on = False
        self.tsnames = []

    def ts(self, s, name):
        if self.prof == 6:
            if name in ("start", "prolog") or name.startswith(("s1O", "s2O", "s3E", "s3O", "s4O")):
                k = self.nts
                self.nts += 2
                self.tsnames += [name, name + ".rt"]
                s("s_waitcnt lgkmcnt(0)")
                s("s_memtime s[0:1]")
                s("s_waitcnt lgkmcnt(0)")
                s("s_mov_b32 s%d, s0" % (sTS + k))
                s("s_memrealtime s[0:1]")
                s("s_waitcnt lgkmcnt(0)")
                s("s_mov_b32 s%d, s0" % (sTS + k + 1))
            return
        if self.prof == 4:
            self.mark(s, "seg:" + name)
            return
        if self.prof == 3:
            f = self.opts.get("fine", "").split(",")
            if name == f[0]:
                self.fine_on = True
                self.fs(s, "begin:" + name)
            elif name == f[-1] and self.fine_on:
                self.fs(s, "end:" + name)
                self.fine_on = False
            return
        if self.prof == 8:
            return
        if not self.prof or (self.prof in (2, 5, 7) and name not in ("start", "s4O.1", "s4.1.1")):
            return
        if name in ("mf3O.0", "mf1O.0", "mf3E.0", "mf1O.1"):
            return
        if self.direct and name in ("prolog", "mf1E.1", "s1E.1", "s2E.1", "mf3E.1", "s3E.1", "mf3O.1", "s4E.1", "s2E.0", "s4E.0"):
            return
        if name == "start" and self.opts.get("single", "1") == "1":
            self.tsnames += ["entry"]
            self.nts += 1
        k = self.nts
        self.nts += 1
        self.tsnames.append(name)
        assert sTS + k < (85 if self.direct else 94), k
        s("s_waitcnt lgkmcnt(0)")
        s("s_memtime s[0:1]")
        s("s_waitcnt lgkmcnt(0)")
        s("s_mov_b32 s%d, s0" % (sTS + k))

    def fs(self, s, name):
        if self.prof == 4 and self.fine_on and not name.startswith("mf"):
            k = self.nts
            if sTS + k >= 94:
                return
            self.nts += 1
            self.tsnames.append(name)
            s("s_waitcnt lgkmcnt(0)")
            s("s_memtime s[0:1]")
            s("s_waitcnt lgkmcnt(0)")
            s("s_mov_b32 s%d, s0" % (sTS + k)).meta["glue"] = False
            return
        if self.prof != 3 or not self.fine_on:
            return
        k = self.nts
        lim = 84 if self.direct else (90 if self.opts.get("pf") == "1" else 94)
        if sTS + 2 * k + 1 >= (lim if name.startswith("end:") else lim - 2):
            return
        self.nts += 1
        self.tsnames.append(name)
        s.append(Ins("s_memtime s[%d:%d]" % (sTS + 2 * k, sTS + 2 * k + 1), async_=True))

    def pause(self, s, n):
        i = Ins("@comment")
        i.meta["c"] = "pause"
        i.meta["pause"] = n
        s.append(i)

    def rt(self, s, name):
        if self.prof == 8 and name.endswith(self.opts.get("rtp", ".1")) and name.split(".")[0] in self.opts.get("rts", "sig1O,chk2O,sig2E,chk3E,sig2O,chk3O,sig3O,chk4O,sig4E,chk1E").split(","):
            k = self.nts
            if sTS + 2 * k + 1 < 94:
                self.nts += 1
                self.tsnames.append(name)
                i = Ins("s_memtime s[2:3]", async_=True)
                i.text = "s_memrealtime s[%d:%d]" % (sTS + 2 * k, sTS + 2 * k + 1)
                s.append(i)

    def stm(self, phase):
        return " sc1"

    def purity(self):
        a, d = RING + 22, RING + 23
        i = Stream()
        i("v_lshrrev_b32 v%d, 2, v%d" % (a, vL16))
        i("s_and_b32 s58, s2, 7")
        i("s_lshl_b32 s58, s58, 7")
        i("s_add_u32 s%d, s58, %d" % (sPur, PXC))
        i("buffer_load_dword v%d, v%d, s[8:11], s%d offen sc1" % (d, a, sPur))
        n = self.npoll
        self.npoll += 1
        c = Stream()
        c("s_add_u32 s58, s%d, 1" % sTag)
        c("v_subrev_u32 v%d, s58, v%d" % (d, d))
        c("v_cmp_le_u32 vcc, 16, v%d" % d)
        c("s_mov_b32 vcc_hi, 0")
        c("s_cbranch_vccnz SLOW_%d" % n).meta["glue"] = True
        c("BACK_%d:" % n)
        c("v_cmp_ne_u32 vcc, s%d, v%d" % (sXcc, d))
        c("s_cmp_lg_u32 vcc_lo, 0")
        c("s_cselect_b32 s58, 1, 0")
        if self.opts.get("impure") == "1":
            c("s_mov_b32 s58, 1")
        c("s_cmp_eq_u32 s%d, 0" % sW)
        c("s_cselect_b32 s%d, s58, 0" % sImp)
        self.slow += ["SLOW_%d:" % n, "  s_mov_b32 s%d, 0" % sCnt, "SPIN_%d:" % n,
                      "  buffer_load_dword v%d, v%d, s[8:11], s%d offen sc1" % (d, a, sPur), "  s_waitcnt vmcnt(0)",
                      "  v_subrev_u32 v%d, s58, v%d" % (d, d), "  v_cmp_le_u32 vcc, 16, v%d" % d, "  s_nop 1", "  s_mov_b32 vcc_hi, 0",
                      "  s_cbranch_vccz BACK_%d" % n, "  s_add_u32 s%d, s%d, 1" % (sCnt, sCnt), "  s_cmp_lt_u32 s%d, %d" % (sCnt, POLL_LIMIT),
                      "  s_cbranch_scc1 SPIN_%d" % n, "  s_branch BACK_%d" % n]
        return i, c

    def mark(self, s, name):
        if self.prof == 4:
            i = Ins("@mark")
            i.meta["name"] = name
            s.append(i)

    def resolve_marks(self, s):
        out = Stream()
        f = self.opts.get("fine", "").split(",")
        on = False
        for ins in s:
            if ins.text == "@mark":
                nm = ins.meta["name"]
                if nm == "seg:" + f[0]:
                    on = True
                if on and sTS + self.nts < 94:
                    k = self.nts
                    self.nts += 1
                    self.tsnames.append(nm)
                    out("s_waitcnt lgkmcnt(0)")
                    out("s_memtime s[0:1]")
                    out("s_waitcnt lgkmcnt(0)")
                    out("s_mov_b32 s%d, s0" % (sTS + k))
                if nm == "seg:" + f[-1]:
                    on = False
                continue
            out.append(ins)
        return out

    def poll_issue(self, s, soff, const, vaddr, alt=False):
        vd, sp = (vP2, sPoll2) if alt else (vP, sPoll)
        s("s_add_u32 s%d, s%d, %d" % (sp, soff, const))
        s("buffer_load_dword v%d, v%d, s[8:11], s%d offen sc1" % (vd, vaddr, sp))
        self.mark(s, "pollI")

    def poll_check(self, s, vaddr, mask, alt=False):
        vP, sPoll = (vP2, sPoll2) if alt else (globals()["vP"], globals()["sPoll"])
        n = self.npoll
        self.npoll += 1
        self.mark(s, "chkA")
        s("v_cmp_ne_u32 vcc, s%d, v%d" % (sTag, vP))
        if mask is not None:
            s("s_and_b64 vcc, vcc, s[%d:%d]" % (mask, mask + 1))
        s("s_cbranch_vccnz SLOW_%d" % n).meta["glue"] = True
        s("BACK_%d:" % n).meta["glue"] = True
        s("s_barrier")
        self.mark(s, "chkB")
        t = []
        t.append("SLOW_%d:" % n)
        if self.prof == 5:
            t.append("  s_memtime s[0:1]")
            t.append("  s_waitcnt lgkmcnt(0)")
            t.append("  s_mov_b32 s%d, s0" % (sTS + 2 + n))
            self.tsnames5.append("poll%d" % n)
        t.append("  s_mov_b32 s%d, 0" % sCnt)
        t.append("SPIN_%d:" % n)
        t.append("  buffer_load_dword v%d, v%d, s[8:11], s%d offen sc1" % (vP, vaddr, sPoll))
        t.append("  s_waitcnt vmcnt(0)")
        t.append("  v_cmp_ne_u32 vcc, s%d, v%d" % (sTag, vP))
        t.append("  s_nop 1")
        if mask is not None:
            t.append("  s_and_b64 vcc, vcc, s[%d:%d]" % (mask, mask + 1))
        t.append("  s_cbranch_vccz %s_%d" % ("DONE" if self.prof == 5 else "BACK", n))
        t.append("  s_add_u32 s%d, s%d, 1" % (sCnt, sCnt))
        t.append("  s_cmp_lt_u32 s%d, %d" % (sCnt, POLL_LIMIT))
        t.append("  s_cbranch_scc1 SPIN_%d" % n)
        t.append("  s_branch BACK_%d" % n)
        if self.prof == 5:
            t.append("DONE_%d:" % n)
            t.append("  s_memtime s[0:1]")
            t.append("  s_waitcnt lgkmcnt(0)")
            t.append("  s_sub_u32 s%d, s0, s%d" % (sTS + 2 + n, sTS + 2 + n))
            t.append("  s_branch BACK_%d" % n)
        self.slow += t

    def dep(self, phase, p, h):
        if phase == 1:
            return (sP1a, flag_off(p - 1, 3, h), vPollH, sM16)
        if phase == 2:
            return (sP2, flag_off(p, 0, h), vPollB, sM2)
        if phase == 3:
            return (sP3, flag_off(p, 1, h), vPollA, sM16)
        return (sP4, flag_off(p, 2, h), vPollB, sM4)

    def ev_poll_issue(self, phase, p, h, alt=False):
        t = Stream()
        so, c, va, m = self.dep(phase, p, h)
        self.poll_issue(t, so, c, va, alt)
        return t

    def ev_poll_check(self, phase, p, h, alt=False):
        t = Stream()
        so, c, va, m = self.dep(phase, p, h)
        self.poll_check(t, va, m, alt)
        [x for x in t if x.text == "s_barrier"][-1].meta["checked"] = (phase, p, h)
        self.rt(t, "chk%d%s.%d" % (phase, "EO"[h], p))
        return t

    def ev_sig(self, phase, p, h, tok):
        t = Stream()
        self.sig(t, tok, sF3 if phase == 3 else sF1, flag_off(p, phase - 1, h), local=(self.local and phase != 4))
        self.rt(t, "sig%d%s.%d" % (phase, "EO"[h], p))
        return t

    def sig(self, s, tok, soff, const, local=False):
        self.mark(s, "sigA")
        s.wait_vm(tok)
        self.mark(s, "sigW")
        s("s_barrier")
        self.mark(s, "sigB")
        s("s_add_u32 s%d, s%d, %d" % (sT3, soff, const))
        if not local:
            s("buffer_store_dword v%d, v%d, s[8:11], s%d offen sc1" % (vOne, vFlag, sT3))
            return
        n = self.nimp
        self.nimp += 1
        s("s_cmp_eq_u32 s%d, 1" % sImp)
        s("s_cbranch_scc1 IMP_%d" % n).meta["glue"] = True
        s("buffer_store_dword v%d, v%d, s[8:11], s%d offen" % (vOne, vFlag, sT3)).meta["glue"] = True
        s("IMPB_%d:" % n)
        self.slow += ["IMP_%d:" % n,
                      "  buffer_store_dword v%d, v%d, s[8:11], s%d offen sc1" % (vOne, vFlag, sT3), "  s_branch IMPB_%d" % n]

    def groupsB(self, reg, sbase, lo, hi):
        out = []
        if self.opts.get("nob") == "1" and sbase != sBQ:
            return out
        if self.opts.get("nob") == "2" and sbase == sBG:
            return out
        for f in range(lo, hi):
            g = Stream()
            if f == lo or f % 4 == 0:
                g("s_add_u32 s%d, s%d, %d" % (sTB, sbase, (f // 4) * 4096))
            g("buffer_load_dwordx4 %s, v%d, s[8:11], s%d offen offset:%d" % (reg(f), vL16, sTB, (f % 4) * 1024)).meta["bname"] = \
                {sBQ: "Q", sBW: "W", sBG: "G", sBD: "D"}[sbase]
            out.append(g)
        return out

    def pf(self, sbase, const=0):
        g = Stream()
        if self.opts.get("pf") != "1":
            return g
        g("s_mov_b32 m0, %d" % JUNK)
        g("s_add_u32 s%d, s%d, %d" % (sT, sbase, const))
        g("buffer_load_dword v%d, s[8:11], s%d offen lds" % (vL128, sT))
        return g

    def groupsA_lds(self, phase, p, h):
        if phase == 1:
            srcs = [(sA1hw, 0), (sA1mw, 0), (sA1mw, 16384)]
            xb, st, sst = XB[2 * p], ST[2 * p], sSt1
        else:
            srcs = [(sA3w, i * 16384) for i in range(4)]
            xb, st, sst = XB[2 * p + 1], ST[2 * p + 1], sSt3
        groups, ctok = [], []
        def stats_groups():
            tk = None
            for i in range(2):
                g = Stream()
                g("s_lshl_b32 s%d, s%d, 11" % (sT2, sW))
                g("s_add_u32 m0, s%d, %d" % (sT2, STP + h * 8192))
                g("s_add_u32 s%d, s%d, %d" % (sT, sst, st + h * 131072))
                tk = g.vm("buffer_load_dwordx4 v%d, s[8:11], s%d offen offset:%d sc1 lds" % (vL16, sT, i * 1024))
                if not (phase == 1 and p == 0):
                    g[-1].meta["dep"] = (phase, p, h)
                groups.append(g)
            return tk
        stok = None
        for c in range(4):
            tk = None
            for sub, (sr, cc) in enumerate(srcs):
                g = Stream()
                g("s_add_u32 m0, s%d, %d" % (sKw1, REG[h] + sub * 16384 + c * 4096))
                g("s_add_u32 s%d, s%d, %d" % (sT, sr, xb + h * MB + cc + c * 4096))
                tk = g.vm("buffer_load_dwordx4 v%d, s[8:11], s%d offen sc1 lds" % (vL16, sT))
                if not (phase == 1 and p == 0):
                    g[-1].meta["dep"] = (phase, p, h)
                groups.append(g)
            ctok.append(tk)
            if c == 0:
                stok = stats_groups()
        return groups, stok, ctok

    def frag_seq(self, phase):
        nks = 4 if phase == 2 else 11
        return [(ss, ks) for ss in (1, 0) for ks in range(nks)]

    def ringreg(self, n):
        return RING + 4 * (n % 12)

    def loadA24_one(self, g, phase, p, h, n, st=sT):
        ss, ks = self.frag_seq(phase)[n]
        if phase == 2:
            if ss == 0:
                g("s_add_u32 s%d, s%d, %d" % (st, sA2, OB[p] + h * MB))
            else:
                g("s_add_u32 s%d, s%d, %d" % (st, sA2b, OB[p] + h * MB))
            g("buffer_load_dwordx4 %s, v%d, s[8:11], s%d offen offset:%d sc1" % (V(self.ringreg(n), 4), vL16, st, ks * 1024)).meta["dep"] = (phase, p, h)
        else:
            g("s_add_u32 s%d, s%d, %d" % (st, sA4 + ss, HB[p] + h * 3 * MB + (ks // 4) * 4096))
            g("buffer_load_dwordx4 %s, v%d, s[8:11], s%d offen offset:%d sc1" % (V(self.ringreg(n), 4), vL16, st, (ks % 4) * 1024)).meta["dep"] = (phase, p, h)

    def groupsA24(self, phase, p, h):
        out = []
        for n in range(min(12, len(self.frag_seq(phase)))):
            g = Stream()
            self.loadA24_one(g, phase, p, h, n)
            out.append(g)
        g = Stream()
        if self.direct and phase == 2 and p == 0:
            g("v_and_b32 v%d, 0xf0, v%d" % (RES, vL16))
            g("v_lshlrev_b32 v%d, 7, v%d" % (RES, RES))
            g("v_lshrrev_b32 v%d, 8, v%d" % (RES + 1, vL16))
            g("v_lshl_add_u32 v%d, v%d, 4, v%d" % (RES, RES + 1, RES))
            g("s_add_u32 s%d, s%d, %d" % (sT, sOutO, h * 1024))
            g("buffer_load_dwordx4 %s, v%d, s[88:91], s%d offen" % (V(RES, 4), RES, sT))
        else:
            g("s_add_u32 s%d, s%d, %d" % (sT, sRes, XB[2 * p + (0 if phase == 2 else 1)] + h * MB))
            g("buffer_load_dwordx4 %s, v%d, s[8:11], s%d offen sc1" % (V(RES, 4), vL16, sT))
        out.insert(min(4, len(out)), g)
        return out

    def stats_reduce(self, s, h, stok):
        a = RING
        adr = vStatR
        if h == 1:
            adr = RING + 8
            s("v_add_u32 v%d, 8192, v%d" % (adr, vStatR))
        s.wait_vm(stok)
        for i in range(4):
            s("ds_read2_b32 %s, v%d offset0:%d offset1:%d" % (V(a + 2 * i, 2), adr, 64 * i, 64 * i + 32))
        self.pause(s, 10)
        for (x, y) in ((0, 1), (2, 3), (4, 5), (6, 7), (0, 2), (4, 6), (0, 4)):
            s("v_add_f32 v%d, v%d, v%d" % (a + x, a + x, a + y))
        s("v_mov_b32 v%d, v%d" % (a + 1, a))
        s("v_permlane32_swap_b32 v%d, v%d" % (a, a + 1))
        s("v_add_f32 v%d, v%d, v%d" % (a, a, a + 1))
        s("v_mov_b32 v%d, v%d" % (a + 1, a))
        s("v_permlane16_swap_b32 v%d, v%d" % (a, a + 1))
        s("v_mul_f32 v%d, %s, v%d" % (a, "0x%08x" % fbits(-1.0 / 512), a))
        s("v_mul_f32 v%d, v%d, v%d" % (a + 2, a, a))
        s("v_fma_f32 v%d, v%d, s%d, -v%d" % (a + 1, a + 1, sK, a + 2))
        s("v_max_f32 v%d, 0, v%d" % (a + 1, a + 1))
        s("v_add_f32 v%d, s%d, v%d" % (a + 1, sK + 1, a + 1))
        s("v_rsq_f32 v%d, v%d" % (a + 1, a + 1))
        s("v_cndmask_b32 v%d, v%d, v%d, s[%d:%d]" % (a, a, a + 1, sOdd, sOdd + 1))
        self.stat_tok = Tok("statw")
        s("ds_write_b32 v%d, v%d offset:%d" % (vStatW, a, h * 1024), tok=self.stat_tok)

    def epi_pref(self, phase, h):
        hoff = h * 1024
        pub = Stream()
        pub.wait_ds(self.stat_tok)
        pub("s_barrier")
        if phase == 3:
            return {58: list(pub), 60: ["ds_read_b128 %s, v%d offset:768" % (V(68, 4), vCs)],
                    61: ["ds_read_b128 %s, v%d offset:832" % (V(72, 4), vCs)],
                    62: ["ds_read_b128 %s, v%d offset:896" % (V(76, 4), vCs)],
                    63: ["ds_read_b64 %s, v%d offset:%d" % (V(80, 2), vStI, hoff)]}
        return {37: list(pub), 38: ["ds_read_b128 %s, v%d offset:%d" % (V(52, 4), vStV, hoff)],
                39: ["ds_read_b128 %s, v%d offset:%d" % (V(56, 4), vStV, hoff + 256)],
                40: ["ds_read_b128 %s, v%d offset:%d" % (V(60, 4), vStV, hoff + 64)],
                41: ["ds_read_b128 %s, v%d offset:%d" % (V(64, 4), vStV, hoff + 256 + 64)],
                43: ["ds_read_b128 %s, v%d offset:64" % (V(80, 4), vCs)],
                44: ["ds_read_b32 v84, v%d" % vCsV],
                45: ["ds_read_b64 %s, v%d offset:%d" % (V(68, 2), vStI, hoff), "ds_read_b64 %s, v%d offset:%d" % (V(70, 2), vStI, hoff + 128)],
                46: ["ds_read_b64 %s, v%d offset:%d" % (V(72, 2), vStI, hoff + 256)],
                47: ["ds_read_b128 %s, v%d offset:0" % (V(76, 4), vCs)]}

    def mf13(self, phase, h):
        base = vL16 if h == 0 else vLO
        nsub = 3 if phase == 1 else 4
        nfr = 16 * nsub
        def rd(n):
            ks, sub = divmod(n, nsub)
            out = []
            if sub == 0 and ks % 4 == 0:
                out.append(("chunk", ks // 4))
            out.append("ds_read_b128 %s, v%d offset:%d" % (V(FR + 4 * (n % 5), 4), base, sub * 16384 + ks * 1024))
            return out
        pre = [x for n in range(5) for x in rd(n)]
        pref = self.epi_pref(phase, h)
        steps = []
        mm = "v_mfma_f32_16x16x32_bf16"
        Q = [None, ACC, ACC + 4]
        K = [ACC + 8, ACC + 12, ACC + 16]
        Vv = [ACC + 20, ACC + 24, ACC + 28]
        for ks in range(16):
            c = (lambda r: "0" if ks == 0 else V(r, 4))
            for sub in range(nsub):
                n = nsub * ks + sub
                x = V(FR + 4 * (n % 5), 4)
                grp = []
                if phase == 1:
                    if sub > 0:
                        grp.append("%s %s, %s, %s, %s" % (mm, V(Q[sub], 4), Bx(3 * ks), x, c(Q[sub])))
                    grp.append("%s %s, %s, %s, %s" % (mm, V(K[sub], 4), Bx(3 * ks + 1), x, c(K[sub])))
                    grp.append("%s %s, %s, %s, %s" % (mm, V(Vv[sub], 4), x, Bx(3 * ks + 2), c(Vv[sub])))
                else:
                    for j in range(3):
                        r = ACC + 12 * sub + 4 * j
                        grp.append("%s %s, %s, %s, %s" % (mm, V(r, 4), Bx(3 * ks + j), x, c(r)))
                for i, m in enumerate(grp):
                    bop = [o.strip() for o in m.split(",") if o.strip().startswith("a[")][0]
                    st = [Ins(m, need=(bop, "Q" if phase == 1 else "G"))]
                    if i == len(grp) - 1 and n + 5 < nfr:
                        st += rd(n + 5)
                    if i == len(grp) - 1:
                        st += pref.get(n, [])
                    steps.append(st)
        return pre, steps

    def mf24(self, phase, p, h):
        seq = self.frag_seq(phase)
        steps = []
        for n, (ss, ks) in enumerate(seq):
            x = V(self.ringreg(n), 4)
            for jj in range(4):
                r = ACC + 16 * ss + 4 * jj
                st = [Ins("v_mfma_f32_16x16x32_bf16 %s, %s, %s, %s" % (V(r, 4), By(4 * ks + jj), x, "0" if ks == 0 else V(r, 4)),
                          need=(By(4 * ks + jj), "W" if phase == 2 else "D"))]
                if n + 12 < len(seq):
                    t = Stream()
                    self.loadA24_one(t, phase, p, h, n + 12, sT4)
                    if jj == 2:
                        st.append(t[0])
                    if jj == 3:
                        st.append(t[1])
                steps.append(st)
        return steps, 2 * len(seq)

    def red_writes(self, xs, h):
        t = Stream()
        so = SCR[h] - 65536
        for x in xs:
            t("v_xor_b32 v%d, %d, v%d" % (TMP + x - 1, x << 13, vRed))
        for x in xs:
            for jl in range(2):
                t("ds_write_b128 v%d, %s offset:%d" % (TMP + x - 1, V(ACC + 8 * x + 4 * jl, 4), so + x * 2048 + jl * 1024))
        return t

    def seg24_mf(self, s, phase, p, h, at=None):
        steps, half = self.mf24(phase, p, h)
        at = dict(at or {})
        w = self.red_writes((2, 3), h)
        at.setdefault(half + 9, []).insert(0, w)
        self.run_mf(s, steps, at=at)

    def epi1(self, s, p, h):
        Q = [None, ACC, ACC + 4]
        K = [ACC + 8, ACC + 12, ACC + 16]
        Vv = [ACC + 20, ACC + 24, ACC + 28]
        SP = [None, 52, 60]
        SC = [None, 56, 64]
        st = [68, 70, 72]
        csq, csk, csv, cq = 76, 80, 84, 86
        hoff = h * 1024
        NM = [52, 60, 52]
        RS = [56, 64, 56]
        def rdv(sub):
            s("ds_read_b128 %s, v%d offset:%d" % (V(NM[sub], 4), vStV, hoff + sub * 64))
            s("ds_read_b128 %s, v%d offset:%d" % (V(RS[sub], 4), vStV, hoff + 256 + sub * 64))
        bc0 = "op_sel_hi:[0,1,1]"
        for sub in (1, 2):
            for hh in (0, 2):
                s("v_pk_fma_f32 %s, %s, %s, %s %s" % (V(Q[sub] + hh, 2), V(st[sub], 2), V(csq + hh, 2), V(Q[sub] + hh, 2), bc0))
            s("v_mul_f32 v%d, s%d, v%d" % (cq, sK + 2, st[sub] + 1))
            for hh in (0, 2):
                s("v_pk_mul_f32 %s, %s, %s op_sel_hi:[1,0]" % (V(Q[sub] + hh, 2), V(Q[sub] + hh, 2), V(cq, 2)))
            s("v_cvt_pk_bf16_f32 v%d, v%d, v%d" % (Q[sub], Q[sub], Q[sub] + 1))
            s("v_cvt_pk_bf16_f32 v%d, v%d, v%d" % (Q[sub] + 1, Q[sub] + 2, Q[sub] + 3))
        for sub in range(3):
            for hh in (0, 2):
                s("v_pk_fma_f32 %s, %s, %s, %s %s" % (V(K[sub] + hh, 2), V(st[sub], 2), V(csk + hh, 2), V(K[sub] + hh, 2), bc0))
            for hh in (0, 2):
                s("v_pk_mul_f32 %s, %s, %s op_sel:[0,1] op_sel_hi:[1,1]" % (V(K[sub] + hh, 2), V(K[sub] + hh, 2), V(st[sub], 2)))
            s("v_cvt_pk_bf16_f32 v%d, v%d, v%d" % (K[sub], K[sub], K[sub] + 1))
            s("v_cvt_pk_bf16_f32 v%d, v%d, v%d" % (K[sub] + 1, K[sub] + 2, K[sub] + 3))
        bp1, bp, bc = 68, 72, 76
        s("v_add_u32 v%d, %d, v%d" % (TMP + 2, BIAS, vL16))
        s("ds_read_b128 %s, v%d" % (V(bp1, 4), vB1))
        s("ds_read_b128 %s, v%d offset:1024" % (V(bp, 4), TMP + 2))
        s("ds_read_b128 %s, v%d offset:0" % (V(bc, 4), TMP + 2))
        for sub in range(3):
            for hh in (0, 2):
                s("v_pk_fma_f32 %s, %s, %s, %s op_sel_hi:[1,0,1]" % (V(Vv[sub] + hh, 2), V(NM[sub] + hh, 2), V(csv, 2), V(Vv[sub] + hh, 2)))
            for hh in (0, 2):
                s("v_pk_mul_f32 %s, %s, %s" % (V(Vv[sub] + hh, 2), V(Vv[sub] + hh, 2), V(RS[sub] + hh, 2)))
            if sub == 0:
                rdv(2)
            s("v_cvt_pk_bf16_f32 v%d, v%d, v%d" % (Vv[sub], Vv[sub], Vv[sub] + 1))
            s("v_cvt_pk_bf16_f32 v%d, v%d, v%d" % (Vv[sub] + 1, Vv[sub] + 2, Vv[sub] + 3))
        mm = "v_mfma_f32_16x16x16_bf16"
        s("%s %s, %s, %s, %s" % (mm, V(SP[1], 4), V(K[0], 2), V(Q[1], 2), V(bp1, 4)))
        s("%s %s, %s, %s, %s" % (mm, V(SC[1], 4), V(K[1], 2), V(Q[1], 2), V(bc, 4)))
        s("%s %s, %s, %s, %s" % (mm, V(SP[2], 4), V(K[1], 2), V(Q[2], 2), V(bp, 4)))
        s("%s %s, %s, %s, %s" % (mm, V(SC[2], 4), V(K[2], 2), V(Q[2], 2), V(bc, 4)))
        m = {1: 80, 2: 84}
        l = {1: 82, 2: 86}
        for sub in (1, 2):
            a, b = SP[sub], SC[sub]
            s("v_max3_f32 v%d, v%d, v%d, v%d" % (m[sub], a, a + 1, a + 2))
            s("v_max3_f32 v%d, v%d, v%d, v%d" % (m[sub] + 1, a + 3, b, b + 1))
            s("v_max3_f32 v%d, v%d, v%d, v%d" % (m[sub], m[sub], b + 2, b + 3))
            s("v_max_f32 v%d, v%d, v%d" % (m[sub], m[sub], m[sub] + 1))
        for sw in ("v_permlane16_swap_b32", "v_permlane32_swap_b32"):
            for sub in (1, 2):
                s("v_mov_b32 v%d, v%d" % (m[sub] + 1, m[sub]))
            for sub in (1, 2):
                s("%s v%d, v%d" % (sw, m[sub], m[sub] + 1))
            for sub in (1, 2):
                s("v_max_f32 v%d, v%d, v%d" % (m[sub], m[sub], m[sub] + 1))
        for sub in (1, 2):
            for r in (SP[sub], SP[sub] + 2, SC[sub], SC[sub] + 2):
                s("v_pk_add_f32 %s, %s, %s op_sel_hi:[1,0] neg_lo:[0,1] neg_hi:[0,1]" % (V(r, 2), V(r, 2), V(m[sub], 2)))
        for sub in (1, 2):
            for r in range(4):
                s("v_exp_f32 v%d, v%d" % (SP[sub] + r, SP[sub] + r))
                s("v_exp_f32 v%d, v%d" % (SC[sub] + r, SC[sub] + r))
        s("v_mov_b32 v76, 0x3f803f80")
        s("v_mov_b32 v77, 0x3f803f80")
        for sub in (1, 2):
            for r in (SP[sub], SC[sub]):
                s("v_cvt_pk_bf16_f32 v%d, v%d, v%d" % (r, r, r + 1))
                s("v_cvt_pk_bf16_f32 v%d, v%d, v%d" % (r + 1, r + 2, r + 3))
        lq = {1: 80, 2: 84}
        for sub in (1, 2):
            s("%s %s, %s, %s, 0" % (mm, V(lq[sub], 4), V(76, 2), V(SP[sub], 2)))
        for sub in (1, 2):
            s("%s %s, %s, %s, 0" % (mm, V(Q[sub], 4), V(Vv[sub - 1], 2), V(SP[sub], 2)))
        for sub in (1, 2):
            s("%s %s, %s, %s, %s" % (mm, V(lq[sub], 4), V(76, 2), V(SC[sub], 2), V(lq[sub], 4)))
        for sub in (1, 2):
            s("%s %s, %s, %s, %s" % (mm, V(Q[sub], 4), V(Vv[sub], 2), V(SC[sub], 2), V(Q[sub], 4)))
        l = lq
        for sub in (1, 2):
            s("v_rcp_f32 v%d, v%d" % (l[sub], l[sub]))
        for sub in (1, 2):
            for hh in (0, 2):
                s("v_pk_mul_f32 %s, %s, %s op_sel_hi:[1,0]" % (V(Q[sub] + hh, 2), V(Q[sub] + hh, 2), V(l[sub], 2)))
        o = ACC
        s("v_cvt_pk_bf16_f32 v%d, v%d, v%d" % (o, o, o + 1))
        s("v_cvt_pk_bf16_f32 v%d, v%d, v%d" % (o + 1, o + 2, o + 3))
        s("v_cvt_pk_bf16_f32 v%d, v%d, v%d" % (o + 2, o + 4, o + 5))
        s("v_cvt_pk_bf16_f32 v%d, v%d, v%d" % (o + 3, o + 6, o + 7))
        s("v_permlane16_swap_b32 v%d, v%d" % (o, o + 2))
        s("v_permlane16_swap_b32 v%d, v%d" % (o + 1, o + 3))
        s("s_add_u32 s%d, s%d, %d" % (sE, sOst, OB[p] + h * MB))
        return s.vm("buffer_store_dwordx4 %s, v%d, s[8:11], s%d offen%s" % (V(o, 4), vOst, sE, self.stm(1)))

    def epi3(self, s, p, h):
        csG, csU, csM = 68, 72, 76
        stp = [80, 82]
        c1 = 84
        hoff = h * 1024
        bq = TMP
        for sub in range(4):
            G, U, M = ACC + 12 * sub, ACC + 12 * sub + 4, ACC + 12 * sub + 8
            st = stp[sub & 1]
            if sub < 3:
                s("ds_read_b64 %s, v%d offset:%d" % (V(stp[(sub + 1) & 1], 2), vStI, hoff + (sub + 1) * 128))
            for (r, cs) in ((M, csM), (G, csG), (U, csU)):
                for hh in (0, 2):
                    s("v_pk_fma_f32 %s, %s, %s, %s op_sel_hi:[0,1,1]" % (V(r + hh, 2), V(st, 2), V(cs + hh, 2), V(r + hh, 2)))
            s("v_mul_f32 v%d, s%d, v%d" % (c1, sK + 3, st + 1))
            s("v_permlane16_swap_b32 v%d, v%d" % (M, M + 2))
            s("v_permlane16_swap_b32 v%d, v%d" % (M + 1, M + 3))
            gates = (G, G + 2, M)
            ups = (U, U + 2, M + 2)
            for r in gates:
                s("v_pk_mul_f32 %s, %s, %s op_sel_hi:[1,0]" % (V(r, 2), V(r, 2), V(c1, 2)))
            for r in gates:
                s("v_exp_f32 v%d, v%d" % (r, r))
                s("v_exp_f32 v%d, v%d" % (r + 1, r + 1))
            for r in ups:
                s("v_pk_mul_f32 %s, %s, %s op_sel:[0,1] op_sel_hi:[1,1]" % (V(r, 2), V(r, 2), V(st, 2)))
            for r in gates:
                s("v_pk_add_f32 %s, %s, s[%d:%d]" % (V(r, 2), V(r, 2), sOnes, sOnes + 1))
            for r in gates:
                s("v_rcp_f32 v%d, v%d" % (r, r))
                s("v_rcp_f32 v%d, v%d" % (r + 1, r + 1))
            for g, u in zip(gates, ups):
                s("v_pk_mul_f32 %s, %s, %s" % (V(u, 2), V(u, 2), V(g, 2)))
            dst = ACC + 12 * (sub & ~1) + 2 * (sub & 1)
            s("v_cvt_pk_bf16_f32 v%d, v%d, v%d" % (dst, U, U + 1))
            s("v_cvt_pk_bf16_f32 v%d, v%d, v%d" % (dst + 1, U + 2, U + 3))
            s("v_cvt_pk_bf16_f32 v%d, v%d, v%d" % (bq + sub, M + 2, M + 3))
        s("s_add_u32 s%d, s%d, %d" % (sE, sHst, HB[p] + h * 3 * MB))
        for pr in range(2):
            d = ACC + 24 * pr
            s("v_permlane16_swap_b32 v%d, v%d" % (d, d + 2))
            s("v_permlane16_swap_b32 v%d, v%d" % (d + 1, d + 3))
            if pr == 1:
                s("s_add_u32 s%d, s%d, %d" % (sE2, sE, 2 * 48 * KB))
            s.vm("buffer_store_dwordx4 %s, v%d, s[8:11], s%d offen%s" % (V(d, 4), vH1, sE if pr == 0 else sE2, self.stm(3)))
        s("v_permlane16_swap_b32 v%d, v%d" % (bq, bq + 1))
        s("v_permlane16_swap_b32 v%d, v%d" % (bq + 2, bq + 3))
        s("v_permlane32_swap_b32 v%d, v%d" % (bq, bq + 2))
        s("v_permlane32_swap_b32 v%d, v%d" % (bq + 1, bq + 3))
        return s.vm("buffer_store_dwordx4 %s, v%d, s[8:11], s%d offen%s" % (V(bq, 4), vH2, sE, self.stm(3)))

    def epi24(self, s, phase, p, h, sig=None, mid=None):
        so = SCR[h] - 65536
        a = ACC
        s.extend(self.red_writes((1,), h))
        if sig is not None:
            s.wait_vm(sig[3])
        s.wait_ds()
        s("s_barrier")
        if sig is not None:
            s("s_add_u32 s%d, s%d, %d" % (sT3, sF3 if sig[0] == 3 else sF1, flag_off(sig[1], sig[0] - 1, sig[2])))
            s("buffer_store_dword v%d, v%d, s[8:11], s%d offen sc1" % (vOne, vFlag, sT3))
        for x in (1, 2, 3):
            for jl in range(2):
                s("ds_read_b128 %s, v%d offset:%d" % (V(a + 8 * x + 4 * jl, 4), vRed, so + x * 2048 + jl * 1024))
        r = 52
        for i in range(4):
            s("v_lshlrev_b32 v%d, 16, v%d" % (r + 2 * i, RES + i))
            s("v_and_b32 v%d, 0xffff0000, v%d" % (r + 2 * i + 1, RES + i))
        for i in range(4):
            s("v_pk_add_f32 %s, %s, %s" % (V(a + 2 * i, 2), V(a + 2 * i, 2), V(r + 2 * i, 2)))
        for x in (1, 2, 3):
            for i in range(4):
                s("v_pk_add_f32 %s, %s, %s" % (V(a + 2 * i, 2), V(a + 2 * i, 2), V(a + 8 * x + 2 * i, 2)))
        o = 60
        for i in range(4):
            s("v_cvt_pk_bf16_f32 v%d, v%d, v%d" % (o + i, a + 2 * i, a + 2 * i + 1))
        final = (phase == 4 and p == 1)
        if final:
            s("s_add_u32 s%d, s%d, %d" % (sE, sOutO, h * 1024))
            s("v_and_b32 v52, 0xf0, v%d" % vL16)
            s("v_lshlrev_b32 v52, 7, v52")
            s("v_lshrrev_b32 v53, 8, v%d" % vL16)
            s("v_lshl_add_u32 v52, v53, 4, v52")
            tk = s.vm("buffer_store_dwordx4 %s, v52, s[12:15], s%d offen" % (V(o, 4), sE))
            if mid is not None:
                s.extend(mid)
            return tk
        xi = 2 * p + (1 if phase == 2 else 2)
        s("s_add_u32 s%d, s%d, %d" % (sE, sRes, XB[xi] + h * MB))
        s.vm("buffer_store_dwordx4 %s, v%d, s[8:11], s%d offen%s" % (V(o, 4), vL16, sE, self.stm(phase)))
        if mid is not None:
            s.extend(mid)
        u = 52
        s("v_pk_add_f32 %s, %s, %s" % (V(u, 2), V(a, 2), V(a + 2, 2)))
        s("v_pk_add_f32 %s, %s, %s" % (V(u + 2, 2), V(a + 4, 2), V(a + 6, 2)))
        s("v_pk_mul_f32 %s, %s, %s" % (V(u + 4, 2), V(a, 2), V(a, 2)))
        s("v_pk_add_f32 %s, %s, %s" % (V(u, 2), V(u, 2), V(u + 2, 2)))
        for i in (1, 2, 3):
            s("v_pk_fma_f32 %s, %s, %s, %s" % (V(u + 4, 2), V(a + 2 * i, 2), V(a + 2 * i, 2), V(u + 4, 2)))
        s("v_add_f32 v%d, v%d, v%d" % (u, u, u + 1))
        s("v_add_f32 v%d, v%d, v%d" % (u + 1, u + 4, u + 5))
        s("v_permlane16_swap_b32 v%d, v%d" % (u, u + 1))
        s("v_add_f32 v%d, v%d, v%d" % (u, u, u + 1))
        s("v_mov_b32 v%d, v%d" % (u + 1, u))
        s("v_permlane32_swap_b32 v%d, v%d" % (u, u + 1))
        s("v_add_f32 v%d, v%d, v%d" % (u, u, u + 1))
        s("s_add_u32 s%d, s%d, %d" % (sE, sStO, ST[xi] + h * 131072))
        s("v_lshrrev_b32 v%d, 2, v%d" % (u + 2, vL16))
        s("s_mov_b32 exec_hi, 0")
        tok = s.vm("buffer_store_dword v%d, v%d, s[8:11], s%d offen%s" % (u, u + 2, sE, self.stm(phase)))
        s("s_mov_b32 exec_hi, -1")
        return tok

    def codepf(self, sw=16):
        if self.opts.get("nocpf") == "1":
            return ""
        n = int(self.opts.get("cpf", 2))
        t = ["s_getpc_b64 s[56:57]", "M_pc:", "s_lshl_b32 s58, s%d, 13" % sw, "v_lshlrev_b32 v128, 7, v1", "v_add_u32 v128, s58, v128"]
        for i in range(n):
            t.append("v_min_u32 v129, M_last-M_pc, v128")
            t.append("global_load_dword v%d, v129, s[56:57]" % (134 + i))
            if i < n - 1:
                t.append("v_add_u32 v128, 0x8000, v128")
        return "\n".join(t)

    def pro_ids(self, s, t):
        s("""
        v_lshrrev_b32 v20, 6, v0
        v_and_b32 v%d, 63, v0
        v_readfirstlane_b32 s%d, v20
        v_lshlrev_b32 v%d, 4, v%d
        s_and_b32 s32, s2, 7
        s_lshr_b32 s33, s2, 3
        s_lshr_b32 s34, s32, 1
        s_and_b32 s35, s32, 1
        """ % (vLane, sW, vL16, vLane))
        if self.local:
            s("""
            s_lshl_b32 s{rb}, s32, 2
            s_lshr_b32 s{t}, s33, 3
            s_add_u32 s{rb}, s{rb}, s{t}
            s_and_b32 s{cg}, s33, 7
            s_lshl_b32 s{rb3}, s32, 1
            s_lshr_b32 s{t}, s33, 4
            s_add_u32 s{rb3}, s{rb3}, s{t}
            s_and_b32 s{cg3}, s33, 15
            """.format(rb=sRB, cg=sCG, rb3=sRB3, cg3=sCG3, t=t))
        else:
            s("""
            s_lshl_b32 s{rb}, s34, 3
            s_lshr_b32 s{t}, s33, 2
            s_add_u32 s{rb}, s{rb}, s{t}
            s_lshl_b32 s{cg}, s35, 2
            s_and_b32 s{t}, s33, 3
            s_add_u32 s{cg}, s{cg}, s{t}
            s_lshl_b32 s{rb3}, s34, 2
            s_lshr_b32 s{t}, s33, 3
            s_add_u32 s{rb3}, s{rb3}, s{t}
            s_lshl_b32 s{cg3}, s35, 3
            s_and_b32 s{t}, s33, 7
            s_add_u32 s{cg3}, s{cg3}, s{t}
            """.format(rb=sRB, cg=sCG, rb3=sRB3, cg3=sCG3, t=t))

    def prologue(self, s):
        single = self.opts.get("single", "1") == "1"
        s("""
        s_load_dwordx2 s[4:5], s[0:1], 72
        s_load_dwordx2 s[6:7], s[0:1], 56
        """)
        if not single:
            s("s_cmp_ge_u32 s2, 256")
            s("s_cbranch_scc1 M_end")
        self.pro_ids(s, 36)
        if not single:
            s(self.codepf())
        s("""
        s_waitcnt lgkmcnt(0)
        s_mov_b32 s8, s4
        s_and_b32 s9, s5, 0xffff
        s_mov_b32 s10, 0x10000000
        s_mov_b32 s11, 0x20000
        s_mov_b32 s12, s6
        s_and_b32 s13, s7, 0xffff
        s_mov_b32 s14, 0x200000
        s_mov_b32 s15, 0x20000
        """)
        self.pro_rest(s)

    def pro_rest(self, s):
        s("""
        s_lshl_b32 s36, s{cg}, 2
        s_add_u32 s36, s36, s{w}
        s_mul_i32 s{bq}, s36, {k48}
        s_add_u32 s{bq}, s{bq}, {PQ}
        s_lshl_b32 s{bw}, s36, 14
        s_add_u32 s{bw}, s{bw}, {PW}
        s_mul_i32 s{bd}, s36, {k44}
        s_add_u32 s{bd}, s{bd}, {PD}
        s_lshl_b32 s37, s{cg3}, 2
        s_add_u32 s37, s37, s{w}
        s_mul_i32 s{bg}, s37, {k48}
        s_add_u32 s{bg}, s{bg}, {PG}
        s_lshl_b32 s{kw}, s{w}, 12
        s_lshl_b32 s{a1m}, s{rb}, 15
        s_lshl_b32 s{a3}, s{rb3}, 16
        s_sub_u32 s{a1h}, s{a1m}, 16384
        s_max_i32 s{a1h}, s{a1h}, 0
        """.format(cg=sCG, w=sW, bq=sBQ, bw=sBW, bd=sBD, bg=sBG, cg3=sCG3, kw=sKw, a1m=sA1m, a3=sA3, a1h=sA1h, rb=sRB, rb3=sRB3,
                   k48=48 * KB, k44=44 * KB, PQ=PQ, PW=PW, PD=PD, PG=PG))
        s("""
        s_lshl_b32 s38, s{rb}, 1
        s_add_u32 s38, s38, s{w}
        s_sub_u32 s38, s38, 1
        s_max_i32 s38, s38, 0
        s_lshl_b32 s{st1}, s38, 11
        s_lshl_b32 s38, s{rb3}, 2
        s_add_u32 s38, s38, s{w}
        s_lshl_b32 s{st3}, s38, 11
        """.format(rb=sRB, w=sW, st1=sSt1, rb3=sRB3, st3=sSt3))
        s("""
        s_lshr_b32 s38, s{w}, 1
        s_and_b32 s39, s{w}, 1
        s_lshl_b32 s40, s{cg}, 1
        s_add_u32 s59, s40, s38
        s_lshl_b32 s59, s59, 10
        s_lshl_b32 s60, s39, 9
        s_add_u32 s59, s59, s60
        s_add_u32 s{ost}, s59, s{a1m}
        """.format(w=sW, cg=sCG, ost=sOst, a1m=sA1m))
        s("""
        s_lshl_b32 s59, s38, 14
        s_add_u32 s59, s59, s{a1m}
        s_add_u32 s{a2}, s59, s{kw}
        s_add_u32 s60, s40, s39
        s_lshl_b32 s61, s60, 10
        s_add_u32 s{res}, s59, s61
        s_lshr_b32 s{sto}, s59, 3
        s_lshl_b32 s61, s60, 7
        s_add_u32 s{sto}, s{sto}, s61
        """.format(a1m=sA1m, a2=sA2, kw=sKw, res=sRes, sto=sStO))
        s("""
        s_lshl_b32 s59, s{rb}, 1
        s_add_u32 s59, s59, s38
        s_lshl_b32 s{out}, s59, 15
        s_lshl_b32 s61, s60, 6
        s_add_u32 s{out}, s{out}, s61
        """.format(rb=sRB, out=sOutO))
        s("""
        s_mul_i32 s{hst}, s{rb3}, {k192}
        s_mul_i32 s61, s{cg3}, 12
        s_mul_i32 s62, s{w}, 3
        s_add_u32 s61, s61, s62
        s_lshl_b32 s61, s61, 8
        s_add_u32 s{hst}, s{hst}, s61
        s_mul_i32 s62, s{w}, {k11}
        s_mul_i32 s{a4}, s59, {k48}
        s_add_u32 s{a4}, s{a4}, s62
        s_xor_b32 s59, s59, 1
        s_mul_i32 s{a4b}, s59, {k48}
        s_add_u32 s{a4b}, s{a4b}, s62
        """.format(hst=sHst, rb3=sRB3, cg3=sCG3, w=sW, a4=sA4, a4b=sA4 + 1, k192=192 * KB, k11=11 * KB, k48=48 * KB))
        return

    def prologue2(self, s):
        s("""
        s_lshl_b32 s59, s{cg}, 2
        s_lshl_b32 s60, s{rb}, 8
        s_add_u32 s{f1}, s60, s59
        s_lshl_b32 s59, s{cg3}, 2
        s_lshl_b32 s61, s{rb3}, 8
        s_add_u32 s{f3}, s61, s59
        s_mov_b32 s{p2}, s60
        s_lshl_b32 s{p3}, s{rb3}, 9
        s_lshr_b32 s61, s{rb}, 1
        s_lshl_b32 s{p4}, s61, 8
        s_cmp_eq_u32 s{rb}, 0
        s_cselect_b32 s61, 0, 256
        s_sub_u32 s{p1}, s60, s61
        v_lshrrev_b32 v20, 3, v{lane}
        v_mul_lo_u32 v20, v20, s61
        v_and_b32 v21, 7, v{lane}
        v_lshl_add_u32 v{ph}, v21, 2, v20
        """.format(lane=vLane, ph=vPollH, cg=sCG, w=sW, rb=sRB, f1=sF1, cg3=sCG3, rb3=sRB3, f3=sF3, p2=sP2, p3=sP3, p4=sP4, p1=sP1a))
        s("""
        s_cmp_eq_u32 s{w}, 1
        s_cselect_b32 s{m2}, 0xff, 0
        s_mov_b32 s{m2h}, 0
        s_cselect_b32 s{m4}, 0x7fff, 0
        s_mov_b32 s{m4h}, 0
        s_cselect_b32 s{m16}, 0xffff, 0
        s_mov_b32 s{m16h}, 0
        s_mov_b32 s{odd}, 0xffff0000
        s_mov_b32 s{oddh}, 0xffff0000
        s_mov_b32 s{one}, 1.0
        s_mov_b32 s{oneh}, 1.0
        s_mov_b32 s{k0}, {c0}
        s_mov_b32 s{k1}, {c1}
        s_mov_b32 s{k2}, {c2}
        s_mov_b32 s{k3}, {c3}
        """.format(w=sW, m2=sM2, m2h=sM2 + 1, m4=sM4, m4h=sM4 + 1, m16=sM16, m16h=sM16 + 1, odd=sOdd, oddh=sOdd + 1, one=sOnes, oneh=sOnes + 1,
                   k0=sK, k1=sK + 1, k2=sK + 2, k3=sK + 3,
                   c0="0x%08x" % fbits(1.0 / 512), c1="0x%08x" % fbits(1e-5), c2="0x%08x" % fbits(0.25 * LOG2E), c3="0x%08x" % fbits(-LOG2E)))
        s("""
        v_and_b32 v20, 15, v{lane}
        v_lshrrev_b32 v21, 4, v{lane}
        v_add_u32 v{lo}, 65536, v{l16}
        v_lshlrev_b32 v22, 4, v20
        v_and_b32 v23, 1, v21
        v_lshrrev_b32 v24, 1, v21
        v_lshl_add_u32 v25, v24, 8, v22
        v_lshl_add_u32 v{ost}, v23, 14, v25
        v_mul_u32_u24 v26, {k48}, v23
        v_add_u32 v{h1}, v26, v25
        v_mul_u32_u24 v26, {k48}, v21
        v_add_u32 v26, v26, v22
        v_add_u32 v{h2}, 512, v26
        s_lshl_b32 s59, s{w}, 13
        s_add_u32 s59, s59, 65536
        v_add_u32 v{red}, s59, v{l16}
        v_lshrrev_b32 v26, 3, v{lane}
        v_and_b32 v27, 7, v{lane}
        v_lshlrev_b32 v27, 2, v27
        v_lshl_add_u32 v{pa}, v26, 8, v27
        v_lshlrev_b32 v{pb}, 2, v{lane}
        s_cmp_eq_u32 s{w}, 1
        s_cselect_b32 s59, 16, 0
        v_cmp_gt_u32 vcc, s59, v{lane}
        v_mov_b32 v27, 0x7ffffff0
        v_cndmask_b32 v{pa}, v27, v{pa}, vcc
        v_cndmask_b32 v{pb}, v27, v{pb}, vcc
        v_cndmask_b32 v{ph}, v27, v{ph}, vcc
        v_lshlrev_b32 v{out}, 7, v{lane}
        v_cmp_gt_u32 vcc, 16, v{lane}
        v_cndmask_b32 v{out}, v27, v{out}, vcc
        v_mov_b32 v{one}, 1
        """.format(lane=vLane, lo=vLO, l16=vL16, ost=vOst, h1=vH1, h2=vH2, red=vRed, pa=vPollA, pb=vPollB, ph=vPollH, out=vOut, one=vOne, w=sW, k48=48 * KB))
        s("""
        s_lshl_b32 s59, s{w}, 11
        s_add_u32 s59, s59, {stp}
        v_lshlrev_b32 v26, 10, v24
        v_lshl_add_u32 v26, v23, 6, v26
        v_lshl_add_u32 v26, v20, 2, v26
        v_add_u32 v{sr}, s59, v26
        """.format(w=sW, stp=STP, sr=vStatR))
        s("""
        s_lshl_b32 s59, s{w}, 7
        s_lshl_b32 s60, s{w}, 6
        v_lshlrev_b32 v26, 3, v20
        v_lshl_add_u32 v26, v23, 2, v26
        v_add_u32 v26, s59, v26
        v_lshlrev_b32 v27, 2, v20
        v_lshl_add_u32 v27, v23, 8, v27
        v_add_u32 v27, s60, v27
        v_add_u32 v27, 512, v27
        v_cmp_gt_u32 vcc, 2, v21
        v_cndmask_b32 v26, v27, v26, vcc
        v_add_u32 v{sw}, {stf}, v26
        v_lshlrev_b32 v26, 3, v20
        v_add_u32 v{si}, {stf}, v26
        v_lshlrev_b32 v26, 4, v21
        v_add_u32 v{sv}, {stfn}, v26
        s_mul_i32 s59, s{w}, 192
        s_add_u32 s59, s59, {csl}
        v_add_u32 v{cs}, s59, v26
        v_lshlrev_b32 v27, 2, v20
        v_add_u32 v27, s59, v27
        v_add_u32 v{csv}, 128, v27
        """.format(w=sW, sw=vStatW, stf=STF, si=vStI, sv=vStV, stfn=STF + 512, csl=CSL, cs=vCs, csv=vCsV))
        shq, shg = (3, 4) if self.local else (2, 3)
        nq, ng = 4 * (32 >> shq), 4 * (32 >> shg)
        self.pf_n = {"Q": -(-192 * KB // nq // 2048), "W": -(-64 * KB // nq // 2048), "D": -(-176 * KB // nq // 2048), "G": -(-192 * KB // ng // 2048)}
        assert not (self.direct and self.opts.get("pf") == "1")
        (s if self.opts.get("pf") == "1" else (lambda t: None))("""
        s_lshr_b32 s59, s2, 3
        s_lshr_b32 s60, s59, {shq}
        s_lshl_b32 s60, s60, 2
        s_add_u32 s60, s60, s{w}
        s_mul_i32 s61, s{cg}, {k192}
        s_mul_i32 s62, s60, {q6}
        s_add_u32 s{pq}, s61, s62
        s_add_u32 s{pq}, s{pq}, {PQ}
        s_lshl_b32 s61, s{cg}, 16
        s_mul_i32 s62, s60, {w2}
        s_add_u32 s{pw}, s61, s62
        s_add_u32 s{pw}, s{pw}, {PW}
        s_mul_i32 s61, s{cg}, {k176}
        s_mul_i32 s62, s60, {d55}
        s_add_u32 s{pd}, s61, s62
        s_add_u32 s{pd}, s{pd}, {PD}
        s_lshr_b32 s60, s59, {shg}
        s_lshl_b32 s60, s60, 2
        s_add_u32 s60, s60, s{w}
        s_mul_i32 s61, s{cg3}, {k192}
        s_mul_i32 s62, s60, {g12}
        s_add_u32 s{pg}, s61, s62
        s_add_u32 s{pg}, s{pg}, {PG}
        """.format(w=sW, cg=sCG, cg3=sCG3, pq=sPfQ, pw=sPfW, pd=sPfD, pg=sPfG, k192=192 * KB, k176=176 * KB, q6=192 * KB // nq, w2=64 * KB // nq,
                   d55=176 * KB // nq, g12=192 * KB // ng, PQ=PQ, PW=PW, PD=PD, PG=PG, shq=shq, shg=shg))
        s("""
        v_lshlrev_b32 v26, 2, v21
        v_sub_u32 v26, v20, v26
        v_mov_b32 v27, 0xf149f2ca
        v_mov_b32 v28, 0
        """)
        for r in range(4):
            s("v_subrev_u32 v29, %d, v26" % r)
            s("v_cmp_gt_u32 vcc, 8, v29")
            s("v_cndmask_b32 v%d, v27, v28, vcc" % (32 + r))
            s("v_cmp_gt_i32 vcc, -8, v29")
            s("v_cndmask_b32 v%d, v27, v28, vcc" % (36 + r))
            s("v_mov_b32 v%d, v27" % (40 + r))
        s("v_add_u32 v30, %d, v%d" % (BIAS, vL16))
        s.wait_ds()
        s("ds_write_b128 v30, v[32:35]")
        s("ds_write_b128 v30, v[36:39] offset:1024")
        s("ds_write_b128 v30, v[40:43] offset:2048")
        s("""
        s_cmp_eq_u32 s{rb}, 0
        s_cselect_b32 s59, 2, 1
        s_lshl_b32 s59, s59, 10
        v_add_u32 v{b1}, s59, v30
        """.format(rb=sRB, b1=vB1))

    def colsums(self, s, ks, r0=44, first=True):
        single = self.opts.get("single", "1") == "1"
        ks = list(ks)
        R = lambda k: r0 + 4 * (k - ks[0])
        for k in ks:
            r = R(k)
            s("v_add_f32 v%d, v%d, v%d" % (r, r, r + 1))
            s("v_add_f32 v%d, v%d, v%d" % (r + 2, r + 2, r + 3))
            s("v_add_f32 v%d, v%d, v%d" % (r, r, r + 2))
            if not single:
                s("v_add_f32_dpp v%d, v%d, v%d quad_perm:[1,0,3,2] row_mask:0xf bank_mask:0xf" % (r, r, r))
                s("v_add_f32_dpp v%d, v%d, v%d quad_perm:[2,3,0,1] row_mask:0xf bank_mask:0xf" % (r, r, r))
        if single:
            for sw in ("v_permlane16_swap_b32", "v_permlane32_swap_b32"):
                for k in ks:
                    s("v_mov_b32 v%d, v%d" % (R(k) + 1, R(k)))
                for k in ks:
                    s("%s v%d, v%d" % (sw, R(k), R(k) + 1))
                for k in ks:
                    s("v_add_f32 v%d, v%d, v%d" % (R(k), R(k), R(k) + 1))
        a = R(ks[-1]) + 2
        if single:
            s("v_and_b32 v%d, 0xf0, v%d" % (a, vL16))
            s("v_lshrrev_b32 v%d, 2, v%d" % (a, a))
        else:
            s("v_lshrrev_b32 v%d, 6, v%d" % (a, vL16))
            s("v_lshlrev_b32 v%d, 2, v%d" % (a, a))
        s("s_mul_i32 s59, s%d, 192" % sW)
        s("s_add_u32 s59, s59, %d" % CSL)
        s("v_add_u32 v%d, s59, v%d" % (a, a))
        for k in ks:
            s("ds_write_b32 v%d, v%d offset:%d" % (a, R(k), (k // 3) * 768 + (k % 3) * 64))
        if first:
            if not single:
                self.flag_vec(s)
            s("v_mov_b32 v%d, v%d" % (vFlag, self.vflag_tmp))

    vflag_tmp = 87

    def flag_vec(self, s):
        s("s_cmp_eq_u32 s%d, 0" % sW)
        s("s_cselect_b32 s59, 1, 0")
        s("v_cmp_gt_u32 vcc, s59, v%d" % vLane)
        s("v_mov_b32 v27, 0x7ffffff0")
        s("v_cndmask_b32 v%d, v27, 0, vcc" % self.vflag_tmp)
        s("v_mov_b32 v60, v%d" % self.vflag_tmp)

    def global_issue(self, s):
        s("""
        s_mul_i32 s58, s{cg}, 12
        v_add_u32 v89, s58, v{lane}
        v_subrev_u32 v90, 12, v{lane}
        v_mul_u32_u24 v91, 21846, v90
        v_lshrrev_b32 v91, 16, v91
        v_mul_u32_u24 v92, 3, v91
        v_sub_u32 v92, v90, v92
        s_lshl_b32 s58, s{rb}, 1
        v_add_u32 v92, s58, v92
        v_subrev_u32 v92, 1, v92
        v_max_i32 v92, 0, v92
        v_lshl_add_u32 v92, v91, 6, v92
        v_add_u32 v92, 96, v92
        v_cmp_gt_u32 vcc, 12, v{lane}
        v_cndmask_b32 v89, v92, v89, vcc
        v_lshrrev_b32 v90, 3, v89
        v_and_b32 v89, 7, v89
        v_lshlrev_b32 v89, 2, v89
        v_lshl_add_u32 v89, v90, 7, v89
        s_cmp_eq_u32 s{w}, 1
        s_cselect_b32 s58, 18, 0
        v_cmp_gt_u32 vcc, s58, v{lane}
        v_mov_b32 v90, 0x7ffffff0
        v_cndmask_b32 v89, v90, v89, vcc
        s_cselect_b32 s{m}, 0x3ffff, 0
        s_mov_b32 s{mh}, 0
        s_mov_b32 s{p}, {pfl}
        buffer_load_dword v92, v89, s[8:11], s{p} offen sc1
        """.format(lane=vLane, w=sW, p=sPoll, pfl=PFL, cg=sCG, rb=sRB, m=4, mh=5))

    def global_check(self, s):
        n = self.npoll
        self.npoll += 1
        s("v_cmp_ne_u32 vcc, s%d, v92" % sTag)
        s("s_and_b64 vcc, vcc, s[4:5]")
        s("s_cbranch_vccnz SLOW_%d" % n)
        s("BACK_%d:" % n)
        s("s_barrier")
        self.slow += ["SLOW_%d:" % n, "  s_mov_b32 s%d, 0" % sCnt, "SPIN_%d:" % n,
                      "  buffer_load_dword v92, v89, s[8:11], s%d offen sc1" % sPoll, "  s_waitcnt vmcnt(0)",
                      "  v_cmp_ne_u32 vcc, s%d, v92" % sTag, "  s_nop 1", "  s_and_b64 vcc, vcc, s[4:5]",
                      "  s_cbranch_vccz BACK_%d" % n, "  s_add_u32 s%d, s%d, 1" % (sCnt, sCnt), "  s_cmp_lt_u32 s%d, %d" % (sCnt, POLL_LIMIT),
                      "  s_cbranch_scc1 SPIN_%d" % n, "  s_branch BACK_%d" % n]

    hold = False

    def tick(self, s, bulk=True):
        if self.urgent:
            s.extend(self.urgent.popleft())
            return True
        if bulk and self.bulk and not self.hold:
            s.extend(self.bulk.popleft())
            return True
        return False

    def flush_urgent(self, s):
        while self.urgent:
            s.extend(self.urgent.popleft())

    def burst(self, s, n):
        for _ in range(n):
            self.tick(s)

    @staticmethod
    def cost(ins):
        c = ins.cls
        if c == "valu":
            return 8 if (ins.meta.get("trans") or ins.meta.get("perm")) else 4
        if c in ("vm_ld", "vm_dma", "vm_st"):
            return 8
        if c in ("ds_rd", "ds_wr"):
            return 4
        if c == "salu":
            return 2.5
        if c in ("pseudo", "label"):
            return 0 if ins.text in ("@comment", "@mark") or c == "label" else 2
        return 3

    def progressive(self, groups, per_ks):
        for f, g in enumerate(groups):
            g.min_step = max(per_ks * (f // 3 + 1) + 2, int(self.opts.get("pg0", 0)) + int(float(self.opts.get("pgr", 0)) * f))
        return groups

    def clear_min(self):
        for g in self.bulk:
            g.min_step = 0

    def set_hold(self, v):
        def f():
            self.hold = v
        return f

    def delay(self, s, clks):
        n = max(0, int(clks) // 64)
        if n:
            s("s_sleep %d" % n)

    def evs(self, key, default):
        v = self.opts.get(key)
        return tuple(int(x) for x in v.split(",")) if v else default

    def run_mf(self, s, steps, at=None, fill=None, rate=4, ctok=None, fill_from=2, urate=None):
        at = at or {}
        urate = urate or rate
        fill = deque(fill or [])
        ev, cur = deque(), deque()
        last_vm = -rate
        last_tr = -12
        isvm = lambda x: x.cls in ("vm_ld", "vm_dma", "vm_st")
        def mk(x):
            if isinstance(x, Ins):
                return [x]
            if isinstance(x, tuple):
                t = Stream()
                self.mark(t, "chA%d" % x[1])
                t.wait_vm(ctok[x[1]])
                t("s_barrier")
                self.mark(t, "chB%d" % x[1])
                return list(t)
            t = Stream()
            t(x)
            return list(t)
        def push_ev(e):
            if isinstance(e, Stream):
                ev.extend(e)
            else:
                c = Ins("@comment")
                c.meta["c"] = "release"
                c.meta["call"] = e
                ev.append(c)
        def emit_from(q, budget):
            while q:
                c = self.cost(q[0])
                if c > budget and not (budget >= 8 - 1e-9):
                    break
                x = q.popleft()
                s.append(x)
                if x.meta.get("call"):
                    x.meta["call"]()
                budget -= c
                while x.meta.get("glue") and q:
                    x = q.popleft()
                    s.append(x)
                    if x.meta.get("call"):
                        x.meta["call"]()
                if budget <= 0:
                    break
            return budget
        n = len(steps)
        for i, st in enumerate(steps):
            for e in at.get(i, []):
                push_ev(e)
            if i % int(self.opts.get("fstep", 16)) == 0:
                self.fs(s, "mf%d" % i)
            budget = 8.0
            main = [y for x in st for y in mk(x)]
            if any(x.text == "@waitds" and x.meta.get("tok") is not None for x in main):
                while fill:
                    x = fill.popleft()
                    s.append(x)
            for x in main:
                s.append(x)
            for x in main[1:]:
                budget -= self.cost(x)
                if isvm(x):
                    last_vm = i
            if any(x.cls == "ds_rd" for x in main[1:]):
                budget -= 2
            if budget <= 0:
                continue
            if ev:
                had_vm = any(isvm(x) for x in list(ev)[:1])
                budget = emit_from(ev, budget)
                if had_vm:
                    last_vm = i
                if budget <= 0:
                    continue
            if not cur and self.trickle and not self.urgent and i - last_tr >= int(self.opts.get("trate", 24)) and i - last_vm >= 1:
                cur.extend(self.trickle.popleft())
                last_tr = i
            if not cur:
                if self.urgent and i - last_vm >= urate - 1:
                    cur.extend(self.urgent.popleft())
                elif self.bulk and not self.hold and not self.urgent and i - last_vm >= rate - 1 and getattr(self.bulk[0], "min_step", 0) <= i:
                    cur.extend(self.bulk.popleft())
            while cur and budget > 0:
                x = cur[0]
                c = self.cost(x)
                if isvm(x):
                    if budget < 8 or i - last_vm < min(rate, urate):
                        break
                    last_vm = i
                elif c > budget:
                    break
                s.append(cur.popleft())
                budget -= c
            if fill and fill[0].meta.get("until") is not None:
                fill_from = max(fill_from, fill.popleft().meta["until"])
            if fill and fill[0].meta.get("pause"):
                fill_from = i + fill.popleft().meta["pause"]
            if i >= fill_from and fill and budget > 0:
                part = deque()
                while fill and not fill[0].meta.get("pause") and fill[0].meta.get("until") is None and len(part) < 4:
                    part.append(fill.popleft())
                budget = emit_from(part, budget)
                while part:
                    fill.appendleft(part.pop())
        for e in at.get(n, []):
            push_ev(e)
        for q in (cur, ev, fill):
            while q:
                x = q.popleft()
                s.append(x)
                if x.meta.get("call"):
                    x.meta["call"]()

    def weave(self, s, epi, every=13):
        k = 0
        for ins in epi:
            s.append(ins)
            if ins.cls in ("valu", "mfma"):
                k += 1
                if k >= every:
                    if self.tick(s):
                        k = 0

    def split_tile(self, A):
        groups = A[0]
        nsub = (len(groups) - 2) // 4
        nh = 2 * nsub + 2
        return groups[:nh], groups[nh:]

    def cs_loads_to(self, s, cg, base, r0, vaddr):
        s("s_lshl_b32 s58, s%d, 2" % cg)
        s("s_add_u32 s58, s58, s%d" % sW)
        s("s_mul_i32 s59, s58, 3072")
        s("s_add_u32 s59, s59, %d" % base)
        for k in range(3):
            for j in range(4):
                s("buffer_load_dword v%d, v%d, s[8:11], s59 offen offset:%d" % (r0 + 4 * k + j, vaddr, k * 1024 + j * 64))

    def global_check2(self):
        n = self.npoll
        self.npoll += 1
        t = Stream()
        r = RING + 12
        t("v_cmp_ne_u32 vcc, s%d, v%d" % (sTag, r))
        t("s_and_b64 vcc, vcc, s[4:5]")
        t("s_cbranch_vccnz SLOW_%d" % n).meta["glue"] = True
        t("BACK_%d:" % n).meta["glue"] = True
        t("s_barrier")
        self.slow += ["SLOW_%d:" % n, "  s_mov_b32 s%d, 0" % sCnt, "SPIN_%d:" % n,
                      "  buffer_load_dword v%d, v%d, s[8:11], s%d offen sc1" % (r, RING + 16, sPoll2), "  s_waitcnt vmcnt(0)",
                      "  v_cmp_ne_u32 vcc, s%d, v%d" % (sTag, r), "  s_nop 1", "  s_and_b64 vcc, vcc, s[4:5]",
                      "  s_cbranch_vccz BACK_%d" % n, "  s_add_u32 s%d, s%d, 1" % (sCnt, sCnt), "  s_cmp_lt_u32 s%d, %d" % (sCnt, POLL_LIMIT),
                      "  s_cbranch_scc1 SPIN_%d" % n, "  s_branch BACK_%d" % n]
        return t

    def seg13(self, s, phase, p, h, A, at, urate=None, raw_stats=False):
        groups, stok, ctok = A
        st = Stream()
        if raw_stats:
            return self.seg13_raw(s, phase, p, h, A, at)
        self.stats_reduce(st, h, stok)
        if getattr(self, "extra_fill", None) is not None:
            st.extend(self.extra_fill)
            self.extra_fill = None
        pre, steps = self.mf13(phase, h)
        if urate:
            s.extend(st)
            st = Stream()
        for x in pre:
            if isinstance(x, tuple):
                s.wait_vm(ctok[x[1]])
                s("s_barrier")
            else:
                s(x)
        self.run_mf(s, steps, at=at, fill=list(st), ctok=ctok, fill_from=int(self.opts.get("fillfrom", 6)), urate=urate, rate=(urate or 4))
        s("s_barrier")

    def seg13_raw(self, s, phase, p, h, A, at):
        import direct
        groups, stok, ctok = A
        self.stat_tok = Tok("unused")
        saved = self.epi_pref
        pref = saved(phase, h)
        self.epi_pref = lambda *a: {}
        pre, steps = self.mf13(phase, h)
        self.epi_pref = saved
        chunk_step = {0: 0}
        for i, stp in enumerate(steps):
            for x in stp:
                if isinstance(x, tuple):
                    chunk_step[x[1]] = i
        SA, T0, ADR, ONE = RING, RING + 24, RING + 2, RING + 3
        st = Stream()
        st("s_lshl_b32 s58, s%d, 14" % sW)
        st("s_add_u32 s58, s58, %d" % REG[h])
        st("v_add_u32 v%d, s58, v%d" % (ADR, vL16))
        st("v_mov_b32 v%d, 0x3f803f80" % ONE)
        st("v_mov_b32 v%d, 0" % SA)
        st("v_mov_b32 v%d, 0" % (SA + 1))
        for c in range(4):
            u = Ins("@comment")
            u.meta["c"] = "until chunk %d" % c
            u.meta["until"] = chunk_step[c] + 2
            st.append(u)
            for j in range(4):
                st("ds_read_b128 %s, v%d offset:%d" % (V(T0 + 4 * j, 4), ADR, (4 * c + j) * 1024))
            self.pause(st, 6)
            for j in range(4):
                st.extend(direct.stats_dots(SA, T0 + 4 * j, ONE))
        for x in pre:
            if isinstance(x, tuple):
                s.wait_vm(ctok[x[1]])
                s("s_barrier")
            else:
                s(x)
        self.run_mf(s, steps, at=at, fill=list(st), ctok=ctok, fill_from=1)
        tok = direct.stats_final(self, s, h, SA)
        s.wait_ds(tok)
        s("s_barrier")
        for n in sorted(pref):
            if n != 37:
                for x in pref[n]:
                    s(x)

    def check_order(self, s):
        done = set()
        for ins in s:
            if ins.meta.get("checked"):
                done.add(ins.meta["checked"])
            k = ins.meta.get("dep")
            if k is not None:
                assert k in done, "load issued before its dependency was checked: %s %s" % (k, ins.text)

    def check_weights(self, s):
        if self.opts.get("nob"):
            return
        cur = {}
        for ins in s:
            if ins.meta.get("bname"):
                cur[ins.ops[0]] = ins.meta["bname"]
            if ins.meta.get("bname2"):
                cur[ins.meta["bname2"][1]] = ins.meta["bname2"][0]
            if ins.cls == "mfma" and ins.meta.get("need"):
                reg, name = ins.meta["need"]
                assert cur.get(reg) == name, "weights %s expected in %s, found %s" % (name, reg, cur.get(reg))

    def gen(self):
        s = Stream()
        self.urgent, self.bulk, self.trickle = deque(), deque(), deque()
        o = self.opts
        if self.direct:
            import direct
            if self.prof:
                s("s_memrealtime s[100:101]")
                s("s_memtime s[98:99]")
                s("s_waitcnt lgkmcnt(0)")
                s("s_mov_b32 s94, s100")
                s("s_mov_b32 s68, s98")
            direct.entry(self, s, self.codepf(sW))
            self.pro_rest(s)
        else:
            self.prologue(s)
        if self.prof and self.opts.get("single", "1") != "1":
            s("s_memrealtime s[100:101]")
            s("s_waitcnt lgkmcnt(0)")
            s("s_mov_b32 s94, s100")
        self.ts(s, "start")
        if self.prof == 5:
            for k in range(2, 24):
                s("s_mov_b32 s%d, 0" % (sTS + k))
        s("""
        s_lshl_b32 s{kw1}, s{w}, 10
        s_add_u32 s{a1hw}, s{a1h}, s{kw1}
        s_add_u32 s{a1mw}, s{a1m}, s{kw1}
        s_add_u32 s{a3w}, s{a3}, s{kw1}
        """.format(kw1=sKw1, w=sW, a1hw=sA1hw, a1h=sA1h, a1mw=sA1mw, a1m=sA1m, a3w=sA3w, a3=sA3))
        A = {}
        single = self.opts.get("single", "1") == "1"
        if single:
            ncpf = 0 if self.opts.get("nocpf") == "1" else int(self.opts.get("cpf", 2))
            def pack_flag(t, base):
                t("s_lshr_b32 s58, s2, 3")
                t("s_lshl_b32 s58, s58, 7")
                t("s_and_b32 s59, s2, 7")
                t("s_lshl_b32 s59, s59, 2")
                t("s_add_u32 s58, s58, s59")
                t("s_add_u32 s%d, s58, %d" % (sT3, base))
            self.prologue2(s)
            s("s_add_u32 s%d, s95, 1" % sTag)
            s("v_mov_b32 v%d, s%d" % (vOne, sTag))
            self.flag_vec(s)
            if self.direct:
                s.extend(self.second_batch)
                self.pack_flag = pack_flag
                s("v_mov_b32 v%d, v%d" % (vFlag, self.vflag_tmp))
                if self.local:
                    s("s_getreg_b32 s%d, hwreg(HW_REG_XCC_ID, 0, 4)" % sXcc)
                    s("s_add_u32 s58, s%d, s%d" % (sXcc, sTag))
                    s("s_add_u32 s58, s58, 1")
                    s("v_mov_b32 v60, s58")
                    s("s_and_b32 s58, s2, 7")
                    s("s_lshl_b32 s58, s58, 7")
                    s("s_lshr_b32 s59, s2, 3")
                    s("s_lshl_b32 s59, s59, 2")
                    s("s_add_u32 s58, s58, s59")
                    s("s_add_u32 s58, s58, %d" % PXC)
                    s("buffer_store_dword v60, v%d, s[8:11], s58 offen sc1" % vFlag)
            else:
                self.global_issue(s)
                self.global_check(s)
            self.ts(s, "gsync")
        else:
            s("s_mov_b32 s%d, 1" % sTag)
        if single and not self.direct:
            s("v_and_b32 v68, 15, v%d" % vLane)
            s("v_lshlrev_b32 v68, 2, v68")
            s("v_lshrrev_b32 v69, 4, v%d" % vLane)
            s("v_lshl_add_u32 v68, v69, 8, v68")
        def cs_loads(cg, base, r0):
            s("s_lshl_b32 s58, s%d, 2" % cg)
            s("s_add_u32 s58, s58, s%d" % sW)
            s("s_mul_i32 s59, s58, 3072")
            s("s_add_u32 s59, s59, %d" % base)
            for k in range(3):
                if single:
                    for j in range(4):
                        s("buffer_load_dword v%d, v68, s[8:11], s59 offen offset:%d" % (r0 + 4 * k + j, k * 1024 + j * 64))
                else:
                    s("buffer_load_dwordx4 %s, v%d, s[8:11], s59 offen offset:%d" % (V(r0 + 4 * k, 4), vL16, k * 1024))
        if self.direct:
            A[(1, 0, 0)] = self.A_first
            A[(1, 0, 1)] = direct.groupsA_raw(self, 1)
        else:
            A[(1, 0, 0)] = self.groupsA_lds(1, 0, 0)
            A[(1, 0, 1)] = self.groupsA_lds(1, 0, 1)
        if self.direct:
            pass
        elif single:
            head, tail = self.split_tile(A[(1, 0, 0)])
            for g in head:
                s.extend(g)
            cs_loads(sCG, CSQ, RING + 32)
            nq = int(self.opts.get("nq0", 24))
            for g in self.groupsB(Bx, sBQ, 0, nq):
                s.extend(g)
            self.pack_flag = pack_flag
            if self.opts.get("latefirst", "1") == "1":
                self.late_tok0 = pack.emit_late(s, sW, vL16, (3, 4, 58, 59), DV)
            self.first_tail = tail
            self.q_rest = self.groupsB(Bx, sBQ, nq, 48)
            self.colsums(s, range(3), r0=RING + 32)
        else:
            for g in A[(1, 0, 0)][0]:
                s.extend(g)
            cs_loads(sCG, CSQ, 44)
            cs_loads(sCG3, CSG, 56)
            for g in self.groupsB(Bx, sBQ, 0, 24):
                s.extend(g)
            self.prologue2(s)
            for g in self.groupsB(Bx, sBQ, 24, 30):
                s.extend(g)
            self.colsums(s, range(6))
            self.bulk.extend(self.groupsB(Bx, sBQ, 30, 48))
            self.burst(s, 18)
            self.urgent.extend(A[(1, 0, 1)][0])
        s("s_xor_b32 s%d, s%d, 16384" % (sA2b, sA2))
        self.cs_loads = cs_loads
        self.ts(s, "prolog")
        tok = {}
        U = lambda gs: (lambda: self.urgent.extend(gs))
        def until_issued(gs):
            while any(g is x for g in gs for x in self.urgent):
                s.extend(self.urgent.popleft())
        tails = {(1, 0, 0): [], (1, 0, 1): []}
        for p in range(2):
            last = (p == 1)
            at = {}
            self.urgent.extend(tails[(1, p, 0)])
            if p == 0 and self.direct:
                head1 = list(A[(1, 0, 1)][0])
            elif p == 0 and single:
                q = list(self.q_rest)
                self.urgent.extend(q[:6] + list(self.first_tail[:3]) + q[6:15] + list(self.first_tail[3:]) + q[15:])
                self.urgent.extend(A[(1, 0, 1)][0])
                head1 = list(A[(1, 0, 1)][0])
                if self.opts.get("latefirst", "1") == "1":
                    f2e = Stream()
                    f2e.wait_vm(self.late_tok0)
                    f2e("s_barrier")
                    self.pack_flag(f2e, PFL2)
                    f2e("buffer_store_dword v%d, v%d, s[8:11], s%d offen sc1" % (vOne, vFlag, sT3))
                    at[int(self.opts.get("f2e", 64))] = [f2e]
            elif p == 0:
                self.bulk.extend(self.groupsB(By, sBW, 0, 16))
                self.bulk.extend(self.groupsB(By, sBD, 16, 44))
                head1 = []
            else:
                self.bulk.extend(self.groupsB(By, sBW, 0, 16))
                a, b, c = self.evs("e1E", (48, 96, 127))
                at[a] = [self.ev_sig(4, p - 1, 1, tok[(4, p - 1, 1)])]
                at[b] = [self.ev_poll_issue(1, p, 1)]
                A[(1, p, 1)] = self.groupsA_lds(1, p, 1)
                head1, tails[(1, p, 1)] = self.split_tile(A[(1, p, 1)])
                at[c] = [self.ev_poll_check(1, p, 1), U(head1)]
            if p == 1:
                self.trickle.extend(self.pf(sPfG, 2048 * i) for i in range(self.pf_n["G"]))
            if p == 0 and self.direct:
                direct.first_segment(self, s)
                if self.opts.get("dbgq") == "1":
                    s("s_lshl_b32 s58, s2, 2")
                    s("s_add_u32 s58, s58, s%d" % sW)
                    s("s_mul_i32 s58, s58, %d" % (64 * KB))
                    s("s_add_u32 s58, s58, 0x4000000")
                    for f in range(48):
                        s("buffer_store_dwordx4 %s, v%d, s[8:11], s58 offen" % (Bx(f), vL16))
                        s("s_add_u32 s58, s58, 1024")
                    s("s_lshl_b32 s59, s%d, 14" % sW)
                    s("v_add_u32 v172, s59, v%d" % vL16)
                    for k in range(16):
                        s("ds_read_b128 v[176:179], v172 offset:%d" % (k * 1024))
                        s("buffer_store_dwordx4 v[176:179], v%d, s[8:11], s58 offen" % vL16)
                        s("s_add_u32 s58, s58, 1024")
                        s("s_nop 4")
                for g in head1[:6]:
                    s.extend(g)
                self.urgent.extend(head1[6:])
            else:
                self.seg13(s, 1, p, 0, A[(1, p, 0)], at, urate=(2 if (p == 0 and single) else None))
            self.ts(s, "mf1E.%d" % p)
            if p == 0 and single:
                if self.direct:
                    late_tok = direct.late(self, s, (3, 4, 58, 59))
                    self.stat_tok = Tok("unused")
                    pref = self.epi_pref(1, 0)
                    for n in sorted(pref):
                        if n != 37:
                            for x in pref[n]:
                                s(x)
                elif self.opts.get("latefirst", "1") == "1":
                    late_tok = self.late_tok0
                else:
                    late_tok = pack.emit_late(s, sW, vL16, (3, 4, 58, 59), DV)
                if self.local:
                    if not self.direct:
                        s("s_getreg_b32 s%d, hwreg(HW_REG_XCC_ID, 0, 4)" % sXcc)
                    pi, pc = self.purity()
                    s.extend(pi)
                    self.pur_check = pc
                self.ts(s, "packed")
            e = Stream(); tok[(1, p, 0)] = self.epi1(e, p, 0)
            self.weave(s, e, every=10)
            until_issued(head1)
            if p == 0 and self.local:
                s.extend(self.pur_check)
            self.ts(s, "s1E.%d" % p)
            self.urgent.extend(tails[(1, p, 1)])
            gA = self.groupsA24(2, p, 0)
            a, b, c = self.evs("e1O", (44, 96, 127))
            at = {a: [self.ev_sig(1, p, 0, tok[(1, p, 0)])], b: [self.ev_poll_issue(2, p, 0)],
                  c: [self.ev_poll_check(2, p, 0), U(gA)]}
            if p == 0 and single:
                f2 = Stream()
                f2.wait_vm(late_tok)
                f2("s_barrier")
                self.pack_flag(f2, PFL2)
                f2("buffer_store_dword v%d, v%d, s[8:11], s%d offen sc1" % (vOne, vFlag, sT3))
                g2 = Stream()
                a0, a1, a2 = RING + 16, RING + 17, RING + 18
                g2("v_lshrrev_b32 v%d, 4, v%d" % (a1, vL16))
                g2("s_lshl_b32 s58, s%d, 2" % sCG)
                g2("s_add_u32 s58, s58, %d" % (96 if self.direct else 136))
                g2("v_add_u32 v%d, s58, v%d" % (a0, a1))
                g2("s_lshl_b32 s58, s%d, 4" % sCG3)
                g2("s_sub_u32 s58, s58, 4")
                g2("v_add_u32 v%d, s58, v%d" % (a2, a1))
                g2("v_cmp_lt_u32 vcc, 3, v%d" % a1)
                g2("v_cndmask_b32 v%d, v%d, v%d, vcc" % (a0, a0, a2))
                g2("s_mul_i32 s58, s%d, 11" % sCG)
                g2("s_add_u32 s58, s58, %d" % (108 if self.direct else 148))
                g2("v_add_u32 v%d, s58, v%d" % (a2, a1))
                g2("v_cmp_lt_u32 vcc, 19, v%d" % a1)
                g2("v_cndmask_b32 v%d, v%d, v%d, vcc" % (a0, a0, a2))
                if self.direct:
                    g2("s_mul_i32 s58, s%d, 12" % sCG)
                    g2("s_sub_u32 s58, s58, 31")
                    g2("v_add_u32 v%d, s58, v%d" % (a2, a1))
                    g2("v_cmp_lt_u32 vcc, 30, v%d" % a1)
                    g2("v_cndmask_b32 v%d, v%d, v%d, vcc" % (a0, a0, a2))
                g2("v_lshrrev_b32 v%d, 3, v%d" % (a2, a0))
                g2("v_and_b32 v%d, 7, v%d" % (a0, a0))
                g2("v_lshlrev_b32 v%d, 2, v%d" % (a0, a0))
                g2("v_lshl_add_u32 v%d, v%d, 7, v%d" % (a0, a2, a0))
                g2("s_cmp_eq_u32 s%d, 1" % sW)
                g2("s_cselect_b32 s58, %d, 0" % (43 if self.direct else 31))
                g2("s_cselect_b32 s4, %s, 0" % ("-1" if self.direct else "0x7fffffff"))
                g2("s_cselect_b32 s5, %s, 0" % ("0x7ff" if self.direct else "0"))
                g2("v_cmp_gt_u32 vcc, s58, v%d" % a1)
                g2("v_mov_b32 v%d, 0x7ffffff0" % a2)
                g2("v_cndmask_b32 v%d, v%d, v%d, vcc" % (a0, a2, a0))
                g2("s_mov_b32 s%d, %d" % (sPoll2, PFL2))
                g2("buffer_load_dword v%d, v%d, s[8:11], s%d offen sc1" % (RING + 12, a0, sPoll2))
                c2 = self.global_check2()
                csl = Stream()
                csl("v_and_b32 v%d, 0xf0, v%d" % (DV + 12, vL16))
                csl("v_lshrrev_b32 v%d, 2, v%d" % (DV + 12, DV + 12))
                csl("v_lshrrev_b32 v%d, 8, v%d" % (DV + 13, vL16))
                csl("v_lshl_add_u32 v%d, v%d, 8, v%d" % (DV + 12, DV + 13, DV + 12))
                self.cs_loads_to(csl, sCG3, CSG, DV, DV + 12)
                lf = self.opts.get("latefirst", "1") == "1" and not self.direct
                fa, fb, fc = self.evs("f2", (40, 20, 56) if lf else (40, 88, 125))
                if not lf:
                    at.setdefault(fa, []).append(f2)
                at.setdefault(fb, []).append(g2)
                g_early0 = lf and self.opts.get("prog0", "1") == "1"
                def after_flag2():
                    self.bulk.extend(self.groupsB(By, sBW, 0, 16))
                    if g_early0:
                        self.bulk.extend(self.progressive(self.groupsB(Bx, sBG, 0, 48), 8))
                at.setdefault(fc, []).extend([c2, after_flag2, csl])
                self.cs_reduce = Stream()
                self.colsums(self.cs_reduce, range(3, 6), r0=DV, first=False)
            early_g = (p == 1 or not single) and self.opts.get("prog", "1") == "1"
            early_g0 = p == 0 and single and not self.direct and self.opts.get("latefirst", "1") == "1" and self.opts.get("prog0", "1") == "1"
            if early_g:
                while self.bulk:
                    s.extend(self.bulk.popleft())
                self.bulk.extend(self.progressive(self.groupsB(Bx, sBG, 0, 48), 8))
            self.seg13(s, 1, p, 1, A[(1, p, 1)], at, raw_stats=(p == 0 and self.direct))
            self.ts(s, "mf1O.%d" % p)
            if early_g:
                self.clear_min()
            elif early_g0:
                self.clear_min()
                while self.bulk and any(x.meta.get("bname") == "W" for x in self.bulk[0]):
                    s.extend(self.bulk.popleft())
            else:
                while self.bulk:
                    s.extend(self.bulk.popleft())
                self.bulk.extend(self.groupsB(Bx, sBG, 0, 48))
            e = Stream(); tok[(1, p, 1)] = self.epi1(e, p, 1)
            self.weave(s, e, every=10)
            self.flush_urgent(s)
            self.ts(s, "s1O.%d" % p)
            if p == 0 and single:
                s.extend(self.cs_reduce)
            self.seg24_mf(s, 2, p, 0)
            self.fs(s, "MF")
            bsel = lambda key, d0, d1: int(self.opts.get(key + str(p), d0 if p == 0 and single else d1))
            self.hold = True
            mid = Stream()
            mid.extend(self.ev_sig(1, p, 1, tok[(1, p, 1)]))
            e = Stream(); tok[(2, p, 0)] = self.epi24(e, 2, p, 0, mid=mid)
            self.weave(s, e, every=10)
            s.extend(self.ev_poll_issue(2, p, 1))
            self.fs(s, "EPI")
            self.hold = False
            self.burst(s, bsel("b2F", 6, 0))
            self.fs(s, "PI")
            s.extend(self.ev_sig(2, p, 0, tok[(2, p, 0)]))
            s.extend(self.ev_poll_issue(3, p, 0, alt=True))
            self.fs(s, "SIG2")
            s.extend(self.ev_poll_check(2, p, 1))
            self.ts(s, "s2E.%d" % p)
            self.urgent.extend(self.groupsA24(2, p, 1))
            self.flush_urgent(s)
            self.burst(s, bsel("b2O", 8, 0))
            A[(3, p, 0)] = self.groupsA_lds(3, p, 0)
            head3, tail3 = self.split_tile(A[(3, p, 0)])
            c3 = int(self.opts.get("c3E", 0))
            if c3 < 0:
                s.extend(self.ev_poll_check(3, p, 0, alt=True))
                self.urgent.extend(head3)
                self.flush_urgent(s)
                self.seg24_mf(s, 2, p, 1)
            else:
                self.seg24_mf(s, 2, p, 1, at={c3: [self.ev_poll_check(3, p, 0, alt=True), U(head3)]})
            self.fs(s, "MF")
            self.bulk.extend(self.groupsB(By, sBD, 0, 44 if (p == 0 and single) else 16))
            e = Stream(); tok[(2, p, 1)] = self.epi24(e, 2, p, 1)
            self.weave(s, e, every=5)
            self.fs(s, "EPI")
            until_issued(head3)
            self.ts(s, "s2O.%d" % p)
            self.urgent.extend(tail3)
            A[(3, p, 1)] = self.groupsA_lds(3, p, 1)
            head3, tail3 = self.split_tile(A[(3, p, 1)])
            a, b, c = self.evs("e3E", (48, 108, 150))
            at = {a: [self.ev_sig(2, p, 1, tok[(2, p, 1)])], b: [self.ev_poll_issue(3, p, 1)],
                  c: [self.ev_poll_check(3, p, 1), U(head3)]}
            if not last:
                self.trickle.extend(self.pf(sPfQ, 2048 * i) for i in range(self.pf_n["Q"]))
            self.seg13(s, 3, p, 0, A[(3, p, 0)], at)
            self.ts(s, "mf3E.%d" % p)
            e = Stream(); tok[(3, p, 0)] = self.epi3(e, p, 0)
            self.weave(s, e, every=12)
            until_issued(head3)
            self.ts(s, "s3E.%d" % p)
            self.urgent.extend(tail3)
            gA = self.groupsA24(4, p, 0)
            a, b, c = self.evs("e3O", (64, 120, 160))
            at = {a: [self.ev_sig(3, p, 0, tok[(3, p, 0)])], b: [self.ev_poll_issue(4, p, 0)],
                  c: [self.ev_poll_check(4, p, 0), U(gA)]}
            if not last:
                self.trickle.extend(self.pf(sPfW, 2048 * i) for i in range(self.pf_n["W"]))
            early_q = (not last) and self.opts.get("prog", "1") == "1"
            if early_q:
                self.bulk.extend(self.progressive(self.groupsB(Bx, sBQ, 0, 48), 12))
            self.seg13(s, 3, p, 1, A[(3, p, 1)], at)
            self.ts(s, "mf3O.%d" % p)
            self.flush_urgent(s)
            if early_q:
                self.clear_min()
                while self.bulk and not any(x.meta.get("bname") == "Q" for x in self.bulk[0]):
                    s.extend(self.bulk.popleft())
            else:
                while self.bulk:
                    s.extend(self.bulk.popleft())
                if not last:
                    self.bulk.extend(self.groupsB(Bx, sBQ, 0, 48))
            e = Stream(); tok[(3, p, 1)] = self.epi3(e, p, 1)
            self.weave(s, e, every=12)
            self.ts(s, "s3O.%d" % p)
            a = int(self.opts.get("e4E", 60))
            at = {a: [self.ev_sig(3, p, 1, tok[(3, p, 1)])]}
            at.setdefault(int(self.opts.get("h4", 62)), []).append(self.set_hold(True))
            self.seg24_mf(s, 4, p, 0, at=at)
            self.fs(s, "MF")
            if last:
                s.extend(self.ev_poll_issue(4, p, 1))
            e = Stream(); tok[(4, p, 0)] = self.epi24(e, 4, p, 0)
            self.weave(s, e, every=10)
            if not last:
                s.extend(self.ev_poll_issue(4, p, 1))
                s.extend(self.ev_sig(4, p, 0, tok[(4, p, 0)]))
                s.extend(self.ev_poll_issue(1, p + 1, 0, alt=True))
            self.fs(s, "EPI")
            s.extend(self.ev_poll_check(4, p, 1))
            self.hold = False
            self.ts(s, "s4E.%d" % p)
            self.urgent.extend(self.groupsA24(4, p, 1))
            self.flush_urgent(s)
            at = {}
            head1 = []
            if not last:
                A[(1, p + 1, 0)] = self.groupsA_lds(1, p + 1, 0)
                head1, tails[(1, p + 1, 0)] = self.split_tile(A[(1, p + 1, 0)])
                at = {int(self.opts.get("c1E", 8)): [self.ev_poll_check(1, p + 1, 0, alt=True), U(head1)]}
            self.burst(s, int(self.opts.get("b4O", 0)))
            self.seg24_mf(s, 4, p, 1, at=at)
            e = Stream(); tok[(4, p, 1)] = self.epi24(e, 4, p, 1)
            self.weave(s, e, every=5)
            until_issued(head1)
            self.ts(s, "s4O.%d" % p)
        if single:
            s("s_cmp_eq_u32 s2, 0")
            s("s_cbranch_scc0 M_noep")
            s("s_mov_b32 s36, %d" % EPOCH)
            s("buffer_store_dword v%d, v%d, s[8:11], s36 offen" % (vOne, vFlag))
            s("M_noep:")
        if self.prof == 4:
            s = self.resolve_marks(s)
        if self.prof:
            s("s_lshl_b32 s36, s2, 2")
            s("s_add_u32 s36, s36, s%d" % sW)
            s("s_lshl_b32 s36, s36, 8")
            s("s_add_u32 s36, s36, %d" % 0x3000000)
            s("s_memrealtime s[100:101]")
            s("s_waitcnt lgkmcnt(0)")
            s("s_mov_b32 s95, s100")
            s("s_mov_b64 exec, 1")
            for k in (94, 95):
                s("v_mov_b32 v20, s%d" % k)
                s("buffer_store_dword v20, off, s[8:11], s36 offset:%d" % (4 * (62 + k - 94)))
            if self.prof == 2 and self.local:
                for k, r in enumerate((sImp, sXcc)):
                    s("v_mov_b32 v20, s%d" % r)
                    s("buffer_store_dword v20, off, s[8:11], s36 offset:%d" % (4 * (8 + k)))
            if self.prof == 7:
                for k in range(6):
                    s("v_mov_b32 v20, s%d" % (80 + k))
                    s("buffer_store_dword v20, off, s[8:11], s36 offset:%d" % (4 * (8 + k)))
            if self.prof == 5:
                for k in range(16):
                    s("v_mov_b32 v20, s%d" % (sTS + 2 + k))
                    s("buffer_store_dword v20, off, s[8:11], s36 offset:%d" % (4 * (8 + k)))
            for k in range(self.nts):
                s("v_mov_b32 v20, s%d" % (sTS + (2 * k if self.prof in (3, 8) else k)))
                s("buffer_store_dword v20, off, s[8:11], s36 offset:%d" % (4 * k))
            s("s_mov_b64 exec, -1")
        s("s_waitcnt vmcnt(0)")
        self.check_weights(s)
        self.check_order(s)
        pol = self.opts.get("ntA")
        if pol:
            for ins in s:
                if ins.meta.get("dep") is not None and " sc1" in ins.text:
                    ins.text = ins.text.replace(" sc1", " sc1 nt" if pol == "1" else {"2": " nt", "3": ""}[pol])
        if self.opts.get("ntS") == "1":
            for ins in s:
                if ins.cls == "vm_st" and "dwordx4" in ins.text and " sc1" in ins.text:
                    ins.text = ins.text.replace(" sc1", " sc1 nt")
        lines = finalize(s, verbose=False)
        lines.append("M_end:")
        lines.append("  s_endpgm")
        lines += self.slow
        lines.append("M_last:")
        lines.append("  s_endpgm")
        return lines


def gen_main(opts):
    m = Main(opts)
    lines = m.gen()
    if m.prof:
        lines.insert(0, "; timestamps: " + " ".join(m.tsnames))
    return lines, LDS_BYTES
```

```python
from asmlib import *
from layout import *

CODEPF = ""
PROF = 0
TLBWARM = 1
FLAG1_FIRST = 1
NCPF = 2
N_LATE_LOADS = 7
F_LDS = 0
G_LDS = 49152
S_LDS = 114688


def stamp(s, k):
    if PROF == 7:
        s("s_memtime s[98:99]")
        s("s_waitcnt lgkmcnt(0)")
        s("s_mov_b32 s%d, s98" % (80 + k))


def magic(d):
    return (2 ** 32 + d - 1) // d


def gen_pack():
    L = []

    def fin(s):
        L.extend(finalize(s))

    def raw_issue(s, srow0, scol, sstride, slds):
        s("""
        s_lshl_b32 s40, s{r}, 5
        v_lshrrev_b32 v8, 3, v1
        v_add_u32 v8, s40, v8
        v_mul_lo_u32 v8, v8, s{st}
        v_and_b32 v9, 7, v1
        v_lshl_add_u32 v8, v9, 4, v8
        v_add_u32 v8, s{c}, v8
        s_lshl_b32 s40, s{st}, 3
        s_mov_b32 m0, s{l}
        """.format(r=srow0, st=sstride, c=scol, l=slds))
        for i in range(4):
            s("buffer_load_dwordx4 v8, s[12:15], 0 offen lds")
            if i < 3:
                s("v_add_u32 v8, s40, v8")
                s("s_add_u32 m0, m0, 1024")

    s = Stream()
    if PROF:
        s("s_memrealtime s[100:101]")
        s("s_memtime s[98:99]")
        s("s_waitcnt lgkmcnt(0)")
        s("s_mov_b32 s94, s100")
        s("s_mov_b32 s68, s98")
    s("""
    s_load_dwordx4 s[16:19], s[0:1], 0
    s_load_dwordx2 s[20:21], s[0:1], 16
    s_load_dwordx4 s[24:27], s[0:1], 32
    s_load_dwordx2 s[28:29], s[0:1], 48
    s_load_dwordx4 s[52:55], s[0:1], 56
    s_load_dwordx2 s[30:31], s[0:1], 72
    s_cmp_ge_u32 s2, 256
    s_cbranch_scc1 M_end
    v_lshrrev_b32 v2, 6, v0
    v_and_b32 v1, 63, v0
    v_readfirstlane_b32 s3, v2
    v_lshlrev_b32 v3, 4, v1
    s_lshl_b32 s4, s2, 2
    s_add_u32 s4, s4, s3
    s_lshl_b32 s5, s3, 12
    s_add_u32 s6, s5, {S}
    s_add_u32 s5, s5, {F}
    v_and_b32 v4, 3, v1
    v_lshrrev_b32 v5, 2, v1
    v_and_b32 v5, 3, v5
    v_lshrrev_b32 v6, 4, v1
    v_lshl_add_u32 v7, v6, 3, v5
    v_mov_b32 v40, 0x3f803f80
    v_mov_b32 v41, 0x3f803f80
    v_mov_b32 v42, 0x3f803f80
    v_mov_b32 v43, 0x3f803f80
    v_lshlrev_b32 v62, 2, v1
    v_cmp_gt_u32 vcc, 16, v1
    v_mov_b32 v15, 0x7ffffff0
    v_cndmask_b32 v62, v15, v62, vcc
    s_waitcnt lgkmcnt(0)
    s_mov_b32 s8, s30
    s_and_b32 s9, s31, 0xffff
    s_mov_b32 s10, 0x10000000
    s_mov_b32 s11, 0x20000
    s_mov_b32 s15, 0x20000
    s_mov_b32 s35, 0x20000
    s_add_u32 s46, s30, {EP}
    s_addc_u32 s47, s31, 0
    s_load_dword s95, s[46:47], 0
    """.format(S=S_LDS, F=F_LDS, EP=EPOCH))
    stamp(s, 0)
    if TLBWARM:
        s("""
        s_lshr_b32 s44, s2, 3
        s_lshl_b32 s44, s44, 2
        s_add_u32 s44, s44, s3
        s_mul_hi_u32 s45, s44, %d
        s_mul_i32 s45, s45, 24
        s_sub_u32 s44, s44, s45
        s_lshl_b32 s45, s44, 21
        s_mov_b32 s12, s30
        s_mov_b32 s13, s31
        s_cmp_eq_u32 s44, 18
        s_cselect_b32 s12, s20, s12
        s_cselect_b32 s13, s21, s13
        s_cmp_eq_u32 s44, 19
        s_cselect_b32 s12, s28, s12
        s_cselect_b32 s13, s29, s13
        s_cmp_eq_u32 s44, 20
        s_cselect_b32 s12, s24, s12
        s_cselect_b32 s13, s25, s13
        s_cmp_eq_u32 s44, 21
        s_cselect_b32 s12, s26, s12
        s_cselect_b32 s13, s27, s13
        s_cmp_eq_u32 s44, 22
        s_cselect_b32 s12, s52, s12
        s_cselect_b32 s13, s53, s13
        s_cmp_eq_u32 s44, 23
        s_cselect_b32 s12, s16, s12
        s_cselect_b32 s13, s17, s13
        s_cmp_ge_u32 s44, 18
        s_cselect_b32 s45, 0, s45
        s_and_b32 s13, s13, 0xffff
        s_mov_b32 s14, 0x10000000
        v_mov_b32 v63, 0
        buffer_load_dword v61, v63, s[12:15], s45 offen
        """ % magic(24))
    s("""
    s_cmp_ge_u32 s4, 384
    s_cbranch_scc1 K_iX
    s_mul_hi_u32 s36, s4, %d
    s_mul_i32 s37, s36, 48
    s_sub_u32 s37, s4, s37
    s_mul_hi_u32 s38, s37, %d
    s_mul_i32 s39, s38, 3
    s_sub_u32 s39, s37, s39
    s_mov_b32 s12, s18
    s_and_b32 s13, s19, 0xffff
    s_mov_b32 s14, %d
    s_lshl_b32 s41, s39, 10
    s_lshl_b32 s42, s36, 7
    s_add_u32 s41, s41, s42
    s_movk_i32 s43, 3072
    """ % (magic(48), magic(3), 512 * 1536 * 2))
    raw_issue(s, 38, 41, 43, 5)
    s("""
    v_lshlrev_b32 v16, 7, v7
    v_lshl_add_u32 v16, v4, 3, v16
    v_add_u32 v63, s5, v16
    s_mul_i32 s42, s36, %d
    s_lshl_b32 s43, s37, 10
    s_add_u32 s42, s42, s43
    s_add_u32 s42, s42, %d
    """ % (4 * 48 * KB, PQ))
    stamp(s, 1)
    s("s_waitcnt vmcnt(0) lgkmcnt(0)")
    stamp(s, 2)
    for w in range(4):
        for t in range(2):
            s("ds_read_b64_tr_b16 v[%d:%d], v63 offset:%d" % (16 + 4 * w + 2 * t, 17 + 4 * w + 2 * t, t * 512 + w * 32))
    for w in range(4):
        s("buffer_store_dwordx4 v[%d:%d], v3, s[8:11], s42 offen sc1" % (16 + 4 * w, 19 + 4 * w))
        if w < 3:
            s("s_add_u32 s42, s42, %d" % (48 * KB))
    for w in range(4):
        s("v_mfma_f32_16x16x32_bf16 v[%d:%d], v[40:43], v[%d:%d], 0" % (44 + 4 * w, 47 + 4 * w, 16 + 4 * w, 19 + 4 * w))
    s("""
    s_mul_i32 s42, s36, %d
    s_lshl_b32 s43, s39, 10
    s_add_u32 s42, s42, s43
    s_lshl_b32 s43, s38, 6
    s_add_u32 s42, s42, s43
    s_add_u32 s42, s42, %d
    """ % (4 * 3 * KB, CSQ))
    for w in range(4):
        s("buffer_store_dword v%d, v62, s[8:11], s42 offen sc1" % (44 + 4 * w))
        if w < 3:
            s("s_add_u32 s42, s42, %d" % (3 * KB))
    s("s_branch K_iG")
    fin(s)

    L.append("K_iX:")
    s = Stream()
    s("""
    s_sub_u32 s46, s4, 384
    s_mov_b32 s12, s16
    s_and_b32 s13, s17, 0xffff
    s_mov_b32 s14, {xs}
    s_lshr_b32 s36, s46, 8
    s_lshr_b32 s37, s46, 2
    s_and_b32 s37, s37, 63
    s_and_b32 s38, s46, 3
    v_and_b32 v8, 15, v1
    s_lshl_b32 s41, s37, 4
    v_add_u32 v8, s41, v8
    v_lshlrev_b32 v8, 1, v8
    v_add_u32 v8, s36, v8
    v_lshlrev_b32 v8, 10, v8
    v_lshl_add_u32 v8, v6, 4, v8
    s_lshl_b32 s41, s38, 8
    v_add_u32 v8, s41, v8
    v_lshlrev_b32 v16, 2, v1
    v_mov_b32 v17, v3
    s_cmp_lt_u32 s46, 512
    s_cbranch_scc1 K_x1
    v_mov_b32 v8, 0x7ffff000
    v_mov_b32 v16, 0x7ffff000
    v_mov_b32 v17, 0x7ffff000
    """.format(xs=2048 * 512 * 2))
    fin(s)
    L.append("K_x1:")
    s = Stream()
    for b in range(4):
        s("buffer_load_dwordx4 v[%d:%d], v8, s[12:15], 0 offen offset:%d" % (64 + 4 * b, 67 + 4 * b, b * 64))
    s("""
    s_lshl_b32 s40, s36, 20
    s_lshl_b32 s41, s37, 14
    s_add_u32 s40, s40, s41
    s_lshl_b32 s41, s38, 12
    s_add_u32 s40, s40, s41
    s_add_u32 s40, s40, {xb}
    s_lshl_b32 s42, s36, 17
    s_lshl_b32 s41, s37, 11
    s_add_u32 s42, s42, s41
    s_lshl_b32 s41, s38, 9
    s_add_u32 s42, s42, s41
    s_add_u32 s42, s42, {st}
    """.format(xb=XB[0], st=ST[0]))
    stamp(s, 1)
    s("s_waitcnt vmcnt(0) lgkmcnt(0)")
    stamp(s, 2)
    base = 64
    for b in range(4):
        s("buffer_store_dwordx4 v[%d:%d], v17, s[8:11], s40 offen offset:%d sc1" % (base + 4 * b, base + 4 * b + 3, b * 1024))
    for b in range(4):
        a, q = 44 + 2 * b, 45 + 2 * b
        s("v_mov_b32 v%d, 0" % a)
        s("v_mov_b32 v%d, 0" % q)
        for k in range(4):
            s("v_dot2c_f32_bf16 v%d, v%d, v40" % (a, base + 4 * b + k))
            s("v_dot2c_f32_bf16 v%d, v%d, v%d" % (q, base + 4 * b + k, base + 4 * b + k))
    for b in range(4):
        a, q = 44 + 2 * b, 45 + 2 * b
        s("v_permlane16_swap_b32 v%d, v%d" % (a, q))
        s("v_add_f32 v%d, v%d, v%d" % (a, a, q))
        s("v_mov_b32 v%d, v%d" % (q, a))
        s("v_permlane32_swap_b32 v%d, v%d" % (a, q))
        s("v_add_f32 v%d, v%d, v%d" % (a, a, q))
    s("s_mov_b32 exec_hi, 0")
    for b in range(4):
        s("buffer_store_dword v%d, v16, s[8:11], s42 offen offset:%d sc1" % (44 + 2 * b, b * 128))
    s("s_mov_b32 exec_hi, -1")
    fin(s)

    L.append("K_iG:")
    s = Stream()
    stamp(s, 3)
    if FLAG1_FIRST:
        s(CODEPF)
    s("""
    s_add_u32 s61, s95, 1
    v_mov_b32 v61, s61
    v_cmp_eq_u32 vcc, 0, v0
    v_mov_b32 v60, 0x7ffffff0
    v_cndmask_b32 v60, v60, 0, vcc
    s_lshr_b32 s46, s2, 3
    s_lshl_b32 s46, s46, 7
    s_and_b32 s47, s2, 7
    s_lshl_b32 s47, s47, 2
    s_add_u32 s46, s46, s47
    s_add_u32 s59, s46, %d
    """ % PFL)
    s("""
    s_getreg_b32 s46, hwreg(HW_REG_XCC_ID, 0, 4)
    s_lshl_b32 s47, s61, 4
    s_or_b32 s46, s46, s47
    s_and_b32 s47, s2, 7
    s_lshl_b32 s47, s47, 7
    s_lshr_b32 s44, s2, 3
    s_lshl_b32 s44, s44, 2
    s_add_u32 s47, s47, s44
    s_add_u32 s47, s47, %d
    s_sub_u32 s47, s47, s59
    v_cmp_eq_u32 vcc, 1, v0
    v_mov_b32 v62, s47
    v_mov_b32 v63, s46
    v_cndmask_b32 v60, v60, v62, vcc
    v_cndmask_b32 v61, v61, v63, vcc
    """ % PXC)
    if FLAG1_FIRST:
        s("s_waitcnt vmcnt(%d)" % NCPF)
        s("s_barrier")
        s("buffer_store_dword v61, v60, s[8:11], s59 offen sc1")
    s("""
    s_lshr_b32 s48, s2, 4
    s_and_b32 s50, s2, 15
    s_mul_i32 s40, s48, 96
    s_and_b32 s41, s3, 1
    s_mul_i32 s41, s41, 192
    s_cmp_ge_u32 s3, 2
    s_cselect_b32 s32, s26, s24
    s_cselect_b32 s33, s27, s25
    s_and_b32 s33, s33, 0xffff
    s_mov_b32 s34, %d
    s_mul_i32 s43, s3, 3072
    s_add_u32 s43, s43, %d
    """ % (512 * 1376 * 2, G_LDS))
    for i in range(3):
        s("""
        v_add_u32 v8, s41, v1
        v_add_u32 v8, {o}, v8
        v_mul_u32_u24 v9, 5462, v8
        v_lshrrev_b32 v9, 16, v9
        v_mul_u32_u24 v12, 12, v9
        v_sub_u32 v12, v8, v12
        s_lshl_b32 s42, s50, 5
        v_add_u32 v13, s42, v9
        v_mul_u32_u24 v13, 2752, v13
        v_lshlrev_b32 v14, 3, v12
        v_add_u32 v14, s40, v14
        v_lshl_add_u32 v13, v14, 1, v13
        v_cmp_gt_u32 vcc, 1376, v14
        v_mov_b32 v15, 0x7ffffff0
        v_cndmask_b32 v13, v15, v13, vcc
        s_add_u32 m0, s43, {m}
        buffer_load_dwordx4 v13, s[32:35], 0 offen lds
        """.format(o=64 * i, m=1024 * i))
    s("""
    s_mov_b32 s12, s20
    s_mov_b32 s13, s21
    s_mov_b32 s14, 0
    s_mov_b32 s52, 0
    s_mov_b32 s53, 0
    s_cmp_lt_u32 s4, 544
    s_cbranch_scc1 K_iR
    s_sub_u32 s46, s4, 544
    s_cmp_ge_u32 s46, 128
    s_cbranch_scc1 K_iD
    s_lshr_b32 s52, s46, 4
    s_and_b32 s53, s46, 15
    s_mov_b32 s14, %d
    s_branch K_iR
    """ % (512 * 512 * 2))
    fin(s)
    L.append("K_iD:")
    s = Stream()
    s("""
    s_sub_u32 s46, s46, 128
    s_mul_hi_u32 s52, s46, %d
    s_mul_i32 s47, s52, 44
    s_sub_u32 s53, s46, s47
    s_mov_b32 s12, s28
    s_mov_b32 s13, s29
    s_mov_b32 s14, %d
    """ % (magic(44), 1376 * 512 * 2))
    fin(s)
    L.append("K_iR:")
    s = Stream()
    s("s_and_b32 s13, s13, 0xffff")
    s("s_lshl_b32 s41, s52, 7")
    s("s_movk_i32 s43, 1024")
    raw_issue(s, 53, 41, 43, 6)
    if not FLAG1_FIRST:
        s(CODEPF)
        s("s_waitcnt vmcnt(%d)" % (N_LATE_LOADS + NCPF))
        s("s_barrier")
        s("buffer_store_dword v61, v60, s[8:11], s59 offen sc1")
    stamp(s, 5)
    fin(s)
    L.append("K_done:")
    L.append("  s_nop 7")
    return L


def emit_late(s, sW, vL16, tmp, B):
    a, b, c, d = tmp
    lane, cc, rr, gg, r8 = B, B + 1, B + 2, B + 3, B + 4
    csa, oob, gb, g1, g2, sa, so = B + 5, B + 6, B + 7, B + 8, B + 9, B + 10, B + 11
    ones, SF, GF, GC = B + 12, B + 16, B + 32, B + 44
    s("""
    v_lshrrev_b32 v{lane}, 4, v{l16}
    v_and_b32 v{cc}, 3, v{lane}
    v_lshrrev_b32 v{rr}, 2, v{lane}
    v_and_b32 v{rr}, 3, v{rr}
    v_lshrrev_b32 v{gg}, 4, v{lane}
    v_lshl_add_u32 v{r8}, v{gg}, 3, v{rr}
    v_mul_u32_u24 v{gb}, 192, v{r8}
    s_mul_i32 s{a}, s{w}, 48
    s_add_u32 s{a}, s{a}, {gl}
    v_add_u32 v{gb}, s{a}, v{gb}
    v_lshl_add_u32 v{g1}, v{cc}, 3, v{gb}
    v_and_b32 v{g2}, 1, v{cc}
    v_mul_u32_u24 v{g2}, 6144, v{g2}
    v_lshrrev_b32 v{sa}, 1, v{cc}
    v_lshl_add_u32 v{g2}, v{sa}, 3, v{g2}
    v_add_u32 v{g2}, v{g2}, v{gb}
    """.format(lane=lane, cc=cc, rr=rr, gg=gg, r8=r8, l16=vL16, w=sW, a=a, gl=G_LDS, gb=gb, g1=g1, g2=g2, sa=sa))
    for t in range(2):
        s("ds_read_b64_tr_b16 v[%d:%d], v%d offset:%d" % (GF + 2 * t, GF + 1 + 2 * t, g1, t * 768))
        s("ds_read_b64_tr_b16 v[%d:%d], v%d offset:%d" % (GF + 4 + 2 * t, GF + 5 + 2 * t, g1, t * 768 + 6144))
        s("ds_read_b64_tr_b16 v[%d:%d], v%d offset:%d" % (GF + 8 + 2 * t, GF + 9 + 2 * t, g2, t * 768 + 32))
    s("""
    v_lshlrev_b32 v{sa}, 7, v{r8}
    v_lshl_add_u32 v{sa}, v{cc}, 4, v{sa}
    s_lshl_b32 s{a}, s{w}, 12
    s_add_u32 s{a}, s{a}, {sl}
    v_add_u32 v{sa}, s{a}, v{sa}
    """.format(r8=r8, cc=cc, a=a, w=sW, sl=S_LDS, sa=sa))
    for bb in range(2):
        for jl in range(2):
            f = bb * 2 + jl
            for t in range(2):
                s("ds_read_b64_tr_b16 v[%d:%d], v%d offset:%d" % (SF + 4 * f + 2 * t, SF + 1 + 4 * f + 2 * t, sa, t * 512 + 64 * bb + 8 * jl))
    for k in range(4):
        s("v_mov_b32 v%d, 0x3f803f80" % (ones + k))
    s("""
    v_lshlrev_b32 v{csa}, 2, v{lane}
    v_cmp_gt_u32 vcc, 16, v{lane}
    v_mov_b32 v{oob}, 0x7ffffff0
    v_cndmask_b32 v{csa}, v{oob}, v{csa}, vcc
    """.format(csa=csa, lane=lane, oob=oob))
    s("""
    s_lshr_b32 s{a}, s2, 4
    s_lshl_b32 s{a}, s{a}, 2
    s_add_u32 s{a}, s{a}, s{w}
    s_and_b32 s{b}, s2, 15
    s_mul_i32 s{c}, s{a}, {k48}
    s_mul_i32 s{d}, s{b}, {k3}
    s_add_u32 s{c}, s{c}, s{d}
    s_add_u32 s{c}, s{c}, {PG}
    """.format(a=a, b=b, c=c, d=d, w=sW, k48=48 * KB, k3=3 * KB, PG=PG))
    for sub in range(3):
        s("buffer_store_dwordx4 v[%d:%d], v%d, s[8:11], s%d offen offset:%d sc1" % (GF + 4 * sub, GF + 3 + 4 * sub, vL16, c, sub * 1024))
    for sub in range(3):
        s("v_mfma_f32_16x16x32_bf16 v[%d:%d], v[%d:%d], v[%d:%d], 0" % (GC + 4 * sub, GC + 3 + 4 * sub, ones, ones + 3, GF + 4 * sub, GF + 3 + 4 * sub))
    s("""
    s_mul_i32 s{c}, s{a}, {k3}
    s_lshl_b32 s{d}, s{b}, 6
    s_add_u32 s{c}, s{c}, s{d}
    s_add_u32 s{c}, s{c}, {CSG}
    """.format(a=a, b=b, c=c, d=d, k3=3 * KB, CSG=CSG))
    for sub in range(3):
        s("buffer_store_dword v%d, v%d, s[8:11], s%d offen offset:%d sc1" % (GC + 4 * sub, csa, c, sub * 1024))
    s("""
    s_lshl_b32 s{a}, s2, 2
    s_add_u32 s{a}, s{a}, s{w}
    s_sub_u32 s{a}, s{a}, 544
    s_cmp_ge_i32 s{a}, 0
    s_cselect_b32 s{d}, 0, 1
    s_lshl_b32 s{d}, s{d}, 30
    v_or_b32 v{so}, s{d}, v{l16}
    s_max_i32 s{a}, s{a}, 0
    s_and_b32 s{b}, s{a}, 15
    s_lshr_b32 s{b}, s{b}, 2
    s_lshl_b32 s{c}, s{a}, 12
    s_add_u32 s{c}, s{c}, {PW}
    s_cmp_lt_u32 s{a}, 128
    s_cbranch_scc1 K_l1
    s_sub_u32 s{a}, s{a}, 128
    s_lshl_b32 s{c}, s{a}, 12
    s_add_u32 s{c}, s{c}, {PD}
    s_mul_hi_u32 s{d}, s{a}, {m44}
    s_mul_i32 s{d}, s{d}, 44
    s_sub_u32 s{a}, s{a}, s{d}
    s_mul_hi_u32 s{b}, s{a}, {m11}
    """.format(a=a, b=b, c=c, d=d, w=sW, l16=vL16, PW=PW, PD=PD, m44=magic(44), m11=magic(11), so=so))
    s("K_l1:")
    s("s_and_b32 s%d, s%d, 1" % (b, b))
    tok = None
    for bb in range(2):
        s("s_xor_b32 s%d, s%d, %d" % (d, b, bb))
        s("s_lshl_b32 s%d, s%d, 11" % (d, d))
        s("s_add_u32 s%d, s%d, s%d" % (d, d, c))
        for jl in range(2):
            f = bb * 2 + jl
            tok = s.vm("buffer_store_dwordx4 v[%d:%d], v%d, s[8:11], s%d offen offset:%d sc1" % (SF + 4 * f, SF + 3 + 4 * f, so, d, jl * 1024))
    return tok
```

```python
from asmlib import *
from layout import *
from collections import deque
import pack

REG = [0, 65536]
MISC = 131072
STP = MISC
STF = MISC + 16384
CSL = STF + 2048
BIAS = CSL + 2048
JUNK = BIAS + 3072
LDS_BYTES = 163840
SCR = [65536, 98304]

vLane, vL16, vLO, vOst, vH1, vH2, vRed, vPollA, vPollB, vOut = 1, 2, 3, 4, 5, 6, 7, 8, 9, 10
vStatR, vStatW, vStI, vStV, vCs, vCsV, vB1, vOne, vP = 11, 12, 13, 14, 15, 16, 17, 18, 19
ACC = 20
FR = 68
RING = 88
TMP = 136
RES = 140
DV = 144

sW, sRB, sCG, sRB3, sCG3 = 16, 17, 18, 19, 20
sA1h, sA1m, sA3, sKw = 21, 22, 23, 24
sSt1, sSt3 = 25, 26
sM2, sM4 = 28, 30
sT, sT2, sT3 = 32, 33, 34
sOdd = 36
sOnes = 38
sCnt = 40
sBQ, sBW, sBG, sBD = 41, 42, 43, 44
sOst, sA2, sRes, sHst = 45, 46, 47, 48
sA4 = 64
sF1, sF3 = 50, 51
sP2, sP3, sP4, sP1a = 52, 53, 54, 55
sOutO = 56
sStO = 57
sK = 96
sTB = 49
sPoll = 35
sA1hw, sA1mw, sA3w, sKw1 = 63, 66, 67, 27
vPollH = 0
vFlag = 1
vL128 = 10
sPfQ, sPfW, sPfG, sPfD = 90, 91, 92, 93
sM16 = 100
sPoll2 = 62
vP2 = 139
sPur = 5
sImp = 7
sXcc = 6
sTag = 61
sA2b = 60
sE, sE2 = 58, 59
sT4 = 3
sTS = 68

LOG2E = 1.4426950408889634
import struct
def fbits(x): return struct.unpack("<I", struct.pack("<f", x))[0]

POLL_LIMIT = 200000


def Bx(f):
    return "a[%d:%d]" % (4 * f, 4 * f + 3)
def By(f):
    if f < 16:
        return "a[%d:%d]" % (192 + 4 * f, 195 + 4 * f)
    return "v[%d:%d]" % (DV + 4 * (f - 16), DV + 4 * (f - 16) + 3)
def V(n, c=1):
    return "v%d" % n if c == 1 else "v[%d:%d]" % (n, n + c - 1)

def flag_off(p, phase, h):
    return FL + ((p * 4 + phase) * 2 + h) * 32 * 256


class Main:
    def __init__(self, opts):
        self.opts = opts
        self.prof = int(opts.get("prof", 0))
        self.local = opts.get("local", "1") == "1" and opts.get("single", "1") == "1"
        self.direct = opts.get("direct", "0") == "1" and opts.get("single", "1") == "1"
        self.slow = []
        self.npoll = 0
        self.nts = 0
        self.nimp = 0
        self.tsnames5 = []
        self.fine_on = False
        self.tsnames = []

    def ts(self, s, name):
        if self.prof == 6:
            if name in ("start", "prolog") or name.startswith(("s1O", "s2O", "s3E", "s3O", "s4O")):
                k = self.nts
                self.nts += 2
                self.tsnames += [name, name + ".rt"]
                s("s_waitcnt lgkmcnt(0)")
                s("s_memtime s[0:1]")
                s("s_waitcnt lgkmcnt(0)")
                s("s_mov_b32 s%d, s0" % (sTS + k))
                s("s_memrealtime s[0:1]")
                s("s_waitcnt lgkmcnt(0)")
                s("s_mov_b32 s%d, s0" % (sTS + k + 1))
            return
        if self.prof == 4:
            self.mark(s, "seg:" + name)
            return
        if self.prof == 3:
            f = self.opts.get("fine", "").split(",")
            if name == f[0]:
                self.fine_on = True
                self.fs(s, "begin:" + name)
            elif name == f[-1] and self.fine_on:
                self.fs(s, "end:" + name)
                self.fine_on = False
            return
        if self.prof == 8:
            return
        if not self.prof or (self.prof in (2, 5, 7) and name not in ("start", "s4O.1", "s4.1.1")):
            return
        if name in ("mf3O.0", "mf1O.0", "mf3E.0", "mf1O.1"):
            return
        if self.direct and name in ("prolog", "mf1E.1", "s1E.1", "s2E.1", "mf3E.1", "s3E.1", "mf3O.1", "s4E.1", "s2E.0", "s4E.0"):
            return
        if name == "start" and self.opts.get("single", "1") == "1":
            self.tsnames += ["entry"]
            self.nts += 1
        k = self.nts
        self.nts += 1
        self.tsnames.append(name)
        assert sTS + k < (85 if self.direct else 94), k
        s("s_waitcnt lgkmcnt(0)")
        s("s_memtime s[0:1]")
        s("s_waitcnt lgkmcnt(0)")
        s("s_mov_b32 s%d, s0" % (sTS + k))

    def fs(self, s, name):
        if self.prof == 4 and self.fine_on and not name.startswith("mf"):
            k = self.nts
            if sTS + k >= 94:
                return
            self.nts += 1
            self.tsnames.append(name)
            s("s_waitcnt lgkmcnt(0)")
            s("s_memtime s[0:1]")
            s("s_waitcnt lgkmcnt(0)")
            s("s_mov_b32 s%d, s0" % (sTS + k)).meta["glue"] = False
            return
        if self.prof != 3 or not self.fine_on:
            return
        k = self.nts
        lim = 84 if self.direct else (90 if self.opts.get("pf") == "1" else 94)
        if sTS + 2 * k + 1 >= (lim if name.startswith("end:") else lim - 2):
            return
        self.nts += 1
        self.tsnames.append(name)
        s.append(Ins("s_memtime s[%d:%d]" % (sTS + 2 * k, sTS + 2 * k + 1), async_=True))

    def pause(self, s, n):
        i = Ins("@comment")
        i.meta["c"] = "pause"
        i.meta["pause"] = n
        s.append(i)

    def rt(self, s, name):
        if self.prof == 8 and name.endswith(self.opts.get("rtp", ".1")) and name.split(".")[0] in self.opts.get("rts", "sig1O,chk2O,sig2E,chk3E,sig2O,chk3O,sig3O,chk4O,sig4E,chk1E").split(","):
            k = self.nts
            if sTS + 2 * k + 1 < 94:
                self.nts += 1
                self.tsnames.append(name)
                i = Ins("s_memtime s[2:3]", async_=True)
                i.text = "s_memrealtime s[%d:%d]" % (sTS + 2 * k, sTS + 2 * k + 1)
                s.append(i)

    def stm(self, phase):
        return " sc1"

    def purity(self):
        a, d = RING + 22, RING + 23
        i = Stream()
        i("v_lshrrev_b32 v%d, 2, v%d" % (a, vL16))
        i("s_and_b32 s58, s2, 7")
        i("s_lshl_b32 s58, s58, 7")
        i("s_add_u32 s%d, s58, %d" % (sPur, PXC))
        i("buffer_load_dword v%d, v%d, s[8:11], s%d offen sc1" % (d, a, sPur))
        n = self.npoll
        self.npoll += 1
        c = Stream()
        c("s_add_u32 s58, s%d, 1" % sTag)
        c("v_subrev_u32 v%d, s58, v%d" % (d, d))
        c("v_cmp_le_u32 vcc, 16, v%d" % d)
        c("s_mov_b32 vcc_hi, 0")
        c("s_cbranch_vccnz SLOW_%d" % n).meta["glue"] = True
        c("BACK_%d:" % n)
        c("v_cmp_ne_u32 vcc, s%d, v%d" % (sXcc, d))
        c("s_cmp_lg_u32 vcc_lo, 0")
        c("s_cselect_b32 s58, 1, 0")
        if self.opts.get("impure") == "1":
            c("s_mov_b32 s58, 1")
        c("s_cmp_eq_u32 s%d, 0" % sW)
        c("s_cselect_b32 s%d, s58, 0" % sImp)
        self.slow += ["SLOW_%d:" % n, "  s_mov_b32 s%d, 0" % sCnt, "SPIN_%d:" % n,
                      "  buffer_load_dword v%d, v%d, s[8:11], s%d offen sc1" % (d, a, sPur), "  s_waitcnt vmcnt(0)",
                      "  v_subrev_u32 v%d, s58, v%d" % (d, d), "  v_cmp_le_u32 vcc, 16, v%d" % d, "  s_nop 1", "  s_mov_b32 vcc_hi, 0",
                      "  s_cbranch_vccz BACK_%d" % n, "  s_add_u32 s%d, s%d, 1" % (sCnt, sCnt), "  s_cmp_lt_u32 s%d, %d" % (sCnt, POLL_LIMIT),
                      "  s_cbranch_scc1 SPIN_%d" % n, "  s_branch BACK_%d" % n]
        return i, c

    def mark(self, s, name):
        if self.prof == 4:
            i = Ins("@mark")
            i.meta["name"] = name
            s.append(i)

    def resolve_marks(self, s):
        out = Stream()
        f = self.opts.get("fine", "").split(",")
        on = False
        for ins in s:
            if ins.text == "@mark":
                nm = ins.meta["name"]
                if nm == "seg:" + f[0]:
                    on = True
                if on and sTS + self.nts < 94:
                    k = self.nts
                    self.nts += 1
                    self.tsnames.append(nm)
                    out("s_waitcnt lgkmcnt(0)")
                    out("s_memtime s[0:1]")
                    out("s_waitcnt lgkmcnt(0)")
                    out("s_mov_b32 s%d, s0" % (sTS + k))
                if nm == "seg:" + f[-1]:
                    on = False
                continue
            out.append(ins)
        return out

    def poll_issue(self, s, soff, const, vaddr, alt=False):
        vd, sp = (vP2, sPoll2) if alt else (vP, sPoll)
        s("s_add_u32 s%d, s%d, %d" % (sp, soff, const))
        s("buffer_load_dword v%d, v%d, s[8:11], s%d offen sc1" % (vd, vaddr, sp))
        self.mark(s, "pollI")

    def poll_check(self, s, vaddr, mask, alt=False):
        vP, sPoll = (vP2, sPoll2) if alt else (globals()["vP"], globals()["sPoll"])
        n = self.npoll
        self.npoll += 1
        self.mark(s, "chkA")
        s("v_cmp_ne_u32 vcc, s%d, v%d" % (sTag, vP))
        if mask is not None:
            s("s_and_b64 vcc, vcc, s[%d:%d]" % (mask, mask + 1))
        s("s_cbranch_vccnz SLOW_%d" % n).meta["glue"] = True
        s("BACK_%d:" % n).meta["glue"] = True
        s("s_barrier")
        self.mark(s, "chkB")
        t = []
        t.append("SLOW_%d:" % n)
        if self.prof == 5:
            t.append("  s_memtime s[0:1]")
            t.append("  s_waitcnt lgkmcnt(0)")
            t.append("  s_mov_b32 s%d, s0" % (sTS + 2 + n))
            self.tsnames5.append("poll%d" % n)
        t.append("  s_mov_b32 s%d, 0" % sCnt)
        t.append("SPIN_%d:" % n)
        t.append("  buffer_load_dword v%d, v%d, s[8:11], s%d offen sc1" % (vP, vaddr, sPoll))
        t.append("  s_waitcnt vmcnt(0)")
        t.append("  v_cmp_ne_u32 vcc, s%d, v%d" % (sTag, vP))
        t.append("  s_nop 1")
        if mask is not None:
            t.append("  s_and_b64 vcc, vcc, s[%d:%d]" % (mask, mask + 1))
        t.append("  s_cbranch_vccz %s_%d" % ("DONE" if self.prof == 5 else "BACK", n))
        t.append("  s_add_u32 s%d, s%d, 1" % (sCnt, sCnt))
        t.append("  s_cmp_lt_u32 s%d, %d" % (sCnt, POLL_LIMIT))
        t.append("  s_cbranch_scc1 SPIN_%d" % n)
        t.append("  s_branch BACK_%d" % n)
        if self.prof == 5:
            t.append("DONE_%d:" % n)
            t.append("  s_memtime s[0:1]")
            t.append("  s_waitcnt lgkmcnt(0)")
            t.append("  s_sub_u32 s%d, s0, s%d" % (sTS + 2 + n, sTS + 2 + n))
            t.append("  s_branch BACK_%d" % n)
        self.slow += t

    def dep(self, phase, p, h):
        if phase == 1:
            return (sP1a, flag_off(p - 1, 3, h), vPollH, sM16)
        if phase == 2:
            return (sP2, flag_off(p, 0, h), vPollB, sM2)
        if phase == 3:
            return (sP3, flag_off(p, 1, h), vPollA, sM16)
        return (sP4, flag_off(p, 2, h), vPollB, sM4)

    def ev_poll_issue(self, phase, p, h, alt=False):
        t = Stream()
        so, c, va, m = self.dep(phase, p, h)
        self.poll_issue(t, so, c, va, alt)
        return t

    def ev_poll_check(self, phase, p, h, alt=False):
        t = Stream()
        so, c, va, m = self.dep(phase, p, h)
        self.poll_check(t, va, m, alt)
        [x for x in t if x.text == "s_barrier"][-1].meta["checked"] = (phase, p, h)
        self.rt(t, "chk%d%s.%d" % (phase, "EO"[h], p))
        return t

    def ev_sig(self, phase, p, h, tok):
        t = Stream()
        self.sig(t, tok, sF3 if phase == 3 else sF1, flag_off(p, phase - 1, h), local=(self.local and phase != 4))
        self.rt(t, "sig%d%s.%d" % (phase, "EO"[h], p))
        return t

    def sig(self, s, tok, soff, const, local=False):
        self.mark(s, "sigA")
        s.wait_vm(tok)
        self.mark(s, "sigW")
        s("s_barrier")
        self.mark(s, "sigB")
        s("s_add_u32 s%d, s%d, %d" % (sT3, soff, const))
        if not local:
            s("buffer_store_dword v%d, v%d, s[8:11], s%d offen sc1" % (vOne, vFlag, sT3))
            return
        n = self.nimp
        self.nimp += 1
        s("s_cmp_eq_u32 s%d, 1" % sImp)
        s("s_cbranch_scc1 IMP_%d" % n).meta["glue"] = True
        s("buffer_store_dword v%d, v%d, s[8:11], s%d offen" % (vOne, vFlag, sT3)).meta["glue"] = True
        s("IMPB_%d:" % n)
        self.slow += ["IMP_%d:" % n,
                      "  buffer_store_dword v%d, v%d, s[8:11], s%d offen sc1" % (vOne, vFlag, sT3), "  s_branch IMPB_%d" % n]

    def groupsB(self, reg, sbase, lo, hi):
        out = []
        if self.opts.get("nob") == "1" and sbase != sBQ:
            return out
        if self.opts.get("nob") == "2" and sbase == sBG:
            return out
        for f in range(lo, hi):
            g = Stream()
            if f == lo or f % 4 == 0:
                g("s_add_u32 s%d, s%d, %d" % (sTB, sbase, (f // 4) * 4096))
            g("buffer_load_dwordx4 %s, v%d, s[8:11], s%d offen offset:%d" % (reg(f), vL16, sTB, (f % 4) * 1024)).meta["bname"] = \
                {sBQ: "Q", sBW: "W", sBG: "G", sBD: "D"}[sbase]
            out.append(g)
        return out

    def pf(self, sbase, const=0):
        g = Stream()
        if self.opts.get("pf") != "1":
            return g
        g("s_mov_b32 m0, %d" % JUNK)
        g("s_add_u32 s%d, s%d, %d" % (sT, sbase, const))
        g("buffer_load_dword v%d, s[8:11], s%d offen lds" % (vL128, sT))
        return g

    def groupsA_lds(self, phase, p, h):
        if phase == 1:
            srcs = [(sA1hw, 0), (sA1mw, 0), (sA1mw, 16384)]
            xb, st, sst = XB[2 * p], ST[2 * p], sSt1
        else:
            srcs = [(sA3w, i * 16384) for i in range(4)]
            xb, st, sst = XB[2 * p + 1], ST[2 * p + 1], sSt3
        groups, ctok = [], []
        def stats_groups():
            tk = None
            for i in range(2):
                g = Stream()
                g("s_lshl_b32 s%d, s%d, 11" % (sT2, sW))
                g("s_add_u32 m0, s%d, %d" % (sT2, STP + h * 8192))
                g("s_add_u32 s%d, s%d, %d" % (sT, sst, st + h * 131072))
                tk = g.vm("buffer_load_dwordx4 v%d, s[8:11], s%d offen offset:%d sc1 lds" % (vL16, sT, i * 1024))
                if not (phase == 1 and p == 0):
                    g[-1].meta["dep"] = (phase, p, h)
                groups.append(g)
            return tk
        stok = None
        for c in range(4):
            tk = None
            for sub, (sr, cc) in enumerate(srcs):
                g = Stream()
                g("s_add_u32 m0, s%d, %d" % (sKw1, REG[h] + sub * 16384 + c * 4096))
                g("s_add_u32 s%d, s%d, %d" % (sT, sr, xb + h * MB + cc + c * 4096))
                tk = g.vm("buffer_load_dwordx4 v%d, s[8:11], s%d offen sc1 lds" % (vL16, sT))
                if not (phase == 1 and p == 0):
                    g[-1].meta["dep"] = (phase, p, h)
                groups.append(g)
            ctok.append(tk)
            if c == 0:
                stok = stats_groups()
        return groups, stok, ctok

    def frag_seq(self, phase):
        nks = 4 if phase == 2 else 11
        return [(ss, ks) for ss in (1, 0) for ks in range(nks)]

    def ringreg(self, n):
        return RING + 4 * (n % 12)

    def loadA24_one(self, g, phase, p, h, n, st=sT):
        ss, ks = self.frag_seq(phase)[n]
        if phase == 2:
            if ss == 0:
                g("s_add_u32 s%d, s%d, %d" % (st, sA2, OB[p] + h * MB))
            else:
                g("s_add_u32 s%d, s%d, %d" % (st, sA2b, OB[p] + h * MB))
            g("buffer_load_dwordx4 %s, v%d, s[8:11], s%d offen offset:%d sc1" % (V(self.ringreg(n), 4), vL16, st, ks * 1024)).meta["dep"] = (phase, p, h)
        else:
            g("s_add_u32 s%d, s%d, %d" % (st, sA4 + ss, HB[p] + h * 3 * MB + (ks // 4) * 4096))
            g("buffer_load_dwordx4 %s, v%d, s[8:11], s%d offen offset:%d sc1" % (V(self.ringreg(n), 4), vL16, st, (ks % 4) * 1024)).meta["dep"] = (phase, p, h)

    def groupsA24(self, phase, p, h):
        out = []
        for n in range(min(12, len(self.frag_seq(phase)))):
            g = Stream()
            self.loadA24_one(g, phase, p, h, n)
            out.append(g)
        g = Stream()
        if self.direct and phase == 2 and p == 0:
            g("v_and_b32 v%d, 0xf0, v%d" % (RES, vL16))
            g("v_lshlrev_b32 v%d, 7, v%d" % (RES, RES))
            g("v_lshrrev_b32 v%d, 8, v%d" % (RES + 1, vL16))
            g("v_lshl_add_u32 v%d, v%d, 4, v%d" % (RES, RES + 1, RES))
            g("s_add_u32 s%d, s%d, %d" % (sT, sOutO, h * 1024))
            g("buffer_load_dwordx4 %s, v%d, s[88:91], s%d offen" % (V(RES, 4), RES, sT))
        else:
            g("s_add_u32 s%d, s%d, %d" % (sT, sRes, XB[2 * p + (0 if phase == 2 else 1)] + h * MB))
            g("buffer_load_dwordx4 %s, v%d, s[8:11], s%d offen sc1" % (V(RES, 4), vL16, sT))
        out.insert(min(4, len(out)), g)
        return out

    def stats_reduce(self, s, h, stok):
        a = RING
        adr = vStatR
        if h == 1:
            adr = RING + 8
            s("v_add_u32 v%d, 8192, v%d" % (adr, vStatR))
        s.wait_vm(stok)
        for i in range(4):
            s("ds_read2_b32 %s, v%d offset0:%d offset1:%d" % (V(a + 2 * i, 2), adr, 64 * i, 64 * i + 32))
        self.pause(s, 10)
        for (x, y) in ((0, 1), (2, 3), (4, 5), (6, 7), (0, 2), (4, 6), (0, 4)):
            s("v_add_f32 v%d, v%d, v%d" % (a + x, a + x, a + y))
        s("v_mov_b32 v%d, v%d" % (a + 1, a))
        s("v_permlane32_swap_b32 v%d, v%d" % (a, a + 1))
        s("v_add_f32 v%d, v%d, v%d" % (a, a, a + 1))
        s("v_mov_b32 v%d, v%d" % (a + 1, a))
        s("v_permlane16_swap_b32 v%d, v%d" % (a, a + 1))
        s("v_mul_f32 v%d, %s, v%d" % (a, "0x%08x" % fbits(-1.0 / 512), a))
        s("v_mul_f32 v%d, v%d, v%d" % (a + 2, a, a))
        s("v_fma_f32 v%d, v%d, s%d, -v%d" % (a + 1, a + 1, sK, a + 2))
        s("v_max_f32 v%d, 0, v%d" % (a + 1, a + 1))
        s("v_add_f32 v%d, s%d, v%d" % (a + 1, sK + 1, a + 1))
        s("v_rsq_f32 v%d, v%d" % (a + 1, a + 1))
        s("v_cndmask_b32 v%d, v%d, v%d, s[%d:%d]" % (a, a, a + 1, sOdd, sOdd + 1))
        self.stat_tok = Tok("statw")
        s("ds_write_b32 v%d, v%d offset:%d" % (vStatW, a, h * 1024), tok=self.stat_tok)

    def epi_pref(self, phase, h):
        hoff = h * 1024
        pub = Stream()
        pub.wait_ds(self.stat_tok)
        pub("s_barrier")
        if phase == 3:
            return {58: list(pub), 60: ["ds_read_b128 %s, v%d offset:768" % (V(68, 4), vCs)],
                    61: ["ds_read_b128 %s, v%d offset:832" % (V(72, 4), vCs)],
                    62: ["ds_read_b128 %s, v%d offset:896" % (V(76, 4), vCs)],
                    63: ["ds_read_b64 %s, v%d offset:%d" % (V(80, 2), vStI, hoff)]}
        return {37: list(pub), 38: ["ds_read_b128 %s, v%d offset:%d" % (V(52, 4), vStV, hoff)],
                39: ["ds_read_b128 %s, v%d offset:%d" % (V(56, 4), vStV, hoff + 256)],
                40: ["ds_read_b128 %s, v%d offset:%d" % (V(60, 4), vStV, hoff + 64)],
                41: ["ds_read_b128 %s, v%d offset:%d" % (V(64, 4), vStV, hoff + 256 + 64)],
                43: ["ds_read_b128 %s, v%d offset:64" % (V(80, 4), vCs)],
                44: ["ds_read_b32 v84, v%d" % vCsV],
                45: ["ds_read_b64 %s, v%d offset:%d" % (V(68, 2), vStI, hoff), "ds_read_b64 %s, v%d offset:%d" % (V(70, 2), vStI, hoff + 128)],
                46: ["ds_read_b64 %s, v%d offset:%d" % (V(72, 2), vStI, hoff + 256)],
                47: ["ds_read_b128 %s, v%d offset:0" % (V(76, 4), vCs)]}

    def mf13(self, phase, h):
        base = vL16 if h == 0 else vLO
        nsub = 3 if phase == 1 else 4
        nfr = 16 * nsub
        def rd(n):
            ks, sub = divmod(n, nsub)
            out = []
            if sub == 0 and ks % 4 == 0:
                out.append(("chunk", ks // 4))
            out.append("ds_read_b128 %s, v%d offset:%d" % (V(FR + 4 * (n % 5), 4), base, sub * 16384 + ks * 1024))
            return out
        pre = [x for n in range(5) for x in rd(n)]
        pref = self.epi_pref(phase, h)
        steps = []
        mm = "v_mfma_f32_16x16x32_bf16"
        Q = [None, ACC, ACC + 4]
        K = [ACC + 8, ACC + 12, ACC + 16]
        Vv = [ACC + 20, ACC + 24, ACC + 28]
        for ks in range(16):
            c = (lambda r: "0" if ks == 0 else V(r, 4))
            for sub in range(nsub):
                n = nsub * ks + sub
                x = V(FR + 4 * (n % 5), 4)
                grp = []
                if phase == 1:
                    if sub > 0:
                        grp.append("%s %s, %s, %s, %s" % (mm, V(Q[sub], 4), Bx(3 * ks), x, c(Q[sub])))
                    grp.append("%s %s, %s, %s, %s" % (mm, V(K[sub], 4), Bx(3 * ks + 1), x, c(K[sub])))
                    grp.append("%s %s, %s, %s, %s" % (mm, V(Vv[sub], 4), x, Bx(3 * ks + 2), c(Vv[sub])))
                else:
                    for j in range(3):
                        r = ACC + 12 * sub + 4 * j
                        grp.append("%s %s, %s, %s, %s" % (mm, V(r, 4), Bx(3 * ks + j), x, c(r)))
                for i, m in enumerate(grp):
                    bop = [o.strip() for o in m.split(",") if o.strip().startswith("a[")][0]
                    st = [Ins(m, need=(bop, "Q" if phase == 1 else "G"))]
                    if i == len(grp) - 1 and n + 5 < nfr:
                        st += rd(n + 5)
                    if i == len(grp) - 1:
                        st += pref.get(n, [])
                    steps.append(st)
        return pre, steps

    def mf24(self, phase, p, h):
        seq = self.frag_seq(phase)
        steps = []
        for n, (ss, ks) in enumerate(seq):
            x = V(self.ringreg(n), 4)
            for jj in range(4):
                r = ACC + 16 * ss + 4 * jj
                st = [Ins("v_mfma_f32_16x16x32_bf16 %s, %s, %s, %s" % (V(r, 4), By(4 * ks + jj), x, "0" if ks == 0 else V(r, 4)),
                          need=(By(4 * ks + jj), "W" if phase == 2 else "D"))]
                if n + 12 < len(seq):
                    t = Stream()
                    self.loadA24_one(t, phase, p, h, n + 12, sT4)
                    if jj == 2:
                        st.append(t[0])
                    if jj == 3:
                        st.append(t[1])
                steps.append(st)
        return steps, 2 * len(seq)

    def red_writes(self, xs, h):
        t = Stream()
        so = SCR[h] - 65536
        for x in xs:
            t("v_xor_b32 v%d, %d, v%d" % (TMP + x - 1, x << 13, vRed))
        for x in xs:
            for jl in range(2):
                t("ds_write_b128 v%d, %s offset:%d" % (TMP + x - 1, V(ACC + 8 * x + 4 * jl, 4), so + x * 2048 + jl * 1024))
        return t

    def seg24_mf(self, s, phase, p, h, at=None):
        steps, half = self.mf24(phase, p, h)
        at = dict(at or {})
        w = self.red_writes((2, 3), h)
        at.setdefault(half + 9, []).insert(0, w)
        self.run_mf(s, steps, at=at)

    def epi1(self, s, p, h):
        Q = [None, ACC, ACC + 4]
        K = [ACC + 8, ACC + 12, ACC + 16]
        Vv = [ACC + 20, ACC + 24, ACC + 28]
        SP = [None, 52, 60]
        SC = [None, 56, 64]
        st = [68, 70, 72]
        csq, csk, csv, cq = 76, 80, 84, 86
        hoff = h * 1024
        NM = [52, 60, 52]
        RS = [56, 64, 56]
        def rdv(sub):
            s("ds_read_b128 %s, v%d offset:%d" % (V(NM[sub], 4), vStV, hoff + sub * 64))
            s("ds_read_b128 %s, v%d offset:%d" % (V(RS[sub], 4), vStV, hoff + 256 + sub * 64))
        bc0 = "op_sel_hi:[0,1,1]"
        for sub in (1, 2):
            for hh in (0, 2):
                s("v_pk_fma_f32 %s, %s, %s, %s %s" % (V(Q[sub] + hh, 2), V(st[sub], 2), V(csq + hh, 2), V(Q[sub] + hh, 2), bc0))
            s("v_mul_f32 v%d, s%d, v%d" % (cq, sK + 2, st[sub] + 1))
            for hh in (0, 2):
                s("v_pk_mul_f32 %s, %s, %s op_sel_hi:[1,0]" % (V(Q[sub] + hh, 2), V(Q[sub] + hh, 2), V(cq, 2)))
            s("v_cvt_pk_bf16_f32 v%d, v%d, v%d" % (Q[sub], Q[sub], Q[sub] + 1))
            s("v_cvt_pk_bf16_f32 v%d, v%d, v%d" % (Q[sub] + 1, Q[sub] + 2, Q[sub] + 3))
        for sub in range(3):
            for hh in (0, 2):
                s("v_pk_fma_f32 %s, %s, %s, %s %s" % (V(K[sub] + hh, 2), V(st[sub], 2), V(csk + hh, 2), V(K[sub] + hh, 2), bc0))
            for hh in (0, 2):
                s("v_pk_mul_f32 %s, %s, %s op_sel:[0,1] op_sel_hi:[1,1]" % (V(K[sub] + hh, 2), V(K[sub] + hh, 2), V(st[sub], 2)))
            s("v_cvt_pk_bf16_f32 v%d, v%d, v%d" % (K[sub], K[sub], K[sub] + 1))
            s("v_cvt_pk_bf16_f32 v%d, v%d, v%d" % (K[sub] + 1, K[sub] + 2, K[sub] + 3))
        bp1, bp, bc = 68, 72, 76
        s("v_add_u32 v%d, %d, v%d" % (TMP + 2, BIAS, vL16))
        s("ds_read_b128 %s, v%d" % (V(bp1, 4), vB1))
        s("ds_read_b128 %s, v%d offset:1024" % (V(bp, 4), TMP + 2))
        s("ds_read_b128 %s, v%d offset:0" % (V(bc, 4), TMP + 2))
        for sub in range(3):
            for hh in (0, 2):
                s("v_pk_fma_f32 %s, %s, %s, %s op_sel_hi:[1,0,1]" % (V(Vv[sub] + hh, 2), V(NM[sub] + hh, 2), V(csv, 2), V(Vv[sub] + hh, 2)))
            for hh in (0, 2):
                s("v_pk_mul_f32 %s, %s, %s" % (V(Vv[sub] + hh, 2), V(Vv[sub] + hh, 2), V(RS[sub] + hh, 2)))
            if sub == 0:
                rdv(2)
            s("v_cvt_pk_bf16_f32 v%d, v%d, v%d" % (Vv[sub], Vv[sub], Vv[sub] + 1))
            s("v_cvt_pk_bf16_f32 v%d, v%d, v%d" % (Vv[sub] + 1, Vv[sub] + 2, Vv[sub] + 3))
        mm = "v_mfma_f32_16x16x16_bf16"
        s("%s %s, %s, %s, %s" % (mm, V(SP[1], 4), V(K[0], 2), V(Q[1], 2), V(bp1, 4)))
        s("%s %s, %s, %s, %s" % (mm, V(SC[1], 4), V(K[1], 2), V(Q[1], 2), V(bc, 4)))
        s("%s %s, %s, %s, %s" % (mm, V(SP[2], 4), V(K[1], 2), V(Q[2], 2), V(bp, 4)))
        s("%s %s, %s, %s, %s" % (mm, V(SC[2], 4), V(K[2], 2), V(Q[2], 2), V(bc, 4)))
        m = {1: 80, 2: 84}
        l = {1: 82, 2: 86}
        for sub in (1, 2):
            a, b = SP[sub], SC[sub]
            s("v_max3_f32 v%d, v%d, v%d, v%d" % (m[sub], a, a + 1, a + 2))
            s("v_max3_f32 v%d, v%d, v%d, v%d" % (m[sub] + 1, a + 3, b, b + 1))
            s("v_max3_f32 v%d, v%d, v%d, v%d" % (m[sub], m[sub], b + 2, b + 3))
            s("v_max_f32 v%d, v%d, v%d" % (m[sub], m[sub], m[sub] + 1))
        for sw in ("v_permlane16_swap_b32", "v_permlane32_swap_b32"):
            for sub in (1, 2):
                s("v_mov_b32 v%d, v%d" % (m[sub] + 1, m[sub]))
            for sub in (1, 2):
                s("%s v%d, v%d" % (sw, m[sub], m[sub] + 1))
            for sub in (1, 2):
                s("v_max_f32 v%d, v%d, v%d" % (m[sub], m[sub], m[sub] + 1))
        for sub in (1, 2):
            for r in (SP[sub], SP[sub] + 2, SC[sub], SC[sub] + 2):
                s("v_pk_add_f32 %s, %s, %s op_sel_hi:[1,0] neg_lo:[0,1] neg_hi:[0,1]" % (V(r, 2), V(r, 2), V(m[sub], 2)))
        for sub in (1, 2):
            for r in range(4):
                s("v_exp_f32 v%d, v%d" % (SP[sub] + r, SP[sub] + r))
                s("v_exp_f32 v%d, v%d" % (SC[sub] + r, SC[sub] + r))
        s("v_mov_b32 v76, 0x3f803f80")
        s("v_mov_b32 v77, 0x3f803f80")
        for sub in (1, 2):
            for r in (SP[sub], SC[sub]):
                s("v_cvt_pk_bf16_f32 v%d, v%d, v%d" % (r, r, r + 1))
                s("v_cvt_pk_bf16_f32 v%d, v%d, v%d" % (r + 1, r + 2, r + 3))
        lq = {1: 80, 2: 84}
        for sub in (1, 2):
            s("%s %s, %s, %s, 0" % (mm, V(lq[sub], 4), V(76, 2), V(SP[sub], 2)))
        for sub in (1, 2):
            s("%s %s, %s, %s, 0" % (mm, V(Q[sub], 4), V(Vv[sub - 1], 2), V(SP[sub], 2)))
        for sub in (1, 2):
            s("%s %s, %s, %s, %s" % (mm, V(lq[sub], 4), V(76, 2), V(SC[sub], 2), V(lq[sub], 4)))
        for sub in (1, 2):
            s("%s %s, %s, %s, %s" % (mm, V(Q[sub], 4), V(Vv[sub], 2), V(SC[sub], 2), V(Q[sub], 4)))
        l = lq
        for sub in (1, 2):
            s("v_rcp_f32 v%d, v%d" % (l[sub], l[sub]))
        for sub in (1, 2):
            for hh in (0, 2):
                s("v_pk_mul_f32 %s, %s, %s op_sel_hi:[1,0]" % (V(Q[sub] + hh, 2), V(Q[sub] + hh, 2), V(l[sub], 2)))
        o = ACC
        s("v_cvt_pk_bf16_f32 v%d, v%d, v%d" % (o, o, o + 1))
        s("v_cvt_pk_bf16_f32 v%d, v%d, v%d" % (o + 1, o + 2, o + 3))
        s("v_cvt_pk_bf16_f32 v%d, v%d, v%d" % (o + 2, o + 4, o + 5))
        s("v_cvt_pk_bf16_f32 v%d, v%d, v%d" % (o + 3, o + 6, o + 7))
        s("v_permlane16_swap_b32 v%d, v%d" % (o, o + 2))
        s("v_permlane16_swap_b32 v%d, v%d" % (o + 1, o + 3))
        s("s_add_u32 s%d, s%d, %d" % (sE, sOst, OB[p] + h * MB))
        return s.vm("buffer_store_dwordx4 %s, v%d, s[8:11], s%d offen%s" % (V(o, 4), vOst, sE, self.stm(1)))

    def epi3(self, s, p, h):
        csG, csU, csM = 68, 72, 76
        stp = [80, 82]
        c1 = 84
        hoff = h * 1024
        bq = TMP
        for sub in range(4):
            G, U, M = ACC + 12 * sub, ACC + 12 * sub + 4, ACC + 12 * sub + 8
            st = stp[sub & 1]
            if sub < 3:
                s("ds_read_b64 %s, v%d offset:%d" % (V(stp[(sub + 1) & 1], 2), vStI, hoff + (sub + 1) * 128))
            for (r, cs) in ((M, csM), (G, csG), (U, csU)):
                for hh in (0, 2):
                    s("v_pk_fma_f32 %s, %s, %s, %s op_sel_hi:[0,1,1]" % (V(r + hh, 2), V(st, 2), V(cs + hh, 2), V(r + hh, 2)))
            s("v_mul_f32 v%d, s%d, v%d" % (c1, sK + 3, st + 1))
            s("v_permlane16_swap_b32 v%d, v%d" % (M, M + 2))
            s("v_permlane16_swap_b32 v%d, v%d" % (M + 1, M + 3))
            gates = (G, G + 2, M)
            ups = (U, U + 2, M + 2)
            for r in gates:
                s("v_pk_mul_f32 %s, %s, %s op_sel_hi:[1,0]" % (V(r, 2), V(r, 2), V(c1, 2)))
            for r in gates:
                s("v_exp_f32 v%d, v%d" % (r, r))
                s("v_exp_f32 v%d, v%d" % (r + 1, r + 1))
            for r in ups:
                s("v_pk_mul_f32 %s, %s, %s op_sel:[0,1] op_sel_hi:[1,1]" % (V(r, 2), V(r, 2), V(st, 2)))
            for r in gates:
                s("v_pk_add_f32 %s, %s, s[%d:%d]" % (V(r, 2), V(r, 2), sOnes, sOnes + 1))
            for r in gates:
                s("v_rcp_f32 v%d, v%d" % (r, r))
                s("v_rcp_f32 v%d, v%d" % (r + 1, r + 1))
            for g, u in zip(gates, ups):
                s("v_pk_mul_f32 %s, %s, %s" % (V(u, 2), V(u, 2), V(g, 2)))
            dst = ACC + 12 * (sub & ~1) + 2 * (sub & 1)
            s("v_cvt_pk_bf16_f32 v%d, v%d, v%d" % (dst, U, U + 1))
            s("v_cvt_pk_bf16_f32 v%d, v%d, v%d" % (dst + 1, U + 2, U + 3))
            s("v_cvt_pk_bf16_f32 v%d, v%d, v%d" % (bq + sub, M + 2, M + 3))
        s("s_add_u32 s%d, s%d, %d" % (sE, sHst, HB[p] + h * 3 * MB))
        for pr in range(2):
            d = ACC + 24 * pr
            s("v_permlane16_swap_b32 v%d, v%d" % (d, d + 2))
            s("v_permlane16_swap_b32 v%d, v%d" % (d + 1, d + 3))
            if pr == 1:
                s("s_add_u32 s%d, s%d, %d" % (sE2, sE, 2 * 48 * KB))
            s.vm("buffer_store_dwordx4 %s, v%d, s[8:11], s%d offen%s" % (V(d, 4), vH1, sE if pr == 0 else sE2, self.stm(3)))
        s("v_permlane16_swap_b32 v%d, v%d" % (bq, bq + 1))
        s("v_permlane16_swap_b32 v%d, v%d" % (bq + 2, bq + 3))
        s("v_permlane32_swap_b32 v%d, v%d" % (bq, bq + 2))
        s("v_permlane32_swap_b32 v%d, v%d" % (bq + 1, bq + 3))
        return s.vm("buffer_store_dwordx4 %s, v%d, s[8:11], s%d offen%s" % (V(bq, 4), vH2, sE, self.stm(3)))

    def epi24(self, s, phase, p, h, sig=None, mid=None):
        so = SCR[h] - 65536
        a = ACC
        s.extend(self.red_writes((1,), h))
        if sig is not None:
            s.wait_vm(sig[3])
        s.wait_ds()
        s("s_barrier")
        if sig is not None:
            s("s_add_u32 s%d, s%d, %d" % (sT3, sF3 if sig[0] == 3 else sF1, flag_off(sig[1], sig[0] - 1, sig[2])))
            s("buffer_store_dword v%d, v%d, s[8:11], s%d offen sc1" % (vOne, vFlag, sT3))
        for x in (1, 2, 3):
            for jl in range(2):
                s("ds_read_b128 %s, v%d offset:%d" % (V(a + 8 * x + 4 * jl, 4), vRed, so + x * 2048 + jl * 1024))
        r = 52
        for i in range(4):
            s("v_lshlrev_b32 v%d, 16, v%d" % (r + 2 * i, RES + i))
            s("v_and_b32 v%d, 0xffff0000, v%d" % (r + 2 * i + 1, RES + i))
        for i in range(4):
            s("v_pk_add_f32 %s, %s, %s" % (V(a + 2 * i, 2), V(a + 2 * i, 2), V(r + 2 * i, 2)))
        for x in (1, 2, 3):
            for i in range(4):
                s("v_pk_add_f32 %s, %s, %s" % (V(a + 2 * i, 2), V(a + 2 * i, 2), V(a + 8 * x + 2 * i, 2)))
        o = 60
        for i in range(4):
            s("v_cvt_pk_bf16_f32 v%d, v%d, v%d" % (o + i, a + 2 * i, a + 2 * i + 1))
        final = (phase == 4 and p == 1)
        if final:
            s("s_add_u32 s%d, s%d, %d" % (sE, sOutO, h * 1024))
            s("v_and_b32 v52, 0xf0, v%d" % vL16)
            s("v_lshlrev_b32 v52, 7, v52")
            s("v_lshrrev_b32 v53, 8, v%d" % vL16)
            s("v_lshl_add_u32 v52, v53, 4, v52")
            tk = s.vm("buffer_store_dwordx4 %s, v52, s[12:15], s%d offen%s" % (V(o, 4), sE, {"0": "", "1": " sc1", "2": " nt"}[self.opts.get("outsc", "1")]))
            if mid is not None:
                s.extend(mid)
            return tk
        xi = 2 * p + (1 if phase == 2 else 2)
        s("s_add_u32 s%d, s%d, %d" % (sE, sRes, XB[xi] + h * MB))
        s.vm("buffer_store_dwordx4 %s, v%d, s[8:11], s%d offen%s" % (V(o, 4), vL16, sE, self.stm(phase)))
        if mid is not None:
            s.extend(mid)
        u = 52
        s("v_pk_add_f32 %s, %s, %s" % (V(u, 2), V(a, 2), V(a + 2, 2)))
        s("v_pk_add_f32 %s, %s, %s" % (V(u + 2, 2), V(a + 4, 2), V(a + 6, 2)))
        s("v_pk_mul_f32 %s, %s, %s" % (V(u + 4, 2), V(a, 2), V(a, 2)))
        s("v_pk_add_f32 %s, %s, %s" % (V(u, 2), V(u, 2), V(u + 2, 2)))
        for i in (1, 2, 3):
            s("v_pk_fma_f32 %s, %s, %s, %s" % (V(u + 4, 2), V(a + 2 * i, 2), V(a + 2 * i, 2), V(u + 4, 2)))
        s("v_add_f32 v%d, v%d, v%d" % (u, u, u + 1))
        s("v_add_f32 v%d, v%d, v%d" % (u + 1, u + 4, u + 5))
        s("v_permlane16_swap_b32 v%d, v%d" % (u, u + 1))
        s("v_add_f32 v%d, v%d, v%d" % (u, u, u + 1))
        s("v_mov_b32 v%d, v%d" % (u + 1, u))
        s("v_permlane32_swap_b32 v%d, v%d" % (u, u + 1))
        s("v_add_f32 v%d, v%d, v%d" % (u, u, u + 1))
        s("s_add_u32 s%d, s%d, %d" % (sE, sStO, ST[xi] + h * 131072))
        s("v_lshrrev_b32 v%d, 2, v%d" % (u + 2, vL16))
        s("s_mov_b32 exec_hi, 0")
        tok = s.vm("buffer_store_dword v%d, v%d, s[8:11], s%d offen%s" % (u, u + 2, sE, self.stm(phase)))
        s("s_mov_b32 exec_hi, -1")
        return tok

    def codepf(self, sw=16):
        if self.opts.get("nocpf") == "1":
            return ""
        n = int(self.opts.get("cpf", 2))
        t = ["s_getpc_b64 s[56:57]", "M_pc:", "s_lshl_b32 s58, s%d, 13" % sw, "v_lshlrev_b32 v128, 7, v1", "v_add_u32 v128, s58, v128"]
        for i in range(n):
            t.append("v_min_u32 v129, M_last-M_pc, v128")
            t.append("global_load_dword v%d, v129, s[56:57]" % (134 + i))
            if i < n - 1:
                t.append("v_add_u32 v128, 0x8000, v128")
        return "\n".join(t)

    def pro_ids(self, s, t):
        s("""
        v_lshrrev_b32 v20, 6, v0
        v_and_b32 v%d, 63, v0
        v_readfirstlane_b32 s%d, v20
        v_lshlrev_b32 v%d, 4, v%d
        s_and_b32 s32, s2, 7
        s_lshr_b32 s33, s2, 3
        s_lshr_b32 s34, s32, 1
        s_and_b32 s35, s32, 1
        """ % (vLane, sW, vL16, vLane))
        if self.local:
            s("""
            s_lshl_b32 s{rb}, s32, 2
            s_lshr_b32 s{t}, s33, 3
            s_add_u32 s{rb}, s{rb}, s{t}
            s_and_b32 s{cg}, s33, 7
            s_lshl_b32 s{rb3}, s32, 1
            s_lshr_b32 s{t}, s33, 4
            s_add_u32 s{rb3}, s{rb3}, s{t}
            s_and_b32 s{cg3}, s33, 15
            """.format(rb=sRB, cg=sCG, rb3=sRB3, cg3=sCG3, t=t))
        else:
            s("""
            s_lshl_b32 s{rb}, s34, 3
            s_lshr_b32 s{t}, s33, 2
            s_add_u32 s{rb}, s{rb}, s{t}
            s_lshl_b32 s{cg}, s35, 2
            s_and_b32 s{t}, s33, 3
            s_add_u32 s{cg}, s{cg}, s{t}
            s_lshl_b32 s{rb3}, s34, 2
            s_lshr_b32 s{t}, s33, 3
            s_add_u32 s{rb3}, s{rb3}, s{t}
            s_lshl_b32 s{cg3}, s35, 3
            s_and_b32 s{t}, s33, 7
            s_add_u32 s{cg3}, s{cg3}, s{t}
            """.format(rb=sRB, cg=sCG, rb3=sRB3, cg3=sCG3, t=t))

    def prologue(self, s):
        single = self.opts.get("single", "1") == "1"
        s("""
        s_load_dwordx2 s[4:5], s[0:1], 72
        s_load_dwordx2 s[6:7], s[0:1], 56
        """)
        if not single:
            s("s_cmp_ge_u32 s2, 256")
            s("s_cbranch_scc1 M_end")
        self.pro_ids(s, 36)
        if not single:
            s(self.codepf())
        s("""
        s_waitcnt lgkmcnt(0)
        s_mov_b32 s8, s4
        s_and_b32 s9, s5, 0xffff
        s_mov_b32 s10, 0x10000000
        s_mov_b32 s11, 0x20000
        s_mov_b32 s12, s6
        s_and_b32 s13, s7, 0xffff
        s_mov_b32 s14, 0x200000
        s_mov_b32 s15, 0x20000
        """)
        self.pro_rest(s)

    def pro_rest(self, s):
        s("""
        s_lshl_b32 s36, s{cg}, 2
        s_add_u32 s36, s36, s{w}
        s_mul_i32 s{bq}, s36, {k48}
        s_add_u32 s{bq}, s{bq}, {PQ}
        s_lshl_b32 s{bw}, s36, 14
        s_add_u32 s{bw}, s{bw}, {PW}
        s_mul_i32 s{bd}, s36, {k44}
        s_add_u32 s{bd}, s{bd}, {PD}
        s_lshl_b32 s37, s{cg3}, 2
        s_add_u32 s37, s37, s{w}
        s_mul_i32 s{bg}, s37, {k48}
        s_add_u32 s{bg}, s{bg}, {PG}
        s_lshl_b32 s{kw}, s{w}, 12
        s_lshl_b32 s{a1m}, s{rb}, 15
        s_lshl_b32 s{a3}, s{rb3}, 16
        s_sub_u32 s{a1h}, s{a1m}, 16384
        s_max_i32 s{a1h}, s{a1h}, 0
        """.format(cg=sCG, w=sW, bq=sBQ, bw=sBW, bd=sBD, bg=sBG, cg3=sCG3, kw=sKw, a1m=sA1m, a3=sA3, a1h=sA1h, rb=sRB, rb3=sRB3,
                   k48=48 * KB, k44=44 * KB, PQ=PQ, PW=PW, PD=PD, PG=PG))
        s("""
        s_lshl_b32 s38, s{rb}, 1
        s_add_u32 s38, s38, s{w}
        s_sub_u32 s38, s38, 1
        s_max_i32 s38, s38, 0
        s_lshl_b32 s{st1}, s38, 11
        s_lshl_b32 s38, s{rb3}, 2
        s_add_u32 s38, s38, s{w}
        s_lshl_b32 s{st3}, s38, 11
        """.format(rb=sRB, w=sW, st1=sSt1, rb3=sRB3, st3=sSt3))
        s("""
        s_lshr_b32 s38, s{w}, 1
        s_and_b32 s39, s{w}, 1
        s_lshl_b32 s40, s{cg}, 1
        s_add_u32 s59, s40, s38
        s_lshl_b32 s59, s59, 10
        s_lshl_b32 s60, s39, 9
        s_add_u32 s59, s59, s60
        s_add_u32 s{ost}, s59, s{a1m}
        """.format(w=sW, cg=sCG, ost=sOst, a1m=sA1m))
        s("""
        s_lshl_b32 s59, s38, 14
        s_add_u32 s59, s59, s{a1m}
        s_add_u32 s{a2}, s59, s{kw}
        s_add_u32 s60, s40, s39
        s_lshl_b32 s61, s60, 10
        s_add_u32 s{res}, s59, s61
        s_lshr_b32 s{sto}, s59, 3
        s_lshl_b32 s61, s60, 7
        s_add_u32 s{sto}, s{sto}, s61
        """.format(a1m=sA1m, a2=sA2, kw=sKw, res=sRes, sto=sStO))
        s("""
        s_lshl_b32 s59, s{rb}, 1
        s_add_u32 s59, s59, s38
        s_lshl_b32 s{out}, s59, 15
        s_lshl_b32 s61, s60, 6
        s_add_u32 s{out}, s{out}, s61
        """.format(rb=sRB, out=sOutO))
        s("""
        s_mul_i32 s{hst}, s{rb3}, {k192}
        s_mul_i32 s61, s{cg3}, 12
        s_mul_i32 s62, s{w}, 3
        s_add_u32 s61, s61, s62
        s_lshl_b32 s61, s61, 8
        s_add_u32 s{hst}, s{hst}, s61
        s_mul_i32 s62, s{w}, {k11}
        s_mul_i32 s{a4}, s59, {k48}
        s_add_u32 s{a4}, s{a4}, s62
        s_xor_b32 s59, s59, 1
        s_mul_i32 s{a4b}, s59, {k48}
        s_add_u32 s{a4b}, s{a4b}, s62
        """.format(hst=sHst, rb3=sRB3, cg3=sCG3, w=sW, a4=sA4, a4b=sA4 + 1, k192=192 * KB, k11=11 * KB, k48=48 * KB))
        return

    def prologue2(self, s):
        s("""
        s_lshl_b32 s59, s{cg}, 2
        s_lshl_b32 s60, s{rb}, 8
        s_add_u32 s{f1}, s60, s59
        s_lshl_b32 s59, s{cg3}, 2
        s_lshl_b32 s61, s{rb3}, 8
        s_add_u32 s{f3}, s61, s59
        s_mov_b32 s{p2}, s60
        s_lshl_b32 s{p3}, s{rb3}, 9
        s_lshr_b32 s61, s{rb}, 1
        s_lshl_b32 s{p4}, s61, 8
        s_cmp_eq_u32 s{rb}, 0
        s_cselect_b32 s61, 0, 256
        s_sub_u32 s{p1}, s60, s61
        v_lshrrev_b32 v20, 3, v{lane}
        v_mul_lo_u32 v20, v20, s61
        v_and_b32 v21, 7, v{lane}
        v_lshl_add_u32 v{ph}, v21, 2, v20
        """.format(lane=vLane, ph=vPollH, cg=sCG, w=sW, rb=sRB, f1=sF1, cg3=sCG3, rb3=sRB3, f3=sF3, p2=sP2, p3=sP3, p4=sP4, p1=sP1a))
        s("""
        s_cmp_eq_u32 s{w}, 1
        s_cselect_b32 s{m2}, 0xff, 0
        s_mov_b32 s{m2h}, 0
        s_cselect_b32 s{m4}, 0x7fff, 0
        s_mov_b32 s{m4h}, 0
        s_cselect_b32 s{m16}, 0xffff, 0
        s_mov_b32 s{m16h}, 0
        s_mov_b32 s{odd}, 0xffff0000
        s_mov_b32 s{oddh}, 0xffff0000
        s_mov_b32 s{one}, 1.0
        s_mov_b32 s{oneh}, 1.0
        s_mov_b32 s{k0}, {c0}
        s_mov_b32 s{k1}, {c1}
        s_mov_b32 s{k2}, {c2}
        s_mov_b32 s{k3}, {c3}
        """.format(w=sW, m2=sM2, m2h=sM2 + 1, m4=sM4, m4h=sM4 + 1, m16=sM16, m16h=sM16 + 1, odd=sOdd, oddh=sOdd + 1, one=sOnes, oneh=sOnes + 1,
                   k0=sK, k1=sK + 1, k2=sK + 2, k3=sK + 3,
                   c0="0x%08x" % fbits(1.0 / 512), c1="0x%08x" % fbits(1e-5), c2="0x%08x" % fbits(0.25 * LOG2E), c3="0x%08x" % fbits(-LOG2E)))
        s("""
        v_and_b32 v20, 15, v{lane}
        v_lshrrev_b32 v21, 4, v{lane}
        v_add_u32 v{lo}, 65536, v{l16}
        v_lshlrev_b32 v22, 4, v20
        v_and_b32 v23, 1, v21
        v_lshrrev_b32 v24, 1, v21
        v_lshl_add_u32 v25, v24, 8, v22
        v_lshl_add_u32 v{ost}, v23, 14, v25
        v_mul_u32_u24 v26, {k48}, v23
        v_add_u32 v{h1}, v26, v25
        v_mul_u32_u24 v26, {k48}, v21
        v_add_u32 v26, v26, v22
        v_add_u32 v{h2}, 512, v26
        s_lshl_b32 s59, s{w}, 13
        s_add_u32 s59, s59, 65536
        v_add_u32 v{red}, s59, v{l16}
        v_lshrrev_b32 v26, 3, v{lane}
        v_and_b32 v27, 7, v{lane}
        v_lshlrev_b32 v27, 2, v27
        v_lshl_add_u32 v{pa}, v26, 8, v27
        v_lshlrev_b32 v{pb}, 2, v{lane}
        s_cmp_eq_u32 s{w}, 1
        s_cselect_b32 s59, 16, 0
        v_cmp_gt_u32 vcc, s59, v{lane}
        v_mov_b32 v27, 0x7ffffff0
        v_cndmask_b32 v{pa}, v27, v{pa}, vcc
        v_cndmask_b32 v{pb}, v27, v{pb}, vcc
        v_cndmask_b32 v{ph}, v27, v{ph}, vcc
        v_lshlrev_b32 v{out}, 7, v{lane}
        v_cmp_gt_u32 vcc, 16, v{lane}
        v_cndmask_b32 v{out}, v27, v{out}, vcc
        v_mov_b32 v{one}, 1
        """.format(lane=vLane, lo=vLO, l16=vL16, ost=vOst, h1=vH1, h2=vH2, red=vRed, pa=vPollA, pb=vPollB, ph=vPollH, out=vOut, one=vOne, w=sW, k48=48 * KB))
        s("""
        s_lshl_b32 s59, s{w}, 11
        s_add_u32 s59, s59, {stp}
        v_lshlrev_b32 v26, 10, v24
        v_lshl_add_u32 v26, v23, 6, v26
        v_lshl_add_u32 v26, v20, 2, v26
        v_add_u32 v{sr}, s59, v26
        """.format(w=sW, stp=STP, sr=vStatR))
        s("""
        s_lshl_b32 s59, s{w}, 7
        s_lshl_b32 s60, s{w}, 6
        v_lshlrev_b32 v26, 3, v20
        v_lshl_add_u32 v26, v23, 2, v26
        v_add_u32 v26, s59, v26
        v_lshlrev_b32 v27, 2, v20
        v_lshl_add_u32 v27, v23, 8, v27
        v_add_u32 v27, s60, v27
        v_add_u32 v27, 512, v27
        v_cmp_gt_u32 vcc, 2, v21
        v_cndmask_b32 v26, v27, v26, vcc
        v_add_u32 v{sw}, {stf}, v26
        v_lshlrev_b32 v26, 3, v20
        v_add_u32 v{si}, {stf}, v26
        v_lshlrev_b32 v26, 4, v21
        v_add_u32 v{sv}, {stfn}, v26
        s_mul_i32 s59, s{w}, 192
        s_add_u32 s59, s59, {csl}
        v_add_u32 v{cs}, s59, v26
        v_lshlrev_b32 v27, 2, v20
        v_add_u32 v27, s59, v27
        v_add_u32 v{csv}, 128, v27
        """.format(w=sW, sw=vStatW, stf=STF, si=vStI, sv=vStV, stfn=STF + 512, csl=CSL, cs=vCs, csv=vCsV))
        shq, shg = (3, 4) if self.local else (2, 3)
        nq, ng = 4 * (32 >> shq), 4 * (32 >> shg)
        self.pf_n = {"Q": -(-192 * KB // nq // 2048), "W": -(-64 * KB // nq // 2048), "D": -(-176 * KB // nq // 2048), "G": -(-192 * KB // ng // 2048)}
        assert not (self.direct and self.opts.get("pf") == "1")
        (s if self.opts.get("pf") == "1" else (lambda t: None))("""
        s_lshr_b32 s59, s2, 3
        s_lshr_b32 s60, s59, {shq}
        s_lshl_b32 s60, s60, 2
        s_add_u32 s60, s60, s{w}
        s_mul_i32 s61, s{cg}, {k192}
        s_mul_i32 s62, s60, {q6}
        s_add_u32 s{pq}, s61, s62
        s_add_u32 s{pq}, s{pq}, {PQ}
        s_lshl_b32 s61, s{cg}, 16
        s_mul_i32 s62, s60, {w2}
        s_add_u32 s{pw}, s61, s62
        s_add_u32 s{pw}, s{pw}, {PW}
        s_mul_i32 s61, s{cg}, {k176}
        s_mul_i32 s62, s60, {d55}
        s_add_u32 s{pd}, s61, s62
        s_add_u32 s{pd}, s{pd}, {PD}
        s_lshr_b32 s60, s59, {shg}
        s_lshl_b32 s60, s60, 2
        s_add_u32 s60, s60, s{w}
        s_mul_i32 s61, s{cg3}, {k192}
        s_mul_i32 s62, s60, {g12}
        s_add_u32 s{pg}, s61, s62
        s_add_u32 s{pg}, s{pg}, {PG}
        """.format(w=sW, cg=sCG, cg3=sCG3, pq=sPfQ, pw=sPfW, pd=sPfD, pg=sPfG, k192=192 * KB, k176=176 * KB, q6=192 * KB // nq, w2=64 * KB // nq,
                   d55=176 * KB // nq, g12=192 * KB // ng, PQ=PQ, PW=PW, PD=PD, PG=PG, shq=shq, shg=shg))
        s("""
        v_lshlrev_b32 v26, 2, v21
        v_sub_u32 v26, v20, v26
        v_mov_b32 v27, 0xf149f2ca
        v_mov_b32 v28, 0
        """)
        for r in range(4):
            s("v_subrev_u32 v29, %d, v26" % r)
            s("v_cmp_gt_u32 vcc, 8, v29")
            s("v_cndmask_b32 v%d, v27, v28, vcc" % (32 + r))
            s("v_cmp_gt_i32 vcc, -8, v29")
            s("v_cndmask_b32 v%d, v27, v28, vcc" % (36 + r))
            s("v_mov_b32 v%d, v27" % (40 + r))
        s("v_add_u32 v30, %d, v%d" % (BIAS, vL16))
        s.wait_ds()
        s("ds_write_b128 v30, v[32:35]")
        s("ds_write_b128 v30, v[36:39] offset:1024")
        s("ds_write_b128 v30, v[40:43] offset:2048")
        s("""
        s_cmp_eq_u32 s{rb}, 0
        s_cselect_b32 s59, 2, 1
        s_lshl_b32 s59, s59, 10
        v_add_u32 v{b1}, s59, v30
        """.format(rb=sRB, b1=vB1))

    def colsums(self, s, ks, r0=44, first=True):
        single = self.opts.get("single", "1") == "1"
        ks = list(ks)
        R = lambda k: r0 + 4 * (k - ks[0])
        for k in ks:
            r = R(k)
            s("v_add_f32 v%d, v%d, v%d" % (r, r, r + 1))
            s("v_add_f32 v%d, v%d, v%d" % (r + 2, r + 2, r + 3))
            s("v_add_f32 v%d, v%d, v%d" % (r, r, r + 2))
            if not single:
                s("v_add_f32_dpp v%d, v%d, v%d quad_perm:[1,0,3,2] row_mask:0xf bank_mask:0xf" % (r, r, r))
                s("v_add_f32_dpp v%d, v%d, v%d quad_perm:[2,3,0,1] row_mask:0xf bank_mask:0xf" % (r, r, r))
        if single:
            for sw in ("v_permlane16_swap_b32", "v_permlane32_swap_b32"):
                for k in ks:
                    s("v_mov_b32 v%d, v%d" % (R(k) + 1, R(k)))
                for k in ks:
                    s("%s v%d, v%d" % (sw, R(k), R(k) + 1))
                for k in ks:
                    s("v_add_f32 v%d, v%d, v%d" % (R(k), R(k), R(k) + 1))
        a = R(ks[-1]) + 2
        if single:
            s("v_and_b32 v%d, 0xf0, v%d" % (a, vL16))
            s("v_lshrrev_b32 v%d, 2, v%d" % (a, a))
        else:
            s("v_lshrrev_b32 v%d, 6, v%d" % (a, vL16))
            s("v_lshlrev_b32 v%d, 2, v%d" % (a, a))
        s("s_mul_i32 s59, s%d, 192" % sW)
        s("s_add_u32 s59, s59, %d" % CSL)
        s("v_add_u32 v%d, s59, v%d" % (a, a))
        for k in ks:
            s("ds_write_b32 v%d, v%d offset:%d" % (a, R(k), (k // 3) * 768 + (k % 3) * 64))
        if first:
            if not single:
                self.flag_vec(s)
            s("v_mov_b32 v%d, v%d" % (vFlag, self.vflag_tmp))

    vflag_tmp = 87

    def flag_vec(self, s):
        s("s_cmp_eq_u32 s%d, 0" % sW)
        s("s_cselect_b32 s59, 1, 0")
        s("v_cmp_gt_u32 vcc, s59, v%d" % vLane)
        s("v_mov_b32 v27, 0x7ffffff0")
        s("v_cndmask_b32 v%d, v27, 0, vcc" % self.vflag_tmp)
        s("v_mov_b32 v60, v%d" % self.vflag_tmp)

    def global_issue(self, s):
        s("""
        s_mul_i32 s58, s{cg}, 12
        v_add_u32 v89, s58, v{lane}
        v_subrev_u32 v90, 12, v{lane}
        v_mul_u32_u24 v91, 21846, v90
        v_lshrrev_b32 v91, 16, v91
        v_mul_u32_u24 v92, 3, v91
        v_sub_u32 v92, v90, v92
        s_lshl_b32 s58, s{rb}, 1
        v_add_u32 v92, s58, v92
        v_subrev_u32 v92, 1, v92
        v_max_i32 v92, 0, v92
        v_lshl_add_u32 v92, v91, 6, v92
        v_add_u32 v92, 96, v92
        v_cmp_gt_u32 vcc, 12, v{lane}
        v_cndmask_b32 v89, v92, v89, vcc
        v_lshrrev_b32 v90, 3, v89
        v_and_b32 v89, 7, v89
        v_lshlrev_b32 v89, 2, v89
        v_lshl_add_u32 v89, v90, 7, v89
        s_cmp_eq_u32 s{w}, 1
        s_cselect_b32 s58, 18, 0
        v_cmp_gt_u32 vcc, s58, v{lane}
        v_mov_b32 v90, 0x7ffffff0
        v_cndmask_b32 v89, v90, v89, vcc
        s_cselect_b32 s{m}, 0x3ffff, 0
        s_mov_b32 s{mh}, 0
        s_mov_b32 s{p}, {pfl}
        buffer_load_dword v92, v89, s[8:11], s{p} offen sc1
        """.format(lane=vLane, w=sW, p=sPoll, pfl=PFL, cg=sCG, rb=sRB, m=4, mh=5))

    def global_check(self, s):
        n = self.npoll
        self.npoll += 1
        s("v_cmp_ne_u32 vcc, s%d, v92" % sTag)
        s("s_and_b64 vcc, vcc, s[4:5]")
        s("s_cbranch_vccnz SLOW_%d" % n)
        s("BACK_%d:" % n)
        s("s_barrier")
        self.slow += ["SLOW_%d:" % n, "  s_mov_b32 s%d, 0" % sCnt, "SPIN_%d:" % n,
                      "  buffer_load_dword v92, v89, s[8:11], s%d offen sc1" % sPoll, "  s_waitcnt vmcnt(0)",
                      "  v_cmp_ne_u32 vcc, s%d, v92" % sTag, "  s_nop 1", "  s_and_b64 vcc, vcc, s[4:5]",
                      "  s_cbranch_vccz BACK_%d" % n, "  s_add_u32 s%d, s%d, 1" % (sCnt, sCnt), "  s_cmp_lt_u32 s%d, %d" % (sCnt, POLL_LIMIT),
                      "  s_cbranch_scc1 SPIN_%d" % n, "  s_branch BACK_%d" % n]

    hold = False

    def tick(self, s, bulk=True):
        if self.urgent:
            s.extend(self.urgent.popleft())
            return True
        if bulk and self.bulk and not self.hold:
            s.extend(self.bulk.popleft())
            return True
        return False

    def flush_urgent(self, s):
        while self.urgent:
            s.extend(self.urgent.popleft())

    def burst(self, s, n):
        for _ in range(n):
            self.tick(s)

    @staticmethod
    def cost(ins):
        c = ins.cls
        if c == "valu":
            return 8 if (ins.meta.get("trans") or ins.meta.get("perm")) else 4
        if c in ("vm_ld", "vm_dma", "vm_st"):
            return 8
        if c in ("ds_rd", "ds_wr"):
            return 4
        if c == "salu":
            return 2.5
        if c in ("pseudo", "label"):
            return 0 if ins.text in ("@comment", "@mark") or c == "label" else 2
        return 3

    def progressive(self, groups, per_ks):
        for f, g in enumerate(groups):
            g.min_step = max(per_ks * (f // 3 + 1) + 2, int(self.opts.get("pg0", 0)) + int(float(self.opts.get("pgr", 0)) * f))
        return groups

    def clear_min(self):
        for g in self.bulk:
            g.min_step = 0

    def set_hold(self, v):
        def f():
            self.hold = v
        return f

    def delay(self, s, clks):
        n = max(0, int(clks) // 64)
        if n:
            s("s_sleep %d" % n)

    def evs(self, key, default):
        v = self.opts.get(key)
        return tuple(int(x) for x in v.split(",")) if v else default

    def run_mf(self, s, steps, at=None, fill=None, rate=4, ctok=None, fill_from=2, urate=None):
        at = at or {}
        urate = urate or rate
        fill = deque(fill or [])
        ev, cur = deque(), deque()
        last_vm = -rate
        last_tr = -12
        isvm = lambda x: x.cls in ("vm_ld", "vm_dma", "vm_st")
        def mk(x):
            if isinstance(x, Ins):
                return [x]
            if isinstance(x, tuple):
                t = Stream()
                self.mark(t, "chA%d" % x[1])
                t.wait_vm(ctok[x[1]])
                t("s_barrier")
                self.mark(t, "chB%d" % x[1])
                return list(t)
            t = Stream()
            t(x)
            return list(t)
        def push_ev(e):
            if isinstance(e, Stream):
                ev.extend(e)
            else:
                c = Ins("@comment")
                c.meta["c"] = "release"
                c.meta["call"] = e
                ev.append(c)
        def emit_from(q, budget):
            while q:
                c = self.cost(q[0])
                if c > budget and not (budget >= 8 - 1e-9):
                    break
                x = q.popleft()
                s.append(x)
                if x.meta.get("call"):
                    x.meta["call"]()
                budget -= c
                while x.meta.get("glue") and q:
                    x = q.popleft()
                    s.append(x)
                    if x.meta.get("call"):
                        x.meta["call"]()
                if budget <= 0:
                    break
            return budget
        n = len(steps)
        for i, st in enumerate(steps):
            for e in at.get(i, []):
                push_ev(e)
            if i % int(self.opts.get("fstep", 16)) == 0:
                self.fs(s, "mf%d" % i)
            budget = 8.0
            main = [y for x in st for y in mk(x)]
            if any(x.text == "@waitds" and x.meta.get("tok") is not None for x in main):
                while fill:
                    x = fill.popleft()
                    s.append(x)
            for x in main:
                s.append(x)
            for x in main[1:]:
                budget -= self.cost(x)
                if isvm(x):
                    last_vm = i
            if any(x.cls == "ds_rd" for x in main[1:]):
                budget -= 2
            if budget <= 0:
                continue
            if ev:
                had_vm = any(isvm(x) for x in list(ev)[:1])
                budget = emit_from(ev, budget)
                if had_vm:
                    last_vm = i
                if budget <= 0:
                    continue
            if not cur and self.trickle and not self.urgent and i - last_tr >= int(self.opts.get("trate", 24)) and i - last_vm >= 1:
                cur.extend(self.trickle.popleft())
                last_tr = i
            if not cur:
                if self.urgent and i - last_vm >= urate - 1:
                    cur.extend(self.urgent.popleft())
                elif self.bulk and not self.hold and not self.urgent and i - last_vm >= rate - 1 and getattr(self.bulk[0], "min_step", 0) <= i:
                    cur.extend(self.bulk.popleft())
            while cur and budget > 0:
                x = cur[0]
                c = self.cost(x)
                if isvm(x):
                    if budget < 8 or i - last_vm < min(rate, urate):
                        break
                    last_vm = i
                elif c > budget:
                    break
                s.append(cur.popleft())
                budget -= c
            if fill and fill[0].meta.get("until") is not None:
                fill_from = max(fill_from, fill.popleft().meta["until"])
            if fill and fill[0].meta.get("pause"):
                fill_from = i + fill.popleft().meta["pause"]
            if i >= fill_from and fill and budget > 0:
                part = deque()
                while fill and not fill[0].meta.get("pause") and fill[0].meta.get("until") is None and len(part) < 4:
                    part.append(fill.popleft())
                budget = emit_from(part, budget)
                while part:
                    fill.appendleft(part.pop())
        for e in at.get(n, []):
            push_ev(e)
        for q in (cur, ev, fill):
            while q:
                x = q.popleft()
                s.append(x)
                if x.meta.get("call"):
                    x.meta["call"]()

    def weave(self, s, epi, every=13):
        k = 0
        for ins in epi:
            s.append(ins)
            if ins.cls in ("valu", "mfma"):
                k += 1
                if k >= every:
                    if self.tick(s):
                        k = 0

    def split_tile(self, A):
        groups = A[0]
        nsub = (len(groups) - 2) // 4
        nh = 2 * nsub + 2
        return groups[:nh], groups[nh:]

    def cs_loads_to(self, s, cg, base, r0, vaddr):
        s("s_lshl_b32 s58, s%d, 2" % cg)
        s("s_add_u32 s58, s58, s%d" % sW)
        s("s_mul_i32 s59, s58, 3072")
        s("s_add_u32 s59, s59, %d" % base)
        for k in range(3):
            for j in range(4):
                s("buffer_load_dword v%d, v%d, s[8:11], s59 offen offset:%d" % (r0 + 4 * k + j, vaddr, k * 1024 + j * 64))

    def global_check2(self):
        n = self.npoll
        self.npoll += 1
        t = Stream()
        r = RING + 12
        t("v_cmp_ne_u32 vcc, s%d, v%d" % (sTag, r))
        t("s_and_b64 vcc, vcc, s[4:5]")
        t("s_cbranch_vccnz SLOW_%d" % n).meta["glue"] = True
        t("BACK_%d:" % n).meta["glue"] = True
        t("s_barrier")
        self.slow += ["SLOW_%d:" % n, "  s_mov_b32 s%d, 0" % sCnt, "SPIN_%d:" % n,
                      "  buffer_load_dword v%d, v%d, s[8:11], s%d offen sc1" % (r, RING + 16, sPoll2), "  s_waitcnt vmcnt(0)",
                      "  v_cmp_ne_u32 vcc, s%d, v%d" % (sTag, r), "  s_nop 1", "  s_and_b64 vcc, vcc, s[4:5]",
                      "  s_cbranch_vccz BACK_%d" % n, "  s_add_u32 s%d, s%d, 1" % (sCnt, sCnt), "  s_cmp_lt_u32 s%d, %d" % (sCnt, POLL_LIMIT),
                      "  s_cbranch_scc1 SPIN_%d" % n, "  s_branch BACK_%d" % n]
        return t

    def seg13(self, s, phase, p, h, A, at, urate=None, raw_stats=False):
        groups, stok, ctok = A
        st = Stream()
        if raw_stats:
            return self.seg13_raw(s, phase, p, h, A, at)
        self.stats_reduce(st, h, stok)
        if getattr(self, "extra_fill", None) is not None:
            st.extend(self.extra_fill)
            self.extra_fill = None
        pre, steps = self.mf13(phase, h)
        if urate:
            s.extend(st)
            st = Stream()
        for x in pre:
            if isinstance(x, tuple):
                s.wait_vm(ctok[x[1]])
                s("s_barrier")
            else:
                s(x)
        self.run_mf(s, steps, at=at, fill=list(st), ctok=ctok, fill_from=int(self.opts.get("fillfrom", 6)), urate=(urate or int(self.opts.get("ur", 4))), rate=(urate or int(self.opts.get("br", 4))))
        s("s_barrier")

    def seg13_raw(self, s, phase, p, h, A, at):
        import direct
        groups, stok, ctok = A
        self.stat_tok = Tok("unused")
        saved = self.epi_pref
        pref = saved(phase, h)
        self.epi_pref = lambda *a: {}
        pre, steps = self.mf13(phase, h)
        self.epi_pref = saved
        chunk_step = {0: 0}
        for i, stp in enumerate(steps):
            for x in stp:
                if isinstance(x, tuple):
                    chunk_step[x[1]] = i
        SA, T0, ADR, ONE = RING, RING + 24, RING + 2, RING + 3
        st = Stream()
        st("s_lshl_b32 s58, s%d, 14" % sW)
        st("s_add_u32 s58, s58, %d" % REG[h])
        st("v_add_u32 v%d, s58, v%d" % (ADR, vL16))
        st("v_mov_b32 v%d, 0x3f803f80" % ONE)
        st("v_mov_b32 v%d, 0" % SA)
        st("v_mov_b32 v%d, 0" % (SA + 1))
        for c in range(4):
            u = Ins("@comment")
            u.meta["c"] = "until chunk %d" % c
            u.meta["until"] = chunk_step[c] + 2
            st.append(u)
            for j in range(4):
                st("ds_read_b128 %s, v%d offset:%d" % (V(T0 + 4 * j, 4), ADR, (4 * c + j) * 1024))
            self.pause(st, 6)
            for j in range(4):
                st.extend(direct.stats_dots(SA, T0 + 4 * j, ONE))
        for x in pre:
            if isinstance(x, tuple):
                s.wait_vm(ctok[x[1]])
                s("s_barrier")
            else:
                s(x)
        self.run_mf(s, steps, at=at, fill=list(st), ctok=ctok, fill_from=1)
        tok = direct.stats_final(self, s, h, SA)
        s.wait_ds(tok)
        s("s_barrier")
        for n in sorted(pref):
            if n != 37:
                for x in pref[n]:
                    s(x)

    def check_order(self, s):
        done = set()
        for ins in s:
            if ins.meta.get("checked"):
                done.add(ins.meta["checked"])
            k = ins.meta.get("dep")
            if k is not None:
                assert k in done, "load issued before its dependency was checked: %s %s" % (k, ins.text)

    def check_weights(self, s):
        if self.opts.get("nob"):
            return
        cur = {}
        for ins in s:
            if ins.meta.get("bname"):
                cur[ins.ops[0]] = ins.meta["bname"]
            if ins.meta.get("bname2"):
                cur[ins.meta["bname2"][1]] = ins.meta["bname2"][0]
            if ins.cls == "mfma" and ins.meta.get("need"):
                reg, name = ins.meta["need"]
                assert cur.get(reg) == name, "weights %s expected in %s, found %s" % (name, reg, cur.get(reg))

    def gen(self):
        s = Stream()
        self.urgent, self.bulk, self.trickle = deque(), deque(), deque()
        o = self.opts
        if self.direct:
            import direct
            if self.prof:
                s("s_memrealtime s[100:101]")
                s("s_memtime s[98:99]")
                s("s_waitcnt lgkmcnt(0)")
                s("s_mov_b32 s94, s100")
                s("s_mov_b32 s68, s98")
            direct.entry(self, s, self.codepf(sW))
            self.pro_rest(s)
        else:
            self.prologue(s)
        if self.prof and self.opts.get("single", "1") != "1":
            s("s_memrealtime s[100:101]")
            s("s_waitcnt lgkmcnt(0)")
            s("s_mov_b32 s94, s100")
        self.ts(s, "start")
        if self.prof == 5:
            for k in range(2, 24):
                s("s_mov_b32 s%d, 0" % (sTS + k))
        s("""
        s_lshl_b32 s{kw1}, s{w}, 10
        s_add_u32 s{a1hw}, s{a1h}, s{kw1}
        s_add_u32 s{a1mw}, s{a1m}, s{kw1}
        s_add_u32 s{a3w}, s{a3}, s{kw1}
        """.format(kw1=sKw1, w=sW, a1hw=sA1hw, a1h=sA1h, a1mw=sA1mw, a1m=sA1m, a3w=sA3w, a3=sA3))
        A = {}
        single = self.opts.get("single", "1") == "1"
        if single:
            ncpf = 0 if self.opts.get("nocpf") == "1" else int(self.opts.get("cpf", 2))
            def pack_flag(t, base):
                t("s_lshr_b32 s58, s2, 3")
                t("s_lshl_b32 s58, s58, 7")
                t("s_and_b32 s59, s2, 7")
                t("s_lshl_b32 s59, s59, 2")
                t("s_add_u32 s58, s58, s59")
                t("s_add_u32 s%d, s58, %d" % (sT3, base))
            self.prologue2(s)
            s("s_add_u32 s%d, s95, 1" % sTag)
            s("v_mov_b32 v%d, s%d" % (vOne, sTag))
            self.flag_vec(s)
            if self.direct:
                s.extend(self.second_batch)
                self.pack_flag = pack_flag
                s("v_mov_b32 v%d, v%d" % (vFlag, self.vflag_tmp))
                if self.local:
                    s("s_getreg_b32 s%d, hwreg(HW_REG_XCC_ID, 0, 4)" % sXcc)
                    s("s_add_u32 s58, s%d, s%d" % (sXcc, sTag))
                    s("s_add_u32 s58, s58, 1")
                    s("v_mov_b32 v60, s58")
                    s("s_and_b32 s58, s2, 7")
                    s("s_lshl_b32 s58, s58, 7")
                    s("s_lshr_b32 s59, s2, 3")
                    s("s_lshl_b32 s59, s59, 2")
                    s("s_add_u32 s58, s58, s59")
                    s("s_add_u32 s58, s58, %d" % PXC)
                    s("buffer_store_dword v60, v%d, s[8:11], s58 offen sc1" % vFlag)
            else:
                self.global_issue(s)
                self.global_check(s)
            self.ts(s, "gsync")
        else:
            s("s_mov_b32 s%d, 1" % sTag)
        if single and not self.direct:
            s("v_and_b32 v68, 15, v%d" % vLane)
            s("v_lshlrev_b32 v68, 2, v68")
            s("v_lshrrev_b32 v69, 4, v%d" % vLane)
            s("v_lshl_add_u32 v68, v69, 8, v68")
        def cs_loads(cg, base, r0):
            s("s_lshl_b32 s58, s%d, 2" % cg)
            s("s_add_u32 s58, s58, s%d" % sW)
            s("s_mul_i32 s59, s58, 3072")
            s("s_add_u32 s59, s59, %d" % base)
            for k in range(3):
                if single:
                    for j in range(4):
                        s("buffer_load_dword v%d, v68, s[8:11], s59 offen offset:%d" % (r0 + 4 * k + j, k * 1024 + j * 64))
                else:
                    s("buffer_load_dwordx4 %s, v%d, s[8:11], s59 offen offset:%d" % (V(r0 + 4 * k, 4), vL16, k * 1024))
        if self.direct:
            A[(1, 0, 0)] = self.A_first
            A[(1, 0, 1)] = direct.groupsA_raw(self, 1)
        else:
            A[(1, 0, 0)] = self.groupsA_lds(1, 0, 0)
            A[(1, 0, 1)] = self.groupsA_lds(1, 0, 1)
        if self.direct:
            pass
        elif single:
            head, tail = self.split_tile(A[(1, 0, 0)])
            for g in head:
                s.extend(g)
            cs_loads(sCG, CSQ, RING + 32)
            nq = int(self.opts.get("nq0", 24))
            for g in self.groupsB(Bx, sBQ, 0, nq):
                s.extend(g)
            self.pack_flag = pack_flag
            if self.opts.get("latefirst", "1") == "1":
                self.late_tok0 = pack.emit_late(s, sW, vL16, (3, 4, 58, 59), DV)
            self.first_tail = tail
            self.q_rest = self.groupsB(Bx, sBQ, nq, 48)
            self.colsums(s, range(3), r0=RING + 32)
        else:
            for g in A[(1, 0, 0)][0]:
                s.extend(g)
            cs_loads(sCG, CSQ, 44)
            cs_loads(sCG3, CSG, 56)
            for g in self.groupsB(Bx, sBQ, 0, 24):
                s.extend(g)
            self.prologue2(s)
            for g in self.groupsB(Bx, sBQ, 24, 30):
                s.extend(g)
            self.colsums(s, range(6))
            self.bulk.extend(self.groupsB(Bx, sBQ, 30, 48))
            self.burst(s, 18)
            self.urgent.extend(A[(1, 0, 1)][0])
        s("s_xor_b32 s%d, s%d, 16384" % (sA2b, sA2))
        self.cs_loads = cs_loads
        self.ts(s, "prolog")
        tok = {}
        U = lambda gs: (lambda: self.urgent.extend(gs))
        def until_issued(gs):
            while any(g is x for g in gs for x in self.urgent):
                s.extend(self.urgent.popleft())
        tails = {(1, 0, 0): [], (1, 0, 1): []}
        for p in range(2):
            last = (p == 1)
            at = {}
            self.urgent.extend(tails[(1, p, 0)])
            if p == 0 and self.direct:
                head1 = list(A[(1, 0, 1)][0])
            elif p == 0 and single:
                q = list(self.q_rest)
                self.urgent.extend(q[:6] + list(self.first_tail[:3]) + q[6:15] + list(self.first_tail[3:]) + q[15:])
                self.urgent.extend(A[(1, 0, 1)][0])
                head1 = list(A[(1, 0, 1)][0])
                if self.opts.get("latefirst", "1") == "1":
                    f2e = Stream()
                    f2e.wait_vm(self.late_tok0)
                    f2e("s_barrier")
                    self.pack_flag(f2e, PFL2)
                    f2e("buffer_store_dword v%d, v%d, s[8:11], s%d offen sc1" % (vOne, vFlag, sT3))
                    at[int(self.opts.get("f2e", 64))] = [f2e]
            elif p == 0:
                self.bulk.extend(self.groupsB(By, sBW, 0, 16))
                self.bulk.extend(self.groupsB(By, sBD, 16, 44))
                head1 = []
            else:
                self.bulk.extend(self.groupsB(By, sBW, 0, 16))
                a, b, c = self.evs("e1E", (48, 96, 127))
                at[a] = [self.ev_sig(4, p - 1, 1, tok[(4, p - 1, 1)])]
                at[b] = [self.ev_poll_issue(1, p, 1)]
                A[(1, p, 1)] = self.groupsA_lds(1, p, 1)
                head1, tails[(1, p, 1)] = self.split_tile(A[(1, p, 1)])
                at[c] = [self.ev_poll_check(1, p, 1), U(head1)]
            if p == 1:
                self.trickle.extend(self.pf(sPfG, 2048 * i) for i in range(self.pf_n["G"]))
            if p == 0 and self.direct:
                direct.first_segment(self, s)
                if self.opts.get("dbgq") == "1":
                    s("s_lshl_b32 s58, s2, 2")
                    s("s_add_u32 s58, s58, s%d" % sW)
                    s("s_mul_i32 s58, s58, %d" % (64 * KB))
                    s("s_add_u32 s58, s58, 0x4000000")
                    for f in range(48):
                        s("buffer_store_dwordx4 %s, v%d, s[8:11], s58 offen" % (Bx(f), vL16))
                        s("s_add_u32 s58, s58, 1024")
                    s("s_lshl_b32 s59, s%d, 14" % sW)
                    s("v_add_u32 v172, s59, v%d" % vL16)
                    for k in range(16):
                        s("ds_read_b128 v[176:179], v172 offset:%d" % (k * 1024))
                        s("buffer_store_dwordx4 v[176:179], v%d, s[8:11], s58 offen" % vL16)
                        s("s_add_u32 s58, s58, 1024")
                        s("s_nop 4")
                for g in head1[:6]:
                    s.extend(g)
                self.urgent.extend(head1[6:])
            else:
                self.seg13(s, 1, p, 0, A[(1, p, 0)], at, urate=(2 if (p == 0 and single) else None))
            self.ts(s, "mf1E.%d" % p)
            if p == 0 and single:
                if self.direct:
                    late_tok = direct.late(self, s, (3, 4, 58, 59))
                    self.stat_tok = Tok("unused")
                    pref = self.epi_pref(1, 0)
                    for n in sorted(pref):
                        if n != 37:
                            for x in pref[n]:
                                s(x)
                elif self.opts.get("latefirst", "1") == "1":
                    late_tok = self.late_tok0
                else:
                    late_tok = pack.emit_late(s, sW, vL16, (3, 4, 58, 59), DV)
                if self.local:
                    if not self.direct:
                        s("s_getreg_b32 s%d, hwreg(HW_REG_XCC_ID, 0, 4)" % sXcc)
                    pi, pc = self.purity()
                    s.extend(pi)
                    self.pur_check = pc
                self.ts(s, "packed")
            e = Stream(); tok[(1, p, 0)] = self.epi1(e, p, 0)
            self.weave(s, e, every=10)
            until_issued(head1)
            if p == 0 and self.local:
                s.extend(self.pur_check)
            self.ts(s, "s1E.%d" % p)
            self.urgent.extend(tails[(1, p, 1)])
            gA = self.groupsA24(2, p, 0)
            a, b, c = self.evs("e1O", (44, 96, 127))
            at = {a: [self.ev_sig(1, p, 0, tok[(1, p, 0)])], b: [self.ev_poll_issue(2, p, 0)],
                  c: [self.ev_poll_check(2, p, 0), U(gA)]}
            if p == 0 and single:
                f2 = Stream()
                f2.wait_vm(late_tok)
                f2("s_barrier")
                self.pack_flag(f2, PFL2)
                f2("buffer_store_dword v%d, v%d, s[8:11], s%d offen sc1" % (vOne, vFlag, sT3))
                g2 = Stream()
                a0, a1, a2 = RING + 16, RING + 17, RING + 18
                g2("v_lshrrev_b32 v%d, 4, v%d" % (a1, vL16))
                g2("s_lshl_b32 s58, s%d, 2" % sCG)
                g2("s_add_u32 s58, s58, %d" % (96 if self.direct else 136))
                g2("v_add_u32 v%d, s58, v%d" % (a0, a1))
                g2("s_lshl_b32 s58, s%d, 4" % sCG3)
                g2("s_sub_u32 s58, s58, 4")
                g2("v_add_u32 v%d, s58, v%d" % (a2, a1))
                g2("v_cmp_lt_u32 vcc, 3, v%d" % a1)
                g2("v_cndmask_b32 v%d, v%d, v%d, vcc" % (a0, a0, a2))
                g2("s_mul_i32 s58, s%d, 11" % sCG)
                g2("s_add_u32 s58, s58, %d" % (108 if self.direct else 148))
                g2("v_add_u32 v%d, s58, v%d" % (a2, a1))
                g2("v_cmp_lt_u32 vcc, 19, v%d" % a1)
                g2("v_cndmask_b32 v%d, v%d, v%d, vcc" % (a0, a0, a2))
                if self.direct:
                    g2("s_mul_i32 s58, s%d, 12" % sCG)
                    g2("s_sub_u32 s58, s58, 31")
                    g2("v_add_u32 v%d, s58, v%d" % (a2, a1))
                    g2("v_cmp_lt_u32 vcc, 30, v%d" % a1)
                    g2("v_cndmask_b32 v%d, v%d, v%d, vcc" % (a0, a0, a2))
                g2("v_lshrrev_b32 v%d, 3, v%d" % (a2, a0))
                g2("v_and_b32 v%d, 7, v%d" % (a0, a0))
                g2("v_lshlrev_b32 v%d, 2, v%d" % (a0, a0))
                g2("v_lshl_add_u32 v%d, v%d, 7, v%d" % (a0, a2, a0))
                g2("s_cmp_eq_u32 s%d, 1" % sW)
                g2("s_cselect_b32 s58, %d, 0" % (43 if self.direct else 31))
                g2("s_cselect_b32 s4, %s, 0" % ("-1" if self.direct else "0x7fffffff"))
                g2("s_cselect_b32 s5, %s, 0" % ("0x7ff" if self.direct else "0"))
                g2("v_cmp_gt_u32 vcc, s58, v%d" % a1)
                g2("v_mov_b32 v%d, 0x7ffffff0" % a2)
                g2("v_cndmask_b32 v%d, v%d, v%d, vcc" % (a0, a2, a0))
                g2("s_mov_b32 s%d, %d" % (sPoll2, PFL2))
                g2("buffer_load_dword v%d, v%d, s[8:11], s%d offen sc1" % (RING + 12, a0, sPoll2))
                c2 = self.global_check2()
                csl = Stream()
                csl("v_and_b32 v%d, 0xf0, v%d" % (DV + 12, vL16))
                csl("v_lshrrev_b32 v%d, 2, v%d" % (DV + 12, DV + 12))
                csl("v_lshrrev_b32 v%d, 8, v%d" % (DV + 13, vL16))
                csl("v_lshl_add_u32 v%d, v%d, 8, v%d" % (DV + 12, DV + 13, DV + 12))
                self.cs_loads_to(csl, sCG3, CSG, DV, DV + 12)
                lf = self.opts.get("latefirst", "1") == "1" and not self.direct
                fa, fb, fc = self.evs("f2", (40, 20, 56) if lf else (40, 88, 125))
                if not lf:
                    at.setdefault(fa, []).append(f2)
                at.setdefault(fb, []).append(g2)
                g_early0 = lf and self.opts.get("prog0", "1") == "1"
                def after_flag2():
                    self.bulk.extend(self.groupsB(By, sBW, 0, 16))
                    if g_early0:
                        self.bulk.extend(self.progressive(self.groupsB(Bx, sBG, 0, 48), 8))
                at.setdefault(fc, []).extend([c2, after_flag2, csl])
                self.cs_reduce = Stream()
                self.colsums(self.cs_reduce, range(3, 6), r0=DV, first=False)
            early_g = (p == 1 or not single) and self.opts.get("prog", "1") == "1"
            early_g0 = p == 0 and single and not self.direct and self.opts.get("latefirst", "1") == "1" and self.opts.get("prog0", "1") == "1"
            if early_g:
                while self.bulk:
                    s.extend(self.bulk.popleft())
                self.bulk.extend(self.progressive(self.groupsB(Bx, sBG, 0, 48), 8))
            self.seg13(s, 1, p, 1, A[(1, p, 1)], at, raw_stats=(p == 0 and self.direct))
            self.ts(s, "mf1O.%d" % p)
            if early_g:
                self.clear_min()
            elif early_g0:
                self.clear_min()
                while self.bulk and any(x.meta.get("bname") == "W" for x in self.bulk[0]):
                    s.extend(self.bulk.popleft())
            else:
                while self.bulk:
                    s.extend(self.bulk.popleft())
                self.bulk.extend(self.groupsB(Bx, sBG, 0, 48))
            e = Stream(); tok[(1, p, 1)] = self.epi1(e, p, 1)
            self.weave(s, e, every=10)
            self.flush_urgent(s)
            self.ts(s, "s1O.%d" % p)
            if p == 0 and single:
                s.extend(self.cs_reduce)
            self.seg24_mf(s, 2, p, 0)
            self.fs(s, "MF")
            bsel = lambda key, d0, d1: int(self.opts.get(key + str(p), d0 if p == 0 and single else d1))
            self.hold = True
            mid = Stream()
            mid.extend(self.ev_sig(1, p, 1, tok[(1, p, 1)]))
            e = Stream(); tok[(2, p, 0)] = self.epi24(e, 2, p, 0, mid=mid)
            self.weave(s, e, every=10)
            s.extend(self.ev_poll_issue(2, p, 1))
            self.fs(s, "EPI")
            self.hold = False
            if self.opts.get("ord2", "0") == "1":
                s.extend(self.ev_poll_check(2, p, 1))
                self.ts(s, "s2E.%d" % p)
                self.urgent.extend(self.groupsA24(2, p, 1))
                self.flush_urgent(s)
                self.burst(s, bsel("b2F", 6, 0))
                s.extend(self.ev_sig(2, p, 0, tok[(2, p, 0)]))
                s.extend(self.ev_poll_issue(3, p, 0, alt=True))
                self.burst(s, bsel("b2O", 8, 0))
            else:
                self.burst(s, bsel("b2F", 6, 0))
                self.fs(s, "PI")
                s.extend(self.ev_sig(2, p, 0, tok[(2, p, 0)]))
                s.extend(self.ev_poll_issue(3, p, 0, alt=True))
                self.fs(s, "SIG2")
                s.extend(self.ev_poll_check(2, p, 1))
                self.ts(s, "s2E.%d" % p)
                self.urgent.extend(self.groupsA24(2, p, 1))
                self.flush_urgent(s)
                self.burst(s, bsel("b2O", 8, 0))
            A[(3, p, 0)] = self.groupsA_lds(3, p, 0)
            head3, tail3 = self.split_tile(A[(3, p, 0)])
            c3 = int(self.opts.get("c3E", 12 if self.opts.get("ord2", "0") == "1" else 0))
            if c3 < 0:
                s.extend(self.ev_poll_check(3, p, 0, alt=True))
                self.urgent.extend(head3)
                self.flush_urgent(s)
                self.seg24_mf(s, 2, p, 1)
            else:
                self.seg24_mf(s, 2, p, 1, at={c3: [self.ev_poll_check(3, p, 0, alt=True), U(head3)]})
            self.fs(s, "MF")
            self.bulk.extend(self.groupsB(By, sBD, 0, 44 if (p == 0 and single) else 16))
            e = Stream(); tok[(2, p, 1)] = self.epi24(e, 2, p, 1)
            self.weave(s, e, every=5)
            self.fs(s, "EPI")
            until_issued(head3)
            self.ts(s, "s2O.%d" % p)
            self.urgent.extend(tail3)
            A[(3, p, 1)] = self.groupsA_lds(3, p, 1)
            head3, tail3 = self.split_tile(A[(3, p, 1)])
            a, b, c = self.evs("e3E", (48, 108, 150))
            at = {a: [self.ev_sig(2, p, 1, tok[(2, p, 1)])], b: [self.ev_poll_issue(3, p, 1)],
                  c: [self.ev_poll_check(3, p, 1), U(head3)]}
            if not last:
                self.trickle.extend(self.pf(sPfQ, 2048 * i) for i in range(self.pf_n["Q"]))
            self.seg13(s, 3, p, 0, A[(3, p, 0)], at)
            self.ts(s, "mf3E.%d" % p)
            e = Stream(); tok[(3, p, 0)] = self.epi3(e, p, 0)
            self.weave(s, e, every=12)
            until_issued(head3)
            self.ts(s, "s3E.%d" % p)
            self.urgent.extend(tail3)
            gA = self.groupsA24(4, p, 0)
            a, b, c = self.evs("e3O", (64, 120, 160))
            at = {a: [self.ev_sig(3, p, 0, tok[(3, p, 0)])], b: [self.ev_poll_issue(4, p, 0)],
                  c: [self.ev_poll_check(4, p, 0), U(gA)]}
            if not last:
                self.trickle.extend(self.pf(sPfW, 2048 * i) for i in range(self.pf_n["W"]))
            early_q = (not last) and self.opts.get("prog", "1") == "1"
            if early_q:
                self.bulk.extend(self.progressive(self.groupsB(Bx, sBQ, 0, 48), 12))
            self.seg13(s, 3, p, 1, A[(3, p, 1)], at)
            self.ts(s, "mf3O.%d" % p)
            self.flush_urgent(s)
            if early_q:
                self.clear_min()
                while self.bulk and not any(x.meta.get("bname") == "Q" for x in self.bulk[0]):
                    s.extend(self.bulk.popleft())
            else:
                while self.bulk:
                    s.extend(self.bulk.popleft())
                if not last:
                    self.bulk.extend(self.groupsB(Bx, sBQ, 0, 48))
            e = Stream(); tok[(3, p, 1)] = self.epi3(e, p, 1)
            self.weave(s, e, every=12)
            self.ts(s, "s3O.%d" % p)
            a = int(self.opts.get("e4E", 60))
            at = {a: [self.ev_sig(3, p, 1, tok[(3, p, 1)])]}
            at.setdefault(int(self.opts.get("h4", 62)), []).append(self.set_hold(True))
            self.seg24_mf(s, 4, p, 0, at=at)
            self.fs(s, "MF")
            if last:
                s.extend(self.ev_poll_issue(4, p, 1))
            e = Stream(); tok[(4, p, 0)] = self.epi24(e, 4, p, 0)
            self.weave(s, e, every=10)
            ord4 = self.opts.get("ord4", "0") == "1"
            if not last:
                s.extend(self.ev_poll_issue(4, p, 1))
                if not ord4:
                    s.extend(self.ev_sig(4, p, 0, tok[(4, p, 0)]))
                    s.extend(self.ev_poll_issue(1, p + 1, 0, alt=True))
            self.fs(s, "EPI")
            s.extend(self.ev_poll_check(4, p, 1))
            self.hold = False
            self.ts(s, "s4E.%d" % p)
            self.urgent.extend(self.groupsA24(4, p, 1))
            self.flush_urgent(s)
            if ord4 and not last:
                s.extend(self.ev_sig(4, p, 0, tok[(4, p, 0)]))
                s.extend(self.ev_poll_issue(1, p + 1, 0, alt=True))
            at = {}
            head1 = []
            if not last:
                A[(1, p + 1, 0)] = self.groupsA_lds(1, p + 1, 0)
                head1, tails[(1, p + 1, 0)] = self.split_tile(A[(1, p + 1, 0)])
                at = {int(self.opts.get("c1E", 40 if ord4 else 8)): [self.ev_poll_check(1, p + 1, 0, alt=True), U(head1)]}
            self.burst(s, int(self.opts.get("b4O", 0)))
            self.seg24_mf(s, 4, p, 1, at=at)
            e = Stream(); tok[(4, p, 1)] = self.epi24(e, 4, p, 1)
            self.weave(s, e, every=5)
            until_issued(head1)
            self.ts(s, "s4O.%d" % p)
        if single:
            s("s_cmp_eq_u32 s2, 0")
            s("s_cbranch_scc0 M_noep")
            s("s_mov_b32 s36, %d" % EPOCH)
            s("buffer_store_dword v%d, v%d, s[8:11], s36 offen" % (vOne, vFlag))
            s("M_noep:")
        if self.prof == 4:
            s = self.resolve_marks(s)
        if self.prof:
            s("s_lshl_b32 s36, s2, 2")
            s("s_add_u32 s36, s36, s%d" % sW)
            s("s_lshl_b32 s36, s36, 8")
            s("s_add_u32 s36, s36, %d" % 0x3000000)
            s("s_memrealtime s[100:101]")
            s("s_waitcnt lgkmcnt(0)")
            s("s_mov_b32 s95, s100")
            s("s_mov_b64 exec, 1")
            for k in (94, 95):
                s("v_mov_b32 v20, s%d" % k)
                s("buffer_store_dword v20, off, s[8:11], s36 offset:%d" % (4 * (62 + k - 94)))
            if self.prof == 2 and self.local:
                for k, r in enumerate((sImp, sXcc)):
                    s("v_mov_b32 v20, s%d" % r)
                    s("buffer_store_dword v20, off, s[8:11], s36 offset:%d" % (4 * (8 + k)))
            if self.prof == 7:
                for k in range(6):
                    s("v_mov_b32 v20, s%d" % (80 + k))
                    s("buffer_store_dword v20, off, s[8:11], s36 offset:%d" % (4 * (8 + k)))
            if self.prof == 5:
                for k in range(16):
                    s("v_mov_b32 v20, s%d" % (sTS + 2 + k))
                    s("buffer_store_dword v20, off, s[8:11], s36 offset:%d" % (4 * (8 + k)))
            for k in range(self.nts):
                s("v_mov_b32 v20, s%d" % (sTS + (2 * k if self.prof in (3, 8) else k)))
                s("buffer_store_dword v20, off, s[8:11], s36 offset:%d" % (4 * k))
            s("s_mov_b64 exec, -1")
        s("s_waitcnt vmcnt(0)")
        self.check_weights(s)
        self.check_order(s)
        pol = self.opts.get("ntA")
        if pol:
            for ins in s:
                if ins.meta.get("dep") is not None and " sc1" in ins.text:
                    ins.text = ins.text.replace(" sc1", " sc1 nt" if pol == "1" else {"2": " nt", "3": ""}[pol])
        if self.opts.get("ntS") == "1":
            for ins in s:
                if ins.cls == "vm_st" and "dwordx4" in ins.text and " sc1" in ins.text:
                    ins.text = ins.text.replace(" sc1", " sc1 nt")
        lines = finalize(s, verbose=False)
        lines.append("M_end:")
        lines.append("  s_endpgm")
        lines += self.slow
        lines.append("M_last:")
        lines.append("  s_endpgm")
        return lines


def gen_main(opts):
    m = Main(opts)
    lines = m.gen()
    if m.prof:
        lines.insert(0, "; timestamps: " + " ".join(m.tsnames))
    return lines, LDS_BYTES
```

```python
from asmlib import *
from layout import *
from collections import deque
import pack

REG = [0, 65536]
MISC = 131072
STP = MISC
STF = MISC + 16384
CSL = STF + 2048
BIAS = CSL + 2048
JUNK = BIAS + 3072
LDS_BYTES = 163840
SCR = [65536, 98304]

vLane, vL16, vLO, vOst, vH1, vH2, vRed, vPollA, vPollB, vOut = 1, 2, 3, 4, 5, 6, 7, 8, 9, 10
vStatR, vStatW, vStI, vStV, vCs, vCsV, vB1, vOne, vP = 11, 12, 13, 14, 15, 16, 17, 18, 19
ACC = 20
FR = 68
RING = 88
TMP = 136
RES = 140
DV = 144

sW, sRB, sCG, sRB3, sCG3 = 16, 17, 18, 19, 20
sA1h, sA1m, sA3, sKw = 21, 22, 23, 24
sSt1, sSt3 = 25, 26
sM2, sM4 = 28, 30
sT, sT2, sT3 = 32, 33, 34
sOdd = 36
sOnes = 38
sCnt = 40
sBQ, sBW, sBG, sBD = 41, 42, 43, 44
sOst, sA2, sRes, sHst = 45, 46, 47, 48
sA4 = 64
sF1, sF3 = 50, 51
sP2, sP3, sP4, sP1a = 52, 53, 54, 55
sOutO = 56
sStO = 57
sK = 96
sTB = 49
sPoll = 35
sA1hw, sA1mw, sA3w, sKw1 = 63, 66, 67, 27
vPollH = 0
vFlag = 1
vL128 = 10
sPfQ, sPfW, sPfG, sPfD = 90, 91, 92, 93
sM16 = 100
sPoll2 = 62
vP2 = 139
sPur = 5
sImp = 7
sXcc = 6
sTag = 61
sA2b = 60
sE, sE2 = 58, 59
sT4 = 3
sTS = 68

LOG2E = 1.4426950408889634
import struct
def fbits(x): return struct.unpack("<I", struct.pack("<f", x))[0]

POLL_LIMIT = 200000


def Bx(f):
    return "a[%d:%d]" % (4 * f, 4 * f + 3)
def By(f):
    if f < 16:
        return "a[%d:%d]" % (192 + 4 * f, 195 + 4 * f)
    return "v[%d:%d]" % (DV + 4 * (f - 16), DV + 4 * (f - 16) + 3)
def V(n, c=1):
    return "v%d" % n if c == 1 else "v[%d:%d]" % (n, n + c - 1)

def flag_off(p, phase, h):
    return FL + ((p * 4 + phase) * 2 + h) * 32 * 256


class Main:
    def __init__(self, opts):
        self.opts = opts
        self.prof = int(opts.get("prof", 0))
        self.local = opts.get("local", "1") == "1" and opts.get("single", "1") == "1"
        self.direct = opts.get("direct", "0") == "1" and opts.get("single", "1") == "1"
        self.slow = []
        self.npoll = 0
        self.nts = 0
        self.nimp = 0
        self.tsnames5 = []
        self.fine_on = False
        self.tsnames = []

    def ts(self, s, name):
        if self.prof == 6:
            if name in ("start", "prolog") or name.startswith(("s1O", "s2O", "s3E", "s3O", "s4O")):
                k = self.nts
                self.nts += 2
                self.tsnames += [name, name + ".rt"]
                s("s_waitcnt lgkmcnt(0)")
                s("s_memtime s[0:1]")
                s("s_waitcnt lgkmcnt(0)")
                s("s_mov_b32 s%d, s0" % (sTS + k))
                s("s_memrealtime s[0:1]")
                s("s_waitcnt lgkmcnt(0)")
                s("s_mov_b32 s%d, s0" % (sTS + k + 1))
            return
        if self.prof == 4:
            self.mark(s, "seg:" + name)
            return
        if self.prof == 3:
            f = self.opts.get("fine", "").split(",")
            if name == f[0]:
                self.fine_on = True
                self.fs(s, "begin:" + name)
            elif name == f[-1] and self.fine_on:
                self.fs(s, "end:" + name)
                self.fine_on = False
            return
        if self.prof == 8:
            return
        if not self.prof or (self.prof in (2, 5, 7) and name not in ("start", "s4O.1", "s4.1.1")):
            return
        if name in ("mf3O.0", "mf1O.0", "mf3E.0", "mf1O.1"):
            return
        if self.direct and name in ("prolog", "mf1E.1", "s1E.1", "s2E.1", "mf3E.1", "s3E.1", "mf3O.1", "s4E.1", "s2E.0", "s4E.0"):
            return
        if name == "start" and self.opts.get("single", "1") == "1":
            self.tsnames += ["entry"]
            self.nts += 1
        k = self.nts
        self.nts += 1
        self.tsnames.append(name)
        assert sTS + k < (85 if self.direct else 94), k
        s("s_waitcnt lgkmcnt(0)")
        s("s_memtime s[0:1]")
        s("s_waitcnt lgkmcnt(0)")
        s("s_mov_b32 s%d, s0" % (sTS + k))

    def fs(self, s, name):
        if self.prof == 4 and self.fine_on and not name.startswith("mf"):
            k = self.nts
            if sTS + k >= 94:
                return
            self.nts += 1
            self.tsnames.append(name)
            s("s_waitcnt lgkmcnt(0)")
            s("s_memtime s[0:1]")
            s("s_waitcnt lgkmcnt(0)")
            s("s_mov_b32 s%d, s0" % (sTS + k)).meta["glue"] = False
            return
        if self.prof != 3 or not self.fine_on:
            return
        k = self.nts
        lim = 84 if self.direct else (90 if self.opts.get("pf") == "1" else 94)
        if sTS + 2 * k + 1 >= (lim if name.startswith("end:") else lim - 2):
            return
        self.nts += 1
        self.tsnames.append(name)
        s.append(Ins("s_memtime s[%d:%d]" % (sTS + 2 * k, sTS + 2 * k + 1), async_=True))

    def pause(self, s, n):
        i = Ins("@comment")
        i.meta["c"] = "pause"
        i.meta["pause"] = n
        s.append(i)

    def rt(self, s, name):
        if self.prof == 8 and name.endswith(self.opts.get("rtp", ".1")) and name.split(".")[0] in self.opts.get("rts", "sig1O,chk2O,sig2E,chk3E,sig2O,chk3O,sig3O,chk4O,sig4E,chk1E").split(","):
            k = self.nts
            if sTS + 2 * k + 1 < 94:
                self.nts += 1
                self.tsnames.append(name)
                i = Ins("s_memtime s[2:3]", async_=True)
                i.text = "s_memrealtime s[%d:%d]" % (sTS + 2 * k, sTS + 2 * k + 1)
                s.append(i)

    def stm(self, phase):
        return " sc1"

    def purity(self):
        a, d = RING + 22, RING + 23
        i = Stream()
        i("v_lshrrev_b32 v%d, 2, v%d" % (a, vL16))
        i("s_and_b32 s58, s2, 7")
        i("s_lshl_b32 s58, s58, 7")
        i("s_add_u32 s%d, s58, %d" % (sPur, PXC))
        i("buffer_load_dword v%d, v%d, s[8:11], s%d offen sc1" % (d, a, sPur))
        n = self.npoll
        self.npoll += 1
        c = Stream()
        c("s_add_u32 s58, s%d, 1" % sTag)
        c("v_subrev_u32 v%d, s58, v%d" % (d, d))
        c("v_cmp_le_u32 vcc, 16, v%d" % d)
        c("s_mov_b32 vcc_hi, 0")
        c("s_cbranch_vccnz SLOW_%d" % n).meta["glue"] = True
        c("BACK_%d:" % n)
        c("v_cmp_ne_u32 vcc, s%d, v%d" % (sXcc, d))
        c("s_cmp_lg_u32 vcc_lo, 0")
        c("s_cselect_b32 s58, 1, 0")
        if self.opts.get("impure") == "1":
            c("s_mov_b32 s58, 1")
        c("s_cmp_eq_u32 s%d, 0" % sW)
        c("s_cselect_b32 s%d, s58, 0" % sImp)
        self.slow += ["SLOW_%d:" % n, "  s_mov_b32 s%d, 0" % sCnt, "SPIN_%d:" % n,
                      "  buffer_load_dword v%d, v%d, s[8:11], s%d offen sc1" % (d, a, sPur), "  s_waitcnt vmcnt(0)",
                      "  v_subrev_u32 v%d, s58, v%d" % (d, d), "  v_cmp_le_u32 vcc, 16, v%d" % d, "  s_nop 1", "  s_mov_b32 vcc_hi, 0",
                      "  s_cbranch_vccz BACK_%d" % n, "  s_add_u32 s%d, s%d, 1" % (sCnt, sCnt), "  s_cmp_lt_u32 s%d, %d" % (sCnt, POLL_LIMIT),
                      "  s_cbranch_scc1 SPIN_%d" % n, "  s_branch BACK_%d" % n]
        return i, c

    def mark(self, s, name):
        if self.prof == 4:
            i = Ins("@mark")
            i.meta["name"] = name
            s.append(i)

    def resolve_marks(self, s):
        out = Stream()
        f = self.opts.get("fine", "").split(",")
        on = False
        for ins in s:
            if ins.text == "@mark":
                nm = ins.meta["name"]
                if nm == "seg:" + f[0]:
                    on = True
                if on and sTS + self.nts < 94:
                    k = self.nts
                    self.nts += 1
                    self.tsnames.append(nm)
                    out("s_waitcnt lgkmcnt(0)")
                    out("s_memtime s[0:1]")
                    out("s_waitcnt lgkmcnt(0)")
                    out("s_mov_b32 s%d, s0" % (sTS + k))
                if nm == "seg:" + f[-1]:
                    on = False
                continue
            out.append(ins)
        return out

    def poll_issue(self, s, soff, const, vaddr, alt=False):
        vd, sp = (vP2, sPoll2) if alt else (vP, sPoll)
        s("s_add_u32 s%d, s%d, %d" % (sp, soff, const))
        s("buffer_load_dword v%d, v%d, s[8:11], s%d offen sc1" % (vd, vaddr, sp))
        self.mark(s, "pollI")

    def poll_check(self, s, vaddr, mask, alt=False):
        vP, sPoll = (vP2, sPoll2) if alt else (globals()["vP"], globals()["sPoll"])
        n = self.npoll
        self.npoll += 1
        self.mark(s, "chkA")
        s("v_cmp_ne_u32 vcc, s%d, v%d" % (sTag, vP))
        if mask is not None:
            s("s_and_b64 vcc, vcc, s[%d:%d]" % (mask, mask + 1))
        s("s_cbranch_vccnz SLOW_%d" % n).meta["glue"] = True
        s("BACK_%d:" % n).meta["glue"] = True
        s("s_barrier")
        self.mark(s, "chkB")
        t = []
        t.append("SLOW_%d:" % n)
        if self.prof == 5:
            t.append("  s_memtime s[0:1]")
            t.append("  s_waitcnt lgkmcnt(0)")
            t.append("  s_mov_b32 s%d, s0" % (sTS + 2 + n))
            self.tsnames5.append("poll%d" % n)
        t.append("  s_mov_b32 s%d, 0" % sCnt)
        t.append("SPIN_%d:" % n)
        t.append("  buffer_load_dword v%d, v%d, s[8:11], s%d offen sc1" % (vP, vaddr, sPoll))
        t.append("  s_waitcnt vmcnt(0)")
        t.append("  v_cmp_ne_u32 vcc, s%d, v%d" % (sTag, vP))
        t.append("  s_nop 1")
        if mask is not None:
            t.append("  s_and_b64 vcc, vcc, s[%d:%d]" % (mask, mask + 1))
        t.append("  s_cbranch_vccz %s_%d" % ("DONE" if self.prof == 5 else "BACK", n))
        t.append("  s_add_u32 s%d, s%d, 1" % (sCnt, sCnt))
        t.append("  s_cmp_lt_u32 s%d, %d" % (sCnt, POLL_LIMIT))
        t.append("  s_cbranch_scc1 SPIN_%d" % n)
        t.append("  s_branch BACK_%d" % n)
        if self.prof == 5:
            t.append("DONE_%d:" % n)
            t.append("  s_memtime s[0:1]")
            t.append("  s_waitcnt lgkmcnt(0)")
            t.append("  s_sub_u32 s%d, s0, s%d" % (sTS + 2 + n, sTS + 2 + n))
            t.append("  s_branch BACK_%d" % n)
        self.slow += t

    def dep(self, phase, p, h):
        if phase == 1:
            return (sP1a, flag_off(p - 1, 3, h), vPollH, sM16)
        if phase == 2:
            return (sP2, flag_off(p, 0, h), vPollB, sM2)
        if phase == 3:
            return (sP3, flag_off(p, 1, h), vPollA, sM16)
        return (sP4, flag_off(p, 2, h), vPollB, sM4)

    def ev_poll_issue(self, phase, p, h, alt=False):
        t = Stream()
        so, c, va, m = self.dep(phase, p, h)
        self.poll_issue(t, so, c, va, alt)
        return t

    def ev_poll_check(self, phase, p, h, alt=False):
        t = Stream()
        so, c, va, m = self.dep(phase, p, h)
        self.poll_check(t, va, m, alt)
        [x for x in t if x.text == "s_barrier"][-1].meta["checked"] = (phase, p, h)
        self.rt(t, "chk%d%s.%d" % (phase, "EO"[h], p))
        return t

    def ev_sig(self, phase, p, h, tok):
        t = Stream()
        self.sig(t, tok, sF3 if phase == 3 else sF1, flag_off(p, phase - 1, h), local=(self.local and phase != 4))
        self.rt(t, "sig%d%s.%d" % (phase, "EO"[h], p))
        return t

    def sig(self, s, tok, soff, const, local=False):
        self.mark(s, "sigA")
        s.wait_vm(tok)
        self.mark(s, "sigW")
        s("s_barrier")
        self.mark(s, "sigB")
        s("s_add_u32 s%d, s%d, %d" % (sT3, soff, const))
        if not local:
            s("buffer_store_dword v%d, v%d, s[8:11], s%d offen sc1" % (vOne, vFlag, sT3))
            return
        n = self.nimp
        self.nimp += 1
        s("s_cmp_eq_u32 s%d, 1" % sImp)
        s("s_cbranch_scc1 IMP_%d" % n).meta["glue"] = True
        s("buffer_store_dword v%d, v%d, s[8:11], s%d offen" % (vOne, vFlag, sT3)).meta["glue"] = True
        s("IMPB_%d:" % n)
        self.slow += ["IMP_%d:" % n,
                      "  buffer_store_dword v%d, v%d, s[8:11], s%d offen sc1" % (vOne, vFlag, sT3), "  s_branch IMPB_%d" % n]

    def groupsB(self, reg, sbase, lo, hi):
        out = []
        if self.opts.get("nob") == "1" and sbase != sBQ:
            return out
        if self.opts.get("nob") == "2" and sbase == sBG:
            return out
        for f in range(lo, hi):
            g = Stream()
            if f == lo or f % 4 == 0:
                g("s_add_u32 s%d, s%d, %d" % (sTB, sbase, (f // 4) * 4096))
            g("buffer_load_dwordx4 %s, v%d, s[8:11], s%d offen offset:%d" % (reg(f), vL16, sTB, (f % 4) * 1024)).meta["bname"] = \
                {sBQ: "Q", sBW: "W", sBG: "G", sBD: "D"}[sbase]
            out.append(g)
        return out

    def pf(self, sbase, const=0):
        g = Stream()
        if self.opts.get("pf") != "1":
            return g
        g("s_mov_b32 m0, %d" % JUNK)
        g("s_add_u32 s%d, s%d, %d" % (sT, sbase, const))
        g("buffer_load_dword v%d, s[8:11], s%d offen lds" % (vL128, sT))
        return g

    def groupsA_lds(self, phase, p, h):
        if phase == 1:
            srcs = [(sA1hw, 0), (sA1mw, 0), (sA1mw, 16384)]
            xb, st, sst = XB[2 * p], ST[2 * p], sSt1
        else:
            srcs = [(sA3w, i * 16384) for i in range(4)]
            xb, st, sst = XB[2 * p + 1], ST[2 * p + 1], sSt3
        groups, ctok = [], []
        def stats_groups():
            tk = None
            for i in range(2):
                g = Stream()
                g("s_lshl_b32 s%d, s%d, 11" % (sT2, sW))
                g("s_add_u32 m0, s%d, %d" % (sT2, STP + h * 8192))
                g("s_add_u32 s%d, s%d, %d" % (sT, sst, st + h * 131072))
                tk = g.vm("buffer_load_dwordx4 v%d, s[8:11], s%d offen offset:%d sc1 lds" % (vL16, sT, i * 1024))
                if not (phase == 1 and p == 0):
                    g[-1].meta["dep"] = (phase, p, h)
                groups.append(g)
            return tk
        stok = None
        for c in range(4):
            tk = None
            for sub, (sr, cc) in enumerate(srcs):
                g = Stream()
                g("s_add_u32 m0, s%d, %d" % (sKw1, REG[h] + sub * 16384 + c * 4096))
                g("s_add_u32 s%d, s%d, %d" % (sT, sr, xb + h * MB + cc + c * 4096))
                tk = g.vm("buffer_load_dwordx4 v%d, s[8:11], s%d offen sc1 lds" % (vL16, sT))
                if not (phase == 1 and p == 0):
                    g[-1].meta["dep"] = (phase, p, h)
                groups.append(g)
            ctok.append(tk)
            if c == 0:
                stok = stats_groups()
        return groups, stok, ctok

    def frag_seq(self, phase):
        nks = 4 if phase == 2 else 11
        return [(ss, ks) for ss in (1, 0) for ks in range(nks)]

    def ringreg(self, n):
        return RING + 4 * (n % 12)

    def loadA24_one(self, g, phase, p, h, n, st=sT):
        ss, ks = self.frag_seq(phase)[n]
        if phase == 2:
            if ss == 0:
                g("s_add_u32 s%d, s%d, %d" % (st, sA2, OB[p] + h * MB))
            else:
                g("s_add_u32 s%d, s%d, %d" % (st, sA2b, OB[p] + h * MB))
            g("buffer_load_dwordx4 %s, v%d, s[8:11], s%d offen offset:%d sc1" % (V(self.ringreg(n), 4), vL16, st, ks * 1024)).meta["dep"] = (phase, p, h)
        else:
            g("s_add_u32 s%d, s%d, %d" % (st, sA4 + ss, HB[p] + h * 3 * MB + (ks // 4) * 4096))
            g("buffer_load_dwordx4 %s, v%d, s[8:11], s%d offen offset:%d sc1" % (V(self.ringreg(n), 4), vL16, st, (ks % 4) * 1024)).meta["dep"] = (phase, p, h)

    def groupsA24(self, phase, p, h):
        out = []
        for n in range(min(12, len(self.frag_seq(phase)))):
            g = Stream()
            self.loadA24_one(g, phase, p, h, n)
            out.append(g)
        g = Stream()
        if self.direct and phase == 2 and p == 0:
            g("v_and_b32 v%d, 0xf0, v%d" % (RES, vL16))
            g("v_lshlrev_b32 v%d, 7, v%d" % (RES, RES))
            g("v_lshrrev_b32 v%d, 8, v%d" % (RES + 1, vL16))
            g("v_lshl_add_u32 v%d, v%d, 4, v%d" % (RES, RES + 1, RES))
            g("s_add_u32 s%d, s%d, %d" % (sT, sOutO, h * 1024))
            g("buffer_load_dwordx4 %s, v%d, s[88:91], s%d offen" % (V(RES, 4), RES, sT))
        else:
            g("s_add_u32 s%d, s%d, %d" % (sT, sRes, XB[2 * p + (0 if phase == 2 else 1)] + h * MB))
            g("buffer_load_dwordx4 %s, v%d, s[8:11], s%d offen sc1" % (V(RES, 4), vL16, sT))
        out.insert(min(4, len(out)), g)
        return out

    def stats_reduce(self, s, h, stok):
        a = RING
        adr = vStatR
        if h == 1:
            adr = RING + 8
            s("v_add_u32 v%d, 8192, v%d" % (adr, vStatR))
        s.wait_vm(stok)
        for i in range(4):
            s("ds_read2_b32 %s, v%d offset0:%d offset1:%d" % (V(a + 2 * i, 2), adr, 64 * i, 64 * i + 32))
        self.pause(s, 10)
        for (x, y) in ((0, 1), (2, 3), (4, 5), (6, 7), (0, 2), (4, 6), (0, 4)):
            s("v_add_f32 v%d, v%d, v%d" % (a + x, a + x, a + y))
        s("v_mov_b32 v%d, v%d" % (a + 1, a))
        s("v_permlane32_swap_b32 v%d, v%d" % (a, a + 1))
        s("v_add_f32 v%d, v%d, v%d" % (a, a, a + 1))
        s("v_mov_b32 v%d, v%d" % (a + 1, a))
        s("v_permlane16_swap_b32 v%d, v%d" % (a, a + 1))
        s("v_mul_f32 v%d, %s, v%d" % (a, "0x%08x" % fbits(-1.0 / 512), a))
        s("v_mul_f32 v%d, v%d, v%d" % (a + 2, a, a))
        s("v_fma_f32 v%d, v%d, s%d, -v%d" % (a + 1, a + 1, sK, a + 2))
        s("v_max_f32 v%d, 0, v%d" % (a + 1, a + 1))
        s("v_add_f32 v%d, s%d, v%d" % (a + 1, sK + 1, a + 1))
        s("v_rsq_f32 v%d, v%d" % (a + 1, a + 1))
        s("v_cndmask_b32 v%d, v%d, v%d, s[%d:%d]" % (a, a, a + 1, sOdd, sOdd + 1))
        self.stat_tok = Tok("statw")
        s("ds_write_b32 v%d, v%d offset:%d" % (vStatW, a, h * 1024), tok=self.stat_tok)

    def epi_pref(self, phase, h):
        hoff = h * 1024
        pub = Stream()
        pub.wait_ds(self.stat_tok)
        pub("s_barrier")
        if phase == 3:
            return {58: list(pub), 60: ["ds_read_b128 %s, v%d offset:768" % (V(68, 4), vCs)],
                    61: ["ds_read_b128 %s, v%d offset:832" % (V(72, 4), vCs)],
                    62: ["ds_read_b128 %s, v%d offset:896" % (V(76, 4), vCs)],
                    63: ["ds_read_b64 %s, v%d offset:%d" % (V(80, 2), vStI, hoff)]}
        return {37: list(pub), 38: ["ds_read_b128 %s, v%d offset:%d" % (V(52, 4), vStV, hoff)],
                39: ["ds_read_b128 %s, v%d offset:%d" % (V(56, 4), vStV, hoff + 256)],
                40: ["ds_read_b128 %s, v%d offset:%d" % (V(60, 4), vStV, hoff + 64)],
                41: ["ds_read_b128 %s, v%d offset:%d" % (V(64, 4), vStV, hoff + 256 + 64)],
                43: ["ds_read_b128 %s, v%d offset:64" % (V(80, 4), vCs)],
                44: ["ds_read_b32 v84, v%d" % vCsV],
                45: ["ds_read_b64 %s, v%d offset:%d" % (V(68, 2), vStI, hoff), "ds_read_b64 %s, v%d offset:%d" % (V(70, 2), vStI, hoff + 128)],
                46: ["ds_read_b64 %s, v%d offset:%d" % (V(72, 2), vStI, hoff + 256)],
                47: ["ds_read_b128 %s, v%d offset:0" % (V(76, 4), vCs)]}

    def mf13(self, phase, h):
        base = vL16 if h == 0 else vLO
        nsub = 3 if phase == 1 else 4
        nfr = 16 * nsub
        def rd(n):
            ks, sub = divmod(n, nsub)
            out = []
            if sub == 0 and ks % 4 == 0:
                out.append(("chunk", ks // 4))
            out.append("ds_read_b128 %s, v%d offset:%d" % (V(FR + 4 * (n % 5), 4), base, sub * 16384 + ks * 1024))
            return out
        pre = [x for n in range(5) for x in rd(n)]
        pref = self.epi_pref(phase, h)
        steps = []
        mm = "v_mfma_f32_16x16x32_bf16"
        Q = [None, ACC, ACC + 4]
        K = [ACC + 8, ACC + 12, ACC + 16]
        Vv = [ACC + 20, ACC + 24, ACC + 28]
        for ks in range(16):
            c = (lambda r: "0" if ks == 0 else V(r, 4))
            for sub in range(nsub):
                n = nsub * ks + sub
                x = V(FR + 4 * (n % 5), 4)
                grp = []
                if phase == 1:
                    if sub > 0:
                        grp.append("%s %s, %s, %s, %s" % (mm, V(Q[sub], 4), Bx(3 * ks), x, c(Q[sub])))
                    grp.append("%s %s, %s, %s, %s" % (mm, V(K[sub], 4), Bx(3 * ks + 1), x, c(K[sub])))
                    grp.append("%s %s, %s, %s, %s" % (mm, V(Vv[sub], 4), x, Bx(3 * ks + 2), c(Vv[sub])))
                else:
                    for j in range(3):
                        r = ACC + 12 * sub + 4 * j
                        grp.append("%s %s, %s, %s, %s" % (mm, V(r, 4), Bx(3 * ks + j), x, c(r)))
                for i, m in enumerate(grp):
                    bop = [o.strip() for o in m.split(",") if o.strip().startswith("a[")][0]
                    st = [Ins(m, need=(bop, "Q" if phase == 1 else "G"))]
                    if i == len(grp) - 1 and n + 5 < nfr:
                        st += rd(n + 5)
                    if i == len(grp) - 1:
                        st += pref.get(n, [])
                    steps.append(st)
        return pre, steps

    def mf24(self, phase, p, h):
        seq = self.frag_seq(phase)
        steps = []
        for n, (ss, ks) in enumerate(seq):
            x = V(self.ringreg(n), 4)
            for jj in range(4):
                r = ACC + 16 * ss + 4 * jj
                st = [Ins("v_mfma_f32_16x16x32_bf16 %s, %s, %s, %s" % (V(r, 4), By(4 * ks + jj), x, "0" if ks == 0 else V(r, 4)),
                          need=(By(4 * ks + jj), "W" if phase == 2 else "D"))]
                if n + 12 < len(seq):
                    t = Stream()
                    self.loadA24_one(t, phase, p, h, n + 12, sT4)
                    if jj == 2:
                        st.append(t[0])
                    if jj == 3:
                        st.append(t[1])
                steps.append(st)
        return steps, 2 * len(seq)

    def red_writes(self, xs, h):
        t = Stream()
        so = SCR[h] - 65536
        for x in xs:
            t("v_xor_b32 v%d, %d, v%d" % (TMP + x - 1, x << 13, vRed))
        for x in xs:
            for jl in range(2):
                t("ds_write_b128 v%d, %s offset:%d" % (TMP + x - 1, V(ACC + 8 * x + 4 * jl, 4), so + x * 2048 + jl * 1024))
        return t

    def seg24_mf(self, s, phase, p, h, at=None):
        steps, half = self.mf24(phase, p, h)
        at = dict(at or {})
        w = self.red_writes((2, 3), h)
        at.setdefault(half + 9, []).insert(0, w)
        self.run_mf(s, steps, at=at)

    def epi1(self, s, p, h):
        Q = [None, ACC, ACC + 4]
        K = [ACC + 8, ACC + 12, ACC + 16]
        Vv = [ACC + 20, ACC + 24, ACC + 28]
        SP = [None, 52, 60]
        SC = [None, 56, 64]
        st = [68, 70, 72]
        csq, csk, csv, cq = 76, 80, 84, 86
        hoff = h * 1024
        NM = [52, 60, 52]
        RS = [56, 64, 56]
        def rdv(sub):
            s("ds_read_b128 %s, v%d offset:%d" % (V(NM[sub], 4), vStV, hoff + sub * 64))
            s("ds_read_b128 %s, v%d offset:%d" % (V(RS[sub], 4), vStV, hoff + 256 + sub * 64))
        bc0 = "op_sel_hi:[0,1,1]"
        for sub in (1, 2):
            for hh in (0, 2):
                s("v_pk_fma_f32 %s, %s, %s, %s %s" % (V(Q[sub] + hh, 2), V(st[sub], 2), V(csq + hh, 2), V(Q[sub] + hh, 2), bc0))
            s("v_mul_f32 v%d, s%d, v%d" % (cq, sK + 2, st[sub] + 1))
            for hh in (0, 2):
                s("v_pk_mul_f32 %s, %s, %s op_sel_hi:[1,0]" % (V(Q[sub] + hh, 2), V(Q[sub] + hh, 2), V(cq, 2)))
            s("v_cvt_pk_bf16_f32 v%d, v%d, v%d" % (Q[sub], Q[sub], Q[sub] + 1))
            s("v_cvt_pk_bf16_f32 v%d, v%d, v%d" % (Q[sub] + 1, Q[sub] + 2, Q[sub] + 3))
        for sub in range(3):
            for hh in (0, 2):
                s("v_pk_fma_f32 %s, %s, %s, %s %s" % (V(K[sub] + hh, 2), V(st[sub], 2), V(csk + hh, 2), V(K[sub] + hh, 2), bc0))
            for hh in (0, 2):
                s("v_pk_mul_f32 %s, %s, %s op_sel:[0,1] op_sel_hi:[1,1]" % (V(K[sub] + hh, 2), V(K[sub] + hh, 2), V(st[sub], 2)))
            s("v_cvt_pk_bf16_f32 v%d, v%d, v%d" % (K[sub], K[sub], K[sub] + 1))
            s("v_cvt_pk_bf16_f32 v%d, v%d, v%d" % (K[sub] + 1, K[sub] + 2, K[sub] + 3))
        bp1, bp, bc = 68, 72, 76
        s("v_add_u32 v%d, %d, v%d" % (TMP + 2, BIAS, vL16))
        s("ds_read_b128 %s, v%d" % (V(bp1, 4), vB1))
        s("ds_read_b128 %s, v%d offset:1024" % (V(bp, 4), TMP + 2))
        s("ds_read_b128 %s, v%d offset:0" % (V(bc, 4), TMP + 2))
        for sub in range(3):
            for hh in (0, 2):
                s("v_pk_fma_f32 %s, %s, %s, %s op_sel_hi:[1,0,1]" % (V(Vv[sub] + hh, 2), V(NM[sub] + hh, 2), V(csv, 2), V(Vv[sub] + hh, 2)))
            for hh in (0, 2):
                s("v_pk_mul_f32 %s, %s, %s" % (V(Vv[sub] + hh, 2), V(Vv[sub] + hh, 2), V(RS[sub] + hh, 2)))
            if sub == 0:
                rdv(2)
            s("v_cvt_pk_bf16_f32 v%d, v%d, v%d" % (Vv[sub], Vv[sub], Vv[sub] + 1))
            s("v_cvt_pk_bf16_f32 v%d, v%d, v%d" % (Vv[sub] + 1, Vv[sub] + 2, Vv[sub] + 3))
        mm = "v_mfma_f32_16x16x16_bf16"
        s("%s %s, %s, %s, %s" % (mm, V(SP[1], 4), V(K[0], 2), V(Q[1], 2), V(bp1, 4)))
        s("%s %s, %s, %s, %s" % (mm, V(SC[1], 4), V(K[1], 2), V(Q[1], 2), V(bc, 4)))
        s("%s %s, %s, %s, %s" % (mm, V(SP[2], 4), V(K[1], 2), V(Q[2], 2), V(bp, 4)))
        s("%s %s, %s, %s, %s" % (mm, V(SC[2], 4), V(K[2], 2), V(Q[2], 2), V(bc, 4)))
        m = {1: 80, 2: 84}
        l = {1: 82, 2: 86}
        for sub in (1, 2):
            a, b = SP[sub], SC[sub]
            s("v_max3_f32 v%d, v%d, v%d, v%d" % (m[sub], a, a + 1, a + 2))
            s("v_max3_f32 v%d, v%d, v%d, v%d" % (m[sub] + 1, a + 3, b, b + 1))
            s("v_max3_f32 v%d, v%d, v%d, v%d" % (m[sub], m[sub], b + 2, b + 3))
            s("v_max_f32 v%d, v%d, v%d" % (m[sub], m[sub], m[sub] + 1))
        for sw in ("v_permlane16_swap_b32", "v_permlane32_swap_b32"):
            for sub in (1, 2):
                s("v_mov_b32 v%d, v%d" % (m[sub] + 1, m[sub]))
            for sub in (1, 2):
                s("%s v%d, v%d" % (sw, m[sub], m[sub] + 1))
            for sub in (1, 2):
                s("v_max_f32 v%d, v%d, v%d" % (m[sub], m[sub], m[sub] + 1))
        for sub in (1, 2):
            for r in (SP[sub], SP[sub] + 2, SC[sub], SC[sub] + 2):
                s("v_pk_add_f32 %s, %s, %s op_sel_hi:[1,0] neg_lo:[0,1] neg_hi:[0,1]" % (V(r, 2), V(r, 2), V(m[sub], 2)))
        for sub in (1, 2):
            for r in range(4):
                s("v_exp_f32 v%d, v%d" % (SP[sub] + r, SP[sub] + r))
                s("v_exp_f32 v%d, v%d" % (SC[sub] + r, SC[sub] + r))
        s("v_mov_b32 v76, 0x3f803f80")
        s("v_mov_b32 v77, 0x3f803f80")
        for sub in (1, 2):
            for r in (SP[sub], SC[sub]):
                s("v_cvt_pk_bf16_f32 v%d, v%d, v%d" % (r, r, r + 1))
                s("v_cvt_pk_bf16_f32 v%d, v%d, v%d" % (r + 1, r + 2, r + 3))
        lq = {1: 80, 2: 84}
        for sub in (1, 2):
            s("%s %s, %s, %s, 0" % (mm, V(lq[sub], 4), V(76, 2), V(SP[sub], 2)))
        for sub in (1, 2):
            s("%s %s, %s, %s, 0" % (mm, V(Q[sub], 4), V(Vv[sub - 1], 2), V(SP[sub], 2)))
        for sub in (1, 2):
            s("%s %s, %s, %s, %s" % (mm, V(lq[sub], 4), V(76, 2), V(SC[sub], 2), V(lq[sub], 4)))
        for sub in (1, 2):
            s("%s %s, %s, %s, %s" % (mm, V(Q[sub], 4), V(Vv[sub], 2), V(SC[sub], 2), V(Q[sub], 4)))
        l = lq
        for sub in (1, 2):
            s("v_rcp_f32 v%d, v%d" % (l[sub], l[sub]))
        for sub in (1, 2):
            for hh in (0, 2):
                s("v_pk_mul_f32 %s, %s, %s op_sel_hi:[1,0]" % (V(Q[sub] + hh, 2), V(Q[sub] + hh, 2), V(l[sub], 2)))
        o = ACC
        s("v_cvt_pk_bf16_f32 v%d, v%d, v%d" % (o, o, o + 1))
        s("v_cvt_pk_bf16_f32 v%d, v%d, v%d" % (o + 1, o + 2, o + 3))
        s("v_cvt_pk_bf16_f32 v%d, v%d, v%d" % (o + 2, o + 4, o + 5))
        s("v_cvt_pk_bf16_f32 v%d, v%d, v%d" % (o + 3, o + 6, o + 7))
        s("v_permlane16_swap_b32 v%d, v%d" % (o, o + 2))
        s("v_permlane16_swap_b32 v%d, v%d" % (o + 1, o + 3))
        s("s_add_u32 s%d, s%d, %d" % (sE, sOst, OB[p] + h * MB))
        return s.vm("buffer_store_dwordx4 %s, v%d, s[8:11], s%d offen%s" % (V(o, 4), vOst, sE, self.stm(1)))

    def epi3(self, s, p, h):
        csG, csU, csM = 68, 72, 76
        stp = [80, 82]
        c1 = 84
        hoff = h * 1024
        bq = TMP
        for sub in range(4):
            G, U, M = ACC + 12 * sub, ACC + 12 * sub + 4, ACC + 12 * sub + 8
            st = stp[sub & 1]
            if sub < 3:
                s("ds_read_b64 %s, v%d offset:%d" % (V(stp[(sub + 1) & 1], 2), vStI, hoff + (sub + 1) * 128))
            for (r, cs) in ((M, csM), (G, csG), (U, csU)):
                for hh in (0, 2):
                    s("v_pk_fma_f32 %s, %s, %s, %s op_sel_hi:[0,1,1]" % (V(r + hh, 2), V(st, 2), V(cs + hh, 2), V(r + hh, 2)))
            s("v_mul_f32 v%d, s%d, v%d" % (c1, sK + 3, st + 1))
            s("v_permlane16_swap_b32 v%d, v%d" % (M, M + 2))
            s("v_permlane16_swap_b32 v%d, v%d" % (M + 1, M + 3))
            gates = (G, G + 2, M)
            ups = (U, U + 2, M + 2)
            for r in gates:
                s("v_pk_mul_f32 %s, %s, %s op_sel_hi:[1,0]" % (V(r, 2), V(r, 2), V(c1, 2)))
            for r in gates:
                s("v_exp_f32 v%d, v%d" % (r, r))
                s("v_exp_f32 v%d, v%d" % (r + 1, r + 1))
            for r in ups:
                s("v_pk_mul_f32 %s, %s, %s op_sel:[0,1] op_sel_hi:[1,1]" % (V(r, 2), V(r, 2), V(st, 2)))
            for r in gates:
                s("v_pk_add_f32 %s, %s, s[%d:%d]" % (V(r, 2), V(r, 2), sOnes, sOnes + 1))
            for r in gates:
                s("v_rcp_f32 v%d, v%d" % (r, r))
                s("v_rcp_f32 v%d, v%d" % (r + 1, r + 1))
            for g, u in zip(gates, ups):
                s("v_pk_mul_f32 %s, %s, %s" % (V(u, 2), V(u, 2), V(g, 2)))
            dst = ACC + 12 * (sub & ~1) + 2 * (sub & 1)
            s("v_cvt_pk_bf16_f32 v%d, v%d, v%d" % (dst, U, U + 1))
            s("v_cvt_pk_bf16_f32 v%d, v%d, v%d" % (dst + 1, U + 2, U + 3))
            s("v_cvt_pk_bf16_f32 v%d, v%d, v%d" % (bq + sub, M + 2, M + 3))
        s("s_add_u32 s%d, s%d, %d" % (sE, sHst, HB[p] + h * 3 * MB))
        for pr in range(2):
            d = ACC + 24 * pr
            s("v_permlane16_swap_b32 v%d, v%d" % (d, d + 2))
            s("v_permlane16_swap_b32 v%d, v%d" % (d + 1, d + 3))
            if pr == 1:
                s("s_add_u32 s%d, s%d, %d" % (sE2, sE, 2 * 48 * KB))
            s.vm("buffer_store_dwordx4 %s, v%d, s[8:11], s%d offen%s" % (V(d, 4), vH1, sE if pr == 0 else sE2, self.stm(3)))
        s("v_permlane16_swap_b32 v%d, v%d" % (bq, bq + 1))
        s("v_permlane16_swap_b32 v%d, v%d" % (bq + 2, bq + 3))
        s("v_permlane32_swap_b32 v%d, v%d" % (bq, bq + 2))
        s("v_permlane32_swap_b32 v%d, v%d" % (bq + 1, bq + 3))
        return s.vm("buffer_store_dwordx4 %s, v%d, s[8:11], s%d offen%s" % (V(bq, 4), vH2, sE, self.stm(3)))

    def epi24(self, s, phase, p, h, sig=None, mid=None):
        so = SCR[h] - 65536
        a = ACC
        s.extend(self.red_writes((1,), h))
        if sig is not None:
            s.wait_vm(sig[3])
        s.wait_ds()
        s("s_barrier")
        if sig is not None:
            s("s_add_u32 s%d, s%d, %d" % (sT3, sF3 if sig[0] == 3 else sF1, flag_off(sig[1], sig[0] - 1, sig[2])))
            s("buffer_store_dword v%d, v%d, s[8:11], s%d offen sc1" % (vOne, vFlag, sT3))
        for x in (1, 2, 3):
            for jl in range(2):
                s("ds_read_b128 %s, v%d offset:%d" % (V(a + 8 * x + 4 * jl, 4), vRed, so + x * 2048 + jl * 1024))
        r = 52
        for i in range(4):
            s("v_lshlrev_b32 v%d, 16, v%d" % (r + 2 * i, RES + i))
            s("v_and_b32 v%d, 0xffff0000, v%d" % (r + 2 * i + 1, RES + i))
        for i in range(4):
            s("v_pk_add_f32 %s, %s, %s" % (V(a + 2 * i, 2), V(a + 2 * i, 2), V(r + 2 * i, 2)))
        for x in (1, 2, 3):
            for i in range(4):
                s("v_pk_add_f32 %s, %s, %s" % (V(a + 2 * i, 2), V(a + 2 * i, 2), V(a + 8 * x + 2 * i, 2)))
        o = 60
        for i in range(4):
            s("v_cvt_pk_bf16_f32 v%d, v%d, v%d" % (o + i, a + 2 * i, a + 2 * i + 1))
        final = (phase == 4 and p == 1)
        if final:
            s("s_add_u32 s%d, s%d, %d" % (sE, sOutO, h * 1024))
            s("v_and_b32 v52, 0xf0, v%d" % vL16)
            s("v_lshlrev_b32 v52, 7, v52")
            s("v_lshrrev_b32 v53, 8, v%d" % vL16)
            s("v_lshl_add_u32 v52, v53, 4, v52")
            tk = s.vm("buffer_store_dwordx4 %s, v52, s[12:15], s%d offen%s" % (V(o, 4), sE, {"0": "", "1": " sc1", "2": " nt"}[self.opts.get("outsc", "1")]))
            if mid is not None:
                s.extend(mid)
            return tk
        xi = 2 * p + (1 if phase == 2 else 2)
        s("s_add_u32 s%d, s%d, %d" % (sE, sRes, XB[xi] + h * MB))
        s.vm("buffer_store_dwordx4 %s, v%d, s[8:11], s%d offen%s" % (V(o, 4), vL16, sE, self.stm(phase)))
        if mid is not None:
            s.extend(mid)
        u = 52
        s("v_pk_add_f32 %s, %s, %s" % (V(u, 2), V(a, 2), V(a + 2, 2)))
        s("v_pk_add_f32 %s, %s, %s" % (V(u + 2, 2), V(a + 4, 2), V(a + 6, 2)))
        s("v_pk_mul_f32 %s, %s, %s" % (V(u + 4, 2), V(a, 2), V(a, 2)))
        s("v_pk_add_f32 %s, %s, %s" % (V(u, 2), V(u, 2), V(u + 2, 2)))
        for i in (1, 2, 3):
            s("v_pk_fma_f32 %s, %s, %s, %s" % (V(u + 4, 2), V(a + 2 * i, 2), V(a + 2 * i, 2), V(u + 4, 2)))
        s("v_add_f32 v%d, v%d, v%d" % (u, u, u + 1))
        s("v_add_f32 v%d, v%d, v%d" % (u + 1, u + 4, u + 5))
        s("v_permlane16_swap_b32 v%d, v%d" % (u, u + 1))
        s("v_add_f32 v%d, v%d, v%d" % (u, u, u + 1))
        s("v_mov_b32 v%d, v%d" % (u + 1, u))
        s("v_permlane32_swap_b32 v%d, v%d" % (u, u + 1))
        s("v_add_f32 v%d, v%d, v%d" % (u, u, u + 1))
        s("s_add_u32 s%d, s%d, %d" % (sE, sStO, ST[xi] + h * 131072))
        s("v_lshrrev_b32 v%d, 2, v%d" % (u + 2, vL16))
        s("s_mov_b32 exec_hi, 0")
        tok = s.vm("buffer_store_dword v%d, v%d, s[8:11], s%d offen%s" % (u, u + 2, sE, self.stm(phase)))
        s("s_mov_b32 exec_hi, -1")
        return tok

    def codepf(self, sw=16):
        if self.opts.get("nocpf") == "1":
            return ""
        n = int(self.opts.get("cpf", 2))
        t = ["s_getpc_b64 s[56:57]", "M_pc:", "s_lshl_b32 s58, s%d, 13" % sw, "v_lshlrev_b32 v128, 7, v1", "v_add_u32 v128, s58, v128"]
        for i in range(n):
            t.append("v_min_u32 v129, M_last-M_pc, v128")
            t.append("global_load_dword v%d, v129, s[56:57]" % (134 + i))
            if i < n - 1:
                t.append("v_add_u32 v128, 0x8000, v128")
        return "\n".join(t)

    def pro_ids(self, s, t):
        s("""
        v_lshrrev_b32 v20, 6, v0
        v_and_b32 v%d, 63, v0
        v_readfirstlane_b32 s%d, v20
        v_lshlrev_b32 v%d, 4, v%d
        s_and_b32 s32, s2, 7
        s_lshr_b32 s33, s2, 3
        s_lshr_b32 s34, s32, 1
        s_and_b32 s35, s32, 1
        """ % (vLane, sW, vL16, vLane))
        if self.local:
            s("""
            s_lshl_b32 s{rb}, s32, 2
            s_lshr_b32 s{t}, s33, 3
            s_add_u32 s{rb}, s{rb}, s{t}
            s_and_b32 s{cg}, s33, 7
            s_lshl_b32 s{rb3}, s32, 1
            s_lshr_b32 s{t}, s33, 4
            s_add_u32 s{rb3}, s{rb3}, s{t}
            s_and_b32 s{cg3}, s33, 15
            """.format(rb=sRB, cg=sCG, rb3=sRB3, cg3=sCG3, t=t))
        else:
            s("""
            s_lshl_b32 s{rb}, s34, 3
            s_lshr_b32 s{t}, s33, 2
            s_add_u32 s{rb}, s{rb}, s{t}
            s_lshl_b32 s{cg}, s35, 2
            s_and_b32 s{t}, s33, 3
            s_add_u32 s{cg}, s{cg}, s{t}
            s_lshl_b32 s{rb3}, s34, 2
            s_lshr_b32 s{t}, s33, 3
            s_add_u32 s{rb3}, s{rb3}, s{t}
            s_lshl_b32 s{cg3}, s35, 3
            s_and_b32 s{t}, s33, 7
            s_add_u32 s{cg3}, s{cg3}, s{t}
            """.format(rb=sRB, cg=sCG, rb3=sRB3, cg3=sCG3, t=t))

    def prologue(self, s):
        single = self.opts.get("single", "1") == "1"
        s("""
        s_load_dwordx2 s[4:5], s[0:1], 72
        s_load_dwordx2 s[6:7], s[0:1], 56
        """)
        if not single:
            s("s_cmp_ge_u32 s2, 256")
            s("s_cbranch_scc1 M_end")
        self.pro_ids(s, 36)
        if not single:
            s(self.codepf())
        s("""
        s_waitcnt lgkmcnt(0)
        s_mov_b32 s8, s4
        s_and_b32 s9, s5, 0xffff
        s_mov_b32 s10, 0x10000000
        s_mov_b32 s11, 0x20000
        s_mov_b32 s12, s6
        s_and_b32 s13, s7, 0xffff
        s_mov_b32 s14, 0x200000
        s_mov_b32 s15, 0x20000
        """)
        self.pro_rest(s)

    def pro_rest(self, s):
        s("""
        s_lshl_b32 s36, s{cg}, 2
        s_add_u32 s36, s36, s{w}
        s_mul_i32 s{bq}, s36, {k48}
        s_add_u32 s{bq}, s{bq}, {PQ}
        s_lshl_b32 s{bw}, s36, 14
        s_add_u32 s{bw}, s{bw}, {PW}
        s_mul_i32 s{bd}, s36, {k44}
        s_add_u32 s{bd}, s{bd}, {PD}
        s_lshl_b32 s37, s{cg3}, 2
        s_add_u32 s37, s37, s{w}
        s_mul_i32 s{bg}, s37, {k48}
        s_add_u32 s{bg}, s{bg}, {PG}
        s_lshl_b32 s{kw}, s{w}, 12
        s_lshl_b32 s{a1m}, s{rb}, 15
        s_lshl_b32 s{a3}, s{rb3}, 16
        s_sub_u32 s{a1h}, s{a1m}, 16384
        s_max_i32 s{a1h}, s{a1h}, 0
        """.format(cg=sCG, w=sW, bq=sBQ, bw=sBW, bd=sBD, bg=sBG, cg3=sCG3, kw=sKw, a1m=sA1m, a3=sA3, a1h=sA1h, rb=sRB, rb3=sRB3,
                   k48=48 * KB, k44=44 * KB, PQ=PQ, PW=PW, PD=PD, PG=PG))
        s("""
        s_lshl_b32 s38, s{rb}, 1
        s_add_u32 s38, s38, s{w}
        s_sub_u32 s38, s38, 1
        s_max_i32 s38, s38, 0
        s_lshl_b32 s{st1}, s38, 11
        s_lshl_b32 s38, s{rb3}, 2
        s_add_u32 s38, s38, s{w}
        s_lshl_b32 s{st3}, s38, 11
        """.format(rb=sRB, w=sW, st1=sSt1, rb3=sRB3, st3=sSt3))
        s("""
        s_lshr_b32 s38, s{w}, 1
        s_and_b32 s39, s{w}, 1
        s_lshl_b32 s40, s{cg}, 1
        s_add_u32 s59, s40, s38
        s_lshl_b32 s59, s59, 10
        s_lshl_b32 s60, s39, 9
        s_add_u32 s59, s59, s60
        s_add_u32 s{ost}, s59, s{a1m}
        """.format(w=sW, cg=sCG, ost=sOst, a1m=sA1m))
        s("""
        s_lshl_b32 s59, s38, 14
        s_add_u32 s59, s59, s{a1m}
        s_add_u32 s{a2}, s59, s{kw}
        s_add_u32 s60, s40, s39
        s_lshl_b32 s61, s60, 10
        s_add_u32 s{res}, s59, s61
        s_lshr_b32 s{sto}, s59, 3
        s_lshl_b32 s61, s60, 7
        s_add_u32 s{sto}, s{sto}, s61
        """.format(a1m=sA1m, a2=sA2, kw=sKw, res=sRes, sto=sStO))
        s("""
        s_lshl_b32 s59, s{rb}, 1
        s_add_u32 s59, s59, s38
        s_lshl_b32 s{out}, s59, 15
        s_lshl_b32 s61, s60, 6
        s_add_u32 s{out}, s{out}, s61
        """.format(rb=sRB, out=sOutO))
        s("""
        s_mul_i32 s{hst}, s{rb3}, {k192}
        s_mul_i32 s61, s{cg3}, 12
        s_mul_i32 s62, s{w}, 3
        s_add_u32 s61, s61, s62
        s_lshl_b32 s61, s61, 8
        s_add_u32 s{hst}, s{hst}, s61
        s_mul_i32 s62, s{w}, {k11}
        s_mul_i32 s{a4}, s59, {k48}
        s_add_u32 s{a4}, s{a4}, s62
        s_xor_b32 s59, s59, 1
        s_mul_i32 s{a4b}, s59, {k48}
        s_add_u32 s{a4b}, s{a4b}, s62
        """.format(hst=sHst, rb3=sRB3, cg3=sCG3, w=sW, a4=sA4, a4b=sA4 + 1, k192=192 * KB, k11=11 * KB, k48=48 * KB))
        return

    def prologue2(self, s):
        s("""
        s_lshl_b32 s59, s{cg}, 2
        s_lshl_b32 s60, s{rb}, 8
        s_add_u32 s{f1}, s60, s59
        s_lshl_b32 s59, s{cg3}, 2
        s_lshl_b32 s61, s{rb3}, 8
        s_add_u32 s{f3}, s61, s59
        s_mov_b32 s{p2}, s60
        s_lshl_b32 s{p3}, s{rb3}, 9
        s_lshr_b32 s61, s{rb}, 1
        s_lshl_b32 s{p4}, s61, 8
        s_cmp_eq_u32 s{rb}, 0
        s_cselect_b32 s61, 0, 256
        s_sub_u32 s{p1}, s60, s61
        v_lshrrev_b32 v20, 3, v{lane}
        v_mul_lo_u32 v20, v20, s61
        v_and_b32 v21, 7, v{lane}
        v_lshl_add_u32 v{ph}, v21, 2, v20
        """.format(lane=vLane, ph=vPollH, cg=sCG, w=sW, rb=sRB, f1=sF1, cg3=sCG3, rb3=sRB3, f3=sF3, p2=sP2, p3=sP3, p4=sP4, p1=sP1a))
        s("""
        s_cmp_eq_u32 s{w}, 1
        s_cselect_b32 s{m2}, 0xff, 0
        s_mov_b32 s{m2h}, 0
        s_cselect_b32 s{m4}, 0x7fff, 0
        s_mov_b32 s{m4h}, 0
        s_cselect_b32 s{m16}, 0xffff, 0
        s_mov_b32 s{m16h}, 0
        s_mov_b32 s{odd}, 0xffff0000
        s_mov_b32 s{oddh}, 0xffff0000
        s_mov_b32 s{one}, 1.0
        s_mov_b32 s{oneh}, 1.0
        s_mov_b32 s{k0}, {c0}
        s_mov_b32 s{k1}, {c1}
        s_mov_b32 s{k2}, {c2}
        s_mov_b32 s{k3}, {c3}
        """.format(w=sW, m2=sM2, m2h=sM2 + 1, m4=sM4, m4h=sM4 + 1, m16=sM16, m16h=sM16 + 1, odd=sOdd, oddh=sOdd + 1, one=sOnes, oneh=sOnes + 1,
                   k0=sK, k1=sK + 1, k2=sK + 2, k3=sK + 3,
                   c0="0x%08x" % fbits(1.0 / 512), c1="0x%08x" % fbits(1e-5), c2="0x%08x" % fbits(0.25 * LOG2E), c3="0x%08x" % fbits(-LOG2E)))
        s("""
        v_and_b32 v20, 15, v{lane}
        v_lshrrev_b32 v21, 4, v{lane}
        v_add_u32 v{lo}, 65536, v{l16}
        v_lshlrev_b32 v22, 4, v20
        v_and_b32 v23, 1, v21
        v_lshrrev_b32 v24, 1, v21
        v_lshl_add_u32 v25, v24, 8, v22
        v_lshl_add_u32 v{ost}, v23, 14, v25
        v_mul_u32_u24 v26, {k48}, v23
        v_add_u32 v{h1}, v26, v25
        v_mul_u32_u24 v26, {k48}, v21
        v_add_u32 v26, v26, v22
        v_add_u32 v{h2}, 512, v26
        s_lshl_b32 s59, s{w}, 13
        s_add_u32 s59, s59, 65536
        v_add_u32 v{red}, s59, v{l16}
        v_lshrrev_b32 v26, 3, v{lane}
        v_and_b32 v27, 7, v{lane}
        v_lshlrev_b32 v27, 2, v27
        v_lshl_add_u32 v{pa}, v26, 8, v27
        v_lshlrev_b32 v{pb}, 2, v{lane}
        s_cmp_eq_u32 s{w}, 1
        s_cselect_b32 s59, 16, 0
        v_cmp_gt_u32 vcc, s59, v{lane}
        v_mov_b32 v27, 0x7ffffff0
        v_cndmask_b32 v{pa}, v27, v{pa}, vcc
        v_cndmask_b32 v{pb}, v27, v{pb}, vcc
        v_cndmask_b32 v{ph}, v27, v{ph}, vcc
        v_lshlrev_b32 v{out}, 7, v{lane}
        v_cmp_gt_u32 vcc, 16, v{lane}
        v_cndmask_b32 v{out}, v27, v{out}, vcc
        v_mov_b32 v{one}, 1
        """.format(lane=vLane, lo=vLO, l16=vL16, ost=vOst, h1=vH1, h2=vH2, red=vRed, pa=vPollA, pb=vPollB, ph=vPollH, out=vOut, one=vOne, w=sW, k48=48 * KB))
        s("""
        s_lshl_b32 s59, s{w}, 11
        s_add_u32 s59, s59, {stp}
        v_lshlrev_b32 v26, 10, v24
        v_lshl_add_u32 v26, v23, 6, v26
        v_lshl_add_u32 v26, v20, 2, v26
        v_add_u32 v{sr}, s59, v26
        """.format(w=sW, stp=STP, sr=vStatR))
        s("""
        s_lshl_b32 s59, s{w}, 7
        s_lshl_b32 s60, s{w}, 6
        v_lshlrev_b32 v26, 3, v20
        v_lshl_add_u32 v26, v23, 2, v26
        v_add_u32 v26, s59, v26
        v_lshlrev_b32 v27, 2, v20
        v_lshl_add_u32 v27, v23, 8, v27
        v_add_u32 v27, s60, v27
        v_add_u32 v27, 512, v27
        v_cmp_gt_u32 vcc, 2, v21
        v_cndmask_b32 v26, v27, v26, vcc
        v_add_u32 v{sw}, {stf}, v26
        v_lshlrev_b32 v26, 3, v20
        v_add_u32 v{si}, {stf}, v26
        v_lshlrev_b32 v26, 4, v21
        v_add_u32 v{sv}, {stfn}, v26
        s_mul_i32 s59, s{w}, 192
        s_add_u32 s59, s59, {csl}
        v_add_u32 v{cs}, s59, v26
        v_lshlrev_b32 v27, 2, v20
        v_add_u32 v27, s59, v27
        v_add_u32 v{csv}, 128, v27
        """.format(w=sW, sw=vStatW, stf=STF, si=vStI, sv=vStV, stfn=STF + 512, csl=CSL, cs=vCs, csv=vCsV))
        shq, shg = (3, 4) if self.local else (2, 3)
        nq, ng = 4 * (32 >> shq), 4 * (32 >> shg)
        self.pf_n = {"Q": -(-192 * KB // nq // 2048), "W": -(-64 * KB // nq // 2048), "D": -(-176 * KB // nq // 2048), "G": -(-192 * KB // ng // 2048)}
        assert not (self.direct and self.opts.get("pf") == "1")
        (s if self.opts.get("pf") == "1" else (lambda t: None))("""
        s_lshr_b32 s59, s2, 3
        s_lshr_b32 s60, s59, {shq}
        s_lshl_b32 s60, s60, 2
        s_add_u32 s60, s60, s{w}
        s_mul_i32 s61, s{cg}, {k192}
        s_mul_i32 s62, s60, {q6}
        s_add_u32 s{pq}, s61, s62
        s_add_u32 s{pq}, s{pq}, {PQ}
        s_lshl_b32 s61, s{cg}, 16
        s_mul_i32 s62, s60, {w2}
        s_add_u32 s{pw}, s61, s62
        s_add_u32 s{pw}, s{pw}, {PW}
        s_mul_i32 s61, s{cg}, {k176}
        s_mul_i32 s62, s60, {d55}
        s_add_u32 s{pd}, s61, s62
        s_add_u32 s{pd}, s{pd}, {PD}
        s_lshr_b32 s60, s59, {shg}
        s_lshl_b32 s60, s60, 2
        s_add_u32 s60, s60, s{w}
        s_mul_i32 s61, s{cg3}, {k192}
        s_mul_i32 s62, s60, {g12}
        s_add_u32 s{pg}, s61, s62
        s_add_u32 s{pg}, s{pg}, {PG}
        """.format(w=sW, cg=sCG, cg3=sCG3, pq=sPfQ, pw=sPfW, pd=sPfD, pg=sPfG, k192=192 * KB, k176=176 * KB, q6=192 * KB // nq, w2=64 * KB // nq,
                   d55=176 * KB // nq, g12=192 * KB // ng, PQ=PQ, PW=PW, PD=PD, PG=PG, shq=shq, shg=shg))
        s("""
        v_lshlrev_b32 v26, 2, v21
        v_sub_u32 v26, v20, v26
        v_mov_b32 v27, 0xf149f2ca
        v_mov_b32 v28, 0
        """)
        for r in range(4):
            s("v_subrev_u32 v29, %d, v26" % r)
            s("v_cmp_gt_u32 vcc, 8, v29")
            s("v_cndmask_b32 v%d, v27, v28, vcc" % (32 + r))
            s("v_cmp_gt_i32 vcc, -8, v29")
            s("v_cndmask_b32 v%d, v27, v28, vcc" % (36 + r))
            s("v_mov_b32 v%d, v27" % (40 + r))
        s("v_add_u32 v30, %d, v%d" % (BIAS, vL16))
        s.wait_ds()
        s("ds_write_b128 v30, v[32:35]")
        s("ds_write_b128 v30, v[36:39] offset:1024")
        s("ds_write_b128 v30, v[40:43] offset:2048")
        s("""
        s_cmp_eq_u32 s{rb}, 0
        s_cselect_b32 s59, 2, 1
        s_lshl_b32 s59, s59, 10
        v_add_u32 v{b1}, s59, v30
        """.format(rb=sRB, b1=vB1))

    def colsums(self, s, ks, r0=44, first=True):
        single = self.opts.get("single", "1") == "1"
        ks = list(ks)
        R = lambda k: r0 + 4 * (k - ks[0])
        for k in ks:
            r = R(k)
            s("v_add_f32 v%d, v%d, v%d" % (r, r, r + 1))
            s("v_add_f32 v%d, v%d, v%d" % (r + 2, r + 2, r + 3))
            s("v_add_f32 v%d, v%d, v%d" % (r, r, r + 2))
            if not single:
                s("v_add_f32_dpp v%d, v%d, v%d quad_perm:[1,0,3,2] row_mask:0xf bank_mask:0xf" % (r, r, r))
                s("v_add_f32_dpp v%d, v%d, v%d quad_perm:[2,3,0,1] row_mask:0xf bank_mask:0xf" % (r, r, r))
        if single:
            for sw in ("v_permlane16_swap_b32", "v_permlane32_swap_b32"):
                for k in ks:
                    s("v_mov_b32 v%d, v%d" % (R(k) + 1, R(k)))
                for k in ks:
                    s("%s v%d, v%d" % (sw, R(k), R(k) + 1))
                for k in ks:
                    s("v_add_f32 v%d, v%d, v%d" % (R(k), R(k), R(k) + 1))
        a = R(ks[-1]) + 2
        if single:
            s("v_and_b32 v%d, 0xf0, v%d" % (a, vL16))
            s("v_lshrrev_b32 v%d, 2, v%d" % (a, a))
        else:
            s("v_lshrrev_b32 v%d, 6, v%d" % (a, vL16))
            s("v_lshlrev_b32 v%d, 2, v%d" % (a, a))
        s("s_mul_i32 s59, s%d, 192" % sW)
        s("s_add_u32 s59, s59, %d" % CSL)
        s("v_add_u32 v%d, s59, v%d" % (a, a))
        for k in ks:
            s("ds_write_b32 v%d, v%d offset:%d" % (a, R(k), (k // 3) * 768 + (k % 3) * 64))
        if first:
            if not single:
                self.flag_vec(s)
            s("v_mov_b32 v%d, v%d" % (vFlag, self.vflag_tmp))

    vflag_tmp = 87

    def flag_vec(self, s):
        s("s_cmp_eq_u32 s%d, 0" % sW)
        s("s_cselect_b32 s59, 1, 0")
        s("v_cmp_gt_u32 vcc, s59, v%d" % vLane)
        s("v_mov_b32 v27, 0x7ffffff0")
        s("v_cndmask_b32 v%d, v27, 0, vcc" % self.vflag_tmp)
        s("v_mov_b32 v60, v%d" % self.vflag_tmp)

    def global_issue(self, s):
        s("""
        s_mul_i32 s58, s{cg}, 12
        v_add_u32 v89, s58, v{lane}
        v_subrev_u32 v90, 12, v{lane}
        v_mul_u32_u24 v91, 21846, v90
        v_lshrrev_b32 v91, 16, v91
        v_mul_u32_u24 v92, 3, v91
        v_sub_u32 v92, v90, v92
        s_lshl_b32 s58, s{rb}, 1
        v_add_u32 v92, s58, v92
        v_subrev_u32 v92, 1, v92
        v_max_i32 v92, 0, v92
        v_lshl_add_u32 v92, v91, 6, v92
        v_add_u32 v92, 96, v92
        v_cmp_gt_u32 vcc, 12, v{lane}
        v_cndmask_b32 v89, v92, v89, vcc
        v_lshrrev_b32 v90, 3, v89
        v_and_b32 v89, 7, v89
        v_lshlrev_b32 v89, 2, v89
        v_lshl_add_u32 v89, v90, 7, v89
        s_cmp_eq_u32 s{w}, 1
        s_cselect_b32 s58, 18, 0
        v_cmp_gt_u32 vcc, s58, v{lane}
        v_mov_b32 v90, 0x7ffffff0
        v_cndmask_b32 v89, v90, v89, vcc
        s_cselect_b32 s{m}, 0x3ffff, 0
        s_mov_b32 s{mh}, 0
        s_mov_b32 s{p}, {pfl}
        buffer_load_dword v92, v89, s[8:11], s{p} offen sc1
        """.format(lane=vLane, w=sW, p=sPoll, pfl=PFL, cg=sCG, rb=sRB, m=4, mh=5))

    def global_check(self, s):
        n = self.npoll
        self.npoll += 1
        s("v_cmp_ne_u32 vcc, s%d, v92" % sTag)
        s("s_and_b64 vcc, vcc, s[4:5]")
        s("s_cbranch_vccnz SLOW_%d" % n)
        s("BACK_%d:" % n)
        s("s_barrier")
        self.slow += ["SLOW_%d:" % n, "  s_mov_b32 s%d, 0" % sCnt, "SPIN_%d:" % n,
                      "  buffer_load_dword v92, v89, s[8:11], s%d offen sc1" % sPoll, "  s_waitcnt vmcnt(0)",
                      "  v_cmp_ne_u32 vcc, s%d, v92" % sTag, "  s_nop 1", "  s_and_b64 vcc, vcc, s[4:5]",
                      "  s_cbranch_vccz BACK_%d" % n, "  s_add_u32 s%d, s%d, 1" % (sCnt, sCnt), "  s_cmp_lt_u32 s%d, %d" % (sCnt, POLL_LIMIT),
                      "  s_cbranch_scc1 SPIN_%d" % n, "  s_branch BACK_%d" % n]

    hold = False

    def tick(self, s, bulk=True):
        if self.urgent:
            s.extend(self.urgent.popleft())
            return True
        if bulk and self.bulk and not self.hold:
            s.extend(self.bulk.popleft())
            return True
        return False

    def flush_urgent(self, s):
        while self.urgent:
            s.extend(self.urgent.popleft())

    def burst(self, s, n):
        for _ in range(n):
            self.tick(s)

    @staticmethod
    def cost(ins):
        c = ins.cls
        if c == "valu":
            return 8 if (ins.meta.get("trans") or ins.meta.get("perm")) else 4
        if c in ("vm_ld", "vm_dma", "vm_st"):
            return 8
        if c in ("ds_rd", "ds_wr"):
            return 4
        if c == "salu":
            return 2.5
        if c in ("pseudo", "label"):
            return 0 if ins.text in ("@comment", "@mark") or c == "label" else 2
        return 3

    def progressive(self, groups, per_ks):
        for f, g in enumerate(groups):
            g.min_step = max(per_ks * (f // 3 + 1) + 2, int(self.opts.get("pg0", 0)) + int(float(self.opts.get("pgr", 0)) * f))
        return groups

    def clear_min(self):
        for g in self.bulk:
            g.min_step = 0

    def set_hold(self, v):
        def f():
            self.hold = v
        return f

    def delay(self, s, clks):
        n = max(0, int(clks) // 64)
        if n:
            s("s_sleep %d" % n)

    def evs(self, key, default):
        v = self.opts.get(key)
        return tuple(int(x) for x in v.split(",")) if v else default

    def run_mf(self, s, steps, at=None, fill=None, rate=4, ctok=None, fill_from=2, urate=None):
        at = at or {}
        urate = urate or rate
        fill = deque(fill or [])
        ev, cur = deque(), deque()
        last_vm = -rate
        last_tr = -12
        isvm = lambda x: x.cls in ("vm_ld", "vm_dma", "vm_st")
        def mk(x):
            if isinstance(x, Ins):
                return [x]
            if isinstance(x, tuple):
                t = Stream()
                self.mark(t, "chA%d" % x[1])
                t.wait_vm(ctok[x[1]])
                t("s_barrier")
                self.mark(t, "chB%d" % x[1])
                return list(t)
            t = Stream()
            t(x)
            return list(t)
        def push_ev(e):
            if isinstance(e, Stream):
                ev.extend(e)
            else:
                c = Ins("@comment")
                c.meta["c"] = "release"
                c.meta["call"] = e
                ev.append(c)
        def emit_from(q, budget):
            while q:
                c = self.cost(q[0])
                if c > budget and not (budget >= 8 - 1e-9):
                    break
                x = q.popleft()
                s.append(x)
                if x.meta.get("call"):
                    x.meta["call"]()
                budget -= c
                while x.meta.get("glue") and q:
                    x = q.popleft()
                    s.append(x)
                    if x.meta.get("call"):
                        x.meta["call"]()
                if budget <= 0:
                    break
            return budget
        n = len(steps)
        for i, st in enumerate(steps):
            for e in at.get(i, []):
                push_ev(e)
            if i % int(self.opts.get("fstep", 16)) == 0:
                self.fs(s, "mf%d" % i)
            budget = 8.0
            main = [y for x in st for y in mk(x)]
            if any(x.text == "@waitds" and x.meta.get("tok") is not None for x in main):
                while fill:
                    x = fill.popleft()
                    s.append(x)
            for x in main:
                s.append(x)
            for x in main[1:]:
                budget -= self.cost(x)
                if isvm(x):
                    last_vm = i
            if any(x.cls == "ds_rd" for x in main[1:]):
                budget -= 2
            if budget <= 0:
                continue
            if ev:
                had_vm = any(isvm(x) for x in list(ev)[:1])
                budget = emit_from(ev, budget)
                if had_vm:
                    last_vm = i
                if budget <= 0:
                    continue
            if not cur and self.trickle and not self.urgent and i - last_tr >= int(self.opts.get("trate", 24)) and i - last_vm >= 1:
                cur.extend(self.trickle.popleft())
                last_tr = i
            if not cur:
                if self.urgent and i - last_vm >= urate - 1:
                    cur.extend(self.urgent.popleft())
                elif self.bulk and not self.hold and not self.urgent and i - last_vm >= rate - 1 and getattr(self.bulk[0], "min_step", 0) <= i:
                    cur.extend(self.bulk.popleft())
            while cur and budget > 0:
                x = cur[0]
                c = self.cost(x)
                if isvm(x):
                    if budget < 8 or i - last_vm < min(rate, urate):
                        break
                    last_vm = i
                elif c > budget:
                    break
                s.append(cur.popleft())
                budget -= c
            if fill and fill[0].meta.get("until") is not None:
                fill_from = max(fill_from, fill.popleft().meta["until"])
            if fill and fill[0].meta.get("pause"):
                fill_from = i + fill.popleft().meta["pause"]
            if i >= fill_from and fill and budget > 0:
                part = deque()
                while fill and not fill[0].meta.get("pause") and fill[0].meta.get("until") is None and len(part) < 4:
                    part.append(fill.popleft())
                budget = emit_from(part, budget)
                while part:
                    fill.appendleft(part.pop())
        for e in at.get(n, []):
            push_ev(e)
        for q in (cur, ev, fill):
            while q:
                x = q.popleft()
                s.append(x)
                if x.meta.get("call"):
                    x.meta["call"]()

    def weave(self, s, epi, every=13):
        k = 0
        for ins in epi:
            s.append(ins)
            if ins.cls in ("valu", "mfma"):
                k += 1
                if k >= every:
                    if self.tick(s):
                        k = 0

    def split_tile(self, A):
        groups = A[0]
        nsub = (len(groups) - 2) // 4
        nh = 2 * nsub + 2
        return groups[:nh], groups[nh:]

    def cs_loads_to(self, s, cg, base, r0, vaddr):
        s("s_lshl_b32 s58, s%d, 2" % cg)
        s("s_add_u32 s58, s58, s%d" % sW)
        s("s_mul_i32 s59, s58, 3072")
        s("s_add_u32 s59, s59, %d" % base)
        for k in range(3):
            for j in range(4):
                s("buffer_load_dword v%d, v%d, s[8:11], s59 offen offset:%d" % (r0 + 4 * k + j, vaddr, k * 1024 + j * 64))

    def global_check2(self):
        n = self.npoll
        self.npoll += 1
        t = Stream()
        r = RING + 12
        t("v_cmp_ne_u32 vcc, s%d, v%d" % (sTag, r))
        t("s_and_b64 vcc, vcc, s[4:5]")
        t("s_cbranch_vccnz SLOW_%d" % n).meta["glue"] = True
        t("BACK_%d:" % n).meta["glue"] = True
        t("s_barrier")
        self.slow += ["SLOW_%d:" % n, "  s_mov_b32 s%d, 0" % sCnt, "SPIN_%d:" % n,
                      "  buffer_load_dword v%d, v%d, s[8:11], s%d offen sc1" % (r, RING + 16, sPoll2), "  s_waitcnt vmcnt(0)",
                      "  v_cmp_ne_u32 vcc, s%d, v%d" % (sTag, r), "  s_nop 1", "  s_and_b64 vcc, vcc, s[4:5]",
                      "  s_cbranch_vccz BACK_%d" % n, "  s_add_u32 s%d, s%d, 1" % (sCnt, sCnt), "  s_cmp_lt_u32 s%d, %d" % (sCnt, POLL_LIMIT),
                      "  s_cbranch_scc1 SPIN_%d" % n, "  s_branch BACK_%d" % n]
        return t

    def seg13(self, s, phase, p, h, A, at, urate=None, raw_stats=False):
        groups, stok, ctok = A
        st = Stream()
        if raw_stats:
            return self.seg13_raw(s, phase, p, h, A, at)
        self.stats_reduce(st, h, stok)
        if getattr(self, "extra_fill", None) is not None:
            st.extend(self.extra_fill)
            self.extra_fill = None
        pre, steps = self.mf13(phase, h)
        if urate:
            s.extend(st)
            st = Stream()
        for x in pre:
            if isinstance(x, tuple):
                s.wait_vm(ctok[x[1]])
                s("s_barrier")
            else:
                s(x)
        self.run_mf(s, steps, at=at, fill=list(st), ctok=ctok, fill_from=int(self.opts.get("fillfrom", 6)), urate=(urate or int(self.opts.get("ur", 4))), rate=(urate or int(self.opts.get("br", 4))))
        s("s_barrier")

    def seg13_raw(self, s, phase, p, h, A, at):
        import direct
        groups, stok, ctok = A
        self.stat_tok = Tok("unused")
        saved = self.epi_pref
        pref = saved(phase, h)
        self.epi_pref = lambda *a: {}
        pre, steps = self.mf13(phase, h)
        self.epi_pref = saved
        chunk_step = {0: 0}
        for i, stp in enumerate(steps):
            for x in stp:
                if isinstance(x, tuple):
                    chunk_step[x[1]] = i
        SA, T0, ADR, ONE = RING, RING + 24, RING + 2, RING + 3
        st = Stream()
        st("s_lshl_b32 s58, s%d, 14" % sW)
        st("s_add_u32 s58, s58, %d" % REG[h])
        st("v_add_u32 v%d, s58, v%d" % (ADR, vL16))
        st("v_mov_b32 v%d, 0x3f803f80" % ONE)
        st("v_mov_b32 v%d, 0" % SA)
        st("v_mov_b32 v%d, 0" % (SA + 1))
        for c in range(4):
            u = Ins("@comment")
            u.meta["c"] = "until chunk %d" % c
            u.meta["until"] = chunk_step[c] + 2
            st.append(u)
            for j in range(4):
                st("ds_read_b128 %s, v%d offset:%d" % (V(T0 + 4 * j, 4), ADR, (4 * c + j) * 1024))
            self.pause(st, 6)
            for j in range(4):
                st.extend(direct.stats_dots(SA, T0 + 4 * j, ONE))
        for x in pre:
            if isinstance(x, tuple):
                s.wait_vm(ctok[x[1]])
                s("s_barrier")
            else:
                s(x)
        self.run_mf(s, steps, at=at, fill=list(st), ctok=ctok, fill_from=1)
        tok = direct.stats_final(self, s, h, SA)
        s.wait_ds(tok)
        s("s_barrier")
        for n in sorted(pref):
            if n != 37:
                for x in pref[n]:
                    s(x)

    def check_order(self, s):
        done = set()
        for ins in s:
            if ins.meta.get("checked"):
                done.add(ins.meta["checked"])
            k = ins.meta.get("dep")
            if k is not None:
                assert k in done, "load issued before its dependency was checked: %s %s" % (k, ins.text)

    def check_weights(self, s):
        if self.opts.get("nob"):
            return
        cur = {}
        for ins in s:
            if ins.meta.get("bname"):
                cur[ins.ops[0]] = ins.meta["bname"]
            if ins.meta.get("bname2"):
                cur[ins.meta["bname2"][1]] = ins.meta["bname2"][0]
            if ins.cls == "mfma" and ins.meta.get("need"):
                reg, name = ins.meta["need"]
                assert cur.get(reg) == name, "weights %s expected in %s, found %s" % (name, reg, cur.get(reg))

    def gen(self):
        s = Stream()
        self.urgent, self.bulk, self.trickle = deque(), deque(), deque()
        o = self.opts
        if self.direct:
            import direct
            if self.prof:
                s("s_memrealtime s[100:101]")
                s("s_memtime s[98:99]")
                s("s_waitcnt lgkmcnt(0)")
                s("s_mov_b32 s94, s100")
                s("s_mov_b32 s68, s98")
            direct.entry(self, s, self.codepf(sW))
            self.pro_rest(s)
        else:
            self.prologue(s)
        if self.prof and self.opts.get("single", "1") != "1":
            s("s_memrealtime s[100:101]")
            s("s_waitcnt lgkmcnt(0)")
            s("s_mov_b32 s94, s100")
        self.ts(s, "start")
        if self.prof == 5:
            for k in range(2, 24):
                s("s_mov_b32 s%d, 0" % (sTS + k))
        s("""
        s_lshl_b32 s{kw1}, s{w}, 10
        s_add_u32 s{a1hw}, s{a1h}, s{kw1}
        s_add_u32 s{a1mw}, s{a1m}, s{kw1}
        s_add_u32 s{a3w}, s{a3}, s{kw1}
        """.format(kw1=sKw1, w=sW, a1hw=sA1hw, a1h=sA1h, a1mw=sA1mw, a1m=sA1m, a3w=sA3w, a3=sA3))
        A = {}
        single = self.opts.get("single", "1") == "1"
        if single:
            ncpf = 0 if self.opts.get("nocpf") == "1" else int(self.opts.get("cpf", 2))
            def pack_flag(t, base):
                t("s_lshr_b32 s58, s2, 3")
                t("s_lshl_b32 s58, s58, 7")
                t("s_and_b32 s59, s2, 7")
                t("s_lshl_b32 s59, s59, 2")
                t("s_add_u32 s58, s58, s59")
                t("s_add_u32 s%d, s58, %d" % (sT3, base))
            self.prologue2(s)
            s("s_add_u32 s%d, s95, 1" % sTag)
            s("v_mov_b32 v%d, s%d" % (vOne, sTag))
            self.flag_vec(s)
            if self.direct:
                s.extend(self.second_batch)
                self.pack_flag = pack_flag
                s("v_mov_b32 v%d, v%d" % (vFlag, self.vflag_tmp))
                if self.local:
                    s("s_getreg_b32 s%d, hwreg(HW_REG_XCC_ID, 0, 4)" % sXcc)
                    s("s_add_u32 s58, s%d, s%d" % (sXcc, sTag))
                    s("s_add_u32 s58, s58, 1")
                    s("v_mov_b32 v60, s58")
                    s("s_and_b32 s58, s2, 7")
                    s("s_lshl_b32 s58, s58, 7")
                    s("s_lshr_b32 s59, s2, 3")
                    s("s_lshl_b32 s59, s59, 2")
                    s("s_add_u32 s58, s58, s59")
                    s("s_add_u32 s58, s58, %d" % PXC)
                    s("buffer_store_dword v60, v%d, s[8:11], s58 offen sc1" % vFlag)
            else:
                self.global_issue(s)
                self.global_check(s)
            self.ts(s, "gsync")
        else:
            s("s_mov_b32 s%d, 1" % sTag)
        if single and not self.direct:
            s("v_and_b32 v68, 15, v%d" % vLane)
            s("v_lshlrev_b32 v68, 2, v68")
            s("v_lshrrev_b32 v69, 4, v%d" % vLane)
            s("v_lshl_add_u32 v68, v69, 8, v68")
        def cs_loads(cg, base, r0):
            s("s_lshl_b32 s58, s%d, 2" % cg)
            s("s_add_u32 s58, s58, s%d" % sW)
            s("s_mul_i32 s59, s58, 3072")
            s("s_add_u32 s59, s59, %d" % base)
            for k in range(3):
                if single:
                    for j in range(4):
                        s("buffer_load_dword v%d, v68, s[8:11], s59 offen offset:%d" % (r0 + 4 * k + j, k * 1024 + j * 64))
                else:
                    s("buffer_load_dwordx4 %s, v%d, s[8:11], s59 offen offset:%d" % (V(r0 + 4 * k, 4), vL16, k * 1024))
        if self.direct:
            A[(1, 0, 0)] = self.A_first
            A[(1, 0, 1)] = direct.groupsA_raw(self, 1)
        else:
            A[(1, 0, 0)] = self.groupsA_lds(1, 0, 0)
            A[(1, 0, 1)] = self.groupsA_lds(1, 0, 1)
        if self.direct:
            pass
        elif single:
            head, tail = self.split_tile(A[(1, 0, 0)])
            for g in head:
                s.extend(g)
            cs_loads(sCG, CSQ, RING + 32)
            nq = int(self.opts.get("nq0", 24))
            for g in self.groupsB(Bx, sBQ, 0, nq):
                s.extend(g)
            self.pack_flag = pack_flag
            if self.opts.get("latefirst", "1") == "1":
                self.late_tok0 = pack.emit_late(s, sW, vL16, (3, 4, 58, 59), DV)
            self.first_tail = tail
            self.q_rest = self.groupsB(Bx, sBQ, nq, 48)
            self.colsums(s, range(3), r0=RING + 32)
        else:
            for g in A[(1, 0, 0)][0]:
                s.extend(g)
            cs_loads(sCG, CSQ, 44)
            cs_loads(sCG3, CSG, 56)
            for g in self.groupsB(Bx, sBQ, 0, 24):
                s.extend(g)
            self.prologue2(s)
            for g in self.groupsB(Bx, sBQ, 24, 30):
                s.extend(g)
            self.colsums(s, range(6))
            self.bulk.extend(self.groupsB(Bx, sBQ, 30, 48))
            self.burst(s, 18)
            self.urgent.extend(A[(1, 0, 1)][0])
        s("s_xor_b32 s%d, s%d, 16384" % (sA2b, sA2))
        self.cs_loads = cs_loads
        self.ts(s, "prolog")
        tok = {}
        U = lambda gs: (lambda: self.urgent.extend(gs))
        def until_issued(gs):
            while any(g is x for g in gs for x in self.urgent):
                s.extend(self.urgent.popleft())
        tails = {(1, 0, 0): [], (1, 0, 1): []}
        for p in range(2):
            last = (p == 1)
            at = {}
            self.urgent.extend(tails[(1, p, 0)])
            if p == 0 and self.direct:
                head1 = list(A[(1, 0, 1)][0])
            elif p == 0 and single:
                q = list(self.q_rest)
                self.urgent.extend(q[:6] + list(self.first_tail[:3]) + q[6:15] + list(self.first_tail[3:]) + q[15:])
                self.urgent.extend(A[(1, 0, 1)][0])
                head1 = list(A[(1, 0, 1)][0])
                if self.opts.get("latefirst", "1") == "1":
                    f2e = Stream()
                    f2e.wait_vm(self.late_tok0)
                    f2e("s_barrier")
                    self.pack_flag(f2e, PFL2)
                    f2e("buffer_store_dword v%d, v%d, s[8:11], s%d offen sc1" % (vOne, vFlag, sT3))
                    at[int(self.opts.get("f2e", 64))] = [f2e]
            elif p == 0:
                self.bulk.extend(self.groupsB(By, sBW, 0, 16))
                self.bulk.extend(self.groupsB(By, sBD, 16, 44))
                head1 = []
            else:
                self.bulk.extend(self.groupsB(By, sBW, 0, 16))
                a, b, c = self.evs("e1E", (48, 96, 127))
                at[a] = [self.ev_sig(4, p - 1, 1, tok[(4, p - 1, 1)])]
                at[b] = [self.ev_poll_issue(1, p, 1)]
                A[(1, p, 1)] = self.groupsA_lds(1, p, 1)
                head1, tails[(1, p, 1)] = self.split_tile(A[(1, p, 1)])
                at[c] = [self.ev_poll_check(1, p, 1), U(head1)]
            if p == 1:
                self.trickle.extend(self.pf(sPfG, 2048 * i) for i in range(self.pf_n["G"]))
            if p == 0 and self.direct:
                direct.first_segment(self, s)
                if self.opts.get("dbgq") == "1":
                    s("s_lshl_b32 s58, s2, 2")
                    s("s_add_u32 s58, s58, s%d" % sW)
                    s("s_mul_i32 s58, s58, %d" % (64 * KB))
                    s("s_add_u32 s58, s58, 0x4000000")
                    for f in range(48):
                        s("buffer_store_dwordx4 %s, v%d, s[8:11], s58 offen" % (Bx(f), vL16))
                        s("s_add_u32 s58, s58, 1024")
                    s("s_lshl_b32 s59, s%d, 14" % sW)
                    s("v_add_u32 v172, s59, v%d" % vL16)
                    for k in range(16):
                        s("ds_read_b128 v[176:179], v172 offset:%d" % (k * 1024))
                        s("buffer_store_dwordx4 v[176:179], v%d, s[8:11], s58 offen" % vL16)
                        s("s_add_u32 s58, s58, 1024")
                        s("s_nop 4")
                for g in head1[:6]:
                    s.extend(g)
                self.urgent.extend(head1[6:])
            else:
                self.seg13(s, 1, p, 0, A[(1, p, 0)], at, urate=(2 if (p == 0 and single) else None))
            self.ts(s, "mf1E.%d" % p)
            if p == 0 and single:
                if self.direct:
                    late_tok = direct.late(self, s, (3, 4, 58, 59))
                    self.stat_tok = Tok("unused")
                    pref = self.epi_pref(1, 0)
                    for n in sorted(pref):
                        if n != 37:
                            for x in pref[n]:
                                s(x)
                elif self.opts.get("latefirst", "1") == "1":
                    late_tok = self.late_tok0
                else:
                    late_tok = pack.emit_late(s, sW, vL16, (3, 4, 58, 59), DV)
                if self.local:
                    if not self.direct:
                        s("s_getreg_b32 s%d, hwreg(HW_REG_XCC_ID, 0, 4)" % sXcc)
                    pi, pc = self.purity()
                    s.extend(pi)
                    self.pur_check = pc
                self.ts(s, "packed")
            e = Stream(); tok[(1, p, 0)] = self.epi1(e, p, 0)
            self.weave(s, e, every=10)
            until_issued(head1)
            if p == 0 and self.local:
                s.extend(self.pur_check)
            self.ts(s, "s1E.%d" % p)
            self.urgent.extend(tails[(1, p, 1)])
            gA = self.groupsA24(2, p, 0)
            a, b, c = self.evs("e1O", (44, 96, 127))
            at = {a: [self.ev_sig(1, p, 0, tok[(1, p, 0)])], b: [self.ev_poll_issue(2, p, 0)],
                  c: [self.ev_poll_check(2, p, 0), U(gA)]}
            if p == 0 and single:
                f2 = Stream()
                f2.wait_vm(late_tok)
                f2("s_barrier")
                self.pack_flag(f2, PFL2)
                f2("buffer_store_dword v%d, v%d, s[8:11], s%d offen sc1" % (vOne, vFlag, sT3))
                g2 = Stream()
                a0, a1, a2 = RING + 16, RING + 17, RING + 18
                g2("v_lshrrev_b32 v%d, 4, v%d" % (a1, vL16))
                g2("s_lshl_b32 s58, s%d, 2" % sCG)
                g2("s_add_u32 s58, s58, %d" % (96 if self.direct else 136))
                g2("v_add_u32 v%d, s58, v%d" % (a0, a1))
                g2("s_lshl_b32 s58, s%d, 4" % sCG3)
                g2("s_sub_u32 s58, s58, 4")
                g2("v_add_u32 v%d, s58, v%d" % (a2, a1))
                g2("v_cmp_lt_u32 vcc, 3, v%d" % a1)
                g2("v_cndmask_b32 v%d, v%d, v%d, vcc" % (a0, a0, a2))
                g2("s_mul_i32 s58, s%d, 11" % sCG)
                g2("s_add_u32 s58, s58, %d" % (108 if self.direct else 148))
                g2("v_add_u32 v%d, s58, v%d" % (a2, a1))
                g2("v_cmp_lt_u32 vcc, 19, v%d" % a1)
                g2("v_cndmask_b32 v%d, v%d, v%d, vcc" % (a0, a0, a2))
                if self.direct:
                    g2("s_mul_i32 s58, s%d, 12" % sCG)
                    g2("s_sub_u32 s58, s58, 31")
                    g2("v_add_u32 v%d, s58, v%d" % (a2, a1))
                    g2("v_cmp_lt_u32 vcc, 30, v%d" % a1)
                    g2("v_cndmask_b32 v%d, v%d, v%d, vcc" % (a0, a0, a2))
                g2("v_lshrrev_b32 v%d, 3, v%d" % (a2, a0))
                g2("v_and_b32 v%d, 7, v%d" % (a0, a0))
                g2("v_lshlrev_b32 v%d, 2, v%d" % (a0, a0))
                g2("v_lshl_add_u32 v%d, v%d, 7, v%d" % (a0, a2, a0))
                g2("s_cmp_eq_u32 s%d, 1" % sW)
                g2("s_cselect_b32 s58, %d, 0" % (43 if self.direct else 31))
                g2("s_cselect_b32 s4, %s, 0" % ("-1" if self.direct else "0x7fffffff"))
                g2("s_cselect_b32 s5, %s, 0" % ("0x7ff" if self.direct else "0"))
                g2("v_cmp_gt_u32 vcc, s58, v%d" % a1)
                g2("v_mov_b32 v%d, 0x7ffffff0" % a2)
                g2("v_cndmask_b32 v%d, v%d, v%d, vcc" % (a0, a2, a0))
                g2("s_mov_b32 s%d, %d" % (sPoll2, PFL2))
                g2("buffer_load_dword v%d, v%d, s[8:11], s%d offen sc1" % (RING + 12, a0, sPoll2))
                c2 = self.global_check2()
                csl = Stream()
                csl("v_and_b32 v%d, 0xf0, v%d" % (DV + 12, vL16))
                csl("v_lshrrev_b32 v%d, 2, v%d" % (DV + 12, DV + 12))
                csl("v_lshrrev_b32 v%d, 8, v%d" % (DV + 13, vL16))
                csl("v_lshl_add_u32 v%d, v%d, 8, v%d" % (DV + 12, DV + 13, DV + 12))
                self.cs_loads_to(csl, sCG3, CSG, DV, DV + 12)
                lf = self.opts.get("latefirst", "1") == "1" and not self.direct
                fa, fb, fc = self.evs("f2", (40, 20, 56) if lf else (40, 88, 125))
                if not lf:
                    at.setdefault(fa, []).append(f2)
                at.setdefault(fb, []).append(g2)
                g_early0 = lf and self.opts.get("prog0", "1") == "1"
                def after_flag2():
                    self.bulk.extend(self.groupsB(By, sBW, 0, 16))
                    if g_early0:
                        self.bulk.extend(self.progressive(self.groupsB(Bx, sBG, 0, 48), 8))
                at.setdefault(fc, []).extend([c2, after_flag2, csl])
                self.cs_reduce = Stream()
                self.colsums(self.cs_reduce, range(3, 6), r0=DV, first=False)
            early_g = (p == 1 or not single) and self.opts.get("prog", "1") == "1"
            early_g0 = p == 0 and single and not self.direct and self.opts.get("latefirst", "1") == "1" and self.opts.get("prog0", "1") == "1"
            if early_g:
                while self.bulk:
                    s.extend(self.bulk.popleft())
                self.bulk.extend(self.progressive(self.groupsB(Bx, sBG, 0, 48), 8))
            self.seg13(s, 1, p, 1, A[(1, p, 1)], at, raw_stats=(p == 0 and self.direct))
            self.ts(s, "mf1O.%d" % p)
            if early_g:
                self.clear_min()
            elif early_g0:
                self.clear_min()
                while self.bulk and any(x.meta.get("bname") == "W" for x in self.bulk[0]):
                    s.extend(self.bulk.popleft())
            else:
                while self.bulk:
                    s.extend(self.bulk.popleft())
                self.bulk.extend(self.groupsB(Bx, sBG, 0, 48))
            e = Stream(); tok[(1, p, 1)] = self.epi1(e, p, 1)
            self.weave(s, e, every=10)
            self.flush_urgent(s)
            self.ts(s, "s1O.%d" % p)
            if p == 0 and single:
                s.extend(self.cs_reduce)
            self.seg24_mf(s, 2, p, 0)
            self.fs(s, "MF")
            bsel = lambda key, d0, d1: int(self.opts.get(key + str(p), d0 if p == 0 and single else d1))
            self.hold = True
            mid = Stream()
            mid.extend(self.ev_sig(1, p, 1, tok[(1, p, 1)]))
            e = Stream(); tok[(2, p, 0)] = self.epi24(e, 2, p, 0, mid=mid)
            self.weave(s, e, every=10)
            s.extend(self.ev_poll_issue(2, p, 1))
            self.fs(s, "EPI")
            self.hold = False
            if self.opts.get("ord2", "0") == "1":
                s.extend(self.ev_poll_check(2, p, 1))
                self.ts(s, "s2E.%d" % p)
                self.urgent.extend(self.groupsA24(2, p, 1))
                self.flush_urgent(s)
                self.fs(s, "Aiss")
                self.burst(s, bsel("b2F", 6, 0))
                s.extend(self.ev_sig(2, p, 0, tok[(2, p, 0)]))
                self.fs(s, "SIG2")
                self.p3_in_mf = int(self.opts.get("i3E", 2))
                if self.p3_in_mf < 0:
                    s.extend(self.ev_poll_issue(3, p, 0, alt=True))
                self.burst(s, bsel("b2O", 8, 0))
            else:
                self.burst(s, bsel("b2F", 6, 0))
                self.fs(s, "PI")
                s.extend(self.ev_sig(2, p, 0, tok[(2, p, 0)]))
                s.extend(self.ev_poll_issue(3, p, 0, alt=True))
                self.fs(s, "SIG2")
                s.extend(self.ev_poll_check(2, p, 1))
                self.ts(s, "s2E.%d" % p)
                self.urgent.extend(self.groupsA24(2, p, 1))
                self.flush_urgent(s)
                self.burst(s, bsel("b2O", 8, 0))
            A[(3, p, 0)] = self.groupsA_lds(3, p, 0)
            head3, tail3 = self.split_tile(A[(3, p, 0)])
            c3 = int(self.opts.get("c3E", 26 if self.opts.get("ord2", "0") == "1" else 0))
            if c3 < 0:
                s.extend(self.ev_poll_check(3, p, 0, alt=True))
                self.urgent.extend(head3)
                self.flush_urgent(s)
                self.seg24_mf(s, 2, p, 1)
            else:
                at3 = {c3: [self.ev_poll_check(3, p, 0, alt=True), U(head3)]}
                if self.opts.get("ord2", "0") == "1" and self.p3_in_mf >= 0:
                    at3.setdefault(self.p3_in_mf, []).insert(0, self.ev_poll_issue(3, p, 0, alt=True))
                self.seg24_mf(s, 2, p, 1, at=at3)
            self.fs(s, "MF")
            self.bulk.extend(self.groupsB(By, sBD, 0, 44 if (p == 0 and single) else 16))
            e = Stream(); tok[(2, p, 1)] = self.epi24(e, 2, p, 1)
            self.weave(s, e, every=5)
            self.fs(s, "EPI")
            until_issued(head3)
            self.ts(s, "s2O.%d" % p)
            self.urgent.extend(tail3)
            A[(3, p, 1)] = self.groupsA_lds(3, p, 1)
            head3, tail3 = self.split_tile(A[(3, p, 1)])
            a, b, c = self.evs("e3E", (48, 108, 150))
            at = {a: [self.ev_sig(2, p, 1, tok[(2, p, 1)])], b: [self.ev_poll_issue(3, p, 1)],
                  c: [self.ev_poll_check(3, p, 1), U(head3)]}
            if not last:
                self.trickle.extend(self.pf(sPfQ, 2048 * i) for i in range(self.pf_n["Q"]))
            self.seg13(s, 3, p, 0, A[(3, p, 0)], at)
            self.ts(s, "mf3E.%d" % p)
            e = Stream(); tok[(3, p, 0)] = self.epi3(e, p, 0)
            self.weave(s, e, every=12)
            until_issued(head3)
            self.ts(s, "s3E.%d" % p)
            self.urgent.extend(tail3)
            gA = self.groupsA24(4, p, 0)
            a, b, c = self.evs("e3O", (64, 120, 160))
            at = {a: [self.ev_sig(3, p, 0, tok[(3, p, 0)])], b: [self.ev_poll_issue(4, p, 0)],
                  c: [self.ev_poll_check(4, p, 0), U(gA)]}
            if not last:
                self.trickle.extend(self.pf(sPfW, 2048 * i) for i in range(self.pf_n["W"]))
            early_q = (not last) and self.opts.get("prog", "1") == "1"
            if early_q:
                self.bulk.extend(self.progressive(self.groupsB(Bx, sBQ, 0, 48), 12))
            self.seg13(s, 3, p, 1, A[(3, p, 1)], at)
            self.ts(s, "mf3O.%d" % p)
            self.flush_urgent(s)
            if early_q:
                self.clear_min()
                while self.bulk and not any(x.meta.get("bname") == "Q" for x in self.bulk[0]):
                    s.extend(self.bulk.popleft())
            else:
                while self.bulk:
                    s.extend(self.bulk.popleft())
                if not last:
                    self.bulk.extend(self.groupsB(Bx, sBQ, 0, 48))
            e = Stream(); tok[(3, p, 1)] = self.epi3(e, p, 1)
            self.weave(s, e, every=12)
            self.ts(s, "s3O.%d" % p)
            a = int(self.opts.get("e4E", 60))
            at = {a: [self.ev_sig(3, p, 1, tok[(3, p, 1)])]}
            at.setdefault(int(self.opts.get("h4", 62)), []).append(self.set_hold(True))
            self.seg24_mf(s, 4, p, 0, at=at)
            self.fs(s, "MF")
            if last:
                s.extend(self.ev_poll_issue(4, p, 1))
            e = Stream(); tok[(4, p, 0)] = self.epi24(e, 4, p, 0)
            self.weave(s, e, every=10)
            ord4 = self.opts.get("ord4", "0") == "1"
            if not last:
                s.extend(self.ev_poll_issue(4, p, 1))
                if not ord4:
                    s.extend(self.ev_sig(4, p, 0, tok[(4, p, 0)]))
                    s.extend(self.ev_poll_issue(1, p + 1, 0, alt=True))
            self.fs(s, "EPI")
            s.extend(self.ev_poll_check(4, p, 1))
            self.hold = False
            self.ts(s, "s4E.%d" % p)
            self.urgent.extend(self.groupsA24(4, p, 1))
            self.flush_urgent(s)
            i1 = int(self.opts.get("i1E", 20))
            if ord4 and not last:
                s.extend(self.ev_sig(4, p, 0, tok[(4, p, 0)]))
                if i1 < 0:
                    s.extend(self.ev_poll_issue(1, p + 1, 0, alt=True))
            at = {}
            head1 = []
            if not last:
                A[(1, p + 1, 0)] = self.groupsA_lds(1, p + 1, 0)
                head1, tails[(1, p + 1, 0)] = self.split_tile(A[(1, p + 1, 0)])
                at = {int(self.opts.get("c1E", 60 if ord4 else 8)): [self.ev_poll_check(1, p + 1, 0, alt=True), U(head1)]}
                if ord4 and i1 >= 0:
                    at.setdefault(i1, []).insert(0, self.ev_poll_issue(1, p + 1, 0, alt=True))
            self.burst(s, int(self.opts.get("b4O", 0)))
            self.seg24_mf(s, 4, p, 1, at=at)
            e = Stream(); tok[(4, p, 1)] = self.epi24(e, 4, p, 1)
            self.weave(s, e, every=5)
            until_issued(head1)
            self.ts(s, "s4O.%d" % p)
        if single:
            s("s_cmp_eq_u32 s2, 0")
            s("s_cbranch_scc0 M_noep")
            s("s_mov_b32 s36, %d" % EPOCH)
            s("buffer_store_dword v%d, v%d, s[8:11], s36 offen" % (vOne, vFlag))
            s("M_noep:")
        if self.prof == 4:
            s = self.resolve_marks(s)
        if self.prof:
            s("s_lshl_b32 s36, s2, 2")
            s("s_add_u32 s36, s36, s%d" % sW)
            s("s_lshl_b32 s36, s36, 8")
            s("s_add_u32 s36, s36, %d" % 0x3000000)
            s("s_memrealtime s[100:101]")
            s("s_waitcnt lgkmcnt(0)")
            s("s_mov_b32 s95, s100")
            s("s_mov_b64 exec, 1")
            for k in (94, 95):
                s("v_mov_b32 v20, s%d" % k)
                s("buffer_store_dword v20, off, s[8:11], s36 offset:%d" % (4 * (62 + k - 94)))
            if self.prof == 2 and self.local:
                for k, r in enumerate((sImp, sXcc)):
                    s("v_mov_b32 v20, s%d" % r)
                    s("buffer_store_dword v20, off, s[8:11], s36 offset:%d" % (4 * (8 + k)))
            if self.prof == 7:
                for k in range(6):
                    s("v_mov_b32 v20, s%d" % (80 + k))
                    s("buffer_store_dword v20, off, s[8:11], s36 offset:%d" % (4 * (8 + k)))
            if self.prof == 5:
                for k in range(16):
                    s("v_mov_b32 v20, s%d" % (sTS + 2 + k))
                    s("buffer_store_dword v20, off, s[8:11], s36 offset:%d" % (4 * (8 + k)))
            for k in range(self.nts):
                s("v_mov_b32 v20, s%d" % (sTS + (2 * k if self.prof in (3, 8) else k)))
                s("buffer_store_dword v20, off, s[8:11], s36 offset:%d" % (4 * k))
            s("s_mov_b64 exec, -1")
        s("s_waitcnt vmcnt(0)")
        self.check_weights(s)
        self.check_order(s)
        pol = self.opts.get("ntA")
        if pol:
            for ins in s:
                if ins.meta.get("dep") is not None and " sc1" in ins.text:
                    ins.text = ins.text.replace(" sc1", " sc1 nt" if pol == "1" else {"2": " nt", "3": ""}[pol])
        if self.opts.get("ntS") == "1":
            for ins in s:
                if ins.cls == "vm_st" and "dwordx4" in ins.text and " sc1" in ins.text:
                    ins.text = ins.text.replace(" sc1", " sc1 nt")
        lines = finalize(s, verbose=False)
        lines.append("M_end:")
        lines.append("  s_endpgm")
        lines += self.slow
        lines.append("M_last:")
        lines.append("  s_endpgm")
        return lines


def gen_main(opts):
    m = Main(opts)
    lines = m.gen()
    if m.prof:
        lines.insert(0, "; timestamps: " + " ".join(m.tsnames))
    return lines, LDS_BYTES
```

```python
from asmlib import *
from layout import *
from collections import deque
import pack

REG = [0, 65536]
MISC = 131072
STP = MISC
STF = MISC + 16384
CSL = STF + 2048
BIAS = CSL + 2048
JUNK = BIAS + 3072
LDS_BYTES = 163840
SCR = [65536, 98304]

vLane, vL16, vLO, vOst, vH1, vH2, vRed, vPollA, vPollB, vOut = 1, 2, 3, 4, 5, 6, 7, 8, 9, 10
vStatR, vStatW, vStI, vStV, vCs, vCsV, vB1, vOne, vP = 11, 12, 13, 14, 15, 16, 17, 18, 19
ACC = 20
FR = 68
RING = 88
TMP = 136
RES = 140
DV = 144

sW, sRB, sCG, sRB3, sCG3 = 16, 17, 18, 19, 20
sA1h, sA1m, sA3, sKw = 21, 22, 23, 24
sSt1, sSt3 = 25, 26
sM2, sM4 = 28, 30
sT, sT2, sT3 = 32, 33, 34
sOdd = 36
sOnes = 38
sCnt = 40
sBQ, sBW, sBG, sBD = 41, 42, 43, 44
sOst, sA2, sRes, sHst = 45, 46, 47, 48
sA4 = 64
sF1, sF3 = 50, 51
sP2, sP3, sP4, sP1a = 52, 53, 54, 55
sOutO = 56
sStO = 57
sK = 96
sTB = 49
sPoll = 35
sA1hw, sA1mw, sA3w, sKw1 = 63, 66, 67, 27
vPollH = 0
vFlag = 1
vL128 = 10
sPfQ, sPfW, sPfG, sPfD = 90, 91, 92, 93
sM16 = 100
sPoll2 = 62
vP2 = 139
sPur = 5
sImp = 7
sXcc = 6
sTag = 61
sA2b = 60
sE, sE2 = 58, 59
sT4 = 3
sTS = 68

LOG2E = 1.4426950408889634
import struct
def fbits(x): return struct.unpack("<I", struct.pack("<f", x))[0]

POLL_LIMIT = 200000


def Bx(f):
    return "a[%d:%d]" % (4 * f, 4 * f + 3)
def By(f):
    if f < 16:
        return "a[%d:%d]" % (192 + 4 * f, 195 + 4 * f)
    return "v[%d:%d]" % (DV + 4 * (f - 16), DV + 4 * (f - 16) + 3)
def V(n, c=1):
    return "v%d" % n if c == 1 else "v[%d:%d]" % (n, n + c - 1)

def flag_off(p, phase, h):
    return FL + ((p * 4 + phase) * 2 + h) * 32 * 256


class Main:
    def __init__(self, opts):
        self.opts = opts
        self.prof = int(opts.get("prof", 0))
        self.local = opts.get("local", "1") == "1" and opts.get("single", "1") == "1"
        self.direct = opts.get("direct", "0") == "1" and opts.get("single", "1") == "1"
        self.slow = []
        self.npoll = 0
        self.nts = 0
        self.nimp = 0
        self.tsnames5 = []
        self.fine_on = False
        self.tsnames = []

    def ts(self, s, name):
        if self.prof == 6:
            if name in ("start", "prolog") or name.startswith(("s1O", "s2O", "s3E", "s3O", "s4O")):
                k = self.nts
                self.nts += 2
                self.tsnames += [name, name + ".rt"]
                s("s_waitcnt lgkmcnt(0)")
                s("s_memtime s[0:1]")
                s("s_waitcnt lgkmcnt(0)")
                s("s_mov_b32 s%d, s0" % (sTS + k))
                s("s_memrealtime s[0:1]")
                s("s_waitcnt lgkmcnt(0)")
                s("s_mov_b32 s%d, s0" % (sTS + k + 1))
            return
        if self.prof == 4:
            self.mark(s, "seg:" + name)
            return
        if self.prof == 3:
            f = self.opts.get("fine", "").split(",")
            if name == f[0]:
                self.fine_on = True
                self.fs(s, "begin:" + name)
            elif name == f[-1] and self.fine_on:
                self.fs(s, "end:" + name)
                self.fine_on = False
            return
        if self.prof == 8:
            return
        if not self.prof or (self.prof in (2, 5, 7) and name not in ("start", "s4O.1", "s4.1.1")):
            return
        if name in ("mf3O.0", "mf1O.0", "mf3E.0", "mf1O.1"):
            return
        if self.direct and name in ("prolog", "mf1E.1", "s1E.1", "s2E.1", "mf3E.1", "s3E.1", "mf3O.1", "s4E.1", "s2E.0", "s4E.0"):
            return
        if name == "start" and self.opts.get("single", "1") == "1":
            self.tsnames += ["entry"]
            self.nts += 1
        k = self.nts
        self.nts += 1
        self.tsnames.append(name)
        assert sTS + k < (85 if self.direct else 94), k
        s("s_waitcnt lgkmcnt(0)")
        s("s_memtime s[0:1]")
        s("s_waitcnt lgkmcnt(0)")
        s("s_mov_b32 s%d, s0" % (sTS + k))

    def fs(self, s, name):
        if self.prof == 4 and self.fine_on and not name.startswith("mf"):
            k = self.nts
            if sTS + k >= 94:
                return
            self.nts += 1
            self.tsnames.append(name)
            s("s_waitcnt lgkmcnt(0)")
            s("s_memtime s[0:1]")
            s("s_waitcnt lgkmcnt(0)")
            s("s_mov_b32 s%d, s0" % (sTS + k)).meta["glue"] = False
            return
        if self.prof != 3 or not self.fine_on:
            return
        k = self.nts
        lim = 84 if self.direct else (90 if self.opts.get("pf") == "1" else 94)
        if sTS + 2 * k + 1 >= (lim if name.startswith("end:") else lim - 2):
            return
        self.nts += 1
        self.tsnames.append(name)
        s.append(Ins("s_memtime s[%d:%d]" % (sTS + 2 * k, sTS + 2 * k + 1), async_=True))

    def pause(self, s, n):
        i = Ins("@comment")
        i.meta["c"] = "pause"
        i.meta["pause"] = n
        s.append(i)

    def rt(self, s, name):
        if self.prof == 8 and name.endswith(self.opts.get("rtp", ".1")) and name.split(".")[0] in self.opts.get("rts", "sig1O,chk2O,sig2E,chk3E,sig2O,chk3O,sig3O,chk4O,sig4E,chk1E").split(","):
            k = self.nts
            if sTS + 2 * k + 1 < 94:
                self.nts += 1
                self.tsnames.append(name)
                i = Ins("s_memtime s[2:3]", async_=True)
                i.text = "s_memrealtime s[%d:%d]" % (sTS + 2 * k, sTS + 2 * k + 1)
                s.append(i)

    def stm(self, phase):
        return " sc1"

    def purity(self):
        a, d = RING + 22, RING + 23
        i = Stream()
        i("v_lshrrev_b32 v%d, 2, v%d" % (a, vL16))
        i("s_and_b32 s58, s2, 7")
        i("s_lshl_b32 s58, s58, 7")
        i("s_add_u32 s%d, s58, %d" % (sPur, PXC))
        i("buffer_load_dword v%d, v%d, s[8:11], s%d offen sc1" % (d, a, sPur))
        n = self.npoll
        self.npoll += 1
        c = Stream()
        c("s_lshl_b32 s58, s%d, 4" % sTag)
        c("v_xor_b32 v%d, s58, v%d" % (d, d))
        c("v_cmp_le_u32 vcc, 16, v%d" % d)
        c("s_mov_b32 vcc_hi, 0")
        c("s_cbranch_vccnz SLOW_%d" % n).meta["glue"] = True
        c("BACK_%d:" % n)
        c("v_cmp_ne_u32 vcc, s%d, v%d" % (sXcc, d))
        c("s_cmp_lg_u32 vcc_lo, 0")
        c("s_cselect_b32 s58, 1, 0")
        if self.opts.get("impure") == "1":
            c("s_mov_b32 s58, 1")
        c("s_cmp_eq_u32 s%d, 0" % sW)
        c("s_cselect_b32 s%d, s58, 0" % sImp)
        self.slow += ["SLOW_%d:" % n, "  s_mov_b32 s%d, 0" % sCnt, "SPIN_%d:" % n,
                      "  buffer_load_dword v%d, v%d, s[8:11], s%d offen sc1" % (d, a, sPur), "  s_waitcnt vmcnt(0)",
                      "  v_xor_b32 v%d, s58, v%d" % (d, d), "  v_cmp_le_u32 vcc, 16, v%d" % d, "  s_nop 1", "  s_mov_b32 vcc_hi, 0",
                      "  s_cbranch_vccz BACK_%d" % n, "  s_add_u32 s%d, s%d, 1" % (sCnt, sCnt), "  s_cmp_lt_u32 s%d, %d" % (sCnt, POLL_LIMIT),
                      "  s_cbranch_scc1 SPIN_%d" % n, "  s_branch BACK_%d" % n]
        return i, c

    def mark(self, s, name):
        if self.prof == 4:
            i = Ins("@mark")
            i.meta["name"] = name
            s.append(i)

    def resolve_marks(self, s):
        out = Stream()
        f = self.opts.get("fine", "").split(",")
        on = False
        for ins in s:
            if ins.text == "@mark":
                nm = ins.meta["name"]
                if nm == "seg:" + f[0]:
                    on = True
                if on and sTS + self.nts < 94:
                    k = self.nts
                    self.nts += 1
                    self.tsnames.append(nm)
                    out("s_waitcnt lgkmcnt(0)")
                    out("s_memtime s[0:1]")
                    out("s_waitcnt lgkmcnt(0)")
                    out("s_mov_b32 s%d, s0" % (sTS + k))
                if nm == "seg:" + f[-1]:
                    on = False
                continue
            out.append(ins)
        return out

    def poll_issue(self, s, soff, const, vaddr, alt=False):
        vd, sp = (vP2, sPoll2) if alt else (vP, sPoll)
        s("s_add_u32 s%d, s%d, %d" % (sp, soff, const))
        s("buffer_load_dword v%d, v%d, s[8:11], s%d offen sc1" % (vd, vaddr, sp))
        self.mark(s, "pollI")

    def poll_check(self, s, vaddr, mask, alt=False):
        vP, sPoll = (vP2, sPoll2) if alt else (globals()["vP"], globals()["sPoll"])
        n = self.npoll
        self.npoll += 1
        self.mark(s, "chkA")
        s("v_cmp_ne_u32 vcc, s%d, v%d" % (sTag, vP))
        if mask is not None:
            s("s_and_b64 vcc, vcc, s[%d:%d]" % (mask, mask + 1))
        s("s_cbranch_vccnz SLOW_%d" % n).meta["glue"] = True
        s("BACK_%d:" % n).meta["glue"] = True
        s("s_barrier")
        self.mark(s, "chkB")
        t = []
        t.append("SLOW_%d:" % n)
        if self.prof == 5:
            t.append("  s_memtime s[0:1]")
            t.append("  s_waitcnt lgkmcnt(0)")
            t.append("  s_mov_b32 s%d, s0" % (sTS + 2 + n))
            self.tsnames5.append("poll%d" % n)
        t.append("  s_mov_b32 s%d, 0" % sCnt)
        t.append("SPIN_%d:" % n)
        t.append("  buffer_load_dword v%d, v%d, s[8:11], s%d offen sc1" % (vP, vaddr, sPoll))
        t.append("  s_waitcnt vmcnt(0)")
        t.append("  v_cmp_ne_u32 vcc, s%d, v%d" % (sTag, vP))
        t.append("  s_nop 1")
        if mask is not None:
            t.append("  s_and_b64 vcc, vcc, s[%d:%d]" % (mask, mask + 1))
        t.append("  s_cbranch_vccz %s_%d" % ("DONE" if self.prof == 5 else "BACK", n))
        t.append("  s_add_u32 s%d, s%d, 1" % (sCnt, sCnt))
        t.append("  s_cmp_lt_u32 s%d, %d" % (sCnt, POLL_LIMIT))
        t.append("  s_cbranch_scc1 SPIN_%d" % n)
        t.append("  s_branch BACK_%d" % n)
        if self.prof == 5:
            t.append("DONE_%d:" % n)
            t.append("  s_memtime s[0:1]")
            t.append("  s_waitcnt lgkmcnt(0)")
            t.append("  s_sub_u32 s%d, s0, s%d" % (sTS + 2 + n, sTS + 2 + n))
            t.append("  s_branch BACK_%d" % n)
        self.slow += t

    def dep(self, phase, p, h):
        if phase == 1:
            return (sP1a, flag_off(p - 1, 3, h), vPollH, sM16)
        if phase == 2:
            return (sP2, flag_off(p, 0, h), vPollB, sM2)
        if phase == 3:
            return (sP3, flag_off(p, 1, h), vPollA, sM16)
        return (sP4, flag_off(p, 2, h), vPollB, sM4)

    def ev_poll_issue(self, phase, p, h, alt=False):
        t = Stream()
        so, c, va, m = self.dep(phase, p, h)
        self.poll_issue(t, so, c, va, alt)
        return t

    def ev_poll_check(self, phase, p, h, alt=False):
        t = Stream()
        so, c, va, m = self.dep(phase, p, h)
        self.poll_check(t, va, m, alt)
        [x for x in t if x.text == "s_barrier"][-1].meta["checked"] = (phase, p, h)
        self.rt(t, "chk%d%s.%d" % (phase, "EO"[h], p))
        return t

    def ev_sig(self, phase, p, h, tok):
        t = Stream()
        self.sig(t, tok, sF3 if phase == 3 else sF1, flag_off(p, phase - 1, h), local=(self.local and phase != 4))
        self.rt(t, "sig%d%s.%d" % (phase, "EO"[h], p))
        return t

    def sig(self, s, tok, soff, const, local=False):
        self.mark(s, "sigA")
        s.wait_vm(tok)
        self.mark(s, "sigW")
        s("s_barrier")
        self.mark(s, "sigB")
        s("s_add_u32 s%d, s%d, %d" % (sT3, soff, const))
        if not local:
            s("buffer_store_dword v%d, v%d, s[8:11], s%d offen sc1" % (vOne, vFlag, sT3))
            return
        n = self.nimp
        self.nimp += 1
        s("s_cmp_eq_u32 s%d, 1" % sImp)
        s("s_cbranch_scc1 IMP_%d" % n).meta["glue"] = True
        s("buffer_store_dword v%d, v%d, s[8:11], s%d offen" % (vOne, vFlag, sT3)).meta["glue"] = True
        s("IMPB_%d:" % n)
        self.slow += ["IMP_%d:" % n,
                      "  buffer_store_dword v%d, v%d, s[8:11], s%d offen sc1" % (vOne, vFlag, sT3), "  s_branch IMPB_%d" % n]

    def groupsB(self, reg, sbase, lo, hi):
        out = []
        if self.opts.get("nob") == "1" and sbase != sBQ:
            return out
        if self.opts.get("nob") == "2" and sbase == sBG:
            return out
        for f in range(lo, hi):
            g = Stream()
            if f == lo or f % 4 == 0:
                g("s_add_u32 s%d, s%d, %d" % (sTB, sbase, (f // 4) * 4096))
            g("buffer_load_dwordx4 %s, v%d, s[8:11], s%d offen offset:%d" % (reg(f), vL16, sTB, (f % 4) * 1024)).meta["bname"] = \
                {sBQ: "Q", sBW: "W", sBG: "G", sBD: "D"}[sbase]
            out.append(g)
        return out

    def pf(self, sbase, const=0):
        g = Stream()
        if self.opts.get("pf") != "1":
            return g
        g("s_mov_b32 m0, %d" % JUNK)
        g("s_add_u32 s%d, s%d, %d" % (sT, sbase, const))
        g("buffer_load_dword v%d, s[8:11], s%d offen lds" % (vL128, sT))
        return g

    def groupsA_lds(self, phase, p, h):
        if phase == 1:
            srcs = [(sA1hw, 0), (sA1mw, 0), (sA1mw, 16384)]
            xb, st, sst = XB[2 * p], ST[2 * p], sSt1
        else:
            srcs = [(sA3w, i * 16384) for i in range(4)]
            xb, st, sst = XB[2 * p + 1], ST[2 * p + 1], sSt3
        groups, ctok = [], []
        def stats_groups():
            tk = None
            for i in range(2):
                g = Stream()
                g("s_lshl_b32 s%d, s%d, 11" % (sT2, sW))
                g("s_add_u32 m0, s%d, %d" % (sT2, STP + h * 8192))
                g("s_add_u32 s%d, s%d, %d" % (sT, sst, st + h * 131072))
                tk = g.vm("buffer_load_dwordx4 v%d, s[8:11], s%d offen offset:%d sc1 lds" % (vL16, sT, i * 1024))
                if not (phase == 1 and p == 0):
                    g[-1].meta["dep"] = (phase, p, h)
                groups.append(g)
            return tk
        stok = None
        for c in range(4):
            tk = None
            for sub, (sr, cc) in enumerate(srcs):
                g = Stream()
                g("s_add_u32 m0, s%d, %d" % (sKw1, REG[h] + sub * 16384 + c * 4096))
                g("s_add_u32 s%d, s%d, %d" % (sT, sr, xb + h * MB + cc + c * 4096))
                tk = g.vm("buffer_load_dwordx4 v%d, s[8:11], s%d offen sc1 lds" % (vL16, sT))
                if not (phase == 1 and p == 0):
                    g[-1].meta["dep"] = (phase, p, h)
                groups.append(g)
            ctok.append(tk)
            if c == 0:
                stok = stats_groups()
        return groups, stok, ctok

    def frag_seq(self, phase):
        nks = 4 if phase == 2 else 11
        return [(ss, ks) for ss in (1, 0) for ks in range(nks)]

    def ringreg(self, n):
        return RING + 4 * (n % 12)

    def loadA24_one(self, g, phase, p, h, n, st=sT):
        ss, ks = self.frag_seq(phase)[n]
        if phase == 2:
            if ss == 0:
                g("s_add_u32 s%d, s%d, %d" % (st, sA2, OB[p] + h * MB))
            else:
                g("s_add_u32 s%d, s%d, %d" % (st, sA2b, OB[p] + h * MB))
            g("buffer_load_dwordx4 %s, v%d, s[8:11], s%d offen offset:%d sc1" % (V(self.ringreg(n), 4), vL16, st, ks * 1024)).meta["dep"] = (phase, p, h)
        else:
            g("s_add_u32 s%d, s%d, %d" % (st, sA4 + ss, HB[p] + h * 3 * MB + (ks // 4) * 4096))
            g("buffer_load_dwordx4 %s, v%d, s[8:11], s%d offen offset:%d sc1" % (V(self.ringreg(n), 4), vL16, st, (ks % 4) * 1024)).meta["dep"] = (phase, p, h)

    def groupsA24(self, phase, p, h):
        out = []
        for n in range(min(12, len(self.frag_seq(phase)))):
            g = Stream()
            self.loadA24_one(g, phase, p, h, n)
            out.append(g)
        g = Stream()
        if self.direct and phase == 2 and p == 0:
            g("v_and_b32 v%d, 0xf0, v%d" % (RES, vL16))
            g("v_lshlrev_b32 v%d, 7, v%d" % (RES, RES))
            g("v_lshrrev_b32 v%d, 8, v%d" % (RES + 1, vL16))
            g("v_lshl_add_u32 v%d, v%d, 4, v%d" % (RES, RES + 1, RES))
            g("s_add_u32 s%d, s%d, %d" % (sT, sOutO, h * 1024))
            g("buffer_load_dwordx4 %s, v%d, s[88:91], s%d offen" % (V(RES, 4), RES, sT))
        else:
            g("s_add_u32 s%d, s%d, %d" % (sT, sRes, XB[2 * p + (0 if phase == 2 else 1)] + h * MB))
            g("buffer_load_dwordx4 %s, v%d, s[8:11], s%d offen sc1" % (V(RES, 4), vL16, sT))
        out.insert(min(4, len(out)), g)
        return out

    def stats_reduce(self, s, h, stok):
        a = RING
        adr = vStatR
        if h == 1:
            adr = RING + 8
            s("v_add_u32 v%d, 8192, v%d" % (adr, vStatR))
        s.wait_vm(stok)
        for i in range(4):
            s("ds_read2_b32 %s, v%d offset0:%d offset1:%d" % (V(a + 2 * i, 2), adr, 64 * i, 64 * i + 32))
        self.pause(s, 10)
        for (x, y) in ((0, 1), (2, 3), (4, 5), (6, 7), (0, 2), (4, 6), (0, 4)):
            s("v_add_f32 v%d, v%d, v%d" % (a + x, a + x, a + y))
        s("v_mov_b32 v%d, v%d" % (a + 1, a))
        s("v_permlane32_swap_b32 v%d, v%d" % (a, a + 1))
        s("v_add_f32 v%d, v%d, v%d" % (a, a, a + 1))
        s("v_mov_b32 v%d, v%d" % (a + 1, a))
        s("v_permlane16_swap_b32 v%d, v%d" % (a, a + 1))
        s("v_mul_f32 v%d, %s, v%d" % (a, "0x%08x" % fbits(-1.0 / 512), a))
        s("v_mul_f32 v%d, v%d, v%d" % (a + 2, a, a))
        s("v_fma_f32 v%d, v%d, s%d, -v%d" % (a + 1, a + 1, sK, a + 2))
        s("v_max_f32 v%d, 0, v%d" % (a + 1, a + 1))
        s("v_add_f32 v%d, s%d, v%d" % (a + 1, sK + 1, a + 1))
        s("v_rsq_f32 v%d, v%d" % (a + 1, a + 1))
        s("v_cndmask_b32 v%d, v%d, v%d, s[%d:%d]" % (a, a, a + 1, sOdd, sOdd + 1))
        self.stat_tok = Tok("statw")
        s("ds_write_b32 v%d, v%d offset:%d" % (vStatW, a, h * 1024), tok=self.stat_tok)

    def epi_pref(self, phase, h):
        hoff = h * 1024
        pub = Stream()
        pub.wait_ds(self.stat_tok)
        pub("s_barrier")
        if phase == 3:
            return {58: list(pub), 60: ["ds_read_b128 %s, v%d offset:768" % (V(68, 4), vCs)],
                    61: ["ds_read_b128 %s, v%d offset:832" % (V(72, 4), vCs)],
                    62: ["ds_read_b128 %s, v%d offset:896" % (V(76, 4), vCs)],
                    63: ["ds_read_b64 %s, v%d offset:%d" % (V(80, 2), vStI, hoff)]}
        return {37: list(pub), 38: ["ds_read_b128 %s, v%d offset:%d" % (V(52, 4), vStV, hoff)],
                39: ["ds_read_b128 %s, v%d offset:%d" % (V(56, 4), vStV, hoff + 256)],
                40: ["ds_read_b128 %s, v%d offset:%d" % (V(60, 4), vStV, hoff + 64)],
                41: ["ds_read_b128 %s, v%d offset:%d" % (V(64, 4), vStV, hoff + 256 + 64)],
                43: ["ds_read_b128 %s, v%d offset:64" % (V(80, 4), vCs)],
                44: ["ds_read_b32 v84, v%d" % vCsV],
                45: ["ds_read_b64 %s, v%d offset:%d" % (V(68, 2), vStI, hoff), "ds_read_b64 %s, v%d offset:%d" % (V(70, 2), vStI, hoff + 128)],
                46: ["ds_read_b64 %s, v%d offset:%d" % (V(72, 2), vStI, hoff + 256)],
                47: ["ds_read_b128 %s, v%d offset:0" % (V(76, 4), vCs)]}

    def mf13(self, phase, h):
        base = vL16 if h == 0 else vLO
        nsub = 3 if phase == 1 else 4
        nfr = 16 * nsub
        def rd(n):
            ks, sub = divmod(n, nsub)
            out = []
            if sub == 0 and ks % 4 == 0:
                out.append(("chunk", ks // 4))
            out.append("ds_read_b128 %s, v%d offset:%d" % (V(FR + 4 * (n % 5), 4), base, sub * 16384 + ks * 1024))
            return out
        pre = [x for n in range(5) for x in rd(n)]
        pref = self.epi_pref(phase, h)
        steps = []
        mm = "v_mfma_f32_16x16x32_bf16"
        Q = [None, ACC, ACC + 4]
        K = [ACC + 8, ACC + 12, ACC + 16]
        Vv = [ACC + 20, ACC + 24, ACC + 28]
        for ks in range(16):
            c = (lambda r: "0" if ks == 0 else V(r, 4))
            for sub in range(nsub):
                n = nsub * ks + sub
                x = V(FR + 4 * (n % 5), 4)
                grp = []
                if phase == 1:
                    if sub > 0:
                        grp.append("%s %s, %s, %s, %s" % (mm, V(Q[sub], 4), Bx(3 * ks), x, c(Q[sub])))
                    grp.append("%s %s, %s, %s, %s" % (mm, V(K[sub], 4), Bx(3 * ks + 1), x, c(K[sub])))
                    grp.append("%s %s, %s, %s, %s" % (mm, V(Vv[sub], 4), x, Bx(3 * ks + 2), c(Vv[sub])))
                else:
                    for j in range(3):
                        r = ACC + 12 * sub + 4 * j
                        grp.append("%s %s, %s, %s, %s" % (mm, V(r, 4), Bx(3 * ks + j), x, c(r)))
                for i, m in enumerate(grp):
                    bop = [o.strip() for o in m.split(",") if o.strip().startswith("a[")][0]
                    st = [Ins(m, need=(bop, "Q" if phase == 1 else "G"))]
                    if i == len(grp) - 1 and n + 5 < nfr:
                        st += rd(n + 5)
                    if i == len(grp) - 1:
                        st += pref.get(n, [])
                    steps.append(st)
        return pre, steps

    def mf24(self, phase, p, h):
        seq = self.frag_seq(phase)
        steps = []
        for n, (ss, ks) in enumerate(seq):
            x = V(self.ringreg(n), 4)
            for jj in range(4):
                r = ACC + 16 * ss + 4 * jj
                st = [Ins("v_mfma_f32_16x16x32_bf16 %s, %s, %s, %s" % (V(r, 4), By(4 * ks + jj), x, "0" if ks == 0 else V(r, 4)),
                          need=(By(4 * ks + jj), "W" if phase == 2 else "D"))]
                if n + 12 < len(seq):
                    t = Stream()
                    self.loadA24_one(t, phase, p, h, n + 12, sT4)
                    if jj == 2:
                        st.append(t[0])
                    if jj == 3:
                        st.append(t[1])
                steps.append(st)
        return steps, 2 * len(seq)

    def red_writes(self, xs, h):
        t = Stream()
        so = SCR[h] - 65536
        for x in xs:
            t("v_xor_b32 v%d, %d, v%d" % (TMP + x - 1, x << 13, vRed))
        for x in xs:
            for jl in range(2):
                t("ds_write_b128 v%d, %s offset:%d" % (TMP + x - 1, V(ACC + 8 * x + 4 * jl, 4), so + x * 2048 + jl * 1024))
        return t

    def seg24_mf(self, s, phase, p, h, at=None):
        steps, half = self.mf24(phase, p, h)
        at = dict(at or {})
        w = self.red_writes((2, 3), h)
        at.setdefault(half + 9, []).insert(0, w)
        self.run_mf(s, steps, at=at)

    def epi1(self, s, p, h):
        Q = [None, ACC, ACC + 4]
        K = [ACC + 8, ACC + 12, ACC + 16]
        Vv = [ACC + 20, ACC + 24, ACC + 28]
        SP = [None, 52, 60]
        SC = [None, 56, 64]
        st = [68, 70, 72]
        csq, csk, csv, cq = 76, 80, 84, 86
        hoff = h * 1024
        NM = [52, 60, 52]
        RS = [56, 64, 56]
        def rdv(sub):
            s("ds_read_b128 %s, v%d offset:%d" % (V(NM[sub], 4), vStV, hoff + sub * 64))
            s("ds_read_b128 %s, v%d offset:%d" % (V(RS[sub], 4), vStV, hoff + 256 + sub * 64))
        bc0 = "op_sel_hi:[0,1,1]"
        for sub in (1, 2):
            for hh in (0, 2):
                s("v_pk_fma_f32 %s, %s, %s, %s %s" % (V(Q[sub] + hh, 2), V(st[sub], 2), V(csq + hh, 2), V(Q[sub] + hh, 2), bc0))
            s("v_mul_f32 v%d, s%d, v%d" % (cq, sK + 2, st[sub] + 1))
            for hh in (0, 2):
                s("v_pk_mul_f32 %s, %s, %s op_sel_hi:[1,0]" % (V(Q[sub] + hh, 2), V(Q[sub] + hh, 2), V(cq, 2)))
            s("v_cvt_pk_bf16_f32 v%d, v%d, v%d" % (Q[sub], Q[sub], Q[sub] + 1))
            s("v_cvt_pk_bf16_f32 v%d, v%d, v%d" % (Q[sub] + 1, Q[sub] + 2, Q[sub] + 3))
        for sub in range(3):
            for hh in (0, 2):
                s("v_pk_fma_f32 %s, %s, %s, %s %s" % (V(K[sub] + hh, 2), V(st[sub], 2), V(csk + hh, 2), V(K[sub] + hh, 2), bc0))
            for hh in (0, 2):
                s("v_pk_mul_f32 %s, %s, %s op_sel:[0,1] op_sel_hi:[1,1]" % (V(K[sub] + hh, 2), V(K[sub] + hh, 2), V(st[sub], 2)))
            s("v_cvt_pk_bf16_f32 v%d, v%d, v%d" % (K[sub], K[sub], K[sub] + 1))
            s("v_cvt_pk_bf16_f32 v%d, v%d, v%d" % (K[sub] + 1, K[sub] + 2, K[sub] + 3))
        bp1, bp, bc = 68, 72, 76
        s("v_add_u32 v%d, %d, v%d" % (TMP + 2, BIAS, vL16))
        s("ds_read_b128 %s, v%d" % (V(bp1, 4), vB1))
        s("ds_read_b128 %s, v%d offset:1024" % (V(bp, 4), TMP + 2))
        s("ds_read_b128 %s, v%d offset:0" % (V(bc, 4), TMP + 2))
        for sub in range(3):
            for hh in (0, 2):
                s("v_pk_fma_f32 %s, %s, %s, %s op_sel_hi:[1,0,1]" % (V(Vv[sub] + hh, 2), V(NM[sub] + hh, 2), V(csv, 2), V(Vv[sub] + hh, 2)))
            for hh in (0, 2):
                s("v_pk_mul_f32 %s, %s, %s" % (V(Vv[sub] + hh, 2), V(Vv[sub] + hh, 2), V(RS[sub] + hh, 2)))
            if sub == 0:
                rdv(2)
            s("v_cvt_pk_bf16_f32 v%d, v%d, v%d" % (Vv[sub], Vv[sub], Vv[sub] + 1))
            s("v_cvt_pk_bf16_f32 v%d, v%d, v%d" % (Vv[sub] + 1, Vv[sub] + 2, Vv[sub] + 3))
        mm = "v_mfma_f32_16x16x16_bf16"
        s("%s %s, %s, %s, %s" % (mm, V(SP[1], 4), V(K[0], 2), V(Q[1], 2), V(bp1, 4)))
        s("%s %s, %s, %s, %s" % (mm, V(SC[1], 4), V(K[1], 2), V(Q[1], 2), V(bc, 4)))
        s("%s %s, %s, %s, %s" % (mm, V(SP[2], 4), V(K[1], 2), V(Q[2], 2), V(bp, 4)))
        s("%s %s, %s, %s, %s" % (mm, V(SC[2], 4), V(K[2], 2), V(Q[2], 2), V(bc, 4)))
        m = {1: 80, 2: 84}
        l = {1: 82, 2: 86}
        for sub in (1, 2):
            a, b = SP[sub], SC[sub]
            s("v_max3_f32 v%d, v%d, v%d, v%d" % (m[sub], a, a + 1, a + 2))
            s("v_max3_f32 v%d, v%d, v%d, v%d" % (m[sub] + 1, a + 3, b, b + 1))
            s("v_max3_f32 v%d, v%d, v%d, v%d" % (m[sub], m[sub], b + 2, b + 3))
            s("v_max_f32 v%d, v%d, v%d" % (m[sub], m[sub], m[sub] + 1))
        for sw in ("v_permlane16_swap_b32", "v_permlane32_swap_b32"):
            for sub in (1, 2):
                s("v_mov_b32 v%d, v%d" % (m[sub] + 1, m[sub]))
            for sub in (1, 2):
                s("%s v%d, v%d" % (sw, m[sub], m[sub] + 1))
            for sub in (1, 2):
                s("v_max_f32 v%d, v%d, v%d" % (m[sub], m[sub], m[sub] + 1))
        for sub in (1, 2):
            for r in (SP[sub], SP[sub] + 2, SC[sub], SC[sub] + 2):
                s("v_pk_add_f32 %s, %s, %s op_sel_hi:[1,0] neg_lo:[0,1] neg_hi:[0,1]" % (V(r, 2), V(r, 2), V(m[sub], 2)))
        for sub in (1, 2):
            for r in range(4):
                s("v_exp_f32 v%d, v%d" % (SP[sub] + r, SP[sub] + r))
                s("v_exp_f32 v%d, v%d" % (SC[sub] + r, SC[sub] + r))
        s("v_mov_b32 v76, 0x3f803f80")
        s("v_mov_b32 v77, 0x3f803f80")
        for sub in (1, 2):
            for r in (SP[sub], SC[sub]):
                s("v_cvt_pk_bf16_f32 v%d, v%d, v%d" % (r, r, r + 1))
                s("v_cvt_pk_bf16_f32 v%d, v%d, v%d" % (r + 1, r + 2, r + 3))
        lq = {1: 80, 2: 84}
        for sub in (1, 2):
            s("%s %s, %s, %s, 0" % (mm, V(lq[sub], 4), V(76, 2), V(SP[sub], 2)))
        for sub in (1, 2):
            s("%s %s, %s, %s, 0" % (mm, V(Q[sub], 4), V(Vv[sub - 1], 2), V(SP[sub], 2)))
        for sub in (1, 2):
            s("%s %s, %s, %s, %s" % (mm, V(lq[sub], 4), V(76, 2), V(SC[sub], 2), V(lq[sub], 4)))
        for sub in (1, 2):
            s("%s %s, %s, %s, %s" % (mm, V(Q[sub], 4), V(Vv[sub], 2), V(SC[sub], 2), V(Q[sub], 4)))
        l = lq
        for sub in (1, 2):
            s("v_rcp_f32 v%d, v%d" % (l[sub], l[sub]))
        for sub in (1, 2):
            for hh in (0, 2):
                s("v_pk_mul_f32 %s, %s, %s op_sel_hi:[1,0]" % (V(Q[sub] + hh, 2), V(Q[sub] + hh, 2), V(l[sub], 2)))
        o = ACC
        s("v_cvt_pk_bf16_f32 v%d, v%d, v%d" % (o, o, o + 1))
        s("v_cvt_pk_bf16_f32 v%d, v%d, v%d" % (o + 1, o + 2, o + 3))
        s("v_cvt_pk_bf16_f32 v%d, v%d, v%d" % (o + 2, o + 4, o + 5))
        s("v_cvt_pk_bf16_f32 v%d, v%d, v%d" % (o + 3, o + 6, o + 7))
        s("v_permlane16_swap_b32 v%d, v%d" % (o, o + 2))
        s("v_permlane16_swap_b32 v%d, v%d" % (o + 1, o + 3))
        s("s_add_u32 s%d, s%d, %d" % (sE, sOst, OB[p] + h * MB))
        return s.vm("buffer_store_dwordx4 %s, v%d, s[8:11], s%d offen%s" % (V(o, 4), vOst, sE, self.stm(1)))

    def epi3(self, s, p, h):
        csG, csU, csM = 68, 72, 76
        stp = [80, 82]
        c1 = 84
        hoff = h * 1024
        bq = TMP
        for sub in range(4):
            G, U, M = ACC + 12 * sub, ACC + 12 * sub + 4, ACC + 12 * sub + 8
            st = stp[sub & 1]
            if sub < 3:
                s("ds_read_b64 %s, v%d offset:%d" % (V(stp[(sub + 1) & 1], 2), vStI, hoff + (sub + 1) * 128))
            for (r, cs) in ((M, csM), (G, csG), (U, csU)):
                for hh in (0, 2):
                    s("v_pk_fma_f32 %s, %s, %s, %s op_sel_hi:[0,1,1]" % (V(r + hh, 2), V(st, 2), V(cs + hh, 2), V(r + hh, 2)))
            s("v_mul_f32 v%d, s%d, v%d" % (c1, sK + 3, st + 1))
            s("v_permlane16_swap_b32 v%d, v%d" % (M, M + 2))
            s("v_permlane16_swap_b32 v%d, v%d" % (M + 1, M + 3))
            gates = (G, G + 2, M)
            ups = (U, U + 2, M + 2)
            for r in gates:
                s("v_pk_mul_f32 %s, %s, %s op_sel_hi:[1,0]" % (V(r, 2), V(r, 2), V(c1, 2)))
            for r in gates:
                s("v_exp_f32 v%d, v%d" % (r, r))
                s("v_exp_f32 v%d, v%d" % (r + 1, r + 1))
            for r in ups:
                s("v_pk_mul_f32 %s, %s, %s op_sel:[0,1] op_sel_hi:[1,1]" % (V(r, 2), V(r, 2), V(st, 2)))
            for r in gates:
                s("v_pk_add_f32 %s, %s, s[%d:%d]" % (V(r, 2), V(r, 2), sOnes, sOnes + 1))
            for r in gates:
                s("v_rcp_f32 v%d, v%d" % (r, r))
                s("v_rcp_f32 v%d, v%d" % (r + 1, r + 1))
            for g, u in zip(gates, ups):
                s("v_pk_mul_f32 %s, %s, %s" % (V(u, 2), V(u, 2), V(g, 2)))
            dst = ACC + 12 * (sub & ~1) + 2 * (sub & 1)
            s("v_cvt_pk_bf16_f32 v%d, v%d, v%d" % (dst, U, U + 1))
            s("v_cvt_pk_bf16_f32 v%d, v%d, v%d" % (dst + 1, U + 2, U + 3))
            s("v_cvt_pk_bf16_f32 v%d, v%d, v%d" % (bq + sub, M + 2, M + 3))
        s("s_add_u32 s%d, s%d, %d" % (sE, sHst, HB[p] + h * 3 * MB))
        for pr in range(2):
            d = ACC + 24 * pr
            s("v_permlane16_swap_b32 v%d, v%d" % (d, d + 2))
            s("v_permlane16_swap_b32 v%d, v%d" % (d + 1, d + 3))
            if pr == 1:
                s("s_add_u32 s%d, s%d, %d" % (sE2, sE, 2 * 48 * KB))
            s.vm("buffer_store_dwordx4 %s, v%d, s[8:11], s%d offen%s" % (V(d, 4), vH1, sE if pr == 0 else sE2, self.stm(3)))
        s("v_permlane16_swap_b32 v%d, v%d" % (bq, bq + 1))
        s("v_permlane16_swap_b32 v%d, v%d" % (bq + 2, bq + 3))
        s("v_permlane32_swap_b32 v%d, v%d" % (bq, bq + 2))
        s("v_permlane32_swap_b32 v%d, v%d" % (bq + 1, bq + 3))
        return s.vm("buffer_store_dwordx4 %s, v%d, s[8:11], s%d offen%s" % (V(bq, 4), vH2, sE, self.stm(3)))

    def epi24(self, s, phase, p, h, sig=None, mid=None):
        so = SCR[h] - 65536
        a = ACC
        s.extend(self.red_writes((1,), h))
        if sig is not None:
            s.wait_vm(sig[3])
        s.wait_ds()
        s("s_barrier")
        if sig is not None:
            s("s_add_u32 s%d, s%d, %d" % (sT3, sF3 if sig[0] == 3 else sF1, flag_off(sig[1], sig[0] - 1, sig[2])))
            s("buffer_store_dword v%d, v%d, s[8:11], s%d offen sc1" % (vOne, vFlag, sT3))
        for x in (1, 2, 3):
            for jl in range(2):
                s("ds_read_b128 %s, v%d offset:%d" % (V(a + 8 * x + 4 * jl, 4), vRed, so + x * 2048 + jl * 1024))
        r = 52
        for i in range(4):
            s("v_lshlrev_b32 v%d, 16, v%d" % (r + 2 * i, RES + i))
            s("v_and_b32 v%d, 0xffff0000, v%d" % (r + 2 * i + 1, RES + i))
        for i in range(4):
            s("v_pk_add_f32 %s, %s, %s" % (V(a + 2 * i, 2), V(a + 2 * i, 2), V(r + 2 * i, 2)))
        for x in (1, 2, 3):
            for i in range(4):
                s("v_pk_add_f32 %s, %s, %s" % (V(a + 2 * i, 2), V(a + 2 * i, 2), V(a + 8 * x + 2 * i, 2)))
        o = 60
        for i in range(4):
            s("v_cvt_pk_bf16_f32 v%d, v%d, v%d" % (o + i, a + 2 * i, a + 2 * i + 1))
        final = (phase == 4 and p == 1)
        if final:
            s("s_add_u32 s%d, s%d, %d" % (sE, sOutO, h * 1024))
            s("v_and_b32 v52, 0xf0, v%d" % vL16)
            s("v_lshlrev_b32 v52, 7, v52")
            s("v_lshrrev_b32 v53, 8, v%d" % vL16)
            s("v_lshl_add_u32 v52, v53, 4, v52")
            tk = s.vm("buffer_store_dwordx4 %s, v52, s[12:15], s%d offen%s" % (V(o, 4), sE, {"0": "", "1": " sc1", "2": " nt"}[self.opts.get("outsc", "1")]))
            if mid is not None:
                s.extend(mid)
            return tk
        xi = 2 * p + (1 if phase == 2 else 2)
        s("s_add_u32 s%d, s%d, %d" % (sE, sRes, XB[xi] + h * MB))
        s.vm("buffer_store_dwordx4 %s, v%d, s[8:11], s%d offen%s" % (V(o, 4), vL16, sE, self.stm(phase)))
        if mid is not None:
            s.extend(mid)
        u = 52
        s("v_pk_add_f32 %s, %s, %s" % (V(u, 2), V(a, 2), V(a + 2, 2)))
        s("v_pk_add_f32 %s, %s, %s" % (V(u + 2, 2), V(a + 4, 2), V(a + 6, 2)))
        s("v_pk_mul_f32 %s, %s, %s" % (V(u + 4, 2), V(a, 2), V(a, 2)))
        s("v_pk_add_f32 %s, %s, %s" % (V(u, 2), V(u, 2), V(u + 2, 2)))
        for i in (1, 2, 3):
            s("v_pk_fma_f32 %s, %s, %s, %s" % (V(u + 4, 2), V(a + 2 * i, 2), V(a + 2 * i, 2), V(u + 4, 2)))
        s("v_add_f32 v%d, v%d, v%d" % (u, u, u + 1))
        s("v_add_f32 v%d, v%d, v%d" % (u + 1, u + 4, u + 5))
        s("v_permlane16_swap_b32 v%d, v%d" % (u, u + 1))
        s("v_add_f32 v%d, v%d, v%d" % (u, u, u + 1))
        s("v_mov_b32 v%d, v%d" % (u + 1, u))
        s("v_permlane32_swap_b32 v%d, v%d" % (u, u + 1))
        s("v_add_f32 v%d, v%d, v%d" % (u, u, u + 1))
        s("s_add_u32 s%d, s%d, %d" % (sE, sStO, ST[xi] + h * 131072))
        s("v_lshrrev_b32 v%d, 2, v%d" % (u + 2, vL16))
        s("s_mov_b32 exec_hi, 0")
        tok = s.vm("buffer_store_dword v%d, v%d, s[8:11], s%d offen%s" % (u, u + 2, sE, self.stm(phase)))
        s("s_mov_b32 exec_hi, -1")
        return tok

    def codepf(self, sw=16):
        if self.opts.get("nocpf") == "1":
            return ""
        n = int(self.opts.get("cpf", 2))
        t = ["s_getpc_b64 s[56:57]", "M_pc:", "s_lshl_b32 s58, s%d, 13" % sw, "v_lshlrev_b32 v128, 7, v1", "v_add_u32 v128, s58, v128"]
        for i in range(n):
            t.append("v_min_u32 v129, M_last-M_pc, v128")
            t.append("global_load_dword v%d, v129, s[56:57]" % (134 + i))
            if i < n - 1:
                t.append("v_add_u32 v128, 0x8000, v128")
        return "\n".join(t)

    def pro_ids(self, s, t):
        s("""
        v_lshrrev_b32 v20, 6, v0
        v_and_b32 v%d, 63, v0
        v_readfirstlane_b32 s%d, v20
        v_lshlrev_b32 v%d, 4, v%d
        s_and_b32 s32, s2, 7
        s_lshr_b32 s33, s2, 3
        s_lshr_b32 s34, s32, 1
        s_and_b32 s35, s32, 1
        """ % (vLane, sW, vL16, vLane))
        if self.local:
            s("""
            s_lshl_b32 s{rb}, s32, 2
            s_lshr_b32 s{t}, s33, 3
            s_add_u32 s{rb}, s{rb}, s{t}
            s_and_b32 s{cg}, s33, 7
            s_lshl_b32 s{rb3}, s32, 1
            s_lshr_b32 s{t}, s33, 4
            s_add_u32 s{rb3}, s{rb3}, s{t}
            s_and_b32 s{cg3}, s33, 15
            """.format(rb=sRB, cg=sCG, rb3=sRB3, cg3=sCG3, t=t))
        else:
            s("""
            s_lshl_b32 s{rb}, s34, 3
            s_lshr_b32 s{t}, s33, 2
            s_add_u32 s{rb}, s{rb}, s{t}
            s_lshl_b32 s{cg}, s35, 2
            s_and_b32 s{t}, s33, 3
            s_add_u32 s{cg}, s{cg}, s{t}
            s_lshl_b32 s{rb3}, s34, 2
            s_lshr_b32 s{t}, s33, 3
            s_add_u32 s{rb3}, s{rb3}, s{t}
            s_lshl_b32 s{cg3}, s35, 3
            s_and_b32 s{t}, s33, 7
            s_add_u32 s{cg3}, s{cg3}, s{t}
            """.format(rb=sRB, cg=sCG, rb3=sRB3, cg3=sCG3, t=t))

    def prologue(self, s):
        single = self.opts.get("single", "1") == "1"
        s("""
        s_load_dwordx2 s[4:5], s[0:1], 72
        s_load_dwordx2 s[6:7], s[0:1], 56
        """)
        if not single:
            s("s_cmp_ge_u32 s2, 256")
            s("s_cbranch_scc1 M_end")
        self.pro_ids(s, 36)
        if not single:
            s(self.codepf())
        s("""
        s_waitcnt lgkmcnt(0)
        s_mov_b32 s8, s4
        s_and_b32 s9, s5, 0xffff
        s_mov_b32 s10, 0x10000000
        s_mov_b32 s11, 0x20000
        s_mov_b32 s12, s6
        s_and_b32 s13, s7, 0xffff
        s_mov_b32 s14, 0x200000
        s_mov_b32 s15, 0x20000
        """)
        self.pro_rest(s)

    def pro_rest(self, s):
        s("""
        s_lshl_b32 s36, s{cg}, 2
        s_add_u32 s36, s36, s{w}
        s_mul_i32 s{bq}, s36, {k48}
        s_add_u32 s{bq}, s{bq}, {PQ}
        s_lshl_b32 s{bw}, s36, 14
        s_add_u32 s{bw}, s{bw}, {PW}
        s_mul_i32 s{bd}, s36, {k44}
        s_add_u32 s{bd}, s{bd}, {PD}
        s_lshl_b32 s37, s{cg3}, 2
        s_add_u32 s37, s37, s{w}
        s_mul_i32 s{bg}, s37, {k48}
        s_add_u32 s{bg}, s{bg}, {PG}
        s_lshl_b32 s{kw}, s{w}, 12
        s_lshl_b32 s{a1m}, s{rb}, 15
        s_lshl_b32 s{a3}, s{rb3}, 16
        s_sub_u32 s{a1h}, s{a1m}, 16384
        s_max_i32 s{a1h}, s{a1h}, 0
        """.format(cg=sCG, w=sW, bq=sBQ, bw=sBW, bd=sBD, bg=sBG, cg3=sCG3, kw=sKw, a1m=sA1m, a3=sA3, a1h=sA1h, rb=sRB, rb3=sRB3,
                   k48=48 * KB, k44=44 * KB, PQ=PQ, PW=PW, PD=PD, PG=PG))
        s("""
        s_lshl_b32 s38, s{rb}, 1
        s_add_u32 s38, s38, s{w}
        s_sub_u32 s38, s38, 1
        s_max_i32 s38, s38, 0
        s_lshl_b32 s{st1}, s38, 11
        s_lshl_b32 s38, s{rb3}, 2
        s_add_u32 s38, s38, s{w}
        s_lshl_b32 s{st3}, s38, 11
        """.format(rb=sRB, w=sW, st1=sSt1, rb3=sRB3, st3=sSt3))
        s("""
        s_lshr_b32 s38, s{w}, 1
        s_and_b32 s39, s{w}, 1
        s_lshl_b32 s40, s{cg}, 1
        s_add_u32 s59, s40, s38
        s_lshl_b32 s59, s59, 10
        s_lshl_b32 s60, s39, 9
        s_add_u32 s59, s59, s60
        s_add_u32 s{ost}, s59, s{a1m}
        """.format(w=sW, cg=sCG, ost=sOst, a1m=sA1m))
        s("""
        s_lshl_b32 s59, s38, 14
        s_add_u32 s59, s59, s{a1m}
        s_add_u32 s{a2}, s59, s{kw}
        s_add_u32 s60, s40, s39
        s_lshl_b32 s61, s60, 10
        s_add_u32 s{res}, s59, s61
        s_lshr_b32 s{sto}, s59, 3
        s_lshl_b32 s61, s60, 7
        s_add_u32 s{sto}, s{sto}, s61
        """.format(a1m=sA1m, a2=sA2, kw=sKw, res=sRes, sto=sStO))
        s("""
        s_lshl_b32 s59, s{rb}, 1
        s_add_u32 s59, s59, s38
        s_lshl_b32 s{out}, s59, 15
        s_lshl_b32 s61, s60, 6
        s_add_u32 s{out}, s{out}, s61
        """.format(rb=sRB, out=sOutO))
        s("""
        s_mul_i32 s{hst}, s{rb3}, {k192}
        s_mul_i32 s61, s{cg3}, 12
        s_mul_i32 s62, s{w}, 3
        s_add_u32 s61, s61, s62
        s_lshl_b32 s61, s61, 8
        s_add_u32 s{hst}, s{hst}, s61
        s_mul_i32 s62, s{w}, {k11}
        s_mul_i32 s{a4}, s59, {k48}
        s_add_u32 s{a4}, s{a4}, s62
        s_xor_b32 s59, s59, 1
        s_mul_i32 s{a4b}, s59, {k48}
        s_add_u32 s{a4b}, s{a4b}, s62
        """.format(hst=sHst, rb3=sRB3, cg3=sCG3, w=sW, a4=sA4, a4b=sA4 + 1, k192=192 * KB, k11=11 * KB, k48=48 * KB))
        return

    def prologue2(self, s):
        s("""
        s_lshl_b32 s59, s{cg}, 2
        s_lshl_b32 s60, s{rb}, 8
        s_add_u32 s{f1}, s60, s59
        s_lshl_b32 s59, s{cg3}, 2
        s_lshl_b32 s61, s{rb3}, 8
        s_add_u32 s{f3}, s61, s59
        s_mov_b32 s{p2}, s60
        s_lshl_b32 s{p3}, s{rb3}, 9
        s_lshr_b32 s61, s{rb}, 1
        s_lshl_b32 s{p4}, s61, 8
        s_cmp_eq_u32 s{rb}, 0
        s_cselect_b32 s61, 0, 256
        s_sub_u32 s{p1}, s60, s61
        v_lshrrev_b32 v20, 3, v{lane}
        v_mul_lo_u32 v20, v20, s61
        v_and_b32 v21, 7, v{lane}
        v_lshl_add_u32 v{ph}, v21, 2, v20
        """.format(lane=vLane, ph=vPollH, cg=sCG, w=sW, rb=sRB, f1=sF1, cg3=sCG3, rb3=sRB3, f3=sF3, p2=sP2, p3=sP3, p4=sP4, p1=sP1a))
        s("""
        s_cmp_eq_u32 s{w}, 1
        s_cselect_b32 s{m2}, 0xff, 0
        s_mov_b32 s{m2h}, 0
        s_cselect_b32 s{m4}, 0x7fff, 0
        s_mov_b32 s{m4h}, 0
        s_cselect_b32 s{m16}, 0xffff, 0
        s_mov_b32 s{m16h}, 0
        s_mov_b32 s{odd}, 0xffff0000
        s_mov_b32 s{oddh}, 0xffff0000
        s_mov_b32 s{one}, 1.0
        s_mov_b32 s{oneh}, 1.0
        s_mov_b32 s{k0}, {c0}
        s_mov_b32 s{k1}, {c1}
        s_mov_b32 s{k2}, {c2}
        s_mov_b32 s{k3}, {c3}
        """.format(w=sW, m2=sM2, m2h=sM2 + 1, m4=sM4, m4h=sM4 + 1, m16=sM16, m16h=sM16 + 1, odd=sOdd, oddh=sOdd + 1, one=sOnes, oneh=sOnes + 1,
                   k0=sK, k1=sK + 1, k2=sK + 2, k3=sK + 3,
                   c0="0x%08x" % fbits(1.0 / 512), c1="0x%08x" % fbits(1e-5), c2="0x%08x" % fbits(0.25 * LOG2E), c3="0x%08x" % fbits(-LOG2E)))
        s("""
        v_and_b32 v20, 15, v{lane}
        v_lshrrev_b32 v21, 4, v{lane}
        v_add_u32 v{lo}, 65536, v{l16}
        v_lshlrev_b32 v22, 4, v20
        v_and_b32 v23, 1, v21
        v_lshrrev_b32 v24, 1, v21
        v_lshl_add_u32 v25, v24, 8, v22
        v_lshl_add_u32 v{ost}, v23, 14, v25
        v_mul_u32_u24 v26, {k48}, v23
        v_add_u32 v{h1}, v26, v25
        v_mul_u32_u24 v26, {k48}, v21
        v_add_u32 v26, v26, v22
        v_add_u32 v{h2}, 512, v26
        s_lshl_b32 s59, s{w}, 13
        s_add_u32 s59, s59, 65536
        v_add_u32 v{red}, s59, v{l16}
        v_lshrrev_b32 v26, 3, v{lane}
        v_and_b32 v27, 7, v{lane}
        v_lshlrev_b32 v27, 2, v27
        v_lshl_add_u32 v{pa}, v26, 8, v27
        v_lshlrev_b32 v{pb}, 2, v{lane}
        s_cmp_eq_u32 s{w}, 1
        s_cselect_b32 s59, 16, 0
        v_cmp_gt_u32 vcc, s59, v{lane}
        v_mov_b32 v27, 0x7ffffff0
        v_cndmask_b32 v{pa}, v27, v{pa}, vcc
        v_cndmask_b32 v{pb}, v27, v{pb}, vcc
        v_cndmask_b32 v{ph}, v27, v{ph}, vcc
        v_lshlrev_b32 v{out}, 7, v{lane}
        v_cmp_gt_u32 vcc, 16, v{lane}
        v_cndmask_b32 v{out}, v27, v{out}, vcc
        v_mov_b32 v{one}, 1
        """.format(lane=vLane, lo=vLO, l16=vL16, ost=vOst, h1=vH1, h2=vH2, red=vRed, pa=vPollA, pb=vPollB, ph=vPollH, out=vOut, one=vOne, w=sW, k48=48 * KB))
        s("""
        s_lshl_b32 s59, s{w}, 11
        s_add_u32 s59, s59, {stp}
        v_lshlrev_b32 v26, 10, v24
        v_lshl_add_u32 v26, v23, 6, v26
        v_lshl_add_u32 v26, v20, 2, v26
        v_add_u32 v{sr}, s59, v26
        """.format(w=sW, stp=STP, sr=vStatR))
        s("""
        s_lshl_b32 s59, s{w}, 7
        s_lshl_b32 s60, s{w}, 6
        v_lshlrev_b32 v26, 3, v20
        v_lshl_add_u32 v26, v23, 2, v26
        v_add_u32 v26, s59, v26
        v_lshlrev_b32 v27, 2, v20
        v_lshl_add_u32 v27, v23, 8, v27
        v_add_u32 v27, s60, v27
        v_add_u32 v27, 512, v27
        v_cmp_gt_u32 vcc, 2, v21
        v_cndmask_b32 v26, v27, v26, vcc
        v_add_u32 v{sw}, {stf}, v26
        v_lshlrev_b32 v26, 3, v20
        v_add_u32 v{si}, {stf}, v26
        v_lshlrev_b32 v26, 4, v21
        v_add_u32 v{sv}, {stfn}, v26
        s_mul_i32 s59, s{w}, 192
        s_add_u32 s59, s59, {csl}
        v_add_u32 v{cs}, s59, v26
        v_lshlrev_b32 v27, 2, v20
        v_add_u32 v27, s59, v27
        v_add_u32 v{csv}, 128, v27
        """.format(w=sW, sw=vStatW, stf=STF, si=vStI, sv=vStV, stfn=STF + 512, csl=CSL, cs=vCs, csv=vCsV))
        shq, shg = (3, 4) if self.local else (2, 3)
        nq, ng = 4 * (32 >> shq), 4 * (32 >> shg)
        self.pf_n = {"Q": -(-192 * KB // nq // 2048), "W": -(-64 * KB // nq // 2048), "D": -(-176 * KB // nq // 2048), "G": -(-192 * KB // ng // 2048)}
        assert not (self.direct and self.opts.get("pf") == "1")
        (s if self.opts.get("pf") == "1" else (lambda t: None))("""
        s_lshr_b32 s59, s2, 3
        s_lshr_b32 s60, s59, {shq}
        s_lshl_b32 s60, s60, 2
        s_add_u32 s60, s60, s{w}
        s_mul_i32 s61, s{cg}, {k192}
        s_mul_i32 s62, s60, {q6}
        s_add_u32 s{pq}, s61, s62
        s_add_u32 s{pq}, s{pq}, {PQ}
        s_lshl_b32 s61, s{cg}, 16
        s_mul_i32 s62, s60, {w2}
        s_add_u32 s{pw}, s61, s62
        s_add_u32 s{pw}, s{pw}, {PW}
        s_mul_i32 s61, s{cg}, {k176}
        s_mul_i32 s62, s60, {d55}
        s_add_u32 s{pd}, s61, s62
        s_add_u32 s{pd}, s{pd}, {PD}
        s_lshr_b32 s60, s59, {shg}
        s_lshl_b32 s60, s60, 2
        s_add_u32 s60, s60, s{w}
        s_mul_i32 s61, s{cg3}, {k192}
        s_mul_i32 s62, s60, {g12}
        s_add_u32 s{pg}, s61, s62
        s_add_u32 s{pg}, s{pg}, {PG}
        """.format(w=sW, cg=sCG, cg3=sCG3, pq=sPfQ, pw=sPfW, pd=sPfD, pg=sPfG, k192=192 * KB, k176=176 * KB, q6=192 * KB // nq, w2=64 * KB // nq,
                   d55=176 * KB // nq, g12=192 * KB // ng, PQ=PQ, PW=PW, PD=PD, PG=PG, shq=shq, shg=shg))
        s("""
        v_lshlrev_b32 v26, 2, v21
        v_sub_u32 v26, v20, v26
        v_mov_b32 v27, 0xf149f2ca
        v_mov_b32 v28, 0
        """)
        for r in range(4):
            s("v_subrev_u32 v29, %d, v26" % r)
            s("v_cmp_gt_u32 vcc, 8, v29")
            s("v_cndmask_b32 v%d, v27, v28, vcc" % (32 + r))
            s("v_cmp_gt_i32 vcc, -8, v29")
            s("v_cndmask_b32 v%d, v27, v28, vcc" % (36 + r))
            s("v_mov_b32 v%d, v27" % (40 + r))
        s("v_add_u32 v30, %d, v%d" % (BIAS, vL16))
        s.wait_ds()
        s("ds_write_b128 v30, v[32:35]")
        s("ds_write_b128 v30, v[36:39] offset:1024")
        s("ds_write_b128 v30, v[40:43] offset:2048")
        s("""
        s_cmp_eq_u32 s{rb}, 0
        s_cselect_b32 s59, 2, 1
        s_lshl_b32 s59, s59, 10
        v_add_u32 v{b1}, s59, v30
        """.format(rb=sRB, b1=vB1))

    def colsums(self, s, ks, r0=44, first=True):
        single = self.opts.get("single", "1") == "1"
        ks = list(ks)
        R = lambda k: r0 + 4 * (k - ks[0])
        for k in ks:
            r = R(k)
            s("v_add_f32 v%d, v%d, v%d" % (r, r, r + 1))
            s("v_add_f32 v%d, v%d, v%d" % (r + 2, r + 2, r + 3))
            s("v_add_f32 v%d, v%d, v%d" % (r, r, r + 2))
            if not single:
                s("v_add_f32_dpp v%d, v%d, v%d quad_perm:[1,0,3,2] row_mask:0xf bank_mask:0xf" % (r, r, r))
                s("v_add_f32_dpp v%d, v%d, v%d quad_perm:[2,3,0,1] row_mask:0xf bank_mask:0xf" % (r, r, r))
        if single:
            for sw in ("v_permlane16_swap_b32", "v_permlane32_swap_b32"):
                for k in ks:
                    s("v_mov_b32 v%d, v%d" % (R(k) + 1, R(k)))
                for k in ks:
                    s("%s v%d, v%d" % (sw, R(k), R(k) + 1))
                for k in ks:
                    s("v_add_f32 v%d, v%d, v%d" % (R(k), R(k), R(k) + 1))
        a = R(ks[-1]) + 2
        if single:
            s("v_and_b32 v%d, 0xf0, v%d" % (a, vL16))
            s("v_lshrrev_b32 v%d, 2, v%d" % (a, a))
        else:
            s("v_lshrrev_b32 v%d, 6, v%d" % (a, vL16))
            s("v_lshlrev_b32 v%d, 2, v%d" % (a, a))
        s("s_mul_i32 s59, s%d, 192" % sW)
        s("s_add_u32 s59, s59, %d" % CSL)
        s("v_add_u32 v%d, s59, v%d" % (a, a))
        for k in ks:
            s("ds_write_b32 v%d, v%d offset:%d" % (a, R(k), (k // 3) * 768 + (k % 3) * 64))
        if first:
            if not single:
                self.flag_vec(s)
            s("v_mov_b32 v%d, v%d" % (vFlag, self.vflag_tmp))

    vflag_tmp = 87

    def flag_vec(self, s):
        s("s_cmp_eq_u32 s%d, 0" % sW)
        s("s_cselect_b32 s59, 1, 0")
        s("v_cmp_gt_u32 vcc, s59, v%d" % vLane)
        s("v_mov_b32 v27, 0x7ffffff0")
        s("v_cndmask_b32 v%d, v27, 0, vcc" % self.vflag_tmp)
        s("v_mov_b32 v60, v%d" % self.vflag_tmp)

    def global_issue(self, s):
        s("""
        s_mul_i32 s58, s{cg}, 12
        v_add_u32 v89, s58, v{lane}
        v_subrev_u32 v90, 12, v{lane}
        v_mul_u32_u24 v91, 21846, v90
        v_lshrrev_b32 v91, 16, v91
        v_mul_u32_u24 v92, 3, v91
        v_sub_u32 v92, v90, v92
        s_lshl_b32 s58, s{rb}, 1
        v_add_u32 v92, s58, v92
        v_subrev_u32 v92, 1, v92
        v_max_i32 v92, 0, v92
        v_lshl_add_u32 v92, v91, 6, v92
        v_add_u32 v92, 96, v92
        v_cmp_gt_u32 vcc, 12, v{lane}
        v_cndmask_b32 v89, v92, v89, vcc
        v_lshrrev_b32 v90, 3, v89
        v_and_b32 v89, 7, v89
        v_lshlrev_b32 v89, 2, v89
        v_lshl_add_u32 v89, v90, 7, v89
        s_cmp_eq_u32 s{w}, 1
        s_cselect_b32 s58, 18, 0
        v_cmp_gt_u32 vcc, s58, v{lane}
        v_mov_b32 v90, 0x7ffffff0
        v_cndmask_b32 v89, v90, v89, vcc
        s_cselect_b32 s{m}, 0x3ffff, 0
        s_mov_b32 s{mh}, 0
        s_mov_b32 s{p}, {pfl}
        buffer_load_dword v92, v89, s[8:11], s{p} offen sc1
        """.format(lane=vLane, w=sW, p=sPoll, pfl=PFL, cg=sCG, rb=sRB, m=4, mh=5))

    def global_check(self, s):
        n = self.npoll
        self.npoll += 1
        s("v_cmp_ne_u32 vcc, s%d, v92" % sTag)
        s("s_and_b64 vcc, vcc, s[4:5]")
        s("s_cbranch_vccnz SLOW_%d" % n)
        s("BACK_%d:" % n)
        s("s_barrier")
        self.slow += ["SLOW_%d:" % n, "  s_mov_b32 s%d, 0" % sCnt, "SPIN_%d:" % n,
                      "  buffer_load_dword v92, v89, s[8:11], s%d offen sc1" % sPoll, "  s_waitcnt vmcnt(0)",
                      "  v_cmp_ne_u32 vcc, s%d, v92" % sTag, "  s_nop 1", "  s_and_b64 vcc, vcc, s[4:5]",
                      "  s_cbranch_vccz BACK_%d" % n, "  s_add_u32 s%d, s%d, 1" % (sCnt, sCnt), "  s_cmp_lt_u32 s%d, %d" % (sCnt, POLL_LIMIT),
                      "  s_cbranch_scc1 SPIN_%d" % n, "  s_branch BACK_%d" % n]

    hold = False

    def tick(self, s, bulk=True):
        if self.urgent:
            s.extend(self.urgent.popleft())
            return True
        if bulk and self.bulk and not self.hold:
            s.extend(self.bulk.popleft())
            return True
        return False

    def flush_urgent(self, s):
        while self.urgent:
            s.extend(self.urgent.popleft())

    def burst(self, s, n):
        for _ in range(n):
            self.tick(s)

    @staticmethod
    def cost(ins):
        c = ins.cls
        if c == "valu":
            return 8 if (ins.meta.get("trans") or ins.meta.get("perm")) else 4
        if c in ("vm_ld", "vm_dma", "vm_st"):
            return 8
        if c in ("ds_rd", "ds_wr"):
            return 4
        if c == "salu":
            return 2.5
        if c in ("pseudo", "label"):
            return 0 if ins.text in ("@comment", "@mark") or c == "label" else 2
        return 3

    def progressive(self, groups, per_ks):
        for f, g in enumerate(groups):
            g.min_step = max(per_ks * (f // 3 + 1) + 2, int(self.opts.get("pg0", 0)) + int(float(self.opts.get("pgr", 0)) * f))
        return groups

    def clear_min(self):
        for g in self.bulk:
            g.min_step = 0

    def set_hold(self, v):
        def f():
            self.hold = v
        return f

    def delay(self, s, clks):
        n = max(0, int(clks) // 64)
        if n:
            s("s_sleep %d" % n)

    def evs(self, key, default):
        v = self.opts.get(key)
        return tuple(int(x) for x in v.split(",")) if v else default

    def run_mf(self, s, steps, at=None, fill=None, rate=4, ctok=None, fill_from=2, urate=None):
        at = at or {}
        urate = urate or rate
        fill = deque(fill or [])
        ev, cur = deque(), deque()
        last_vm = -rate
        last_tr = -12
        isvm = lambda x: x.cls in ("vm_ld", "vm_dma", "vm_st")
        def mk(x):
            if isinstance(x, Ins):
                return [x]
            if isinstance(x, tuple):
                t = Stream()
                self.mark(t, "chA%d" % x[1])
                t.wait_vm(ctok[x[1]])
                t("s_barrier")
                self.mark(t, "chB%d" % x[1])
                return list(t)
            t = Stream()
            t(x)
            return list(t)
        def push_ev(e):
            if isinstance(e, Stream):
                ev.extend(e)
            else:
                c = Ins("@comment")
                c.meta["c"] = "release"
                c.meta["call"] = e
                ev.append(c)
        def emit_from(q, budget):
            while q:
                c = self.cost(q[0])
                if c > budget and not (budget >= 8 - 1e-9):
                    break
                x = q.popleft()
                s.append(x)
                if x.meta.get("call"):
                    x.meta["call"]()
                budget -= c
                while x.meta.get("glue") and q:
                    x = q.popleft()
                    s.append(x)
                    if x.meta.get("call"):
                        x.meta["call"]()
                if budget <= 0:
                    break
            return budget
        n = len(steps)
        for i, st in enumerate(steps):
            for e in at.get(i, []):
                push_ev(e)
            if i % int(self.opts.get("fstep", 16)) == 0:
                self.fs(s, "mf%d" % i)
            budget = 8.0
            main = [y for x in st for y in mk(x)]
            if any(x.text == "@waitds" and x.meta.get("tok") is not None for x in main):
                while fill:
                    x = fill.popleft()
                    s.append(x)
            for x in main:
                s.append(x)
            for x in main[1:]:
                budget -= self.cost(x)
                if isvm(x):
                    last_vm = i
            if any(x.cls == "ds_rd" for x in main[1:]):
                budget -= 2
            if budget <= 0:
                continue
            if ev:
                had_vm = any(isvm(x) for x in list(ev)[:1])
                budget = emit_from(ev, budget)
                if had_vm:
                    last_vm = i
                if budget <= 0:
                    continue
            if not cur and self.trickle and not self.urgent and i - last_tr >= int(self.opts.get("trate", 24)) and i - last_vm >= 1:
                cur.extend(self.trickle.popleft())
                last_tr = i
            if not cur:
                if self.urgent and i - last_vm >= urate - 1:
                    cur.extend(self.urgent.popleft())
                elif self.bulk and not self.hold and not self.urgent and i - last_vm >= rate - 1 and getattr(self.bulk[0], "min_step", 0) <= i:
                    cur.extend(self.bulk.popleft())
            while cur and budget > 0:
                x = cur[0]
                c = self.cost(x)
                if isvm(x):
                    if budget < 8 or i - last_vm < min(rate, urate):
                        break
                    last_vm = i
                elif c > budget:
                    break
                s.append(cur.popleft())
                budget -= c
            if fill and fill[0].meta.get("until") is not None:
                fill_from = max(fill_from, fill.popleft().meta["until"])
            if fill and fill[0].meta.get("pause"):
                fill_from = i + fill.popleft().meta["pause"]
            if i >= fill_from and fill and budget > 0:
                part = deque()
                while fill and not fill[0].meta.get("pause") and fill[0].meta.get("until") is None and len(part) < 4:
                    part.append(fill.popleft())
                budget = emit_from(part, budget)
                while part:
                    fill.appendleft(part.pop())
        for e in at.get(n, []):
            push_ev(e)
        for q in (cur, ev, fill):
            while q:
                x = q.popleft()
                s.append(x)
                if x.meta.get("call"):
                    x.meta["call"]()

    def weave(self, s, epi, every=13):
        k = 0
        for ins in epi:
            s.append(ins)
            if ins.cls in ("valu", "mfma"):
                k += 1
                if k >= every:
                    if self.tick(s):
                        k = 0

    def split_tile(self, A):
        groups = A[0]
        nsub = (len(groups) - 2) // 4
        nh = 2 * nsub + 2
        return groups[:nh], groups[nh:]

    def cs_loads_to(self, s, cg, base, r0, vaddr):
        s("s_lshl_b32 s58, s%d, 2" % cg)
        s("s_add_u32 s58, s58, s%d" % sW)
        s("s_mul_i32 s59, s58, 3072")
        s("s_add_u32 s59, s59, %d" % base)
        for k in range(3):
            for j in range(4):
                s("buffer_load_dword v%d, v%d, s[8:11], s59 offen offset:%d" % (r0 + 4 * k + j, vaddr, k * 1024 + j * 64))

    def global_check2(self):
        n = self.npoll
        self.npoll += 1
        t = Stream()
        r = RING + 12
        t("v_cmp_ne_u32 vcc, s%d, v%d" % (sTag, r))
        t("s_and_b64 vcc, vcc, s[4:5]")
        t("s_cbranch_vccnz SLOW_%d" % n).meta["glue"] = True
        t("BACK_%d:" % n).meta["glue"] = True
        t("s_barrier")
        self.slow += ["SLOW_%d:" % n, "  s_mov_b32 s%d, 0" % sCnt, "SPIN_%d:" % n,
                      "  buffer_load_dword v%d, v%d, s[8:11], s%d offen sc1" % (r, RING + 16, sPoll2), "  s_waitcnt vmcnt(0)",
                      "  v_cmp_ne_u32 vcc, s%d, v%d" % (sTag, r), "  s_nop 1", "  s_and_b64 vcc, vcc, s[4:5]",
                      "  s_cbranch_vccz BACK_%d" % n, "  s_add_u32 s%d, s%d, 1" % (sCnt, sCnt), "  s_cmp_lt_u32 s%d, %d" % (sCnt, POLL_LIMIT),
                      "  s_cbranch_scc1 SPIN_%d" % n, "  s_branch BACK_%d" % n]
        return t

    def seg13(self, s, phase, p, h, A, at, urate=None, raw_stats=False):
        groups, stok, ctok = A
        st = Stream()
        if raw_stats:
            return self.seg13_raw(s, phase, p, h, A, at)
        self.stats_reduce(st, h, stok)
        if getattr(self, "extra_fill", None) is not None:
            st.extend(self.extra_fill)
            self.extra_fill = None
        pre, steps = self.mf13(phase, h)
        if urate:
            s.extend(st)
            st = Stream()
        for x in pre:
            if isinstance(x, tuple):
                s.wait_vm(ctok[x[1]])
                s("s_barrier")
            else:
                s(x)
        self.run_mf(s, steps, at=at, fill=list(st), ctok=ctok, fill_from=int(self.opts.get("fillfrom", 6)), urate=(urate or int(self.opts.get("ur", 4))), rate=(urate or int(self.opts.get("br", 4))))
        s("s_barrier")

    def seg13_raw(self, s, phase, p, h, A, at):
        import direct
        groups, stok, ctok = A
        self.stat_tok = Tok("unused")
        saved = self.epi_pref
        pref = saved(phase, h)
        self.epi_pref = lambda *a: {}
        pre, steps = self.mf13(phase, h)
        self.epi_pref = saved
        chunk_step = {0: 0}
        for i, stp in enumerate(steps):
            for x in stp:
                if isinstance(x, tuple):
                    chunk_step[x[1]] = i
        SA, T0, ADR, ONE = RING, RING + 24, RING + 2, RING + 3
        st = Stream()
        st("s_lshl_b32 s58, s%d, 14" % sW)
        st("s_add_u32 s58, s58, %d" % REG[h])
        st("v_add_u32 v%d, s58, v%d" % (ADR, vL16))
        st("v_mov_b32 v%d, 0x3f803f80" % ONE)
        st("v_mov_b32 v%d, 0" % SA)
        st("v_mov_b32 v%d, 0" % (SA + 1))
        for c in range(4):
            u = Ins("@comment")
            u.meta["c"] = "until chunk %d" % c
            u.meta["until"] = chunk_step[c] + 2
            st.append(u)
            for j in range(4):
                st("ds_read_b128 %s, v%d offset:%d" % (V(T0 + 4 * j, 4), ADR, (4 * c + j) * 1024))
            self.pause(st, 6)
            for j in range(4):
                st.extend(direct.stats_dots(SA, T0 + 4 * j, ONE))
        for x in pre:
            if isinstance(x, tuple):
                s.wait_vm(ctok[x[1]])
                s("s_barrier")
            else:
                s(x)
        self.run_mf(s, steps, at=at, fill=list(st), ctok=ctok, fill_from=1)
        tok = direct.stats_final(self, s, h, SA)
        s.wait_ds(tok)
        s("s_barrier")
        for n in sorted(pref):
            if n != 37:
                for x in pref[n]:
                    s(x)

    def check_order(self, s):
        done = set()
        for ins in s:
            if ins.meta.get("checked"):
                done.add(ins.meta["checked"])
            k = ins.meta.get("dep")
            if k is not None:
                assert k in done, "load issued before its dependency was checked: %s %s" % (k, ins.text)

    def check_weights(self, s):
        if self.opts.get("nob"):
            return
        cur = {}
        for ins in s:
            if ins.meta.get("bname"):
                cur[ins.ops[0]] = ins.meta["bname"]
            if ins.meta.get("bname2"):
                cur[ins.meta["bname2"][1]] = ins.meta["bname2"][0]
            if ins.cls == "mfma" and ins.meta.get("need"):
                reg, name = ins.meta["need"]
                assert cur.get(reg) == name, "weights %s expected in %s, found %s" % (name, reg, cur.get(reg))

    def gen(self):
        s = Stream()
        self.urgent, self.bulk, self.trickle = deque(), deque(), deque()
        o = self.opts
        if self.direct:
            import direct
            if self.prof:
                s("s_memrealtime s[100:101]")
                s("s_memtime s[98:99]")
                s("s_waitcnt lgkmcnt(0)")
                s("s_mov_b32 s94, s100")
                s("s_mov_b32 s68, s98")
            direct.entry(self, s, self.codepf(sW))
            self.pro_rest(s)
        else:
            self.prologue(s)
        if self.prof and self.opts.get("single", "1") != "1":
            s("s_memrealtime s[100:101]")
            s("s_waitcnt lgkmcnt(0)")
            s("s_mov_b32 s94, s100")
        self.ts(s, "start")
        if self.prof == 5:
            for k in range(2, 24):
                s("s_mov_b32 s%d, 0" % (sTS + k))
        s("""
        s_lshl_b32 s{kw1}, s{w}, 10
        s_add_u32 s{a1hw}, s{a1h}, s{kw1}
        s_add_u32 s{a1mw}, s{a1m}, s{kw1}
        s_add_u32 s{a3w}, s{a3}, s{kw1}
        """.format(kw1=sKw1, w=sW, a1hw=sA1hw, a1h=sA1h, a1mw=sA1mw, a1m=sA1m, a3w=sA3w, a3=sA3))
        A = {}
        single = self.opts.get("single", "1") == "1"
        if single:
            ncpf = 0 if self.opts.get("nocpf") == "1" else int(self.opts.get("cpf", 2))
            def pack_flag(t, base):
                t("s_lshr_b32 s58, s2, 3")
                t("s_lshl_b32 s58, s58, 7")
                t("s_and_b32 s59, s2, 7")
                t("s_lshl_b32 s59, s59, 2")
                t("s_add_u32 s58, s58, s59")
                t("s_add_u32 s%d, s58, %d" % (sT3, base))
            self.prologue2(s)
            s("s_add_u32 s%d, s95, 1" % sTag)
            s("v_mov_b32 v%d, s%d" % (vOne, sTag))
            self.flag_vec(s)
            if self.direct:
                s.extend(self.second_batch)
                self.pack_flag = pack_flag
                s("v_mov_b32 v%d, v%d" % (vFlag, self.vflag_tmp))
                if self.local:
                    s("s_getreg_b32 s%d, hwreg(HW_REG_XCC_ID, 0, 4)" % sXcc)
                    s("s_lshl_b32 s58, s%d, 4" % sTag)
                    s("s_or_b32 s58, s58, s%d" % sXcc)
                    s("v_mov_b32 v60, s58")
                    s("s_and_b32 s58, s2, 7")
                    s("s_lshl_b32 s58, s58, 7")
                    s("s_lshr_b32 s59, s2, 3")
                    s("s_lshl_b32 s59, s59, 2")
                    s("s_add_u32 s58, s58, s59")
                    s("s_add_u32 s58, s58, %d" % PXC)
                    s("buffer_store_dword v60, v%d, s[8:11], s58 offen sc1" % vFlag)
            else:
                self.global_issue(s)
                self.global_check(s)
            self.ts(s, "gsync")
        else:
            s("s_mov_b32 s%d, 1" % sTag)
        if single and not self.direct:
            s("v_and_b32 v68, 15, v%d" % vLane)
            s("v_lshlrev_b32 v68, 2, v68")
            s("v_lshrrev_b32 v69, 4, v%d" % vLane)
            s("v_lshl_add_u32 v68, v69, 8, v68")
        def cs_loads(cg, base, r0):
            s("s_lshl_b32 s58, s%d, 2" % cg)
            s("s_add_u32 s58, s58, s%d" % sW)
            s("s_mul_i32 s59, s58, 3072")
            s("s_add_u32 s59, s59, %d" % base)
            for k in range(3):
                if single:
                    for j in range(4):
                        s("buffer_load_dword v%d, v68, s[8:11], s59 offen offset:%d" % (r0 + 4 * k + j, k * 1024 + j * 64))
                else:
                    s("buffer_load_dwordx4 %s, v%d, s[8:11], s59 offen offset:%d" % (V(r0 + 4 * k, 4), vL16, k * 1024))
        if self.direct:
            A[(1, 0, 0)] = self.A_first
            A[(1, 0, 1)] = direct.groupsA_raw(self, 1)
        else:
            A[(1, 0, 0)] = self.groupsA_lds(1, 0, 0)
            A[(1, 0, 1)] = self.groupsA_lds(1, 0, 1)
        if self.direct:
            pass
        elif single:
            head, tail = self.split_tile(A[(1, 0, 0)])
            for g in head:
                s.extend(g)
            cs_loads(sCG, CSQ, RING + 32)
            nq = int(self.opts.get("nq0", 24))
            for g in self.groupsB(Bx, sBQ, 0, nq):
                s.extend(g)
            self.pack_flag = pack_flag
            if self.opts.get("latefirst", "1") == "1":
                self.late_tok0 = pack.emit_late(s, sW, vL16, (3, 4, 58, 59), DV)
            self.first_tail = tail
            self.q_rest = self.groupsB(Bx, sBQ, nq, 48)
            self.colsums(s, range(3), r0=RING + 32)
        else:
            for g in A[(1, 0, 0)][0]:
                s.extend(g)
            cs_loads(sCG, CSQ, 44)
            cs_loads(sCG3, CSG, 56)
            for g in self.groupsB(Bx, sBQ, 0, 24):
                s.extend(g)
            self.prologue2(s)
            for g in self.groupsB(Bx, sBQ, 24, 30):
                s.extend(g)
            self.colsums(s, range(6))
            self.bulk.extend(self.groupsB(Bx, sBQ, 30, 48))
            self.burst(s, 18)
            self.urgent.extend(A[(1, 0, 1)][0])
        s("s_xor_b32 s%d, s%d, 16384" % (sA2b, sA2))
        self.cs_loads = cs_loads
        self.ts(s, "prolog")
        tok = {}
        U = lambda gs: (lambda: self.urgent.extend(gs))
        def until_issued(gs):
            while any(g is x for g in gs for x in self.urgent):
                s.extend(self.urgent.popleft())
        tails = {(1, 0, 0): [], (1, 0, 1): []}
        for p in range(2):
            last = (p == 1)
            at = {}
            self.urgent.extend(tails[(1, p, 0)])
            if p == 0 and self.direct:
                head1 = list(A[(1, 0, 1)][0])
            elif p == 0 and single:
                q = list(self.q_rest)
                self.urgent.extend(q[:6] + list(self.first_tail[:3]) + q[6:15] + list(self.first_tail[3:]) + q[15:])
                self.urgent.extend(A[(1, 0, 1)][0])
                head1 = list(A[(1, 0, 1)][0])
                if self.opts.get("latefirst", "1") == "1":
                    f2e = Stream()
                    f2e.wait_vm(self.late_tok0)
                    f2e("s_barrier")
                    self.pack_flag(f2e, PFL2)
                    f2e("buffer_store_dword v%d, v%d, s[8:11], s%d offen sc1" % (vOne, vFlag, sT3))
                    at[int(self.opts.get("f2e", 64))] = [f2e]
            elif p == 0:
                self.bulk.extend(self.groupsB(By, sBW, 0, 16))
                self.bulk.extend(self.groupsB(By, sBD, 16, 44))
                head1 = []
            else:
                self.bulk.extend(self.groupsB(By, sBW, 0, 16))
                a, b, c = self.evs("e1E", (48, 96, 127))
                at[a] = [self.ev_sig(4, p - 1, 1, tok[(4, p - 1, 1)])]
                at[b] = [self.ev_poll_issue(1, p, 1)]
                A[(1, p, 1)] = self.groupsA_lds(1, p, 1)
                head1, tails[(1, p, 1)] = self.split_tile(A[(1, p, 1)])
                at[c] = [self.ev_poll_check(1, p, 1), U(head1)]
            if p == 1:
                self.trickle.extend(self.pf(sPfG, 2048 * i) for i in range(self.pf_n["G"]))
            if p == 0 and self.direct:
                direct.first_segment(self, s)
                if self.opts.get("dbgq") == "1":
                    s("s_lshl_b32 s58, s2, 2")
                    s("s_add_u32 s58, s58, s%d" % sW)
                    s("s_mul_i32 s58, s58, %d" % (64 * KB))
                    s("s_add_u32 s58, s58, 0x4000000")
                    for f in range(48):
                        s("buffer_store_dwordx4 %s, v%d, s[8:11], s58 offen" % (Bx(f), vL16))
                        s("s_add_u32 s58, s58, 1024")
                    s("s_lshl_b32 s59, s%d, 14" % sW)
                    s("v_add_u32 v172, s59, v%d" % vL16)
                    for k in range(16):
                        s("ds_read_b128 v[176:179], v172 offset:%d" % (k * 1024))
                        s("buffer_store_dwordx4 v[176:179], v%d, s[8:11], s58 offen" % vL16)
                        s("s_add_u32 s58, s58, 1024")
                        s("s_nop 4")
                for g in head1[:6]:
                    s.extend(g)
                self.urgent.extend(head1[6:])
            else:
                self.seg13(s, 1, p, 0, A[(1, p, 0)], at, urate=(2 if (p == 0 and single) else None))
            self.ts(s, "mf1E.%d" % p)
            if p == 0 and single:
                if self.direct:
                    late_tok = direct.late(self, s, (3, 4, 58, 59))
                    self.stat_tok = Tok("unused")
                    pref = self.epi_pref(1, 0)
                    for n in sorted(pref):
                        if n != 37:
                            for x in pref[n]:
                                s(x)
                elif self.opts.get("latefirst", "1") == "1":
                    late_tok = self.late_tok0
                else:
                    late_tok = pack.emit_late(s, sW, vL16, (3, 4, 58, 59), DV)
                if self.local:
                    if not self.direct:
                        s("s_getreg_b32 s%d, hwreg(HW_REG_XCC_ID, 0, 4)" % sXcc)
                    pi, pc = self.purity()
                    s.extend(pi)
                    self.pur_check = pc
                self.ts(s, "packed")
            e = Stream(); tok[(1, p, 0)] = self.epi1(e, p, 0)
            self.weave(s, e, every=10)
            until_issued(head1)
            if p == 0 and self.local:
                s.extend(self.pur_check)
            self.ts(s, "s1E.%d" % p)
            self.urgent.extend(tails[(1, p, 1)])
            gA = self.groupsA24(2, p, 0)
            a, b, c = self.evs("e1O", (44, 96, 127))
            at = {a: [self.ev_sig(1, p, 0, tok[(1, p, 0)])], b: [self.ev_poll_issue(2, p, 0)],
                  c: [self.ev_poll_check(2, p, 0), U(gA)]}
            if p == 0 and single:
                f2 = Stream()
                f2.wait_vm(late_tok)
                f2("s_barrier")
                self.pack_flag(f2, PFL2)
                f2("buffer_store_dword v%d, v%d, s[8:11], s%d offen sc1" % (vOne, vFlag, sT3))
                g2 = Stream()
                a0, a1, a2 = RING + 16, RING + 17, RING + 18
                g2("v_lshrrev_b32 v%d, 4, v%d" % (a1, vL16))
                g2("s_lshl_b32 s58, s%d, 2" % sCG)
                g2("s_add_u32 s58, s58, %d" % (96 if self.direct else 136))
                g2("v_add_u32 v%d, s58, v%d" % (a0, a1))
                g2("s_lshl_b32 s58, s%d, 4" % sCG3)
                g2("s_sub_u32 s58, s58, 4")
                g2("v_add_u32 v%d, s58, v%d" % (a2, a1))
                g2("v_cmp_lt_u32 vcc, 3, v%d" % a1)
                g2("v_cndmask_b32 v%d, v%d, v%d, vcc" % (a0, a0, a2))
                g2("s_mul_i32 s58, s%d, 11" % sCG)
                g2("s_add_u32 s58, s58, %d" % (108 if self.direct else 148))
                g2("v_add_u32 v%d, s58, v%d" % (a2, a1))
                g2("v_cmp_lt_u32 vcc, 19, v%d" % a1)
                g2("v_cndmask_b32 v%d, v%d, v%d, vcc" % (a0, a0, a2))
                if self.direct:
                    g2("s_mul_i32 s58, s%d, 12" % sCG)
                    g2("s_sub_u32 s58, s58, 31")
                    g2("v_add_u32 v%d, s58, v%d" % (a2, a1))
                    g2("v_cmp_lt_u32 vcc, 30, v%d" % a1)
                    g2("v_cndmask_b32 v%d, v%d, v%d, vcc" % (a0, a0, a2))
                g2("v_lshrrev_b32 v%d, 3, v%d" % (a2, a0))
                g2("v_and_b32 v%d, 7, v%d" % (a0, a0))
                g2("v_lshlrev_b32 v%d, 2, v%d" % (a0, a0))
                g2("v_lshl_add_u32 v%d, v%d, 7, v%d" % (a0, a2, a0))
                g2("s_cmp_eq_u32 s%d, 1" % sW)
                g2("s_cselect_b32 s58, %d, 0" % (43 if self.direct else 31))
                g2("s_cselect_b32 s4, %s, 0" % ("-1" if self.direct else "0x7fffffff"))
                g2("s_cselect_b32 s5, %s, 0" % ("0x7ff" if self.direct else "0"))
                g2("v_cmp_gt_u32 vcc, s58, v%d" % a1)
                g2("v_mov_b32 v%d, 0x7ffffff0" % a2)
                g2("v_cndmask_b32 v%d, v%d, v%d, vcc" % (a0, a2, a0))
                g2("s_mov_b32 s%d, %d" % (sPoll2, PFL2))
                g2("buffer_load_dword v%d, v%d, s[8:11], s%d offen sc1" % (RING + 12, a0, sPoll2))
                c2 = self.global_check2()
                csl = Stream()
                csl("v_and_b32 v%d, 0xf0, v%d" % (DV + 12, vL16))
                csl("v_lshrrev_b32 v%d, 2, v%d" % (DV + 12, DV + 12))
                csl("v_lshrrev_b32 v%d, 8, v%d" % (DV + 13, vL16))
                csl("v_lshl_add_u32 v%d, v%d, 8, v%d" % (DV + 12, DV + 13, DV + 12))
                self.cs_loads_to(csl, sCG3, CSG, DV, DV + 12)
                lf = self.opts.get("latefirst", "1") == "1" and not self.direct
                fa, fb, fc = self.evs("f2", (40, 20, 56) if lf else (40, 88, 125))
                if not lf:
                    at.setdefault(fa, []).append(f2)
                at.setdefault(fb, []).append(g2)
                g_early0 = lf and self.opts.get("prog0", "1") == "1"
                def after_flag2():
                    self.bulk.extend(self.groupsB(By, sBW, 0, 16))
                    if g_early0:
                        self.bulk.extend(self.progressive(self.groupsB(Bx, sBG, 0, 48), 8))
                at.setdefault(fc, []).extend([c2, after_flag2, csl])
                self.cs_reduce = Stream()
                self.colsums(self.cs_reduce, range(3, 6), r0=DV, first=False)
            early_g = (p == 1 or not single) and self.opts.get("prog", "1") == "1"
            early_g0 = p == 0 and single and not self.direct and self.opts.get("latefirst", "1") == "1" and self.opts.get("prog0", "1") == "1"
            if early_g:
                while self.bulk:
                    s.extend(self.bulk.popleft())
                self.bulk.extend(self.progressive(self.groupsB(Bx, sBG, 0, 48), 8))
            self.seg13(s, 1, p, 1, A[(1, p, 1)], at, raw_stats=(p == 0 and self.direct))
            self.ts(s, "mf1O.%d" % p)
            if early_g:
                self.clear_min()
            elif early_g0:
                self.clear_min()
                while self.bulk and any(x.meta.get("bname") == "W" for x in self.bulk[0]):
                    s.extend(self.bulk.popleft())
            else:
                while self.bulk:
                    s.extend(self.bulk.popleft())
                self.bulk.extend(self.groupsB(Bx, sBG, 0, 48))
            e = Stream(); tok[(1, p, 1)] = self.epi1(e, p, 1)
            self.weave(s, e, every=10)
            self.flush_urgent(s)
            self.ts(s, "s1O.%d" % p)
            if p == 0 and single:
                s.extend(self.cs_reduce)
            self.seg24_mf(s, 2, p, 0)
            self.fs(s, "MF")
            bsel = lambda key, d0, d1: int(self.opts.get(key + str(p), d0 if p == 0 and single else d1))
            self.hold = True
            mid = Stream()
            mid.extend(self.ev_sig(1, p, 1, tok[(1, p, 1)]))
            e = Stream(); tok[(2, p, 0)] = self.epi24(e, 2, p, 0, mid=mid)
            self.weave(s, e, every=10)
            s.extend(self.ev_poll_issue(2, p, 1))
            self.fs(s, "EPI")
            self.hold = False
            if self.opts.get("ord2", "0") == "1":
                s.extend(self.ev_poll_check(2, p, 1))
                self.ts(s, "s2E.%d" % p)
                self.urgent.extend(self.groupsA24(2, p, 1))
                self.flush_urgent(s)
                self.fs(s, "Aiss")
                self.burst(s, bsel("b2F", 6, 0))
                s.extend(self.ev_sig(2, p, 0, tok[(2, p, 0)]))
                self.fs(s, "SIG2")
                self.p3_in_mf = int(self.opts.get("i3E", 2))
                if self.p3_in_mf < 0:
                    s.extend(self.ev_poll_issue(3, p, 0, alt=True))
                self.burst(s, bsel("b2O", 8, 0))
            else:
                self.burst(s, bsel("b2F", 6, 0))
                self.fs(s, "PI")
                s.extend(self.ev_sig(2, p, 0, tok[(2, p, 0)]))
                s.extend(self.ev_poll_issue(3, p, 0, alt=True))
                self.fs(s, "SIG2")
                s.extend(self.ev_poll_check(2, p, 1))
                self.ts(s, "s2E.%d" % p)
                self.urgent.extend(self.groupsA24(2, p, 1))
                self.flush_urgent(s)
                self.burst(s, bsel("b2O", 8, 0))
            A[(3, p, 0)] = self.groupsA_lds(3, p, 0)
            head3, tail3 = self.split_tile(A[(3, p, 0)])
            c3 = int(self.opts.get("c3E", 26 if self.opts.get("ord2", "0") == "1" else 0))
            if c3 < 0:
                s.extend(self.ev_poll_check(3, p, 0, alt=True))
                self.urgent.extend(head3)
                self.flush_urgent(s)
                self.seg24_mf(s, 2, p, 1)
            else:
                at3 = {c3: [self.ev_poll_check(3, p, 0, alt=True), U(head3)]}
                if self.opts.get("ord2", "0") == "1" and self.p3_in_mf >= 0:
                    at3.setdefault(self.p3_in_mf, []).insert(0, self.ev_poll_issue(3, p, 0, alt=True))
                self.seg24_mf(s, 2, p, 1, at=at3)
            self.fs(s, "MF")
            self.bulk.extend(self.groupsB(By, sBD, 0, 44 if (p == 0 and single) else 16))
            e = Stream(); tok[(2, p, 1)] = self.epi24(e, 2, p, 1)
            self.weave(s, e, every=5)
            self.fs(s, "EPI")
            until_issued(head3)
            self.ts(s, "s2O.%d" % p)
            self.urgent.extend(tail3)
            A[(3, p, 1)] = self.groupsA_lds(3, p, 1)
            head3, tail3 = self.split_tile(A[(3, p, 1)])
            a, b, c = self.evs("e3E", (48, 108, 150))
            at = {a: [self.ev_sig(2, p, 1, tok[(2, p, 1)])], b: [self.ev_poll_issue(3, p, 1)],
                  c: [self.ev_poll_check(3, p, 1), U(head3)]}
            if not last:
                self.trickle.extend(self.pf(sPfQ, 2048 * i) for i in range(self.pf_n["Q"]))
            self.seg13(s, 3, p, 0, A[(3, p, 0)], at)
            self.ts(s, "mf3E.%d" % p)
            e = Stream(); tok[(3, p, 0)] = self.epi3(e, p, 0)
            self.weave(s, e, every=12)
            until_issued(head3)
            self.ts(s, "s3E.%d" % p)
            self.urgent.extend(tail3)
            gA = self.groupsA24(4, p, 0)
            a, b, c = self.evs("e3O", (64, 120, 160))
            at = {a: [self.ev_sig(3, p, 0, tok[(3, p, 0)])], b: [self.ev_poll_issue(4, p, 0)],
                  c: [self.ev_poll_check(4, p, 0), U(gA)]}
            if not last:
                self.trickle.extend(self.pf(sPfW, 2048 * i) for i in range(self.pf_n["W"]))
            early_q = (not last) and self.opts.get("prog", "1") == "1"
            if early_q:
                self.bulk.extend(self.progressive(self.groupsB(Bx, sBQ, 0, 48), 12))
            self.seg13(s, 3, p, 1, A[(3, p, 1)], at)
            self.ts(s, "mf3O.%d" % p)
            self.flush_urgent(s)
            if early_q:
                self.clear_min()
                while self.bulk and not any(x.meta.get("bname") == "Q" for x in self.bulk[0]):
                    s.extend(self.bulk.popleft())
            else:
                while self.bulk:
                    s.extend(self.bulk.popleft())
                if not last:
                    self.bulk.extend(self.groupsB(Bx, sBQ, 0, 48))
            e = Stream(); tok[(3, p, 1)] = self.epi3(e, p, 1)
            self.weave(s, e, every=12)
            self.ts(s, "s3O.%d" % p)
            a = int(self.opts.get("e4E", 60))
            at = {a: [self.ev_sig(3, p, 1, tok[(3, p, 1)])]}
            at.setdefault(int(self.opts.get("h4", 62)), []).append(self.set_hold(True))
            self.seg24_mf(s, 4, p, 0, at=at)
            self.fs(s, "MF")
            if last:
                s.extend(self.ev_poll_issue(4, p, 1))
            e = Stream(); tok[(4, p, 0)] = self.epi24(e, 4, p, 0)
            self.weave(s, e, every=10)
            ord4 = self.opts.get("ord4", "0") == "1"
            if not last:
                s.extend(self.ev_poll_issue(4, p, 1))
                if not ord4:
                    s.extend(self.ev_sig(4, p, 0, tok[(4, p, 0)]))
                    s.extend(self.ev_poll_issue(1, p + 1, 0, alt=True))
            self.fs(s, "EPI")
            s.extend(self.ev_poll_check(4, p, 1))
            self.hold = False
            self.ts(s, "s4E.%d" % p)
            self.urgent.extend(self.groupsA24(4, p, 1))
            self.flush_urgent(s)
            i1 = int(self.opts.get("i1E", 20))
            if ord4 and not last:
                s.extend(self.ev_sig(4, p, 0, tok[(4, p, 0)]))
                if i1 < 0:
                    s.extend(self.ev_poll_issue(1, p + 1, 0, alt=True))
            at = {}
            head1 = []
            if not last:
                A[(1, p + 1, 0)] = self.groupsA_lds(1, p + 1, 0)
                head1, tails[(1, p + 1, 0)] = self.split_tile(A[(1, p + 1, 0)])
                at = {int(self.opts.get("c1E", 60 if ord4 else 8)): [self.ev_poll_check(1, p + 1, 0, alt=True), U(head1)]}
                if ord4 and i1 >= 0:
                    at.setdefault(i1, []).insert(0, self.ev_poll_issue(1, p + 1, 0, alt=True))
            self.burst(s, int(self.opts.get("b4O", 0)))
            self.seg24_mf(s, 4, p, 1, at=at)
            e = Stream(); tok[(4, p, 1)] = self.epi24(e, 4, p, 1)
            self.weave(s, e, every=5)
            until_issued(head1)
            self.ts(s, "s4O.%d" % p)
        if single:
            s("s_cmp_eq_u32 s2, 0")
            s("s_cbranch_scc0 M_noep")
            s("s_mov_b32 s36, %d" % EPOCH)
            s("buffer_store_dword v%d, v%d, s[8:11], s36 offen" % (vOne, vFlag))
            s("M_noep:")
        if self.prof == 4:
            s = self.resolve_marks(s)
        if self.prof:
            s("s_lshl_b32 s36, s2, 2")
            s("s_add_u32 s36, s36, s%d" % sW)
            s("s_lshl_b32 s36, s36, 8")
            s("s_add_u32 s36, s36, %d" % 0x3000000)
            s("s_memrealtime s[100:101]")
            s("s_waitcnt lgkmcnt(0)")
            s("s_mov_b32 s95, s100")
            s("s_mov_b64 exec, 1")
            for k in (94, 95):
                s("v_mov_b32 v20, s%d" % k)
                s("buffer_store_dword v20, off, s[8:11], s36 offset:%d" % (4 * (62 + k - 94)))
            if self.prof == 2 and self.local:
                for k, r in enumerate((sImp, sXcc)):
                    s("v_mov_b32 v20, s%d" % r)
                    s("buffer_store_dword v20, off, s[8:11], s36 offset:%d" % (4 * (8 + k)))
            if self.prof == 7:
                for k in range(6):
                    s("v_mov_b32 v20, s%d" % (80 + k))
                    s("buffer_store_dword v20, off, s[8:11], s36 offset:%d" % (4 * (8 + k)))
            if self.prof == 5:
                for k in range(16):
                    s("v_mov_b32 v20, s%d" % (sTS + 2 + k))
                    s("buffer_store_dword v20, off, s[8:11], s36 offset:%d" % (4 * (8 + k)))
            for k in range(self.nts):
                s("v_mov_b32 v20, s%d" % (sTS + (2 * k if self.prof in (3, 8) else k)))
                s("buffer_store_dword v20, off, s[8:11], s36 offset:%d" % (4 * k))
            s("s_mov_b64 exec, -1")
        s("s_waitcnt vmcnt(0)")
        self.check_weights(s)
        self.check_order(s)
        pol = self.opts.get("ntA")
        if pol:
            for ins in s:
                if ins.meta.get("dep") is not None and " sc1" in ins.text:
                    ins.text = ins.text.replace(" sc1", " sc1 nt" if pol == "1" else {"2": " nt", "3": ""}[pol])
        if self.opts.get("ntS") == "1":
            for ins in s:
                if ins.cls == "vm_st" and "dwordx4" in ins.text and " sc1" in ins.text:
                    ins.text = ins.text.replace(" sc1", " sc1 nt")
        lines = finalize(s, verbose=False)
        lines.append("M_end:")
        lines.append("  s_endpgm")
        lines += self.slow
        lines.append("M_last:")
        lines.append("  s_endpgm")
        return lines


def gen_main(opts):
    m = Main(opts)
    lines = m.gen()
    if m.prof:
        lines.insert(0, "; timestamps: " + " ".join(m.tsnames))
    return lines, LDS_BYTES
```

```python
from asmlib import *
from layout import *
from collections import deque
import pack

REG = [0, 65536]
MISC = 131072
STP = MISC
STF = MISC + 16384
CSL = STF + 2048
BIAS = CSL + 2048
JUNK = BIAS + 3072
LDS_BYTES = 163840
SCR = [65536, 98304]

vLane, vL16, vLO, vOst, vH1, vH2, vRed, vPollA, vPollB, vOut = 1, 2, 3, 4, 5, 6, 7, 8, 9, 10
vStatR, vStatW, vStI, vStV, vCs, vCsV, vB1, vOne, vP = 11, 12, 13, 14, 15, 16, 17, 18, 19
ACC = 20
FR = 68
RING = 88
TMP = 136
RES = 140
DV = 144

sW, sRB, sCG, sRB3, sCG3 = 16, 17, 18, 19, 20
sA1h, sA1m, sA3, sKw = 21, 22, 23, 24
sSt1, sSt3 = 25, 26
sM2, sM4 = 28, 30
sT, sT2, sT3 = 32, 33, 34
sOdd = 36
sOnes = 38
sCnt = 40
sBQ, sBW, sBG, sBD = 41, 42, 43, 44
sOst, sA2, sRes, sHst = 45, 46, 47, 48
sA4 = 64
sF1, sF3 = 50, 51
sP2, sP3, sP4, sP1a = 52, 53, 54, 55
sOutO = 56
sStO = 57
sK = 96
sTB = 49
sPoll = 35
sA1hw, sA1mw, sA3w, sKw1 = 63, 66, 67, 27
vPollH = 0
vFlag = 1
vL128 = 10
sPfQ, sPfW, sPfG, sPfD = 90, 91, 92, 93
sM16 = 100
sPoll2 = 62
vP2 = 139
sPur = 5
sImp = 7
sXcc = 6
sTag = 61
sA2b = 60
sE, sE2 = 58, 59
sT4 = 3
sTS = 68

LOG2E = 1.4426950408889634
import struct
def fbits(x): return struct.unpack("<I", struct.pack("<f", x))[0]

POLL_LIMIT = 200000


def Bx(f):
    return "a[%d:%d]" % (4 * f, 4 * f + 3)
def By(f):
    if f < 16:
        return "a[%d:%d]" % (192 + 4 * f, 195 + 4 * f)
    return "v[%d:%d]" % (DV + 4 * (f - 16), DV + 4 * (f - 16) + 3)
def V(n, c=1):
    return "v%d" % n if c == 1 else "v[%d:%d]" % (n, n + c - 1)

def flag_off(p, phase, h):
    return FL + ((p * 4 + phase) * 2 + h) * 32 * 256


class Main:
    def __init__(self, opts):
        self.opts = opts
        self.prof = int(opts.get("prof", 0))
        self.local = opts.get("local", "1") == "1" and opts.get("single", "1") == "1"
        self.direct = opts.get("direct", "0") == "1" and opts.get("single", "1") == "1"
        self.slow = []
        self.npoll = 0
        self.nts = 0
        self.nimp = 0
        self.tsnames5 = []
        self.fine_on = False
        self.tsnames = []

    def ts(self, s, name):
        if self.prof == 6:
            if name in ("start", "prolog") or name.startswith(("s1O", "s2O", "s3E", "s3O", "s4O")):
                k = self.nts
                self.nts += 2
                self.tsnames += [name, name + ".rt"]
                s("s_waitcnt lgkmcnt(0)")
                s("s_memtime s[0:1]")
                s("s_waitcnt lgkmcnt(0)")
                s("s_mov_b32 s%d, s0" % (sTS + k))
                s("s_memrealtime s[0:1]")
                s("s_waitcnt lgkmcnt(0)")
                s("s_mov_b32 s%d, s0" % (sTS + k + 1))
            return
        if self.prof == 4:
            self.mark(s, "seg:" + name)
            return
        if self.prof == 3:
            f = self.opts.get("fine", "").split(",")
            if name == f[0]:
                self.fine_on = True
                self.fs(s, "begin:" + name)
            elif name == f[-1] and self.fine_on:
                self.fs(s, "end:" + name)
                self.fine_on = False
            return
        if self.prof == 8:
            return
        if not self.prof or (self.prof in (2, 5, 7) and name not in ("start", "s4O.1", "s4.1.1")):
            return
        if name in ("mf3O.0", "mf1O.0", "mf3E.0", "mf1O.1"):
            return
        if self.direct and name in ("prolog", "mf1E.1", "s1E.1", "s2E.1", "mf3E.1", "s3E.1", "mf3O.1", "s4E.1", "s2E.0", "s4E.0"):
            return
        if name == "start" and self.opts.get("single", "1") == "1":
            self.tsnames += ["entry"]
            self.nts += 1
        k = self.nts
        self.nts += 1
        self.tsnames.append(name)
        assert sTS + k < (85 if self.direct else 94), k
        s("s_waitcnt lgkmcnt(0)")
        s("s_memtime s[0:1]")
        s("s_waitcnt lgkmcnt(0)")
        s("s_mov_b32 s%d, s0" % (sTS + k))

    def fs(self, s, name):
        if self.prof == 4 and self.fine_on and not name.startswith("mf"):
            k = self.nts
            if sTS + k >= 94:
                return
            self.nts += 1
            self.tsnames.append(name)
            s("s_waitcnt lgkmcnt(0)")
            s("s_memtime s[0:1]")
            s("s_waitcnt lgkmcnt(0)")
            s("s_mov_b32 s%d, s0" % (sTS + k)).meta["glue"] = False
            return
        if self.prof != 3 or not self.fine_on:
            return
        k = self.nts
        lim = 84 if self.direct else (90 if self.opts.get("pf") == "1" else 94)
        if sTS + 2 * k + 1 >= (lim if name.startswith("end:") else lim - 2):
            return
        self.nts += 1
        self.tsnames.append(name)
        s.append(Ins("s_memtime s[%d:%d]" % (sTS + 2 * k, sTS + 2 * k + 1), async_=True))

    def pause(self, s, n):
        i = Ins("@comment")
        i.meta["c"] = "pause"
        i.meta["pause"] = n
        s.append(i)

    def rt(self, s, name):
        if self.prof == 8 and name.endswith(self.opts.get("rtp", ".1")) and name.split(".")[0] in self.opts.get("rts", "sig1O,chk2O,sig2E,chk3E,sig2O,chk3O,sig3O,chk4O,sig4E,chk1E").split(","):
            k = self.nts
            if sTS + 2 * k + 1 < 94:
                self.nts += 1
                self.tsnames.append(name)
                i = Ins("s_memtime s[2:3]", async_=True)
                i.text = "s_memrealtime s[%d:%d]" % (sTS + 2 * k, sTS + 2 * k + 1)
                s.append(i)

    def stm(self, phase):
        return " sc1"

    def purity(self):
        a, d = RING + 22, RING + 23
        i = Stream()
        i("v_lshrrev_b32 v%d, 2, v%d" % (a, vL16))
        i("s_and_b32 s58, s2, 7")
        i("s_lshl_b32 s58, s58, 7")
        i("s_add_u32 s%d, s58, %d" % (sPur, PXC))
        i("buffer_load_dword v%d, v%d, s[8:11], s%d offen sc1" % (d, a, sPur))
        n = self.npoll
        self.npoll += 1
        c = Stream()
        c("s_lshl_b32 s58, s%d, 4" % sTag)
        c("v_xor_b32 v%d, s58, v%d" % (d, d))
        c("v_cmp_le_u32 vcc, 16, v%d" % d)
        c("s_mov_b32 vcc_hi, 0")
        c("s_cbranch_vccnz SLOW_%d" % n).meta["glue"] = True
        c("BACK_%d:" % n)
        c("v_cmp_ne_u32 vcc, s%d, v%d" % (sXcc, d))
        c("s_cmp_lg_u32 vcc_lo, 0")
        c("s_cselect_b32 s58, 1, 0")
        if self.opts.get("impure") == "1":
            c("s_mov_b32 s58, 1")
        c("s_cmp_eq_u32 s%d, 0" % sW)
        c("s_cselect_b32 s%d, s58, 0" % sImp)
        self.slow += ["SLOW_%d:" % n, "  s_mov_b32 s%d, 0" % sCnt, "SPIN_%d:" % n,
                      "  buffer_load_dword v%d, v%d, s[8:11], s%d offen sc1" % (d, a, sPur), "  s_waitcnt vmcnt(0)",
                      "  v_xor_b32 v%d, s58, v%d" % (d, d), "  v_cmp_le_u32 vcc, 16, v%d" % d, "  s_nop 1", "  s_mov_b32 vcc_hi, 0",
                      "  s_cbranch_vccz BACK_%d" % n, "  s_add_u32 s%d, s%d, 1" % (sCnt, sCnt), "  s_cmp_lt_u32 s%d, %d" % (sCnt, POLL_LIMIT),
                      "  s_cbranch_scc1 SPIN_%d" % n, "  s_branch BACK_%d" % n]
        return i, c

    def mark(self, s, name):
        if self.prof == 4:
            i = Ins("@mark")
            i.meta["name"] = name
            s.append(i)

    def resolve_marks(self, s):
        out = Stream()
        f = self.opts.get("fine", "").split(",")
        on = False
        for ins in s:
            if ins.text == "@mark":
                nm = ins.meta["name"]
                if nm == "seg:" + f[0]:
                    on = True
                if on and sTS + self.nts < 94:
                    k = self.nts
                    self.nts += 1
                    self.tsnames.append(nm)
                    out("s_waitcnt lgkmcnt(0)")
                    out("s_memtime s[0:1]")
                    out("s_waitcnt lgkmcnt(0)")
                    out("s_mov_b32 s%d, s0" % (sTS + k))
                if nm == "seg:" + f[-1]:
                    on = False
                continue
            out.append(ins)
        return out

    def poll_issue(self, s, soff, const, vaddr, alt=False):
        vd, sp = (vP2, sPoll2) if alt else (vP, sPoll)
        s("s_add_u32 s%d, s%d, %d" % (sp, soff, const))
        s("buffer_load_dword v%d, v%d, s[8:11], s%d offen sc1" % (vd, vaddr, sp))
        self.mark(s, "pollI")

    def poll_check(self, s, vaddr, mask, alt=False):
        vP, sPoll = (vP2, sPoll2) if alt else (globals()["vP"], globals()["sPoll"])
        n = self.npoll
        self.npoll += 1
        self.mark(s, "chkA")
        s("v_cmp_ne_u32 vcc, s%d, v%d" % (sTag, vP))
        if mask is not None:
            s("s_and_b64 vcc, vcc, s[%d:%d]" % (mask, mask + 1))
        s("s_cbranch_vccnz SLOW_%d" % n).meta["glue"] = True
        s("BACK_%d:" % n).meta["glue"] = True
        s("s_barrier")
        self.mark(s, "chkB")
        t = []
        t.append("SLOW_%d:" % n)
        if self.prof == 5:
            t.append("  s_memtime s[0:1]")
            t.append("  s_waitcnt lgkmcnt(0)")
            t.append("  s_mov_b32 s%d, s0" % (sTS + 2 + n))
            self.tsnames5.append("poll%d" % n)
        t.append("  s_mov_b32 s%d, 0" % sCnt)
        t.append("SPIN_%d:" % n)
        t.append("  buffer_load_dword v%d, v%d, s[8:11], s%d offen sc1" % (vP, vaddr, sPoll))
        t.append("  s_waitcnt vmcnt(0)")
        t.append("  v_cmp_ne_u32 vcc, s%d, v%d" % (sTag, vP))
        t.append("  s_nop 1")
        if mask is not None:
            t.append("  s_and_b64 vcc, vcc, s[%d:%d]" % (mask, mask + 1))
        t.append("  s_cbranch_vccz %s_%d" % ("DONE" if self.prof == 5 else "BACK", n))
        t.append("  s_add_u32 s%d, s%d, 1" % (sCnt, sCnt))
        t.append("  s_cmp_lt_u32 s%d, %d" % (sCnt, POLL_LIMIT))
        t.append("  s_cbranch_scc1 SPIN_%d" % n)
        t.append("  s_branch BACK_%d" % n)
        if self.prof == 5:
            t.append("DONE_%d:" % n)
            t.append("  s_memtime s[0:1]")
            t.append("  s_waitcnt lgkmcnt(0)")
            t.append("  s_sub_u32 s%d, s0, s%d" % (sTS + 2 + n, sTS + 2 + n))
            t.append("  s_branch BACK_%d" % n)
        self.slow += t

    def dep(self, phase, p, h):
        if phase == 1:
            return (sP1a, flag_off(p - 1, 3, h), vPollH, sM16)
        if phase == 2:
            return (sP2, flag_off(p, 0, h), vPollB, sM2)
        if phase == 3:
            return (sP3, flag_off(p, 1, h), vPollA, sM16)
        return (sP4, flag_off(p, 2, h), vPollB, sM4)

    def ev_poll_issue(self, phase, p, h, alt=False):
        t = Stream()
        so, c, va, m = self.dep(phase, p, h)
        self.poll_issue(t, so, c, va, alt)
        return t

    def ev_poll_check(self, phase, p, h, alt=False):
        t = Stream()
        so, c, va, m = self.dep(phase, p, h)
        self.poll_check(t, va, m, alt)
        [x for x in t if x.text == "s_barrier"][-1].meta["checked"] = (phase, p, h)
        self.rt(t, "chk%d%s.%d" % (phase, "EO"[h], p))
        return t

    def ev_sig(self, phase, p, h, tok):
        t = Stream()
        self.sig(t, tok, sF3 if phase == 3 else sF1, flag_off(p, phase - 1, h), local=(self.local and phase != 4))
        self.rt(t, "sig%d%s.%d" % (phase, "EO"[h], p))
        return t

    def sig(self, s, tok, soff, const, local=False):
        self.mark(s, "sigA")
        s.wait_vm(tok)
        self.mark(s, "sigW")
        s("s_barrier")
        self.mark(s, "sigB")
        s("s_add_u32 s%d, s%d, %d" % (sT3, soff, const))
        if not local:
            s("buffer_store_dword v%d, v%d, s[8:11], s%d offen sc1" % (vOne, vFlag, sT3))
            return
        n = self.nimp
        self.nimp += 1
        s("s_cmp_eq_u32 s%d, 1" % sImp)
        s("s_cbranch_scc1 IMP_%d" % n).meta["glue"] = True
        s("buffer_store_dword v%d, v%d, s[8:11], s%d offen" % (vOne, vFlag, sT3)).meta["glue"] = True
        s("IMPB_%d:" % n)
        self.slow += ["IMP_%d:" % n,
                      "  buffer_store_dword v%d, v%d, s[8:11], s%d offen sc1" % (vOne, vFlag, sT3), "  s_branch IMPB_%d" % n]

    def groupsB(self, reg, sbase, lo, hi):
        out = []
        if self.opts.get("nob") == "1" and sbase != sBQ:
            return out
        if self.opts.get("nob") == "2" and sbase == sBG:
            return out
        for f in range(lo, hi):
            g = Stream()
            if f == lo or f % 4 == 0:
                g("s_add_u32 s%d, s%d, %d" % (sTB, sbase, (f // 4) * 4096))
            g("buffer_load_dwordx4 %s, v%d, s[8:11], s%d offen offset:%d" % (reg(f), vL16, sTB, (f % 4) * 1024)).meta["bname"] = \
                {sBQ: "Q", sBW: "W", sBG: "G", sBD: "D"}[sbase]
            out.append(g)
        return out

    def pf(self, sbase, const=0):
        g = Stream()
        if self.opts.get("pf") != "1":
            return g
        g("s_mov_b32 m0, %d" % JUNK)
        g("s_add_u32 s%d, s%d, %d" % (sT, sbase, const))
        g("buffer_load_dword v%d, s[8:11], s%d offen lds" % (vL128, sT))
        return g

    def groupsA_lds(self, phase, p, h):
        if phase == 1:
            srcs = [(sA1hw, 0), (sA1mw, 0), (sA1mw, 16384)]
            xb, st, sst = XB[2 * p], ST[2 * p], sSt1
        else:
            srcs = [(sA3w, i * 16384) for i in range(4)]
            xb, st, sst = XB[2 * p + 1], ST[2 * p + 1], sSt3
        groups, ctok = [], []
        def stats_groups():
            tk = None
            for i in range(2):
                g = Stream()
                g("s_lshl_b32 s%d, s%d, 11" % (sT2, sW))
                g("s_add_u32 m0, s%d, %d" % (sT2, STP + h * 8192))
                g("s_add_u32 s%d, s%d, %d" % (sT, sst, st + h * 131072))
                tk = g.vm("buffer_load_dwordx4 v%d, s[8:11], s%d offen offset:%d sc1 lds" % (vL16, sT, i * 1024))
                if not (phase == 1 and p == 0):
                    g[-1].meta["dep"] = (phase, p, h)
                groups.append(g)
            return tk
        stok = None
        for c in range(4):
            tk = None
            for sub, (sr, cc) in enumerate(srcs):
                g = Stream()
                g("s_add_u32 m0, s%d, %d" % (sKw1, REG[h] + sub * 16384 + c * 4096))
                g("s_add_u32 s%d, s%d, %d" % (sT, sr, xb + h * MB + cc + c * 4096))
                tk = g.vm("buffer_load_dwordx4 v%d, s[8:11], s%d offen sc1 lds" % (vL16, sT))
                if not (phase == 1 and p == 0):
                    g[-1].meta["dep"] = (phase, p, h)
                groups.append(g)
            ctok.append(tk)
            if c == 0:
                stok = stats_groups()
        return groups, stok, ctok

    def frag_seq(self, phase):
        nks = 4 if phase == 2 else 11
        return [(ss, ks) for ss in (1, 0) for ks in range(nks)]

    def ringreg(self, n):
        return RING + 4 * (n % 12)

    def loadA24_one(self, g, phase, p, h, n, st=sT):
        ss, ks = self.frag_seq(phase)[n]
        if phase == 2:
            if ss == 0:
                g("s_add_u32 s%d, s%d, %d" % (st, sA2, OB[p] + h * MB))
            else:
                g("s_add_u32 s%d, s%d, %d" % (st, sA2b, OB[p] + h * MB))
            g("buffer_load_dwordx4 %s, v%d, s[8:11], s%d offen offset:%d sc1" % (V(self.ringreg(n), 4), vL16, st, ks * 1024)).meta["dep"] = (phase, p, h)
        else:
            g("s_add_u32 s%d, s%d, %d" % (st, sA4 + ss, HB[p] + h * 3 * MB + (ks // 4) * 4096))
            g("buffer_load_dwordx4 %s, v%d, s[8:11], s%d offen offset:%d sc1" % (V(self.ringreg(n), 4), vL16, st, (ks % 4) * 1024)).meta["dep"] = (phase, p, h)

    def groupsA24(self, phase, p, h):
        out = []
        for n in range(min(12, len(self.frag_seq(phase)))):
            g = Stream()
            self.loadA24_one(g, phase, p, h, n)
            out.append(g)
        g = Stream()
        if self.direct and phase == 2 and p == 0:
            g("v_and_b32 v%d, 0xf0, v%d" % (RES, vL16))
            g("v_lshlrev_b32 v%d, 7, v%d" % (RES, RES))
            g("v_lshrrev_b32 v%d, 8, v%d" % (RES + 1, vL16))
            g("v_lshl_add_u32 v%d, v%d, 4, v%d" % (RES, RES + 1, RES))
            g("s_add_u32 s%d, s%d, %d" % (sT, sOutO, h * 1024))
            g("buffer_load_dwordx4 %s, v%d, s[88:91], s%d offen" % (V(RES, 4), RES, sT))
        else:
            g("s_add_u32 s%d, s%d, %d" % (sT, sRes, XB[2 * p + (0 if phase == 2 else 1)] + h * MB))
            g("buffer_load_dwordx4 %s, v%d, s[8:11], s%d offen sc1" % (V(RES, 4), vL16, sT))
        out.insert(min(4, len(out)), g)
        return out

    def stats_reduce(self, s, h, stok):
        a = RING
        adr = vStatR
        if h == 1:
            adr = RING + 8
            s("v_add_u32 v%d, 8192, v%d" % (adr, vStatR))
        s.wait_vm(stok)
        for i in range(4):
            s("ds_read2_b32 %s, v%d offset0:%d offset1:%d" % (V(a + 2 * i, 2), adr, 64 * i, 64 * i + 32))
        self.pause(s, 10)
        for (x, y) in ((0, 1), (2, 3), (4, 5), (6, 7), (0, 2), (4, 6), (0, 4)):
            s("v_add_f32 v%d, v%d, v%d" % (a + x, a + x, a + y))
        s("v_mov_b32 v%d, v%d" % (a + 1, a))
        s("v_permlane32_swap_b32 v%d, v%d" % (a, a + 1))
        s("v_add_f32 v%d, v%d, v%d" % (a, a, a + 1))
        s("v_mov_b32 v%d, v%d" % (a + 1, a))
        s("v_permlane16_swap_b32 v%d, v%d" % (a, a + 1))
        s("v_mul_f32 v%d, %s, v%d" % (a, "0x%08x" % fbits(-1.0 / 512), a))
        s("v_mul_f32 v%d, v%d, v%d" % (a + 2, a, a))
        s("v_fma_f32 v%d, v%d, s%d, -v%d" % (a + 1, a + 1, sK, a + 2))
        s("v_max_f32 v%d, 0, v%d" % (a + 1, a + 1))
        s("v_add_f32 v%d, s%d, v%d" % (a + 1, sK + 1, a + 1))
        s("v_rsq_f32 v%d, v%d" % (a + 1, a + 1))
        s("v_cndmask_b32 v%d, v%d, v%d, s[%d:%d]" % (a, a, a + 1, sOdd, sOdd + 1))
        self.stat_tok = Tok("statw")
        s("ds_write_b32 v%d, v%d offset:%d" % (vStatW, a, h * 1024), tok=self.stat_tok)

    def epi_pref(self, phase, h):
        hoff = h * 1024
        pub = Stream()
        pub.wait_ds(self.stat_tok)
        pub("s_barrier")
        if phase == 3:
            return {58: list(pub), 60: ["ds_read_b128 %s, v%d offset:768" % (V(68, 4), vCs)],
                    61: ["ds_read_b128 %s, v%d offset:832" % (V(72, 4), vCs)],
                    62: ["ds_read_b128 %s, v%d offset:896" % (V(76, 4), vCs)],
                    63: ["ds_read_b64 %s, v%d offset:%d" % (V(80, 2), vStI, hoff)]}
        return {37: list(pub), 38: ["ds_read_b128 %s, v%d offset:%d" % (V(52, 4), vStV, hoff)],
                39: ["ds_read_b128 %s, v%d offset:%d" % (V(56, 4), vStV, hoff + 256)],
                40: ["ds_read_b128 %s, v%d offset:%d" % (V(60, 4), vStV, hoff + 64)],
                41: ["ds_read_b128 %s, v%d offset:%d" % (V(64, 4), vStV, hoff + 256 + 64)],
                43: ["ds_read_b128 %s, v%d offset:64" % (V(80, 4), vCs)],
                44: ["ds_read_b32 v84, v%d" % vCsV],
                45: ["ds_read_b64 %s, v%d offset:%d" % (V(68, 2), vStI, hoff), "ds_read_b64 %s, v%d offset:%d" % (V(70, 2), vStI, hoff + 128)],
                46: ["ds_read_b64 %s, v%d offset:%d" % (V(72, 2), vStI, hoff + 256)],
                47: ["ds_read_b128 %s, v%d offset:0" % (V(76, 4), vCs)]}

    def mf13(self, phase, h):
        base = vL16 if h == 0 else vLO
        nsub = 3 if phase == 1 else 4
        nfr = 16 * nsub
        def rd(n):
            ks, sub = divmod(n, nsub)
            out = []
            if sub == 0 and ks % 4 == 0:
                out.append(("chunk", ks // 4))
            out.append("ds_read_b128 %s, v%d offset:%d" % (V(FR + 4 * (n % 5), 4), base, sub * 16384 + ks * 1024))
            return out
        pre = [x for n in range(5) for x in rd(n)]
        pref = self.epi_pref(phase, h)
        steps = []
        mm = "v_mfma_f32_16x16x32_bf16"
        Q = [None, ACC, ACC + 4]
        K = [ACC + 8, ACC + 12, ACC + 16]
        Vv = [ACC + 20, ACC + 24, ACC + 28]
        for ks in range(16):
            c = (lambda r: "0" if ks == 0 else V(r, 4))
            for sub in range(nsub):
                n = nsub * ks + sub
                x = V(FR + 4 * (n % 5), 4)
                grp = []
                if phase == 1:
                    if sub > 0:
                        grp.append("%s %s, %s, %s, %s" % (mm, V(Q[sub], 4), Bx(3 * ks), x, c(Q[sub])))
                    grp.append("%s %s, %s, %s, %s" % (mm, V(K[sub], 4), Bx(3 * ks + 1), x, c(K[sub])))
                    grp.append("%s %s, %s, %s, %s" % (mm, V(Vv[sub], 4), x, Bx(3 * ks + 2), c(Vv[sub])))
                else:
                    for j in range(3):
                        r = ACC + 12 * sub + 4 * j
                        grp.append("%s %s, %s, %s, %s" % (mm, V(r, 4), Bx(3 * ks + j), x, c(r)))
                for i, m in enumerate(grp):
                    bop = [o.strip() for o in m.split(",") if o.strip().startswith("a[")][0]
                    st = [Ins(m, need=(bop, "Q" if phase == 1 else "G"))]
                    if i == len(grp) - 1 and n + 5 < nfr:
                        st += rd(n + 5)
                    if i == len(grp) - 1:
                        st += pref.get(n, [])
                    steps.append(st)
        return pre, steps

    def mf24(self, phase, p, h):
        seq = self.frag_seq(phase)
        nks = len(seq) // 2
        m = min(nks, int(self.opts.get("m2" if phase == 2 else "m4", 4 if phase == 2 else 6)))
        order = []
        for n, (ss, ks) in enumerate(seq):
            if ss == 0 and ks >= nks - m:
                continue
            order += [(n, jj) for jj in range(4)]
        tail = [n for n, (ss, ks) in enumerate(seq) if ss == 0 and ks >= nks - m]
        order += [(n, jj) for n in tail for jj in (2, 3)]
        self.x1_done = len(order)
        order += [(n, jj) for n in tail for jj in (0, 1)]
        steps = []
        for n, jj in order:
            ss, ks = seq[n]
            x = V(self.ringreg(n), 4)
            r = ACC + 16 * ss + 4 * jj
            st = [Ins("v_mfma_f32_16x16x32_bf16 %s, %s, %s, %s" % (V(r, 4), By(4 * ks + jj), x, "0" if ks == 0 else V(r, 4)),
                      need=(By(4 * ks + jj), "W" if phase == 2 else "D"))]
            if n + 12 < len(seq):
                assert n not in tail
                t = Stream()
                self.loadA24_one(t, phase, p, h, n + 12, sT4)
                if jj == 2:
                    st.append(t[0])
                if jj == 3:
                    st.append(t[1])
            steps.append(st)
        return steps, 2 * len(seq)

    def red_writes(self, xs, h):
        t = Stream()
        so = SCR[h] - 65536
        for x in xs:
            t("v_xor_b32 v%d, %d, v%d" % (TMP + x - 1, x << 13, vRed))
        for x in xs:
            for jl in range(2):
                t("ds_write_b128 v%d, %s offset:%d" % (TMP + x - 1, V(ACC + 8 * x + 4 * jl, 4), so + x * 2048 + jl * 1024))
        return t

    def seg24_mf(self, s, phase, p, h, at=None):
        steps, half = self.mf24(phase, p, h)
        at = dict(at or {})
        w = self.red_writes((2, 3), h)
        at.setdefault(half + 9, []).insert(0, w)
        self.x1_written = False
        if self.x1_done + 9 <= len(steps) - 1:
            at.setdefault(self.x1_done + 9, []).append(self.red_writes((1,), h))
            self.x1_written = True
        self.run_mf(s, steps, at=at)

    def epi1(self, s, p, h):
        Q = [None, ACC, ACC + 4]
        K = [ACC + 8, ACC + 12, ACC + 16]
        Vv = [ACC + 20, ACC + 24, ACC + 28]
        SP = [None, 52, 60]
        SC = [None, 56, 64]
        st = [68, 70, 72]
        csq, csk, csv, cq = 76, 80, 84, 86
        hoff = h * 1024
        NM = [52, 60, 52]
        RS = [56, 64, 56]
        def rdv(sub):
            s("ds_read_b128 %s, v%d offset:%d" % (V(NM[sub], 4), vStV, hoff + sub * 64))
            s("ds_read_b128 %s, v%d offset:%d" % (V(RS[sub], 4), vStV, hoff + 256 + sub * 64))
        bc0 = "op_sel_hi:[0,1,1]"
        for sub in (1, 2):
            for hh in (0, 2):
                s("v_pk_fma_f32 %s, %s, %s, %s %s" % (V(Q[sub] + hh, 2), V(st[sub], 2), V(csq + hh, 2), V(Q[sub] + hh, 2), bc0))
            s("v_mul_f32 v%d, s%d, v%d" % (cq, sK + 2, st[sub] + 1))
            for hh in (0, 2):
                s("v_pk_mul_f32 %s, %s, %s op_sel_hi:[1,0]" % (V(Q[sub] + hh, 2), V(Q[sub] + hh, 2), V(cq, 2)))
            s("v_cvt_pk_bf16_f32 v%d, v%d, v%d" % (Q[sub], Q[sub], Q[sub] + 1))
            s("v_cvt_pk_bf16_f32 v%d, v%d, v%d" % (Q[sub] + 1, Q[sub] + 2, Q[sub] + 3))
        for sub in range(3):
            for hh in (0, 2):
                s("v_pk_fma_f32 %s, %s, %s, %s %s" % (V(K[sub] + hh, 2), V(st[sub], 2), V(csk + hh, 2), V(K[sub] + hh, 2), bc0))
            for hh in (0, 2):
                s("v_pk_mul_f32 %s, %s, %s op_sel:[0,1] op_sel_hi:[1,1]" % (V(K[sub] + hh, 2), V(K[sub] + hh, 2), V(st[sub], 2)))
            s("v_cvt_pk_bf16_f32 v%d, v%d, v%d" % (K[sub], K[sub], K[sub] + 1))
            s("v_cvt_pk_bf16_f32 v%d, v%d, v%d" % (K[sub] + 1, K[sub] + 2, K[sub] + 3))
        bp1, bp, bc = 68, 72, 76
        s("v_add_u32 v%d, %d, v%d" % (TMP + 2, BIAS, vL16))
        s("ds_read_b128 %s, v%d" % (V(bp1, 4), vB1))
        s("ds_read_b128 %s, v%d offset:1024" % (V(bp, 4), TMP + 2))
        s("ds_read_b128 %s, v%d offset:0" % (V(bc, 4), TMP + 2))
        for sub in range(3):
            for hh in (0, 2):
                s("v_pk_fma_f32 %s, %s, %s, %s op_sel_hi:[1,0,1]" % (V(Vv[sub] + hh, 2), V(NM[sub] + hh, 2), V(csv, 2), V(Vv[sub] + hh, 2)))
            for hh in (0, 2):
                s("v_pk_mul_f32 %s, %s, %s" % (V(Vv[sub] + hh, 2), V(Vv[sub] + hh, 2), V(RS[sub] + hh, 2)))
            if sub == 0:
                rdv(2)
            s("v_cvt_pk_bf16_f32 v%d, v%d, v%d" % (Vv[sub], Vv[sub], Vv[sub] + 1))
            s("v_cvt_pk_bf16_f32 v%d, v%d, v%d" % (Vv[sub] + 1, Vv[sub] + 2, Vv[sub] + 3))
        mm = "v_mfma_f32_16x16x16_bf16"
        s("%s %s, %s, %s, %s" % (mm, V(SP[1], 4), V(K[0], 2), V(Q[1], 2), V(bp1, 4)))
        s("%s %s, %s, %s, %s" % (mm, V(SC[1], 4), V(K[1], 2), V(Q[1], 2), V(bc, 4)))
        s("%s %s, %s, %s, %s" % (mm, V(SP[2], 4), V(K[1], 2), V(Q[2], 2), V(bp, 4)))
        s("%s %s, %s, %s, %s" % (mm, V(SC[2], 4), V(K[2], 2), V(Q[2], 2), V(bc, 4)))
        m = {1: 80, 2: 84}
        l = {1: 82, 2: 86}
        for sub in (1, 2):
            a, b = SP[sub], SC[sub]
            s("v_max3_f32 v%d, v%d, v%d, v%d" % (m[sub], a, a + 1, a + 2))
            s("v_max3_f32 v%d, v%d, v%d, v%d" % (m[sub] + 1, a + 3, b, b + 1))
            s("v_max3_f32 v%d, v%d, v%d, v%d" % (m[sub], m[sub], b + 2, b + 3))
            s("v_max_f32 v%d, v%d, v%d" % (m[sub], m[sub], m[sub] + 1))
        for sw in ("v_permlane16_swap_b32", "v_permlane32_swap_b32"):
            for sub in (1, 2):
                s("v_mov_b32 v%d, v%d" % (m[sub] + 1, m[sub]))
            for sub in (1, 2):
                s("%s v%d, v%d" % (sw, m[sub], m[sub] + 1))
            for sub in (1, 2):
                s("v_max_f32 v%d, v%d, v%d" % (m[sub], m[sub], m[sub] + 1))
        for sub in (1, 2):
            for r in (SP[sub], SP[sub] + 2, SC[sub], SC[sub] + 2):
                s("v_pk_add_f32 %s, %s, %s op_sel_hi:[1,0] neg_lo:[0,1] neg_hi:[0,1]" % (V(r, 2), V(r, 2), V(m[sub], 2)))
        for sub in (1, 2):
            for r in range(4):
                s("v_exp_f32 v%d, v%d" % (SP[sub] + r, SP[sub] + r))
                s("v_exp_f32 v%d, v%d" % (SC[sub] + r, SC[sub] + r))
        s("v_mov_b32 v76, 0x3f803f80")
        s("v_mov_b32 v77, 0x3f803f80")
        for sub in (1, 2):
            for r in (SP[sub], SC[sub]):
                s("v_cvt_pk_bf16_f32 v%d, v%d, v%d" % (r, r, r + 1))
                s("v_cvt_pk_bf16_f32 v%d, v%d, v%d" % (r + 1, r + 2, r + 3))
        lq = {1: 80, 2: 84}
        for sub in (1, 2):
            s("%s %s, %s, %s, 0" % (mm, V(lq[sub], 4), V(76, 2), V(SP[sub], 2)))
        for sub in (1, 2):
            s("%s %s, %s, %s, 0" % (mm, V(Q[sub], 4), V(Vv[sub - 1], 2), V(SP[sub], 2)))
        for sub in (1, 2):
            s("%s %s, %s, %s, %s" % (mm, V(lq[sub], 4), V(76, 2), V(SC[sub], 2), V(lq[sub], 4)))
        for sub in (1, 2):
            s("%s %s, %s, %s, %s" % (mm, V(Q[sub], 4), V(Vv[sub], 2), V(SC[sub], 2), V(Q[sub], 4)))
        l = lq
        for sub in (1, 2):
            s("v_rcp_f32 v%d, v%d" % (l[sub], l[sub]))
        for sub in (1, 2):
            for hh in (0, 2):
                s("v_pk_mul_f32 %s, %s, %s op_sel_hi:[1,0]" % (V(Q[sub] + hh, 2), V(Q[sub] + hh, 2), V(l[sub], 2)))
        o = ACC
        s("v_cvt_pk_bf16_f32 v%d, v%d, v%d" % (o, o, o + 1))
        s("v_cvt_pk_bf16_f32 v%d, v%d, v%d" % (o + 1, o + 2, o + 3))
        s("v_cvt_pk_bf16_f32 v%d, v%d, v%d" % (o + 2, o + 4, o + 5))
        s("v_cvt_pk_bf16_f32 v%d, v%d, v%d" % (o + 3, o + 6, o + 7))
        s("v_permlane16_swap_b32 v%d, v%d" % (o, o + 2))
        s("v_permlane16_swap_b32 v%d, v%d" % (o + 1, o + 3))
        s("s_add_u32 s%d, s%d, %d" % (sE, sOst, OB[p] + h * MB))
        return s.vm("buffer_store_dwordx4 %s, v%d, s[8:11], s%d offen%s" % (V(o, 4), vOst, sE, self.stm(1)))

    def epi3(self, s, p, h):
        csG, csU, csM = 68, 72, 76
        stp = [80, 82]
        c1 = 84
        hoff = h * 1024
        bq = TMP
        for sub in range(4):
            G, U, M = ACC + 12 * sub, ACC + 12 * sub + 4, ACC + 12 * sub + 8
            st = stp[sub & 1]
            if sub < 3:
                s("ds_read_b64 %s, v%d offset:%d" % (V(stp[(sub + 1) & 1], 2), vStI, hoff + (sub + 1) * 128))
            for (r, cs) in ((M, csM), (G, csG), (U, csU)):
                for hh in (0, 2):
                    s("v_pk_fma_f32 %s, %s, %s, %s op_sel_hi:[0,1,1]" % (V(r + hh, 2), V(st, 2), V(cs + hh, 2), V(r + hh, 2)))
            s("v_mul_f32 v%d, s%d, v%d" % (c1, sK + 3, st + 1))
            s("v_permlane16_swap_b32 v%d, v%d" % (M, M + 2))
            s("v_permlane16_swap_b32 v%d, v%d" % (M + 1, M + 3))
            gates = (G, G + 2, M)
            ups = (U, U + 2, M + 2)
            for r in gates:
                s("v_pk_mul_f32 %s, %s, %s op_sel_hi:[1,0]" % (V(r, 2), V(r, 2), V(c1, 2)))
            for r in gates:
                s("v_exp_f32 v%d, v%d" % (r, r))
                s("v_exp_f32 v%d, v%d" % (r + 1, r + 1))
            for r in ups:
                s("v_pk_mul_f32 %s, %s, %s op_sel:[0,1] op_sel_hi:[1,1]" % (V(r, 2), V(r, 2), V(st, 2)))
            for r in gates:
                s("v_pk_add_f32 %s, %s, s[%d:%d]" % (V(r, 2), V(r, 2), sOnes, sOnes + 1))
            for r in gates:
                s("v_rcp_f32 v%d, v%d" % (r, r))
                s("v_rcp_f32 v%d, v%d" % (r + 1, r + 1))
            for g, u in zip(gates, ups):
                s("v_pk_mul_f32 %s, %s, %s" % (V(u, 2), V(u, 2), V(g, 2)))
            dst = ACC + 12 * (sub & ~1) + 2 * (sub & 1)
            s("v_cvt_pk_bf16_f32 v%d, v%d, v%d" % (dst, U, U + 1))
            s("v_cvt_pk_bf16_f32 v%d, v%d, v%d" % (dst + 1, U + 2, U + 3))
            s("v_cvt_pk_bf16_f32 v%d, v%d, v%d" % (bq + sub, M + 2, M + 3))
        s("s_add_u32 s%d, s%d, %d" % (sE, sHst, HB[p] + h * 3 * MB))
        for pr in range(2):
            d = ACC + 24 * pr
            s("v_permlane16_swap_b32 v%d, v%d" % (d, d + 2))
            s("v_permlane16_swap_b32 v%d, v%d" % (d + 1, d + 3))
            if pr == 1:
                s("s_add_u32 s%d, s%d, %d" % (sE2, sE, 2 * 48 * KB))
            s.vm("buffer_store_dwordx4 %s, v%d, s[8:11], s%d offen%s" % (V(d, 4), vH1, sE if pr == 0 else sE2, self.stm(3)))
        s("v_permlane16_swap_b32 v%d, v%d" % (bq, bq + 1))
        s("v_permlane16_swap_b32 v%d, v%d" % (bq + 2, bq + 3))
        s("v_permlane32_swap_b32 v%d, v%d" % (bq, bq + 2))
        s("v_permlane32_swap_b32 v%d, v%d" % (bq + 1, bq + 3))
        return s.vm("buffer_store_dwordx4 %s, v%d, s[8:11], s%d offen%s" % (V(bq, 4), vH2, sE, self.stm(3)))

    def epi24(self, s, phase, p, h, sig=None, mid=None):
        so = SCR[h] - 65536
        a = ACC
        if not self.x1_written:
            s.extend(self.red_writes((1,), h))
        if sig is not None:
            s.wait_vm(sig[3])
        s.wait_ds()
        s("s_barrier")
        if sig is not None:
            s("s_add_u32 s%d, s%d, %d" % (sT3, sF3 if sig[0] == 3 else sF1, flag_off(sig[1], sig[0] - 1, sig[2])))
            s("buffer_store_dword v%d, v%d, s[8:11], s%d offen sc1" % (vOne, vFlag, sT3))
        for x in (1, 2, 3):
            for jl in range(2):
                s("ds_read_b128 %s, v%d offset:%d" % (V(a + 8 * x + 4 * jl, 4), vRed, so + x * 2048 + jl * 1024))
        r = 52
        for i in range(4):
            s("v_lshlrev_b32 v%d, 16, v%d" % (r + 2 * i, RES + i))
            s("v_and_b32 v%d, 0xffff0000, v%d" % (r + 2 * i + 1, RES + i))
        for i in range(4):
            s("v_pk_add_f32 %s, %s, %s" % (V(a + 2 * i, 2), V(a + 2 * i, 2), V(r + 2 * i, 2)))
        for x in (1, 2, 3):
            for i in range(4):
                s("v_pk_add_f32 %s, %s, %s" % (V(a + 2 * i, 2), V(a + 2 * i, 2), V(a + 8 * x + 2 * i, 2)))
        o = 60
        for i in range(4):
            s("v_cvt_pk_bf16_f32 v%d, v%d, v%d" % (o + i, a + 2 * i, a + 2 * i + 1))
        final = (phase == 4 and p == 1)
        if final:
            s("s_add_u32 s%d, s%d, %d" % (sE, sOutO, h * 1024))
            s("v_and_b32 v52, 0xf0, v%d" % vL16)
            s("v_lshlrev_b32 v52, 7, v52")
            s("v_lshrrev_b32 v53, 8, v%d" % vL16)
            s("v_lshl_add_u32 v52, v53, 4, v52")
            tk = s.vm("buffer_store_dwordx4 %s, v52, s[12:15], s%d offen%s" % (V(o, 4), sE, {"0": "", "1": " sc1", "2": " nt"}[self.opts.get("outsc", "1")]))
            if mid is not None:
                s.extend(mid)
            return tk
        xi = 2 * p + (1 if phase == 2 else 2)
        s("s_add_u32 s%d, s%d, %d" % (sE, sRes, XB[xi] + h * MB))
        s.vm("buffer_store_dwordx4 %s, v%d, s[8:11], s%d offen%s" % (V(o, 4), vL16, sE, self.stm(phase)))
        if mid is not None:
            s.extend(mid)
        u = 52
        s("v_pk_add_f32 %s, %s, %s" % (V(u, 2), V(a, 2), V(a + 2, 2)))
        s("v_pk_add_f32 %s, %s, %s" % (V(u + 2, 2), V(a + 4, 2), V(a + 6, 2)))
        s("v_pk_mul_f32 %s, %s, %s" % (V(u + 4, 2), V(a, 2), V(a, 2)))
        s("v_pk_add_f32 %s, %s, %s" % (V(u, 2), V(u, 2), V(u + 2, 2)))
        for i in (1, 2, 3):
            s("v_pk_fma_f32 %s, %s, %s, %s" % (V(u + 4, 2), V(a + 2 * i, 2), V(a + 2 * i, 2), V(u + 4, 2)))
        s("v_add_f32 v%d, v%d, v%d" % (u, u, u + 1))
        s("v_add_f32 v%d, v%d, v%d" % (u + 1, u + 4, u + 5))
        s("v_permlane16_swap_b32 v%d, v%d" % (u, u + 1))
        s("v_add_f32 v%d, v%d, v%d" % (u, u, u + 1))
        s("v_mov_b32 v%d, v%d" % (u + 1, u))
        s("v_permlane32_swap_b32 v%d, v%d" % (u, u + 1))
        s("v_add_f32 v%d, v%d, v%d" % (u, u, u + 1))
        s("s_add_u32 s%d, s%d, %d" % (sE, sStO, ST[xi] + h * 131072))
        s("v_lshrrev_b32 v%d, 2, v%d" % (u + 2, vL16))
        s("s_mov_b32 exec_hi, 0")
        tok = s.vm("buffer_store_dword v%d, v%d, s[8:11], s%d offen%s" % (u, u + 2, sE, self.stm(phase)))
        s("s_mov_b32 exec_hi, -1")
        return tok

    def codepf(self, sw=16):
        if self.opts.get("nocpf") == "1":
            return ""
        n = int(self.opts.get("cpf", 2))
        t = ["s_getpc_b64 s[56:57]", "M_pc:", "s_lshl_b32 s58, s%d, 13" % sw, "v_lshlrev_b32 v128, 7, v1", "v_add_u32 v128, s58, v128"]
        for i in range(n):
            t.append("v_min_u32 v129, M_last-M_pc, v128")
            t.append("global_load_dword v%d, v129, s[56:57]" % (134 + i))
            if i < n - 1:
                t.append("v_add_u32 v128, 0x8000, v128")
        return "\n".join(t)

    def pro_ids(self, s, t):
        s("""
        v_lshrrev_b32 v20, 6, v0
        v_and_b32 v%d, 63, v0
        v_readfirstlane_b32 s%d, v20
        v_lshlrev_b32 v%d, 4, v%d
        s_and_b32 s32, s2, 7
        s_lshr_b32 s33, s2, 3
        s_lshr_b32 s34, s32, 1
        s_and_b32 s35, s32, 1
        """ % (vLane, sW, vL16, vLane))
        if self.local:
            s("""
            s_lshl_b32 s{rb}, s32, 2
            s_lshr_b32 s{t}, s33, 3
            s_add_u32 s{rb}, s{rb}, s{t}
            s_and_b32 s{cg}, s33, 7
            s_lshl_b32 s{rb3}, s32, 1
            s_lshr_b32 s{t}, s33, 4
            s_add_u32 s{rb3}, s{rb3}, s{t}
            s_and_b32 s{cg3}, s33, 15
            """.format(rb=sRB, cg=sCG, rb3=sRB3, cg3=sCG3, t=t))
        else:
            s("""
            s_lshl_b32 s{rb}, s34, 3
            s_lshr_b32 s{t}, s33, 2
            s_add_u32 s{rb}, s{rb}, s{t}
            s_lshl_b32 s{cg}, s35, 2
            s_and_b32 s{t}, s33, 3
            s_add_u32 s{cg}, s{cg}, s{t}
            s_lshl_b32 s{rb3}, s34, 2
            s_lshr_b32 s{t}, s33, 3
            s_add_u32 s{rb3}, s{rb3}, s{t}
            s_lshl_b32 s{cg3}, s35, 3
            s_and_b32 s{t}, s33, 7
            s_add_u32 s{cg3}, s{cg3}, s{t}
            """.format(rb=sRB, cg=sCG, rb3=sRB3, cg3=sCG3, t=t))

    def prologue(self, s):
        single = self.opts.get("single", "1") == "1"
        s("""
        s_load_dwordx2 s[4:5], s[0:1], 72
        s_load_dwordx2 s[6:7], s[0:1], 56
        """)
        if not single:
            s("s_cmp_ge_u32 s2, 256")
            s("s_cbranch_scc1 M_end")
        self.pro_ids(s, 36)
        if not single:
            s(self.codepf())
        s("""
        s_waitcnt lgkmcnt(0)
        s_mov_b32 s8, s4
        s_and_b32 s9, s5, 0xffff
        s_mov_b32 s10, 0x10000000
        s_mov_b32 s11, 0x20000
        s_mov_b32 s12, s6
        s_and_b32 s13, s7, 0xffff
        s_mov_b32 s14, 0x200000
        s_mov_b32 s15, 0x20000
        """)
        self.pro_rest(s)

    def pro_rest(self, s):
        s("""
        s_lshl_b32 s36, s{cg}, 2
        s_add_u32 s36, s36, s{w}
        s_mul_i32 s{bq}, s36, {k48}
        s_add_u32 s{bq}, s{bq}, {PQ}
        s_lshl_b32 s{bw}, s36, 14
        s_add_u32 s{bw}, s{bw}, {PW}
        s_mul_i32 s{bd}, s36, {k44}
        s_add_u32 s{bd}, s{bd}, {PD}
        s_lshl_b32 s37, s{cg3}, 2
        s_add_u32 s37, s37, s{w}
        s_mul_i32 s{bg}, s37, {k48}
        s_add_u32 s{bg}, s{bg}, {PG}
        s_lshl_b32 s{kw}, s{w}, 12
        s_lshl_b32 s{a1m}, s{rb}, 15
        s_lshl_b32 s{a3}, s{rb3}, 16
        s_sub_u32 s{a1h}, s{a1m}, 16384
        s_max_i32 s{a1h}, s{a1h}, 0
        """.format(cg=sCG, w=sW, bq=sBQ, bw=sBW, bd=sBD, bg=sBG, cg3=sCG3, kw=sKw, a1m=sA1m, a3=sA3, a1h=sA1h, rb=sRB, rb3=sRB3,
                   k48=48 * KB, k44=44 * KB, PQ=PQ, PW=PW, PD=PD, PG=PG))
        s("""
        s_lshl_b32 s38, s{rb}, 1
        s_add_u32 s38, s38, s{w}
        s_sub_u32 s38, s38, 1
        s_max_i32 s38, s38, 0
        s_lshl_b32 s{st1}, s38, 11
        s_lshl_b32 s38, s{rb3}, 2
        s_add_u32 s38, s38, s{w}
        s_lshl_b32 s{st3}, s38, 11
        """.format(rb=sRB, w=sW, st1=sSt1, rb3=sRB3, st3=sSt3))
        s("""
        s_lshr_b32 s38, s{w}, 1
        s_and_b32 s39, s{w}, 1
        s_lshl_b32 s40, s{cg}, 1
        s_add_u32 s59, s40, s38
        s_lshl_b32 s59, s59, 10
        s_lshl_b32 s60, s39, 9
        s_add_u32 s59, s59, s60
        s_add_u32 s{ost}, s59, s{a1m}
        """.format(w=sW, cg=sCG, ost=sOst, a1m=sA1m))
        s("""
        s_lshl_b32 s59, s38, 14
        s_add_u32 s59, s59, s{a1m}
        s_add_u32 s{a2}, s59, s{kw}
        s_add_u32 s60, s40, s39
        s_lshl_b32 s61, s60, 10
        s_add_u32 s{res}, s59, s61
        s_lshr_b32 s{sto}, s59, 3
        s_lshl_b32 s61, s60, 7
        s_add_u32 s{sto}, s{sto}, s61
        """.format(a1m=sA1m, a2=sA2, kw=sKw, res=sRes, sto=sStO))
        s("""
        s_lshl_b32 s59, s{rb}, 1
        s_add_u32 s59, s59, s38
        s_lshl_b32 s{out}, s59, 15
        s_lshl_b32 s61, s60, 6
        s_add_u32 s{out}, s{out}, s61
        """.format(rb=sRB, out=sOutO))
        s("""
        s_mul_i32 s{hst}, s{rb3}, {k192}
        s_mul_i32 s61, s{cg3}, 12
        s_mul_i32 s62, s{w}, 3
        s_add_u32 s61, s61, s62
        s_lshl_b32 s61, s61, 8
        s_add_u32 s{hst}, s{hst}, s61
        s_mul_i32 s62, s{w}, {k11}
        s_mul_i32 s{a4}, s59, {k48}
        s_add_u32 s{a4}, s{a4}, s62
        s_xor_b32 s59, s59, 1
        s_mul_i32 s{a4b}, s59, {k48}
        s_add_u32 s{a4b}, s{a4b}, s62
        """.format(hst=sHst, rb3=sRB3, cg3=sCG3, w=sW, a4=sA4, a4b=sA4 + 1, k192=192 * KB, k11=11 * KB, k48=48 * KB))
        return

    def prologue2(self, s):
        s("""
        s_lshl_b32 s59, s{cg}, 2
        s_lshl_b32 s60, s{rb}, 8
        s_add_u32 s{f1}, s60, s59
        s_lshl_b32 s59, s{cg3}, 2
        s_lshl_b32 s61, s{rb3}, 8
        s_add_u32 s{f3}, s61, s59
        s_mov_b32 s{p2}, s60
        s_lshl_b32 s{p3}, s{rb3}, 9
        s_lshr_b32 s61, s{rb}, 1
        s_lshl_b32 s{p4}, s61, 8
        s_cmp_eq_u32 s{rb}, 0
        s_cselect_b32 s61, 0, 256
        s_sub_u32 s{p1}, s60, s61
        v_lshrrev_b32 v20, 3, v{lane}
        v_mul_lo_u32 v20, v20, s61
        v_and_b32 v21, 7, v{lane}
        v_lshl_add_u32 v{ph}, v21, 2, v20
        """.format(lane=vLane, ph=vPollH, cg=sCG, w=sW, rb=sRB, f1=sF1, cg3=sCG3, rb3=sRB3, f3=sF3, p2=sP2, p3=sP3, p4=sP4, p1=sP1a))
        s("""
        s_cmp_eq_u32 s{w}, 1
        s_cselect_b32 s{m2}, 0xff, 0
        s_mov_b32 s{m2h}, 0
        s_cselect_b32 s{m4}, 0x7fff, 0
        s_mov_b32 s{m4h}, 0
        s_cselect_b32 s{m16}, 0xffff, 0
        s_mov_b32 s{m16h}, 0
        s_mov_b32 s{odd}, 0xffff0000
        s_mov_b32 s{oddh}, 0xffff0000
        s_mov_b32 s{one}, 1.0
        s_mov_b32 s{oneh}, 1.0
        s_mov_b32 s{k0}, {c0}
        s_mov_b32 s{k1}, {c1}
        s_mov_b32 s{k2}, {c2}
        s_mov_b32 s{k3}, {c3}
        """.format(w=sW, m2=sM2, m2h=sM2 + 1, m4=sM4, m4h=sM4 + 1, m16=sM16, m16h=sM16 + 1, odd=sOdd, oddh=sOdd + 1, one=sOnes, oneh=sOnes + 1,
                   k0=sK, k1=sK + 1, k2=sK + 2, k3=sK + 3,
                   c0="0x%08x" % fbits(1.0 / 512), c1="0x%08x" % fbits(1e-5), c2="0x%08x" % fbits(0.25 * LOG2E), c3="0x%08x" % fbits(-LOG2E)))
        s("""
        v_and_b32 v20, 15, v{lane}
        v_lshrrev_b32 v21, 4, v{lane}
        v_add_u32 v{lo}, 65536, v{l16}
        v_lshlrev_b32 v22, 4, v20
        v_and_b32 v23, 1, v21
        v_lshrrev_b32 v24, 1, v21
        v_lshl_add_u32 v25, v24, 8, v22
        v_lshl_add_u32 v{ost}, v23, 14, v25
        v_mul_u32_u24 v26, {k48}, v23
        v_add_u32 v{h1}, v26, v25
        v_mul_u32_u24 v26, {k48}, v21
        v_add_u32 v26, v26, v22
        v_add_u32 v{h2}, 512, v26
        s_lshl_b32 s59, s{w}, 13
        s_add_u32 s59, s59, 65536
        v_add_u32 v{red}, s59, v{l16}
        v_lshrrev_b32 v26, 3, v{lane}
        v_and_b32 v27, 7, v{lane}
        v_lshlrev_b32 v27, 2, v27
        v_lshl_add_u32 v{pa}, v26, 8, v27
        v_lshlrev_b32 v{pb}, 2, v{lane}
        s_cmp_eq_u32 s{w}, 1
        s_cselect_b32 s59, 16, 0
        v_cmp_gt_u32 vcc, s59, v{lane}
        v_mov_b32 v27, 0x7ffffff0
        v_cndmask_b32 v{pa}, v27, v{pa}, vcc
        v_cndmask_b32 v{pb}, v27, v{pb}, vcc
        v_cndmask_b32 v{ph}, v27, v{ph}, vcc
        v_lshlrev_b32 v{out}, 7, v{lane}
        v_cmp_gt_u32 vcc, 16, v{lane}
        v_cndmask_b32 v{out}, v27, v{out}, vcc
        v_mov_b32 v{one}, 1
        """.format(lane=vLane, lo=vLO, l16=vL16, ost=vOst, h1=vH1, h2=vH2, red=vRed, pa=vPollA, pb=vPollB, ph=vPollH, out=vOut, one=vOne, w=sW, k48=48 * KB))
        s("""
        s_lshl_b32 s59, s{w}, 11
        s_add_u32 s59, s59, {stp}
        v_lshlrev_b32 v26, 10, v24
        v_lshl_add_u32 v26, v23, 6, v26
        v_lshl_add_u32 v26, v20, 2, v26
        v_add_u32 v{sr}, s59, v26
        """.format(w=sW, stp=STP, sr=vStatR))
        s("""
        s_lshl_b32 s59, s{w}, 7
        s_lshl_b32 s60, s{w}, 6
        v_lshlrev_b32 v26, 3, v20
        v_lshl_add_u32 v26, v23, 2, v26
        v_add_u32 v26, s59, v26
        v_lshlrev_b32 v27, 2, v20
        v_lshl_add_u32 v27, v23, 8, v27
        v_add_u32 v27, s60, v27
        v_add_u32 v27, 512, v27
        v_cmp_gt_u32 vcc, 2, v21
        v_cndmask_b32 v26, v27, v26, vcc
        v_add_u32 v{sw}, {stf}, v26
        v_lshlrev_b32 v26, 3, v20
        v_add_u32 v{si}, {stf}, v26
        v_lshlrev_b32 v26, 4, v21
        v_add_u32 v{sv}, {stfn}, v26
        s_mul_i32 s59, s{w}, 192
        s_add_u32 s59, s59, {csl}
        v_add_u32 v{cs}, s59, v26
        v_lshlrev_b32 v27, 2, v20
        v_add_u32 v27, s59, v27
        v_add_u32 v{csv}, 128, v27
        """.format(w=sW, sw=vStatW, stf=STF, si=vStI, sv=vStV, stfn=STF + 512, csl=CSL, cs=vCs, csv=vCsV))
        shq, shg = (3, 4) if self.local else (2, 3)
        nq, ng = 4 * (32 >> shq), 4 * (32 >> shg)
        self.pf_n = {"Q": -(-192 * KB // nq // 2048), "W": -(-64 * KB // nq // 2048), "D": -(-176 * KB // nq // 2048), "G": -(-192 * KB // ng // 2048)}
        assert not (self.direct and self.opts.get("pf") == "1")
        (s if self.opts.get("pf") == "1" else (lambda t: None))("""
        s_lshr_b32 s59, s2, 3
        s_lshr_b32 s60, s59, {shq}
        s_lshl_b32 s60, s60, 2
        s_add_u32 s60, s60, s{w}
        s_mul_i32 s61, s{cg}, {k192}
        s_mul_i32 s62, s60, {q6}
        s_add_u32 s{pq}, s61, s62
        s_add_u32 s{pq}, s{pq}, {PQ}
        s_lshl_b32 s61, s{cg}, 16
        s_mul_i32 s62, s60, {w2}
        s_add_u32 s{pw}, s61, s62
        s_add_u32 s{pw}, s{pw}, {PW}
        s_mul_i32 s61, s{cg}, {k176}
        s_mul_i32 s62, s60, {d55}
        s_add_u32 s{pd}, s61, s62
        s_add_u32 s{pd}, s{pd}, {PD}
        s_lshr_b32 s60, s59, {shg}
        s_lshl_b32 s60, s60, 2
        s_add_u32 s60, s60, s{w}
        s_mul_i32 s61, s{cg3}, {k192}
        s_mul_i32 s62, s60, {g12}
        s_add_u32 s{pg}, s61, s62
        s_add_u32 s{pg}, s{pg}, {PG}
        """.format(w=sW, cg=sCG, cg3=sCG3, pq=sPfQ, pw=sPfW, pd=sPfD, pg=sPfG, k192=192 * KB, k176=176 * KB, q6=192 * KB // nq, w2=64 * KB // nq,
                   d55=176 * KB // nq, g12=192 * KB // ng, PQ=PQ, PW=PW, PD=PD, PG=PG, shq=shq, shg=shg))
        s("""
        v_lshlrev_b32 v26, 2, v21
        v_sub_u32 v26, v20, v26
        v_mov_b32 v27, 0xf149f2ca
        v_mov_b32 v28, 0
        """)
        for r in range(4):
            s("v_subrev_u32 v29, %d, v26" % r)
            s("v_cmp_gt_u32 vcc, 8, v29")
            s("v_cndmask_b32 v%d, v27, v28, vcc" % (32 + r))
            s("v_cmp_gt_i32 vcc, -8, v29")
            s("v_cndmask_b32 v%d, v27, v28, vcc" % (36 + r))
            s("v_mov_b32 v%d, v27" % (40 + r))
        s("v_add_u32 v30, %d, v%d" % (BIAS, vL16))
        s.wait_ds()
        s("ds_write_b128 v30, v[32:35]")
        s("ds_write_b128 v30, v[36:39] offset:1024")
        s("ds_write_b128 v30, v[40:43] offset:2048")
        s("""
        s_cmp_eq_u32 s{rb}, 0
        s_cselect_b32 s59, 2, 1
        s_lshl_b32 s59, s59, 10
        v_add_u32 v{b1}, s59, v30
        """.format(rb=sRB, b1=vB1))

    def colsums(self, s, ks, r0=44, first=True):
        single = self.opts.get("single", "1") == "1"
        ks = list(ks)
        R = lambda k: r0 + 4 * (k - ks[0])
        for k in ks:
            r = R(k)
            s("v_add_f32 v%d, v%d, v%d" % (r, r, r + 1))
            s("v_add_f32 v%d, v%d, v%d" % (r + 2, r + 2, r + 3))
            s("v_add_f32 v%d, v%d, v%d" % (r, r, r + 2))
            if not single:
                s("v_add_f32_dpp v%d, v%d, v%d quad_perm:[1,0,3,2] row_mask:0xf bank_mask:0xf" % (r, r, r))
                s("v_add_f32_dpp v%d, v%d, v%d quad_perm:[2,3,0,1] row_mask:0xf bank_mask:0xf" % (r, r, r))
        if single:
            for sw in ("v_permlane16_swap_b32", "v_permlane32_swap_b32"):
                for k in ks:
                    s("v_mov_b32 v%d, v%d" % (R(k) + 1, R(k)))
                for k in ks:
                    s("%s v%d, v%d" % (sw, R(k), R(k) + 1))
                for k in ks:
                    s("v_add_f32 v%d, v%d, v%d" % (R(k), R(k), R(k) + 1))
        a = R(ks[-1]) + 2
        if single:
            s("v_and_b32 v%d, 0xf0, v%d" % (a, vL16))
            s("v_lshrrev_b32 v%d, 2, v%d" % (a, a))
        else:
            s("v_lshrrev_b32 v%d, 6, v%d" % (a, vL16))
            s("v_lshlrev_b32 v%d, 2, v%d" % (a, a))
        s("s_mul_i32 s59, s%d, 192" % sW)
        s("s_add_u32 s59, s59, %d" % CSL)
        s("v_add_u32 v%d, s59, v%d" % (a, a))
        for k in ks:
            s("ds_write_b32 v%d, v%d offset:%d" % (a, R(k), (k // 3) * 768 + (k % 3) * 64))
        if first:
            if not single:
                self.flag_vec(s)
            s("v_mov_b32 v%d, v%d" % (vFlag, self.vflag_tmp))

    vflag_tmp = 87

    def flag_vec(self, s):
        s("s_cmp_eq_u32 s%d, 0" % sW)
        s("s_cselect_b32 s59, 1, 0")
        s("v_cmp_gt_u32 vcc, s59, v%d" % vLane)
        s("v_mov_b32 v27, 0x7ffffff0")
        s("v_cndmask_b32 v%d, v27, 0, vcc" % self.vflag_tmp)
        s("v_mov_b32 v60, v%d" % self.vflag_tmp)

    def global_issue(self, s):
        s("""
        s_mul_i32 s58, s{cg}, 12
        v_add_u32 v89, s58, v{lane}
        v_subrev_u32 v90, 12, v{lane}
        v_mul_u32_u24 v91, 21846, v90
        v_lshrrev_b32 v91, 16, v91
        v_mul_u32_u24 v92, 3, v91
        v_sub_u32 v92, v90, v92
        s_lshl_b32 s58, s{rb}, 1
        v_add_u32 v92, s58, v92
        v_subrev_u32 v92, 1, v92
        v_max_i32 v92, 0, v92
        v_lshl_add_u32 v92, v91, 6, v92
        v_add_u32 v92, 96, v92
        v_cmp_gt_u32 vcc, 12, v{lane}
        v_cndmask_b32 v89, v92, v89, vcc
        v_lshrrev_b32 v90, 3, v89
        v_and_b32 v89, 7, v89
        v_lshlrev_b32 v89, 2, v89
        v_lshl_add_u32 v89, v90, 7, v89
        s_cmp_eq_u32 s{w}, 1
        s_cselect_b32 s58, 18, 0
        v_cmp_gt_u32 vcc, s58, v{lane}
        v_mov_b32 v90, 0x7ffffff0
        v_cndmask_b32 v89, v90, v89, vcc
        s_cselect_b32 s{m}, 0x3ffff, 0
        s_mov_b32 s{mh}, 0
        s_mov_b32 s{p}, {pfl}
        buffer_load_dword v92, v89, s[8:11], s{p} offen sc1
        """.format(lane=vLane, w=sW, p=sPoll, pfl=PFL, cg=sCG, rb=sRB, m=4, mh=5))

    def global_check(self, s):
        n = self.npoll
        self.npoll += 1
        s("v_cmp_ne_u32 vcc, s%d, v92" % sTag)
        s("s_and_b64 vcc, vcc, s[4:5]")
        s("s_cbranch_vccnz SLOW_%d" % n)
        s("BACK_%d:" % n)
        s("s_barrier")
        self.slow += ["SLOW_%d:" % n, "  s_mov_b32 s%d, 0" % sCnt, "SPIN_%d:" % n,
                      "  buffer_load_dword v92, v89, s[8:11], s%d offen sc1" % sPoll, "  s_waitcnt vmcnt(0)",
                      "  v_cmp_ne_u32 vcc, s%d, v92" % sTag, "  s_nop 1", "  s_and_b64 vcc, vcc, s[4:5]",
                      "  s_cbranch_vccz BACK_%d" % n, "  s_add_u32 s%d, s%d, 1" % (sCnt, sCnt), "  s_cmp_lt_u32 s%d, %d" % (sCnt, POLL_LIMIT),
                      "  s_cbranch_scc1 SPIN_%d" % n, "  s_branch BACK_%d" % n]

    hold = False

    def tick(self, s, bulk=True):
        if self.urgent:
            s.extend(self.urgent.popleft())
            return True
        if bulk and self.bulk and not self.hold:
            s.extend(self.bulk.popleft())
            return True
        return False

    def flush_urgent(self, s):
        while self.urgent:
            s.extend(self.urgent.popleft())

    def burst(self, s, n):
        for _ in range(n):
            self.tick(s)

    @staticmethod
    def cost(ins):
        c = ins.cls
        if c == "valu":
            return 8 if (ins.meta.get("trans") or ins.meta.get("perm")) else 4
        if c in ("vm_ld", "vm_dma", "vm_st"):
            return 8
        if c in ("ds_rd", "ds_wr"):
            return 4
        if c == "salu":
            return 2.5
        if c in ("pseudo", "label"):
            return 0 if ins.text in ("@comment", "@mark") or c == "label" else 2
        return 3

    def progressive(self, groups, per_ks):
        for f, g in enumerate(groups):
            g.min_step = max(per_ks * (f // 3 + 1) + 2, int(self.opts.get("pg0", 0)) + int(float(self.opts.get("pgr", 0)) * f))
        return groups

    def clear_min(self):
        for g in self.bulk:
            g.min_step = 0

    def set_hold(self, v):
        def f():
            self.hold = v
        return f

    def delay(self, s, clks):
        n = max(0, int(clks) // 64)
        if n:
            s("s_sleep %d" % n)

    def evs(self, key, default):
        v = self.opts.get(key)
        return tuple(int(x) for x in v.split(",")) if v else default

    def run_mf(self, s, steps, at=None, fill=None, rate=4, ctok=None, fill_from=2, urate=None):
        at = at or {}
        urate = urate or rate
        fill = deque(fill or [])
        ev, cur = deque(), deque()
        last_vm = -rate
        last_tr = -12
        isvm = lambda x: x.cls in ("vm_ld", "vm_dma", "vm_st")
        def mk(x):
            if isinstance(x, Ins):
                return [x]
            if isinstance(x, tuple):
                t = Stream()
                self.mark(t, "chA%d" % x[1])
                t.wait_vm(ctok[x[1]])
                t("s_barrier")
                self.mark(t, "chB%d" % x[1])
                return list(t)
            t = Stream()
            t(x)
            return list(t)
        def push_ev(e):
            if isinstance(e, Stream):
                ev.extend(e)
            else:
                c = Ins("@comment")
                c.meta["c"] = "release"
                c.meta["call"] = e
                ev.append(c)
        def emit_from(q, budget):
            while q:
                c = self.cost(q[0])
                if c > budget and not (budget >= 8 - 1e-9):
                    break
                x = q.popleft()
                s.append(x)
                if x.meta.get("call"):
                    x.meta["call"]()
                budget -= c
                while x.meta.get("glue") and q:
                    x = q.popleft()
                    s.append(x)
                    if x.meta.get("call"):
                        x.meta["call"]()
                if budget <= 0:
                    break
            return budget
        n = len(steps)
        for i, st in enumerate(steps):
            for e in at.get(i, []):
                push_ev(e)
            if i % int(self.opts.get("fstep", 16)) == 0:
                self.fs(s, "mf%d" % i)
            budget = 8.0
            main = [y for x in st for y in mk(x)]
            if any(x.text == "@waitds" and x.meta.get("tok") is not None for x in main):
                while fill:
                    x = fill.popleft()
                    s.append(x)
            for x in main:
                s.append(x)
            for x in main[1:]:
                budget -= self.cost(x)
                if isvm(x):
                    last_vm = i
            if any(x.cls == "ds_rd" for x in main[1:]):
                budget -= 2
            if budget <= 0:
                continue
            if ev:
                had_vm = any(isvm(x) for x in list(ev)[:1])
                budget = emit_from(ev, budget)
                if had_vm:
                    last_vm = i
                if budget <= 0:
                    continue
            if not cur and self.trickle and not self.urgent and i - last_tr >= int(self.opts.get("trate", 24)) and i - last_vm >= 1:
                cur.extend(self.trickle.popleft())
                last_tr = i
            if not cur:
                if self.urgent and i - last_vm >= urate - 1:
                    cur.extend(self.urgent.popleft())
                elif self.bulk and not self.hold and not self.urgent and i - last_vm >= rate - 1 and getattr(self.bulk[0], "min_step", 0) <= i:
                    cur.extend(self.bulk.popleft())
            while cur and budget > 0:
                x = cur[0]
                c = self.cost(x)
                if isvm(x):
                    if budget < 8 or i - last_vm < min(rate, urate):
                        break
                    last_vm = i
                elif c > budget:
                    break
                s.append(cur.popleft())
                budget -= c
            if fill and fill[0].meta.get("until") is not None:
                fill_from = max(fill_from, fill.popleft().meta["until"])
            if fill and fill[0].meta.get("pause"):
                fill_from = i + fill.popleft().meta["pause"]
            if i >= fill_from and fill and budget > 0:
                part = deque()
                while fill and not fill[0].meta.get("pause") and fill[0].meta.get("until") is None and len(part) < 4:
                    part.append(fill.popleft())
                budget = emit_from(part, budget)
                while part:
                    fill.appendleft(part.pop())
        for e in at.get(n, []):
            push_ev(e)
        for q in (cur, ev, fill):
            while q:
                x = q.popleft()
                s.append(x)
                if x.meta.get("call"):
                    x.meta["call"]()

    def weave(self, s, epi, every=13):
        k = 0
        for ins in epi:
            s.append(ins)
            if ins.cls in ("valu", "mfma"):
                k += 1
                if k >= every:
                    if self.tick(s):
                        k = 0

    def split_tile(self, A):
        groups = A[0]
        nsub = (len(groups) - 2) // 4
        nh = 2 * nsub + 2
        return groups[:nh], groups[nh:]

    def cs_loads_to(self, s, cg, base, r0, vaddr):
        s("s_lshl_b32 s58, s%d, 2" % cg)
        s("s_add_u32 s58, s58, s%d" % sW)
        s("s_mul_i32 s59, s58, 3072")
        s("s_add_u32 s59, s59, %d" % base)
        for k in range(3):
            for j in range(4):
                s("buffer_load_dword v%d, v%d, s[8:11], s59 offen offset:%d" % (r0 + 4 * k + j, vaddr, k * 1024 + j * 64))

    def global_check2(self):
        n = self.npoll
        self.npoll += 1
        t = Stream()
        r = RING + 12
        t("v_cmp_ne_u32 vcc, s%d, v%d" % (sTag, r))
        t("s_and_b64 vcc, vcc, s[4:5]")
        t("s_cbranch_vccnz SLOW_%d" % n).meta["glue"] = True
        t("BACK_%d:" % n).meta["glue"] = True
        t("s_barrier")
        self.slow += ["SLOW_%d:" % n, "  s_mov_b32 s%d, 0" % sCnt, "SPIN_%d:" % n,
                      "  buffer_load_dword v%d, v%d, s[8:11], s%d offen sc1" % (r, RING + 16, sPoll2), "  s_waitcnt vmcnt(0)",
                      "  v_cmp_ne_u32 vcc, s%d, v%d" % (sTag, r), "  s_nop 1", "  s_and_b64 vcc, vcc, s[4:5]",
                      "  s_cbranch_vccz BACK_%d" % n, "  s_add_u32 s%d, s%d, 1" % (sCnt, sCnt), "  s_cmp_lt_u32 s%d, %d" % (sCnt, POLL_LIMIT),
                      "  s_cbranch_scc1 SPIN_%d" % n, "  s_branch BACK_%d" % n]
        return t

    def seg13(self, s, phase, p, h, A, at, urate=None, raw_stats=False):
        groups, stok, ctok = A
        st = Stream()
        if raw_stats:
            return self.seg13_raw(s, phase, p, h, A, at)
        self.stats_reduce(st, h, stok)
        if getattr(self, "extra_fill", None) is not None:
            st.extend(self.extra_fill)
            self.extra_fill = None
        pre, steps = self.mf13(phase, h)
        if urate:
            s.extend(st)
            st = Stream()
        for x in pre:
            if isinstance(x, tuple):
                s.wait_vm(ctok[x[1]])
                s("s_barrier")
            else:
                s(x)
        self.run_mf(s, steps, at=at, fill=list(st), ctok=ctok, fill_from=int(self.opts.get("fillfrom", 6)), urate=(urate or int(self.opts.get("ur", 4))), rate=(urate or int(self.opts.get("br", 4))))
        s("s_barrier")

    def seg13_raw(self, s, phase, p, h, A, at):
        import direct
        groups, stok, ctok = A
        self.stat_tok = Tok("unused")
        saved = self.epi_pref
        pref = saved(phase, h)
        self.epi_pref = lambda *a: {}
        pre, steps = self.mf13(phase, h)
        self.epi_pref = saved
        chunk_step = {0: 0}
        for i, stp in enumerate(steps):
            for x in stp:
                if isinstance(x, tuple):
                    chunk_step[x[1]] = i
        SA, T0, ADR, ONE = RING, RING + 24, RING + 2, RING + 3
        st = Stream()
        st("s_lshl_b32 s58, s%d, 14" % sW)
        st("s_add_u32 s58, s58, %d" % REG[h])
        st("v_add_u32 v%d, s58, v%d" % (ADR, vL16))
        st("v_mov_b32 v%d, 0x3f803f80" % ONE)
        st("v_mov_b32 v%d, 0" % SA)
        st("v_mov_b32 v%d, 0" % (SA + 1))
        for c in range(4):
            u = Ins("@comment")
            u.meta["c"] = "until chunk %d" % c
            u.meta["until"] = chunk_step[c] + 2
            st.append(u)
            for j in range(4):
                st("ds_read_b128 %s, v%d offset:%d" % (V(T0 + 4 * j, 4), ADR, (4 * c + j) * 1024))
            self.pause(st, 6)
            for j in range(4):
                st.extend(direct.stats_dots(SA, T0 + 4 * j, ONE))
        for x in pre:
            if isinstance(x, tuple):
                s.wait_vm(ctok[x[1]])
                s("s_barrier")
            else:
                s(x)
        self.run_mf(s, steps, at=at, fill=list(st), ctok=ctok, fill_from=1)
        tok = direct.stats_final(self, s, h, SA)
        s.wait_ds(tok)
        s("s_barrier")
        for n in sorted(pref):
            if n != 37:
                for x in pref[n]:
                    s(x)

    def check_order(self, s):
        done = set()
        for ins in s:
            if ins.meta.get("checked"):
                done.add(ins.meta["checked"])
            k = ins.meta.get("dep")
            if k is not None:
                assert k in done, "load issued before its dependency was checked: %s %s" % (k, ins.text)

    def check_weights(self, s):
        if self.opts.get("nob"):
            return
        cur = {}
        for ins in s:
            if ins.meta.get("bname"):
                cur[ins.ops[0]] = ins.meta["bname"]
            if ins.meta.get("bname2"):
                cur[ins.meta["bname2"][1]] = ins.meta["bname2"][0]
            if ins.cls == "mfma" and ins.meta.get("need"):
                reg, name = ins.meta["need"]
                assert cur.get(reg) == name, "weights %s expected in %s, found %s" % (name, reg, cur.get(reg))

    def gen(self):
        s = Stream()
        self.urgent, self.bulk, self.trickle = deque(), deque(), deque()
        o = self.opts
        if self.direct:
            import direct
            if self.prof:
                s("s_memrealtime s[100:101]")
                s("s_memtime s[98:99]")
                s("s_waitcnt lgkmcnt(0)")
                s("s_mov_b32 s94, s100")
                s("s_mov_b32 s68, s98")
            direct.entry(self, s, self.codepf(sW))
            self.pro_rest(s)
        else:
            self.prologue(s)
        if self.prof and self.opts.get("single", "1") != "1":
            s("s_memrealtime s[100:101]")
            s("s_waitcnt lgkmcnt(0)")
            s("s_mov_b32 s94, s100")
        self.ts(s, "start")
        if self.prof == 5:
            for k in range(2, 24):
                s("s_mov_b32 s%d, 0" % (sTS + k))
        s("""
        s_lshl_b32 s{kw1}, s{w}, 10
        s_add_u32 s{a1hw}, s{a1h}, s{kw1}
        s_add_u32 s{a1mw}, s{a1m}, s{kw1}
        s_add_u32 s{a3w}, s{a3}, s{kw1}
        """.format(kw1=sKw1, w=sW, a1hw=sA1hw, a1h=sA1h, a1mw=sA1mw, a1m=sA1m, a3w=sA3w, a3=sA3))
        A = {}
        single = self.opts.get("single", "1") == "1"
        if single:
            ncpf = 0 if self.opts.get("nocpf") == "1" else int(self.opts.get("cpf", 2))
            def pack_flag(t, base):
                t("s_lshr_b32 s58, s2, 3")
                t("s_lshl_b32 s58, s58, 7")
                t("s_and_b32 s59, s2, 7")
                t("s_lshl_b32 s59, s59, 2")
                t("s_add_u32 s58, s58, s59")
                t("s_add_u32 s%d, s58, %d" % (sT3, base))
            self.prologue2(s)
            s("s_add_u32 s%d, s95, 1" % sTag)
            s("v_mov_b32 v%d, s%d" % (vOne, sTag))
            self.flag_vec(s)
            if self.direct:
                s.extend(self.second_batch)
                self.pack_flag = pack_flag
                s("v_mov_b32 v%d, v%d" % (vFlag, self.vflag_tmp))
                if self.local:
                    s("s_getreg_b32 s%d, hwreg(HW_REG_XCC_ID, 0, 4)" % sXcc)
                    s("s_lshl_b32 s58, s%d, 4" % sTag)
                    s("s_or_b32 s58, s58, s%d" % sXcc)
                    s("v_mov_b32 v60, s58")
                    s("s_and_b32 s58, s2, 7")
                    s("s_lshl_b32 s58, s58, 7")
                    s("s_lshr_b32 s59, s2, 3")
                    s("s_lshl_b32 s59, s59, 2")
                    s("s_add_u32 s58, s58, s59")
                    s("s_add_u32 s58, s58, %d" % PXC)
                    s("buffer_store_dword v60, v%d, s[8:11], s58 offen sc1" % vFlag)
            else:
                self.global_issue(s)
                self.global_check(s)
            self.ts(s, "gsync")
        else:
            s("s_mov_b32 s%d, 1" % sTag)
        if single and not self.direct:
            s("v_and_b32 v68, 15, v%d" % vLane)
            s("v_lshlrev_b32 v68, 2, v68")
            s("v_lshrrev_b32 v69, 4, v%d" % vLane)
            s("v_lshl_add_u32 v68, v69, 8, v68")
        def cs_loads(cg, base, r0):
            s("s_lshl_b32 s58, s%d, 2" % cg)
            s("s_add_u32 s58, s58, s%d" % sW)
            s("s_mul_i32 s59, s58, 3072")
            s("s_add_u32 s59, s59, %d" % base)
            for k in range(3):
                if single:
                    for j in range(4):
                        s("buffer_load_dword v%d, v68, s[8:11], s59 offen offset:%d" % (r0 + 4 * k + j, k * 1024 + j * 64))
                else:
                    s("buffer_load_dwordx4 %s, v%d, s[8:11], s59 offen offset:%d" % (V(r0 + 4 * k, 4), vL16, k * 1024))
        if self.direct:
            A[(1, 0, 0)] = self.A_first
            A[(1, 0, 1)] = direct.groupsA_raw(self, 1)
        else:
            A[(1, 0, 0)] = self.groupsA_lds(1, 0, 0)
            A[(1, 0, 1)] = self.groupsA_lds(1, 0, 1)
        if self.direct:
            pass
        elif single:
            head, tail = self.split_tile(A[(1, 0, 0)])
            for g in head:
                s.extend(g)
            cs_loads(sCG, CSQ, RING + 32)
            nq = int(self.opts.get("nq0", 24))
            for g in self.groupsB(Bx, sBQ, 0, nq):
                s.extend(g)
            self.pack_flag = pack_flag
            if self.opts.get("latefirst", "1") == "1":
                self.late_tok0 = pack.emit_late(s, sW, vL16, (3, 4, 58, 59), DV)
            self.first_tail = tail
            self.q_rest = self.groupsB(Bx, sBQ, nq, 48)
            self.colsums(s, range(3), r0=RING + 32)
        else:
            for g in A[(1, 0, 0)][0]:
                s.extend(g)
            cs_loads(sCG, CSQ, 44)
            cs_loads(sCG3, CSG, 56)
            for g in self.groupsB(Bx, sBQ, 0, 24):
                s.extend(g)
            self.prologue2(s)
            for g in self.groupsB(Bx, sBQ, 24, 30):
                s.extend(g)
            self.colsums(s, range(6))
            self.bulk.extend(self.groupsB(Bx, sBQ, 30, 48))
            self.burst(s, 18)
            self.urgent.extend(A[(1, 0, 1)][0])
        s("s_xor_b32 s%d, s%d, 16384" % (sA2b, sA2))
        self.cs_loads = cs_loads
        self.ts(s, "prolog")
        tok = {}
        U = lambda gs: (lambda: self.urgent.extend(gs))
        def until_issued(gs):
            while any(g is x for g in gs for x in self.urgent):
                s.extend(self.urgent.popleft())
        tails = {(1, 0, 0): [], (1, 0, 1): []}
        for p in range(2):
            last = (p == 1)
            at = {}
            self.urgent.extend(tails[(1, p, 0)])
            if p == 0 and self.direct:
                head1 = list(A[(1, 0, 1)][0])
            elif p == 0 and single:
                q = list(self.q_rest)
                self.urgent.extend(q[:6] + list(self.first_tail[:3]) + q[6:15] + list(self.first_tail[3:]) + q[15:])
                self.urgent.extend(A[(1, 0, 1)][0])
                head1 = list(A[(1, 0, 1)][0])
                if self.opts.get("latefirst", "1") == "1":
                    f2e = Stream()
                    f2e.wait_vm(self.late_tok0)
                    f2e("s_barrier")
                    self.pack_flag(f2e, PFL2)
                    f2e("buffer_store_dword v%d, v%d, s[8:11], s%d offen sc1" % (vOne, vFlag, sT3))
                    at[int(self.opts.get("f2e", 64))] = [f2e]
            elif p == 0:
                self.bulk.extend(self.groupsB(By, sBW, 0, 16))
                self.bulk.extend(self.groupsB(By, sBD, 16, 44))
                head1 = []
            else:
                self.bulk.extend(self.groupsB(By, sBW, 0, 16))
                a, b, c = self.evs("e1E", (48, 96, 127))
                at[a] = [self.ev_sig(4, p - 1, 1, tok[(4, p - 1, 1)])]
                at[b] = [self.ev_poll_issue(1, p, 1)]
                A[(1, p, 1)] = self.groupsA_lds(1, p, 1)
                head1, tails[(1, p, 1)] = self.split_tile(A[(1, p, 1)])
                at[c] = [self.ev_poll_check(1, p, 1), U(head1)]
            if p == 1:
                self.trickle.extend(self.pf(sPfG, 2048 * i) for i in range(self.pf_n["G"]))
            if p == 0 and self.direct:
                direct.first_segment(self, s)
                if self.opts.get("dbgq") == "1":
                    s("s_lshl_b32 s58, s2, 2")
                    s("s_add_u32 s58, s58, s%d" % sW)
                    s("s_mul_i32 s58, s58, %d" % (64 * KB))
                    s("s_add_u32 s58, s58, 0x4000000")
                    for f in range(48):
                        s("buffer_store_dwordx4 %s, v%d, s[8:11], s58 offen" % (Bx(f), vL16))
                        s("s_add_u32 s58, s58, 1024")
                    s("s_lshl_b32 s59, s%d, 14" % sW)
                    s("v_add_u32 v172, s59, v%d" % vL16)
                    for k in range(16):
                        s("ds_read_b128 v[176:179], v172 offset:%d" % (k * 1024))
                        s("buffer_store_dwordx4 v[176:179], v%d, s[8:11], s58 offen" % vL16)
                        s("s_add_u32 s58, s58, 1024")
                        s("s_nop 4")
                for g in head1[:6]:
                    s.extend(g)
                self.urgent.extend(head1[6:])
            else:
                self.seg13(s, 1, p, 0, A[(1, p, 0)], at, urate=(2 if (p == 0 and single) else None))
            self.ts(s, "mf1E.%d" % p)
            if p == 0 and single:
                if self.direct:
                    late_tok = direct.late(self, s, (3, 4, 58, 59))
                    self.stat_tok = Tok("unused")
                    pref = self.epi_pref(1, 0)
                    for n in sorted(pref):
                        if n != 37:
                            for x in pref[n]:
                                s(x)
                elif self.opts.get("latefirst", "1") == "1":
                    late_tok = self.late_tok0
                else:
                    late_tok = pack.emit_late(s, sW, vL16, (3, 4, 58, 59), DV)
                if self.local:
                    if not self.direct:
                        s("s_getreg_b32 s%d, hwreg(HW_REG_XCC_ID, 0, 4)" % sXcc)
                    pi, pc = self.purity()
                    s.extend(pi)
                    self.pur_check = pc
                self.ts(s, "packed")
            e = Stream(); tok[(1, p, 0)] = self.epi1(e, p, 0)
            self.weave(s, e, every=10)
            until_issued(head1)
            if p == 0 and self.local:
                s.extend(self.pur_check)
            self.ts(s, "s1E.%d" % p)
            self.urgent.extend(tails[(1, p, 1)])
            gA = self.groupsA24(2, p, 0)
            a, b, c = self.evs("e1O", (44, 96, 127))
            at = {a: [self.ev_sig(1, p, 0, tok[(1, p, 0)])], b: [self.ev_poll_issue(2, p, 0)],
                  c: [self.ev_poll_check(2, p, 0), U(gA)]}
            if p == 0 and single:
                f2 = Stream()
                f2.wait_vm(late_tok)
                f2("s_barrier")
                self.pack_flag(f2, PFL2)
                f2("buffer_store_dword v%d, v%d, s[8:11], s%d offen sc1" % (vOne, vFlag, sT3))
                g2 = Stream()
                a0, a1, a2 = RING + 16, RING + 17, RING + 18
                g2("v_lshrrev_b32 v%d, 4, v%d" % (a1, vL16))
                g2("s_lshl_b32 s58, s%d, 2" % sCG)
                g2("s_add_u32 s58, s58, %d" % (96 if self.direct else 136))
                g2("v_add_u32 v%d, s58, v%d" % (a0, a1))
                g2("s_lshl_b32 s58, s%d, 4" % sCG3)
                g2("s_sub_u32 s58, s58, 4")
                g2("v_add_u32 v%d, s58, v%d" % (a2, a1))
                g2("v_cmp_lt_u32 vcc, 3, v%d" % a1)
                g2("v_cndmask_b32 v%d, v%d, v%d, vcc" % (a0, a0, a2))
                g2("s_mul_i32 s58, s%d, 11" % sCG)
                g2("s_add_u32 s58, s58, %d" % (108 if self.direct else 148))
                g2("v_add_u32 v%d, s58, v%d" % (a2, a1))
                g2("v_cmp_lt_u32 vcc, 19, v%d" % a1)
                g2("v_cndmask_b32 v%d, v%d, v%d, vcc" % (a0, a0, a2))
                if self.direct:
                    g2("s_mul_i32 s58, s%d, 12" % sCG)
                    g2("s_sub_u32 s58, s58, 31")
                    g2("v_add_u32 v%d, s58, v%d" % (a2, a1))
                    g2("v_cmp_lt_u32 vcc, 30, v%d" % a1)
                    g2("v_cndmask_b32 v%d, v%d, v%d, vcc" % (a0, a0, a2))
                g2("v_lshrrev_b32 v%d, 3, v%d" % (a2, a0))
                g2("v_and_b32 v%d, 7, v%d" % (a0, a0))
                g2("v_lshlrev_b32 v%d, 2, v%d" % (a0, a0))
                g2("v_lshl_add_u32 v%d, v%d, 7, v%d" % (a0, a2, a0))
                g2("s_cmp_eq_u32 s%d, 1" % sW)
                g2("s_cselect_b32 s58, %d, 0" % (43 if self.direct else 31))
                g2("s_cselect_b32 s4, %s, 0" % ("-1" if self.direct else "0x7fffffff"))
                g2("s_cselect_b32 s5, %s, 0" % ("0x7ff" if self.direct else "0"))
                g2("v_cmp_gt_u32 vcc, s58, v%d" % a1)
                g2("v_mov_b32 v%d, 0x7ffffff0" % a2)
                g2("v_cndmask_b32 v%d, v%d, v%d, vcc" % (a0, a2, a0))
                g2("s_mov_b32 s%d, %d" % (sPoll2, PFL2))
                g2("buffer_load_dword v%d, v%d, s[8:11], s%d offen sc1" % (RING + 12, a0, sPoll2))
                c2 = self.global_check2()
                csl = Stream()
                csl("v_and_b32 v%d, 0xf0, v%d" % (DV + 12, vL16))
                csl("v_lshrrev_b32 v%d, 2, v%d" % (DV + 12, DV + 12))
                csl("v_lshrrev_b32 v%d, 8, v%d" % (DV + 13, vL16))
                csl("v_lshl_add_u32 v%d, v%d, 8, v%d" % (DV + 12, DV + 13, DV + 12))
                self.cs_loads_to(csl, sCG3, CSG, DV, DV + 12)
                lf = self.opts.get("latefirst", "1") == "1" and not self.direct
                fa, fb, fc = self.evs("f2", (40, 20, 56) if lf else (40, 88, 125))
                if not lf:
                    at.setdefault(fa, []).append(f2)
                at.setdefault(fb, []).append(g2)
                g_early0 = lf and self.opts.get("prog0", "1") == "1"
                def after_flag2():
                    self.bulk.extend(self.groupsB(By, sBW, 0, 16))
                    if g_early0:
                        self.bulk.extend(self.progressive(self.groupsB(Bx, sBG, 0, 48), 8))
                at.setdefault(fc, []).extend([c2, after_flag2, csl])
                self.cs_reduce = Stream()
                self.colsums(self.cs_reduce, range(3, 6), r0=DV, first=False)
            early_g = (p == 1 or not single) and self.opts.get("prog", "1") == "1"
            early_g0 = p == 0 and single and not self.direct and self.opts.get("latefirst", "1") == "1" and self.opts.get("prog0", "1") == "1"
            if early_g:
                while self.bulk:
                    s.extend(self.bulk.popleft())
                self.bulk.extend(self.progressive(self.groupsB(Bx, sBG, 0, 48), 8))
            self.seg13(s, 1, p, 1, A[(1, p, 1)], at, raw_stats=(p == 0 and self.direct))
            self.ts(s, "mf1O.%d" % p)
            if early_g:
                self.clear_min()
            elif early_g0:
                self.clear_min()
                while self.bulk and any(x.meta.get("bname") == "W" for x in self.bulk[0]):
                    s.extend(self.bulk.popleft())
            else:
                while self.bulk:
                    s.extend(self.bulk.popleft())
                self.bulk.extend(self.groupsB(Bx, sBG, 0, 48))
            e = Stream(); tok[(1, p, 1)] = self.epi1(e, p, 1)
            self.weave(s, e, every=10)
            self.flush_urgent(s)
            self.ts(s, "s1O.%d" % p)
            if p == 0 and single:
                s.extend(self.cs_reduce)
            self.seg24_mf(s, 2, p, 0)
            self.fs(s, "MF")
            bsel = lambda key, d0, d1: int(self.opts.get(key + str(p), d0 if p == 0 and single else d1))
            self.hold = True
            mid = Stream()
            mid.extend(self.ev_sig(1, p, 1, tok[(1, p, 1)]))
            e = Stream(); tok[(2, p, 0)] = self.epi24(e, 2, p, 0, mid=mid)
            self.weave(s, e, every=10)
            s.extend(self.ev_poll_issue(2, p, 1))
            self.fs(s, "EPI")
            self.hold = False
            if self.opts.get("ord2", "0") == "1":
                s.extend(self.ev_poll_check(2, p, 1))
                self.ts(s, "s2E.%d" % p)
                self.urgent.extend(self.groupsA24(2, p, 1))
                self.flush_urgent(s)
                self.fs(s, "Aiss")
                self.burst(s, bsel("b2F", 6, 0))
                s.extend(self.ev_sig(2, p, 0, tok[(2, p, 0)]))
                self.fs(s, "SIG2")
                self.p3_in_mf = int(self.opts.get("i3E", 2))
                if self.p3_in_mf < 0:
                    s.extend(self.ev_poll_issue(3, p, 0, alt=True))
                self.burst(s, bsel("b2O", 8, 0))
            else:
                self.burst(s, bsel("b2F", 6, 0))
                self.fs(s, "PI")
                s.extend(self.ev_sig(2, p, 0, tok[(2, p, 0)]))
                s.extend(self.ev_poll_issue(3, p, 0, alt=True))
                self.fs(s, "SIG2")
                s.extend(self.ev_poll_check(2, p, 1))
                self.ts(s, "s2E.%d" % p)
                self.urgent.extend(self.groupsA24(2, p, 1))
                self.flush_urgent(s)
                self.burst(s, bsel("b2O", 8, 0))
            A[(3, p, 0)] = self.groupsA_lds(3, p, 0)
            head3, tail3 = self.split_tile(A[(3, p, 0)])
            c3 = int(self.opts.get("c3E", 26 if self.opts.get("ord2", "0") == "1" else 0))
            if c3 < 0:
                s.extend(self.ev_poll_check(3, p, 0, alt=True))
                self.urgent.extend(head3)
                self.flush_urgent(s)
                self.seg24_mf(s, 2, p, 1)
            else:
                at3 = {c3: [self.ev_poll_check(3, p, 0, alt=True), U(head3)]}
                if self.opts.get("ord2", "0") == "1" and self.p3_in_mf >= 0:
                    at3.setdefault(self.p3_in_mf, []).insert(0, self.ev_poll_issue(3, p, 0, alt=True))
                self.seg24_mf(s, 2, p, 1, at=at3)
            self.fs(s, "MF")
            self.bulk.extend(self.groupsB(By, sBD, 0, 44 if (p == 0 and single) else 16))
            e = Stream(); tok[(2, p, 1)] = self.epi24(e, 2, p, 1)
            self.weave(s, e, every=5)
            self.fs(s, "EPI")
            until_issued(head3)
            self.ts(s, "s2O.%d" % p)
            self.urgent.extend(tail3)
            A[(3, p, 1)] = self.groupsA_lds(3, p, 1)
            head3, tail3 = self.split_tile(A[(3, p, 1)])
            a, b, c = self.evs("e3E", (48, 108, 150))
            at = {a: [self.ev_sig(2, p, 1, tok[(2, p, 1)])], b: [self.ev_poll_issue(3, p, 1)],
                  c: [self.ev_poll_check(3, p, 1), U(head3)]}
            if not last:
                self.trickle.extend(self.pf(sPfQ, 2048 * i) for i in range(self.pf_n["Q"]))
            self.seg13(s, 3, p, 0, A[(3, p, 0)], at)
            self.ts(s, "mf3E.%d" % p)
            e = Stream(); tok[(3, p, 0)] = self.epi3(e, p, 0)
            self.weave(s, e, every=12)
            until_issued(head3)
            self.ts(s, "s3E.%d" % p)
            self.urgent.extend(tail3)
            gA = self.groupsA24(4, p, 0)
            a, b, c = self.evs("e3O", (64, 120, 160))
            at = {a: [self.ev_sig(3, p, 0, tok[(3, p, 0)])], b: [self.ev_poll_issue(4, p, 0)],
                  c: [self.ev_poll_check(4, p, 0), U(gA)]}
            if not last:
                self.trickle.extend(self.pf(sPfW, 2048 * i) for i in range(self.pf_n["W"]))
            early_q = (not last) and self.opts.get("prog", "1") == "1"
            if early_q:
                self.bulk.extend(self.progressive(self.groupsB(Bx, sBQ, 0, 48), 12))
            self.seg13(s, 3, p, 1, A[(3, p, 1)], at)
            self.ts(s, "mf3O.%d" % p)
            self.flush_urgent(s)
            if early_q:
                self.clear_min()
                while self.bulk and not any(x.meta.get("bname") == "Q" for x in self.bulk[0]):
                    s.extend(self.bulk.popleft())
            else:
                while self.bulk:
                    s.extend(self.bulk.popleft())
                if not last:
                    self.bulk.extend(self.groupsB(Bx, sBQ, 0, 48))
            e = Stream(); tok[(3, p, 1)] = self.epi3(e, p, 1)
            self.weave(s, e, every=12)
            self.ts(s, "s3O.%d" % p)
            a = int(self.opts.get("e4E", 60))
            at = {a: [self.ev_sig(3, p, 1, tok[(3, p, 1)])]}
            at.setdefault(int(self.opts.get("h4", 62)), []).append(self.set_hold(True))
            self.seg24_mf(s, 4, p, 0, at=at)
            self.fs(s, "MF")
            if last:
                s.extend(self.ev_poll_issue(4, p, 1))
            e = Stream(); tok[(4, p, 0)] = self.epi24(e, 4, p, 0)
            self.weave(s, e, every=10)
            ord4 = self.opts.get("ord4", "0") == "1"
            if not last:
                s.extend(self.ev_poll_issue(4, p, 1))
                if not ord4:
                    s.extend(self.ev_sig(4, p, 0, tok[(4, p, 0)]))
                    s.extend(self.ev_poll_issue(1, p + 1, 0, alt=True))
            self.fs(s, "EPI")
            s.extend(self.ev_poll_check(4, p, 1))
            self.hold = False
            self.ts(s, "s4E.%d" % p)
            self.urgent.extend(self.groupsA24(4, p, 1))
            self.flush_urgent(s)
            i1 = int(self.opts.get("i1E", 20))
            if ord4 and not last:
                s.extend(self.ev_sig(4, p, 0, tok[(4, p, 0)]))
                if i1 < 0:
                    s.extend(self.ev_poll_issue(1, p + 1, 0, alt=True))
            at = {}
            head1 = []
            if not last:
                A[(1, p + 1, 0)] = self.groupsA_lds(1, p + 1, 0)
                head1, tails[(1, p + 1, 0)] = self.split_tile(A[(1, p + 1, 0)])
                at = {int(self.opts.get("c1E", 60 if ord4 else 8)): [self.ev_poll_check(1, p + 1, 0, alt=True), U(head1)]}
                if ord4 and i1 >= 0:
                    at.setdefault(i1, []).insert(0, self.ev_poll_issue(1, p + 1, 0, alt=True))
            self.burst(s, int(self.opts.get("b4O", 0)))
            self.seg24_mf(s, 4, p, 1, at=at)
            e = Stream(); tok[(4, p, 1)] = self.epi24(e, 4, p, 1)
            self.weave(s, e, every=5)
            until_issued(head1)
            self.ts(s, "s4O.%d" % p)
        if single:
            s("s_cmp_eq_u32 s2, 0")
            s("s_cbranch_scc0 M_noep")
            s("s_mov_b32 s36, %d" % EPOCH)
            s("buffer_store_dword v%d, v%d, s[8:11], s36 offen" % (vOne, vFlag))
            s("M_noep:")
        if self.prof == 4:
            s = self.resolve_marks(s)
        if self.prof:
            s("s_lshl_b32 s36, s2, 2")
            s("s_add_u32 s36, s36, s%d" % sW)
            s("s_lshl_b32 s36, s36, 8")
            s("s_add_u32 s36, s36, %d" % 0x3000000)
            s("s_memrealtime s[100:101]")
            s("s_waitcnt lgkmcnt(0)")
            s("s_mov_b32 s95, s100")
            s("s_mov_b64 exec, 1")
            for k in (94, 95):
                s("v_mov_b32 v20, s%d" % k)
                s("buffer_store_dword v20, off, s[8:11], s36 offset:%d" % (4 * (62 + k - 94)))
            if self.prof == 2 and self.local:
                for k, r in enumerate((sImp, sXcc)):
                    s("v_mov_b32 v20, s%d" % r)
                    s("buffer_store_dword v20, off, s[8:11], s36 offset:%d" % (4 * (8 + k)))
            if self.prof == 7:
                for k in range(6):
                    s("v_mov_b32 v20, s%d" % (80 + k))
                    s("buffer_store_dword v20, off, s[8:11], s36 offset:%d" % (4 * (8 + k)))
            if self.prof == 5:
                for k in range(16):
                    s("v_mov_b32 v20, s%d" % (sTS + 2 + k))
                    s("buffer_store_dword v20, off, s[8:11], s36 offset:%d" % (4 * (8 + k)))
            for k in range(self.nts):
                s("v_mov_b32 v20, s%d" % (sTS + (2 * k if self.prof in (3, 8) else k)))
                s("buffer_store_dword v20, off, s[8:11], s36 offset:%d" % (4 * k))
            s("s_mov_b64 exec, -1")
        s("s_waitcnt vmcnt(0)")
        self.check_weights(s)
        self.check_order(s)
        pol = self.opts.get("ntA")
        if pol:
            for ins in s:
                if ins.meta.get("dep") is not None and " sc1" in ins.text:
                    ins.text = ins.text.replace(" sc1", " sc1 nt" if pol == "1" else {"2": " nt", "3": ""}[pol])
        if self.opts.get("ntS") == "1":
            for ins in s:
                if ins.cls == "vm_st" and "dwordx4" in ins.text and " sc1" in ins.text:
                    ins.text = ins.text.replace(" sc1", " sc1 nt")
        lines = finalize(s, verbose=False)
        lines.append("M_end:")
        lines.append("  s_endpgm")
        lines += self.slow
        lines.append("M_last:")
        lines.append("  s_endpgm")
        return lines


def gen_main(opts):
    m = Main(opts)
    lines = m.gen()
    if m.prof:
        lines.insert(0, "; timestamps: " + " ".join(m.tsnames))
    return lines, LDS_BYTES
```

```python
from asmlib import *
from layout import *
import mainker as M
from mainker import V, Bx, fbits

QR, NS, SLOT = 49152, 5, 12288
G_LDS, S_LDS = 110592, 131072
sX = 88
sOUTP = 92
sQb = 87
sXh, sXm = 85, 86
vQ, vX, vT0, vT1, vStL = 132, 133, 130, 131, 122
RAWG, RAWS = 144, 156
AF = (96, 108)
CSA, ONES = 52, 64


def magic(d):
    return (2 ** 32 + d - 1) // d


def entry(m, s, codepf):
    w, cg, rb = M.sW, M.sCG, M.sRB
    s("""
    s_load_dwordx4 s[36:39], s[0:1], 0
    s_load_dwordx2 s[40:41], s[0:1], 16
    s_load_dwordx4 s[44:47], s[0:1], 32
    s_load_dwordx2 s[48:49], s[0:1], 48
    s_load_dwordx2 s[92:93], s[0:1], 56
    s_load_dwordx2 s[4:5], s[0:1], 72
    s_cmp_ge_u32 s2, 256
    s_cbranch_scc1 M_end
    """)
    m.pro_ids(s, 50)
    L, L16 = M.vLane, M.vL16
    s("""
    v_lshrrev_b32 v21, 3, v{l}
    v_mul_u32_u24 v{q}, 3072, v21
    v_lshrrev_b32 v22, 4, v{l}
    v_and_b32 v23, 3, v22
    v_lshlrev_b32 v23, 1, v23
    v_and_b32 v24, 7, v{l}
    v_xor_b32 v24, v23, v24
    v_lshl_add_u32 v{q}, v24, 4, v{q}
    v_and_b32 v23, 15, v{l}
    v_lshlrev_b32 v23, 11, v23
    v_lshl_add_u32 v{x}, v22, 4, v23
    s_mul_i32 s{qb}, s{w}, {k24}
    s_lshl_b32 s50, s{cg}, 7
    s_add_u32 s{qb}, s{qb}, s50
    s_lshl_b32 s{kw1}, s{w}, 10
    s_lshl_b32 s50, s{w}, 6
    s_lshl_b32 s{xm}, s{rb}, 16
    s_sub_u32 s{xh}, s{xm}, 32768
    s_max_i32 s{xh}, s{xh}, 0
    s_add_u32 s{xh}, s{xh}, s50
    s_add_u32 s{xm}, s{xm}, s50
    """.format(l=L, q=vQ, x=vX, qb=sQb, w=w, cg=cg, rb=rb, k24=8 * 3072, kw1=M.sKw1, xm=sXm, xh=sXh))
    s("""
    v_and_b32 v25, 3, v{l}
    v_lshrrev_b32 v26, 2, v{l}
    v_and_b32 v26, 3, v26
    v_lshl_add_u32 v27, v22, 3, v26
    v_lshrrev_b32 v28, 1, v25
    s_lshl_b32 s50, s{w}, 1
    v_add_u32 v28, s50, v28
    v_lshrrev_b32 v29, 1, v26
    v_lshlrev_b32 v29, 1, v29
    v_and_b32 v30, 1, v25
    v_lshlrev_b32 v30, 3, v30
    v_lshl_add_u32 v30, v27, 7, v30
    v_xor_b32 v31, v28, v29
    v_lshl_add_u32 v{t0}, v31, 4, v30
    v_add_u32 v{t0}, {qr}, v{t0}
    v_xor_b32 v29, 4, v29
    v_xor_b32 v31, v28, v29
    v_lshl_add_u32 v{t1}, v31, 4, v30
    v_add_u32 v{t1}, {qr512}, v{t1}
    s_lshl_b32 s50, s{w}, 14
    v_add_u32 v{stl}, s50, v{l16}
    """.format(l=L, w=w, t0=vT0, t1=vT1, qr=QR, qr512=QR + 512, stl=vStL, l16=L16))
    s("""
    s_lshr_b32 s50, s2, 4
    s_mul_i32 s50, s50, 96
    s_and_b32 s51, s{w}, 1
    s_mul_i32 s51, s51, 192
    s_and_b32 s52, s2, 15
    s_lshl_b32 s52, s52, 5
    """.format(w=w))
    for i in range(3):
        s("""
        v_add_u32 v32, s51, v{l}
        v_add_u32 v32, {o}, v32
        v_mul_u32_u24 v33, 5462, v32
        v_lshrrev_b32 v33, 16, v33
        v_mul_u32_u24 v34, 12, v33
        v_sub_u32 v34, v32, v34
        v_add_u32 v33, s52, v33
        v_mul_u32_u24 v33, 2752, v33
        v_lshlrev_b32 v34, 3, v34
        v_add_u32 v34, s50, v34
        v_lshl_add_u32 v33, v34, 1, v33
        v_cmp_gt_u32 vcc, 1376, v34
        v_mov_b32 v35, 0x7ffffff0
        v_cndmask_b32 v{d}, v35, v33, vcc
        """.format(l=L, o=64 * i, d=40 + i))
    s("""
    s_waitcnt lgkmcnt(0)
    s_mov_b32 s8, s4
    s_and_b32 s9, s5, 0xffff
    s_mov_b32 s10, 0x10000000
    s_mov_b32 s11, 0x20000
    s_mov_b32 s12, s38
    s_and_b32 s13, s39, 0xffff
    s_mov_b32 s14, {wq}
    s_mov_b32 s15, 0x20000
    s_mov_b32 s88, s36
    s_and_b32 s89, s37, 0xffff
    s_mov_b32 s90, {xs}
    s_mov_b32 s91, 0x20000
    s_add_u32 s4, s4, {ep}
    s_addc_u32 s5, s5, 0
    s_load_dword s95, s[4:5], 0
    """.format(wq=512 * 1536 * 2, xs=2048 * 512 * 2, ep=EPOCH))
    if m.opts.get("tlb", "0") == "1":
        s("""
        s_lshr_b32 s50, s2, 3
        s_lshl_b32 s50, s50, 2
        s_add_u32 s50, s50, s{w}
        s_mul_hi_u32 s51, s50, {m24}
        s_mul_i32 s51, s51, 24
        s_sub_u32 s50, s50, s51
        s_lshl_b32 s51, s50, 21
        s_mov_b32 s52, s8
        s_mov_b32 s53, s9
        s_cmp_eq_u32 s50, 18
        s_cselect_b32 s52, s40, s52
        s_cselect_b32 s53, s41, s53
        s_cmp_eq_u32 s50, 19
        s_cselect_b32 s52, s48, s52
        s_cselect_b32 s53, s49, s53
        s_cmp_eq_u32 s50, 20
        s_cselect_b32 s52, s44, s52
        s_cselect_b32 s53, s45, s53
        s_cmp_eq_u32 s50, 21
        s_cselect_b32 s52, s46, s52
        s_cselect_b32 s53, s47, s53
        s_cmp_eq_u32 s50, 22
        s_cselect_b32 s52, s92, s52
        s_cselect_b32 s53, s93, s53
        s_cmp_eq_u32 s50, 23
        s_cselect_b32 s52, s36, s52
        s_cselect_b32 s53, s37, s53
        s_cmp_ge_u32 s50, 18
        s_cselect_b32 s51, 0, s51
        s_and_b32 s53, s53, 0xffff
        s_mov_b32 s54, 0x10000000
        s_mov_b32 s55, 0x20000
        v_mov_b32 v32, 0
        buffer_load_dword v135, v32, s[52:55], s51 offen
        """.format(w=w, m24=magic(24)))
        s[-1].w = []
    qtok = {}
    atok = {}
    def q_issue(t, ks):
        for p in range(3):
            t("s_add_u32 m0, s%d, %d" % (M.sKw1, QR + (ks % NS) * SLOT + p * 4096))
            t("s_add_u32 s%d, s%d, %d" % (M.sT, sQb, ks * 32 * 3072 + p * 1024))
            qtok[ks] = t.vm("buffer_load_dwordx4 v%d, s[12:15], s%d offen lds" % (vQ, M.sT))
    m.q_issue, m.qtok = q_issue, qtok
    A = groupsA_raw(m, 0)
    m.A_first = A
    s("""
    s_lshl_b32 s50, s2, 2
    s_add_u32 s50, s50, s{w}
    s_mov_b32 s52, s38
    s_mov_b32 s53, s39
    s_mov_b32 s54, {wq}
    s_mul_hi_u32 s56, s50, {m48}
    s_mul_i32 s57, s56, 48
    s_sub_u32 s57, s50, s57
    s_mul_hi_u32 s58, s57, {m3}
    s_mul_i32 s59, s58, 3
    s_sub_u32 s59, s57, s59
    s_lshl_b32 s59, s59, 10
    s_lshl_b32 s56, s56, 7
    s_add_u32 s59, s59, s56
    s_movk_i32 s60, 3072
    s_cmp_lt_u32 s50, 384
    s_cbranch_scc1 D_raw
    s_mov_b32 s52, s40
    s_mov_b32 s53, s41
    s_mov_b32 s54, {wo}
    s_sub_u32 s56, s50, 384
    s_and_b32 s58, s56, 15
    s_lshr_b32 s59, s56, 4
    s_lshl_b32 s59, s59, 7
    s_movk_i32 s60, 1024
    s_cmp_lt_u32 s50, 512
    s_cbranch_scc1 D_raw
    s_mov_b32 s52, s48
    s_mov_b32 s53, s49
    s_mov_b32 s54, {wd}
    s_sub_u32 s56, s50, 512
    s_mul_hi_u32 s59, s56, {m44}
    s_mul_i32 s57, s59, 44
    s_sub_u32 s58, s56, s57
    s_lshl_b32 s59, s59, 7
    s_cmp_lt_u32 s50, 864
    s_cbranch_scc1 D_raw
    s_mov_b32 s54, 0
    s_mov_b32 s58, 0
    s_mov_b32 s59, 0
    """.format(w=w, wq=512 * 1536 * 2, wo=512 * 512 * 2, wd=1376 * 512 * 2, m48=magic(48), m3=magic(3), m44=magic(44)))
    s("D_raw:")
    s("""
    s_and_b32 s53, s53, 0xffff
    s_mov_b32 s55, 0x20000
    s_lshl_b32 s58, s58, 5
    v_lshrrev_b32 v32, 3, v{l}
    v_add_u32 v32, s58, v32
    v_mul_lo_u32 v32, v32, s60
    v_and_b32 v33, 7, v{l}
    v_lshl_add_u32 v32, v33, 4, v32
    v_add_u32 v32, s59, v32
    s_lshl_b32 s60, s60, 3
    """.format(l=L))
    for i in range(4):
        s("buffer_load_dwordx4 %s, v32, s[52:55], 0 offen" % V(RAWS + 4 * i, 4))
        if i < 3:
            s("v_add_u32 v32, s60, v32")
    s("""
    s_cmp_ge_u32 s{w}, 2
    s_cselect_b32 s52, s46, s44
    s_cselect_b32 s53, s47, s45
    s_and_b32 s53, s53, 0xffff
    s_mov_b32 s54, {gs}
    """.format(w=w, gs=512 * 1376 * 2))
    for i in range(3):
        s("buffer_load_dwordx4 %s, v%d, s[52:55], 0 offen" % (V(RAWG + 4 * i, 4), 40 + i))
    if m.local:
        s("""
        s_lshr_b32 s50, s2, 3
        s_lshl_b32 s50, s50, 2
        s_add_u32 s50, s50, s{w}
        s_mul_i32 s51, s50, {k12}
        v_lshlrev_b32 v32, 7, v{l}
        v_add_u32 v33, s51, v32
        buffer_load_dword v134, v33, s[12:15], 0 offen
        v_add_u32 v33, 8192, v33
        v_cmp_gt_u32 vcc, 32, v{l}
        v_mov_b32 v35, 0x7ffffff0
        v_cndmask_b32 v33, v35, v33, vcc
        buffer_load_dword v134, v33, s[12:15], 0 offen
        s_and_b32 s51, s2, 7
        s_lshl_b32 s51, s51, 18
        s_lshl_b32 s50, s50, 11
        s_add_u32 s51, s51, s50
        v_add_u32 v33, s51, v32
        v_cmp_gt_u32 vcc, 16, v{l}
        v_cndmask_b32 v33, v35, v33, vcc
        buffer_load_dword v134, v33, s[88:91], 0 offen
        """.format(w=w, l=L, k12=96 * 128))
        for x in s:
            if x.text.startswith("buffer_load_dword v134"):
                x.w = []
    m.second_batch = Stream()
    q_issue(m.second_batch, 0)
    for g in A[0][:3]:
        m.second_batch.extend(g)
    for ks in range(1, NS):
        q_issue(m.second_batch, ks)
    for g in A[0][3:6]:
        m.second_batch.extend(g)
    m.a_later = A[0][6:]
    s(codepf)


def groupsA_raw(m, h):
    groups, ctok = [], []
    srcs = [(sXh, 0), (sXm, 0), (sXm, 32768)]
    for c in range(4):
        tk = None
        for sub, (sr, cc) in enumerate(srcs):
            g = Stream()
            g("s_add_u32 m0, s%d, %d" % (M.sKw1, M.REG[h] + sub * 16384 + c * 4096))
            g("s_add_u32 s%d, s%d, %d" % (M.sT, sr, cc + h * 1024 + c * 256))
            tk = g.vm("buffer_load_dwordx4 v%d, s[%d:%d], s%d offen lds" % (vX, sX, sX + 3, M.sT))
            groups.append(g)
        ctok.append(tk)
    return groups, None, ctok


def stats_partial(h, acc, tmp, adr, ks_list, first):
    t = Stream()
    if first:
        t("v_mov_b32 v%d, 0" % acc)
        t("v_mov_b32 v%d, 0" % (acc + 1))
    for j, ks in enumerate(ks_list):
        r = tmp + 4 * (j & 1)
        t("ds_read_b128 %s, v%d offset:%d" % (V(r, 4), adr, ks * 1024))
    return t


def stats_dots(acc, r, ones):
    t = Stream()
    for k in range(4):
        t("v_dot2c_f32_bf16 v%d, v%d, v%d" % (acc, r + k, ones))
        t("v_dot2c_f32_bf16 v%d, v%d, v%d" % (acc + 1, r + k, r + k))
    return t


def stats_final(m, s, h, a):
    s("v_permlane16_swap_b32 v%d, v%d" % (a, a + 1))
    s("v_add_f32 v%d, v%d, v%d" % (a, a, a + 1))
    s("v_mov_b32 v%d, v%d" % (a + 1, a))
    s("v_permlane32_swap_b32 v%d, v%d" % (a, a + 1))
    s("v_add_f32 v%d, v%d, v%d" % (a, a, a + 1))
    s("v_mov_b32 v%d, v%d" % (a + 1, a))
    s("v_permlane16_swap_b32 v%d, v%d" % (a, a + 1))
    s("v_mul_f32 v%d, %s, v%d" % (a, "0x%08x" % fbits(-1.0 / 512), a))
    s("v_mul_f32 v%d, v%d, v%d" % (a + 2, a, a))
    s("v_fma_f32 v%d, v%d, s%d, -v%d" % (a + 1, a + 1, M.sK, a + 2))
    s("v_max_f32 v%d, 0, v%d" % (a + 1, a + 1))
    s("v_add_f32 v%d, s%d, v%d" % (a + 1, M.sK + 1, a + 1))
    s("v_rsq_f32 v%d, v%d" % (a + 1, a + 1))
    s("v_cndmask_b32 v%d, v%d, v%d, s[%d:%d]" % (a, a, a + 1, M.sOdd, M.sOdd + 1))
    tok = Tok("statw")
    s("ds_write_b32 v%d, v%d offset:%d" % (M.vStatW, a, h * 1024), tok=tok)
    return tok


def first_segment(m, s):
    mm = "v_mfma_f32_16x16x32_bf16"
    ACC = M.ACC
    Q = [None, ACC, ACC + 4]
    K = [ACC + 8, ACC + 12, ACC + 16]
    Vv = [ACC + 20, ACC + 24, ACC + 28]
    ctok = m.A_first[2]
    SA, ST_ = 120, 124
    for k in range(4):
        s("v_mov_b32 v%d, 0x3f803f80" % (ONES + k))
    s("v_mov_b32 v%d, 0" % SA)
    s("v_mov_b32 v%d, 0" % (SA + 1))

    def mfma_list(ks):
        c = (lambda r: "0" if ks == 0 else V(r, 4))
        fr = AF[ks & 1]
        out = []
        for sub in range(3):
            x = V(fr + 4 * sub, 4)
            if sub > 0:
                out.append("%s %s, %s, %s, %s" % (mm, V(Q[sub], 4), Bx(3 * ks), x, c(Q[sub])))
            out.append("%s %s, %s, %s, %s" % (mm, V(K[sub], 4), Bx(3 * ks + 1), x, c(K[sub])))
            out.append("%s %s, %s, %s, %s" % (mm, V(Vv[sub], 4), x, Bx(3 * ks + 2), c(Vv[sub])))
        for p in range(3):
            out.append("%s %s, %s, %s, %s" % (mm, V(CSA + 4 * p, 4), V(ONES, 4), Bx(3 * ks + p), c(CSA + 4 * p)))
        return out

    STB = (ST_, 136)
    trtok = {}
    for ks in range(17):
        if ks % 2 == 0:
            m.fs(s, "ks%d" % ks)
        side = Stream()
        if ks < 16:
            s.wait_vm(m.qtok[ks])
            if ks % 4 == 0:
                s.wait_vm(ctok[ks // 4])
            if ks >= 1:
                s.wait_ds(trtok[ks - 1])
            s("s_barrier")
            slot = (ks % NS) * SLOT
            for p in range(3):
                f = 3 * ks + p
                side("ds_read_b64_tr_b16 a[%d:%d], v%d offset:%d" % (4 * f, 4 * f + 1, vT0, slot + p * 4096)).meta["bname2"] = ("Q", Bx(f))
                trtok[ks] = Tok("tr")
                side("ds_read_b64_tr_b16 a[%d:%d], v%d offset:%d" % (4 * f + 2, 4 * f + 3, vT1, slot + p * 4096), tok=trtok[ks])
            for sub in range(3):
                side("ds_read_b128 %s, v%d offset:%d" % (V(AF[ks & 1] + 4 * sub, 4), M.vL16, sub * 16384 + ks * 1024))
            side("ds_read_b128 %s, v%d offset:%d" % (V(STB[ks & 1], 4), vStL, ks * 1024))
            if ks >= 1 and ks - 1 + NS < 16:
                m.q_issue(side, ks - 1 + NS)
            if ks in (1, 4):
                for g in m.a_later[(0 if ks == 1 else 3):(3 if ks == 1 else 6)]:
                    side.extend(g)
        if ks == int(m.opts.get("f2k", 6)) and getattr(m, "f2_first", None) is not None:
            s.extend(m.f2_first)
        if ks >= 1:
            side.extend(stats_dots(SA, STB[(ks - 1) & 1], ONES))
            ml = mfma_list(ks - 1)
            q = list(side)
            per = -(-len(q) // len(ml))
            for i, x in enumerate(ml):
                s(x)
                for y in q[i * per:(i + 1) * per]:
                    s.append(y)
        else:
            s.extend(side)
    a = ST_
    s("v_and_b32 v%d, 0xf0, v%d" % (a, M.vL16))
    s("v_lshrrev_b32 v%d, 2, v%d" % (a, a))
    s("s_mul_i32 s59, s%d, 192" % M.sW)
    s("s_add_u32 s59, s59, %d" % M.CSL)
    s("v_add_u32 v%d, s59, v%d" % (a, a))
    tok = stats_final(m, s, 0, SA)
    for p in range(3):
        s("ds_write_b32 v%d, v%d offset:%d" % (a, CSA + 4 * p, p * 64))
    s.wait_ds()
    s("s_barrier")
    s("s_mov_b32 s12, s%d" % sOUTP)
    s("s_and_b32 s13, s%d, 0xffff" % (sOUTP + 1))
    s("s_mov_b32 s14, 0x200000")


def late(m, s, tmp):
    a, b, c, d = tmp
    w, L16 = M.sW, M.vL16
    B = 172
    lane, cc, rr, gg, r8 = B, B + 1, B + 2, B + 3, B + 4
    csa, oob, gb, g1, g2, so = B + 5, B + 6, B + 7, B + 8, B + 9, B + 10
    ad = B + 12
    ones, SF, GF, GC = B + 16, B + 20, B + 36, B + 48
    s("s_mul_i32 s%d, s%d, 3072" % (a, w))
    s("s_add_u32 s%d, s%d, %d" % (a, a, G_LDS))
    s("v_add_u32 v%d, s%d, v%d" % (gb, a, L16))
    for i in range(3):
        s("ds_write_b128 v%d, %s offset:%d" % (gb, V(RAWG + 4 * i, 4), i * 1024))
    s("s_lshl_b32 s%d, s%d, 12" % (a, w))
    s("s_add_u32 s%d, s%d, %d" % (a, a, S_LDS))
    s("v_add_u32 v%d, s%d, v%d" % (g1, a, L16))
    for i in range(4):
        s("ds_write_b128 v%d, %s offset:%d" % (g1, V(RAWS + 4 * i, 4), i * 1024))
    s("""
    v_lshrrev_b32 v{lane}, 4, v{l16}
    v_and_b32 v{cc}, 3, v{lane}
    v_lshrrev_b32 v{rr}, 2, v{lane}
    v_and_b32 v{rr}, 3, v{rr}
    v_lshrrev_b32 v{gg}, 4, v{lane}
    v_lshl_add_u32 v{r8}, v{gg}, 3, v{rr}
    s_lshl_b32 s{b}, s2, 2
    s_add_u32 s{b}, s{b}, s{w}
    s_cmp_lt_u32 s{b}, 384
    s_cselect_b32 s{c}, 3, 4
    v_lshlrev_b32 v{so}, s{c}, v{cc}
    v_lshl_add_u32 v{so}, v{r8}, 7, v{so}
    v_add_u32 v{so}, s{a}, v{so}
    s_cselect_b32 s{c}, 32, 8
    v_add_u32 v{ad1}, s{c}, v{so}
    v_add_u32 v{ad2}, 64, v{so}
    v_add_u32 v{ad3}, 64, v{ad1}
    v_mov_b32 v{ad0}, v{so}
    """.format(lane=lane, cc=cc, rr=rr, gg=gg, r8=r8, l16=L16, w=w, a=a, b=b, c=c, so=so, ad0=ad, ad1=ad + 1, ad2=ad + 2, ad3=ad + 3))
    s("""
    v_mul_u32_u24 v{gb}, 192, v{r8}
    s_mul_i32 s{a}, s{w}, 48
    s_add_u32 s{a}, s{a}, {gl}
    v_add_u32 v{gb}, s{a}, v{gb}
    v_lshl_add_u32 v{g1}, v{cc}, 3, v{gb}
    v_and_b32 v{g2}, 1, v{cc}
    v_mul_u32_u24 v{g2}, 6144, v{g2}
    v_lshrrev_b32 v{oob}, 1, v{cc}
    v_lshl_add_u32 v{g2}, v{oob}, 3, v{g2}
    v_add_u32 v{g2}, v{g2}, v{gb}
    """.format(gb=gb, r8=r8, a=a, w=w, gl=G_LDS, g1=g1, g2=g2, cc=cc, oob=oob))
    s.wait_ds()
    s("s_barrier")
    for t in range(2):
        s("ds_read_b64_tr_b16 v[%d:%d], v%d offset:%d" % (GF + 2 * t, GF + 1 + 2 * t, g1, t * 768))
        s("ds_read_b64_tr_b16 v[%d:%d], v%d offset:%d" % (GF + 4 + 2 * t, GF + 5 + 2 * t, g1, t * 768 + 6144))
        s("ds_read_b64_tr_b16 v[%d:%d], v%d offset:%d" % (GF + 8 + 2 * t, GF + 9 + 2 * t, g2, t * 768 + 32))
    for f in range(4):
        for t in range(2):
            s("ds_read_b64_tr_b16 v[%d:%d], v%d offset:%d" % (SF + 4 * f + 2 * t, SF + 1 + 4 * f + 2 * t, ad + f, t * 512))
    for k in range(4):
        s("v_mov_b32 v%d, 0x3f803f80" % (ones + k))
    s("""
    v_lshlrev_b32 v{csa}, 2, v{lane}
    v_cmp_gt_u32 vcc, 16, v{lane}
    v_mov_b32 v{oob}, 0x7ffffff0
    v_cndmask_b32 v{csa}, v{oob}, v{csa}, vcc
    s_lshr_b32 s{a}, s2, 4
    s_lshl_b32 s{a}, s{a}, 2
    s_add_u32 s{a}, s{a}, s{w}
    s_and_b32 s{b}, s2, 15
    s_mul_i32 s{c}, s{a}, {k48}
    s_mul_i32 s{d}, s{b}, {k3}
    s_add_u32 s{c}, s{c}, s{d}
    s_add_u32 s{c}, s{c}, {PG}
    """.format(csa=csa, lane=lane, oob=oob, a=a, b=b, c=c, d=d, w=w, k48=48 * KB, k3=3 * KB, PG=PG))
    for sub in range(3):
        s("buffer_store_dwordx4 v[%d:%d], v%d, s[8:11], s%d offen offset:%d sc1" % (GF + 4 * sub, GF + 3 + 4 * sub, L16, c, sub * 1024))
    for sub in range(3):
        s("v_mfma_f32_16x16x32_bf16 v[%d:%d], v[%d:%d], v[%d:%d], 0" % (GC + 4 * sub, GC + 3 + 4 * sub, ones, ones + 3, GF + 4 * sub, GF + 3 + 4 * sub))
    s("""
    s_mul_i32 s{c}, s{a}, {k3}
    s_lshl_b32 s{d}, s{b}, 6
    s_add_u32 s{c}, s{c}, s{d}
    s_add_u32 s{c}, s{c}, {CSG}
    """.format(a=a, b=b, c=c, d=d, k3=3 * KB, CSG=CSG))
    for sub in range(3):
        s("buffer_store_dword v%d, v%d, s[8:11], s%d offen offset:%d sc1" % (GC + 4 * sub, csa, c, sub * 1024))
    e = so
    s("""
    s_lshl_b32 s{a}, s2, 2
    s_add_u32 s{a}, s{a}, s{w}
    s_cmp_lt_u32 s{a}, 864
    s_cselect_b32 s{d}, 0, 1
    s_lshl_b32 s{d}, s{d}, 30
    v_or_b32 v{e}, s{d}, v{l16}
    s_mul_hi_u32 s{b}, s{a}, {m48}
    s_mul_i32 s{c}, s{b}, 48
    s_sub_u32 s{c}, s{a}, s{c}
    s_mul_i32 s{b}, s{b}, 192
    s_add_u32 s{c}, s{c}, s{b}
    s_lshl_b32 s{c}, s{c}, 10
    s_add_u32 s{c}, s{c}, {PQ}
    s_mov_b32 s{b}, 0
    s_mov_b32 s0, {k48}
    s_mov_b32 s1, {k96}
    s_cmp_lt_u32 s{a}, 384
    s_cbranch_scc1 D_l1
    s_movk_i32 s0, 1024
    s_movk_i32 s1, 2048
    s_sub_u32 s{d}, s{a}, 384
    s_lshl_b32 s{c}, s{d}, 12
    s_add_u32 s{c}, s{c}, {PW}
    s_and_b32 s{b}, s{d}, 15
    s_lshr_b32 s{b}, s{b}, 2
    s_cmp_lt_u32 s{a}, 512
    s_cbranch_scc1 D_l1
    s_sub_u32 s{a}, s{a}, 512
    s_lshl_b32 s{c}, s{a}, 12
    s_add_u32 s{c}, s{c}, {PD}
    s_mul_hi_u32 s{d}, s{a}, {m44}
    s_mul_i32 s{d}, s{d}, 44
    s_sub_u32 s{a}, s{a}, s{d}
    s_mul_hi_u32 s{b}, s{a}, {m11}
    """.format(a=a, b=b, c=c, d=d, w=w, e=e, l16=L16, PQ=PQ, PW=PW, PD=PD, m48=magic(48), m44=magic(44), m11=magic(11), k48=48 * KB, k96=96 * KB))
    s("D_l1:")
    s("s_and_b32 s%d, s%d, 1" % (b, b))
    tok = None
    for hb in range(2):
        s("s_xor_b32 s%d, s%d, %d" % (d, b, hb))
        s("s_mul_i32 s%d, s%d, s1" % (d, d))
        s("s_add_u32 s%d, s%d, s%d" % (d, d, c))
        tok = s.vm("buffer_store_dwordx4 v[%d:%d], v%d, s[8:11], s%d offen sc1" % (SF + 8 * hb, SF + 3 + 8 * hb, e, d))
        s("s_add_u32 s%d, s%d, s0" % (d, d))
        tok = s.vm("buffer_store_dwordx4 v[%d:%d], v%d, s[8:11], s%d offen sc1" % (SF + 8 * hb + 4, SF + 7 + 8 * hb, e, d))
    return tok
```

```python
from asmlib import *
from layout import *
from collections import deque
import pack

REG = [0, 65536]
MISC = 131072
STP = MISC
STF = MISC + 16384
CSL = STF + 2048
BIAS = CSL + 2048
JUNK = BIAS + 3072
LDS_BYTES = 163840
SCR = [65536, 98304]

vLane, vL16, vLO, vOst, vH1, vH2, vRed, vPollA, vPollB, vOut = 1, 2, 3, 4, 5, 6, 7, 8, 9, 10
vStatR, vStatW, vStI, vStV, vCs, vCsV, vB1, vOne, vP = 11, 12, 13, 14, 15, 16, 17, 18, 19
ACC = 20
FR = 68
RING = 88
TMP = 136
RES = 140
DV = 144

sW, sRB, sCG, sRB3, sCG3 = 16, 17, 18, 19, 20
sA1h, sA1m, sA3, sKw = 21, 22, 23, 24
sSt1, sSt3 = 25, 26
sM2, sM4 = 28, 30
sT, sT2, sT3 = 32, 33, 34
sOdd = 36
sOnes = 38
sCnt = 40
sBQ, sBW, sBG, sBD = 41, 42, 43, 44
sOst, sA2, sRes, sHst = 45, 46, 47, 48
sA4 = 64
sF1, sF3 = 50, 51
sP2, sP3, sP4, sP1a = 52, 53, 54, 55
sOutO = 56
sStO = 57
sK = 96
sTB = 49
sPoll = 35
sA1hw, sA1mw, sA3w, sKw1 = 63, 66, 67, 27
vPollH = 0
vFlag = 1
vL128 = 10
sPfQ, sPfW, sPfG, sPfD = 90, 91, 92, 93
sM16 = 100
sPoll2 = 62
vP2 = 139
sPur = 5
sImp = 7
sXcc = 6
sTag = 61
sA2b = 60
sE, sE2 = 58, 59
sT4 = 3
sTS = 68

LOG2E = 1.4426950408889634
import struct
def fbits(x): return struct.unpack("<I", struct.pack("<f", x))[0]

POLL_LIMIT = 200000


def Bx(f):
    return "a[%d:%d]" % (4 * f, 4 * f + 3)
def By(f):
    if f < 16:
        return "a[%d:%d]" % (192 + 4 * f, 195 + 4 * f)
    return "v[%d:%d]" % (DV + 4 * (f - 16), DV + 4 * (f - 16) + 3)
def V(n, c=1):
    return "v%d" % n if c == 1 else "v[%d:%d]" % (n, n + c - 1)

def flag_off(p, phase, h):
    return FL + ((p * 4 + phase) * 2 + h) * 32 * 256


class Main:
    def __init__(self, opts):
        self.opts = opts
        self.prof = int(opts.get("prof", 0))
        self.local = opts.get("local", "1") == "1" and opts.get("single", "1") == "1"
        self.direct = opts.get("direct", "0") == "1" and opts.get("single", "1") == "1"
        self.slow = []
        self.npoll = 0
        self.nts = 0
        self.nimp = 0
        self.tsnames5 = []
        self.fine_on = False
        self.tsnames = []

    def ts(self, s, name):
        if self.prof == 6:
            if name in ("start", "prolog") or name.startswith(("s1O", "s2O", "s3E", "s3O", "s4O")):
                k = self.nts
                self.nts += 2
                self.tsnames += [name, name + ".rt"]
                s("s_waitcnt lgkmcnt(0)")
                s("s_memtime s[0:1]")
                s("s_waitcnt lgkmcnt(0)")
                s("s_mov_b32 s%d, s0" % (sTS + k))
                s("s_memrealtime s[0:1]")
                s("s_waitcnt lgkmcnt(0)")
                s("s_mov_b32 s%d, s0" % (sTS + k + 1))
            return
        if self.prof == 4:
            self.mark(s, "seg:" + name)
            return
        if self.prof == 3:
            f = self.opts.get("fine", "").split(",")
            if name == f[0]:
                self.fine_on = True
                self.fs(s, "begin:" + name)
            elif name == f[-1] and self.fine_on:
                self.fs(s, "end:" + name)
                self.fine_on = False
            return
        if self.prof == 8:
            return
        if not self.prof or (self.prof in (2, 5, 7) and name not in ("start", "s4O.1", "s4.1.1")):
            return
        if name in ("mf3O.0", "mf1O.0", "mf3E.0", "mf1O.1"):
            return
        if self.direct and name in ("prolog", "mf1E.1", "s1E.1", "s2E.1", "mf3E.1", "s3E.1", "mf3O.1", "s4E.1", "s2E.0", "s4E.0"):
            return
        if name == "start" and self.opts.get("single", "1") == "1":
            self.tsnames += ["entry"]
            self.nts += 1
        k = self.nts
        self.nts += 1
        self.tsnames.append(name)
        assert sTS + k < (85 if self.direct else 94), k
        s("s_waitcnt lgkmcnt(0)")
        s("s_memtime s[0:1]")
        s("s_waitcnt lgkmcnt(0)")
        s("s_mov_b32 s%d, s0" % (sTS + k))

    def fs(self, s, name):
        if self.prof == 4 and self.fine_on and not name.startswith("mf"):
            k = self.nts
            if sTS + k >= 94:
                return
            self.nts += 1
            self.tsnames.append(name)
            s("s_waitcnt lgkmcnt(0)")
            s("s_memtime s[0:1]")
            s("s_waitcnt lgkmcnt(0)")
            s("s_mov_b32 s%d, s0" % (sTS + k)).meta["glue"] = False
            return
        if self.prof != 3 or not self.fine_on:
            return
        k = self.nts
        lim = 84 if self.direct else (90 if self.opts.get("pf") == "1" else 94)
        if sTS + 2 * k + 1 >= (lim if name.startswith("end:") else lim - 2):
            return
        self.nts += 1
        self.tsnames.append(name)
        s.append(Ins("s_memtime s[%d:%d]" % (sTS + 2 * k, sTS + 2 * k + 1), async_=True))

    def pause(self, s, n):
        i = Ins("@comment")
        i.meta["c"] = "pause"
        i.meta["pause"] = n
        s.append(i)

    def rt(self, s, name):
        if self.prof == 8 and name.endswith(self.opts.get("rtp", ".1")) and name.split(".")[0] in self.opts.get("rts", "sig1O,chk2O,sig2E,chk3E,sig2O,chk3O,sig3O,chk4O,sig4E,chk1E").split(","):
            k = self.nts
            if sTS + 2 * k + 1 < 94:
                self.nts += 1
                self.tsnames.append(name)
                i = Ins("s_memtime s[2:3]", async_=True)
                i.text = "s_memrealtime s[%d:%d]" % (sTS + 2 * k, sTS + 2 * k + 1)
                s.append(i)

    def stm(self, phase):
        return " sc1"

    def purity(self):
        a, d = RING + 22, RING + 23
        i = Stream()
        i("v_lshrrev_b32 v%d, 2, v%d" % (a, vL16))
        i("s_and_b32 s58, s2, 7")
        i("s_lshl_b32 s58, s58, 7")
        i("s_add_u32 s%d, s58, %d" % (sPur, PXC))
        i("buffer_load_dword v%d, v%d, s[8:11], s%d offen sc1" % (d, a, sPur))
        n = self.npoll
        self.npoll += 1
        c = Stream()
        c("s_lshl_b32 s58, s%d, 4" % sTag)
        c("v_xor_b32 v%d, s58, v%d" % (d, d))
        c("v_cmp_le_u32 vcc, 16, v%d" % d)
        c("s_mov_b32 vcc_hi, 0")
        c("s_cbranch_vccnz SLOW_%d" % n).meta["glue"] = True
        c("BACK_%d:" % n)
        c("v_cmp_ne_u32 vcc, s%d, v%d" % (sXcc, d))
        c("s_cmp_lg_u32 vcc_lo, 0")
        c("s_cselect_b32 s58, 1, 0")
        if self.opts.get("impure") == "1":
            c("s_mov_b32 s58, 1")
        c("s_cmp_eq_u32 s%d, 0" % sW)
        c("s_cselect_b32 s%d, s58, 0" % sImp)
        self.slow += ["SLOW_%d:" % n, "  s_mov_b32 s%d, 0" % sCnt, "SPIN_%d:" % n,
                      "  buffer_load_dword v%d, v%d, s[8:11], s%d offen sc1" % (d, a, sPur), "  s_waitcnt vmcnt(0)",
                      "  v_xor_b32 v%d, s58, v%d" % (d, d), "  v_cmp_le_u32 vcc, 16, v%d" % d, "  s_nop 1", "  s_mov_b32 vcc_hi, 0",
                      "  s_cbranch_vccz BACK_%d" % n, "  s_add_u32 s%d, s%d, 1" % (sCnt, sCnt), "  s_cmp_lt_u32 s%d, %d" % (sCnt, POLL_LIMIT),
                      "  s_cbranch_scc1 SPIN_%d" % n, "  s_branch BACK_%d" % n]
        return i, c

    def mark(self, s, name):
        if self.prof == 4:
            i = Ins("@mark")
            i.meta["name"] = name
            s.append(i)

    def resolve_marks(self, s):
        out = Stream()
        f = self.opts.get("fine", "").split(",")
        on = False
        for ins in s:
            if ins.text == "@mark":
                nm = ins.meta["name"]
                if nm == "seg:" + f[0]:
                    on = True
                if on and sTS + self.nts < 94:
                    k = self.nts
                    self.nts += 1
                    self.tsnames.append(nm)
                    out("s_waitcnt lgkmcnt(0)")
                    out("s_memtime s[0:1]")
                    out("s_waitcnt lgkmcnt(0)")
                    out("s_mov_b32 s%d, s0" % (sTS + k))
                if nm == "seg:" + f[-1]:
                    on = False
                continue
            out.append(ins)
        return out

    def poll_issue(self, s, soff, const, vaddr, alt=False):
        vd, sp = (vP2, sPoll2) if alt else (vP, sPoll)
        s("s_add_u32 s%d, s%d, %d" % (sp, soff, const))
        s("buffer_load_dword v%d, v%d, s[8:11], s%d offen sc1" % (vd, vaddr, sp))
        self.mark(s, "pollI")

    def poll_check(self, s, vaddr, mask, alt=False):
        vP, sPoll = (vP2, sPoll2) if alt else (globals()["vP"], globals()["sPoll"])
        n = self.npoll
        self.npoll += 1
        self.mark(s, "chkA")
        s("v_cmp_ne_u32 vcc, s%d, v%d" % (sTag, vP))
        if mask is not None:
            s("s_and_b64 vcc, vcc, s[%d:%d]" % (mask, mask + 1))
        s("s_cbranch_vccnz SLOW_%d" % n).meta["glue"] = True
        s("BACK_%d:" % n).meta["glue"] = True
        s("s_barrier")
        self.mark(s, "chkB")
        t = []
        t.append("SLOW_%d:" % n)
        if self.prof == 5:
            t.append("  s_memtime s[0:1]")
            t.append("  s_waitcnt lgkmcnt(0)")
            t.append("  s_mov_b32 s%d, s0" % (sTS + 2 + n))
            self.tsnames5.append("poll%d" % n)
        t.append("  s_mov_b32 s%d, 0" % sCnt)
        t.append("SPIN_%d:" % n)
        t.append("  buffer_load_dword v%d, v%d, s[8:11], s%d offen sc1" % (vP, vaddr, sPoll))
        t.append("  s_waitcnt vmcnt(0)")
        t.append("  v_cmp_ne_u32 vcc, s%d, v%d" % (sTag, vP))
        t.append("  s_nop 1")
        if mask is not None:
            t.append("  s_and_b64 vcc, vcc, s[%d:%d]" % (mask, mask + 1))
        t.append("  s_cbranch_vccz %s_%d" % ("DONE" if self.prof == 5 else "BACK", n))
        t.append("  s_add_u32 s%d, s%d, 1" % (sCnt, sCnt))
        t.append("  s_cmp_lt_u32 s%d, %d" % (sCnt, POLL_LIMIT))
        t.append("  s_cbranch_scc1 SPIN_%d" % n)
        t.append("  s_branch BACK_%d" % n)
        if self.prof == 5:
            t.append("DONE_%d:" % n)
            t.append("  s_memtime s[0:1]")
            t.append("  s_waitcnt lgkmcnt(0)")
            t.append("  s_sub_u32 s%d, s0, s%d" % (sTS + 2 + n, sTS + 2 + n))
            t.append("  s_branch BACK_%d" % n)
        self.slow += t

    def dep(self, phase, p, h):
        if phase == 1:
            return (sP1a, flag_off(p - 1, 3, h), vPollH, sM16)
        if phase == 2:
            return (sP2, flag_off(p, 0, h), vPollB, sM2)
        if phase == 3:
            return (sP3, flag_off(p, 1, h), vPollA, sM16)
        return (sP4, flag_off(p, 2, h), vPollB, sM4)

    def ev_poll_issue(self, phase, p, h, alt=False):
        t = Stream()
        so, c, va, m = self.dep(phase, p, h)
        self.poll_issue(t, so, c, va, alt)
        return t

    def ev_poll_check(self, phase, p, h, alt=False):
        t = Stream()
        so, c, va, m = self.dep(phase, p, h)
        self.poll_check(t, va, m, alt)
        [x for x in t if x.text == "s_barrier"][-1].meta["checked"] = (phase, p, h)
        self.rt(t, "chk%d%s.%d" % (phase, "EO"[h], p))
        return t

    def ev_sig(self, phase, p, h, tok):
        t = Stream()
        self.sig(t, tok, sF3 if phase == 3 else sF1, flag_off(p, phase - 1, h), local=(self.local and phase != 4))
        self.rt(t, "sig%d%s.%d" % (phase, "EO"[h], p))
        return t

    def sig(self, s, tok, soff, const, local=False):
        self.mark(s, "sigA")
        s.wait_vm(tok)
        self.mark(s, "sigW")
        s("s_barrier")
        self.mark(s, "sigB")
        s("s_add_u32 s%d, s%d, %d" % (sT3, soff, const))
        if not local:
            s("buffer_store_dword v%d, v%d, s[8:11], s%d offen sc1" % (vOne, vFlag, sT3))
            return
        n = self.nimp
        self.nimp += 1
        s("s_cmp_eq_u32 s%d, 1" % sImp)
        s("s_cbranch_scc1 IMP_%d" % n).meta["glue"] = True
        s("buffer_store_dword v%d, v%d, s[8:11], s%d offen" % (vOne, vFlag, sT3)).meta["glue"] = True
        s("IMPB_%d:" % n)
        self.slow += ["IMP_%d:" % n,
                      "  buffer_store_dword v%d, v%d, s[8:11], s%d offen sc1" % (vOne, vFlag, sT3), "  s_branch IMPB_%d" % n]

    def groupsB(self, reg, sbase, lo, hi):
        out = []
        if self.opts.get("nob") == "1" and sbase != sBQ:
            return out
        if self.opts.get("nob") == "2" and sbase == sBG:
            return out
        for f in range(lo, hi):
            g = Stream()
            if f == lo or f % 4 == 0:
                g("s_add_u32 s%d, s%d, %d" % (sTB, sbase, (f // 4) * 4096))
            g("buffer_load_dwordx4 %s, v%d, s[8:11], s%d offen offset:%d" % (reg(f), vL16, sTB, (f % 4) * 1024)).meta["bname"] = \
                {sBQ: "Q", sBW: "W", sBG: "G", sBD: "D"}[sbase]
            out.append(g)
        return out

    def pf(self, sbase, const=0):
        g = Stream()
        if self.opts.get("pf") != "1":
            return g
        g("s_mov_b32 m0, %d" % JUNK)
        g("s_add_u32 s%d, s%d, %d" % (sT, sbase, const))
        g("buffer_load_dword v%d, s[8:11], s%d offen lds" % (vL128, sT))
        return g

    def groupsA_lds(self, phase, p, h):
        if phase == 1:
            srcs = [(sA1hw, 0), (sA1mw, 0), (sA1mw, 16384)]
            xb, st, sst = XB[2 * p], ST[2 * p], sSt1
        else:
            srcs = [(sA3w, i * 16384) for i in range(4)]
            xb, st, sst = XB[2 * p + 1], ST[2 * p + 1], sSt3
        groups, ctok = [], []
        def stats_groups():
            tk = None
            for i in range(2):
                g = Stream()
                g("s_lshl_b32 s%d, s%d, 11" % (sT2, sW))
                g("s_add_u32 m0, s%d, %d" % (sT2, STP + h * 8192))
                g("s_add_u32 s%d, s%d, %d" % (sT, sst, st + h * 131072))
                tk = g.vm("buffer_load_dwordx4 v%d, s[8:11], s%d offen offset:%d sc1 lds" % (vL16, sT, i * 1024))
                if not (phase == 1 and p == 0):
                    g[-1].meta["dep"] = (phase, p, h)
                groups.append(g)
            return tk
        stok = None
        for c in range(4):
            tk = None
            for sub, (sr, cc) in enumerate(srcs):
                g = Stream()
                g("s_add_u32 m0, s%d, %d" % (sKw1, REG[h] + sub * 16384 + c * 4096))
                g("s_add_u32 s%d, s%d, %d" % (sT, sr, xb + h * MB + cc + c * 4096))
                tk = g.vm("buffer_load_dwordx4 v%d, s[8:11], s%d offen sc1 lds" % (vL16, sT))
                if not (phase == 1 and p == 0):
                    g[-1].meta["dep"] = (phase, p, h)
                groups.append(g)
            ctok.append(tk)
            if c == 0:
                stok = stats_groups()
        return groups, stok, ctok

    def frag_seq(self, phase):
        nks = 4 if phase == 2 else 11
        return [(ss, ks) for ss in (1, 0) for ks in range(nks)]

    def ringreg(self, n):
        return RING + 4 * (n % 12)

    def loadA24_one(self, g, phase, p, h, n, st=sT):
        ss, ks = self.frag_seq(phase)[n]
        if phase == 2:
            if ss == 0:
                g("s_add_u32 s%d, s%d, %d" % (st, sA2, OB[p] + h * MB))
            else:
                g("s_add_u32 s%d, s%d, %d" % (st, sA2b, OB[p] + h * MB))
            g("buffer_load_dwordx4 %s, v%d, s[8:11], s%d offen offset:%d sc1" % (V(self.ringreg(n), 4), vL16, st, ks * 1024)).meta["dep"] = (phase, p, h)
        else:
            g("s_add_u32 s%d, s%d, %d" % (st, sA4 + ss, HB[p] + h * 3 * MB + (ks // 4) * 4096))
            g("buffer_load_dwordx4 %s, v%d, s[8:11], s%d offen offset:%d sc1" % (V(self.ringreg(n), 4), vL16, st, (ks % 4) * 1024)).meta["dep"] = (phase, p, h)

    def groupsA24(self, phase, p, h):
        out = []
        for n in range(min(12, len(self.frag_seq(phase)))):
            g = Stream()
            self.loadA24_one(g, phase, p, h, n)
            out.append(g)
        g = Stream()
        if self.direct and phase == 2 and p == 0:
            g("v_and_b32 v%d, 0xf0, v%d" % (RES, vL16))
            g("v_lshlrev_b32 v%d, 7, v%d" % (RES, RES))
            g("v_lshrrev_b32 v%d, 8, v%d" % (RES + 1, vL16))
            g("v_lshl_add_u32 v%d, v%d, 4, v%d" % (RES, RES + 1, RES))
            g("s_add_u32 s%d, s%d, %d" % (sT, sOutO, h * 1024))
            g("buffer_load_dwordx4 %s, v%d, s[88:91], s%d offen" % (V(RES, 4), RES, sT))
        else:
            g("s_add_u32 s%d, s%d, %d" % (sT, sRes, XB[2 * p + (0 if phase == 2 else 1)] + h * MB))
            g("buffer_load_dwordx4 %s, v%d, s[8:11], s%d offen sc1" % (V(RES, 4), vL16, sT))
        out.insert(min(4, len(out)), g)
        return out

    def stats_reduce(self, s, h, stok):
        a = RING
        adr = vStatR
        if h == 1:
            adr = RING + 8
            s("v_add_u32 v%d, 8192, v%d" % (adr, vStatR))
        s.wait_vm(stok)
        for i in range(4):
            s("ds_read2_b32 %s, v%d offset0:%d offset1:%d" % (V(a + 2 * i, 2), adr, 64 * i, 64 * i + 32))
        self.pause(s, 10)
        for (x, y) in ((0, 1), (2, 3), (4, 5), (6, 7), (0, 2), (4, 6), (0, 4)):
            s("v_add_f32 v%d, v%d, v%d" % (a + x, a + x, a + y))
        s("v_mov_b32 v%d, v%d" % (a + 1, a))
        s("v_permlane32_swap_b32 v%d, v%d" % (a, a + 1))
        s("v_add_f32 v%d, v%d, v%d" % (a, a, a + 1))
        s("v_mov_b32 v%d, v%d" % (a + 1, a))
        s("v_permlane16_swap_b32 v%d, v%d" % (a, a + 1))
        s("v_mul_f32 v%d, %s, v%d" % (a, "0x%08x" % fbits(-1.0 / 512), a))
        s("v_mul_f32 v%d, v%d, v%d" % (a + 2, a, a))
        s("v_fma_f32 v%d, v%d, s%d, -v%d" % (a + 1, a + 1, sK, a + 2))
        s("v_max_f32 v%d, 0, v%d" % (a + 1, a + 1))
        s("v_add_f32 v%d, s%d, v%d" % (a + 1, sK + 1, a + 1))
        s("v_rsq_f32 v%d, v%d" % (a + 1, a + 1))
        s("v_cndmask_b32 v%d, v%d, v%d, s[%d:%d]" % (a, a, a + 1, sOdd, sOdd + 1))
        self.stat_tok = Tok("statw")
        s("ds_write_b32 v%d, v%d offset:%d" % (vStatW, a, h * 1024), tok=self.stat_tok)

    def epi_pref(self, phase, h):
        hoff = h * 1024
        pub = Stream()
        pub.wait_ds(self.stat_tok)
        pub("s_barrier")
        if phase == 3:
            return {58: list(pub), 60: ["ds_read_b128 %s, v%d offset:768" % (V(68, 4), vCs)],
                    61: ["ds_read_b128 %s, v%d offset:832" % (V(72, 4), vCs)],
                    62: ["ds_read_b128 %s, v%d offset:896" % (V(76, 4), vCs)],
                    63: ["ds_read_b64 %s, v%d offset:%d" % (V(80, 2), vStI, hoff)]}
        return {37: list(pub), 38: ["ds_read_b128 %s, v%d offset:%d" % (V(52, 4), vStV, hoff)],
                39: ["ds_read_b128 %s, v%d offset:%d" % (V(56, 4), vStV, hoff + 256)],
                40: ["ds_read_b128 %s, v%d offset:%d" % (V(60, 4), vStV, hoff + 64)],
                41: ["ds_read_b128 %s, v%d offset:%d" % (V(64, 4), vStV, hoff + 256 + 64)],
                43: ["ds_read_b128 %s, v%d offset:64" % (V(80, 4), vCs)],
                44: ["ds_read_b32 v84, v%d" % vCsV],
                45: ["ds_read_b64 %s, v%d offset:%d" % (V(68, 2), vStI, hoff), "ds_read_b64 %s, v%d offset:%d" % (V(70, 2), vStI, hoff + 128)],
                46: ["ds_read_b64 %s, v%d offset:%d" % (V(72, 2), vStI, hoff + 256)],
                47: ["ds_read_b128 %s, v%d offset:0" % (V(76, 4), vCs)]}

    def mf13(self, phase, h):
        base = vL16 if h == 0 else vLO
        nsub = 3 if phase == 1 else 4
        nfr = 16 * nsub
        def rd(n):
            ks, sub = divmod(n, nsub)
            out = []
            if sub == 0 and ks % 4 == 0:
                out.append(("chunk", ks // 4))
            out.append("ds_read_b128 %s, v%d offset:%d" % (V(FR + 4 * (n % 5), 4), base, sub * 16384 + ks * 1024))
            return out
        pre = [x for n in range(5) for x in rd(n)]
        pref = self.epi_pref(phase, h)
        steps = []
        mm = "v_mfma_f32_16x16x32_bf16"
        Q = [None, ACC, ACC + 4]
        K = [ACC + 8, ACC + 12, ACC + 16]
        Vv = [ACC + 20, ACC + 24, ACC + 28]
        for ks in range(16):
            c = (lambda r: "0" if ks == 0 else V(r, 4))
            for sub in range(nsub):
                n = nsub * ks + sub
                x = V(FR + 4 * (n % 5), 4)
                grp = []
                if phase == 1:
                    if sub > 0:
                        grp.append("%s %s, %s, %s, %s" % (mm, V(Q[sub], 4), Bx(3 * ks), x, c(Q[sub])))
                    grp.append("%s %s, %s, %s, %s" % (mm, V(K[sub], 4), Bx(3 * ks + 1), x, c(K[sub])))
                    grp.append("%s %s, %s, %s, %s" % (mm, V(Vv[sub], 4), x, Bx(3 * ks + 2), c(Vv[sub])))
                else:
                    for j in range(3):
                        r = ACC + 12 * sub + 4 * j
                        grp.append("%s %s, %s, %s, %s" % (mm, V(r, 4), Bx(3 * ks + j), x, c(r)))
                for i, m in enumerate(grp):
                    bop = [o.strip() for o in m.split(",") if o.strip().startswith("a[")][0]
                    st = [Ins(m, need=(bop, "Q" if phase == 1 else "G"))]
                    if i == len(grp) - 1 and n + 5 < nfr:
                        st += rd(n + 5)
                    if i == len(grp) - 1:
                        st += pref.get(n, [])
                    steps.append(st)
        return pre, steps

    def mf24(self, phase, p, h):
        seq = self.frag_seq(phase)
        nks = len(seq) // 2
        m = min(nks, int(self.opts.get("m2" if phase == 2 else "m4", 4 if phase == 2 else 6)))
        order = []
        for n, (ss, ks) in enumerate(seq):
            if ss == 0 and ks >= nks - m:
                continue
            order += [(n, jj) for jj in range(4)]
        tail = [n for n, (ss, ks) in enumerate(seq) if ss == 0 and ks >= nks - m]
        order += [(n, jj) for n in tail for jj in (2, 3)]
        self.x1_done = len(order)
        order += [(n, jj) for n in tail for jj in (0, 1)]
        steps = []
        for n, jj in order:
            ss, ks = seq[n]
            x = V(self.ringreg(n), 4)
            r = ACC + 16 * ss + 4 * jj
            st = [Ins("v_mfma_f32_16x16x32_bf16 %s, %s, %s, %s" % (V(r, 4), By(4 * ks + jj), x, "0" if ks == 0 else V(r, 4)),
                      need=(By(4 * ks + jj), "W" if phase == 2 else "D"))]
            if n + 12 < len(seq):
                assert n not in tail
                t = Stream()
                self.loadA24_one(t, phase, p, h, n + 12, sT4)
                if jj == 2:
                    st.append(t[0])
                if jj == 3:
                    st.append(t[1])
            steps.append(st)
        return steps, 2 * len(seq)

    def red_writes(self, xs, h):
        t = Stream()
        so = SCR[h] - 65536
        for x in xs:
            t("v_xor_b32 v%d, %d, v%d" % (TMP + x - 1, x << 13, vRed))
        for x in xs:
            for jl in range(2):
                t("ds_write_b128 v%d, %s offset:%d" % (TMP + x - 1, V(ACC + 8 * x + 4 * jl, 4), so + x * 2048 + jl * 1024))
        return t

    def seg24_mf(self, s, phase, p, h, at=None):
        steps, half = self.mf24(phase, p, h)
        at = dict(at or {})
        w = self.red_writes((2, 3), h)
        at.setdefault(half + 9, []).insert(0, w)
        self.x1_written = False
        if self.x1_done + 9 <= len(steps) - 1:
            at.setdefault(self.x1_done + 9, []).append(self.red_writes((1,), h))
            self.x1_written = True
        self.run_mf(s, steps, at=at)

    def epi1(self, s, p, h):
        Q = [None, ACC, ACC + 4]
        K = [ACC + 8, ACC + 12, ACC + 16]
        Vv = [ACC + 20, ACC + 24, ACC + 28]
        SP = [None, 52, 60]
        SC = [None, 56, 64]
        st = [68, 70, 72]
        csq, csk, csv, cq = 76, 80, 84, 86
        hoff = h * 1024
        NM = [52, 60, 52]
        RS = [56, 64, 56]
        def rdv(sub):
            s("ds_read_b128 %s, v%d offset:%d" % (V(NM[sub], 4), vStV, hoff + sub * 64))
            s("ds_read_b128 %s, v%d offset:%d" % (V(RS[sub], 4), vStV, hoff + 256 + sub * 64))
        bc0 = "op_sel_hi:[0,1,1]"
        for sub in (1, 2):
            for hh in (0, 2):
                s("v_pk_fma_f32 %s, %s, %s, %s %s" % (V(Q[sub] + hh, 2), V(st[sub], 2), V(csq + hh, 2), V(Q[sub] + hh, 2), bc0))
            s("v_mul_f32 v%d, s%d, v%d" % (cq, sK + 2, st[sub] + 1))
            for hh in (0, 2):
                s("v_pk_mul_f32 %s, %s, %s op_sel_hi:[1,0]" % (V(Q[sub] + hh, 2), V(Q[sub] + hh, 2), V(cq, 2)))
            s("v_cvt_pk_bf16_f32 v%d, v%d, v%d" % (Q[sub], Q[sub], Q[sub] + 1))
            s("v_cvt_pk_bf16_f32 v%d, v%d, v%d" % (Q[sub] + 1, Q[sub] + 2, Q[sub] + 3))
        for sub in range(3):
            for hh in (0, 2):
                s("v_pk_fma_f32 %s, %s, %s, %s %s" % (V(K[sub] + hh, 2), V(st[sub], 2), V(csk + hh, 2), V(K[sub] + hh, 2), bc0))
            for hh in (0, 2):
                s("v_pk_mul_f32 %s, %s, %s op_sel:[0,1] op_sel_hi:[1,1]" % (V(K[sub] + hh, 2), V(K[sub] + hh, 2), V(st[sub], 2)))
            s("v_cvt_pk_bf16_f32 v%d, v%d, v%d" % (K[sub], K[sub], K[sub] + 1))
            s("v_cvt_pk_bf16_f32 v%d, v%d, v%d" % (K[sub] + 1, K[sub] + 2, K[sub] + 3))
        bp1, bp, bc = 68, 72, 76
        s("v_add_u32 v%d, %d, v%d" % (TMP + 2, BIAS, vL16))
        s("ds_read_b128 %s, v%d" % (V(bp1, 4), vB1))
        s("ds_read_b128 %s, v%d offset:1024" % (V(bp, 4), TMP + 2))
        s("ds_read_b128 %s, v%d offset:0" % (V(bc, 4), TMP + 2))
        for sub in range(3):
            for hh in (0, 2):
                s("v_pk_fma_f32 %s, %s, %s, %s op_sel_hi:[1,0,1]" % (V(Vv[sub] + hh, 2), V(NM[sub] + hh, 2), V(csv, 2), V(Vv[sub] + hh, 2)))
            for hh in (0, 2):
                s("v_pk_mul_f32 %s, %s, %s" % (V(Vv[sub] + hh, 2), V(Vv[sub] + hh, 2), V(RS[sub] + hh, 2)))
            if sub == 0:
                rdv(2)
            s("v_cvt_pk_bf16_f32 v%d, v%d, v%d" % (Vv[sub], Vv[sub], Vv[sub] + 1))
            s("v_cvt_pk_bf16_f32 v%d, v%d, v%d" % (Vv[sub] + 1, Vv[sub] + 2, Vv[sub] + 3))
        mm = "v_mfma_f32_16x16x16_bf16"
        s("%s %s, %s, %s, %s" % (mm, V(SP[1], 4), V(K[0], 2), V(Q[1], 2), V(bp1, 4)))
        s("%s %s, %s, %s, %s" % (mm, V(SC[1], 4), V(K[1], 2), V(Q[1], 2), V(bc, 4)))
        s("%s %s, %s, %s, %s" % (mm, V(SP[2], 4), V(K[1], 2), V(Q[2], 2), V(bp, 4)))
        s("%s %s, %s, %s, %s" % (mm, V(SC[2], 4), V(K[2], 2), V(Q[2], 2), V(bc, 4)))
        m = {1: 80, 2: 84}
        l = {1: 82, 2: 86}
        for sub in (1, 2):
            a, b = SP[sub], SC[sub]
            s("v_max3_f32 v%d, v%d, v%d, v%d" % (m[sub], a, a + 1, a + 2))
            s("v_max3_f32 v%d, v%d, v%d, v%d" % (m[sub] + 1, a + 3, b, b + 1))
            s("v_max3_f32 v%d, v%d, v%d, v%d" % (m[sub], m[sub], b + 2, b + 3))
            s("v_max_f32 v%d, v%d, v%d" % (m[sub], m[sub], m[sub] + 1))
        for sw in ("v_permlane16_swap_b32", "v_permlane32_swap_b32"):
            for sub in (1, 2):
                s("v_mov_b32 v%d, v%d" % (m[sub] + 1, m[sub]))
            for sub in (1, 2):
                s("%s v%d, v%d" % (sw, m[sub], m[sub] + 1))
            for sub in (1, 2):
                s("v_max_f32 v%d, v%d, v%d" % (m[sub], m[sub], m[sub] + 1))
        for sub in (1, 2):
            for r in (SP[sub], SP[sub] + 2, SC[sub], SC[sub] + 2):
                s("v_pk_add_f32 %s, %s, %s op_sel_hi:[1,0] neg_lo:[0,1] neg_hi:[0,1]" % (V(r, 2), V(r, 2), V(m[sub], 2)))
        for sub in (1, 2):
            for r in range(4):
                s("v_exp_f32 v%d, v%d" % (SP[sub] + r, SP[sub] + r))
                s("v_exp_f32 v%d, v%d" % (SC[sub] + r, SC[sub] + r))
        s("v_mov_b32 v76, 0x3f803f80")
        s("v_mov_b32 v77, 0x3f803f80")
        for sub in (1, 2):
            for r in (SP[sub], SC[sub]):
                s("v_cvt_pk_bf16_f32 v%d, v%d, v%d" % (r, r, r + 1))
                s("v_cvt_pk_bf16_f32 v%d, v%d, v%d" % (r + 1, r + 2, r + 3))
        lq = {1: 80, 2: 84}
        for sub in (1, 2):
            s("%s %s, %s, %s, 0" % (mm, V(lq[sub], 4), V(76, 2), V(SP[sub], 2)))
        for sub in (1, 2):
            s("%s %s, %s, %s, 0" % (mm, V(Q[sub], 4), V(Vv[sub - 1], 2), V(SP[sub], 2)))
        for sub in (1, 2):
            s("%s %s, %s, %s, %s" % (mm, V(lq[sub], 4), V(76, 2), V(SC[sub], 2), V(lq[sub], 4)))
        for sub in (1, 2):
            s("%s %s, %s, %s, %s" % (mm, V(Q[sub], 4), V(Vv[sub], 2), V(SC[sub], 2), V(Q[sub], 4)))
        l = lq
        for sub in (1, 2):
            s("v_rcp_f32 v%d, v%d" % (l[sub], l[sub]))
        for sub in (1, 2):
            for hh in (0, 2):
                s("v_pk_mul_f32 %s, %s, %s op_sel_hi:[1,0]" % (V(Q[sub] + hh, 2), V(Q[sub] + hh, 2), V(l[sub], 2)))
        o = ACC
        s("v_cvt_pk_bf16_f32 v%d, v%d, v%d" % (o, o, o + 1))
        s("v_cvt_pk_bf16_f32 v%d, v%d, v%d" % (o + 1, o + 2, o + 3))
        s("v_cvt_pk_bf16_f32 v%d, v%d, v%d" % (o + 2, o + 4, o + 5))
        s("v_cvt_pk_bf16_f32 v%d, v%d, v%d" % (o + 3, o + 6, o + 7))
        s("v_permlane16_swap_b32 v%d, v%d" % (o, o + 2))
        s("v_permlane16_swap_b32 v%d, v%d" % (o + 1, o + 3))
        s("s_add_u32 s%d, s%d, %d" % (sE, sOst, OB[p] + h * MB))
        return s.vm("buffer_store_dwordx4 %s, v%d, s[8:11], s%d offen%s" % (V(o, 4), vOst, sE, self.stm(1)))

    def epi3(self, s, p, h):
        csG, csU, csM = 68, 72, 76
        stp = [80, 82]
        c1 = 84
        hoff = h * 1024
        bq = TMP
        for sub in range(4):
            G, U, M = ACC + 12 * sub, ACC + 12 * sub + 4, ACC + 12 * sub + 8
            st = stp[sub & 1]
            if sub < 3:
                s("ds_read_b64 %s, v%d offset:%d" % (V(stp[(sub + 1) & 1], 2), vStI, hoff + (sub + 1) * 128))
            for (r, cs) in ((M, csM), (G, csG), (U, csU)):
                for hh in (0, 2):
                    s("v_pk_fma_f32 %s, %s, %s, %s op_sel_hi:[0,1,1]" % (V(r + hh, 2), V(st, 2), V(cs + hh, 2), V(r + hh, 2)))
            s("v_mul_f32 v%d, s%d, v%d" % (c1, sK + 3, st + 1))
            s("v_permlane16_swap_b32 v%d, v%d" % (M, M + 2))
            s("v_permlane16_swap_b32 v%d, v%d" % (M + 1, M + 3))
            gates = (G, G + 2, M)
            ups = (U, U + 2, M + 2)
            for r in gates:
                s("v_pk_mul_f32 %s, %s, %s op_sel_hi:[1,0]" % (V(r, 2), V(r, 2), V(c1, 2)))
            for r in gates:
                s("v_exp_f32 v%d, v%d" % (r, r))
                s("v_exp_f32 v%d, v%d" % (r + 1, r + 1))
            for r in ups:
                s("v_pk_mul_f32 %s, %s, %s op_sel:[0,1] op_sel_hi:[1,1]" % (V(r, 2), V(r, 2), V(st, 2)))
            for r in gates:
                s("v_pk_add_f32 %s, %s, s[%d:%d]" % (V(r, 2), V(r, 2), sOnes, sOnes + 1))
            for r in gates:
                s("v_rcp_f32 v%d, v%d" % (r, r))
                s("v_rcp_f32 v%d, v%d" % (r + 1, r + 1))
            for g, u in zip(gates, ups):
                s("v_pk_mul_f32 %s, %s, %s" % (V(u, 2), V(u, 2), V(g, 2)))
            dst = ACC + 12 * (sub & ~1) + 2 * (sub & 1)
            s("v_cvt_pk_bf16_f32 v%d, v%d, v%d" % (dst, U, U + 1))
            s("v_cvt_pk_bf16_f32 v%d, v%d, v%d" % (dst + 1, U + 2, U + 3))
            s("v_cvt_pk_bf16_f32 v%d, v%d, v%d" % (bq + sub, M + 2, M + 3))
        s("s_add_u32 s%d, s%d, %d" % (sE, sHst, HB[p] + h * 3 * MB))
        for pr in range(2):
            d = ACC + 24 * pr
            s("v_permlane16_swap_b32 v%d, v%d" % (d, d + 2))
            s("v_permlane16_swap_b32 v%d, v%d" % (d + 1, d + 3))
            if pr == 1:
                s("s_add_u32 s%d, s%d, %d" % (sE2, sE, 2 * 48 * KB))
            s.vm("buffer_store_dwordx4 %s, v%d, s[8:11], s%d offen%s" % (V(d, 4), vH1, sE if pr == 0 else sE2, self.stm(3)))
        s("v_permlane16_swap_b32 v%d, v%d" % (bq, bq + 1))
        s("v_permlane16_swap_b32 v%d, v%d" % (bq + 2, bq + 3))
        s("v_permlane32_swap_b32 v%d, v%d" % (bq, bq + 2))
        s("v_permlane32_swap_b32 v%d, v%d" % (bq + 1, bq + 3))
        return s.vm("buffer_store_dwordx4 %s, v%d, s[8:11], s%d offen%s" % (V(bq, 4), vH2, sE, self.stm(3)))

    def epi24(self, s, phase, p, h, sig=None, mid=None):
        so = SCR[h] - 65536
        a = ACC
        if not self.x1_written:
            s.extend(self.red_writes((1,), h))
        if sig is not None:
            s.wait_vm(sig[3])
        s.wait_ds()
        s("s_barrier")
        if sig is not None:
            s("s_add_u32 s%d, s%d, %d" % (sT3, sF3 if sig[0] == 3 else sF1, flag_off(sig[1], sig[0] - 1, sig[2])))
            s("buffer_store_dword v%d, v%d, s[8:11], s%d offen sc1" % (vOne, vFlag, sT3))
        for x in (1, 2, 3):
            for jl in range(2):
                s("ds_read_b128 %s, v%d offset:%d" % (V(a + 8 * x + 4 * jl, 4), vRed, so + x * 2048 + jl * 1024))
        r = 52
        for i in range(4):
            s("v_lshlrev_b32 v%d, 16, v%d" % (r + 2 * i, RES + i))
            s("v_and_b32 v%d, 0xffff0000, v%d" % (r + 2 * i + 1, RES + i))
        for i in range(4):
            s("v_pk_add_f32 %s, %s, %s" % (V(a + 2 * i, 2), V(a + 2 * i, 2), V(r + 2 * i, 2)))
        for x in (1, 2, 3):
            for i in range(4):
                s("v_pk_add_f32 %s, %s, %s" % (V(a + 2 * i, 2), V(a + 2 * i, 2), V(a + 8 * x + 2 * i, 2)))
        o = 60
        for i in range(4):
            s("v_cvt_pk_bf16_f32 v%d, v%d, v%d" % (o + i, a + 2 * i, a + 2 * i + 1))
        final = (phase == 4 and p == 1)
        if final:
            s("s_add_u32 s%d, s%d, %d" % (sE, sOutO, h * 1024))
            s("v_and_b32 v52, 0xf0, v%d" % vL16)
            s("v_lshlrev_b32 v52, 7, v52")
            s("v_lshrrev_b32 v53, 8, v%d" % vL16)
            s("v_lshl_add_u32 v52, v53, 4, v52")
            tk = s.vm("buffer_store_dwordx4 %s, v52, s[12:15], s%d offen%s" % (V(o, 4), sE, {"0": "", "1": " sc1", "2": " nt"}[self.opts.get("outsc", "1")]))
            if mid is not None:
                s.extend(mid)
            return tk
        xi = 2 * p + (1 if phase == 2 else 2)
        s("s_add_u32 s%d, s%d, %d" % (sE, sRes, XB[xi] + h * MB))
        s.vm("buffer_store_dwordx4 %s, v%d, s[8:11], s%d offen%s" % (V(o, 4), vL16, sE, self.stm(phase)))
        if mid is not None:
            s.extend(mid)
        u = 52
        s("v_pk_add_f32 %s, %s, %s" % (V(u, 2), V(a, 2), V(a + 2, 2)))
        s("v_pk_add_f32 %s, %s, %s" % (V(u + 2, 2), V(a + 4, 2), V(a + 6, 2)))
        s("v_pk_mul_f32 %s, %s, %s" % (V(u + 4, 2), V(a, 2), V(a, 2)))
        s("v_pk_add_f32 %s, %s, %s" % (V(u, 2), V(u, 2), V(u + 2, 2)))
        for i in (1, 2, 3):
            s("v_pk_fma_f32 %s, %s, %s, %s" % (V(u + 4, 2), V(a + 2 * i, 2), V(a + 2 * i, 2), V(u + 4, 2)))
        s("v_add_f32 v%d, v%d, v%d" % (u, u, u + 1))
        s("v_add_f32 v%d, v%d, v%d" % (u + 1, u + 4, u + 5))
        s("v_permlane16_swap_b32 v%d, v%d" % (u, u + 1))
        s("v_add_f32 v%d, v%d, v%d" % (u, u, u + 1))
        s("v_mov_b32 v%d, v%d" % (u + 1, u))
        s("v_permlane32_swap_b32 v%d, v%d" % (u, u + 1))
        s("v_add_f32 v%d, v%d, v%d" % (u, u, u + 1))
        s("s_add_u32 s%d, s%d, %d" % (sE, sStO, ST[xi] + h * 131072))
        s("v_lshrrev_b32 v%d, 2, v%d" % (u + 2, vL16))
        s("s_mov_b32 exec_hi, 0")
        tok = s.vm("buffer_store_dword v%d, v%d, s[8:11], s%d offen%s" % (u, u + 2, sE, self.stm(phase)))
        s("s_mov_b32 exec_hi, -1")
        return tok

    def codepf(self, sw=16):
        if self.opts.get("nocpf") == "1":
            return ""
        n = int(self.opts.get("cpf", 2))
        t = ["s_getpc_b64 s[56:57]", "M_pc:", "s_lshl_b32 s58, s%d, 13" % sw, "v_lshlrev_b32 v128, 7, v1", "v_add_u32 v128, s58, v128"]
        for i in range(n):
            t.append("v_min_u32 v129, M_last-M_pc, v128")
            t.append("global_load_dword v%d, v129, s[56:57]" % (134 + i))
            if i < n - 1:
                t.append("v_add_u32 v128, 0x8000, v128")
        return "\n".join(t)

    def pro_ids(self, s, t):
        s("""
        v_lshrrev_b32 v20, 6, v0
        v_and_b32 v%d, 63, v0
        v_readfirstlane_b32 s%d, v20
        v_lshlrev_b32 v%d, 4, v%d
        s_and_b32 s32, s2, 7
        s_lshr_b32 s33, s2, 3
        s_lshr_b32 s34, s32, 1
        s_and_b32 s35, s32, 1
        """ % (vLane, sW, vL16, vLane))
        if self.local:
            s("""
            s_lshl_b32 s{rb}, s32, 2
            s_lshr_b32 s{t}, s33, 3
            s_add_u32 s{rb}, s{rb}, s{t}
            s_and_b32 s{cg}, s33, 7
            s_lshl_b32 s{rb3}, s32, 1
            s_lshr_b32 s{t}, s33, 4
            s_add_u32 s{rb3}, s{rb3}, s{t}
            s_and_b32 s{cg3}, s33, 15
            """.format(rb=sRB, cg=sCG, rb3=sRB3, cg3=sCG3, t=t))
        else:
            s("""
            s_lshl_b32 s{rb}, s34, 3
            s_lshr_b32 s{t}, s33, 2
            s_add_u32 s{rb}, s{rb}, s{t}
            s_lshl_b32 s{cg}, s35, 2
            s_and_b32 s{t}, s33, 3
            s_add_u32 s{cg}, s{cg}, s{t}
            s_lshl_b32 s{rb3}, s34, 2
            s_lshr_b32 s{t}, s33, 3
            s_add_u32 s{rb3}, s{rb3}, s{t}
            s_lshl_b32 s{cg3}, s35, 3
            s_and_b32 s{t}, s33, 7
            s_add_u32 s{cg3}, s{cg3}, s{t}
            """.format(rb=sRB, cg=sCG, rb3=sRB3, cg3=sCG3, t=t))

    def prologue(self, s):
        single = self.opts.get("single", "1") == "1"
        s("""
        s_load_dwordx2 s[4:5], s[0:1], 72
        s_load_dwordx2 s[6:7], s[0:1], 56
        """)
        if not single:
            s("s_cmp_ge_u32 s2, 256")
            s("s_cbranch_scc1 M_end")
        self.pro_ids(s, 36)
        if not single:
            s(self.codepf())
        s("""
        s_waitcnt lgkmcnt(0)
        s_mov_b32 s8, s4
        s_and_b32 s9, s5, 0xffff
        s_mov_b32 s10, 0x10000000
        s_mov_b32 s11, 0x20000
        s_mov_b32 s12, s6
        s_and_b32 s13, s7, 0xffff
        s_mov_b32 s14, 0x200000
        s_mov_b32 s15, 0x20000
        """)
        self.pro_rest(s)

    def pro_rest(self, s):
        s("""
        s_lshl_b32 s36, s{cg}, 2
        s_add_u32 s36, s36, s{w}
        s_mul_i32 s{bq}, s36, {k48}
        s_add_u32 s{bq}, s{bq}, {PQ}
        s_lshl_b32 s{bw}, s36, 14
        s_add_u32 s{bw}, s{bw}, {PW}
        s_mul_i32 s{bd}, s36, {k44}
        s_add_u32 s{bd}, s{bd}, {PD}
        s_lshl_b32 s37, s{cg3}, 2
        s_add_u32 s37, s37, s{w}
        s_mul_i32 s{bg}, s37, {k48}
        s_add_u32 s{bg}, s{bg}, {PG}
        s_lshl_b32 s{kw}, s{w}, 12
        s_lshl_b32 s{a1m}, s{rb}, 15
        s_lshl_b32 s{a3}, s{rb3}, 16
        s_sub_u32 s{a1h}, s{a1m}, 16384
        s_max_i32 s{a1h}, s{a1h}, 0
        """.format(cg=sCG, w=sW, bq=sBQ, bw=sBW, bd=sBD, bg=sBG, cg3=sCG3, kw=sKw, a1m=sA1m, a3=sA3, a1h=sA1h, rb=sRB, rb3=sRB3,
                   k48=48 * KB, k44=44 * KB, PQ=PQ, PW=PW, PD=PD, PG=PG))
        s("""
        s_lshl_b32 s38, s{rb}, 1
        s_add_u32 s38, s38, s{w}
        s_sub_u32 s38, s38, 1
        s_max_i32 s38, s38, 0
        s_lshl_b32 s{st1}, s38, 11
        s_lshl_b32 s38, s{rb3}, 2
        s_add_u32 s38, s38, s{w}
        s_lshl_b32 s{st3}, s38, 11
        """.format(rb=sRB, w=sW, st1=sSt1, rb3=sRB3, st3=sSt3))
        s("""
        s_lshr_b32 s38, s{w}, 1
        s_and_b32 s39, s{w}, 1
        s_lshl_b32 s40, s{cg}, 1
        s_add_u32 s59, s40, s38
        s_lshl_b32 s59, s59, 10
        s_lshl_b32 s60, s39, 9
        s_add_u32 s59, s59, s60
        s_add_u32 s{ost}, s59, s{a1m}
        """.format(w=sW, cg=sCG, ost=sOst, a1m=sA1m))
        s("""
        s_lshl_b32 s59, s38, 14
        s_add_u32 s59, s59, s{a1m}
        s_add_u32 s{a2}, s59, s{kw}
        s_add_u32 s60, s40, s39
        s_lshl_b32 s61, s60, 10
        s_add_u32 s{res}, s59, s61
        s_lshr_b32 s{sto}, s59, 3
        s_lshl_b32 s61, s60, 7
        s_add_u32 s{sto}, s{sto}, s61
        """.format(a1m=sA1m, a2=sA2, kw=sKw, res=sRes, sto=sStO))
        s("""
        s_lshl_b32 s59, s{rb}, 1
        s_add_u32 s59, s59, s38
        s_lshl_b32 s{out}, s59, 15
        s_lshl_b32 s61, s60, 6
        s_add_u32 s{out}, s{out}, s61
        """.format(rb=sRB, out=sOutO))
        s("""
        s_mul_i32 s{hst}, s{rb3}, {k192}
        s_mul_i32 s61, s{cg3}, 12
        s_mul_i32 s62, s{w}, 3
        s_add_u32 s61, s61, s62
        s_lshl_b32 s61, s61, 8
        s_add_u32 s{hst}, s{hst}, s61
        s_mul_i32 s62, s{w}, {k11}
        s_mul_i32 s{a4}, s59, {k48}
        s_add_u32 s{a4}, s{a4}, s62
        s_xor_b32 s59, s59, 1
        s_mul_i32 s{a4b}, s59, {k48}
        s_add_u32 s{a4b}, s{a4b}, s62
        """.format(hst=sHst, rb3=sRB3, cg3=sCG3, w=sW, a4=sA4, a4b=sA4 + 1, k192=192 * KB, k11=11 * KB, k48=48 * KB))
        return

    def prologue2(self, s):
        s("""
        s_lshl_b32 s59, s{cg}, 2
        s_lshl_b32 s60, s{rb}, 8
        s_add_u32 s{f1}, s60, s59
        s_lshl_b32 s59, s{cg3}, 2
        s_lshl_b32 s61, s{rb3}, 8
        s_add_u32 s{f3}, s61, s59
        s_mov_b32 s{p2}, s60
        s_lshl_b32 s{p3}, s{rb3}, 9
        s_lshr_b32 s61, s{rb}, 1
        s_lshl_b32 s{p4}, s61, 8
        s_cmp_eq_u32 s{rb}, 0
        s_cselect_b32 s61, 0, 256
        s_sub_u32 s{p1}, s60, s61
        v_lshrrev_b32 v20, 3, v{lane}
        v_mul_lo_u32 v20, v20, s61
        v_and_b32 v21, 7, v{lane}
        v_lshl_add_u32 v{ph}, v21, 2, v20
        """.format(lane=vLane, ph=vPollH, cg=sCG, w=sW, rb=sRB, f1=sF1, cg3=sCG3, rb3=sRB3, f3=sF3, p2=sP2, p3=sP3, p4=sP4, p1=sP1a))
        s("""
        s_cmp_eq_u32 s{w}, 1
        s_cselect_b32 s{m2}, 0xff, 0
        s_mov_b32 s{m2h}, 0
        s_cselect_b32 s{m4}, 0x7fff, 0
        s_mov_b32 s{m4h}, 0
        s_cselect_b32 s{m16}, 0xffff, 0
        s_mov_b32 s{m16h}, 0
        s_mov_b32 s{odd}, 0xffff0000
        s_mov_b32 s{oddh}, 0xffff0000
        s_mov_b32 s{one}, 1.0
        s_mov_b32 s{oneh}, 1.0
        s_mov_b32 s{k0}, {c0}
        s_mov_b32 s{k1}, {c1}
        s_mov_b32 s{k2}, {c2}
        s_mov_b32 s{k3}, {c3}
        """.format(w=sW, m2=sM2, m2h=sM2 + 1, m4=sM4, m4h=sM4 + 1, m16=sM16, m16h=sM16 + 1, odd=sOdd, oddh=sOdd + 1, one=sOnes, oneh=sOnes + 1,
                   k0=sK, k1=sK + 1, k2=sK + 2, k3=sK + 3,
                   c0="0x%08x" % fbits(1.0 / 512), c1="0x%08x" % fbits(1e-5), c2="0x%08x" % fbits(0.25 * LOG2E), c3="0x%08x" % fbits(-LOG2E)))
        s("""
        v_and_b32 v20, 15, v{lane}
        v_lshrrev_b32 v21, 4, v{lane}
        v_add_u32 v{lo}, 65536, v{l16}
        v_lshlrev_b32 v22, 4, v20
        v_and_b32 v23, 1, v21
        v_lshrrev_b32 v24, 1, v21
        v_lshl_add_u32 v25, v24, 8, v22
        v_lshl_add_u32 v{ost}, v23, 14, v25
        v_mul_u32_u24 v26, {k48}, v23
        v_add_u32 v{h1}, v26, v25
        v_mul_u32_u24 v26, {k48}, v21
        v_add_u32 v26, v26, v22
        v_add_u32 v{h2}, 512, v26
        s_lshl_b32 s59, s{w}, 13
        s_add_u32 s59, s59, 65536
        v_add_u32 v{red}, s59, v{l16}
        v_lshrrev_b32 v26, 3, v{lane}
        v_and_b32 v27, 7, v{lane}
        v_lshlrev_b32 v27, 2, v27
        v_lshl_add_u32 v{pa}, v26, 8, v27
        v_lshlrev_b32 v{pb}, 2, v{lane}
        s_cmp_eq_u32 s{w}, 1
        s_cselect_b32 s59, 16, 0
        v_cmp_gt_u32 vcc, s59, v{lane}
        v_mov_b32 v27, 0x7ffffff0
        v_cndmask_b32 v{pa}, v27, v{pa}, vcc
        v_cndmask_b32 v{pb}, v27, v{pb}, vcc
        v_cndmask_b32 v{ph}, v27, v{ph}, vcc
        v_lshlrev_b32 v{out}, 7, v{lane}
        v_cmp_gt_u32 vcc, 16, v{lane}
        v_cndmask_b32 v{out}, v27, v{out}, vcc
        v_mov_b32 v{one}, 1
        """.format(lane=vLane, lo=vLO, l16=vL16, ost=vOst, h1=vH1, h2=vH2, red=vRed, pa=vPollA, pb=vPollB, ph=vPollH, out=vOut, one=vOne, w=sW, k48=48 * KB))
        s("""
        s_lshl_b32 s59, s{w}, 11
        s_add_u32 s59, s59, {stp}
        v_lshlrev_b32 v26, 10, v24
        v_lshl_add_u32 v26, v23, 6, v26
        v_lshl_add_u32 v26, v20, 2, v26
        v_add_u32 v{sr}, s59, v26
        """.format(w=sW, stp=STP, sr=vStatR))
        s("""
        s_lshl_b32 s59, s{w}, 7
        s_lshl_b32 s60, s{w}, 6
        v_lshlrev_b32 v26, 3, v20
        v_lshl_add_u32 v26, v23, 2, v26
        v_add_u32 v26, s59, v26
        v_lshlrev_b32 v27, 2, v20
        v_lshl_add_u32 v27, v23, 8, v27
        v_add_u32 v27, s60, v27
        v_add_u32 v27, 512, v27
        v_cmp_gt_u32 vcc, 2, v21
        v_cndmask_b32 v26, v27, v26, vcc
        v_add_u32 v{sw}, {stf}, v26
        v_lshlrev_b32 v26, 3, v20
        v_add_u32 v{si}, {stf}, v26
        v_lshlrev_b32 v26, 4, v21
        v_add_u32 v{sv}, {stfn}, v26
        s_mul_i32 s59, s{w}, 192
        s_add_u32 s59, s59, {csl}
        v_add_u32 v{cs}, s59, v26
        v_lshlrev_b32 v27, 2, v20
        v_add_u32 v27, s59, v27
        v_add_u32 v{csv}, 128, v27
        """.format(w=sW, sw=vStatW, stf=STF, si=vStI, sv=vStV, stfn=STF + 512, csl=CSL, cs=vCs, csv=vCsV))
        shq, shg = (3, 4) if self.local else (2, 3)
        nq, ng = 4 * (32 >> shq), 4 * (32 >> shg)
        self.pf_n = {"Q": -(-192 * KB // nq // 2048), "W": -(-64 * KB // nq // 2048), "D": -(-176 * KB // nq // 2048), "G": -(-192 * KB // ng // 2048)}
        assert not (self.direct and self.opts.get("pf") == "1")
        (s if self.opts.get("pf") == "1" else (lambda t: None))("""
        s_lshr_b32 s59, s2, 3
        s_lshr_b32 s60, s59, {shq}
        s_lshl_b32 s60, s60, 2
        s_add_u32 s60, s60, s{w}
        s_mul_i32 s61, s{cg}, {k192}
        s_mul_i32 s62, s60, {q6}
        s_add_u32 s{pq}, s61, s62
        s_add_u32 s{pq}, s{pq}, {PQ}
        s_lshl_b32 s61, s{cg}, 16
        s_mul_i32 s62, s60, {w2}
        s_add_u32 s{pw}, s61, s62
        s_add_u32 s{pw}, s{pw}, {PW}
        s_mul_i32 s61, s{cg}, {k176}
        s_mul_i32 s62, s60, {d55}
        s_add_u32 s{pd}, s61, s62
        s_add_u32 s{pd}, s{pd}, {PD}
        s_lshr_b32 s60, s59, {shg}
        s_lshl_b32 s60, s60, 2
        s_add_u32 s60, s60, s{w}
        s_mul_i32 s61, s{cg3}, {k192}
        s_mul_i32 s62, s60, {g12}
        s_add_u32 s{pg}, s61, s62
        s_add_u32 s{pg}, s{pg}, {PG}
        """.format(w=sW, cg=sCG, cg3=sCG3, pq=sPfQ, pw=sPfW, pd=sPfD, pg=sPfG, k192=192 * KB, k176=176 * KB, q6=192 * KB // nq, w2=64 * KB // nq,
                   d55=176 * KB // nq, g12=192 * KB // ng, PQ=PQ, PW=PW, PD=PD, PG=PG, shq=shq, shg=shg))
        s("""
        v_lshlrev_b32 v26, 2, v21
        v_sub_u32 v26, v20, v26
        v_mov_b32 v27, 0xf149f2ca
        v_mov_b32 v28, 0
        """)
        for r in range(4):
            s("v_subrev_u32 v29, %d, v26" % r)
            s("v_cmp_gt_u32 vcc, 8, v29")
            s("v_cndmask_b32 v%d, v27, v28, vcc" % (32 + r))
            s("v_cmp_gt_i32 vcc, -8, v29")
            s("v_cndmask_b32 v%d, v27, v28, vcc" % (36 + r))
            s("v_mov_b32 v%d, v27" % (40 + r))
        s("v_add_u32 v30, %d, v%d" % (BIAS, vL16))
        s.wait_ds()
        s("ds_write_b128 v30, v[32:35]")
        s("ds_write_b128 v30, v[36:39] offset:1024")
        s("ds_write_b128 v30, v[40:43] offset:2048")
        s("""
        s_cmp_eq_u32 s{rb}, 0
        s_cselect_b32 s59, 2, 1
        s_lshl_b32 s59, s59, 10
        v_add_u32 v{b1}, s59, v30
        """.format(rb=sRB, b1=vB1))

    def colsums(self, s, ks, r0=44, first=True):
        single = self.opts.get("single", "1") == "1"
        ks = list(ks)
        R = lambda k: r0 + 4 * (k - ks[0])
        for k in ks:
            r = R(k)
            s("v_add_f32 v%d, v%d, v%d" % (r, r, r + 1))
            s("v_add_f32 v%d, v%d, v%d" % (r + 2, r + 2, r + 3))
            s("v_add_f32 v%d, v%d, v%d" % (r, r, r + 2))
            if not single:
                s("v_add_f32_dpp v%d, v%d, v%d quad_perm:[1,0,3,2] row_mask:0xf bank_mask:0xf" % (r, r, r))
                s("v_add_f32_dpp v%d, v%d, v%d quad_perm:[2,3,0,1] row_mask:0xf bank_mask:0xf" % (r, r, r))
        if single:
            for sw in ("v_permlane16_swap_b32", "v_permlane32_swap_b32"):
                for k in ks:
                    s("v_mov_b32 v%d, v%d" % (R(k) + 1, R(k)))
                for k in ks:
                    s("%s v%d, v%d" % (sw, R(k), R(k) + 1))
                for k in ks:
                    s("v_add_f32 v%d, v%d, v%d" % (R(k), R(k), R(k) + 1))
        a = R(ks[-1]) + 2
        if single:
            s("v_and_b32 v%d, 0xf0, v%d" % (a, vL16))
            s("v_lshrrev_b32 v%d, 2, v%d" % (a, a))
        else:
            s("v_lshrrev_b32 v%d, 6, v%d" % (a, vL16))
            s("v_lshlrev_b32 v%d, 2, v%d" % (a, a))
        s("s_mul_i32 s59, s%d, 192" % sW)
        s("s_add_u32 s59, s59, %d" % CSL)
        s("v_add_u32 v%d, s59, v%d" % (a, a))
        for k in ks:
            s("ds_write_b32 v%d, v%d offset:%d" % (a, R(k), (k // 3) * 768 + (k % 3) * 64))
        if first:
            if not single:
                self.flag_vec(s)
            s("v_mov_b32 v%d, v%d" % (vFlag, self.vflag_tmp))

    vflag_tmp = 87

    def flag_vec(self, s):
        s("s_cmp_eq_u32 s%d, 0" % sW)
        s("s_cselect_b32 s59, 1, 0")
        s("v_cmp_gt_u32 vcc, s59, v%d" % vLane)
        s("v_mov_b32 v27, 0x7ffffff0")
        s("v_cndmask_b32 v%d, v27, 0, vcc" % self.vflag_tmp)
        s("v_mov_b32 v60, v%d" % self.vflag_tmp)

    def global_issue(self, s):
        s("""
        s_mul_i32 s58, s{cg}, 12
        v_add_u32 v89, s58, v{lane}
        v_subrev_u32 v90, 12, v{lane}
        v_mul_u32_u24 v91, 21846, v90
        v_lshrrev_b32 v91, 16, v91
        v_mul_u32_u24 v92, 3, v91
        v_sub_u32 v92, v90, v92
        s_lshl_b32 s58, s{rb}, 1
        v_add_u32 v92, s58, v92
        v_subrev_u32 v92, 1, v92
        v_max_i32 v92, 0, v92
        v_lshl_add_u32 v92, v91, 6, v92
        v_add_u32 v92, 96, v92
        v_cmp_gt_u32 vcc, 12, v{lane}
        v_cndmask_b32 v89, v92, v89, vcc
        v_lshrrev_b32 v90, 3, v89
        v_and_b32 v89, 7, v89
        v_lshlrev_b32 v89, 2, v89
        v_lshl_add_u32 v89, v90, 7, v89
        s_cmp_eq_u32 s{w}, 1
        s_cselect_b32 s58, 18, 0
        v_cmp_gt_u32 vcc, s58, v{lane}
        v_mov_b32 v90, 0x7ffffff0
        v_cndmask_b32 v89, v90, v89, vcc
        s_cselect_b32 s{m}, 0x3ffff, 0
        s_mov_b32 s{mh}, 0
        s_mov_b32 s{p}, {pfl}
        buffer_load_dword v92, v89, s[8:11], s{p} offen sc1
        """.format(lane=vLane, w=sW, p=sPoll, pfl=PFL, cg=sCG, rb=sRB, m=4, mh=5))

    def global_check(self, s):
        n = self.npoll
        self.npoll += 1
        s("v_cmp_ne_u32 vcc, s%d, v92" % sTag)
        s("s_and_b64 vcc, vcc, s[4:5]")
        s("s_cbranch_vccnz SLOW_%d" % n)
        s("BACK_%d:" % n)
        s("s_barrier")
        self.slow += ["SLOW_%d:" % n, "  s_mov_b32 s%d, 0" % sCnt, "SPIN_%d:" % n,
                      "  buffer_load_dword v92, v89, s[8:11], s%d offen sc1" % sPoll, "  s_waitcnt vmcnt(0)",
                      "  v_cmp_ne_u32 vcc, s%d, v92" % sTag, "  s_nop 1", "  s_and_b64 vcc, vcc, s[4:5]",
                      "  s_cbranch_vccz BACK_%d" % n, "  s_add_u32 s%d, s%d, 1" % (sCnt, sCnt), "  s_cmp_lt_u32 s%d, %d" % (sCnt, POLL_LIMIT),
                      "  s_cbranch_scc1 SPIN_%d" % n, "  s_branch BACK_%d" % n]

    hold = False

    def tick(self, s, bulk=True):
        if self.urgent:
            s.extend(self.urgent.popleft())
            return True
        if bulk and self.bulk and not self.hold:
            s.extend(self.bulk.popleft())
            return True
        return False

    def flush_urgent(self, s):
        while self.urgent:
            s.extend(self.urgent.popleft())

    def burst(self, s, n):
        for _ in range(n):
            self.tick(s)

    @staticmethod
    def cost(ins):
        c = ins.cls
        if c == "valu":
            return 8 if (ins.meta.get("trans") or ins.meta.get("perm")) else 4
        if c in ("vm_ld", "vm_dma", "vm_st"):
            return 8
        if c in ("ds_rd", "ds_wr"):
            return 4
        if c == "salu":
            return 2.5
        if c in ("pseudo", "label"):
            return 0 if ins.text in ("@comment", "@mark") or c == "label" else 2
        return 3

    def progressive(self, groups, per_ks):
        for f, g in enumerate(groups):
            g.min_step = max(per_ks * (f // 3 + 1) + 2, int(self.opts.get("pg0", 0)) + int(float(self.opts.get("pgr", 0)) * f))
        return groups

    def clear_min(self):
        for g in self.bulk:
            g.min_step = 0

    def set_hold(self, v):
        def f():
            self.hold = v
        return f

    def delay(self, s, clks):
        n = max(0, int(clks) // 64)
        if n:
            s("s_sleep %d" % n)

    def evs(self, key, default):
        v = self.opts.get(key)
        return tuple(int(x) for x in v.split(",")) if v else default

    def run_mf(self, s, steps, at=None, fill=None, rate=4, ctok=None, fill_from=2, urate=None):
        at = at or {}
        urate = urate or rate
        fill = deque(fill or [])
        ev, cur = deque(), deque()
        last_vm = -rate
        last_tr = -12
        isvm = lambda x: x.cls in ("vm_ld", "vm_dma", "vm_st")
        def mk(x):
            if isinstance(x, Ins):
                return [x]
            if isinstance(x, tuple):
                t = Stream()
                self.mark(t, "chA%d" % x[1])
                t.wait_vm(ctok[x[1]])
                t("s_barrier")
                self.mark(t, "chB%d" % x[1])
                return list(t)
            t = Stream()
            t(x)
            return list(t)
        def push_ev(e):
            if isinstance(e, Stream):
                ev.extend(e)
            else:
                c = Ins("@comment")
                c.meta["c"] = "release"
                c.meta["call"] = e
                ev.append(c)
        def emit_from(q, budget):
            while q:
                c = self.cost(q[0])
                if c > budget and not (budget >= 8 - 1e-9):
                    break
                x = q.popleft()
                s.append(x)
                if x.meta.get("call"):
                    x.meta["call"]()
                budget -= c
                while x.meta.get("glue") and q:
                    x = q.popleft()
                    s.append(x)
                    if x.meta.get("call"):
                        x.meta["call"]()
                if budget <= 0:
                    break
            return budget
        n = len(steps)
        for i, st in enumerate(steps):
            for e in at.get(i, []):
                push_ev(e)
            if i % int(self.opts.get("fstep", 16)) == 0:
                self.fs(s, "mf%d" % i)
            budget = 8.0
            main = [y for x in st for y in mk(x)]
            if any(x.text == "@waitds" and x.meta.get("tok") is not None for x in main):
                while fill:
                    x = fill.popleft()
                    s.append(x)
            for x in main:
                s.append(x)
            for x in main[1:]:
                budget -= self.cost(x)
                if isvm(x):
                    last_vm = i
            if any(x.cls == "ds_rd" for x in main[1:]):
                budget -= 2
            if budget <= 0:
                continue
            if ev:
                had_vm = any(isvm(x) for x in list(ev)[:1])
                budget = emit_from(ev, budget)
                if had_vm:
                    last_vm = i
                if budget <= 0:
                    continue
            if not cur and self.trickle and not self.urgent and i - last_tr >= int(self.opts.get("trate", 24)) and i - last_vm >= 1:
                cur.extend(self.trickle.popleft())
                last_tr = i
            if not cur:
                if self.urgent and i - last_vm >= urate - 1:
                    cur.extend(self.urgent.popleft())
                elif self.bulk and not self.hold and not self.urgent and i - last_vm >= rate - 1 and getattr(self.bulk[0], "min_step", 0) <= i:
                    cur.extend(self.bulk.popleft())
            while cur and budget > 0:
                x = cur[0]
                c = self.cost(x)
                if isvm(x):
                    if budget < 8 or i - last_vm < min(rate, urate):
                        break
                    last_vm = i
                elif c > budget:
                    break
                s.append(cur.popleft())
                budget -= c
            if fill and fill[0].meta.get("until") is not None:
                fill_from = max(fill_from, fill.popleft().meta["until"])
            if fill and fill[0].meta.get("pause"):
                fill_from = i + fill.popleft().meta["pause"]
            if i >= fill_from and fill and budget > 0:
                part = deque()
                while fill and not fill[0].meta.get("pause") and fill[0].meta.get("until") is None and len(part) < 4:
                    part.append(fill.popleft())
                budget = emit_from(part, budget)
                while part:
                    fill.appendleft(part.pop())
        for e in at.get(n, []):
            push_ev(e)
        for q in (cur, ev, fill):
            while q:
                x = q.popleft()
                s.append(x)
                if x.meta.get("call"):
                    x.meta["call"]()

    def weave(self, s, epi, every=13):
        k = 0
        for ins in epi:
            s.append(ins)
            if ins.cls in ("valu", "mfma"):
                k += 1
                if k >= every:
                    if self.tick(s):
                        k = 0

    def split_tile(self, A):
        groups = A[0]
        nsub = (len(groups) - 2) // 4
        nh = 2 * nsub + 2
        return groups[:nh], groups[nh:]

    def cs_loads_to(self, s, cg, base, r0, vaddr):
        s("s_lshl_b32 s58, s%d, 2" % cg)
        s("s_add_u32 s58, s58, s%d" % sW)
        s("s_mul_i32 s59, s58, 3072")
        s("s_add_u32 s59, s59, %d" % base)
        for k in range(3):
            for j in range(4):
                s("buffer_load_dword v%d, v%d, s[8:11], s59 offen offset:%d" % (r0 + 4 * k + j, vaddr, k * 1024 + j * 64))

    def global_check2(self):
        n = self.npoll
        self.npoll += 1
        t = Stream()
        r = RING + 12
        t("v_cmp_ne_u32 vcc, s%d, v%d" % (sTag, r))
        t("s_and_b64 vcc, vcc, s[4:5]")
        t("s_cbranch_vccnz SLOW_%d" % n).meta["glue"] = True
        t("BACK_%d:" % n).meta["glue"] = True
        t("s_barrier")
        self.slow += ["SLOW_%d:" % n, "  s_mov_b32 s%d, 0" % sCnt, "SPIN_%d:" % n,
                      "  buffer_load_dword v%d, v%d, s[8:11], s%d offen sc1" % (r, RING + 16, sPoll2), "  s_waitcnt vmcnt(0)",
                      "  v_cmp_ne_u32 vcc, s%d, v%d" % (sTag, r), "  s_nop 1", "  s_and_b64 vcc, vcc, s[4:5]",
                      "  s_cbranch_vccz BACK_%d" % n, "  s_add_u32 s%d, s%d, 1" % (sCnt, sCnt), "  s_cmp_lt_u32 s%d, %d" % (sCnt, POLL_LIMIT),
                      "  s_cbranch_scc1 SPIN_%d" % n, "  s_branch BACK_%d" % n]
        return t

    def seg13(self, s, phase, p, h, A, at, urate=None, raw_stats=False):
        groups, stok, ctok = A
        st = Stream()
        if raw_stats:
            return self.seg13_raw(s, phase, p, h, A, at)
        self.stats_reduce(st, h, stok)
        if getattr(self, "extra_fill", None) is not None:
            st.extend(self.extra_fill)
            self.extra_fill = None
        pre, steps = self.mf13(phase, h)
        if urate:
            s.extend(st)
            st = Stream()
        for x in pre:
            if isinstance(x, tuple):
                s.wait_vm(ctok[x[1]])
                s("s_barrier")
            else:
                s(x)
        self.run_mf(s, steps, at=at, fill=list(st), ctok=ctok, fill_from=int(self.opts.get("fillfrom", 6)), urate=(urate or int(self.opts.get("ur", 4))), rate=(urate or int(self.opts.get("br", 4))))
        s("s_barrier")

    def seg13_raw(self, s, phase, p, h, A, at):
        import direct
        groups, stok, ctok = A
        self.stat_tok = Tok("unused")
        saved = self.epi_pref
        pref = saved(phase, h)
        self.epi_pref = lambda *a: {}
        pre, steps = self.mf13(phase, h)
        self.epi_pref = saved
        chunk_step = {0: 0}
        for i, stp in enumerate(steps):
            for x in stp:
                if isinstance(x, tuple):
                    chunk_step[x[1]] = i
        SA, T0, ADR, ONE = RING, RING + 24, RING + 2, RING + 3
        st = Stream()
        st("s_lshl_b32 s58, s%d, 14" % sW)
        st("s_add_u32 s58, s58, %d" % REG[h])
        st("v_add_u32 v%d, s58, v%d" % (ADR, vL16))
        st("v_mov_b32 v%d, 0x3f803f80" % ONE)
        st("v_mov_b32 v%d, 0" % SA)
        st("v_mov_b32 v%d, 0" % (SA + 1))
        for c in range(4):
            u = Ins("@comment")
            u.meta["c"] = "until chunk %d" % c
            u.meta["until"] = chunk_step[c] + 2
            st.append(u)
            for j in range(4):
                st("ds_read_b128 %s, v%d offset:%d" % (V(T0 + 4 * j, 4), ADR, (4 * c + j) * 1024))
            self.pause(st, 6)
            for j in range(4):
                st.extend(direct.stats_dots(SA, T0 + 4 * j, ONE))
        for x in pre:
            if isinstance(x, tuple):
                s.wait_vm(ctok[x[1]])
                s("s_barrier")
            else:
                s(x)
        self.run_mf(s, steps, at=at, fill=list(st), ctok=ctok, fill_from=1)
        tok = direct.stats_final(self, s, h, SA)
        s.wait_ds(tok)
        s("s_barrier")
        for n in sorted(pref):
            if n != 37:
                for x in pref[n]:
                    s(x)

    def check_order(self, s):
        done = set()
        for ins in s:
            if ins.meta.get("checked"):
                done.add(ins.meta["checked"])
            k = ins.meta.get("dep")
            if k is not None:
                assert k in done, "load issued before its dependency was checked: %s %s" % (k, ins.text)

    def check_weights(self, s):
        if self.opts.get("nob"):
            return
        cur = {}
        for ins in s:
            if ins.meta.get("bname"):
                cur[ins.ops[0]] = ins.meta["bname"]
            if ins.meta.get("bname2"):
                cur[ins.meta["bname2"][1]] = ins.meta["bname2"][0]
            if ins.cls == "mfma" and ins.meta.get("need"):
                reg, name = ins.meta["need"]
                assert cur.get(reg) == name, "weights %s expected in %s, found %s" % (name, reg, cur.get(reg))

    def gen(self):
        s = Stream()
        self.urgent, self.bulk, self.trickle = deque(), deque(), deque()
        o = self.opts
        if self.direct:
            import direct
            if self.prof:
                s("s_memrealtime s[100:101]")
                s("s_memtime s[98:99]")
                s("s_waitcnt lgkmcnt(0)")
                s("s_mov_b32 s94, s100")
                s("s_mov_b32 s68, s98")
            direct.entry(self, s, self.codepf(sW))
            self.pro_rest(s)
        else:
            self.prologue(s)
        if self.prof and self.opts.get("single", "1") != "1":
            s("s_memrealtime s[100:101]")
            s("s_waitcnt lgkmcnt(0)")
            s("s_mov_b32 s94, s100")
        self.ts(s, "start")
        if self.prof == 5:
            for k in range(2, 24):
                s("s_mov_b32 s%d, 0" % (sTS + k))
        s("""
        s_lshl_b32 s{kw1}, s{w}, 10
        s_add_u32 s{a1hw}, s{a1h}, s{kw1}
        s_add_u32 s{a1mw}, s{a1m}, s{kw1}
        s_add_u32 s{a3w}, s{a3}, s{kw1}
        """.format(kw1=sKw1, w=sW, a1hw=sA1hw, a1h=sA1h, a1mw=sA1mw, a1m=sA1m, a3w=sA3w, a3=sA3))
        A = {}
        single = self.opts.get("single", "1") == "1"
        if single:
            ncpf = 0 if self.opts.get("nocpf") == "1" else int(self.opts.get("cpf", 2))
            def pack_flag(t, base):
                t("s_lshr_b32 s58, s2, 3")
                t("s_lshl_b32 s58, s58, 7")
                t("s_and_b32 s59, s2, 7")
                t("s_lshl_b32 s59, s59, 2")
                t("s_add_u32 s58, s58, s59")
                t("s_add_u32 s%d, s58, %d" % (sT3, base))
            self.prologue2(s)
            s("s_add_u32 s%d, s95, 1" % sTag)
            s("v_mov_b32 v%d, s%d" % (vOne, sTag))
            self.flag_vec(s)
            if self.direct:
                s.extend(self.second_batch)
                self.pack_flag = pack_flag
                s("v_mov_b32 v%d, v%d" % (vFlag, self.vflag_tmp))
                self.late_tok0 = direct.late(self, s, (3, 4, 58, 59))
                self.f2_first = Stream()
                self.f2_first.wait_vm(self.late_tok0)
                self.f2_first("s_barrier")
                pack_flag(self.f2_first, PFL2)
                self.f2_first("buffer_store_dword v%d, v%d, s[8:11], s%d offen sc1" % (vOne, vFlag, sT3))
                if self.local:
                    s("s_getreg_b32 s%d, hwreg(HW_REG_XCC_ID, 0, 4)" % sXcc)
                    s("s_lshl_b32 s58, s%d, 4" % sTag)
                    s("s_or_b32 s58, s58, s%d" % sXcc)
                    s("v_mov_b32 v60, s58")
                    s("s_and_b32 s58, s2, 7")
                    s("s_lshl_b32 s58, s58, 7")
                    s("s_lshr_b32 s59, s2, 3")
                    s("s_lshl_b32 s59, s59, 2")
                    s("s_add_u32 s58, s58, s59")
                    s("s_add_u32 s58, s58, %d" % PXC)
                    s("buffer_store_dword v60, v%d, s[8:11], s58 offen sc1" % vFlag)
            else:
                self.global_issue(s)
                self.global_check(s)
            self.ts(s, "gsync")
        else:
            s("s_mov_b32 s%d, 1" % sTag)
        if single and not self.direct:
            s("v_and_b32 v68, 15, v%d" % vLane)
            s("v_lshlrev_b32 v68, 2, v68")
            s("v_lshrrev_b32 v69, 4, v%d" % vLane)
            s("v_lshl_add_u32 v68, v69, 8, v68")
        def cs_loads(cg, base, r0):
            s("s_lshl_b32 s58, s%d, 2" % cg)
            s("s_add_u32 s58, s58, s%d" % sW)
            s("s_mul_i32 s59, s58, 3072")
            s("s_add_u32 s59, s59, %d" % base)
            for k in range(3):
                if single:
                    for j in range(4):
                        s("buffer_load_dword v%d, v68, s[8:11], s59 offen offset:%d" % (r0 + 4 * k + j, k * 1024 + j * 64))
                else:
                    s("buffer_load_dwordx4 %s, v%d, s[8:11], s59 offen offset:%d" % (V(r0 + 4 * k, 4), vL16, k * 1024))
        if self.direct:
            A[(1, 0, 0)] = self.A_first
            A[(1, 0, 1)] = direct.groupsA_raw(self, 1)
        else:
            A[(1, 0, 0)] = self.groupsA_lds(1, 0, 0)
            A[(1, 0, 1)] = self.groupsA_lds(1, 0, 1)
        if self.direct:
            pass
        elif single:
            head, tail = self.split_tile(A[(1, 0, 0)])
            for g in head:
                s.extend(g)
            cs_loads(sCG, CSQ, RING + 32)
            nq = int(self.opts.get("nq0", 24))
            for g in self.groupsB(Bx, sBQ, 0, nq):
                s.extend(g)
            self.pack_flag = pack_flag
            if self.opts.get("latefirst", "1") == "1":
                self.late_tok0 = pack.emit_late(s, sW, vL16, (3, 4, 58, 59), DV)
            self.first_tail = tail
            self.q_rest = self.groupsB(Bx, sBQ, nq, 48)
            self.colsums(s, range(3), r0=RING + 32)
        else:
            for g in A[(1, 0, 0)][0]:
                s.extend(g)
            cs_loads(sCG, CSQ, 44)
            cs_loads(sCG3, CSG, 56)
            for g in self.groupsB(Bx, sBQ, 0, 24):
                s.extend(g)
            self.prologue2(s)
            for g in self.groupsB(Bx, sBQ, 24, 30):
                s.extend(g)
            self.colsums(s, range(6))
            self.bulk.extend(self.groupsB(Bx, sBQ, 30, 48))
            self.burst(s, 18)
            self.urgent.extend(A[(1, 0, 1)][0])
        s("s_xor_b32 s%d, s%d, 16384" % (sA2b, sA2))
        self.cs_loads = cs_loads
        self.ts(s, "prolog")
        tok = {}
        U = lambda gs: (lambda: self.urgent.extend(gs))
        def until_issued(gs):
            while any(g is x for g in gs for x in self.urgent):
                s.extend(self.urgent.popleft())
        tails = {(1, 0, 0): [], (1, 0, 1): []}
        for p in range(2):
            last = (p == 1)
            at = {}
            self.urgent.extend(tails[(1, p, 0)])
            if p == 0 and self.direct:
                head1 = list(A[(1, 0, 1)][0])
            elif p == 0 and single:
                q = list(self.q_rest)
                self.urgent.extend(q[:6] + list(self.first_tail[:3]) + q[6:15] + list(self.first_tail[3:]) + q[15:])
                self.urgent.extend(A[(1, 0, 1)][0])
                head1 = list(A[(1, 0, 1)][0])
                if self.opts.get("latefirst", "1") == "1":
                    f2e = Stream()
                    f2e.wait_vm(self.late_tok0)
                    f2e("s_barrier")
                    self.pack_flag(f2e, PFL2)
                    f2e("buffer_store_dword v%d, v%d, s[8:11], s%d offen sc1" % (vOne, vFlag, sT3))
                    at[int(self.opts.get("f2e", 64))] = [f2e]
            elif p == 0:
                self.bulk.extend(self.groupsB(By, sBW, 0, 16))
                self.bulk.extend(self.groupsB(By, sBD, 16, 44))
                head1 = []
            else:
                self.bulk.extend(self.groupsB(By, sBW, 0, 16))
                a, b, c = self.evs("e1E", (48, 96, 127))
                at[a] = [self.ev_sig(4, p - 1, 1, tok[(4, p - 1, 1)])]
                at[b] = [self.ev_poll_issue(1, p, 1)]
                A[(1, p, 1)] = self.groupsA_lds(1, p, 1)
                head1, tails[(1, p, 1)] = self.split_tile(A[(1, p, 1)])
                at[c] = [self.ev_poll_check(1, p, 1), U(head1)]
            if p == 1:
                self.trickle.extend(self.pf(sPfG, 2048 * i) for i in range(self.pf_n["G"]))
            if p == 0 and self.direct:
                direct.first_segment(self, s)
                if self.opts.get("dbgq") == "1":
                    s("s_lshl_b32 s58, s2, 2")
                    s("s_add_u32 s58, s58, s%d" % sW)
                    s("s_mul_i32 s58, s58, %d" % (64 * KB))
                    s("s_add_u32 s58, s58, 0x4000000")
                    for f in range(48):
                        s("buffer_store_dwordx4 %s, v%d, s[8:11], s58 offen" % (Bx(f), vL16))
                        s("s_add_u32 s58, s58, 1024")
                    s("s_lshl_b32 s59, s%d, 14" % sW)
                    s("v_add_u32 v172, s59, v%d" % vL16)
                    for k in range(16):
                        s("ds_read_b128 v[176:179], v172 offset:%d" % (k * 1024))
                        s("buffer_store_dwordx4 v[176:179], v%d, s[8:11], s58 offen" % vL16)
                        s("s_add_u32 s58, s58, 1024")
                        s("s_nop 4")
                for g in head1[:6]:
                    s.extend(g)
                self.urgent.extend(head1[6:])
            else:
                self.seg13(s, 1, p, 0, A[(1, p, 0)], at, urate=(2 if (p == 0 and single) else None))
            self.ts(s, "mf1E.%d" % p)
            if p == 0 and single:
                if self.direct:
                    late_tok = self.late_tok0
                    self.stat_tok = Tok("unused")
                    pref = self.epi_pref(1, 0)
                    for n in sorted(pref):
                        if n != 37:
                            for x in pref[n]:
                                s(x)
                elif self.opts.get("latefirst", "1") == "1":
                    late_tok = self.late_tok0
                else:
                    late_tok = pack.emit_late(s, sW, vL16, (3, 4, 58, 59), DV)
                if self.local:
                    if not self.direct:
                        s("s_getreg_b32 s%d, hwreg(HW_REG_XCC_ID, 0, 4)" % sXcc)
                    pi, pc = self.purity()
                    s.extend(pi)
                    self.pur_check = pc
                self.ts(s, "packed")
            e = Stream(); tok[(1, p, 0)] = self.epi1(e, p, 0)
            self.weave(s, e, every=10)
            until_issued(head1)
            if p == 0 and self.local:
                s.extend(self.pur_check)
            self.ts(s, "s1E.%d" % p)
            self.urgent.extend(tails[(1, p, 1)])
            gA = self.groupsA24(2, p, 0)
            a, b, c = self.evs("e1O", (44, 96, 127))
            at = {a: [self.ev_sig(1, p, 0, tok[(1, p, 0)])], b: [self.ev_poll_issue(2, p, 0)],
                  c: [self.ev_poll_check(2, p, 0), U(gA)]}
            if p == 0 and single:
                f2 = Stream()
                f2.wait_vm(late_tok)
                f2("s_barrier")
                self.pack_flag(f2, PFL2)
                f2("buffer_store_dword v%d, v%d, s[8:11], s%d offen sc1" % (vOne, vFlag, sT3))
                g2 = Stream()
                a0, a1, a2 = RING + 16, RING + 17, RING + 18
                g2("v_lshrrev_b32 v%d, 4, v%d" % (a1, vL16))
                g2("s_lshl_b32 s58, s%d, 2" % sCG)
                g2("s_add_u32 s58, s58, %d" % (96 if self.direct else 136))
                g2("v_add_u32 v%d, s58, v%d" % (a0, a1))
                g2("s_lshl_b32 s58, s%d, 4" % sCG3)
                g2("s_sub_u32 s58, s58, 4")
                g2("v_add_u32 v%d, s58, v%d" % (a2, a1))
                g2("v_cmp_lt_u32 vcc, 3, v%d" % a1)
                g2("v_cndmask_b32 v%d, v%d, v%d, vcc" % (a0, a0, a2))
                g2("s_mul_i32 s58, s%d, 11" % sCG)
                g2("s_add_u32 s58, s58, %d" % (108 if self.direct else 148))
                g2("v_add_u32 v%d, s58, v%d" % (a2, a1))
                g2("v_cmp_lt_u32 vcc, 19, v%d" % a1)
                g2("v_cndmask_b32 v%d, v%d, v%d, vcc" % (a0, a0, a2))
                if self.direct:
                    g2("s_mul_i32 s58, s%d, 12" % sCG)
                    g2("s_sub_u32 s58, s58, 31")
                    g2("v_add_u32 v%d, s58, v%d" % (a2, a1))
                    g2("v_cmp_lt_u32 vcc, 30, v%d" % a1)
                    g2("v_cndmask_b32 v%d, v%d, v%d, vcc" % (a0, a0, a2))
                g2("v_lshrrev_b32 v%d, 3, v%d" % (a2, a0))
                g2("v_and_b32 v%d, 7, v%d" % (a0, a0))
                g2("v_lshlrev_b32 v%d, 2, v%d" % (a0, a0))
                g2("v_lshl_add_u32 v%d, v%d, 7, v%d" % (a0, a2, a0))
                g2("s_cmp_eq_u32 s%d, 1" % sW)
                g2("s_cselect_b32 s58, %d, 0" % (43 if self.direct else 31))
                g2("s_cselect_b32 s4, %s, 0" % ("-1" if self.direct else "0x7fffffff"))
                g2("s_cselect_b32 s5, %s, 0" % ("0x7ff" if self.direct else "0"))
                g2("v_cmp_gt_u32 vcc, s58, v%d" % a1)
                g2("v_mov_b32 v%d, 0x7ffffff0" % a2)
                g2("v_cndmask_b32 v%d, v%d, v%d, vcc" % (a0, a2, a0))
                g2("s_mov_b32 s%d, %d" % (sPoll2, PFL2))
                g2("buffer_load_dword v%d, v%d, s[8:11], s%d offen sc1" % (RING + 12, a0, sPoll2))
                c2 = self.global_check2()
                csl = Stream()
                csl("v_and_b32 v%d, 0xf0, v%d" % (DV + 12, vL16))
                csl("v_lshrrev_b32 v%d, 2, v%d" % (DV + 12, DV + 12))
                csl("v_lshrrev_b32 v%d, 8, v%d" % (DV + 13, vL16))
                csl("v_lshl_add_u32 v%d, v%d, 8, v%d" % (DV + 12, DV + 13, DV + 12))
                self.cs_loads_to(csl, sCG3, CSG, DV, DV + 12)
                lf = self.opts.get("latefirst", "1") == "1"
                fa, fb, fc = self.evs("f2", (40, 20, 56) if lf else (40, 88, 125))
                if not lf:
                    at.setdefault(fa, []).append(f2)
                at.setdefault(fb, []).append(g2)
                g_early0 = lf and self.opts.get("prog0", "1") == "1"
                def after_flag2():
                    self.bulk.extend(self.groupsB(By, sBW, 0, 16))
                    if g_early0:
                        self.bulk.extend(self.progressive(self.groupsB(Bx, sBG, 0, 48), 8))
                at.setdefault(fc, []).extend([c2, after_flag2, csl])
                self.cs_reduce = Stream()
                self.colsums(self.cs_reduce, range(3, 6), r0=DV, first=False)
            early_g = (p == 1 or not single) and self.opts.get("prog", "1") == "1"
            early_g0 = p == 0 and single and self.opts.get("latefirst", "1") == "1" and self.opts.get("prog0", "1") == "1"
            if early_g:
                while self.bulk:
                    s.extend(self.bulk.popleft())
                self.bulk.extend(self.progressive(self.groupsB(Bx, sBG, 0, 48), 8))
            self.seg13(s, 1, p, 1, A[(1, p, 1)], at, raw_stats=(p == 0 and self.direct))
            self.ts(s, "mf1O.%d" % p)
            if early_g:
                self.clear_min()
            elif early_g0:
                self.clear_min()
                while self.bulk and any(x.meta.get("bname") == "W" for x in self.bulk[0]):
                    s.extend(self.bulk.popleft())
            else:
                while self.bulk:
                    s.extend(self.bulk.popleft())
                self.bulk.extend(self.groupsB(Bx, sBG, 0, 48))
            e = Stream(); tok[(1, p, 1)] = self.epi1(e, p, 1)
            self.weave(s, e, every=10)
            self.flush_urgent(s)
            self.ts(s, "s1O.%d" % p)
            if p == 0 and single:
                s.extend(self.cs_reduce)
            self.seg24_mf(s, 2, p, 0)
            self.fs(s, "MF")
            bsel = lambda key, d0, d1: int(self.opts.get(key + str(p), d0 if p == 0 and single else d1))
            self.hold = True
            mid = Stream()
            mid.extend(self.ev_sig(1, p, 1, tok[(1, p, 1)]))
            e = Stream(); tok[(2, p, 0)] = self.epi24(e, 2, p, 0, mid=mid)
            self.weave(s, e, every=10)
            s.extend(self.ev_poll_issue(2, p, 1))
            self.fs(s, "EPI")
            self.hold = False
            if self.opts.get("ord2", "0") == "1":
                s.extend(self.ev_poll_check(2, p, 1))
                self.ts(s, "s2E.%d" % p)
                self.urgent.extend(self.groupsA24(2, p, 1))
                self.flush_urgent(s)
                self.fs(s, "Aiss")
                self.burst(s, bsel("b2F", 6, 0))
                s.extend(self.ev_sig(2, p, 0, tok[(2, p, 0)]))
                self.fs(s, "SIG2")
                self.p3_in_mf = int(self.opts.get("i3E", 2))
                if self.p3_in_mf < 0:
                    s.extend(self.ev_poll_issue(3, p, 0, alt=True))
                self.burst(s, bsel("b2O", 8, 0))
            else:
                self.burst(s, bsel("b2F", 6, 0))
                self.fs(s, "PI")
                s.extend(self.ev_sig(2, p, 0, tok[(2, p, 0)]))
                s.extend(self.ev_poll_issue(3, p, 0, alt=True))
                self.fs(s, "SIG2")
                s.extend(self.ev_poll_check(2, p, 1))
                self.ts(s, "s2E.%d" % p)
                self.urgent.extend(self.groupsA24(2, p, 1))
                self.flush_urgent(s)
                self.burst(s, bsel("b2O", 8, 0))
            A[(3, p, 0)] = self.groupsA_lds(3, p, 0)
            head3, tail3 = self.split_tile(A[(3, p, 0)])
            c3 = int(self.opts.get("c3E", 26 if self.opts.get("ord2", "0") == "1" else 0))
            if c3 < 0:
                s.extend(self.ev_poll_check(3, p, 0, alt=True))
                self.urgent.extend(head3)
                self.flush_urgent(s)
                self.seg24_mf(s, 2, p, 1)
            else:
                at3 = {c3: [self.ev_poll_check(3, p, 0, alt=True), U(head3)]}
                if self.opts.get("ord2", "0") == "1" and self.p3_in_mf >= 0:
                    at3.setdefault(self.p3_in_mf, []).insert(0, self.ev_poll_issue(3, p, 0, alt=True))
                self.seg24_mf(s, 2, p, 1, at=at3)
            self.fs(s, "MF")
            self.bulk.extend(self.groupsB(By, sBD, 0, 44 if (p == 0 and single) else 16))
            e = Stream(); tok[(2, p, 1)] = self.epi24(e, 2, p, 1)
            self.weave(s, e, every=5)
            self.fs(s, "EPI")
            until_issued(head3)
            self.ts(s, "s2O.%d" % p)
            self.urgent.extend(tail3)
            A[(3, p, 1)] = self.groupsA_lds(3, p, 1)
            head3, tail3 = self.split_tile(A[(3, p, 1)])
            a, b, c = self.evs("e3E", (48, 108, 150))
            at = {a: [self.ev_sig(2, p, 1, tok[(2, p, 1)])], b: [self.ev_poll_issue(3, p, 1)],
                  c: [self.ev_poll_check(3, p, 1), U(head3)]}
            if not last:
                self.trickle.extend(self.pf(sPfQ, 2048 * i) for i in range(self.pf_n["Q"]))
            self.seg13(s, 3, p, 0, A[(3, p, 0)], at)
            self.ts(s, "mf3E.%d" % p)
            e = Stream(); tok[(3, p, 0)] = self.epi3(e, p, 0)
            self.weave(s, e, every=12)
            until_issued(head3)
            self.ts(s, "s3E.%d" % p)
            self.urgent.extend(tail3)
            gA = self.groupsA24(4, p, 0)
            a, b, c = self.evs("e3O", (64, 120, 160))
            at = {a: [self.ev_sig(3, p, 0, tok[(3, p, 0)])], b: [self.ev_poll_issue(4, p, 0)],
                  c: [self.ev_poll_check(4, p, 0), U(gA)]}
            if not last:
                self.trickle.extend(self.pf(sPfW, 2048 * i) for i in range(self.pf_n["W"]))
            early_q = (not last) and self.opts.get("prog", "1") == "1"
            if early_q:
                self.bulk.extend(self.progressive(self.groupsB(Bx, sBQ, 0, 48), 12))
            self.seg13(s, 3, p, 1, A[(3, p, 1)], at)
            self.ts(s, "mf3O.%d" % p)
            self.flush_urgent(s)
            if early_q:
                self.clear_min()
                while self.bulk and not any(x.meta.get("bname") == "Q" for x in self.bulk[0]):
                    s.extend(self.bulk.popleft())
            else:
                while self.bulk:
                    s.extend(self.bulk.popleft())
                if not last:
                    self.bulk.extend(self.groupsB(Bx, sBQ, 0, 48))
            e = Stream(); tok[(3, p, 1)] = self.epi3(e, p, 1)
            self.weave(s, e, every=12)
            self.ts(s, "s3O.%d" % p)
            a = int(self.opts.get("e4E", 60))
            at = {a: [self.ev_sig(3, p, 1, tok[(3, p, 1)])]}
            at.setdefault(int(self.opts.get("h4", 62)), []).append(self.set_hold(True))
            self.seg24_mf(s, 4, p, 0, at=at)
            self.fs(s, "MF")
            if last:
                s.extend(self.ev_poll_issue(4, p, 1))
            e = Stream(); tok[(4, p, 0)] = self.epi24(e, 4, p, 0)
            self.weave(s, e, every=10)
            ord4 = self.opts.get("ord4", "0") == "1"
            if not last:
                s.extend(self.ev_poll_issue(4, p, 1))
                if not ord4:
                    s.extend(self.ev_sig(4, p, 0, tok[(4, p, 0)]))
                    s.extend(self.ev_poll_issue(1, p + 1, 0, alt=True))
            self.fs(s, "EPI")
            s.extend(self.ev_poll_check(4, p, 1))
            self.hold = False
            self.ts(s, "s4E.%d" % p)
            self.urgent.extend(self.groupsA24(4, p, 1))
            self.flush_urgent(s)
            i1 = int(self.opts.get("i1E", 20))
            if ord4 and not last:
                s.extend(self.ev_sig(4, p, 0, tok[(4, p, 0)]))
                if i1 < 0:
                    s.extend(self.ev_poll_issue(1, p + 1, 0, alt=True))
            at = {}
            head1 = []
            if not last:
                A[(1, p + 1, 0)] = self.groupsA_lds(1, p + 1, 0)
                head1, tails[(1, p + 1, 0)] = self.split_tile(A[(1, p + 1, 0)])
                at = {int(self.opts.get("c1E", 60 if ord4 else 8)): [self.ev_poll_check(1, p + 1, 0, alt=True), U(head1)]}
                if ord4 and i1 >= 0:
                    at.setdefault(i1, []).insert(0, self.ev_poll_issue(1, p + 1, 0, alt=True))
            self.burst(s, int(self.opts.get("b4O", 0)))
            self.seg24_mf(s, 4, p, 1, at=at)
            e = Stream(); tok[(4, p, 1)] = self.epi24(e, 4, p, 1)
            self.weave(s, e, every=5)
            until_issued(head1)
            self.ts(s, "s4O.%d" % p)
        if single:
            s("s_cmp_eq_u32 s2, 0")
            s("s_cbranch_scc0 M_noep")
            s("s_mov_b32 s36, %d" % EPOCH)
            s("buffer_store_dword v%d, v%d, s[8:11], s36 offen" % (vOne, vFlag))
            s("M_noep:")
        if self.prof == 4:
            s = self.resolve_marks(s)
        if self.prof:
            s("s_lshl_b32 s36, s2, 2")
            s("s_add_u32 s36, s36, s%d" % sW)
            s("s_lshl_b32 s36, s36, 8")
            s("s_add_u32 s36, s36, %d" % 0x3000000)
            s("s_memrealtime s[100:101]")
            s("s_waitcnt lgkmcnt(0)")
            s("s_mov_b32 s95, s100")
            s("s_mov_b64 exec, 1")
            for k in (94, 95):
                s("v_mov_b32 v20, s%d" % k)
                s("buffer_store_dword v20, off, s[8:11], s36 offset:%d" % (4 * (62 + k - 94)))
            if self.prof == 2 and self.local:
                for k, r in enumerate((sImp, sXcc)):
                    s("v_mov_b32 v20, s%d" % r)
                    s("buffer_store_dword v20, off, s[8:11], s36 offset:%d" % (4 * (8 + k)))
            if self.prof == 7:
                for k in range(6):
                    s("v_mov_b32 v20, s%d" % (80 + k))
                    s("buffer_store_dword v20, off, s[8:11], s36 offset:%d" % (4 * (8 + k)))
            if self.prof == 5:
                for k in range(16):
                    s("v_mov_b32 v20, s%d" % (sTS + 2 + k))
                    s("buffer_store_dword v20, off, s[8:11], s36 offset:%d" % (4 * (8 + k)))
            for k in range(self.nts):
                s("v_mov_b32 v20, s%d" % (sTS + (2 * k if self.prof in (3, 8) else k)))
                s("buffer_store_dword v20, off, s[8:11], s36 offset:%d" % (4 * k))
            s("s_mov_b64 exec, -1")
        s("s_waitcnt vmcnt(0)")
        self.check_weights(s)
        self.check_order(s)
        pol = self.opts.get("ntA")
        if pol:
            for ins in s:
                if ins.meta.get("dep") is not None and " sc1" in ins.text:
                    ins.text = ins.text.replace(" sc1", " sc1 nt" if pol == "1" else {"2": " nt", "3": ""}[pol])
        if self.opts.get("ntS") == "1":
            for ins in s:
                if ins.cls == "vm_st" and "dwordx4" in ins.text and " sc1" in ins.text:
                    ins.text = ins.text.replace(" sc1", " sc1 nt")
        lines = finalize(s, verbose=False)
        lines.append("M_end:")
        lines.append("  s_endpgm")
        lines += self.slow
        lines.append("M_last:")
        lines.append("  s_endpgm")
        return lines


def gen_main(opts):
    m = Main(opts)
    lines = m.gen()
    if m.prof:
        lines.insert(0, "; timestamps: " + " ".join(m.tsnames))
    return lines, LDS_BYTES
```

```python
import sys, os
sys.path.insert(0, os.path.dirname(os.path.abspath(__file__)))
from layout import *
import prep, pack

HEADER = """; Kernarg layout (80 bytes, ptrs only, base s[0:1]):
; hand-off flags cleared;  (2) main: persistent, one workgroup per CU, both layer pairs with flag hand-offs.
"""

def kd(name, vgpr, sgpr, accum):
    return """
.amdhsa_kernel %s
  .amdhsa_next_free_vgpr %d
  .amdhsa_next_free_sgpr %d
  .amdhsa_accum_offset %d
  .amdhsa_group_segment_fixed_size 0
  .amdhsa_kernarg_size 80
  .amdhsa_user_sgpr_count 2
  .amdhsa_user_sgpr_kernarg_segment_ptr 1
  .amdhsa_system_sgpr_workgroup_id_x 1
.end_amdhsa_kernel""" % (name, vgpr, sgpr, accum)


def build_single(main_lines, main_lds, codepf, opts=None):
    out = ["""; Kernarg layout (80 bytes, ptrs only, base s[0:1]):
;
;    d_ws + 1).  Flags stay in the XCD's L2 only when a run-time check shows that the 32 workgroups of a cluster share one XCD."""]
    out.append("; @launch grid=(256,1,1) block=(256,1,1) lds=%d" % main_lds)
    out.append('.amdgcn_target "amdgcn-amd-amdhsa--gfx950"')
    out.append(".text")
    out.append(".globl %s\n.p2align 8\n.type %s,@function\n%s:" % (KNAME, KNAME, KNAME))
    pk = [] if (opts or {}).get("direct", "0") == "1" else pack.gen_pack()
    for l in pk:
        if "@CODEPF" in l:
            raise RuntimeError
    body = pk + main_lines
    if (opts or {}).get("align", "0") == "1":
        import align
        body, n = align.align(body)
        print("aligned", n)
    out += body
    out.append('.section .rodata,"a"\n.p2align 6')
    out.append(kd(KNAME, 512, 102, 256))
    return "\n".join(out) + "\n"


def build(main_lines, main_lds, opts=None):
    out = [HEADER.rstrip()]
    out.append("; @launch kernel=prep_kernel grid=(%d,1,1) block=(256,1,1) lds=%d" % (prep.PREP_WGS, prep.PREP_LDS))
    out.append("; @launch kernel=%s grid=(256,1,1) block=(256,1,1) lds=%d" % (KNAME, main_lds))
    out.append('.amdgcn_target "amdgcn-amd-amdhsa--gfx950"')
    out.append(".text")
    out.append(".globl prep_kernel\n.p2align 8\n.type prep_kernel,@function\nprep_kernel:")
    out += prep.gen_prep("prep_kernel", int((opts or {}).get("prof", 0)))
    out.append(".globl %s\n.p2align 8\n.type %s,@function\n%s:" % (KNAME, KNAME, KNAME))
    out += main_lines
    out.append('.section .rodata,"a"\n.p2align 6')
    out.append(kd("prep_kernel", 64, 64, 64))
    out.append(".p2align 6")
    out.append(kd(KNAME, 512, 102, 256))
    return "\n".join(out) + "\n"


if __name__ == "__main__":
    dst = sys.argv[1]
    opts = dict(a.split("=") for a in sys.argv[2:])
    if opts.get("main", "1") == "0":
        text = build(["  s_endpgm"], 0)
    else:
        import mainker
        single = opts.get("single", "1") == "1"
        if single:
            pack.CODEPF = mainker.Main(opts).codepf(3)
            pack.PROF = int(opts.get("prof", 0))
            pack.FLAG1_FIRST = int(opts.get("f1first", 1))
            pack.TLBWARM = int(opts.get("tlb", 0))
            pack.NCPF = 0 if opts.get("nocpf") == "1" else int(opts.get("cpf", 2))
        lines, lds = mainker.gen_main(opts)
        text = build_single(lines, lds, None, opts) if single else build(lines, lds, opts)
    open(dst, "w").write(text)
    print("wrote", dst, len(text), "bytes")
```

```python
from asmlib import *
from layout import *
from collections import deque
import pack

REG = [0, 65536]
MISC = 131072
STP = MISC
STF = MISC + 16384
CSL = STF + 2048
BIAS = CSL + 2048
JUNK = BIAS + 3072
LDS_BYTES = 163840
SCR = [65536, 98304]

vLane, vL16, vLO, vOst, vH1, vH2, vRed, vPollA, vPollB, vOut = 1, 2, 3, 4, 5, 6, 7, 8, 9, 10
vStatR, vStatW, vStI, vStV, vCs, vCsV, vB1, vOne, vP = 11, 12, 13, 14, 15, 16, 17, 18, 19
ACC = 20
FR = 68
RING = 88
TMP = 136
RES = 140
DV = 144

sW, sRB, sCG, sRB3, sCG3 = 16, 17, 18, 19, 20
sA1h, sA1m, sA3, sKw = 21, 22, 23, 24
sSt1, sSt3 = 25, 26
sM2, sM4 = 28, 30
sT, sT2, sT3 = 32, 33, 34
sOdd = 36
sOnes = 38
sCnt = 40
sBQ, sBW, sBG, sBD = 41, 42, 43, 44
sOst, sA2, sRes, sHst = 45, 46, 47, 48
sA4 = 64
sF1, sF3 = 50, 51
sP2, sP3, sP4, sP1a = 52, 53, 54, 55
sOutO = 56
sStO = 57
sK = 96
sTB = 49
sPoll = 35
sA1hw, sA1mw, sA3w, sKw1 = 63, 66, 67, 27
vPollH = 0
vFlag = 1
vL128 = 10
sPfQ, sPfW, sPfG, sPfD = 90, 91, 92, 93
sM16 = 100
sPoll2 = 62
vP2 = 139
sPur = 5
sImp = 7
sXcc = 6
sTag = 61
sA2b = 60
sE, sE2 = 58, 59
sT4 = 3
sTS = 68

LOG2E = 1.4426950408889634
import struct
def fbits(x): return struct.unpack("<I", struct.pack("<f", x))[0]

POLL_LIMIT = 200000


def Bx(f):
    return "a[%d:%d]" % (4 * f, 4 * f + 3)
def By(f):
    if f < 16:
        return "a[%d:%d]" % (192 + 4 * f, 195 + 4 * f)
    return "v[%d:%d]" % (DV + 4 * (f - 16), DV + 4 * (f - 16) + 3)
def V(n, c=1):
    return "v%d" % n if c == 1 else "v[%d:%d]" % (n, n + c - 1)

def flag_off(p, phase, h):
    return FL + ((p * 4 + phase) * 2 + h) * 32 * 256


class Main:
    def __init__(self, opts):
        self.opts = opts
        self.prof = int(opts.get("prof", 0))
        self.local = opts.get("local", "1") == "1" and opts.get("single", "1") == "1"
        self.direct = opts.get("direct", "0") == "1" and opts.get("single", "1") == "1"
        self.slow = []
        self.npoll = 0
        self.nts = 0
        self.nimp = 0
        self.tsnames5 = []
        self.fine_on = False
        self.tsnames = []

    def ts(self, s, name):
        if self.prof == 6:
            if name in ("start", "prolog") or name.startswith(("s1O", "s2O", "s3E", "s3O", "s4O")):
                k = self.nts
                self.nts += 2
                self.tsnames += [name, name + ".rt"]
                s("s_waitcnt lgkmcnt(0)")
                s("s_memtime s[0:1]")
                s("s_waitcnt lgkmcnt(0)")
                s("s_mov_b32 s%d, s0" % (sTS + k))
                s("s_memrealtime s[0:1]")
                s("s_waitcnt lgkmcnt(0)")
                s("s_mov_b32 s%d, s0" % (sTS + k + 1))
            return
        if self.prof == 4:
            self.mark(s, "seg:" + name)
            return
        if self.prof == 3:
            f = self.opts.get("fine", "").split(",")
            if name == f[0]:
                self.fine_on = True
                self.fs(s, "begin:" + name)
            elif name == f[-1] and self.fine_on:
                self.fs(s, "end:" + name)
                self.fine_on = False
            return
        if self.prof == 8:
            return
        if not self.prof or (self.prof in (2, 5, 7) and name not in ("start", "s4O.1", "s4.1.1")):
            return
        if name in ("mf3O.0", "mf1O.0", "mf3E.0", "mf1O.1"):
            return
        if self.direct and name in ("prolog", "mf1E.1", "s1E.1", "s2E.1", "mf3E.1", "s3E.1", "mf3O.1", "s4E.1", "s2E.0", "s4E.0"):
            return
        if name == "start" and self.opts.get("single", "1") == "1":
            self.tsnames += ["entry"]
            self.nts += 1
        k = self.nts
        self.nts += 1
        self.tsnames.append(name)
        assert sTS + k < (85 if self.direct else 94), k
        s("s_waitcnt lgkmcnt(0)")
        s("s_memtime s[0:1]")
        s("s_waitcnt lgkmcnt(0)")
        s("s_mov_b32 s%d, s0" % (sTS + k))

    def fs(self, s, name):
        if self.prof == 4 and self.fine_on and not name.startswith("mf"):
            k = self.nts
            if sTS + k >= 94:
                return
            self.nts += 1
            self.tsnames.append(name)
            s("s_waitcnt lgkmcnt(0)")
            s("s_memtime s[0:1]")
            s("s_waitcnt lgkmcnt(0)")
            s("s_mov_b32 s%d, s0" % (sTS + k)).meta["glue"] = False
            return
        if self.prof != 3 or not self.fine_on:
            return
        k = self.nts
        lim = 84 if self.direct else (90 if self.opts.get("pf") == "1" else 94)
        if sTS + 2 * k + 1 >= (lim if name.startswith("end:") else lim - 2):
            return
        self.nts += 1
        self.tsnames.append(name)
        s.append(Ins("s_memtime s[%d:%d]" % (sTS + 2 * k, sTS + 2 * k + 1), async_=True))

    def pause(self, s, n):
        i = Ins("@comment")
        i.meta["c"] = "pause"
        i.meta["pause"] = n
        s.append(i)

    def rt(self, s, name):
        if self.prof == 8 and name.endswith(self.opts.get("rtp", ".1")) and name.split(".")[0] in self.opts.get("rts", "sig1O,chk2O,sig2E,chk3E,sig2O,chk3O,sig3O,chk4O,sig4E,chk1E").split(","):
            k = self.nts
            if sTS + 2 * k + 1 < 94:
                self.nts += 1
                self.tsnames.append(name)
                i = Ins("s_memtime s[2:3]", async_=True)
                i.text = "s_memrealtime s[%d:%d]" % (sTS + 2 * k, sTS + 2 * k + 1)
                s.append(i)

    def stm(self, phase):
        if str(phase) in self.opts.get("plain", "") and self.local:
            return ""
        return " sc1"

    def purity(self):
        a, d = RING + 22, RING + 23
        i = Stream()
        i("v_lshrrev_b32 v%d, 2, v%d" % (a, vL16))
        i("s_and_b32 s58, s2, 7")
        i("s_lshl_b32 s58, s58, 7")
        i("s_add_u32 s%d, s58, %d" % (sPur, PXC))
        i("buffer_load_dword v%d, v%d, s[8:11], s%d offen sc1" % (d, a, sPur))
        n = self.npoll
        self.npoll += 1
        c = Stream()
        c("s_lshl_b32 s58, s%d, 4" % sTag)
        c("v_xor_b32 v%d, s58, v%d" % (d, d))
        c("v_cmp_le_u32 vcc, 16, v%d" % d)
        c("s_mov_b32 vcc_hi, 0")
        c("s_cbranch_vccnz SLOW_%d" % n).meta["glue"] = True
        c("BACK_%d:" % n)
        c("v_cmp_ne_u32 vcc, s%d, v%d" % (sXcc, d))
        c("s_cmp_lg_u32 vcc_lo, 0")
        c("s_cselect_b32 s58, 1, 0")
        if self.opts.get("impure") == "1":
            c("s_mov_b32 s58, 1")
        c("s_cmp_eq_u32 s%d, 0" % sW)
        c("s_cselect_b32 s%d, s58, 0" % sImp)
        self.slow += ["SLOW_%d:" % n, "  s_mov_b32 s%d, 0" % sCnt, "SPIN_%d:" % n,
                      "  buffer_load_dword v%d, v%d, s[8:11], s%d offen sc1" % (d, a, sPur), "  s_waitcnt vmcnt(0)",
                      "  v_xor_b32 v%d, s58, v%d" % (d, d), "  v_cmp_le_u32 vcc, 16, v%d" % d, "  s_nop 1", "  s_mov_b32 vcc_hi, 0",
                      "  s_cbranch_vccz BACK_%d" % n, "  s_add_u32 s%d, s%d, 1" % (sCnt, sCnt), "  s_cmp_lt_u32 s%d, %d" % (sCnt, POLL_LIMIT),
                      "  s_cbranch_scc1 SPIN_%d" % n, "  s_branch BACK_%d" % n]
        return i, c

    def mark(self, s, name):
        if self.prof == 4:
            i = Ins("@mark")
            i.meta["name"] = name
            s.append(i)

    def resolve_marks(self, s):
        out = Stream()
        f = self.opts.get("fine", "").split(",")
        on = False
        for ins in s:
            if ins.text == "@mark":
                nm = ins.meta["name"]
                if nm == "seg:" + f[0]:
                    on = True
                if on and sTS + self.nts < 94:
                    k = self.nts
                    self.nts += 1
                    self.tsnames.append(nm)
                    out("s_waitcnt lgkmcnt(0)")
                    out("s_memtime s[0:1]")
                    out("s_waitcnt lgkmcnt(0)")
                    out("s_mov_b32 s%d, s0" % (sTS + k))
                if nm == "seg:" + f[-1]:
                    on = False
                continue
            out.append(ins)
        return out

    def poll_issue(self, s, soff, const, vaddr, alt=False):
        vd, sp = (vP2, sPoll2) if alt else (vP, sPoll)
        s("s_add_u32 s%d, s%d, %d" % (sp, soff, const))
        s("buffer_load_dword v%d, v%d, s[8:11], s%d offen sc1" % (vd, vaddr, sp))
        self.mark(s, "pollI")

    def poll_check(self, s, vaddr, mask, alt=False):
        vP, sPoll = (vP2, sPoll2) if alt else (globals()["vP"], globals()["sPoll"])
        n = self.npoll
        self.npoll += 1
        self.mark(s, "chkA")
        s("v_cmp_ne_u32 vcc, s%d, v%d" % (sTag, vP))
        if mask is not None:
            s("s_and_b64 vcc, vcc, s[%d:%d]" % (mask, mask + 1))
        s("s_cbranch_vccnz SLOW_%d" % n).meta["glue"] = True
        s("BACK_%d:" % n).meta["glue"] = True
        s("s_barrier")
        self.mark(s, "chkB")
        t = []
        t.append("SLOW_%d:" % n)
        if self.prof == 5:
            t.append("  s_memtime s[0:1]")
            t.append("  s_waitcnt lgkmcnt(0)")
            t.append("  s_mov_b32 s%d, s0" % (sTS + 2 + n))
            self.tsnames5.append("poll%d" % n)
        t.append("  s_mov_b32 s%d, 0" % sCnt)
        t.append("SPIN_%d:" % n)
        t.append("  buffer_load_dword v%d, v%d, s[8:11], s%d offen sc1" % (vP, vaddr, sPoll))
        t.append("  s_waitcnt vmcnt(0)")
        t.append("  v_cmp_ne_u32 vcc, s%d, v%d" % (sTag, vP))
        t.append("  s_nop 1")
        if mask is not None:
            t.append("  s_and_b64 vcc, vcc, s[%d:%d]" % (mask, mask + 1))
        t.append("  s_cbranch_vccz %s_%d" % ("DONE" if self.prof == 5 else "BACK", n))
        t.append("  s_add_u32 s%d, s%d, 1" % (sCnt, sCnt))
        t.append("  s_cmp_lt_u32 s%d, %d" % (sCnt, POLL_LIMIT))
        t.append("  s_cbranch_scc1 SPIN_%d" % n)
        t.append("  s_branch BACK_%d" % n)
        if self.prof == 5:
            t.append("DONE_%d:" % n)
            t.append("  s_memtime s[0:1]")
            t.append("  s_waitcnt lgkmcnt(0)")
            t.append("  s_sub_u32 s%d, s0, s%d" % (sTS + 2 + n, sTS + 2 + n))
            t.append("  s_branch BACK_%d" % n)
        self.slow += t

    def dep(self, phase, p, h):
        if phase == 1:
            return (sP1a, flag_off(p - 1, 3, h), vPollH, sM16)
        if phase == 2:
            return (sP2, flag_off(p, 0, h), vPollB, sM2)
        if phase == 3:
            return (sP3, flag_off(p, 1, h), vPollA, sM16)
        return (sP4, flag_off(p, 2, h), vPollB, sM4)

    def ev_poll_issue(self, phase, p, h, alt=False):
        t = Stream()
        so, c, va, m = self.dep(phase, p, h)
        self.poll_issue(t, so, c, va, alt)
        return t

    def ev_poll_check(self, phase, p, h, alt=False):
        t = Stream()
        so, c, va, m = self.dep(phase, p, h)
        self.poll_check(t, va, m, alt)
        [x for x in t if x.text == "s_barrier"][-1].meta["checked"] = (phase, p, h)
        self.rt(t, "chk%d%s.%d" % (phase, "EO"[h], p))
        return t

    def ev_sig(self, phase, p, h, tok):
        t = Stream()
        self.sig(t, tok, sF3 if phase == 3 else sF1, flag_off(p, phase - 1, h), local=(self.local and phase != 4))
        self.rt(t, "sig%d%s.%d" % (phase, "EO"[h], p))
        return t

    def sig(self, s, tok, soff, const, local=False):
        self.mark(s, "sigA")
        s.wait_vm(tok)
        self.mark(s, "sigW")
        s("s_barrier")
        self.mark(s, "sigB")
        s("s_add_u32 s%d, s%d, %d" % (sT3, soff, const))
        if not local:
            s("buffer_store_dword v%d, v%d, s[8:11], s%d offen sc1" % (vOne, vFlag, sT3))
            return
        n = self.nimp
        self.nimp += 1
        s("s_cmp_eq_u32 s%d, 1" % sImp)
        s("s_cbranch_scc1 IMP_%d" % n).meta["glue"] = True
        s("buffer_store_dword v%d, v%d, s[8:11], s%d offen" % (vOne, vFlag, sT3)).meta["glue"] = True
        s("IMPB_%d:" % n)
        self.slow += ["IMP_%d:" % n,
                      "  buffer_store_dword v%d, v%d, s[8:11], s%d offen sc1" % (vOne, vFlag, sT3), "  s_branch IMPB_%d" % n]

    def groupsB(self, reg, sbase, lo, hi):
        out = []
        if self.opts.get("nob") == "1" and sbase != sBQ:
            return out
        if self.opts.get("nob") == "2" and sbase == sBG:
            return out
        for f in range(lo, hi):
            g = Stream()
            if f == lo or f % 4 == 0:
                g("s_add_u32 s%d, s%d, %d" % (sTB, sbase, (f // 4) * 4096))
            g("buffer_load_dwordx4 %s, v%d, s[8:11], s%d offen offset:%d" % (reg(f), vL16, sTB, (f % 4) * 1024)).meta["bname"] = \
                {sBQ: "Q", sBW: "W", sBG: "G", sBD: "D"}[sbase]
            out.append(g)
        return out

    def pf(self, sbase, const=0):
        g = Stream()
        if self.opts.get("pf") != "1":
            return g
        g("s_mov_b32 m0, %d" % JUNK)
        g("s_add_u32 s%d, s%d, %d" % (sT, sbase, const))
        g("buffer_load_dword v%d, s[8:11], s%d offen lds" % (vL128, sT))
        return g

    def groupsA_lds(self, phase, p, h):
        if phase == 1:
            srcs = [(sA1hw, 0), (sA1mw, 0), (sA1mw, 16384)]
            xb, st, sst = XB[2 * p], ST[2 * p], sSt1
        else:
            srcs = [(sA3w, i * 16384) for i in range(4)]
            xb, st, sst = XB[2 * p + 1], ST[2 * p + 1], sSt3
        groups, ctok = [], []
        def stats_groups():
            tk = None
            for i in range(2):
                g = Stream()
                g("s_lshl_b32 s%d, s%d, 11" % (sT2, sW))
                g("s_add_u32 m0, s%d, %d" % (sT2, STP + h * 8192))
                g("s_add_u32 s%d, s%d, %d" % (sT, sst, st + h * 131072))
                tk = g.vm("buffer_load_dwordx4 v%d, s[8:11], s%d offen offset:%d sc1 lds" % (vL16, sT, i * 1024))
                if not (phase == 1 and p == 0):
                    g[-1].meta["dep"] = (phase, p, h)
                groups.append(g)
            return tk
        stok = None
        for c in range(4):
            tk = None
            for sub, (sr, cc) in enumerate(srcs):
                g = Stream()
                g("s_add_u32 m0, s%d, %d" % (sKw1, REG[h] + sub * 16384 + c * 4096))
                g("s_add_u32 s%d, s%d, %d" % (sT, sr, xb + h * MB + cc + c * 4096))
                tk = g.vm("buffer_load_dwordx4 v%d, s[8:11], s%d offen sc1 lds" % (vL16, sT))
                if not (phase == 1 and p == 0):
                    g[-1].meta["dep"] = (phase, p, h)
                groups.append(g)
            ctok.append(tk)
            if c == 0:
                stok = stats_groups()
        return groups, stok, ctok

    def frag_seq(self, phase):
        nks = 4 if phase == 2 else 11
        return [(ss, ks) for ss in (1, 0) for ks in range(nks)]

    def ringreg(self, n):
        return RING + 4 * (n % 12)

    def loadA24_one(self, g, phase, p, h, n, st=sT):
        ss, ks = self.frag_seq(phase)[n]
        if phase == 2:
            if ss == 0:
                g("s_add_u32 s%d, s%d, %d" % (st, sA2, OB[p] + h * MB))
            else:
                g("s_add_u32 s%d, s%d, %d" % (st, sA2b, OB[p] + h * MB))
            g("buffer_load_dwordx4 %s, v%d, s[8:11], s%d offen offset:%d sc1" % (V(self.ringreg(n), 4), vL16, st, ks * 1024)).meta["dep"] = (phase, p, h)
        else:
            g("s_add_u32 s%d, s%d, %d" % (st, sA4 + ss, HB[p] + h * 3 * MB + (ks // 4) * 4096))
            g("buffer_load_dwordx4 %s, v%d, s[8:11], s%d offen offset:%d sc1" % (V(self.ringreg(n), 4), vL16, st, (ks % 4) * 1024)).meta["dep"] = (phase, p, h)

    def groupsA24(self, phase, p, h):
        out = []
        for n in range(min(12, len(self.frag_seq(phase)))):
            g = Stream()
            self.loadA24_one(g, phase, p, h, n)
            out.append(g)
        g = Stream()
        if self.direct and phase == 2 and p == 0:
            g("v_and_b32 v%d, 0xf0, v%d" % (RES, vL16))
            g("v_lshlrev_b32 v%d, 7, v%d" % (RES, RES))
            g("v_lshrrev_b32 v%d, 8, v%d" % (RES + 1, vL16))
            g("v_lshl_add_u32 v%d, v%d, 4, v%d" % (RES, RES + 1, RES))
            g("s_add_u32 s%d, s%d, %d" % (sT, sOutO, h * 1024))
            g("buffer_load_dwordx4 %s, v%d, s[88:91], s%d offen" % (V(RES, 4), RES, sT))
        else:
            g("s_add_u32 s%d, s%d, %d" % (sT, sRes, XB[2 * p + (0 if phase == 2 else 1)] + h * MB))
            g("buffer_load_dwordx4 %s, v%d, s[8:11], s%d offen sc1" % (V(RES, 4), vL16, sT))
        out.insert(min(4, len(out)), g)
        return out

    def stats_reduce(self, s, h, stok):
        a = RING
        adr = vStatR
        if h == 1:
            adr = RING + 8
            s("v_add_u32 v%d, 8192, v%d" % (adr, vStatR))
        s.wait_vm(stok)
        for i in range(4):
            s("ds_read2_b32 %s, v%d offset0:%d offset1:%d" % (V(a + 2 * i, 2), adr, 64 * i, 64 * i + 32))
        self.pause(s, 10)
        for (x, y) in ((0, 1), (2, 3), (4, 5), (6, 7), (0, 2), (4, 6), (0, 4)):
            s("v_add_f32 v%d, v%d, v%d" % (a + x, a + x, a + y))
        s("v_mov_b32 v%d, v%d" % (a + 1, a))
        s("v_permlane32_swap_b32 v%d, v%d" % (a, a + 1))
        s("v_add_f32 v%d, v%d, v%d" % (a, a, a + 1))
        s("v_mov_b32 v%d, v%d" % (a + 1, a))
        s("v_permlane16_swap_b32 v%d, v%d" % (a, a + 1))
        s("v_mul_f32 v%d, %s, v%d" % (a, "0x%08x" % fbits(-1.0 / 512), a))
        s("v_mul_f32 v%d, v%d, v%d" % (a + 2, a, a))
        s("v_fma_f32 v%d, v%d, s%d, -v%d" % (a + 1, a + 1, sK, a + 2))
        s("v_max_f32 v%d, 0, v%d" % (a + 1, a + 1))
        s("v_add_f32 v%d, s%d, v%d" % (a + 1, sK + 1, a + 1))
        s("v_rsq_f32 v%d, v%d" % (a + 1, a + 1))
        s("v_cndmask_b32 v%d, v%d, v%d, s[%d:%d]" % (a, a, a + 1, sOdd, sOdd + 1))
        self.stat_tok = Tok("statw")
        s("ds_write_b32 v%d, v%d offset:%d" % (vStatW, a, h * 1024), tok=self.stat_tok)

    def epi_pref(self, phase, h):
        hoff = h * 1024
        pub = Stream()
        pub.wait_ds(self.stat_tok)
        pub("s_barrier")
        if phase == 3:
            return {58: list(pub), 60: ["ds_read_b128 %s, v%d offset:768" % (V(68, 4), vCs)],
                    61: ["ds_read_b128 %s, v%d offset:832" % (V(72, 4), vCs)],
                    62: ["ds_read_b128 %s, v%d offset:896" % (V(76, 4), vCs)],
                    63: ["ds_read_b64 %s, v%d offset:%d" % (V(80, 2), vStI, hoff)]}
        return {37: list(pub), 38: ["ds_read_b128 %s, v%d offset:%d" % (V(52, 4), vStV, hoff)],
                39: ["ds_read_b128 %s, v%d offset:%d" % (V(56, 4), vStV, hoff + 256)],
                40: ["ds_read_b128 %s, v%d offset:%d" % (V(60, 4), vStV, hoff + 64)],
                41: ["ds_read_b128 %s, v%d offset:%d" % (V(64, 4), vStV, hoff + 256 + 64)],
                43: ["ds_read_b128 %s, v%d offset:64" % (V(80, 4), vCs)],
                44: ["ds_read_b32 v84, v%d" % vCsV],
                45: ["ds_read_b64 %s, v%d offset:%d" % (V(68, 2), vStI, hoff), "ds_read_b64 %s, v%d offset:%d" % (V(70, 2), vStI, hoff + 128)],
                46: ["ds_read_b64 %s, v%d offset:%d" % (V(72, 2), vStI, hoff + 256)],
                47: ["ds_read_b128 %s, v%d offset:0" % (V(76, 4), vCs)]}

    def mf13(self, phase, h):
        base = vL16 if h == 0 else vLO
        nsub = 3 if phase == 1 else 4
        nfr = 16 * nsub
        def rd(n):
            ks, sub = divmod(n, nsub)
            out = []
            if sub == 0 and ks % 4 == 0:
                out.append(("chunk", ks // 4))
            out.append("ds_read_b128 %s, v%d offset:%d" % (V(FR + 4 * (n % 5), 4), base, sub * 16384 + ks * 1024))
            return out
        pre = [x for n in range(5) for x in rd(n)]
        pref = self.epi_pref(phase, h)
        steps = []
        mm = "v_mfma_f32_16x16x32_bf16"
        Q = [None, ACC, ACC + 4]
        K = [ACC + 8, ACC + 12, ACC + 16]
        Vv = [ACC + 20, ACC + 24, ACC + 28]
        for ks in range(16):
            c = (lambda r: "0" if ks == 0 else V(r, 4))
            for sub in range(nsub):
                n = nsub * ks + sub
                x = V(FR + 4 * (n % 5), 4)
                grp = []
                if phase == 1:
                    if sub > 0:
                        grp.append("%s %s, %s, %s, %s" % (mm, V(Q[sub], 4), Bx(3 * ks), x, c(Q[sub])))
                    grp.append("%s %s, %s, %s, %s" % (mm, V(K[sub], 4), Bx(3 * ks + 1), x, c(K[sub])))
                    grp.append("%s %s, %s, %s, %s" % (mm, V(Vv[sub], 4), x, Bx(3 * ks + 2), c(Vv[sub])))
                else:
                    for j in range(3):
                        r = ACC + 12 * sub + 4 * j
                        grp.append("%s %s, %s, %s, %s" % (mm, V(r, 4), Bx(3 * ks + j), x, c(r)))
                for i, m in enumerate(grp):
                    bop = [o.strip() for o in m.split(",") if o.strip().startswith("a[")][0]
                    st = [Ins(m, need=(bop, "Q" if phase == 1 else "G"))]
                    if i == len(grp) - 1 and n + 5 < nfr:
                        st += rd(n + 5)
                    if i == len(grp) - 1:
                        st += pref.get(n, [])
                    steps.append(st)
        return pre, steps

    def mf24(self, phase, p, h):
        seq = self.frag_seq(phase)
        nks = len(seq) // 2
        m = min(nks, int(self.opts.get("m2" if phase == 2 else "m4", 4 if phase == 2 else 6)))
        order = []
        for n, (ss, ks) in enumerate(seq):
            if ss == 0 and ks >= nks - m:
                continue
            order += [(n, jj) for jj in range(4)]
        tail = [n for n, (ss, ks) in enumerate(seq) if ss == 0 and ks >= nks - m]
        order += [(n, jj) for n in tail for jj in (2, 3)]
        self.x1_done = len(order)
        order += [(n, jj) for n in tail for jj in (0, 1)]
        steps = []
        for n, jj in order:
            ss, ks = seq[n]
            x = V(self.ringreg(n), 4)
            r = ACC + 16 * ss + 4 * jj
            st = [Ins("v_mfma_f32_16x16x32_bf16 %s, %s, %s, %s" % (V(r, 4), By(4 * ks + jj), x, "0" if ks == 0 else V(r, 4)),
                      need=(By(4 * ks + jj), "W" if phase == 2 else "D"))]
            if n + 12 < len(seq):
                assert n not in tail
                t = Stream()
                self.loadA24_one(t, phase, p, h, n + 12, sT4)
                if jj == 2:
                    st.append(t[0])
                if jj == 3:
                    st.append(t[1])
            steps.append(st)
        return steps, 2 * len(seq)

    def red_writes(self, xs, h):
        t = Stream()
        so = SCR[h] - 65536
        for x in xs:
            t("v_xor_b32 v%d, %d, v%d" % (TMP + x - 1, x << 13, vRed))
        for x in xs:
            for jl in range(2):
                t("ds_write_b128 v%d, %s offset:%d" % (TMP + x - 1, V(ACC + 8 * x + 4 * jl, 4), so + x * 2048 + jl * 1024))
        return t

    def seg24_mf(self, s, phase, p, h, at=None):
        steps, half = self.mf24(phase, p, h)
        at = dict(at or {})
        w = self.red_writes((2, 3), h)
        at.setdefault(half + 9, []).insert(0, w)
        self.x1_written = False
        if self.x1_done + 9 <= len(steps) - 1:
            at.setdefault(self.x1_done + 9, []).append(self.red_writes((1,), h))
            self.x1_written = True
        self.run_mf(s, steps, at=at)

    def epi1(self, s, p, h):
        Q = [None, ACC, ACC + 4]
        K = [ACC + 8, ACC + 12, ACC + 16]
        Vv = [ACC + 20, ACC + 24, ACC + 28]
        SP = [None, 52, 60]
        SC = [None, 56, 64]
        st = [68, 70, 72]
        csq, csk, csv, cq = 76, 80, 84, 86
        hoff = h * 1024
        NM = [52, 60, 52]
        RS = [56, 64, 56]
        def rdv(sub):
            s("ds_read_b128 %s, v%d offset:%d" % (V(NM[sub], 4), vStV, hoff + sub * 64))
            s("ds_read_b128 %s, v%d offset:%d" % (V(RS[sub], 4), vStV, hoff + 256 + sub * 64))
        bc0 = "op_sel_hi:[0,1,1]"
        for sub in (1, 2):
            for hh in (0, 2):
                s("v_pk_fma_f32 %s, %s, %s, %s %s" % (V(Q[sub] + hh, 2), V(st[sub], 2), V(csq + hh, 2), V(Q[sub] + hh, 2), bc0))
            s("v_mul_f32 v%d, s%d, v%d" % (cq, sK + 2, st[sub] + 1))
            for hh in (0, 2):
                s("v_pk_mul_f32 %s, %s, %s op_sel_hi:[1,0]" % (V(Q[sub] + hh, 2), V(Q[sub] + hh, 2), V(cq, 2)))
            s("v_cvt_pk_bf16_f32 v%d, v%d, v%d" % (Q[sub], Q[sub], Q[sub] + 1))
            s("v_cvt_pk_bf16_f32 v%d, v%d, v%d" % (Q[sub] + 1, Q[sub] + 2, Q[sub] + 3))
        for sub in range(3):
            for hh in (0, 2):
                s("v_pk_fma_f32 %s, %s, %s, %s %s" % (V(K[sub] + hh, 2), V(st[sub], 2), V(csk + hh, 2), V(K[sub] + hh, 2), bc0))
            for hh in (0, 2):
                s("v_pk_mul_f32 %s, %s, %s op_sel:[0,1] op_sel_hi:[1,1]" % (V(K[sub] + hh, 2), V(K[sub] + hh, 2), V(st[sub], 2)))
            s("v_cvt_pk_bf16_f32 v%d, v%d, v%d" % (K[sub], K[sub], K[sub] + 1))
            s("v_cvt_pk_bf16_f32 v%d, v%d, v%d" % (K[sub] + 1, K[sub] + 2, K[sub] + 3))
        bp1, bp, bc = 68, 72, 76
        s("v_add_u32 v%d, %d, v%d" % (TMP + 2, BIAS, vL16))
        s("ds_read_b128 %s, v%d" % (V(bp1, 4), vB1))
        s("ds_read_b128 %s, v%d offset:1024" % (V(bp, 4), TMP + 2))
        s("ds_read_b128 %s, v%d offset:0" % (V(bc, 4), TMP + 2))
        for sub in range(3):
            for hh in (0, 2):
                s("v_pk_fma_f32 %s, %s, %s, %s op_sel_hi:[1,0,1]" % (V(Vv[sub] + hh, 2), V(NM[sub] + hh, 2), V(csv, 2), V(Vv[sub] + hh, 2)))
            for hh in (0, 2):
                s("v_pk_mul_f32 %s, %s, %s" % (V(Vv[sub] + hh, 2), V(Vv[sub] + hh, 2), V(RS[sub] + hh, 2)))
            if sub == 0:
                rdv(2)
            s("v_cvt_pk_bf16_f32 v%d, v%d, v%d" % (Vv[sub], Vv[sub], Vv[sub] + 1))
            s("v_cvt_pk_bf16_f32 v%d, v%d, v%d" % (Vv[sub] + 1, Vv[sub] + 2, Vv[sub] + 3))
        mm = "v_mfma_f32_16x16x16_bf16"
        s("%s %s, %s, %s, %s" % (mm, V(SP[1], 4), V(K[0], 2), V(Q[1], 2), V(bp1, 4)))
        s("%s %s, %s, %s, %s" % (mm, V(SC[1], 4), V(K[1], 2), V(Q[1], 2), V(bc, 4)))
        s("%s %s, %s, %s, %s" % (mm, V(SP[2], 4), V(K[1], 2), V(Q[2], 2), V(bp, 4)))
        s("%s %s, %s, %s, %s" % (mm, V(SC[2], 4), V(K[2], 2), V(Q[2], 2), V(bc, 4)))
        m = {1: 80, 2: 84}
        l = {1: 82, 2: 86}
        for sub in (1, 2):
            a, b = SP[sub], SC[sub]
            s("v_max3_f32 v%d, v%d, v%d, v%d" % (m[sub], a, a + 1, a + 2))
            s("v_max3_f32 v%d, v%d, v%d, v%d" % (m[sub] + 1, a + 3, b, b + 1))
            s("v_max3_f32 v%d, v%d, v%d, v%d" % (m[sub], m[sub], b + 2, b + 3))
            s("v_max_f32 v%d, v%d, v%d" % (m[sub], m[sub], m[sub] + 1))
        for sw in ("v_permlane16_swap_b32", "v_permlane32_swap_b32"):
            for sub in (1, 2):
                s("v_mov_b32 v%d, v%d" % (m[sub] + 1, m[sub]))
            for sub in (1, 2):
                s("%s v%d, v%d" % (sw, m[sub], m[sub] + 1))
            for sub in (1, 2):
                s("v_max_f32 v%d, v%d, v%d" % (m[sub], m[sub], m[sub] + 1))
        for sub in (1, 2):
            for r in (SP[sub], SP[sub] + 2, SC[sub], SC[sub] + 2):
                s("v_pk_add_f32 %s, %s, %s op_sel_hi:[1,0] neg_lo:[0,1] neg_hi:[0,1]" % (V(r, 2), V(r, 2), V(m[sub], 2)))
        for sub in (1, 2):
            for r in range(4):
                s("v_exp_f32 v%d, v%d" % (SP[sub] + r, SP[sub] + r))
                s("v_exp_f32 v%d, v%d" % (SC[sub] + r, SC[sub] + r))
        s("v_mov_b32 v76, 0x3f803f80")
        s("v_mov_b32 v77, 0x3f803f80")
        for sub in (1, 2):
            for r in (SP[sub], SC[sub]):
                s("v_cvt_pk_bf16_f32 v%d, v%d, v%d" % (r, r, r + 1))
                s("v_cvt_pk_bf16_f32 v%d, v%d, v%d" % (r + 1, r + 2, r + 3))
        lq = {1: 80, 2: 84}
        for sub in (1, 2):
            s("%s %s, %s, %s, 0" % (mm, V(lq[sub], 4), V(76, 2), V(SP[sub], 2)))
        for sub in (1, 2):
            s("%s %s, %s, %s, 0" % (mm, V(Q[sub], 4), V(Vv[sub - 1], 2), V(SP[sub], 2)))
        for sub in (1, 2):
            s("%s %s, %s, %s, %s" % (mm, V(lq[sub], 4), V(76, 2), V(SC[sub], 2), V(lq[sub], 4)))
        for sub in (1, 2):
            s("%s %s, %s, %s, %s" % (mm, V(Q[sub], 4), V(Vv[sub], 2), V(SC[sub], 2), V(Q[sub], 4)))
        l = lq
        for sub in (1, 2):
            s("v_rcp_f32 v%d, v%d" % (l[sub], l[sub]))
        for sub in (1, 2):
            for hh in (0, 2):
                s("v_pk_mul_f32 %s, %s, %s op_sel_hi:[1,0]" % (V(Q[sub] + hh, 2), V(Q[sub] + hh, 2), V(l[sub], 2)))
        o = ACC
        s("v_cvt_pk_bf16_f32 v%d, v%d, v%d" % (o, o, o + 1))
        s("v_cvt_pk_bf16_f32 v%d, v%d, v%d" % (o + 1, o + 2, o + 3))
        s("v_cvt_pk_bf16_f32 v%d, v%d, v%d" % (o + 2, o + 4, o + 5))
        s("v_cvt_pk_bf16_f32 v%d, v%d, v%d" % (o + 3, o + 6, o + 7))
        s("v_permlane16_swap_b32 v%d, v%d" % (o, o + 2))
        s("v_permlane16_swap_b32 v%d, v%d" % (o + 1, o + 3))
        s("s_add_u32 s%d, s%d, %d" % (sE, sOst, OB[p] + h * MB))
        return s.vm("buffer_store_dwordx4 %s, v%d, s[8:11], s%d offen%s" % (V(o, 4), vOst, sE, self.stm(1)))

    def epi3(self, s, p, h):
        csG, csU, csM = 68, 72, 76
        stp = [80, 82]
        c1 = 84
        hoff = h * 1024
        bq = TMP
        for sub in range(4):
            G, U, M = ACC + 12 * sub, ACC + 12 * sub + 4, ACC + 12 * sub + 8
            st = stp[sub & 1]
            if sub < 3:
                s("ds_read_b64 %s, v%d offset:%d" % (V(stp[(sub + 1) & 1], 2), vStI, hoff + (sub + 1) * 128))
            for (r, cs) in ((M, csM), (G, csG), (U, csU)):
                for hh in (0, 2):
                    s("v_pk_fma_f32 %s, %s, %s, %s op_sel_hi:[0,1,1]" % (V(r + hh, 2), V(st, 2), V(cs + hh, 2), V(r + hh, 2)))
            s("v_mul_f32 v%d, s%d, v%d" % (c1, sK + 3, st + 1))
            s("v_permlane16_swap_b32 v%d, v%d" % (M, M + 2))
            s("v_permlane16_swap_b32 v%d, v%d" % (M + 1, M + 3))
            gates = (G, G + 2, M)
            ups = (U, U + 2, M + 2)
            for r in gates:
                s("v_pk_mul_f32 %s, %s, %s op_sel_hi:[1,0]" % (V(r, 2), V(r, 2), V(c1, 2)))
            for r in gates:
                s("v_exp_f32 v%d, v%d" % (r, r))
                s("v_exp_f32 v%d, v%d" % (r + 1, r + 1))
            for r in ups:
                s("v_pk_mul_f32 %s, %s, %s op_sel:[0,1] op_sel_hi:[1,1]" % (V(r, 2), V(r, 2), V(st, 2)))
            for r in gates:
                s("v_pk_add_f32 %s, %s, s[%d:%d]" % (V(r, 2), V(r, 2), sOnes, sOnes + 1))
            for r in gates:
                s("v_rcp_f32 v%d, v%d" % (r, r))
                s("v_rcp_f32 v%d, v%d" % (r + 1, r + 1))
            for g, u in zip(gates, ups):
                s("v_pk_mul_f32 %s, %s, %s" % (V(u, 2), V(u, 2), V(g, 2)))
            dst = ACC + 12 * (sub & ~1) + 2 * (sub & 1)
            s("v_cvt_pk_bf16_f32 v%d, v%d, v%d" % (dst, U, U + 1))
            s("v_cvt_pk_bf16_f32 v%d, v%d, v%d" % (dst + 1, U + 2, U + 3))
            s("v_cvt_pk_bf16_f32 v%d, v%d, v%d" % (bq + sub, M + 2, M + 3))
        s("s_add_u32 s%d, s%d, %d" % (sE, sHst, HB[p] + h * 3 * MB))
        for pr in range(2):
            d = ACC + 24 * pr
            s("v_permlane16_swap_b32 v%d, v%d" % (d, d + 2))
            s("v_permlane16_swap_b32 v%d, v%d" % (d + 1, d + 3))
            if pr == 1:
                s("s_add_u32 s%d, s%d, %d" % (sE2, sE, 2 * 48 * KB))
            s.vm("buffer_store_dwordx4 %s, v%d, s[8:11], s%d offen%s" % (V(d, 4), vH1, sE if pr == 0 else sE2, self.stm(3)))
        s("v_permlane16_swap_b32 v%d, v%d" % (bq, bq + 1))
        s("v_permlane16_swap_b32 v%d, v%d" % (bq + 2, bq + 3))
        s("v_permlane32_swap_b32 v%d, v%d" % (bq, bq + 2))
        s("v_permlane32_swap_b32 v%d, v%d" % (bq + 1, bq + 3))
        return s.vm("buffer_store_dwordx4 %s, v%d, s[8:11], s%d offen%s" % (V(bq, 4), vH2, sE, self.stm(3)))

    def epi24(self, s, phase, p, h, sig=None, mid=None):
        so = SCR[h] - 65536
        a = ACC
        if not self.x1_written:
            s.extend(self.red_writes((1,), h))
        if sig is not None:
            s.wait_vm(sig[3])
        s.wait_ds()
        s("s_barrier")
        if sig is not None:
            s("s_add_u32 s%d, s%d, %d" % (sT3, sF3 if sig[0] == 3 else sF1, flag_off(sig[1], sig[0] - 1, sig[2])))
            s("buffer_store_dword v%d, v%d, s[8:11], s%d offen sc1" % (vOne, vFlag, sT3))
        for x in (1, 2, 3):
            for jl in range(2):
                s("ds_read_b128 %s, v%d offset:%d" % (V(a + 8 * x + 4 * jl, 4), vRed, so + x * 2048 + jl * 1024))
        r = 52
        for i in range(4):
            s("v_lshlrev_b32 v%d, 16, v%d" % (r + 2 * i, RES + i))
            s("v_and_b32 v%d, 0xffff0000, v%d" % (r + 2 * i + 1, RES + i))
        for i in range(4):
            s("v_pk_add_f32 %s, %s, %s" % (V(a + 2 * i, 2), V(a + 2 * i, 2), V(r + 2 * i, 2)))
        for x in (1, 2, 3):
            for i in range(4):
                s("v_pk_add_f32 %s, %s, %s" % (V(a + 2 * i, 2), V(a + 2 * i, 2), V(a + 8 * x + 2 * i, 2)))
        o = 60
        for i in range(4):
            s("v_cvt_pk_bf16_f32 v%d, v%d, v%d" % (o + i, a + 2 * i, a + 2 * i + 1))
        final = (phase == 4 and p == 1)
        if final:
            s("s_add_u32 s%d, s%d, %d" % (sE, sOutO, h * 1024))
            s("v_and_b32 v52, 0xf0, v%d" % vL16)
            s("v_lshlrev_b32 v52, 7, v52")
            s("v_lshrrev_b32 v53, 8, v%d" % vL16)
            s("v_lshl_add_u32 v52, v53, 4, v52")
            tk = s.vm("buffer_store_dwordx4 %s, v52, s[12:15], s%d offen%s" % (V(o, 4), sE, {"0": "", "1": " sc1", "2": " nt"}[self.opts.get("outsc", "1")]))
            if mid is not None:
                s.extend(mid)
            return tk
        xi = 2 * p + (1 if phase == 2 else 2)
        s("s_add_u32 s%d, s%d, %d" % (sE, sRes, XB[xi] + h * MB))
        s.vm("buffer_store_dwordx4 %s, v%d, s[8:11], s%d offen%s" % (V(o, 4), vL16, sE, self.stm(phase)))
        if mid is not None:
            s.extend(mid)
        u = 52
        s("v_pk_add_f32 %s, %s, %s" % (V(u, 2), V(a, 2), V(a + 2, 2)))
        s("v_pk_add_f32 %s, %s, %s" % (V(u + 2, 2), V(a + 4, 2), V(a + 6, 2)))
        s("v_pk_mul_f32 %s, %s, %s" % (V(u + 4, 2), V(a, 2), V(a, 2)))
        s("v_pk_add_f32 %s, %s, %s" % (V(u, 2), V(u, 2), V(u + 2, 2)))
        for i in (1, 2, 3):
            s("v_pk_fma_f32 %s, %s, %s, %s" % (V(u + 4, 2), V(a + 2 * i, 2), V(a + 2 * i, 2), V(u + 4, 2)))
        s("v_add_f32 v%d, v%d, v%d" % (u, u, u + 1))
        s("v_add_f32 v%d, v%d, v%d" % (u + 1, u + 4, u + 5))
        s("v_permlane16_swap_b32 v%d, v%d" % (u, u + 1))
        s("v_add_f32 v%d, v%d, v%d" % (u, u, u + 1))
        s("v_mov_b32 v%d, v%d" % (u + 1, u))
        s("v_permlane32_swap_b32 v%d, v%d" % (u, u + 1))
        s("v_add_f32 v%d, v%d, v%d" % (u, u, u + 1))
        s("s_add_u32 s%d, s%d, %d" % (sE, sStO, ST[xi] + h * 131072))
        s("v_lshrrev_b32 v%d, 2, v%d" % (u + 2, vL16))
        s("s_mov_b32 exec_hi, 0")
        tok = s.vm("buffer_store_dword v%d, v%d, s[8:11], s%d offen%s" % (u, u + 2, sE, self.stm(phase)))
        s("s_mov_b32 exec_hi, -1")
        return tok

    def codepf(self, sw=16):
        if self.opts.get("nocpf") == "1":
            return ""
        n = int(self.opts.get("cpf", 2))
        t = ["s_getpc_b64 s[56:57]", "M_pc:", "s_lshl_b32 s58, s%d, 13" % sw, "v_lshlrev_b32 v128, 7, v1", "v_add_u32 v128, s58, v128"]
        for i in range(n):
            t.append("v_min_u32 v129, M_last-M_pc, v128")
            t.append("global_load_dword v%d, v129, s[56:57]" % (134 + i))
            if i < n - 1:
                t.append("v_add_u32 v128, 0x8000, v128")
        return "\n".join(t)

    def pro_ids(self, s, t):
        s("""
        v_lshrrev_b32 v20, 6, v0
        v_and_b32 v%d, 63, v0
        v_readfirstlane_b32 s%d, v20
        v_lshlrev_b32 v%d, 4, v%d
        s_and_b32 s32, s2, 7
        s_lshr_b32 s33, s2, 3
        s_lshr_b32 s34, s32, 1
        s_and_b32 s35, s32, 1
        """ % (vLane, sW, vL16, vLane))
        if self.local:
            s("""
            s_lshl_b32 s{rb}, s32, 2
            s_lshr_b32 s{t}, s33, 3
            s_add_u32 s{rb}, s{rb}, s{t}
            s_and_b32 s{cg}, s33, 7
            s_lshl_b32 s{rb3}, s32, 1
            s_lshr_b32 s{t}, s33, 4
            s_add_u32 s{rb3}, s{rb3}, s{t}
            s_and_b32 s{cg3}, s33, 15
            """.format(rb=sRB, cg=sCG, rb3=sRB3, cg3=sCG3, t=t))
        else:
            s("""
            s_lshl_b32 s{rb}, s34, 3
            s_lshr_b32 s{t}, s33, 2
            s_add_u32 s{rb}, s{rb}, s{t}
            s_lshl_b32 s{cg}, s35, 2
            s_and_b32 s{t}, s33, 3
            s_add_u32 s{cg}, s{cg}, s{t}
            s_lshl_b32 s{rb3}, s34, 2
            s_lshr_b32 s{t}, s33, 3
            s_add_u32 s{rb3}, s{rb3}, s{t}
            s_lshl_b32 s{cg3}, s35, 3
            s_and_b32 s{t}, s33, 7
            s_add_u32 s{cg3}, s{cg3}, s{t}
            """.format(rb=sRB, cg=sCG, rb3=sRB3, cg3=sCG3, t=t))

    def prologue(self, s):
        single = self.opts.get("single", "1") == "1"
        s("""
        s_load_dwordx2 s[4:5], s[0:1], 72
        s_load_dwordx2 s[6:7], s[0:1], 56
        """)
        if not single:
            s("s_cmp_ge_u32 s2, 256")
            s("s_cbranch_scc1 M_end")
        self.pro_ids(s, 36)
        if not single:
            s(self.codepf())
        s("""
        s_waitcnt lgkmcnt(0)
        s_mov_b32 s8, s4
        s_and_b32 s9, s5, 0xffff
        s_mov_b32 s10, 0x10000000
        s_mov_b32 s11, 0x20000
        s_mov_b32 s12, s6
        s_and_b32 s13, s7, 0xffff
        s_mov_b32 s14, 0x200000
        s_mov_b32 s15, 0x20000
        """)
        self.pro_rest(s)

    def pro_rest(self, s):
        s("""
        s_lshl_b32 s36, s{cg}, 2
        s_add_u32 s36, s36, s{w}
        s_mul_i32 s{bq}, s36, {k48}
        s_add_u32 s{bq}, s{bq}, {PQ}
        s_lshl_b32 s{bw}, s36, 14
        s_add_u32 s{bw}, s{bw}, {PW}
        s_mul_i32 s{bd}, s36, {k44}
        s_add_u32 s{bd}, s{bd}, {PD}
        s_lshl_b32 s37, s{cg3}, 2
        s_add_u32 s37, s37, s{w}
        s_mul_i32 s{bg}, s37, {k48}
        s_add_u32 s{bg}, s{bg}, {PG}
        s_lshl_b32 s{kw}, s{w}, 12
        s_lshl_b32 s{a1m}, s{rb}, 15
        s_lshl_b32 s{a3}, s{rb3}, 16
        s_sub_u32 s{a1h}, s{a1m}, 16384
        s_max_i32 s{a1h}, s{a1h}, 0
        """.format(cg=sCG, w=sW, bq=sBQ, bw=sBW, bd=sBD, bg=sBG, cg3=sCG3, kw=sKw, a1m=sA1m, a3=sA3, a1h=sA1h, rb=sRB, rb3=sRB3,
                   k48=48 * KB, k44=44 * KB, PQ=PQ, PW=PW, PD=PD, PG=PG))
        s("""
        s_lshl_b32 s38, s{rb}, 1
        s_add_u32 s38, s38, s{w}
        s_sub_u32 s38, s38, 1
        s_max_i32 s38, s38, 0
        s_lshl_b32 s{st1}, s38, 11
        s_lshl_b32 s38, s{rb3}, 2
        s_add_u32 s38, s38, s{w}
        s_lshl_b32 s{st3}, s38, 11
        """.format(rb=sRB, w=sW, st1=sSt1, rb3=sRB3, st3=sSt3))
        s("""
        s_lshr_b32 s38, s{w}, 1
        s_and_b32 s39, s{w}, 1
        s_lshl_b32 s40, s{cg}, 1
        s_add_u32 s59, s40, s38
        s_lshl_b32 s59, s59, 10
        s_lshl_b32 s60, s39, 9
        s_add_u32 s59, s59, s60
        s_add_u32 s{ost}, s59, s{a1m}
        """.format(w=sW, cg=sCG, ost=sOst, a1m=sA1m))
        s("""
        s_lshl_b32 s59, s38, 14
        s_add_u32 s59, s59, s{a1m}
        s_add_u32 s{a2}, s59, s{kw}
        s_add_u32 s60, s40, s39
        s_lshl_b32 s61, s60, 10
        s_add_u32 s{res}, s59, s61
        s_lshr_b32 s{sto}, s59, 3
        s_lshl_b32 s61, s60, 7
        s_add_u32 s{sto}, s{sto}, s61
        """.format(a1m=sA1m, a2=sA2, kw=sKw, res=sRes, sto=sStO))
        s("""
        s_lshl_b32 s59, s{rb}, 1
        s_add_u32 s59, s59, s38
        s_lshl_b32 s{out}, s59, 15
        s_lshl_b32 s61, s60, 6
        s_add_u32 s{out}, s{out}, s61
        """.format(rb=sRB, out=sOutO))
        s("""
        s_mul_i32 s{hst}, s{rb3}, {k192}
        s_mul_i32 s61, s{cg3}, 12
        s_mul_i32 s62, s{w}, 3
        s_add_u32 s61, s61, s62
        s_lshl_b32 s61, s61, 8
        s_add_u32 s{hst}, s{hst}, s61
        s_mul_i32 s62, s{w}, {k11}
        s_mul_i32 s{a4}, s59, {k48}
        s_add_u32 s{a4}, s{a4}, s62
        s_xor_b32 s59, s59, 1
        s_mul_i32 s{a4b}, s59, {k48}
        s_add_u32 s{a4b}, s{a4b}, s62
        """.format(hst=sHst, rb3=sRB3, cg3=sCG3, w=sW, a4=sA4, a4b=sA4 + 1, k192=192 * KB, k11=11 * KB, k48=48 * KB))
        return

    def prologue2(self, s):
        s("""
        s_lshl_b32 s59, s{cg}, 2
        s_lshl_b32 s60, s{rb}, 8
        s_add_u32 s{f1}, s60, s59
        s_lshl_b32 s59, s{cg3}, 2
        s_lshl_b32 s61, s{rb3}, 8
        s_add_u32 s{f3}, s61, s59
        s_mov_b32 s{p2}, s60
        s_lshl_b32 s{p3}, s{rb3}, 9
        s_lshr_b32 s61, s{rb}, 1
        s_lshl_b32 s{p4}, s61, 8
        s_cmp_eq_u32 s{rb}, 0
        s_cselect_b32 s61, 0, 256
        s_sub_u32 s{p1}, s60, s61
        v_lshrrev_b32 v20, 3, v{lane}
        v_mul_lo_u32 v20, v20, s61
        v_and_b32 v21, 7, v{lane}
        v_lshl_add_u32 v{ph}, v21, 2, v20
        """.format(lane=vLane, ph=vPollH, cg=sCG, w=sW, rb=sRB, f1=sF1, cg3=sCG3, rb3=sRB3, f3=sF3, p2=sP2, p3=sP3, p4=sP4, p1=sP1a))
        s("""
        s_cmp_eq_u32 s{w}, 1
        s_cselect_b32 s{m2}, 0xff, 0
        s_mov_b32 s{m2h}, 0
        s_cselect_b32 s{m4}, 0x7fff, 0
        s_mov_b32 s{m4h}, 0
        s_cselect_b32 s{m16}, 0xffff, 0
        s_mov_b32 s{m16h}, 0
        s_mov_b32 s{odd}, 0xffff0000
        s_mov_b32 s{oddh}, 0xffff0000
        s_mov_b32 s{one}, 1.0
        s_mov_b32 s{oneh}, 1.0
        s_mov_b32 s{k0}, {c0}
        s_mov_b32 s{k1}, {c1}
        s_mov_b32 s{k2}, {c2}
        s_mov_b32 s{k3}, {c3}
        """.format(w=sW, m2=sM2, m2h=sM2 + 1, m4=sM4, m4h=sM4 + 1, m16=sM16, m16h=sM16 + 1, odd=sOdd, oddh=sOdd + 1, one=sOnes, oneh=sOnes + 1,
                   k0=sK, k1=sK + 1, k2=sK + 2, k3=sK + 3,
                   c0="0x%08x" % fbits(1.0 / 512), c1="0x%08x" % fbits(1e-5), c2="0x%08x" % fbits(0.25 * LOG2E), c3="0x%08x" % fbits(-LOG2E)))
        s("""
        v_and_b32 v20, 15, v{lane}
        v_lshrrev_b32 v21, 4, v{lane}
        v_add_u32 v{lo}, 65536, v{l16}
        v_lshlrev_b32 v22, 4, v20
        v_and_b32 v23, 1, v21
        v_lshrrev_b32 v24, 1, v21
        v_lshl_add_u32 v25, v24, 8, v22
        v_lshl_add_u32 v{ost}, v23, 14, v25
        v_mul_u32_u24 v26, {k48}, v23
        v_add_u32 v{h1}, v26, v25
        v_mul_u32_u24 v26, {k48}, v21
        v_add_u32 v26, v26, v22
        v_add_u32 v{h2}, 512, v26
        s_lshl_b32 s59, s{w}, 13
        s_add_u32 s59, s59, 65536
        v_add_u32 v{red}, s59, v{l16}
        v_lshrrev_b32 v26, 3, v{lane}
        v_and_b32 v27, 7, v{lane}
        v_lshlrev_b32 v27, 2, v27
        v_lshl_add_u32 v{pa}, v26, 8, v27
        v_lshlrev_b32 v{pb}, 2, v{lane}
        s_cmp_eq_u32 s{w}, 1
        s_cselect_b32 s59, 16, 0
        v_cmp_gt_u32 vcc, s59, v{lane}
        v_mov_b32 v27, 0x7ffffff0
        v_cndmask_b32 v{pa}, v27, v{pa}, vcc
        v_cndmask_b32 v{pb}, v27, v{pb}, vcc
        v_cndmask_b32 v{ph}, v27, v{ph}, vcc
        v_lshlrev_b32 v{out}, 7, v{lane}
        v_cmp_gt_u32 vcc, 16, v{lane}
        v_cndmask_b32 v{out}, v27, v{out}, vcc
        v_mov_b32 v{one}, 1
        """.format(lane=vLane, lo=vLO, l16=vL16, ost=vOst, h1=vH1, h2=vH2, red=vRed, pa=vPollA, pb=vPollB, ph=vPollH, out=vOut, one=vOne, w=sW, k48=48 * KB))
        s("""
        s_lshl_b32 s59, s{w}, 11
        s_add_u32 s59, s59, {stp}
        v_lshlrev_b32 v26, 10, v24
        v_lshl_add_u32 v26, v23, 6, v26
        v_lshl_add_u32 v26, v20, 2, v26
        v_add_u32 v{sr}, s59, v26
        """.format(w=sW, stp=STP, sr=vStatR))
        s("""
        s_lshl_b32 s59, s{w}, 7
        s_lshl_b32 s60, s{w}, 6
        v_lshlrev_b32 v26, 3, v20
        v_lshl_add_u32 v26, v23, 2, v26
        v_add_u32 v26, s59, v26
        v_lshlrev_b32 v27, 2, v20
        v_lshl_add_u32 v27, v23, 8, v27
        v_add_u32 v27, s60, v27
        v_add_u32 v27, 512, v27
        v_cmp_gt_u32 vcc, 2, v21
        v_cndmask_b32 v26, v27, v26, vcc
        v_add_u32 v{sw}, {stf}, v26
        v_lshlrev_b32 v26, 3, v20
        v_add_u32 v{si}, {stf}, v26
        v_lshlrev_b32 v26, 4, v21
        v_add_u32 v{sv}, {stfn}, v26
        s_mul_i32 s59, s{w}, 192
        s_add_u32 s59, s59, {csl}
        v_add_u32 v{cs}, s59, v26
        v_lshlrev_b32 v27, 2, v20
        v_add_u32 v27, s59, v27
        v_add_u32 v{csv}, 128, v27
        """.format(w=sW, sw=vStatW, stf=STF, si=vStI, sv=vStV, stfn=STF + 512, csl=CSL, cs=vCs, csv=vCsV))
        shq, shg = (3, 4) if self.local else (2, 3)
        nq, ng = 4 * (32 >> shq), 4 * (32 >> shg)
        self.pf_n = {"Q": -(-192 * KB // nq // 2048), "W": -(-64 * KB // nq // 2048), "D": -(-176 * KB // nq // 2048), "G": -(-192 * KB // ng // 2048)}
        assert not (self.direct and self.opts.get("pf") == "1")
        (s if self.opts.get("pf") == "1" else (lambda t: None))("""
        s_lshr_b32 s59, s2, 3
        s_lshr_b32 s60, s59, {shq}
        s_lshl_b32 s60, s60, 2
        s_add_u32 s60, s60, s{w}
        s_mul_i32 s61, s{cg}, {k192}
        s_mul_i32 s62, s60, {q6}
        s_add_u32 s{pq}, s61, s62
        s_add_u32 s{pq}, s{pq}, {PQ}
        s_lshl_b32 s61, s{cg}, 16
        s_mul_i32 s62, s60, {w2}
        s_add_u32 s{pw}, s61, s62
        s_add_u32 s{pw}, s{pw}, {PW}
        s_mul_i32 s61, s{cg}, {k176}
        s_mul_i32 s62, s60, {d55}
        s_add_u32 s{pd}, s61, s62
        s_add_u32 s{pd}, s{pd}, {PD}
        s_lshr_b32 s60, s59, {shg}
        s_lshl_b32 s60, s60, 2
        s_add_u32 s60, s60, s{w}
        s_mul_i32 s61, s{cg3}, {k192}
        s_mul_i32 s62, s60, {g12}
        s_add_u32 s{pg}, s61, s62
        s_add_u32 s{pg}, s{pg}, {PG}
        """.format(w=sW, cg=sCG, cg3=sCG3, pq=sPfQ, pw=sPfW, pd=sPfD, pg=sPfG, k192=192 * KB, k176=176 * KB, q6=192 * KB // nq, w2=64 * KB // nq,
                   d55=176 * KB // nq, g12=192 * KB // ng, PQ=PQ, PW=PW, PD=PD, PG=PG, shq=shq, shg=shg))
        s("""
        v_lshlrev_b32 v26, 2, v21
        v_sub_u32 v26, v20, v26
        v_mov_b32 v27, 0xf149f2ca
        v_mov_b32 v28, 0
        """)
        for r in range(4):
            s("v_subrev_u32 v29, %d, v26" % r)
            s("v_cmp_gt_u32 vcc, 8, v29")
            s("v_cndmask_b32 v%d, v27, v28, vcc" % (32 + r))
            s("v_cmp_gt_i32 vcc, -8, v29")
            s("v_cndmask_b32 v%d, v27, v28, vcc" % (36 + r))
            s("v_mov_b32 v%d, v27" % (40 + r))
        s("v_add_u32 v30, %d, v%d" % (BIAS, vL16))
        s.wait_ds()
        s("ds_write_b128 v30, v[32:35]")
        s("ds_write_b128 v30, v[36:39] offset:1024")
        s("ds_write_b128 v30, v[40:43] offset:2048")
        s("""
        s_cmp_eq_u32 s{rb}, 0
        s_cselect_b32 s59, 2, 1
        s_lshl_b32 s59, s59, 10
        v_add_u32 v{b1}, s59, v30
        """.format(rb=sRB, b1=vB1))

    def colsums(self, s, ks, r0=44, first=True):
        single = self.opts.get("single", "1") == "1"
        ks = list(ks)
        R = lambda k: r0 + 4 * (k - ks[0])
        for k in ks:
            r = R(k)
            s("v_add_f32 v%d, v%d, v%d" % (r, r, r + 1))
            s("v_add_f32 v%d, v%d, v%d" % (r + 2, r + 2, r + 3))
            s("v_add_f32 v%d, v%d, v%d" % (r, r, r + 2))
            if not single:
                s("v_add_f32_dpp v%d, v%d, v%d quad_perm:[1,0,3,2] row_mask:0xf bank_mask:0xf" % (r, r, r))
                s("v_add_f32_dpp v%d, v%d, v%d quad_perm:[2,3,0,1] row_mask:0xf bank_mask:0xf" % (r, r, r))
        if single:
            for sw in ("v_permlane16_swap_b32", "v_permlane32_swap_b32"):
                for k in ks:
                    s("v_mov_b32 v%d, v%d" % (R(k) + 1, R(k)))
                for k in ks:
                    s("%s v%d, v%d" % (sw, R(k), R(k) + 1))
                for k in ks:
                    s("v_add_f32 v%d, v%d, v%d" % (R(k), R(k), R(k) + 1))
        a = R(ks[-1]) + 2
        if single:
            s("v_and_b32 v%d, 0xf0, v%d" % (a, vL16))
            s("v_lshrrev_b32 v%d, 2, v%d" % (a, a))
        else:
            s("v_lshrrev_b32 v%d, 6, v%d" % (a, vL16))
            s("v_lshlrev_b32 v%d, 2, v%d" % (a, a))
        s("s_mul_i32 s59, s%d, 192" % sW)
        s("s_add_u32 s59, s59, %d" % CSL)
        s("v_add_u32 v%d, s59, v%d" % (a, a))
        for k in ks:
            s("ds_write_b32 v%d, v%d offset:%d" % (a, R(k), (k // 3) * 768 + (k % 3) * 64))
        if first:
            if not single:
                self.flag_vec(s)
            s("v_mov_b32 v%d, v%d" % (vFlag, self.vflag_tmp))

    vflag_tmp = 87

    def flag_vec(self, s):
        s("s_cmp_eq_u32 s%d, 0" % sW)
        s("s_cselect_b32 s59, 1, 0")
        s("v_cmp_gt_u32 vcc, s59, v%d" % vLane)
        s("v_mov_b32 v27, 0x7ffffff0")
        s("v_cndmask_b32 v%d, v27, 0, vcc" % self.vflag_tmp)
        s("v_mov_b32 v60, v%d" % self.vflag_tmp)

    def global_issue(self, s):
        s("""
        s_mul_i32 s58, s{cg}, 12
        v_add_u32 v89, s58, v{lane}
        v_subrev_u32 v90, 12, v{lane}
        v_mul_u32_u24 v91, 21846, v90
        v_lshrrev_b32 v91, 16, v91
        v_mul_u32_u24 v92, 3, v91
        v_sub_u32 v92, v90, v92
        s_lshl_b32 s58, s{rb}, 1
        v_add_u32 v92, s58, v92
        v_subrev_u32 v92, 1, v92
        v_max_i32 v92, 0, v92
        v_lshl_add_u32 v92, v91, 6, v92
        v_add_u32 v92, 96, v92
        v_cmp_gt_u32 vcc, 12, v{lane}
        v_cndmask_b32 v89, v92, v89, vcc
        v_lshrrev_b32 v90, 3, v89
        v_and_b32 v89, 7, v89
        v_lshlrev_b32 v89, 2, v89
        v_lshl_add_u32 v89, v90, 7, v89
        s_cmp_eq_u32 s{w}, 1
        s_cselect_b32 s58, 18, 0
        v_cmp_gt_u32 vcc, s58, v{lane}
        v_mov_b32 v90, 0x7ffffff0
        v_cndmask_b32 v89, v90, v89, vcc
        s_cselect_b32 s{m}, 0x3ffff, 0
        s_mov_b32 s{mh}, 0
        s_mov_b32 s{p}, {pfl}
        buffer_load_dword v92, v89, s[8:11], s{p} offen sc1
        """.format(lane=vLane, w=sW, p=sPoll, pfl=PFL, cg=sCG, rb=sRB, m=4, mh=5))

    def global_check(self, s):
        n = self.npoll
        self.npoll += 1
        s("v_cmp_ne_u32 vcc, s%d, v92" % sTag)
        s("s_and_b64 vcc, vcc, s[4:5]")
        s("s_cbranch_vccnz SLOW_%d" % n)
        s("BACK_%d:" % n)
        s("s_barrier")
        self.slow += ["SLOW_%d:" % n, "  s_mov_b32 s%d, 0" % sCnt, "SPIN_%d:" % n,
                      "  buffer_load_dword v92, v89, s[8:11], s%d offen sc1" % sPoll, "  s_waitcnt vmcnt(0)",
                      "  v_cmp_ne_u32 vcc, s%d, v92" % sTag, "  s_nop 1", "  s_and_b64 vcc, vcc, s[4:5]",
                      "  s_cbranch_vccz BACK_%d" % n, "  s_add_u32 s%d, s%d, 1" % (sCnt, sCnt), "  s_cmp_lt_u32 s%d, %d" % (sCnt, POLL_LIMIT),
                      "  s_cbranch_scc1 SPIN_%d" % n, "  s_branch BACK_%d" % n]

    hold = False

    def tick(self, s, bulk=True):
        if self.urgent:
            s.extend(self.urgent.popleft())
            return True
        if bulk and self.bulk and not self.hold:
            s.extend(self.bulk.popleft())
            return True
        return False

    def flush_urgent(self, s):
        while self.urgent:
            s.extend(self.urgent.popleft())

    def burst(self, s, n):
        for _ in range(n):
            self.tick(s)

    @staticmethod
    def cost(ins):
        c = ins.cls
        if c == "valu":
            return 8 if (ins.meta.get("trans") or ins.meta.get("perm")) else 4
        if c in ("vm_ld", "vm_dma", "vm_st"):
            return 8
        if c in ("ds_rd", "ds_wr"):
            return 4
        if c == "salu":
            return 2.5
        if c in ("pseudo", "label"):
            return 0 if ins.text in ("@comment", "@mark") or c == "label" else 2
        return 3

    def progressive(self, groups, per_ks):
        for f, g in enumerate(groups):
            g.min_step = max(per_ks * (f // 3 + 1) + 2, int(self.opts.get("pg0", 0)) + int(float(self.opts.get("pgr", 0)) * f))
        return groups

    def clear_min(self):
        for g in self.bulk:
            g.min_step = 0

    def set_hold(self, v):
        def f():
            self.hold = v
        return f

    def delay(self, s, clks):
        n = max(0, int(clks) // 64)
        if n:
            s("s_sleep %d" % n)

    def evs(self, key, default):
        v = self.opts.get(key)
        return tuple(int(x) for x in v.split(",")) if v else default

    def run_mf(self, s, steps, at=None, fill=None, rate=4, ctok=None, fill_from=2, urate=None):
        at = at or {}
        urate = urate or rate
        fill = deque(fill or [])
        ev, cur = deque(), deque()
        last_vm = -rate
        last_tr = -12
        isvm = lambda x: x.cls in ("vm_ld", "vm_dma", "vm_st")
        def mk(x):
            if isinstance(x, Ins):
                return [x]
            if isinstance(x, tuple):
                t = Stream()
                self.mark(t, "chA%d" % x[1])
                t.wait_vm(ctok[x[1]])
                t("s_barrier")
                self.mark(t, "chB%d" % x[1])
                return list(t)
            t = Stream()
            t(x)
            return list(t)
        def push_ev(e):
            if isinstance(e, Stream):
                ev.extend(e)
            else:
                c = Ins("@comment")
                c.meta["c"] = "release"
                c.meta["call"] = e
                ev.append(c)
        def emit_from(q, budget):
            while q:
                c = self.cost(q[0])
                if c > budget and not (budget >= 8 - 1e-9):
                    break
                x = q.popleft()
                s.append(x)
                if x.meta.get("call"):
                    x.meta["call"]()
                budget -= c
                while x.meta.get("glue") and q:
                    x = q.popleft()
                    s.append(x)
                    if x.meta.get("call"):
                        x.meta["call"]()
                if budget <= 0:
                    break
            return budget
        n = len(steps)
        for i, st in enumerate(steps):
            for e in at.get(i, []):
                push_ev(e)
            if i % int(self.opts.get("fstep", 16)) == 0:
                self.fs(s, "mf%d" % i)
            budget = 8.0
            main = [y for x in st for y in mk(x)]
            if any(x.text == "@waitds" and x.meta.get("tok") is not None for x in main):
                while fill:
                    x = fill.popleft()
                    s.append(x)
            for x in main:
                s.append(x)
            for x in main[1:]:
                budget -= self.cost(x)
                if isvm(x):
                    last_vm = i
            if any(x.cls == "ds_rd" for x in main[1:]):
                budget -= 2
            if budget <= 0:
                continue
            if ev:
                had_vm = any(isvm(x) for x in list(ev)[:1])
                budget = emit_from(ev, budget)
                if had_vm:
                    last_vm = i
                if budget <= 0:
                    continue
            if not cur and self.trickle and not self.urgent and i - last_tr >= int(self.opts.get("trate", 24)) and i - last_vm >= 1:
                cur.extend(self.trickle.popleft())
                last_tr = i
            if not cur:
                if self.urgent and i - last_vm >= urate - 1:
                    cur.extend(self.urgent.popleft())
                elif self.bulk and not self.hold and not self.urgent and i - last_vm >= rate - 1 and getattr(self.bulk[0], "min_step", 0) <= i:
                    cur.extend(self.bulk.popleft())
            while cur and budget > 0:
                x = cur[0]
                c = self.cost(x)
                if isvm(x):
                    if budget < 8 or i - last_vm < min(rate, urate):
                        break
                    last_vm = i
                elif c > budget:
                    break
                s.append(cur.popleft())
                budget -= c
            if fill and fill[0].meta.get("until") is not None:
                fill_from = max(fill_from, fill.popleft().meta["until"])
            if fill and fill[0].meta.get("pause"):
                fill_from = i + fill.popleft().meta["pause"]
            if i >= fill_from and fill and budget > 0:
                part = deque()
                while fill and not fill[0].meta.get("pause") and fill[0].meta.get("until") is None and len(part) < 4:
                    part.append(fill.popleft())
                budget = emit_from(part, budget)
                while part:
                    fill.appendleft(part.pop())
        for e in at.get(n, []):
            push_ev(e)
        for q in (cur, ev, fill):
            while q:
                x = q.popleft()
                s.append(x)
                if x.meta.get("call"):
                    x.meta["call"]()

    def weave(self, s, epi, every=13):
        k = 0
        for ins in epi:
            s.append(ins)
            if ins.cls in ("valu", "mfma"):
                k += 1
                if k >= every:
                    if self.tick(s):
                        k = 0

    def split_tile(self, A):
        groups = A[0]
        nsub = (len(groups) - 2) // 4
        nh = 2 * nsub + 2
        return groups[:nh], groups[nh:]

    def cs_loads_to(self, s, cg, base, r0, vaddr):
        s("s_lshl_b32 s58, s%d, 2" % cg)
        s("s_add_u32 s58, s58, s%d" % sW)
        s("s_mul_i32 s59, s58, 3072")
        s("s_add_u32 s59, s59, %d" % base)
        for k in range(3):
            for j in range(4):
                s("buffer_load_dword v%d, v%d, s[8:11], s59 offen offset:%d" % (r0 + 4 * k + j, vaddr, k * 1024 + j * 64))

    def global_check2(self):
        n = self.npoll
        self.npoll += 1
        t = Stream()
        r = RING + 12
        t("v_cmp_ne_u32 vcc, s%d, v%d" % (sTag, r))
        t("s_and_b64 vcc, vcc, s[4:5]")
        t("s_cbranch_vccnz SLOW_%d" % n).meta["glue"] = True
        t("BACK_%d:" % n).meta["glue"] = True
        t("s_barrier")
        self.slow += ["SLOW_%d:" % n, "  s_mov_b32 s%d, 0" % sCnt, "SPIN_%d:" % n,
                      "  buffer_load_dword v%d, v%d, s[8:11], s%d offen sc1" % (r, RING + 16, sPoll2), "  s_waitcnt vmcnt(0)",
                      "  v_cmp_ne_u32 vcc, s%d, v%d" % (sTag, r), "  s_nop 1", "  s_and_b64 vcc, vcc, s[4:5]",
                      "  s_cbranch_vccz BACK_%d" % n, "  s_add_u32 s%d, s%d, 1" % (sCnt, sCnt), "  s_cmp_lt_u32 s%d, %d" % (sCnt, POLL_LIMIT),
                      "  s_cbranch_scc1 SPIN_%d" % n, "  s_branch BACK_%d" % n]
        return t

    def seg13(self, s, phase, p, h, A, at, urate=None, raw_stats=False):
        groups, stok, ctok = A
        st = Stream()
        if raw_stats:
            return self.seg13_raw(s, phase, p, h, A, at)
        self.stats_reduce(st, h, stok)
        if getattr(self, "extra_fill", None) is not None:
            st.extend(self.extra_fill)
            self.extra_fill = None
        pre, steps = self.mf13(phase, h)
        if urate:
            s.extend(st)
            st = Stream()
        for x in pre:
            if isinstance(x, tuple):
                s.wait_vm(ctok[x[1]])
                s("s_barrier")
            else:
                s(x)
        self.run_mf(s, steps, at=at, fill=list(st), ctok=ctok, fill_from=int(self.opts.get("fillfrom", 6)), urate=(urate or int(self.opts.get("ur", 4))), rate=(urate or int(self.opts.get("br", 4))))
        s("s_barrier")

    def seg13_raw(self, s, phase, p, h, A, at):
        import direct
        groups, stok, ctok = A
        self.stat_tok = Tok("unused")
        saved = self.epi_pref
        pref = saved(phase, h)
        self.epi_pref = lambda *a: {}
        pre, steps = self.mf13(phase, h)
        self.epi_pref = saved
        chunk_step = {0: 0}
        for i, stp in enumerate(steps):
            for x in stp:
                if isinstance(x, tuple):
                    chunk_step[x[1]] = i
        SA, T0, ADR, ONE = RING, RING + 24, RING + 2, RING + 3
        st = Stream()
        st("s_lshl_b32 s58, s%d, 14" % sW)
        st("s_add_u32 s58, s58, %d" % REG[h])
        st("v_add_u32 v%d, s58, v%d" % (ADR, vL16))
        st("v_mov_b32 v%d, 0x3f803f80" % ONE)
        st("v_mov_b32 v%d, 0" % SA)
        st("v_mov_b32 v%d, 0" % (SA + 1))
        for c in range(4):
            u = Ins("@comment")
            u.meta["c"] = "until chunk %d" % c
            u.meta["until"] = chunk_step[c] + 2
            st.append(u)
            for j in range(4):
                st("ds_read_b128 %s, v%d offset:%d" % (V(T0 + 4 * j, 4), ADR, (4 * c + j) * 1024))
            self.pause(st, 6)
            for j in range(4):
                st.extend(direct.stats_dots(SA, T0 + 4 * j, ONE))
        for x in pre:
            if isinstance(x, tuple):
                s.wait_vm(ctok[x[1]])
                s("s_barrier")
            else:
                s(x)
        self.run_mf(s, steps, at=at, fill=list(st), ctok=ctok, fill_from=1)
        tok = direct.stats_final(self, s, h, SA)
        s.wait_ds(tok)
        s("s_barrier")
        for n in sorted(pref):
            if n != 37:
                for x in pref[n]:
                    s(x)

    def check_order(self, s):
        done = set()
        for ins in s:
            if ins.meta.get("checked"):
                done.add(ins.meta["checked"])
            k = ins.meta.get("dep")
            if k is not None:
                assert k in done, "load issued before its dependency was checked: %s %s" % (k, ins.text)

    def check_weights(self, s):
        if self.opts.get("nob"):
            return
        cur = {}
        for ins in s:
            if ins.meta.get("bname"):
                cur[ins.ops[0]] = ins.meta["bname"]
            if ins.meta.get("bname2"):
                cur[ins.meta["bname2"][1]] = ins.meta["bname2"][0]
            if ins.cls == "mfma" and ins.meta.get("need"):
                reg, name = ins.meta["need"]
                assert cur.get(reg) == name, "weights %s expected in %s, found %s" % (name, reg, cur.get(reg))

    def gen(self):
        s = Stream()
        self.urgent, self.bulk, self.trickle = deque(), deque(), deque()
        o = self.opts
        if self.direct:
            import direct
            if self.prof:
                s("s_memrealtime s[100:101]")
                s("s_memtime s[98:99]")
                s("s_waitcnt lgkmcnt(0)")
                s("s_mov_b32 s94, s100")
                s("s_mov_b32 s68, s98")
            direct.entry(self, s, self.codepf(sW))
            self.pro_rest(s)
        else:
            self.prologue(s)
        if self.prof and self.opts.get("single", "1") != "1":
            s("s_memrealtime s[100:101]")
            s("s_waitcnt lgkmcnt(0)")
            s("s_mov_b32 s94, s100")
        self.ts(s, "start")
        if self.prof == 5:
            for k in range(2, 24):
                s("s_mov_b32 s%d, 0" % (sTS + k))
        s("""
        s_lshl_b32 s{kw1}, s{w}, 10
        s_add_u32 s{a1hw}, s{a1h}, s{kw1}
        s_add_u32 s{a1mw}, s{a1m}, s{kw1}
        s_add_u32 s{a3w}, s{a3}, s{kw1}
        """.format(kw1=sKw1, w=sW, a1hw=sA1hw, a1h=sA1h, a1mw=sA1mw, a1m=sA1m, a3w=sA3w, a3=sA3))
        A = {}
        single = self.opts.get("single", "1") == "1"
        if single:
            ncpf = 0 if self.opts.get("nocpf") == "1" else int(self.opts.get("cpf", 2))
            def pack_flag(t, base):
                t("s_lshr_b32 s58, s2, 3")
                t("s_lshl_b32 s58, s58, 7")
                t("s_and_b32 s59, s2, 7")
                t("s_lshl_b32 s59, s59, 2")
                t("s_add_u32 s58, s58, s59")
                t("s_add_u32 s%d, s58, %d" % (sT3, base))
            self.prologue2(s)
            s("s_add_u32 s%d, s95, 1" % sTag)
            s("v_mov_b32 v%d, s%d" % (vOne, sTag))
            self.flag_vec(s)
            if self.direct:
                s.extend(self.second_batch)
                self.pack_flag = pack_flag
                s("v_mov_b32 v%d, v%d" % (vFlag, self.vflag_tmp))
                self.late_tok0 = direct.late(self, s, (3, 4, 58, 59))
                self.f2_first = Stream()
                self.f2_first.wait_vm(self.late_tok0)
                self.f2_first("s_barrier")
                pack_flag(self.f2_first, PFL2)
                self.f2_first("buffer_store_dword v%d, v%d, s[8:11], s%d offen sc1" % (vOne, vFlag, sT3))
                if self.local:
                    s("s_getreg_b32 s%d, hwreg(HW_REG_XCC_ID, 0, 4)" % sXcc)
                    s("s_lshl_b32 s58, s%d, 4" % sTag)
                    s("s_or_b32 s58, s58, s%d" % sXcc)
                    s("v_mov_b32 v60, s58")
                    s("s_and_b32 s58, s2, 7")
                    s("s_lshl_b32 s58, s58, 7")
                    s("s_lshr_b32 s59, s2, 3")
                    s("s_lshl_b32 s59, s59, 2")
                    s("s_add_u32 s58, s58, s59")
                    s("s_add_u32 s58, s58, %d" % PXC)
                    s("buffer_store_dword v60, v%d, s[8:11], s58 offen sc1" % vFlag)
            else:
                self.global_issue(s)
                self.global_check(s)
            self.ts(s, "gsync")
        else:
            s("s_mov_b32 s%d, 1" % sTag)
        if single and not self.direct:
            s("v_and_b32 v68, 15, v%d" % vLane)
            s("v_lshlrev_b32 v68, 2, v68")
            s("v_lshrrev_b32 v69, 4, v%d" % vLane)
            s("v_lshl_add_u32 v68, v69, 8, v68")
        def cs_loads(cg, base, r0):
            s("s_lshl_b32 s58, s%d, 2" % cg)
            s("s_add_u32 s58, s58, s%d" % sW)
            s("s_mul_i32 s59, s58, 3072")
            s("s_add_u32 s59, s59, %d" % base)
            for k in range(3):
                if single:
                    for j in range(4):
                        s("buffer_load_dword v%d, v68, s[8:11], s59 offen offset:%d" % (r0 + 4 * k + j, k * 1024 + j * 64))
                else:
                    s("buffer_load_dwordx4 %s, v%d, s[8:11], s59 offen offset:%d" % (V(r0 + 4 * k, 4), vL16, k * 1024))
        if self.direct:
            A[(1, 0, 0)] = self.A_first
            A[(1, 0, 1)] = direct.groupsA_raw(self, 1)
        else:
            A[(1, 0, 0)] = self.groupsA_lds(1, 0, 0)
            A[(1, 0, 1)] = self.groupsA_lds(1, 0, 1)
        if self.direct:
            pass
        elif single:
            head, tail = self.split_tile(A[(1, 0, 0)])
            for g in head:
                s.extend(g)
            cs_loads(sCG, CSQ, RING + 32)
            nq = int(self.opts.get("nq0", 24))
            for g in self.groupsB(Bx, sBQ, 0, nq):
                s.extend(g)
            self.pack_flag = pack_flag
            if self.opts.get("latefirst", "1") == "1":
                self.late_tok0 = pack.emit_late(s, sW, vL16, (3, 4, 58, 59), DV)
            self.first_tail = tail
            self.q_rest = self.groupsB(Bx, sBQ, nq, 48)
            self.colsums(s, range(3), r0=RING + 32)
        else:
            for g in A[(1, 0, 0)][0]:
                s.extend(g)
            cs_loads(sCG, CSQ, 44)
            cs_loads(sCG3, CSG, 56)
            for g in self.groupsB(Bx, sBQ, 0, 24):
                s.extend(g)
            self.prologue2(s)
            for g in self.groupsB(Bx, sBQ, 24, 30):
                s.extend(g)
            self.colsums(s, range(6))
            self.bulk.extend(self.groupsB(Bx, sBQ, 30, 48))
            self.burst(s, 18)
            self.urgent.extend(A[(1, 0, 1)][0])
        s("s_xor_b32 s%d, s%d, 16384" % (sA2b, sA2))
        self.cs_loads = cs_loads
        self.ts(s, "prolog")
        tok = {}
        U = lambda gs: (lambda: self.urgent.extend(gs))
        def until_issued(gs):
            while any(g is x for g in gs for x in self.urgent):
                s.extend(self.urgent.popleft())
        tails = {(1, 0, 0): [], (1, 0, 1): []}
        for p in range(2):
            last = (p == 1)
            at = {}
            self.urgent.extend(tails[(1, p, 0)])
            if p == 0 and self.direct:
                head1 = list(A[(1, 0, 1)][0])
            elif p == 0 and single:
                q = list(self.q_rest)
                self.urgent.extend(q[:6] + list(self.first_tail[:3]) + q[6:15] + list(self.first_tail[3:]) + q[15:])
                self.urgent.extend(A[(1, 0, 1)][0])
                head1 = list(A[(1, 0, 1)][0])
                if self.opts.get("latefirst", "1") == "1":
                    f2e = Stream()
                    f2e.wait_vm(self.late_tok0)
                    f2e("s_barrier")
                    self.pack_flag(f2e, PFL2)
                    f2e("buffer_store_dword v%d, v%d, s[8:11], s%d offen sc1" % (vOne, vFlag, sT3))
                    at[int(self.opts.get("f2e", 64))] = [f2e]
            elif p == 0:
                self.bulk.extend(self.groupsB(By, sBW, 0, 16))
                self.bulk.extend(self.groupsB(By, sBD, 16, 44))
                head1 = []
            else:
                self.bulk.extend(self.groupsB(By, sBW, 0, 16))
                a, b, c = self.evs("e1E", (48, 96, 127))
                at[a] = [self.ev_sig(4, p - 1, 1, tok[(4, p - 1, 1)])]
                at[b] = [self.ev_poll_issue(1, p, 1)]
                A[(1, p, 1)] = self.groupsA_lds(1, p, 1)
                head1, tails[(1, p, 1)] = self.split_tile(A[(1, p, 1)])
                at[c] = [self.ev_poll_check(1, p, 1), U(head1)]
            if p == 1:
                self.trickle.extend(self.pf(sPfG, 2048 * i) for i in range(self.pf_n["G"]))
            if p == 0 and self.direct:
                direct.first_segment(self, s)
                if self.opts.get("dbgq") == "1":
                    s("s_lshl_b32 s58, s2, 2")
                    s("s_add_u32 s58, s58, s%d" % sW)
                    s("s_mul_i32 s58, s58, %d" % (64 * KB))
                    s("s_add_u32 s58, s58, 0x4000000")
                    for f in range(48):
                        s("buffer_store_dwordx4 %s, v%d, s[8:11], s58 offen" % (Bx(f), vL16))
                        s("s_add_u32 s58, s58, 1024")
                    s("s_lshl_b32 s59, s%d, 14" % sW)
                    s("v_add_u32 v172, s59, v%d" % vL16)
                    for k in range(16):
                        s("ds_read_b128 v[176:179], v172 offset:%d" % (k * 1024))
                        s("buffer_store_dwordx4 v[176:179], v%d, s[8:11], s58 offen" % vL16)
                        s("s_add_u32 s58, s58, 1024")
                        s("s_nop 4")
                for g in head1[:6]:
                    s.extend(g)
                self.urgent.extend(head1[6:])
            else:
                self.seg13(s, 1, p, 0, A[(1, p, 0)], at, urate=(2 if (p == 0 and single) else None))
            self.ts(s, "mf1E.%d" % p)
            if p == 0 and single:
                if self.direct:
                    late_tok = self.late_tok0
                    self.stat_tok = Tok("unused")
                    pref = self.epi_pref(1, 0)
                    for n in sorted(pref):
                        if n != 37:
                            for x in pref[n]:
                                s(x)
                elif self.opts.get("latefirst", "1") == "1":
                    late_tok = self.late_tok0
                else:
                    late_tok = pack.emit_late(s, sW, vL16, (3, 4, 58, 59), DV)
                if self.local:
                    if not self.direct:
                        s("s_getreg_b32 s%d, hwreg(HW_REG_XCC_ID, 0, 4)" % sXcc)
                    pi, pc = self.purity()
                    s.extend(pi)
                    self.pur_check = pc
                self.ts(s, "packed")
            e = Stream(); tok[(1, p, 0)] = self.epi1(e, p, 0)
            self.weave(s, e, every=int(self.opts.get('wv', 10)))
            until_issued(head1)
            if p == 0 and self.local:
                s.extend(self.pur_check)
            self.ts(s, "s1E.%d" % p)
            self.urgent.extend(tails[(1, p, 1)])
            gA = self.groupsA24(2, p, 0)
            a, b, c = self.evs("e1O", (44, 96, 127))
            at = {a: [self.ev_sig(1, p, 0, tok[(1, p, 0)])], b: [self.ev_poll_issue(2, p, 0)],
                  c: [self.ev_poll_check(2, p, 0), U(gA)]}
            if p == 0 and single:
                f2 = Stream()
                f2.wait_vm(late_tok)
                f2("s_barrier")
                self.pack_flag(f2, PFL2)
                f2("buffer_store_dword v%d, v%d, s[8:11], s%d offen sc1" % (vOne, vFlag, sT3))
                g2 = Stream()
                a0, a1, a2 = RING + 16, RING + 17, RING + 18
                g2("v_lshrrev_b32 v%d, 4, v%d" % (a1, vL16))
                g2("s_lshl_b32 s58, s%d, 2" % sCG)
                g2("s_add_u32 s58, s58, %d" % (96 if self.direct else 136))
                g2("v_add_u32 v%d, s58, v%d" % (a0, a1))
                g2("s_lshl_b32 s58, s%d, 4" % sCG3)
                g2("s_sub_u32 s58, s58, 4")
                g2("v_add_u32 v%d, s58, v%d" % (a2, a1))
                g2("v_cmp_lt_u32 vcc, 3, v%d" % a1)
                g2("v_cndmask_b32 v%d, v%d, v%d, vcc" % (a0, a0, a2))
                g2("s_mul_i32 s58, s%d, 11" % sCG)
                g2("s_add_u32 s58, s58, %d" % (108 if self.direct else 148))
                g2("v_add_u32 v%d, s58, v%d" % (a2, a1))
                g2("v_cmp_lt_u32 vcc, 19, v%d" % a1)
                g2("v_cndmask_b32 v%d, v%d, v%d, vcc" % (a0, a0, a2))
                if self.direct:
                    g2("s_mul_i32 s58, s%d, 12" % sCG)
                    g2("s_sub_u32 s58, s58, 31")
                    g2("v_add_u32 v%d, s58, v%d" % (a2, a1))
                    g2("v_cmp_lt_u32 vcc, 30, v%d" % a1)
                    g2("v_cndmask_b32 v%d, v%d, v%d, vcc" % (a0, a0, a2))
                g2("v_lshrrev_b32 v%d, 3, v%d" % (a2, a0))
                g2("v_and_b32 v%d, 7, v%d" % (a0, a0))
                g2("v_lshlrev_b32 v%d, 2, v%d" % (a0, a0))
                g2("v_lshl_add_u32 v%d, v%d, 7, v%d" % (a0, a2, a0))
                g2("s_cmp_eq_u32 s%d, 1" % sW)
                g2("s_cselect_b32 s58, %d, 0" % (43 if self.direct else 31))
                g2("s_cselect_b32 s4, %s, 0" % ("-1" if self.direct else "0x7fffffff"))
                g2("s_cselect_b32 s5, %s, 0" % ("0x7ff" if self.direct else "0"))
                g2("v_cmp_gt_u32 vcc, s58, v%d" % a1)
                g2("v_mov_b32 v%d, 0x7ffffff0" % a2)
                g2("v_cndmask_b32 v%d, v%d, v%d, vcc" % (a0, a2, a0))
                g2("s_mov_b32 s%d, %d" % (sPoll2, PFL2))
                g2("buffer_load_dword v%d, v%d, s[8:11], s%d offen sc1" % (RING + 12, a0, sPoll2))
                c2 = self.global_check2()
                csl = Stream()
                csl("v_and_b32 v%d, 0xf0, v%d" % (DV + 12, vL16))
                csl("v_lshrrev_b32 v%d, 2, v%d" % (DV + 12, DV + 12))
                csl("v_lshrrev_b32 v%d, 8, v%d" % (DV + 13, vL16))
                csl("v_lshl_add_u32 v%d, v%d, 8, v%d" % (DV + 12, DV + 13, DV + 12))
                self.cs_loads_to(csl, sCG3, CSG, DV, DV + 12)
                lf = self.opts.get("latefirst", "1") == "1"
                fa, fb, fc = self.evs("f2", (40, 20, 56) if lf else (40, 88, 125))
                if not lf:
                    at.setdefault(fa, []).append(f2)
                at.setdefault(fb, []).append(g2)
                g_early0 = lf and self.opts.get("prog0", "1") == "1"
                def after_flag2():
                    self.bulk.extend(self.groupsB(By, sBW, 0, 16))
                    if g_early0:
                        self.bulk.extend(self.progressive(self.groupsB(Bx, sBG, 0, 48), 8))
                at.setdefault(fc, []).extend([c2, after_flag2, csl])
                self.cs_reduce = Stream()
                self.colsums(self.cs_reduce, range(3, 6), r0=DV, first=False)
            early_g = (p == 1 or not single) and self.opts.get("prog", "1") == "1"
            early_g0 = p == 0 and single and self.opts.get("latefirst", "1") == "1" and self.opts.get("prog0", "1") == "1"
            if early_g:
                while self.bulk:
                    s.extend(self.bulk.popleft())
                self.bulk.extend(self.progressive(self.groupsB(Bx, sBG, 0, 48), 8))
            self.seg13(s, 1, p, 1, A[(1, p, 1)], at, raw_stats=(p == 0 and self.direct))
            self.ts(s, "mf1O.%d" % p)
            if early_g:
                self.clear_min()
            elif early_g0:
                self.clear_min()
                while self.bulk and any(x.meta.get("bname") == "W" for x in self.bulk[0]):
                    s.extend(self.bulk.popleft())
            else:
                while self.bulk:
                    s.extend(self.bulk.popleft())
                self.bulk.extend(self.groupsB(Bx, sBG, 0, 48))
            e = Stream(); tok[(1, p, 1)] = self.epi1(e, p, 1)
            self.weave(s, e, every=int(self.opts.get('wv', 10)))
            self.flush_urgent(s)
            self.ts(s, "s1O.%d" % p)
            if p == 0 and single:
                s.extend(self.cs_reduce)
            self.seg24_mf(s, 2, p, 0)
            self.fs(s, "MF")
            bsel = lambda key, d0, d1: int(self.opts.get(key + str(p), d0 if p == 0 and single else d1))
            self.hold = True
            mid = Stream()
            mid.extend(self.ev_sig(1, p, 1, tok[(1, p, 1)]))
            e = Stream(); tok[(2, p, 0)] = self.epi24(e, 2, p, 0, mid=mid)
            self.weave(s, e, every=int(self.opts.get('wv', 10)))
            s.extend(self.ev_poll_issue(2, p, 1))
            self.fs(s, "EPI")
            self.hold = False
            if self.opts.get("ord2", "0") == "1":
                s.extend(self.ev_poll_check(2, p, 1))
                self.ts(s, "s2E.%d" % p)
                self.urgent.extend(self.groupsA24(2, p, 1))
                self.flush_urgent(s)
                self.fs(s, "Aiss")
                self.burst(s, bsel("b2F", 6, 0))
                s.extend(self.ev_sig(2, p, 0, tok[(2, p, 0)]))
                self.fs(s, "SIG2")
                self.p3_in_mf = int(self.opts.get("i3E", 2))
                if self.p3_in_mf < 0:
                    s.extend(self.ev_poll_issue(3, p, 0, alt=True))
                self.burst(s, bsel("b2O", 8, 0))
            else:
                self.burst(s, bsel("b2F", 6, 0))
                self.fs(s, "PI")
                s.extend(self.ev_sig(2, p, 0, tok[(2, p, 0)]))
                s.extend(self.ev_poll_issue(3, p, 0, alt=True))
                self.fs(s, "SIG2")
                s.extend(self.ev_poll_check(2, p, 1))
                self.ts(s, "s2E.%d" % p)
                self.urgent.extend(self.groupsA24(2, p, 1))
                self.flush_urgent(s)
                self.burst(s, bsel("b2O", 8, 0))
            A[(3, p, 0)] = self.groupsA_lds(3, p, 0)
            head3, tail3 = self.split_tile(A[(3, p, 0)])
            c3 = int(self.opts.get("c3E", 26 if self.opts.get("ord2", "0") == "1" else 0))
            if c3 < 0:
                s.extend(self.ev_poll_check(3, p, 0, alt=True))
                self.urgent.extend(head3)
                self.flush_urgent(s)
                self.seg24_mf(s, 2, p, 1)
            else:
                at3 = {c3: [self.ev_poll_check(3, p, 0, alt=True), U(head3)]}
                if self.opts.get("ord2", "0") == "1" and self.p3_in_mf >= 0:
                    at3.setdefault(self.p3_in_mf, []).insert(0, self.ev_poll_issue(3, p, 0, alt=True))
                self.seg24_mf(s, 2, p, 1, at=at3)
            self.fs(s, "MF")
            self.bulk.extend(self.groupsB(By, sBD, 0, 44 if (p == 0 and single) else 16))
            e = Stream(); tok[(2, p, 1)] = self.epi24(e, 2, p, 1)
            self.weave(s, e, every=5)
            self.fs(s, "EPI")
            until_issued(head3)
            self.ts(s, "s2O.%d" % p)
            self.urgent.extend(tail3)
            A[(3, p, 1)] = self.groupsA_lds(3, p, 1)
            head3, tail3 = self.split_tile(A[(3, p, 1)])
            a, b, c = self.evs("e3E", (48, 108, 150))
            at = {a: [self.ev_sig(2, p, 1, tok[(2, p, 1)])], b: [self.ev_poll_issue(3, p, 1)],
                  c: [self.ev_poll_check(3, p, 1), U(head3)]}
            if not last:
                self.trickle.extend(self.pf(sPfQ, 2048 * i) for i in range(self.pf_n["Q"]))
            self.seg13(s, 3, p, 0, A[(3, p, 0)], at)
            self.ts(s, "mf3E.%d" % p)
            e = Stream(); tok[(3, p, 0)] = self.epi3(e, p, 0)
            self.weave(s, e, every=int(self.opts.get('wv3', 12)))
            until_issued(head3)
            self.ts(s, "s3E.%d" % p)
            self.urgent.extend(tail3)
            gA = self.groupsA24(4, p, 0)
            a, b, c = self.evs("e3O", (64, 120, 160))
            at = {a: [self.ev_sig(3, p, 0, tok[(3, p, 0)])], b: [self.ev_poll_issue(4, p, 0)],
                  c: [self.ev_poll_check(4, p, 0), U(gA)]}
            if not last:
                self.trickle.extend(self.pf(sPfW, 2048 * i) for i in range(self.pf_n["W"]))
            early_q = (not last) and self.opts.get("prog", "1") == "1"
            if early_q:
                self.bulk.extend(self.progressive(self.groupsB(Bx, sBQ, 0, 48), 12))
            self.seg13(s, 3, p, 1, A[(3, p, 1)], at)
            self.ts(s, "mf3O.%d" % p)
            self.flush_urgent(s)
            if early_q:
                self.clear_min()
                while self.bulk and not any(x.meta.get("bname") == "Q" for x in self.bulk[0]):
                    s.extend(self.bulk.popleft())
            else:
                while self.bulk:
                    s.extend(self.bulk.popleft())
                if not last:
                    self.bulk.extend(self.groupsB(Bx, sBQ, 0, 48))
            e = Stream(); tok[(3, p, 1)] = self.epi3(e, p, 1)
            self.weave(s, e, every=int(self.opts.get('wv3', 12)))
            self.ts(s, "s3O.%d" % p)
            a = int(self.opts.get("e4E", 60))
            at = {a: [self.ev_sig(3, p, 1, tok[(3, p, 1)])]}
            at.setdefault(int(self.opts.get("h4", 62)), []).append(self.set_hold(True))
            self.seg24_mf(s, 4, p, 0, at=at)
            self.fs(s, "MF")
            if last:
                s.extend(self.ev_poll_issue(4, p, 1))
            e = Stream(); tok[(4, p, 0)] = self.epi24(e, 4, p, 0)
            self.weave(s, e, every=int(self.opts.get('wv', 10)))
            ord4 = self.opts.get("ord4", "0") == "1"
            if not last:
                s.extend(self.ev_poll_issue(4, p, 1))
                if not ord4:
                    s.extend(self.ev_sig(4, p, 0, tok[(4, p, 0)]))
                    s.extend(self.ev_poll_issue(1, p + 1, 0, alt=True))
            self.fs(s, "EPI")
            s.extend(self.ev_poll_check(4, p, 1))
            self.hold = False
            self.ts(s, "s4E.%d" % p)
            self.urgent.extend(self.groupsA24(4, p, 1))
            self.flush_urgent(s)
            i1 = int(self.opts.get("i1E", 20))
            if ord4 and not last:
                s.extend(self.ev_sig(4, p, 0, tok[(4, p, 0)]))
                if i1 < 0:
                    s.extend(self.ev_poll_issue(1, p + 1, 0, alt=True))
            at = {}
            head1 = []
            if not last:
                A[(1, p + 1, 0)] = self.groupsA_lds(1, p + 1, 0)
                head1, tails[(1, p + 1, 0)] = self.split_tile(A[(1, p + 1, 0)])
                at = {int(self.opts.get("c1E", 60 if ord4 else 8)): [self.ev_poll_check(1, p + 1, 0, alt=True), U(head1)]}
                if ord4 and i1 >= 0:
                    at.setdefault(i1, []).insert(0, self.ev_poll_issue(1, p + 1, 0, alt=True))
            self.burst(s, int(self.opts.get("b4O", 0)))
            self.seg24_mf(s, 4, p, 1, at=at)
            e = Stream(); tok[(4, p, 1)] = self.epi24(e, 4, p, 1)
            self.weave(s, e, every=5)
            until_issued(head1)
            self.ts(s, "s4O.%d" % p)
        if single:
            s("s_cmp_eq_u32 s2, 0")
            s("s_cbranch_scc0 M_noep")
            s("s_mov_b32 s36, %d" % EPOCH)
            s("buffer_store_dword v%d, v%d, s[8:11], s36 offen" % (vOne, vFlag))
            s("M_noep:")
        if self.prof == 4:
            s = self.resolve_marks(s)
        if self.prof:
            s("s_lshl_b32 s36, s2, 2")
            s("s_add_u32 s36, s36, s%d" % sW)
            s("s_lshl_b32 s36, s36, 8")
            s("s_add_u32 s36, s36, %d" % 0x3000000)
            s("s_memrealtime s[100:101]")
            s("s_waitcnt lgkmcnt(0)")
            s("s_mov_b32 s95, s100")
            s("s_mov_b64 exec, 1")
            for k in (94, 95):
                s("v_mov_b32 v20, s%d" % k)
                s("buffer_store_dword v20, off, s[8:11], s36 offset:%d" % (4 * (62 + k - 94)))
            if self.prof == 2 and self.local:
                for k, r in enumerate((sImp, sXcc)):
                    s("v_mov_b32 v20, s%d" % r)
                    s("buffer_store_dword v20, off, s[8:11], s36 offset:%d" % (4 * (8 + k)))
            if self.prof == 7:
                for k in range(6):
                    s("v_mov_b32 v20, s%d" % (80 + k))
                    s("buffer_store_dword v20, off, s[8:11], s36 offset:%d" % (4 * (8 + k)))
            if self.prof == 5:
                for k in range(16):
                    s("v_mov_b32 v20, s%d" % (sTS + 2 + k))
                    s("buffer_store_dword v20, off, s[8:11], s36 offset:%d" % (4 * (8 + k)))
            for k in range(self.nts):
                s("v_mov_b32 v20, s%d" % (sTS + (2 * k if self.prof in (3, 8) else k)))
                s("buffer_store_dword v20, off, s[8:11], s36 offset:%d" % (4 * k))
            s("s_mov_b64 exec, -1")
        s("s_waitcnt vmcnt(0)")
        self.check_weights(s)
        self.check_order(s)
        pol = self.opts.get("ntA")
        if pol:
            for ins in s:
                if ins.meta.get("dep") is not None and " sc1" in ins.text:
                    ins.text = ins.text.replace(" sc1", " sc1 nt" if pol == "1" else {"2": " nt", "3": ""}[pol])
        if self.opts.get("ntS") == "1":
            for ins in s:
                if ins.cls == "vm_st" and "dwordx4" in ins.text and " sc1" in ins.text:
                    ins.text = ins.text.replace(" sc1", " sc1 nt")
        lines = finalize(s, verbose=False)
        lines.append("M_end:")
        lines.append("  s_endpgm")
        lines += self.slow
        lines.append("M_last:")
        lines.append("  s_endpgm")
        return lines


def gen_main(opts):
    m = Main(opts)
    lines = m.gen()
    if m.prof:
        lines.insert(0, "; timestamps: " + " ".join(m.tsnames))
    return lines, LDS_BYTES
```

```python
from asmlib import *
from layout import *
from collections import deque
import pack

REG = [0, 65536]
MISC = 131072
STP = MISC
STF = MISC + 16384
CSL = STF + 2048
BIAS = CSL + 2048
JUNK = BIAS + 3072
LDS_BYTES = 163840
SCR = [65536, 98304]

vLane, vL16, vLO, vOst, vH1, vH2, vRed, vPollA, vPollB, vOut = 1, 2, 3, 4, 5, 6, 7, 8, 9, 10
vStatR, vStatW, vStI, vStV, vCs, vCsV, vB1, vOne, vP = 11, 12, 13, 14, 15, 16, 17, 18, 19
ACC = 20
FR = 68
RING = 88
TMP = 136
RES = 140
DV = 144

sW, sRB, sCG, sRB3, sCG3 = 16, 17, 18, 19, 20
sA1h, sA1m, sA3, sKw = 21, 22, 23, 24
sSt1, sSt3 = 25, 26
sM2, sM4 = 28, 30
sT, sT2, sT3 = 32, 33, 34
sOdd = 36
sOnes = 38
sCnt = 40
sBQ, sBW, sBG, sBD = 41, 42, 43, 44
sOst, sA2, sRes, sHst = 45, 46, 47, 48
sA4 = 64
sF1, sF3 = 50, 51
sP2, sP3, sP4, sP1a = 52, 53, 54, 55
sOutO = 56
sStO = 57
sK = 96
sTB = 49
sPoll = 35
sA1hw, sA1mw, sA3w, sKw1 = 63, 66, 67, 27
vPollH = 0
vFlag = 1
vL128 = 10
sPfQ, sPfW, sPfG, sPfD = 90, 91, 92, 93
sM16 = 100
sPoll2 = 62
vP2 = 139
sPur = 5
sImp = 7
sXcc = 6
sTag = 61
sA2b = 60
sE, sE2 = 58, 59
sT4 = 3
sTS = 68

LOG2E = 1.4426950408889634
import struct
def fbits(x): return struct.unpack("<I", struct.pack("<f", x))[0]

POLL_LIMIT = 1000000


def Bx(f):
    return "a[%d:%d]" % (4 * f, 4 * f + 3)
def By(f):
    if f < 16:
        return "a[%d:%d]" % (192 + 4 * f, 195 + 4 * f)
    return "v[%d:%d]" % (DV + 4 * (f - 16), DV + 4 * (f - 16) + 3)
def V(n, c=1):
    return "v%d" % n if c == 1 else "v[%d:%d]" % (n, n + c - 1)

def flag_off(p, phase, h):
    return FL + ((p * 4 + phase) * 2 + h) * 32 * 256


class Main:
    def __init__(self, opts):
        self.opts = opts
        self.prof = int(opts.get("prof", 0))
        self.local = opts.get("local", "1") == "1" and opts.get("single", "1") == "1"
        self.direct = opts.get("direct", "0") == "1" and opts.get("single", "1") == "1"
        self.slow = []
        self.npoll = 0
        self.nts = 0
        self.nimp = 0
        self.tsnames5 = []
        self.fine_on = False
        self.tsnames = []

    def ts(self, s, name):
        if self.prof == 6:
            if name in ("start", "prolog") or name.startswith(("s1O", "s2O", "s3E", "s3O", "s4O")):
                k = self.nts
                self.nts += 2
                self.tsnames += [name, name + ".rt"]
                s("s_waitcnt lgkmcnt(0)")
                s("s_memtime s[0:1]")
                s("s_waitcnt lgkmcnt(0)")
                s("s_mov_b32 s%d, s0" % (sTS + k))
                s("s_memrealtime s[0:1]")
                s("s_waitcnt lgkmcnt(0)")
                s("s_mov_b32 s%d, s0" % (sTS + k + 1))
            return
        if self.prof == 4:
            self.mark(s, "seg:" + name)
            return
        if self.prof == 3:
            f = self.opts.get("fine", "").split(",")
            if name == f[0]:
                self.fine_on = True
                self.fs(s, "begin:" + name)
            elif name == f[-1] and self.fine_on:
                self.fs(s, "end:" + name)
                self.fine_on = False
            return
        if self.prof == 8:
            self.rt(s, "T" + name.replace(".", "") + "." + name.split(".")[-1])
            return
        if not self.prof or (self.prof in (2, 5, 7) and name not in ("start", "s4O.1", "s4.1.1")):
            return
        if name in ("mf3O.0", "mf1O.0", "mf3E.0", "mf1O.1"):
            return
        if self.direct and name in ("prolog", "mf1E.1", "s1E.1", "s2E.1", "mf3E.1", "s3E.1", "mf3O.1", "s4E.1", "s2E.0", "s4E.0"):
            return
        if name == "start" and self.opts.get("single", "1") == "1":
            self.tsnames += ["entry"]
            self.nts += 1
        k = self.nts
        self.nts += 1
        self.tsnames.append(name)
        assert sTS + k < (85 if self.direct else 94), k
        s("s_waitcnt lgkmcnt(0)")
        s("s_memtime s[0:1]")
        s("s_waitcnt lgkmcnt(0)")
        s("s_mov_b32 s%d, s0" % (sTS + k))

    def fs(self, s, name):
        if self.prof == 4 and self.fine_on and not name.startswith("mf"):
            k = self.nts
            if sTS + k >= 94:
                return
            self.nts += 1
            self.tsnames.append(name)
            s("s_waitcnt lgkmcnt(0)")
            s("s_memtime s[0:1]")
            s("s_waitcnt lgkmcnt(0)")
            s("s_mov_b32 s%d, s0" % (sTS + k)).meta["glue"] = False
            return
        if self.prof != 3 or not self.fine_on:
            return
        k = self.nts
        lim = 84 if self.direct else (90 if self.opts.get("pf") == "1" else 94)
        if sTS + 2 * k + 1 >= (lim if name.startswith("end:") else lim - 2):
            return
        self.nts += 1
        self.tsnames.append(name)
        s.append(Ins("s_memtime s[%d:%d]" % (sTS + 2 * k, sTS + 2 * k + 1), async_=True))

    def pause(self, s, n):
        i = Ins("@comment")
        i.meta["c"] = "pause"
        i.meta["pause"] = n
        s.append(i)

    def rt(self, s, name):
        if self.prof == 8 and name.endswith(self.opts.get("rtp", ".1")) and name.split(".")[0] in self.opts.get("rts", "sig1O,chk2O,sig2E,chk3E,sig2O,chk3O,sig3O,chk4O,sig4E,chk1E").split(","):
            k = self.nts
            if sTS + 2 * k + 1 < 94:
                self.nts += 1
                self.tsnames.append(name)
                i = Ins("s_memtime s[2:3]", async_=True)
                i.text = "s_memrealtime s[%d:%d]" % (sTS + 2 * k, sTS + 2 * k + 1)
                s.append(i)

    def stm(self, phase):
        if str(phase) in self.opts.get("plain", "") and self.local:
            return ""
        return " sc1"

    def purity(self):
        a, d = RING + 22, RING + 23
        i = Stream()
        i("v_lshrrev_b32 v%d, 2, v%d" % (a, vL16))
        i("s_and_b32 s58, s2, 7")
        i("s_lshl_b32 s58, s58, 7")
        i("s_add_u32 s%d, s58, %d" % (sPur, PXC))
        i("buffer_load_dword v%d, v%d, s[8:11], s%d offen sc1" % (d, a, sPur))
        n = self.npoll
        self.npoll += 1
        c = Stream()
        c("s_lshl_b32 s58, s%d, 4" % sTag)
        c("v_xor_b32 v%d, s58, v%d" % (d, d))
        c("v_cmp_le_u32 vcc, 16, v%d" % d)
        c("s_mov_b32 vcc_hi, 0")
        c("s_cbranch_vccnz SLOW_%d" % n).meta["glue"] = True
        c("BACK_%d:" % n)
        c("v_cmp_ne_u32 vcc, s%d, v%d" % (sXcc, d))
        c("s_cmp_lg_u32 vcc_lo, 0")
        c("s_cselect_b32 s58, 1, 0")
        if self.opts.get("impure") == "1":
            c("s_mov_b32 s58, 1")
        c("s_cmp_eq_u32 s%d, 0" % sW)
        c("s_cselect_b32 s%d, s58, 0" % sImp)
        self.slow += ["SLOW_%d:" % n, "  s_mov_b32 s%d, 0" % sCnt, "SPIN_%d:" % n,
                      "  buffer_load_dword v%d, v%d, s[8:11], s%d offen sc1" % (d, a, sPur), "  s_waitcnt vmcnt(0)",
                      "  v_xor_b32 v%d, s58, v%d" % (d, d), "  v_cmp_le_u32 vcc, 16, v%d" % d, "  s_nop 1", "  s_mov_b32 vcc_hi, 0",
                      "  s_cbranch_vccz BACK_%d" % n, "  s_add_u32 s%d, s%d, 1" % (sCnt, sCnt), "  s_cmp_lt_u32 s%d, %d" % (sCnt, POLL_LIMIT),
                      "  s_cbranch_scc1 SPIN_%d" % n, "  s_branch BACK_%d" % n]
        return i, c

    def mark(self, s, name):
        if self.prof == 4:
            i = Ins("@mark")
            i.meta["name"] = name
            s.append(i)

    def resolve_marks(self, s):
        out = Stream()
        f = self.opts.get("fine", "").split(",")
        on = False
        for ins in s:
            if ins.text == "@mark":
                nm = ins.meta["name"]
                if nm == "seg:" + f[0]:
                    on = True
                if on and sTS + self.nts < 94:
                    k = self.nts
                    self.nts += 1
                    self.tsnames.append(nm)
                    out("s_waitcnt lgkmcnt(0)")
                    out("s_memtime s[0:1]")
                    out("s_waitcnt lgkmcnt(0)")
                    out("s_mov_b32 s%d, s0" % (sTS + k))
                if nm == "seg:" + f[-1]:
                    on = False
                continue
            out.append(ins)
        return out

    def poll_issue(self, s, soff, const, vaddr, alt=False):
        vd, sp = (vP2, sPoll2) if alt else (vP, sPoll)
        s("s_add_u32 s%d, s%d, %d" % (sp, soff, const))
        s("buffer_load_dword v%d, v%d, s[8:11], s%d offen sc1" % (vd, vaddr, sp))
        self.mark(s, "pollI")

    def poll_check(self, s, vaddr, mask, alt=False):
        vP, sPoll = (vP2, sPoll2) if alt else (globals()["vP"], globals()["sPoll"])
        n = self.npoll
        self.npoll += 1
        self.mark(s, "chkA")
        s("v_cmp_ne_u32 vcc, s%d, v%d" % (sTag, vP))
        if mask is not None:
            s("s_and_b64 vcc, vcc, s[%d:%d]" % (mask, mask + 1))
        s("s_cbranch_vccnz SLOW_%d" % n).meta["glue"] = True
        s("BACK_%d:" % n).meta["glue"] = True
        s("s_barrier")
        self.mark(s, "chkB")
        t = []
        t.append("SLOW_%d:" % n)
        if self.prof == 5:
            t.append("  s_memtime s[0:1]")
            t.append("  s_waitcnt lgkmcnt(0)")
            t.append("  s_mov_b32 s%d, s0" % (sTS + 2 + n))
            self.tsnames5.append("poll%d" % n)
        t.append("  s_mov_b32 s%d, 0" % sCnt)
        t.append("SPIN_%d:" % n)
        t.append("  buffer_load_dword v%d, v%d, s[8:11], s%d offen sc1" % (vP, vaddr, sPoll))
        t.append("  s_waitcnt vmcnt(0)")
        t.append("  v_cmp_ne_u32 vcc, s%d, v%d" % (sTag, vP))
        t.append("  s_nop 1")
        if mask is not None:
            t.append("  s_and_b64 vcc, vcc, s[%d:%d]" % (mask, mask + 1))
        t.append("  s_cbranch_vccz %s_%d" % ("DONE" if self.prof == 5 else "BACK", n))
        t.append("  s_add_u32 s%d, s%d, 1" % (sCnt, sCnt))
        t.append("  s_cmp_lt_u32 s%d, %d" % (sCnt, POLL_LIMIT))
        t.append("  s_cbranch_scc1 SPIN_%d" % n)
        t.append("  s_branch BACK_%d" % n)
        if self.prof == 5:
            t.append("DONE_%d:" % n)
            t.append("  s_memtime s[0:1]")
            t.append("  s_waitcnt lgkmcnt(0)")
            t.append("  s_sub_u32 s%d, s0, s%d" % (sTS + 2 + n, sTS + 2 + n))
            t.append("  s_branch BACK_%d" % n)
        self.slow += t

    def dep(self, phase, p, h):
        if phase == 1:
            return (sP1a, flag_off(p - 1, 3, h), vPollH, sM16)
        if phase == 2:
            return (sP2, flag_off(p, 0, h), vPollB, sM2)
        if phase == 3:
            return (sP3, flag_off(p, 1, h), vPollA, sM16)
        return (sP4, flag_off(p, 2, h), vPollB, sM4)

    def ev_poll_issue(self, phase, p, h, alt=False):
        t = Stream()
        so, c, va, m = self.dep(phase, p, h)
        self.poll_issue(t, so, c, va, alt)
        return t

    def ev_poll_check(self, phase, p, h, alt=False):
        t = Stream()
        so, c, va, m = self.dep(phase, p, h)
        self.poll_check(t, va, m, alt)
        [x for x in t if x.text == "s_barrier"][-1].meta["checked"] = (phase, p, h)
        self.rt(t, "chk%d%s.%d" % (phase, "EO"[h], p))
        return t

    def ev_sig(self, phase, p, h, tok):
        t = Stream()
        self.sig(t, tok, sF3 if phase == 3 else sF1, flag_off(p, phase - 1, h), local=(self.local and phase != 4))
        self.rt(t, "sig%d%s.%d" % (phase, "EO"[h], p))
        return t

    def sig(self, s, tok, soff, const, local=False):
        self.mark(s, "sigA")
        s.wait_vm(tok)
        self.mark(s, "sigW")
        s("s_barrier")
        self.mark(s, "sigB")
        s("s_add_u32 s%d, s%d, %d" % (sT3, soff, const))
        if not local:
            s("buffer_store_dword v%d, v%d, s[8:11], s%d offen sc1" % (vOne, vFlag, sT3))
            return
        n = self.nimp
        self.nimp += 1
        s("s_cmp_eq_u32 s%d, 1" % sImp)
        s("s_cbranch_scc1 IMP_%d" % n).meta["glue"] = True
        s("buffer_store_dword v%d, v%d, s[8:11], s%d offen" % (vOne, vFlag, sT3)).meta["glue"] = True
        s("IMPB_%d:" % n)
        self.slow += ["IMP_%d:" % n,
                      "  buffer_store_dword v%d, v%d, s[8:11], s%d offen sc1" % (vOne, vFlag, sT3), "  s_branch IMPB_%d" % n]

    def groupsB(self, reg, sbase, lo, hi):
        out = []
        if self.opts.get("nob") == "1" and sbase != sBQ:
            return out
        if self.opts.get("nob") == "2" and sbase == sBG:
            return out
        for f in range(lo, hi):
            g = Stream()
            if f == lo or f % 4 == 0:
                g("s_add_u32 s%d, s%d, %d" % (sTB, sbase, (f // 4) * 4096))
            g("buffer_load_dwordx4 %s, v%d, s[8:11], s%d offen offset:%d" % (reg(f), vL16, sTB, (f % 4) * 1024)).meta["bname"] = \
                {sBQ: "Q", sBW: "W", sBG: "G", sBD: "D"}[sbase]
            out.append(g)
        return out

    def pf(self, sbase, const=0):
        g = Stream()
        if self.opts.get("pf") != "1":
            return g
        g("s_mov_b32 m0, %d" % JUNK)
        g("s_add_u32 s%d, s%d, %d" % (sT, sbase, const))
        g("buffer_load_dword v%d, s[8:11], s%d offen lds" % (vL128, sT))
        return g

    def groupsA_lds(self, phase, p, h):
        if phase == 1:
            srcs = [(sA1hw, 0), (sA1mw, 0), (sA1mw, 16384)]
            xb, st, sst = XB[2 * p], ST[2 * p], sSt1
        else:
            srcs = [(sA3w, i * 16384) for i in range(4)]
            xb, st, sst = XB[2 * p + 1], ST[2 * p + 1], sSt3
        groups, ctok = [], []
        def stats_groups():
            tk = None
            for i in range(2):
                g = Stream()
                g("s_lshl_b32 s%d, s%d, 11" % (sT2, sW))
                g("s_add_u32 m0, s%d, %d" % (sT2, STP + h * 8192))
                g("s_add_u32 s%d, s%d, %d" % (sT, sst, st + h * 131072))
                tk = g.vm("buffer_load_dwordx4 v%d, s[8:11], s%d offen offset:%d sc1 lds" % (vL16, sT, i * 1024))
                if not (phase == 1 and p == 0):
                    g[-1].meta["dep"] = (phase, p, h)
                groups.append(g)
            return tk
        stok = None
        for c in range(4):
            tk = None
            for sub, (sr, cc) in enumerate(srcs):
                g = Stream()
                g("s_add_u32 m0, s%d, %d" % (sKw1, REG[h] + sub * 16384 + c * 4096))
                g("s_add_u32 s%d, s%d, %d" % (sT, sr, xb + h * MB + cc + c * 4096))
                tk = g.vm("buffer_load_dwordx4 v%d, s[8:11], s%d offen sc1 lds" % (vL16, sT))
                if not (phase == 1 and p == 0):
                    g[-1].meta["dep"] = (phase, p, h)
                groups.append(g)
            ctok.append(tk)
            if c == 0:
                stok = stats_groups()
        return groups, stok, ctok

    def frag_seq(self, phase):
        nks = 4 if phase == 2 else 11
        return [(ss, ks) for ss in (1, 0) for ks in range(nks)]

    def ringreg(self, n):
        return RING + 4 * (n % 12)

    def loadA24_one(self, g, phase, p, h, n, st=sT):
        ss, ks = self.frag_seq(phase)[n]
        if phase == 2:
            if ss == 0:
                g("s_add_u32 s%d, s%d, %d" % (st, sA2, OB[p] + h * MB))
            else:
                g("s_add_u32 s%d, s%d, %d" % (st, sA2b, OB[p] + h * MB))
            g("buffer_load_dwordx4 %s, v%d, s[8:11], s%d offen offset:%d sc1" % (V(self.ringreg(n), 4), vL16, st, ks * 1024)).meta["dep"] = (phase, p, h)
        else:
            g("s_add_u32 s%d, s%d, %d" % (st, sA4 + ss, HB[p] + h * 3 * MB + (ks // 4) * 4096))
            g("buffer_load_dwordx4 %s, v%d, s[8:11], s%d offen offset:%d sc1" % (V(self.ringreg(n), 4), vL16, st, (ks % 4) * 1024)).meta["dep"] = (phase, p, h)

    def groupsA24(self, phase, p, h):
        out = []
        for n in range(min(12, len(self.frag_seq(phase)))):
            g = Stream()
            self.loadA24_one(g, phase, p, h, n)
            out.append(g)
        g = Stream()
        if self.direct and phase == 2 and p == 0:
            g("v_and_b32 v%d, 0xf0, v%d" % (RES, vL16))
            g("v_lshlrev_b32 v%d, 7, v%d" % (RES, RES))
            g("v_lshrrev_b32 v%d, 8, v%d" % (RES + 1, vL16))
            g("v_lshl_add_u32 v%d, v%d, 4, v%d" % (RES, RES + 1, RES))
            g("s_add_u32 s%d, s%d, %d" % (sT, sOutO, h * 1024))
            g("buffer_load_dwordx4 %s, v%d, s[88:91], s%d offen" % (V(RES, 4), RES, sT))
        else:
            g("s_add_u32 s%d, s%d, %d" % (sT, sRes, XB[2 * p + (0 if phase == 2 else 1)] + h * MB))
            g("buffer_load_dwordx4 %s, v%d, s[8:11], s%d offen sc1" % (V(RES, 4), vL16, sT))
        out.insert(min(4, len(out)), g)
        return out

    def stats_reduce(self, s, h, stok):
        a = RING
        adr = vStatR
        if h == 1:
            adr = RING + 8
            s("v_add_u32 v%d, 8192, v%d" % (adr, vStatR))
        s.wait_vm(stok)
        for i in range(4):
            s("ds_read2_b32 %s, v%d offset0:%d offset1:%d" % (V(a + 2 * i, 2), adr, 64 * i, 64 * i + 32))
        self.pause(s, 10)
        for (x, y) in ((0, 1), (2, 3), (4, 5), (6, 7), (0, 2), (4, 6), (0, 4)):
            s("v_add_f32 v%d, v%d, v%d" % (a + x, a + x, a + y))
        s("v_mov_b32 v%d, v%d" % (a + 1, a))
        s("v_permlane32_swap_b32 v%d, v%d" % (a, a + 1))
        s("v_add_f32 v%d, v%d, v%d" % (a, a, a + 1))
        s("v_mov_b32 v%d, v%d" % (a + 1, a))
        s("v_permlane16_swap_b32 v%d, v%d" % (a, a + 1))
        s("v_mul_f32 v%d, %s, v%d" % (a, "0x%08x" % fbits(-1.0 / 512), a))
        s("v_mul_f32 v%d, v%d, v%d" % (a + 2, a, a))
        s("v_fma_f32 v%d, v%d, s%d, -v%d" % (a + 1, a + 1, sK, a + 2))
        s("v_max_f32 v%d, 0, v%d" % (a + 1, a + 1))
        s("v_add_f32 v%d, s%d, v%d" % (a + 1, sK + 1, a + 1))
        s("v_rsq_f32 v%d, v%d" % (a + 1, a + 1))
        s("v_cndmask_b32 v%d, v%d, v%d, s[%d:%d]" % (a, a, a + 1, sOdd, sOdd + 1))
        self.stat_tok = Tok("statw")
        s("ds_write_b32 v%d, v%d offset:%d" % (vStatW, a, h * 1024), tok=self.stat_tok)

    def epi_pref(self, phase, h):
        hoff = h * 1024
        pub = Stream()
        pub.wait_ds(self.stat_tok)
        pub("s_barrier")
        if phase == 3:
            return {58: list(pub), 60: ["ds_read_b128 %s, v%d offset:768" % (V(68, 4), vCs)],
                    61: ["ds_read_b128 %s, v%d offset:832" % (V(72, 4), vCs)],
                    62: ["ds_read_b128 %s, v%d offset:896" % (V(76, 4), vCs)],
                    63: ["ds_read_b64 %s, v%d offset:%d" % (V(80, 2), vStI, hoff)]}
        return {37: list(pub), 38: ["ds_read_b128 %s, v%d offset:%d" % (V(52, 4), vStV, hoff)],
                39: ["ds_read_b128 %s, v%d offset:%d" % (V(56, 4), vStV, hoff + 256)],
                40: ["ds_read_b128 %s, v%d offset:%d" % (V(60, 4), vStV, hoff + 64)],
                41: ["ds_read_b128 %s, v%d offset:%d" % (V(64, 4), vStV, hoff + 256 + 64)],
                43: ["ds_read_b128 %s, v%d offset:64" % (V(80, 4), vCs)],
                44: ["ds_read_b32 v84, v%d" % vCsV],
                45: ["ds_read_b64 %s, v%d offset:%d" % (V(68, 2), vStI, hoff), "ds_read_b64 %s, v%d offset:%d" % (V(70, 2), vStI, hoff + 128)],
                46: ["ds_read_b64 %s, v%d offset:%d" % (V(72, 2), vStI, hoff + 256)],
                47: ["ds_read_b128 %s, v%d offset:0" % (V(76, 4), vCs)]}

    def mf13(self, phase, h):
        base = vL16 if h == 0 else vLO
        nsub = 3 if phase == 1 else 4
        nfr = 16 * nsub
        def rd(n):
            ks, sub = divmod(n, nsub)
            out = []
            if sub == 0 and ks % 4 == 0:
                out.append(("chunk", ks // 4))
            out.append("ds_read_b128 %s, v%d offset:%d" % (V(FR + 4 * (n % 5), 4), base, sub * 16384 + ks * 1024))
            return out
        pre = [x for n in range(5) for x in rd(n)]
        pref = self.epi_pref(phase, h)
        steps = []
        mm = "v_mfma_f32_16x16x32_bf16"
        Q = [None, ACC, ACC + 4]
        K = [ACC + 8, ACC + 12, ACC + 16]
        Vv = [ACC + 20, ACC + 24, ACC + 28]
        for ks in range(16):
            c = (lambda r: "0" if ks == 0 else V(r, 4))
            for sub in range(nsub):
                n = nsub * ks + sub
                x = V(FR + 4 * (n % 5), 4)
                grp = []
                if phase == 1:
                    if sub > 0:
                        grp.append("%s %s, %s, %s, %s" % (mm, V(Q[sub], 4), Bx(3 * ks), x, c(Q[sub])))
                    grp.append("%s %s, %s, %s, %s" % (mm, V(K[sub], 4), Bx(3 * ks + 1), x, c(K[sub])))
                    grp.append("%s %s, %s, %s, %s" % (mm, V(Vv[sub], 4), x, Bx(3 * ks + 2), c(Vv[sub])))
                else:
                    for j in range(3):
                        r = ACC + 12 * sub + 4 * j
                        grp.append("%s %s, %s, %s, %s" % (mm, V(r, 4), Bx(3 * ks + j), x, c(r)))
                for i, m in enumerate(grp):
                    bop = [o.strip() for o in m.split(",") if o.strip().startswith("a[")][0]
                    st = [Ins(m, need=(bop, "Q" if phase == 1 else "G"))]
                    if i == len(grp) - 1 and n + 5 < nfr:
                        st += rd(n + 5)
                    if i == len(grp) - 1:
                        st += pref.get(n, [])
                    steps.append(st)
        return pre, steps

    def mf24(self, phase, p, h):
        seq = self.frag_seq(phase)
        nks = len(seq) // 2
        m = min(nks, int(self.opts.get("m2" if phase == 2 else "m4", 4 if phase == 2 else 6)))
        order = []
        for n, (ss, ks) in enumerate(seq):
            if ss == 0 and ks >= nks - m:
                continue
            order += [(n, jj) for jj in range(4)]
        tail = [n for n, (ss, ks) in enumerate(seq) if ss == 0 and ks >= nks - m]
        order += [(n, jj) for n in tail for jj in (2, 3)]
        self.x1_done = len(order)
        order += [(n, jj) for n in tail for jj in (0, 1)]
        steps = []
        for n, jj in order:
            ss, ks = seq[n]
            x = V(self.ringreg(n), 4)
            r = ACC + 16 * ss + 4 * jj
            st = [Ins("v_mfma_f32_16x16x32_bf16 %s, %s, %s, %s" % (V(r, 4), By(4 * ks + jj), x, "0" if ks == 0 else V(r, 4)),
                      need=(By(4 * ks + jj), "W" if phase == 2 else "D"))]
            if n + 12 < len(seq):
                assert n not in tail
                t = Stream()
                self.loadA24_one(t, phase, p, h, n + 12, sT4)
                if jj == 2:
                    st.append(t[0])
                if jj == 3:
                    st.append(t[1])
            steps.append(st)
        return steps, 2 * len(seq)

    def red_writes(self, xs, h):
        t = Stream()
        so = SCR[h] - 65536
        for x in xs:
            t("v_xor_b32 v%d, %d, v%d" % (TMP + x - 1, x << 13, vRed))
        for x in xs:
            for jl in range(2):
                t("ds_write_b128 v%d, %s offset:%d" % (TMP + x - 1, V(ACC + 8 * x + 4 * jl, 4), so + x * 2048 + jl * 1024))
        return t

    def seg24_mf(self, s, phase, p, h, at=None):
        steps, half = self.mf24(phase, p, h)
        at = dict(at or {})
        w = self.red_writes((2, 3), h)
        at.setdefault(half + 9, []).insert(0, w)
        self.x1_written = False
        if self.x1_done + 9 <= len(steps) - 1:
            at.setdefault(self.x1_done + 9, []).append(self.red_writes((1,), h))
            self.x1_written = True
        self.run_mf(s, steps, at=at)

    def epi1(self, s, p, h):
        Q = [None, ACC, ACC + 4]
        K = [ACC + 8, ACC + 12, ACC + 16]
        Vv = [ACC + 20, ACC + 24, ACC + 28]
        SP = [None, 52, 60]
        SC = [None, 56, 64]
        st = [68, 70, 72]
        csq, csk, csv, cq = 76, 80, 84, 86
        hoff = h * 1024
        NM = [52, 60, 52]
        RS = [56, 64, 56]
        def rdv(sub):
            s("ds_read_b128 %s, v%d offset:%d" % (V(NM[sub], 4), vStV, hoff + sub * 64))
            s("ds_read_b128 %s, v%d offset:%d" % (V(RS[sub], 4), vStV, hoff + 256 + sub * 64))
        bc0 = "op_sel_hi:[0,1,1]"
        for sub in (1, 2):
            for hh in (0, 2):
                s("v_pk_fma_f32 %s, %s, %s, %s %s" % (V(Q[sub] + hh, 2), V(st[sub], 2), V(csq + hh, 2), V(Q[sub] + hh, 2), bc0))
            s("v_mul_f32 v%d, s%d, v%d" % (cq, sK + 2, st[sub] + 1))
            for hh in (0, 2):
                s("v_pk_mul_f32 %s, %s, %s op_sel_hi:[1,0]" % (V(Q[sub] + hh, 2), V(Q[sub] + hh, 2), V(cq, 2)))
            s("v_cvt_pk_bf16_f32 v%d, v%d, v%d" % (Q[sub], Q[sub], Q[sub] + 1))
            s("v_cvt_pk_bf16_f32 v%d, v%d, v%d" % (Q[sub] + 1, Q[sub] + 2, Q[sub] + 3))
        for sub in range(3):
            for hh in (0, 2):
                s("v_pk_fma_f32 %s, %s, %s, %s %s" % (V(K[sub] + hh, 2), V(st[sub], 2), V(csk + hh, 2), V(K[sub] + hh, 2), bc0))
            for hh in (0, 2):
                s("v_pk_mul_f32 %s, %s, %s op_sel:[0,1] op_sel_hi:[1,1]" % (V(K[sub] + hh, 2), V(K[sub] + hh, 2), V(st[sub], 2)))
            s("v_cvt_pk_bf16_f32 v%d, v%d, v%d" % (K[sub], K[sub], K[sub] + 1))
            s("v_cvt_pk_bf16_f32 v%d, v%d, v%d" % (K[sub] + 1, K[sub] + 2, K[sub] + 3))
        bp1, bp, bc = 68, 72, 76
        s("v_add_u32 v%d, %d, v%d" % (TMP + 2, BIAS, vL16))
        s("ds_read_b128 %s, v%d" % (V(bp1, 4), vB1))
        s("ds_read_b128 %s, v%d offset:1024" % (V(bp, 4), TMP + 2))
        s("ds_read_b128 %s, v%d offset:0" % (V(bc, 4), TMP + 2))
        for sub in range(3):
            for hh in (0, 2):
                s("v_pk_fma_f32 %s, %s, %s, %s op_sel_hi:[1,0,1]" % (V(Vv[sub] + hh, 2), V(NM[sub] + hh, 2), V(csv, 2), V(Vv[sub] + hh, 2)))
            for hh in (0, 2):
                s("v_pk_mul_f32 %s, %s, %s" % (V(Vv[sub] + hh, 2), V(Vv[sub] + hh, 2), V(RS[sub] + hh, 2)))
            if sub == 0:
                rdv(2)
            s("v_cvt_pk_bf16_f32 v%d, v%d, v%d" % (Vv[sub], Vv[sub], Vv[sub] + 1))
            s("v_cvt_pk_bf16_f32 v%d, v%d, v%d" % (Vv[sub] + 1, Vv[sub] + 2, Vv[sub] + 3))
        mm = "v_mfma_f32_16x16x16_bf16"
        s("%s %s, %s, %s, %s" % (mm, V(SP[1], 4), V(K[0], 2), V(Q[1], 2), V(bp1, 4)))
        s("%s %s, %s, %s, %s" % (mm, V(SC[1], 4), V(K[1], 2), V(Q[1], 2), V(bc, 4)))
        s("%s %s, %s, %s, %s" % (mm, V(SP[2], 4), V(K[1], 2), V(Q[2], 2), V(bp, 4)))
        s("%s %s, %s, %s, %s" % (mm, V(SC[2], 4), V(K[2], 2), V(Q[2], 2), V(bc, 4)))
        m = {1: 80, 2: 84}
        l = {1: 82, 2: 86}
        for sub in (1, 2):
            a, b = SP[sub], SC[sub]
            s("v_max3_f32 v%d, v%d, v%d, v%d" % (m[sub], a, a + 1, a + 2))
            s("v_max3_f32 v%d, v%d, v%d, v%d" % (m[sub] + 1, a + 3, b, b + 1))
            s("v_max3_f32 v%d, v%d, v%d, v%d" % (m[sub], m[sub], b + 2, b + 3))
            s("v_max_f32 v%d, v%d, v%d" % (m[sub], m[sub], m[sub] + 1))
        for sw in ("v_permlane16_swap_b32", "v_permlane32_swap_b32"):
            for sub in (1, 2):
                s("v_mov_b32 v%d, v%d" % (m[sub] + 1, m[sub]))
            for sub in (1, 2):
                s("%s v%d, v%d" % (sw, m[sub], m[sub] + 1))
            for sub in (1, 2):
                s("v_max_f32 v%d, v%d, v%d" % (m[sub], m[sub], m[sub] + 1))
        for sub in (1, 2):
            for r in (SP[sub], SP[sub] + 2, SC[sub], SC[sub] + 2):
                s("v_pk_add_f32 %s, %s, %s op_sel_hi:[1,0] neg_lo:[0,1] neg_hi:[0,1]" % (V(r, 2), V(r, 2), V(m[sub], 2)))
        for sub in (1, 2):
            for r in range(4):
                s("v_exp_f32 v%d, v%d" % (SP[sub] + r, SP[sub] + r))
                s("v_exp_f32 v%d, v%d" % (SC[sub] + r, SC[sub] + r))
        s("v_mov_b32 v76, 0x3f803f80")
        s("v_mov_b32 v77, 0x3f803f80")
        for sub in (1, 2):
            for r in (SP[sub], SC[sub]):
                s("v_cvt_pk_bf16_f32 v%d, v%d, v%d" % (r, r, r + 1))
                s("v_cvt_pk_bf16_f32 v%d, v%d, v%d" % (r + 1, r + 2, r + 3))
        lq = {1: 80, 2: 84}
        for sub in (1, 2):
            s("%s %s, %s, %s, 0" % (mm, V(lq[sub], 4), V(76, 2), V(SP[sub], 2)))
        for sub in (1, 2):
            s("%s %s, %s, %s, 0" % (mm, V(Q[sub], 4), V(Vv[sub - 1], 2), V(SP[sub], 2)))
        for sub in (1, 2):
            s("%s %s, %s, %s, %s" % (mm, V(lq[sub], 4), V(76, 2), V(SC[sub], 2), V(lq[sub], 4)))
        for sub in (1, 2):
            s("%s %s, %s, %s, %s" % (mm, V(Q[sub], 4), V(Vv[sub], 2), V(SC[sub], 2), V(Q[sub], 4)))
        l = lq
        for sub in (1, 2):
            s("v_rcp_f32 v%d, v%d" % (l[sub], l[sub]))
        for sub in (1, 2):
            for hh in (0, 2):
                s("v_pk_mul_f32 %s, %s, %s op_sel_hi:[1,0]" % (V(Q[sub] + hh, 2), V(Q[sub] + hh, 2), V(l[sub], 2)))
        o = ACC
        s("v_cvt_pk_bf16_f32 v%d, v%d, v%d" % (o, o, o + 1))
        s("v_cvt_pk_bf16_f32 v%d, v%d, v%d" % (o + 1, o + 2, o + 3))
        s("v_cvt_pk_bf16_f32 v%d, v%d, v%d" % (o + 2, o + 4, o + 5))
        s("v_cvt_pk_bf16_f32 v%d, v%d, v%d" % (o + 3, o + 6, o + 7))
        s("v_permlane16_swap_b32 v%d, v%d" % (o, o + 2))
        s("v_permlane16_swap_b32 v%d, v%d" % (o + 1, o + 3))
        s("s_add_u32 s%d, s%d, %d" % (sE, sOst, OB[p] + h * MB))
        return s.vm("buffer_store_dwordx4 %s, v%d, s[8:11], s%d offen%s" % (V(o, 4), vOst, sE, self.stm(1)))

    def epi3(self, s, p, h):
        csG, csU, csM = 68, 72, 76
        stp = [80, 82]
        c1 = 84
        hoff = h * 1024
        bq = TMP
        for sub in range(4):
            G, U, M = ACC + 12 * sub, ACC + 12 * sub + 4, ACC + 12 * sub + 8
            st = stp[sub & 1]
            if sub < 3:
                s("ds_read_b64 %s, v%d offset:%d" % (V(stp[(sub + 1) & 1], 2), vStI, hoff + (sub + 1) * 128))
            for (r, cs) in ((M, csM), (G, csG), (U, csU)):
                for hh in (0, 2):
                    s("v_pk_fma_f32 %s, %s, %s, %s op_sel_hi:[0,1,1]" % (V(r + hh, 2), V(st, 2), V(cs + hh, 2), V(r + hh, 2)))
            s("v_mul_f32 v%d, s%d, v%d" % (c1, sK + 3, st + 1))
            s("v_permlane16_swap_b32 v%d, v%d" % (M, M + 2))
            s("v_permlane16_swap_b32 v%d, v%d" % (M + 1, M + 3))
            gates = (G, G + 2, M)
            ups = (U, U + 2, M + 2)
            for r in gates:
                s("v_pk_mul_f32 %s, %s, %s op_sel_hi:[1,0]" % (V(r, 2), V(r, 2), V(c1, 2)))
            for r in gates:
                s("v_exp_f32 v%d, v%d" % (r, r))
                s("v_exp_f32 v%d, v%d" % (r + 1, r + 1))
            for r in ups:
                s("v_pk_mul_f32 %s, %s, %s op_sel:[0,1] op_sel_hi:[1,1]" % (V(r, 2), V(r, 2), V(st, 2)))
            for r in gates:
                s("v_pk_add_f32 %s, %s, s[%d:%d]" % (V(r, 2), V(r, 2), sOnes, sOnes + 1))
            for r in gates:
                s("v_rcp_f32 v%d, v%d" % (r, r))
                s("v_rcp_f32 v%d, v%d" % (r + 1, r + 1))
            for g, u in zip(gates, ups):
                s("v_pk_mul_f32 %s, %s, %s" % (V(u, 2), V(u, 2), V(g, 2)))
            dst = ACC + 12 * (sub & ~1) + 2 * (sub & 1)
            s("v_cvt_pk_bf16_f32 v%d, v%d, v%d" % (dst, U, U + 1))
            s("v_cvt_pk_bf16_f32 v%d, v%d, v%d" % (dst + 1, U + 2, U + 3))
            s("v_cvt_pk_bf16_f32 v%d, v%d, v%d" % (bq + sub, M + 2, M + 3))
        s("s_add_u32 s%d, s%d, %d" % (sE, sHst, HB[p] + h * 3 * MB))
        for pr in range(2):
            d = ACC + 24 * pr
            s("v_permlane16_swap_b32 v%d, v%d" % (d, d + 2))
            s("v_permlane16_swap_b32 v%d, v%d" % (d + 1, d + 3))
            if pr == 1:
                s("s_add_u32 s%d, s%d, %d" % (sE2, sE, 2 * 48 * KB))
            s.vm("buffer_store_dwordx4 %s, v%d, s[8:11], s%d offen%s" % (V(d, 4), vH1, sE if pr == 0 else sE2, self.stm(3)))
        s("v_permlane16_swap_b32 v%d, v%d" % (bq, bq + 1))
        s("v_permlane16_swap_b32 v%d, v%d" % (bq + 2, bq + 3))
        s("v_permlane32_swap_b32 v%d, v%d" % (bq, bq + 2))
        s("v_permlane32_swap_b32 v%d, v%d" % (bq + 1, bq + 3))
        return s.vm("buffer_store_dwordx4 %s, v%d, s[8:11], s%d offen%s" % (V(bq, 4), vH2, sE, self.stm(3)))

    def epi24(self, s, phase, p, h, sig=None, mid=None):
        so = SCR[h] - 65536
        a = ACC
        if not self.x1_written:
            s.extend(self.red_writes((1,), h))
        if sig is not None:
            s.wait_vm(sig[3])
        s.wait_ds()
        s("s_barrier")
        if sig is not None:
            s("s_add_u32 s%d, s%d, %d" % (sT3, sF3 if sig[0] == 3 else sF1, flag_off(sig[1], sig[0] - 1, sig[2])))
            s("buffer_store_dword v%d, v%d, s[8:11], s%d offen sc1" % (vOne, vFlag, sT3))
        for x in (1, 2, 3):
            for jl in range(2):
                s("ds_read_b128 %s, v%d offset:%d" % (V(a + 8 * x + 4 * jl, 4), vRed, so + x * 2048 + jl * 1024))
        r = 52
        for i in range(4):
            s("v_lshlrev_b32 v%d, 16, v%d" % (r + 2 * i, RES + i))
            s("v_and_b32 v%d, 0xffff0000, v%d" % (r + 2 * i + 1, RES + i))
        for i in range(4):
            s("v_pk_add_f32 %s, %s, %s" % (V(a + 2 * i, 2), V(a + 2 * i, 2), V(r + 2 * i, 2)))
        for x in (1, 2, 3):
            for i in range(4):
                s("v_pk_add_f32 %s, %s, %s" % (V(a + 2 * i, 2), V(a + 2 * i, 2), V(a + 8 * x + 2 * i, 2)))
        o = 60
        for i in range(4):
            s("v_cvt_pk_bf16_f32 v%d, v%d, v%d" % (o + i, a + 2 * i, a + 2 * i + 1))
        final = (phase == 4 and p == 1)
        if final:
            s("s_add_u32 s%d, s%d, %d" % (sE, sOutO, h * 1024))
            s("v_and_b32 v52, 0xf0, v%d" % vL16)
            s("v_lshlrev_b32 v52, 7, v52")
            s("v_lshrrev_b32 v53, 8, v%d" % vL16)
            s("v_lshl_add_u32 v52, v53, 4, v52")
            tk = s.vm("buffer_store_dwordx4 %s, v52, s[12:15], s%d offen%s" % (V(o, 4), sE, {"0": "", "1": " sc1", "2": " nt"}[self.opts.get("outsc", "1")]))
            if mid is not None:
                s.extend(mid)
            return tk
        xi = 2 * p + (1 if phase == 2 else 2)
        s("s_add_u32 s%d, s%d, %d" % (sE, sRes, XB[xi] + h * MB))
        s.vm("buffer_store_dwordx4 %s, v%d, s[8:11], s%d offen%s" % (V(o, 4), vL16, sE, self.stm(phase)))
        if mid is not None:
            s.extend(mid)
        u = 52
        s("v_pk_add_f32 %s, %s, %s" % (V(u, 2), V(a, 2), V(a + 2, 2)))
        s("v_pk_add_f32 %s, %s, %s" % (V(u + 2, 2), V(a + 4, 2), V(a + 6, 2)))
        s("v_pk_mul_f32 %s, %s, %s" % (V(u + 4, 2), V(a, 2), V(a, 2)))
        s("v_pk_add_f32 %s, %s, %s" % (V(u, 2), V(u, 2), V(u + 2, 2)))
        for i in (1, 2, 3):
            s("v_pk_fma_f32 %s, %s, %s, %s" % (V(u + 4, 2), V(a + 2 * i, 2), V(a + 2 * i, 2), V(u + 4, 2)))
        s("v_add_f32 v%d, v%d, v%d" % (u, u, u + 1))
        s("v_add_f32 v%d, v%d, v%d" % (u + 1, u + 4, u + 5))
        s("v_permlane16_swap_b32 v%d, v%d" % (u, u + 1))
        s("v_add_f32 v%d, v%d, v%d" % (u, u, u + 1))
        s("v_mov_b32 v%d, v%d" % (u + 1, u))
        s("v_permlane32_swap_b32 v%d, v%d" % (u, u + 1))
        s("v_add_f32 v%d, v%d, v%d" % (u, u, u + 1))
        s("s_add_u32 s%d, s%d, %d" % (sE, sStO, ST[xi] + h * 131072))
        s("v_lshrrev_b32 v%d, 2, v%d" % (u + 2, vL16))
        s("s_mov_b32 exec_hi, 0")
        tok = s.vm("buffer_store_dword v%d, v%d, s[8:11], s%d offen%s" % (u, u + 2, sE, self.stm(phase)))
        s("s_mov_b32 exec_hi, -1")
        return tok

    def codepf(self, sw=16):
        if self.opts.get("nocpf") == "1":
            return ""
        n = int(self.opts.get("cpf", 2))
        t = ["s_getpc_b64 s[56:57]", "M_pc:", "s_lshl_b32 s58, s%d, 13" % sw, "v_lshlrev_b32 v128, 7, v1", "v_add_u32 v128, s58, v128"]
        for i in range(n):
            t.append("v_min_u32 v129, M_last-M_pc, v128")
            t.append("global_load_dword v%d, v129, s[56:57]" % (134 + i))
            if i < n - 1:
                t.append("v_add_u32 v128, 0x8000, v128")
        return "\n".join(t)

    def pro_ids(self, s, t):
        s("""
        v_lshrrev_b32 v20, 6, v0
        v_and_b32 v%d, 63, v0
        v_readfirstlane_b32 s%d, v20
        v_lshlrev_b32 v%d, 4, v%d
        s_and_b32 s32, s2, 7
        s_lshr_b32 s33, s2, 3
        s_lshr_b32 s34, s32, 1
        s_and_b32 s35, s32, 1
        """ % (vLane, sW, vL16, vLane))
        if self.local:
            s("""
            s_lshl_b32 s{rb}, s32, 2
            s_lshr_b32 s{t}, s33, 3
            s_add_u32 s{rb}, s{rb}, s{t}
            s_and_b32 s{cg}, s33, 7
            s_lshl_b32 s{rb3}, s32, 1
            s_lshr_b32 s{t}, s33, 4
            s_add_u32 s{rb3}, s{rb3}, s{t}
            s_and_b32 s{cg3}, s33, 15
            """.format(rb=sRB, cg=sCG, rb3=sRB3, cg3=sCG3, t=t))
        else:
            s("""
            s_lshl_b32 s{rb}, s34, 3
            s_lshr_b32 s{t}, s33, 2
            s_add_u32 s{rb}, s{rb}, s{t}
            s_lshl_b32 s{cg}, s35, 2
            s_and_b32 s{t}, s33, 3
            s_add_u32 s{cg}, s{cg}, s{t}
            s_lshl_b32 s{rb3}, s34, 2
            s_lshr_b32 s{t}, s33, 3
            s_add_u32 s{rb3}, s{rb3}, s{t}
            s_lshl_b32 s{cg3}, s35, 3
            s_and_b32 s{t}, s33, 7
            s_add_u32 s{cg3}, s{cg3}, s{t}
            """.format(rb=sRB, cg=sCG, rb3=sRB3, cg3=sCG3, t=t))

    def prologue(self, s):
        single = self.opts.get("single", "1") == "1"
        s("""
        s_load_dwordx2 s[4:5], s[0:1], 72
        s_load_dwordx2 s[6:7], s[0:1], 56
        """)
        if not single:
            s("s_cmp_ge_u32 s2, 256")
            s("s_cbranch_scc1 M_end")
        self.pro_ids(s, 36)
        if not single:
            s(self.codepf())
        s("""
        s_waitcnt lgkmcnt(0)
        s_mov_b32 s8, s4
        s_and_b32 s9, s5, 0xffff
        s_mov_b32 s10, 0x10000000
        s_mov_b32 s11, 0x20000
        s_mov_b32 s12, s6
        s_and_b32 s13, s7, 0xffff
        s_mov_b32 s14, 0x200000
        s_mov_b32 s15, 0x20000
        """)
        self.pro_rest(s)

    def pro_rest(self, s):
        s("""
        s_lshl_b32 s36, s{cg}, 2
        s_add_u32 s36, s36, s{w}
        s_mul_i32 s{bq}, s36, {k48}
        s_add_u32 s{bq}, s{bq}, {PQ}
        s_lshl_b32 s{bw}, s36, 14
        s_add_u32 s{bw}, s{bw}, {PW}
        s_mul_i32 s{bd}, s36, {k44}
        s_add_u32 s{bd}, s{bd}, {PD}
        s_lshl_b32 s37, s{cg3}, 2
        s_add_u32 s37, s37, s{w}
        s_mul_i32 s{bg}, s37, {k48}
        s_add_u32 s{bg}, s{bg}, {PG}
        s_lshl_b32 s{kw}, s{w}, 12
        s_lshl_b32 s{a1m}, s{rb}, 15
        s_lshl_b32 s{a3}, s{rb3}, 16
        s_sub_u32 s{a1h}, s{a1m}, 16384
        s_max_i32 s{a1h}, s{a1h}, 0
        """.format(cg=sCG, w=sW, bq=sBQ, bw=sBW, bd=sBD, bg=sBG, cg3=sCG3, kw=sKw, a1m=sA1m, a3=sA3, a1h=sA1h, rb=sRB, rb3=sRB3,
                   k48=48 * KB, k44=44 * KB, PQ=PQ, PW=PW, PD=PD, PG=PG))
        s("""
        s_lshl_b32 s38, s{rb}, 1
        s_add_u32 s38, s38, s{w}
        s_sub_u32 s38, s38, 1
        s_max_i32 s38, s38, 0
        s_lshl_b32 s{st1}, s38, 11
        s_lshl_b32 s38, s{rb3}, 2
        s_add_u32 s38, s38, s{w}
        s_lshl_b32 s{st3}, s38, 11
        """.format(rb=sRB, w=sW, st1=sSt1, rb3=sRB3, st3=sSt3))
        s("""
        s_lshr_b32 s38, s{w}, 1
        s_and_b32 s39, s{w}, 1
        s_lshl_b32 s40, s{cg}, 1
        s_add_u32 s59, s40, s38
        s_lshl_b32 s59, s59, 10
        s_lshl_b32 s60, s39, 9
        s_add_u32 s59, s59, s60
        s_add_u32 s{ost}, s59, s{a1m}
        """.format(w=sW, cg=sCG, ost=sOst, a1m=sA1m))
        s("""
        s_lshl_b32 s59, s38, 14
        s_add_u32 s59, s59, s{a1m}
        s_add_u32 s{a2}, s59, s{kw}
        s_add_u32 s60, s40, s39
        s_lshl_b32 s61, s60, 10
        s_add_u32 s{res}, s59, s61
        s_lshr_b32 s{sto}, s59, 3
        s_lshl_b32 s61, s60, 7
        s_add_u32 s{sto}, s{sto}, s61
        """.format(a1m=sA1m, a2=sA2, kw=sKw, res=sRes, sto=sStO))
        s("""
        s_lshl_b32 s59, s{rb}, 1
        s_add_u32 s59, s59, s38
        s_lshl_b32 s{out}, s59, 15
        s_lshl_b32 s61, s60, 6
        s_add_u32 s{out}, s{out}, s61
        """.format(rb=sRB, out=sOutO))
        s("""
        s_mul_i32 s{hst}, s{rb3}, {k192}
        s_mul_i32 s61, s{cg3}, 12
        s_mul_i32 s62, s{w}, 3
        s_add_u32 s61, s61, s62
        s_lshl_b32 s61, s61, 8
        s_add_u32 s{hst}, s{hst}, s61
        s_mul_i32 s62, s{w}, {k11}
        s_mul_i32 s{a4}, s59, {k48}
        s_add_u32 s{a4}, s{a4}, s62
        s_xor_b32 s59, s59, 1
        s_mul_i32 s{a4b}, s59, {k48}
        s_add_u32 s{a4b}, s{a4b}, s62
        """.format(hst=sHst, rb3=sRB3, cg3=sCG3, w=sW, a4=sA4, a4b=sA4 + 1, k192=192 * KB, k11=11 * KB, k48=48 * KB))
        return

    def prologue2(self, s):
        s("""
        s_lshl_b32 s59, s{cg}, 2
        s_lshl_b32 s60, s{rb}, 8
        s_add_u32 s{f1}, s60, s59
        s_lshl_b32 s59, s{cg3}, 2
        s_lshl_b32 s61, s{rb3}, 8
        s_add_u32 s{f3}, s61, s59
        s_mov_b32 s{p2}, s60
        s_lshl_b32 s{p3}, s{rb3}, 9
        s_lshr_b32 s61, s{rb}, 1
        s_lshl_b32 s{p4}, s61, 8
        s_cmp_eq_u32 s{rb}, 0
        s_cselect_b32 s61, 0, 256
        s_sub_u32 s{p1}, s60, s61
        v_lshrrev_b32 v20, 3, v{lane}
        v_mul_lo_u32 v20, v20, s61
        v_and_b32 v21, 7, v{lane}
        v_lshl_add_u32 v{ph}, v21, 2, v20
        """.format(lane=vLane, ph=vPollH, cg=sCG, w=sW, rb=sRB, f1=sF1, cg3=sCG3, rb3=sRB3, f3=sF3, p2=sP2, p3=sP3, p4=sP4, p1=sP1a))
        s("""
        s_cmp_eq_u32 s{w}, 1
        s_cselect_b32 s{m2}, 0xff, 0
        s_mov_b32 s{m2h}, 0
        s_cselect_b32 s{m4}, 0x7fff, 0
        s_mov_b32 s{m4h}, 0
        s_cselect_b32 s{m16}, 0xffff, 0
        s_mov_b32 s{m16h}, 0
        s_mov_b32 s{odd}, 0xffff0000
        s_mov_b32 s{oddh}, 0xffff0000
        s_mov_b32 s{one}, 1.0
        s_mov_b32 s{oneh}, 1.0
        s_mov_b32 s{k0}, {c0}
        s_mov_b32 s{k1}, {c1}
        s_mov_b32 s{k2}, {c2}
        s_mov_b32 s{k3}, {c3}
        """.format(w=sW, m2=sM2, m2h=sM2 + 1, m4=sM4, m4h=sM4 + 1, m16=sM16, m16h=sM16 + 1, odd=sOdd, oddh=sOdd + 1, one=sOnes, oneh=sOnes + 1,
                   k0=sK, k1=sK + 1, k2=sK + 2, k3=sK + 3,
                   c0="0x%08x" % fbits(1.0 / 512), c1="0x%08x" % fbits(1e-5), c2="0x%08x" % fbits(0.25 * LOG2E), c3="0x%08x" % fbits(-LOG2E)))
        s("""
        v_and_b32 v20, 15, v{lane}
        v_lshrrev_b32 v21, 4, v{lane}
        v_add_u32 v{lo}, 65536, v{l16}
        v_lshlrev_b32 v22, 4, v20
        v_and_b32 v23, 1, v21
        v_lshrrev_b32 v24, 1, v21
        v_lshl_add_u32 v25, v24, 8, v22
        v_lshl_add_u32 v{ost}, v23, 14, v25
        v_mul_u32_u24 v26, {k48}, v23
        v_add_u32 v{h1}, v26, v25
        v_mul_u32_u24 v26, {k48}, v21
        v_add_u32 v26, v26, v22
        v_add_u32 v{h2}, 512, v26
        s_lshl_b32 s59, s{w}, 13
        s_add_u32 s59, s59, 65536
        v_add_u32 v{red}, s59, v{l16}
        v_lshrrev_b32 v26, 3, v{lane}
        v_and_b32 v27, 7, v{lane}
        v_lshlrev_b32 v27, 2, v27
        v_lshl_add_u32 v{pa}, v26, 8, v27
        v_lshlrev_b32 v{pb}, 2, v{lane}
        s_cmp_eq_u32 s{w}, 1
        s_cselect_b32 s59, 16, 0
        v_cmp_gt_u32 vcc, s59, v{lane}
        v_mov_b32 v27, 0x7ffffff0
        v_cndmask_b32 v{pa}, v27, v{pa}, vcc
        v_cndmask_b32 v{pb}, v27, v{pb}, vcc
        v_cndmask_b32 v{ph}, v27, v{ph}, vcc
        v_lshlrev_b32 v{out}, 7, v{lane}
        v_cmp_gt_u32 vcc, 16, v{lane}
        v_cndmask_b32 v{out}, v27, v{out}, vcc
        v_mov_b32 v{one}, 1
        """.format(lane=vLane, lo=vLO, l16=vL16, ost=vOst, h1=vH1, h2=vH2, red=vRed, pa=vPollA, pb=vPollB, ph=vPollH, out=vOut, one=vOne, w=sW, k48=48 * KB))
        s("""
        s_lshl_b32 s59, s{w}, 11
        s_add_u32 s59, s59, {stp}
        v_lshlrev_b32 v26, 10, v24
        v_lshl_add_u32 v26, v23, 6, v26
        v_lshl_add_u32 v26, v20, 2, v26
        v_add_u32 v{sr}, s59, v26
        """.format(w=sW, stp=STP, sr=vStatR))
        s("""
        s_lshl_b32 s59, s{w}, 7
        s_lshl_b32 s60, s{w}, 6
        v_lshlrev_b32 v26, 3, v20
        v_lshl_add_u32 v26, v23, 2, v26
        v_add_u32 v26, s59, v26
        v_lshlrev_b32 v27, 2, v20
        v_lshl_add_u32 v27, v23, 8, v27
        v_add_u32 v27, s60, v27
        v_add_u32 v27, 512, v27
        v_cmp_gt_u32 vcc, 2, v21
        v_cndmask_b32 v26, v27, v26, vcc
        v_add_u32 v{sw}, {stf}, v26
        v_lshlrev_b32 v26, 3, v20
        v_add_u32 v{si}, {stf}, v26
        v_lshlrev_b32 v26, 4, v21
        v_add_u32 v{sv}, {stfn}, v26
        s_mul_i32 s59, s{w}, 192
        s_add_u32 s59, s59, {csl}
        v_add_u32 v{cs}, s59, v26
        v_lshlrev_b32 v27, 2, v20
        v_add_u32 v27, s59, v27
        v_add_u32 v{csv}, 128, v27
        """.format(w=sW, sw=vStatW, stf=STF, si=vStI, sv=vStV, stfn=STF + 512, csl=CSL, cs=vCs, csv=vCsV))
        shq, shg = (3, 4) if self.local else (2, 3)
        nq, ng = 4 * (32 >> shq), 4 * (32 >> shg)
        self.pf_n = {"Q": -(-192 * KB // nq // 2048), "W": -(-64 * KB // nq // 2048), "D": -(-176 * KB // nq // 2048), "G": -(-192 * KB // ng // 2048)}
        assert not (self.direct and self.opts.get("pf") == "1")
        (s if self.opts.get("pf") == "1" else (lambda t: None))("""
        s_lshr_b32 s59, s2, 3
        s_lshr_b32 s60, s59, {shq}
        s_lshl_b32 s60, s60, 2
        s_add_u32 s60, s60, s{w}
        s_mul_i32 s61, s{cg}, {k192}
        s_mul_i32 s62, s60, {q6}
        s_add_u32 s{pq}, s61, s62
        s_add_u32 s{pq}, s{pq}, {PQ}
        s_lshl_b32 s61, s{cg}, 16
        s_mul_i32 s62, s60, {w2}
        s_add_u32 s{pw}, s61, s62
        s_add_u32 s{pw}, s{pw}, {PW}
        s_mul_i32 s61, s{cg}, {k176}
        s_mul_i32 s62, s60, {d55}
        s_add_u32 s{pd}, s61, s62
        s_add_u32 s{pd}, s{pd}, {PD}
        s_lshr_b32 s60, s59, {shg}
        s_lshl_b32 s60, s60, 2
        s_add_u32 s60, s60, s{w}
        s_mul_i32 s61, s{cg3}, {k192}
        s_mul_i32 s62, s60, {g12}
        s_add_u32 s{pg}, s61, s62
        s_add_u32 s{pg}, s{pg}, {PG}
        """.format(w=sW, cg=sCG, cg3=sCG3, pq=sPfQ, pw=sPfW, pd=sPfD, pg=sPfG, k192=192 * KB, k176=176 * KB, q6=192 * KB // nq, w2=64 * KB // nq,
                   d55=176 * KB // nq, g12=192 * KB // ng, PQ=PQ, PW=PW, PD=PD, PG=PG, shq=shq, shg=shg))
        s("""
        v_lshlrev_b32 v26, 2, v21
        v_sub_u32 v26, v20, v26
        v_mov_b32 v27, 0xf149f2ca
        v_mov_b32 v28, 0
        """)
        for r in range(4):
            s("v_subrev_u32 v29, %d, v26" % r)
            s("v_cmp_gt_u32 vcc, 8, v29")
            s("v_cndmask_b32 v%d, v27, v28, vcc" % (32 + r))
            s("v_cmp_gt_i32 vcc, -8, v29")
            s("v_cndmask_b32 v%d, v27, v28, vcc" % (36 + r))
            s("v_mov_b32 v%d, v27" % (40 + r))
        s("v_add_u32 v30, %d, v%d" % (BIAS, vL16))
        s.wait_ds()
        s("ds_write_b128 v30, v[32:35]")
        s("ds_write_b128 v30, v[36:39] offset:1024")
        s("ds_write_b128 v30, v[40:43] offset:2048")
        s("""
        s_cmp_eq_u32 s{rb}, 0
        s_cselect_b32 s59, 2, 1
        s_lshl_b32 s59, s59, 10
        v_add_u32 v{b1}, s59, v30
        """.format(rb=sRB, b1=vB1))

    def colsums(self, s, ks, r0=44, first=True):
        single = self.opts.get("single", "1") == "1"
        ks = list(ks)
        R = lambda k: r0 + 4 * (k - ks[0])
        for k in ks:
            r = R(k)
            s("v_add_f32 v%d, v%d, v%d" % (r, r, r + 1))
            s("v_add_f32 v%d, v%d, v%d" % (r + 2, r + 2, r + 3))
            s("v_add_f32 v%d, v%d, v%d" % (r, r, r + 2))
            if not single:
                s("v_add_f32_dpp v%d, v%d, v%d quad_perm:[1,0,3,2] row_mask:0xf bank_mask:0xf" % (r, r, r))
                s("v_add_f32_dpp v%d, v%d, v%d quad_perm:[2,3,0,1] row_mask:0xf bank_mask:0xf" % (r, r, r))
        if single:
            for sw in ("v_permlane16_swap_b32", "v_permlane32_swap_b32"):
                for k in ks:
                    s("v_mov_b32 v%d, v%d" % (R(k) + 1, R(k)))
                for k in ks:
                    s("%s v%d, v%d" % (sw, R(k), R(k) + 1))
                for k in ks:
                    s("v_add_f32 v%d, v%d, v%d" % (R(k), R(k), R(k) + 1))
        a = R(ks[-1]) + 2
        if single:
            s("v_and_b32 v%d, 0xf0, v%d" % (a, vL16))
            s("v_lshrrev_b32 v%d, 2, v%d" % (a, a))
        else:
            s("v_lshrrev_b32 v%d, 6, v%d" % (a, vL16))
            s("v_lshlrev_b32 v%d, 2, v%d" % (a, a))
        s("s_mul_i32 s59, s%d, 192" % sW)
        s("s_add_u32 s59, s59, %d" % CSL)
        s("v_add_u32 v%d, s59, v%d" % (a, a))
        for k in ks:
            s("ds_write_b32 v%d, v%d offset:%d" % (a, R(k), (k // 3) * 768 + (k % 3) * 64))
        if first:
            if not single:
                self.flag_vec(s)
            s("v_mov_b32 v%d, v%d" % (vFlag, self.vflag_tmp))

    vflag_tmp = 87

    def flag_vec(self, s):
        s("s_cmp_eq_u32 s%d, 0" % sW)
        s("s_cselect_b32 s59, 1, 0")
        s("v_cmp_gt_u32 vcc, s59, v%d" % vLane)
        s("v_mov_b32 v27, 0x7ffffff0")
        s("v_cndmask_b32 v%d, v27, 0, vcc" % self.vflag_tmp)
        s("v_mov_b32 v60, v%d" % self.vflag_tmp)

    def global_issue(self, s):
        s("""
        s_mul_i32 s58, s{cg}, 12
        v_add_u32 v89, s58, v{lane}
        v_subrev_u32 v90, 12, v{lane}
        v_mul_u32_u24 v91, 21846, v90
        v_lshrrev_b32 v91, 16, v91
        v_mul_u32_u24 v92, 3, v91
        v_sub_u32 v92, v90, v92
        s_lshl_b32 s58, s{rb}, 1
        v_add_u32 v92, s58, v92
        v_subrev_u32 v92, 1, v92
        v_max_i32 v92, 0, v92
        v_lshl_add_u32 v92, v91, 6, v92
        v_add_u32 v92, 96, v92
        v_cmp_gt_u32 vcc, 12, v{lane}
        v_cndmask_b32 v89, v92, v89, vcc
        v_lshrrev_b32 v90, 3, v89
        v_and_b32 v89, 7, v89
        v_lshlrev_b32 v89, 2, v89
        v_lshl_add_u32 v89, v90, 7, v89
        s_cmp_eq_u32 s{w}, 1
        s_cselect_b32 s58, 18, 0
        v_cmp_gt_u32 vcc, s58, v{lane}
        v_mov_b32 v90, 0x7ffffff0
        v_cndmask_b32 v89, v90, v89, vcc
        s_cselect_b32 s{m}, 0x3ffff, 0
        s_mov_b32 s{mh}, 0
        s_mov_b32 s{p}, {pfl}
        buffer_load_dword v92, v89, s[8:11], s{p} offen sc1
        """.format(lane=vLane, w=sW, p=sPoll, pfl=PFL, cg=sCG, rb=sRB, m=4, mh=5))

    def global_check(self, s):
        n = self.npoll
        self.npoll += 1
        s("v_cmp_ne_u32 vcc, s%d, v92" % sTag)
        s("s_and_b64 vcc, vcc, s[4:5]")
        s("s_cbranch_vccnz SLOW_%d" % n)
        s("BACK_%d:" % n)
        s("s_barrier")
        self.slow += ["SLOW_%d:" % n, "  s_mov_b32 s%d, 0" % sCnt, "SPIN_%d:" % n,
                      "  buffer_load_dword v92, v89, s[8:11], s%d offen sc1" % sPoll, "  s_waitcnt vmcnt(0)",
                      "  v_cmp_ne_u32 vcc, s%d, v92" % sTag, "  s_nop 1", "  s_and_b64 vcc, vcc, s[4:5]",
                      "  s_cbranch_vccz BACK_%d" % n, "  s_add_u32 s%d, s%d, 1" % (sCnt, sCnt), "  s_cmp_lt_u32 s%d, %d" % (sCnt, POLL_LIMIT),
                      "  s_cbranch_scc1 SPIN_%d" % n, "  s_branch BACK_%d" % n]

    hold = False

    def tick(self, s, bulk=True):
        if self.urgent:
            s.extend(self.urgent.popleft())
            return True
        if bulk and self.bulk and not self.hold:
            s.extend(self.bulk.popleft())
            return True
        return False

    def flush_urgent(self, s):
        while self.urgent:
            s.extend(self.urgent.popleft())

    def burst(self, s, n):
        for _ in range(n):
            self.tick(s)

    @staticmethod
    def cost(ins):
        c = ins.cls
        if c == "valu":
            return 8 if (ins.meta.get("trans") or ins.meta.get("perm")) else 4
        if c in ("vm_ld", "vm_dma", "vm_st"):
            return 8
        if c in ("ds_rd", "ds_wr"):
            return 4
        if c == "salu":
            return 2.5
        if c in ("pseudo", "label"):
            return 0 if ins.text in ("@comment", "@mark") or c == "label" else 2
        return 3

    def progressive(self, groups, per_ks):
        for f, g in enumerate(groups):
            g.min_step = max(per_ks * (f // 3 + 1) + 2, int(self.opts.get("pg0", 0)) + int(float(self.opts.get("pgr", 0)) * f))
        return groups

    def clear_min(self):
        for g in self.bulk:
            g.min_step = 0

    def promote(self, s, name, per_ks, lead, rate):
        mine = [g for g in self.bulk if any(x.meta.get("bname") == name for x in g)]
        if not mine or self.opts.get("promote") != "1":
            return
        first = 48 - len(mine)
        rest = [g for g in self.bulk if not any(g is m for m in mine)]
        self.bulk.clear()
        self.bulk.extend(rest)
        later = []
        t = len(self.urgent)
        for k, g in enumerate(mine):
            need = per_ks * ((first + k) // 3)
            if need - lead <= t * rate:
                if not later:
                    s.extend(g)
                    continue
            later.append(g)
            t += 1
        self.urgent.extend(later)

    def code_touch(self):
        t = Stream()
        if self.opts.get("ctouch", "0") != "1":
            return t
        n = self.ntouch = getattr(self, "ntouch", -1) + 1
        t("s_getpc_b64 s[0:1]").meta["glue"] = True
        t("CT_%d:" % n)
        t("s_lshl_b32 s58, s%d, 13" % sW)
        t("v_lshlrev_b32 v%d, 3, v%d" % (vP2, vL16))
        t("v_add_u32 v%d, s58, v%d" % (vP2, vP2))
        t("v_min_u32 v%d, M_last-CT_%d, v%d" % (vP2, n, vP2))
        t("global_load_dword v%d, v%d, s[0:1]" % (vP2, vP2))
        return t

    def set_hold(self, v):
        def f():
            self.hold = v
        return f

    def delay(self, s, clks):
        n = max(0, int(clks) // 64)
        if n:
            s("s_sleep %d" % n)

    def evs(self, key, default):
        v = self.opts.get(key)
        return tuple(int(x) for x in v.split(",")) if v else default

    def run_mf(self, s, steps, at=None, fill=None, rate=4, ctok=None, fill_from=2, urate=None):
        at = at or {}
        urate = urate or rate
        fill = deque(fill or [])
        ev, cur = deque(), deque()
        last_vm = -rate
        last_tr = -12
        isvm = lambda x: x.cls in ("vm_ld", "vm_dma", "vm_st")
        def mk(x):
            if isinstance(x, Ins):
                return [x]
            if isinstance(x, tuple):
                t = Stream()
                self.mark(t, "chA%d" % x[1])
                t.wait_vm(ctok[x[1]])
                t("s_barrier")
                self.mark(t, "chB%d" % x[1])
                return list(t)
            t = Stream()
            t(x)
            return list(t)
        def push_ev(e):
            if isinstance(e, Stream):
                ev.extend(e)
            else:
                c = Ins("@comment")
                c.meta["c"] = "release"
                c.meta["call"] = e
                ev.append(c)
        def emit_from(q, budget):
            while q:
                c = self.cost(q[0])
                if c > budget and not (budget >= 8 - 1e-9):
                    break
                x = q.popleft()
                s.append(x)
                if x.meta.get("call"):
                    x.meta["call"]()
                budget -= c
                while x.meta.get("glue") and q:
                    x = q.popleft()
                    s.append(x)
                    if x.meta.get("call"):
                        x.meta["call"]()
                if budget <= 0:
                    break
            return budget
        n = len(steps)
        for i, st in enumerate(steps):
            for e in at.get(i, []):
                push_ev(e)
            if i % int(self.opts.get("fstep", 16)) == 0:
                self.fs(s, "mf%d" % i)
            budget = 8.0
            main = [y for x in st for y in mk(x)]
            if any(x.text == "@waitds" and x.meta.get("tok") is not None for x in main):
                while fill:
                    x = fill.popleft()
                    s.append(x)
            for x in main:
                s.append(x)
            for x in main[1:]:
                budget -= self.cost(x)
                if isvm(x):
                    last_vm = i
            if any(x.cls == "ds_rd" for x in main[1:]):
                budget -= 2
            if budget <= 0:
                continue
            if ev:
                had_vm = any(isvm(x) for x in list(ev)[:1])
                budget = emit_from(ev, budget)
                if had_vm:
                    last_vm = i
                if budget <= 0:
                    continue
            if not cur and self.trickle and not self.urgent and i - last_tr >= int(self.opts.get("trate", 24)) and i - last_vm >= 1:
                cur.extend(self.trickle.popleft())
                last_tr = i
            if not cur:
                if self.urgent and i - last_vm >= urate - 1:
                    cur.extend(self.urgent.popleft())
                elif self.bulk and not self.hold and not self.urgent and i - last_vm >= rate - 1 and getattr(self.bulk[0], "min_step", 0) <= i:
                    cur.extend(self.bulk.popleft())
            while cur and budget > 0:
                x = cur[0]
                c = self.cost(x)
                if isvm(x):
                    if budget < 8 or i - last_vm < min(rate, urate):
                        break
                    last_vm = i
                elif c > budget:
                    break
                s.append(cur.popleft())
                budget -= c
            if fill and fill[0].meta.get("until") is not None:
                fill_from = max(fill_from, fill.popleft().meta["until"])
            if fill and fill[0].meta.get("pause"):
                fill_from = i + fill.popleft().meta["pause"]
            if i >= fill_from and fill and budget > 0:
                part = deque()
                while fill and not fill[0].meta.get("pause") and fill[0].meta.get("until") is None and len(part) < 4:
                    part.append(fill.popleft())
                budget = emit_from(part, budget)
                while part:
                    fill.appendleft(part.pop())
        for e in at.get(n, []):
            push_ev(e)
        for q in (cur, ev, fill):
            while q:
                x = q.popleft()
                s.append(x)
                if x.meta.get("call"):
                    x.meta["call"]()

    def weave(self, s, epi, every=13):
        k = 0
        for ins in epi:
            s.append(ins)
            if ins.cls in ("valu", "mfma"):
                k += 1
                if k >= every:
                    if self.tick(s):
                        k = 0

    def split_tile(self, A):
        groups = A[0]
        nsub = (len(groups) - 2) // 4
        nh = 2 * nsub + 2
        return groups[:nh], groups[nh:]

    def cs_loads_to(self, s, cg, base, r0, vaddr):
        s("s_lshl_b32 s58, s%d, 2" % cg)
        s("s_add_u32 s58, s58, s%d" % sW)
        s("s_mul_i32 s59, s58, 3072")
        s("s_add_u32 s59, s59, %d" % base)
        for k in range(3):
            for j in range(4):
                s("buffer_load_dword v%d, v%d, s[8:11], s59 offen offset:%d" % (r0 + 4 * k + j, vaddr, k * 1024 + j * 64))

    def global_check2(self):
        n = self.npoll
        self.npoll += 1
        t = Stream()
        r = RING + 12
        t("v_cmp_ne_u32 vcc, s%d, v%d" % (sTag, r))
        t("s_and_b64 vcc, vcc, s[4:5]")
        t("s_cbranch_vccnz SLOW_%d" % n).meta["glue"] = True
        t("BACK_%d:" % n).meta["glue"] = True
        t("s_barrier")
        self.slow += ["SLOW_%d:" % n, "  s_mov_b32 s%d, 0" % sCnt, "SPIN_%d:" % n,
                      "  buffer_load_dword v%d, v%d, s[8:11], s%d offen sc1" % (r, RING + 16, sPoll2), "  s_waitcnt vmcnt(0)",
                      "  v_cmp_ne_u32 vcc, s%d, v%d" % (sTag, r), "  s_nop 1", "  s_and_b64 vcc, vcc, s[4:5]",
                      "  s_cbranch_vccz BACK_%d" % n, "  s_add_u32 s%d, s%d, 1" % (sCnt, sCnt), "  s_cmp_lt_u32 s%d, %d" % (sCnt, POLL_LIMIT),
                      "  s_cbranch_scc1 SPIN_%d" % n, "  s_branch BACK_%d" % n]
        return t

    def seg13(self, s, phase, p, h, A, at, urate=None, raw_stats=False):
        groups, stok, ctok = A
        st = Stream()
        if raw_stats:
            return self.seg13_raw(s, phase, p, h, A, at)
        self.stats_reduce(st, h, stok)
        if getattr(self, "extra_fill", None) is not None:
            st.extend(self.extra_fill)
            self.extra_fill = None
        pre, steps = self.mf13(phase, h)
        if urate:
            s.extend(st)
            st = Stream()
        for x in pre:
            if isinstance(x, tuple):
                s.wait_vm(ctok[x[1]])
                s("s_barrier")
            else:
                s(x)
        self.run_mf(s, steps, at=at, fill=list(st), ctok=ctok, fill_from=int(self.opts.get("fillfrom", 6)), urate=(urate or int(self.opts.get("ur", 4))), rate=(urate or int(self.opts.get("br", 4))))
        s("s_barrier")

    def seg13_raw(self, s, phase, p, h, A, at):
        import direct
        groups, stok, ctok = A
        self.stat_tok = Tok("unused")
        saved = self.epi_pref
        pref = saved(phase, h)
        self.epi_pref = lambda *a: {}
        pre, steps = self.mf13(phase, h)
        self.epi_pref = saved
        chunk_step = {0: 0}
        for i, stp in enumerate(steps):
            for x in stp:
                if isinstance(x, tuple):
                    chunk_step[x[1]] = i
        SA, T0, ADR, ONE = RING, RING + 24, RING + 2, RING + 3
        st = Stream()
        st("s_lshl_b32 s58, s%d, 14" % sW)
        st("s_add_u32 s58, s58, %d" % REG[h])
        st("v_add_u32 v%d, s58, v%d" % (ADR, vL16))
        st("v_mov_b32 v%d, 0x3f803f80" % ONE)
        st("v_mov_b32 v%d, 0" % SA)
        st("v_mov_b32 v%d, 0" % (SA + 1))
        for c in range(4):
            u = Ins("@comment")
            u.meta["c"] = "until chunk %d" % c
            u.meta["until"] = chunk_step[c] + 2
            st.append(u)
            for j in range(4):
                st("ds_read_b128 %s, v%d offset:%d" % (V(T0 + 4 * j, 4), ADR, (4 * c + j) * 1024))
            self.pause(st, 6)
            for j in range(4):
                st.extend(direct.stats_dots(SA, T0 + 4 * j, ONE))
        for x in pre:
            if isinstance(x, tuple):
                s.wait_vm(ctok[x[1]])
                s("s_barrier")
            else:
                s(x)
        self.run_mf(s, steps, at=at, fill=list(st), ctok=ctok, fill_from=1)
        tok = direct.stats_final(self, s, h, SA)
        s.wait_ds(tok)
        s("s_barrier")
        for n in sorted(pref):
            if n != 37:
                for x in pref[n]:
                    s(x)

    def check_order(self, s):
        done = set()
        for ins in s:
            if ins.meta.get("checked"):
                done.add(ins.meta["checked"])
            k = ins.meta.get("dep")
            if k is not None:
                assert k in done, "load issued before its dependency was checked: %s %s" % (k, ins.text)

    def check_weights(self, s):
        if self.opts.get("nob"):
            return
        cur = {}
        for ins in s:
            if ins.meta.get("bname"):
                cur[ins.ops[0]] = ins.meta["bname"]
            if ins.meta.get("bname2"):
                cur[ins.meta["bname2"][1]] = ins.meta["bname2"][0]
            if ins.cls == "mfma" and ins.meta.get("need"):
                reg, name = ins.meta["need"]
                assert cur.get(reg) == name, "weights %s expected in %s, found %s" % (name, reg, cur.get(reg))

    def gen(self):
        s = Stream()
        self.urgent, self.bulk, self.trickle = deque(), deque(), deque()
        o = self.opts
        if self.direct:
            import direct
            if self.prof:
                s("s_memrealtime s[100:101]")
                s("s_memtime s[98:99]")
                s("s_waitcnt lgkmcnt(0)")
                s("s_mov_b32 s94, s100")
                s("s_mov_b32 s68, s98")
            direct.entry(self, s, self.codepf(sW))
            self.pro_rest(s)
        else:
            self.prologue(s)
        if self.prof and self.opts.get("single", "1") != "1":
            s("s_memrealtime s[100:101]")
            s("s_waitcnt lgkmcnt(0)")
            s("s_mov_b32 s94, s100")
        self.ts(s, "start")
        if self.prof == 5:
            for k in range(2, 24):
                s("s_mov_b32 s%d, 0" % (sTS + k))
        s("""
        s_lshl_b32 s{kw1}, s{w}, 10
        s_add_u32 s{a1hw}, s{a1h}, s{kw1}
        s_add_u32 s{a1mw}, s{a1m}, s{kw1}
        s_add_u32 s{a3w}, s{a3}, s{kw1}
        """.format(kw1=sKw1, w=sW, a1hw=sA1hw, a1h=sA1h, a1mw=sA1mw, a1m=sA1m, a3w=sA3w, a3=sA3))
        A = {}
        single = self.opts.get("single", "1") == "1"
        if single:
            ncpf = 0 if self.opts.get("nocpf") == "1" else int(self.opts.get("cpf", 2))
            def pack_flag(t, base):
                t("s_lshr_b32 s58, s2, 3")
                t("s_lshl_b32 s58, s58, 7")
                t("s_and_b32 s59, s2, 7")
                t("s_lshl_b32 s59, s59, 2")
                t("s_add_u32 s58, s58, s59")
                t("s_add_u32 s%d, s58, %d" % (sT3, base))
            self.prologue2(s)
            s("s_add_u32 s%d, s95, 1" % sTag)
            s("v_mov_b32 v%d, s%d" % (vOne, sTag))
            self.flag_vec(s)
            if self.direct:
                s.extend(self.second_batch)
                self.pack_flag = pack_flag
                s("v_mov_b32 v%d, v%d" % (vFlag, self.vflag_tmp))
                self.late_tok0 = direct.late(self, s, (3, 4, 58, 59))
                self.f2_first = Stream()
                self.f2_first.wait_vm(self.late_tok0)
                self.f2_first("s_barrier")
                pack_flag(self.f2_first, PFL2)
                self.f2_first("buffer_store_dword v%d, v%d, s[8:11], s%d offen sc1" % (vOne, vFlag, sT3))
                if self.local:
                    s("s_getreg_b32 s%d, hwreg(HW_REG_XCC_ID, 0, 4)" % sXcc)
                    s("s_lshl_b32 s58, s%d, 4" % sTag)
                    s("s_or_b32 s58, s58, s%d" % sXcc)
                    s("v_mov_b32 v60, s58")
                    s("s_and_b32 s58, s2, 7")
                    s("s_lshl_b32 s58, s58, 7")
                    s("s_lshr_b32 s59, s2, 3")
                    s("s_lshl_b32 s59, s59, 2")
                    s("s_add_u32 s58, s58, s59")
                    s("s_add_u32 s58, s58, %d" % PXC)
                    s("buffer_store_dword v60, v%d, s[8:11], s58 offen sc1" % vFlag)
            else:
                self.global_issue(s)
                self.global_check(s)
            self.ts(s, "gsync")
        else:
            s("s_mov_b32 s%d, 1" % sTag)
        if single and not self.direct:
            s("v_and_b32 v68, 15, v%d" % vLane)
            s("v_lshlrev_b32 v68, 2, v68")
            s("v_lshrrev_b32 v69, 4, v%d" % vLane)
            s("v_lshl_add_u32 v68, v69, 8, v68")
        def cs_loads(cg, base, r0):
            s("s_lshl_b32 s58, s%d, 2" % cg)
            s("s_add_u32 s58, s58, s%d" % sW)
            s("s_mul_i32 s59, s58, 3072")
            s("s_add_u32 s59, s59, %d" % base)
            for k in range(3):
                if single:
                    for j in range(4):
                        s("buffer_load_dword v%d, v68, s[8:11], s59 offen offset:%d" % (r0 + 4 * k + j, k * 1024 + j * 64))
                else:
                    s("buffer_load_dwordx4 %s, v%d, s[8:11], s59 offen offset:%d" % (V(r0 + 4 * k, 4), vL16, k * 1024))
        if self.direct:
            A[(1, 0, 0)] = self.A_first
            A[(1, 0, 1)] = direct.groupsA_raw(self, 1)
        else:
            A[(1, 0, 0)] = self.groupsA_lds(1, 0, 0)
            A[(1, 0, 1)] = self.groupsA_lds(1, 0, 1)
        if self.direct:
            pass
        elif single:
            head, tail = self.split_tile(A[(1, 0, 0)])
            for g in head:
                s.extend(g)
            cs_loads(sCG, CSQ, RING + 32)
            nq = int(self.opts.get("nq0", 24))
            for g in self.groupsB(Bx, sBQ, 0, nq):
                s.extend(g)
            self.pack_flag = pack_flag
            if self.opts.get("latefirst", "1") == "1":
                self.late_tok0 = pack.emit_late(s, sW, vL16, (3, 4, 58, 59), DV)
            self.first_tail = tail
            self.q_rest = self.groupsB(Bx, sBQ, nq, 48)
            self.colsums(s, range(3), r0=RING + 32)
        else:
            for g in A[(1, 0, 0)][0]:
                s.extend(g)
            cs_loads(sCG, CSQ, 44)
            cs_loads(sCG3, CSG, 56)
            for g in self.groupsB(Bx, sBQ, 0, 24):
                s.extend(g)
            self.prologue2(s)
            for g in self.groupsB(Bx, sBQ, 24, 30):
                s.extend(g)
            self.colsums(s, range(6))
            self.bulk.extend(self.groupsB(Bx, sBQ, 30, 48))
            self.burst(s, 18)
            self.urgent.extend(A[(1, 0, 1)][0])
        s("s_xor_b32 s%d, s%d, 16384" % (sA2b, sA2))
        self.cs_loads = cs_loads
        self.ts(s, "prolog")
        tok = {}
        U = lambda gs: (lambda: self.urgent.extend(gs))
        def until_issued(gs):
            while any(g is x for g in gs for x in self.urgent):
                s.extend(self.urgent.popleft())
        tails = {(1, 0, 0): [], (1, 0, 1): []}
        for p in range(2):
            last = (p == 1)
            at = {}
            self.urgent.extend(tails[(1, p, 0)])
            if p == 0 and self.direct:
                head1 = list(A[(1, 0, 1)][0])
            elif p == 0 and single:
                q = list(self.q_rest)
                self.urgent.extend(q[:6] + list(self.first_tail[:3]) + q[6:15] + list(self.first_tail[3:]) + q[15:])
                self.urgent.extend(A[(1, 0, 1)][0])
                head1 = list(A[(1, 0, 1)][0])
                if self.opts.get("latefirst", "1") == "1":
                    f2e = Stream()
                    f2e.wait_vm(self.late_tok0)
                    f2e("s_barrier")
                    self.pack_flag(f2e, PFL2)
                    f2e("buffer_store_dword v%d, v%d, s[8:11], s%d offen sc1" % (vOne, vFlag, sT3))
                    at[int(self.opts.get("f2e", 64))] = [f2e]
            elif p == 0:
                self.bulk.extend(self.groupsB(By, sBW, 0, 16))
                self.bulk.extend(self.groupsB(By, sBD, 16, 44))
                head1 = []
            else:
                self.bulk.extend(self.groupsB(By, sBW, 0, 16))
                a, b, c = self.evs("e1E", (48, 96, 127))
                at[a] = [self.ev_sig(4, p - 1, 1, tok[(4, p - 1, 1)])]
                at[b] = [self.ev_poll_issue(1, p, 1)]
                A[(1, p, 1)] = self.groupsA_lds(1, p, 1)
                head1, tails[(1, p, 1)] = self.split_tile(A[(1, p, 1)])
                at[c] = [self.ev_poll_check(1, p, 1), U(head1)]
            if p == 1:
                self.promote(s, "Q", 8, 56, 4)
            if p == 1:
                self.trickle.extend(self.pf(sPfG, 2048 * i) for i in range(self.pf_n["G"]))
            if p == 0 and self.direct:
                direct.first_segment(self, s)
                if self.opts.get("dbgq") == "1":
                    s("s_lshl_b32 s58, s2, 2")
                    s("s_add_u32 s58, s58, s%d" % sW)
                    s("s_mul_i32 s58, s58, %d" % (64 * KB))
                    s("s_add_u32 s58, s58, 0x4000000")
                    for f in range(48):
                        s("buffer_store_dwordx4 %s, v%d, s[8:11], s58 offen" % (Bx(f), vL16))
                        s("s_add_u32 s58, s58, 1024")
                    s("s_lshl_b32 s59, s%d, 14" % sW)
                    s("v_add_u32 v172, s59, v%d" % vL16)
                    for k in range(16):
                        s("ds_read_b128 v[176:179], v172 offset:%d" % (k * 1024))
                        s("buffer_store_dwordx4 v[176:179], v%d, s[8:11], s58 offen" % vL16)
                        s("s_add_u32 s58, s58, 1024")
                        s("s_nop 4")
                for g in head1[:6]:
                    s.extend(g)
                self.urgent.extend(head1[6:])
            else:
                self.seg13(s, 1, p, 0, A[(1, p, 0)], at, urate=(2 if (p == 0 and single) else None))
            self.ts(s, "mf1E.%d" % p)
            if p == 0 and single:
                if self.direct:
                    late_tok = self.late_tok0
                    self.stat_tok = Tok("unused")
                    pref = self.epi_pref(1, 0)
                    for n in sorted(pref):
                        if n != 37:
                            for x in pref[n]:
                                s(x)
                elif self.opts.get("latefirst", "1") == "1":
                    late_tok = self.late_tok0
                else:
                    late_tok = pack.emit_late(s, sW, vL16, (3, 4, 58, 59), DV)
                if self.local:
                    if not self.direct:
                        s("s_getreg_b32 s%d, hwreg(HW_REG_XCC_ID, 0, 4)" % sXcc)
                    pi, pc = self.purity()
                    s.extend(pi)
                    self.pur_check = pc
                self.ts(s, "packed")
            e = Stream(); tok[(1, p, 0)] = self.epi1(e, p, 0)
            self.weave(s, e, every=int(self.opts.get('wv', 10)))
            until_issued(head1)
            if p == 0 and self.local:
                s.extend(self.pur_check)
            self.ts(s, "s1E.%d" % p)
            self.urgent.extend(tails[(1, p, 1)])
            gA = self.groupsA24(2, p, 0)
            a, b, c = self.evs("e1O", (44, 96, 127))
            at = {a: [self.ev_sig(1, p, 0, tok[(1, p, 0)])], b: [self.ev_poll_issue(2, p, 0)],
                  c: [self.ev_poll_check(2, p, 0), U(gA)]}
            if p == 0 and single:
                f2 = Stream()
                f2.wait_vm(late_tok)
                f2("s_barrier")
                self.pack_flag(f2, PFL2)
                f2("buffer_store_dword v%d, v%d, s[8:11], s%d offen sc1" % (vOne, vFlag, sT3))
                g2 = Stream()
                a0, a1, a2 = RING + 16, RING + 17, RING + 18
                g2("v_lshrrev_b32 v%d, 4, v%d" % (a1, vL16))
                g2("s_lshl_b32 s58, s%d, 2" % sCG)
                g2("s_add_u32 s58, s58, %d" % (96 if self.direct else 136))
                g2("v_add_u32 v%d, s58, v%d" % (a0, a1))
                g2("s_lshl_b32 s58, s%d, 4" % sCG3)
                g2("s_sub_u32 s58, s58, 4")
                g2("v_add_u32 v%d, s58, v%d" % (a2, a1))
                g2("v_cmp_lt_u32 vcc, 3, v%d" % a1)
                g2("v_cndmask_b32 v%d, v%d, v%d, vcc" % (a0, a0, a2))
                g2("s_mul_i32 s58, s%d, 11" % sCG)
                g2("s_add_u32 s58, s58, %d" % (108 if self.direct else 148))
                g2("v_add_u32 v%d, s58, v%d" % (a2, a1))
                g2("v_cmp_lt_u32 vcc, 19, v%d" % a1)
                g2("v_cndmask_b32 v%d, v%d, v%d, vcc" % (a0, a0, a2))
                if self.direct:
                    g2("s_mul_i32 s58, s%d, 12" % sCG)
                    g2("s_sub_u32 s58, s58, 31")
                    g2("v_add_u32 v%d, s58, v%d" % (a2, a1))
                    g2("v_cmp_lt_u32 vcc, 30, v%d" % a1)
                    g2("v_cndmask_b32 v%d, v%d, v%d, vcc" % (a0, a0, a2))
                g2("v_lshrrev_b32 v%d, 3, v%d" % (a2, a0))
                g2("v_and_b32 v%d, 7, v%d" % (a0, a0))
                g2("v_lshlrev_b32 v%d, 2, v%d" % (a0, a0))
                g2("v_lshl_add_u32 v%d, v%d, 7, v%d" % (a0, a2, a0))
                g2("s_cmp_eq_u32 s%d, 1" % sW)
                g2("s_cselect_b32 s58, %d, 0" % (43 if self.direct else 31))
                g2("s_cselect_b32 s4, %s, 0" % ("-1" if self.direct else "0x7fffffff"))
                g2("s_cselect_b32 s5, %s, 0" % ("0x7ff" if self.direct else "0"))
                g2("v_cmp_gt_u32 vcc, s58, v%d" % a1)
                g2("v_mov_b32 v%d, 0x7ffffff0" % a2)
                g2("v_cndmask_b32 v%d, v%d, v%d, vcc" % (a0, a2, a0))
                g2("s_mov_b32 s%d, %d" % (sPoll2, PFL2))
                g2("buffer_load_dword v%d, v%d, s[8:11], s%d offen sc1" % (RING + 12, a0, sPoll2))
                c2 = self.global_check2()
                csl = Stream()
                csl("v_and_b32 v%d, 0xf0, v%d" % (DV + 12, vL16))
                csl("v_lshrrev_b32 v%d, 2, v%d" % (DV + 12, DV + 12))
                csl("v_lshrrev_b32 v%d, 8, v%d" % (DV + 13, vL16))
                csl("v_lshl_add_u32 v%d, v%d, 8, v%d" % (DV + 12, DV + 13, DV + 12))
                self.cs_loads_to(csl, sCG3, CSG, DV, DV + 12)
                lf = self.opts.get("latefirst", "1") == "1"
                fa, fb, fc = self.evs("f2", (40, 20, 56) if lf else (40, 88, 125))
                if not lf:
                    at.setdefault(fa, []).append(f2)
                at.setdefault(fb, []).append(g2)
                g_early0 = lf and self.opts.get("prog0", "1") == "1"
                def after_flag2():
                    self.bulk.extend(self.groupsB(By, sBW, 0, 16))
                    if g_early0:
                        self.bulk.extend(self.progressive(self.groupsB(Bx, sBG, 0, 48), 8))
                at.setdefault(fc, []).extend([c2, after_flag2, csl])
                self.cs_reduce = Stream()
                self.colsums(self.cs_reduce, range(3, 6), r0=DV, first=False)
            if p == 0 and self.opts.get("ct0") == "1":
                at.setdefault(4, []).append(self.code_touch())
            early_g = (p == 1 or not single) and self.opts.get("prog", "1") == "1"
            early_g0 = p == 0 and single and self.opts.get("latefirst", "1") == "1" and self.opts.get("prog0", "1") == "1"
            if early_g:
                while self.bulk:
                    s.extend(self.bulk.popleft())
                self.bulk.extend(self.progressive(self.groupsB(Bx, sBG, 0, 48), 8))
            self.seg13(s, 1, p, 1, A[(1, p, 1)], at, raw_stats=(p == 0 and self.direct))
            self.ts(s, "mf1O.%d" % p)
            if early_g:
                self.clear_min()
            elif early_g0:
                self.clear_min()
                while self.bulk and any(x.meta.get("bname") == "W" for x in self.bulk[0]):
                    s.extend(self.bulk.popleft())
            else:
                while self.bulk:
                    s.extend(self.bulk.popleft())
                self.bulk.extend(self.groupsB(Bx, sBG, 0, 48))
            e = Stream(); tok[(1, p, 1)] = self.epi1(e, p, 1)
            self.weave(s, e, every=int(self.opts.get('wv', 10)))
            self.flush_urgent(s)
            self.ts(s, "s1O.%d" % p)
            if p == 0 and single:
                s.extend(self.cs_reduce)
            self.seg24_mf(s, 2, p, 0)
            self.fs(s, "MF")
            bsel = lambda key, d0, d1: int(self.opts.get(key + str(p), d0 if p == 0 and single else d1))
            self.hold = True
            mid = Stream()
            mid.extend(self.ev_sig(1, p, 1, tok[(1, p, 1)]))
            e = Stream(); tok[(2, p, 0)] = self.epi24(e, 2, p, 0, mid=mid)
            self.weave(s, e, every=int(self.opts.get('wv', 10)))
            s.extend(self.ev_poll_issue(2, p, 1))
            self.fs(s, "EPI")
            self.hold = False
            if self.opts.get("ord2", "0") == "1":
                s.extend(self.ev_poll_check(2, p, 1))
                self.ts(s, "s2E.%d" % p)
                self.urgent.extend(self.groupsA24(2, p, 1))
                self.flush_urgent(s)
                self.fs(s, "Aiss")
                self.burst(s, bsel("b2F", 6, 0))
                s.extend(self.ev_sig(2, p, 0, tok[(2, p, 0)]))
                self.fs(s, "SIG2")
                self.p3_in_mf = int(self.opts.get("i3E", 2))
                if self.p3_in_mf < 0:
                    s.extend(self.ev_poll_issue(3, p, 0, alt=True))
                self.burst(s, bsel("b2O", 8, 0))
            else:
                self.burst(s, bsel("b2F", 6, 0))
                self.fs(s, "PI")
                s.extend(self.ev_sig(2, p, 0, tok[(2, p, 0)]))
                s.extend(self.ev_poll_issue(3, p, 0, alt=True))
                self.fs(s, "SIG2")
                s.extend(self.ev_poll_check(2, p, 1))
                self.ts(s, "s2E.%d" % p)
                self.urgent.extend(self.groupsA24(2, p, 1))
                self.flush_urgent(s)
                self.burst(s, bsel("b2O", 8, 0))
            A[(3, p, 0)] = self.groupsA_lds(3, p, 0)
            head3, tail3 = self.split_tile(A[(3, p, 0)])
            c3 = int(self.opts.get("c3E", 26 if self.opts.get("ord2", "0") == "1" else 0))
            if c3 < 0:
                s.extend(self.ev_poll_check(3, p, 0, alt=True))
                self.urgent.extend(head3)
                self.flush_urgent(s)
                self.seg24_mf(s, 2, p, 1)
            else:
                at3 = {c3: [self.ev_poll_check(3, p, 0, alt=True), U(head3)]}
                if self.opts.get("ord2", "0") == "1" and self.p3_in_mf >= 0:
                    at3.setdefault(self.p3_in_mf, []).insert(0, self.ev_poll_issue(3, p, 0, alt=True))
                self.seg24_mf(s, 2, p, 1, at=at3)
            self.fs(s, "MF")
            self.bulk.extend(self.groupsB(By, sBD, 0, 44 if (p == 0 and single) else 16))
            e = Stream(); tok[(2, p, 1)] = self.epi24(e, 2, p, 1)
            self.weave(s, e, every=5)
            self.fs(s, "EPI")
            until_issued(head3)
            self.ts(s, "s2O.%d" % p)
            self.urgent.extend(tail3)
            A[(3, p, 1)] = self.groupsA_lds(3, p, 1)
            head3, tail3 = self.split_tile(A[(3, p, 1)])
            a, b, c = self.evs("e3E", (48, 108, 150))
            at = {a: [self.ev_sig(2, p, 1, tok[(2, p, 1)])], b: [self.ev_poll_issue(3, p, 1)],
                  c: [self.ev_poll_check(3, p, 1), U(head3)]}
            if not last:
                self.trickle.extend(self.pf(sPfQ, 2048 * i) for i in range(self.pf_n["Q"]))
            self.promote(s, "G", 12, 56, 4)
            if p == 0 or self.opts.get("ct2") == "1":
                at.setdefault(int(self.opts.get("cts", 4)), []).append(self.code_touch())
            self.seg13(s, 3, p, 0, A[(3, p, 0)], at)
            self.ts(s, "mf3E.%d" % p)
            e = Stream(); tok[(3, p, 0)] = self.epi3(e, p, 0)
            self.weave(s, e, every=int(self.opts.get('wv3', 12)))
            until_issued(head3)
            self.ts(s, "s3E.%d" % p)
            self.urgent.extend(tail3)
            gA = self.groupsA24(4, p, 0)
            a, b, c = self.evs("e3O", (64, 120, 160))
            at = {a: [self.ev_sig(3, p, 0, tok[(3, p, 0)])], b: [self.ev_poll_issue(4, p, 0)],
                  c: [self.ev_poll_check(4, p, 0), U(gA)]}
            if not last:
                self.trickle.extend(self.pf(sPfW, 2048 * i) for i in range(self.pf_n["W"]))
            if p == 0 and self.opts.get("ct1", "1") == "1":
                at.setdefault(4, []).append(self.code_touch())
            early_q = (not last) and self.opts.get("prog", "1") == "1"
            if early_q:
                self.bulk.extend(self.progressive(self.groupsB(Bx, sBQ, 0, 48), 12))
            self.seg13(s, 3, p, 1, A[(3, p, 1)], at)
            self.ts(s, "mf3O.%d" % p)
            self.flush_urgent(s)
            if early_q:
                self.clear_min()
                while self.bulk and not any(x.meta.get("bname") == "Q" for x in self.bulk[0]):
                    s.extend(self.bulk.popleft())
            else:
                while self.bulk:
                    s.extend(self.bulk.popleft())
                if not last:
                    self.bulk.extend(self.groupsB(Bx, sBQ, 0, 48))
            e = Stream(); tok[(3, p, 1)] = self.epi3(e, p, 1)
            self.weave(s, e, every=int(self.opts.get('wv3', 12)))
            self.ts(s, "s3O.%d" % p)
            a = int(self.opts.get("e4E", 60))
            at = {a: [self.ev_sig(3, p, 1, tok[(3, p, 1)])]}
            at.setdefault(int(self.opts.get("h4", 62)), []).append(self.set_hold(True))
            self.seg24_mf(s, 4, p, 0, at=at)
            self.fs(s, "MF")
            if last:
                s.extend(self.ev_poll_issue(4, p, 1))
            e = Stream(); tok[(4, p, 0)] = self.epi24(e, 4, p, 0)
            self.weave(s, e, every=int(self.opts.get('wv', 10)))
            ord4 = self.opts.get("ord4", "0") == "1"
            if not last:
                s.extend(self.ev_poll_issue(4, p, 1))
                if not ord4:
                    s.extend(self.ev_sig(4, p, 0, tok[(4, p, 0)]))
                    s.extend(self.ev_poll_issue(1, p + 1, 0, alt=True))
            self.fs(s, "EPI")
            s.extend(self.ev_poll_check(4, p, 1))
            self.hold = False
            self.ts(s, "s4E.%d" % p)
            self.urgent.extend(self.groupsA24(4, p, 1))
            self.flush_urgent(s)
            i1 = int(self.opts.get("i1E", 20))
            if ord4 and not last:
                s.extend(self.ev_sig(4, p, 0, tok[(4, p, 0)]))
                if i1 < 0:
                    s.extend(self.ev_poll_issue(1, p + 1, 0, alt=True))
            at = {}
            head1 = []
            if not last:
                A[(1, p + 1, 0)] = self.groupsA_lds(1, p + 1, 0)
                head1, tails[(1, p + 1, 0)] = self.split_tile(A[(1, p + 1, 0)])
                at = {int(self.opts.get("c1E", 60 if ord4 else 8)): [self.ev_poll_check(1, p + 1, 0, alt=True), U(head1)]}
                if ord4 and i1 >= 0:
                    at.setdefault(i1, []).insert(0, self.ev_poll_issue(1, p + 1, 0, alt=True))
            self.burst(s, int(self.opts.get("b4O", 0)))
            self.seg24_mf(s, 4, p, 1, at=at)
            e = Stream(); tok[(4, p, 1)] = self.epi24(e, 4, p, 1)
            self.weave(s, e, every=5)
            until_issued(head1)
            self.ts(s, "s4O.%d" % p)
        if single:
            s("s_cmp_eq_u32 s2, 0")
            s("s_cbranch_scc0 M_noep")
            s("s_mov_b32 s36, %d" % EPOCH)
            s("buffer_store_dword v%d, v%d, s[8:11], s36 offen" % (vOne, vFlag))
            s("M_noep:")
        if self.prof == 4:
            s = self.resolve_marks(s)
        if self.prof:
            s("s_lshl_b32 s36, s2, 2")
            s("s_add_u32 s36, s36, s%d" % sW)
            s("s_lshl_b32 s36, s36, 8")
            s("s_add_u32 s36, s36, %d" % 0x3000000)
            s("s_memrealtime s[100:101]")
            s("s_waitcnt lgkmcnt(0)")
            s("s_mov_b32 s95, s100")
            s("s_mov_b64 exec, 1")
            for k in (94, 95):
                s("v_mov_b32 v20, s%d" % k)
                s("buffer_store_dword v20, off, s[8:11], s36 offset:%d" % (4 * (62 + k - 94)))
            if self.prof == 2 and self.local:
                for k, r in enumerate((sImp, sXcc)):
                    s("v_mov_b32 v20, s%d" % r)
                    s("buffer_store_dword v20, off, s[8:11], s36 offset:%d" % (4 * (8 + k)))
            if self.prof == 7:
                for k in range(6):
                    s("v_mov_b32 v20, s%d" % (80 + k))
                    s("buffer_store_dword v20, off, s[8:11], s36 offset:%d" % (4 * (8 + k)))
            if self.prof == 5:
                for k in range(16):
                    s("v_mov_b32 v20, s%d" % (sTS + 2 + k))
                    s("buffer_store_dword v20, off, s[8:11], s36 offset:%d" % (4 * (8 + k)))
            for k in range(self.nts):
                s("v_mov_b32 v20, s%d" % (sTS + (2 * k if self.prof in (3, 8) else k)))
                s("buffer_store_dword v20, off, s[8:11], s36 offset:%d" % (4 * k))
            s("s_mov_b64 exec, -1")
        s("s_waitcnt vmcnt(0)")
        self.check_weights(s)
        self.check_order(s)
        pol = self.opts.get("ntA")
        if pol:
            for ins in s:
                if ins.meta.get("dep") is not None and " sc1" in ins.text:
                    ins.text = ins.text.replace(" sc1", " sc1 nt" if pol == "1" else {"2": " nt", "3": ""}[pol])
        if self.opts.get("ntS") == "1":
            for ins in s:
                if ins.cls == "vm_st" and "dwordx4" in ins.text and " sc1" in ins.text:
                    ins.text = ins.text.replace(" sc1", " sc1 nt")
        lines = finalize(s, verbose=False)
        lines.append("M_end:")
        lines.append("  s_endpgm")
        lines += self.slow
        lines.append("M_last:")
        lines.append("  s_endpgm")
        return lines


def gen_main(opts):
    m = Main(opts)
    lines = m.gen()
    if m.prof:
        lines.insert(0, "; timestamps: " + " ".join(m.tsnames))
    return lines, LDS_BYTES
```
